```python
import torch

def _softmax(x, axis=-1):
    return torch.softmax(x, dim=axis)
def _gelu(x):
    return torch.nn.functional.gelu(x, approximate="tanh")
def _silu(x):
    return torch.nn.functional.silu(x)
def _sigmoid(x):
    return torch.sigmoid(x)
def _layernorm(x, axis=-1, eps=1e-5):
    m = x.mean(dim=axis, keepdim=True)
    v = x.var(dim=axis, keepdim=True, unbiased=False)
    return (x - m) / torch.sqrt(v + eps)
def _scatter_add(tgt, idx, src, axis=0):
    return tgt.clone().index_add_(axis, idx, src)
def _segment_sum(src, seg, n):
    out = torch.zeros((n,) + src.shape[1:], dtype=src.dtype)
    return out.index_add_(0, seg, src)
def _pad(x, pw):
    flat = tuple(v for pair in reversed(pw) for v in pair)
    return torch.nn.functional.pad(x, flat)

kernel_name = 'recurrent_scan__spectral_fnet__glu_gated_glu__prompt'

def setup_inputs():

    _w = (lambda a: (lambda t: t.to(torch.bfloat16) if t.is_floating_point() else t)(torch.as_tensor(a)))
    def _A_setup():
        B, S, D = 1, 2048, 512
        ns = torch.arange(S)[:, None] * torch.arange(S)[None, :]
        nd = torch.arange(D)[:, None] * torch.arange(D)[None, :]
        Ws_re = torch.cos(-2.0 * torch.pi * ns / S).to(float)
        Ws_im = torch.sin(-2.0 * torch.pi * ns / S).to(float)
        Wd_re = torch.cos(-2.0 * torch.pi * nd / D).to(float)
        Wd_im = torch.sin(-2.0 * torch.pi * nd / D).to(float)
        return {
            "x": _w((lambda *s: torch.randn(*s, dtype=torch.bfloat16) * 0.05)(B, S, D)),
            "dft_seq_re": _w(Ws_re),
            "dft_seq_im": _w(Ws_im),
            "dft_hid_re": _w(Wd_re),
            "dft_hid_im": _w(Wd_im),
        }
    _A_in = _A_setup()

    def _B_setup():
        B, S, D, F = 1, 2048, 512, 1792
        return {
            "x": _w((lambda *s: torch.randn(*s, dtype=torch.bfloat16) * 0.05)(B, S, D)),
            "w_gate": _w((lambda *s: torch.randn(*s, dtype=torch.bfloat16) * 0.05)(D, F)),
            "w_up": _w((lambda *s: torch.randn(*s, dtype=torch.bfloat16) * 0.05)(D, F)),
            "w_down": _w((lambda *s: torch.randn(*s, dtype=torch.bfloat16) * 0.05)(F, D)),
        }
    _B_in = _B_setup()

    return {
        "A_x": _A_in["x"],
        "A_dft_seq_re": _A_in["dft_seq_re"],
        "A_dft_seq_im": _A_in["dft_seq_im"],
        "A_dft_hid_re": _A_in["dft_hid_re"],
        "A_dft_hid_im": _A_in["dft_hid_im"],
        "B_x": _B_in["x"],
        "B_w_gate": _B_in["w_gate"],
        "B_w_up": _B_in["w_up"],
        "B_w_down": _B_in["w_down"],
    }

def reference(A_x, A_dft_seq_re, A_dft_seq_im, A_dft_hid_re, A_dft_hid_im, B_x, B_w_gate, B_w_up, B_w_down):
    def _A_ref(x, dft_seq_re, dft_seq_im, dft_hid_re, dft_hid_im):
        a = torch.einsum("bsd,ed->bse", x, dft_hid_re)
        b = torch.einsum("bsd,ed->bse", x, dft_hid_im)
        y = torch.einsum("ts,bse->bte", dft_seq_re, a) - torch.einsum("ts,bse->bte", dft_seq_im, b)
        return y

    def _B_ref(x, w_gate, w_up, w_down):
        g = torch.einsum("bsd,df->bsf", x, w_gate)
        u = torch.einsum("bsd,df->bsf", x, w_up)
        h = _sigmoid(g) * u
        return torch.einsum("bsf,fd->bsd", h, w_down)

    x = A_x
    xn = _layernorm(x, axis=-1)
    s = _A_ref(xn, A_dft_seq_re, A_dft_seq_im, A_dft_hid_re, A_dft_hid_im)
    g = _silu(_B_ref(xn, B_w_gate, B_w_up, B_w_down))
    return x + s * g
```

```python
import sys

NAME = "recurrent_scan__spectral_fnet__glu_gated_glu__prompt"
OPT = dict(prof=0, D=16, touch=1, spin=200000)
for a in sys.argv[2:]:
    k, v = a.split("=")
    OPT[k] = int(v)
PROF = OPT["prof"]
D = OPT["D"]

H_OFF, Z_OFF, ST_OFF, CS_OFF = 0, 0x800000, 0xA00000, 0xA10000
FLR, FLC, FLH, PROF_OFF, WS_SIZE = 0xA40000, 0xA48000, 0xA50000, 0xA60000, 0xB00000
SLOT = 49152
MISC = 147456
CSL, MRP, RL, NMRL, TAGL = MISC, MISC + 1024, MISC + 2048, MISC + 2560, MISC + 3072
RED = 20 * 4096
LOG2E = 0x3FB8AA3B
NLOG2E = 0xBFB8AA3B


def f2u(x):
    import struct
    return struct.unpack("<I", struct.pack("<f", x))[0]


L = []


def e(s):
    L.append("    " + s)


def lab(s):
    L.append(s + ":")


def cm(s):
    L.append("    ; " + s)


def vr(a, n):
    return f"v[{a}:{a + n - 1}]"


SRD_X, SRD_W0, SRD_W1, SRD_WD, SRD_WS, SRD_OUT, SRD_DBG, SRD_WM = 4, 8, 12, 16, 20, 24, 28, 32
sWAVE, sI, sJ, sT1, sCB, sRS, sCOL, sDFT, sTAG, sIDX = 36, 37, 38, 39, 40, 41, 42, 43, 44, 45
sSTAMP = 80
nstamp = [0]


def srd(n):
    return f"s[{n}:{n + 3}]"


def stamp(i):
    if PROF:
        e(f"s_memtime s[{sSTAMP + 2 * i}:{sSTAMP + 2 * i + 1}]")


def stamp_flush(n, vt):
    if not PROF:
        return
    e("s_waitcnt lgkmcnt(0)")
    for i in range(8):
        e(f"v_mov_b32 v{vt + i}, s{sSTAMP + 2 * i}" if i < n else f"v_mov_b32 v{vt + i}, 0")
    e(f"s_lshl_b32 s78, s2, 3")
    e(f"s_add_u32 s78, s78, s{sWAVE}")
    e(f"s_lshl_b32 s78, s78, 6")
    e(f"s_add_u32 s78, s78, {PROF_OFF}")
    e(f"v_mov_b32 v{vt + 8}, 0")
    e(f"buffer_store_dwordx4 {vr(vt, 4)}, v{vt + 8}, {srd(SRD_WS)}, s78 offen")
    e(f"buffer_store_dwordx4 {vr(vt + 4, 4)}, v{vt + 8}, {srd(SRD_WS)}, s78 offen offset:16")
    e(f"s_memrealtime s[76:77]")
    e("s_waitcnt lgkmcnt(0)")
    e(f"v_mov_b32 v{vt}, s98")
    e(f"v_mov_b32 v{vt + 1}, s76")
    e(f"buffer_store_dwordx2 {vr(vt, 2)}, v{vt + 8}, {srd(SRD_WS)}, s78 offen offset:32")


uid = [0]


def poll(vdst, vaddr, ssoff, srdn, cond_tag=True):
    uid[0] += 1
    n = uid[0]
    e(f"s_mov_b32 s75, {OPT['spin']}")
    lab(f"POLL{n}")
    e(f"buffer_load_dword v{vdst}, v{vaddr}, {srd(srdn)}, {ssoff} offen sc1")
    e("s_waitcnt vmcnt(0)")
    if cond_tag:
        e(f"v_cmp_ne_u32 vcc, s{sTAG}, v{vdst}")
    else:
        e(f"v_cmp_eq_u32 vcc, 0, v{vdst}")
    e("s_nop 1")
    e("s_cmp_eq_u64 vcc, 0")
    e(f"s_cbranch_scc1 POLLD{n}")
    e("s_sleep 1")
    e("s_sub_u32 s75, s75, 1")
    e("s_cmp_lg_u32 s75, 0")
    e(f"s_cbranch_scc1 POLL{n}")
    lab(f"POLLD{n}")


def prologue():
    e("s_cmp_ge_u32 s2, 256")
    e("s_cbranch_scc1 END")
    e("s_load_dwordx2 s[4:5], s[0:1], 0")
    e("s_load_dwordx4 s[48:51], s[0:1], 24")
    e("s_load_dwordx8 s[52:59], s[0:1], 48")
    e("s_load_dwordx4 s[60:63], s[0:1], 80")
    if PROF:
        e("s_memrealtime s[98:99]")
        stamp(0)
    e("v_lshrrev_b32 v1, 6, v0")
    e("v_and_b32 v0, 63, v0")
    e(f"s_lshr_b32 s{sIDX}, s2, 3")
    e(f"v_readfirstlane_b32 s{sWAVE}, v1")
    e("s_and_b32 s64, s2, 1")
    e("s_lshl_b32 s64, s64, 3")
    e(f"s_and_b32 s65, s{sIDX}, 7")
    e(f"s_add_u32 s{sI}, s64, s65")
    e("s_bfe_u32 s64, s2, 0x20001")
    e("s_lshl_b32 s64, s64, 2")
    e(f"s_lshr_b32 s65, s{sIDX}, 3")
    e(f"s_add_u32 s{sJ}, s64, s65")
    e("s_and_b32 s64, s2, 7")
    e("s_lshl_b32 s64, s64, 2")
    e(f"s_and_b32 s65, s{sIDX}, 3")
    e(f"s_add_u32 s{sT1}, s64, s65")
    e(f"s_lshr_b32 s{sCB}, s{sIDX}, 2")
    e(f"s_lshl_b32 s{sCOL}, s{sJ}, 8")
    e(f"s_sub_u32 s64, s{sCOL}, {14 * 256}")
    e(f"s_cmp_ge_u32 s{sJ}, 14")
    e(f"s_cselect_b32 s{sDFT}, 1, 0")
    e(f"s_movk_i32 s{sRS}, 3584")
    e(f"s_cselect_b32 s{sRS}, 1024, s{sRS}")
    e(f"s_cselect_b32 s{sCOL}, s64, s{sCOL}")
    e(f"s_lshl_b32 s10, s{sRS}, 9")
    e("s_mov_b32 s14, s10")
    e("s_mov_b32 s6, 0x200000")
    e("s_mov_b32 s7, 0x20000")
    e("s_mov_b32 s11, 0x20000")
    e("s_mov_b32 s15, 0x20000")
    e(f"s_mov_b32 s18, {1792 * 1024}")
    e("s_mov_b32 s19, 0x20000")
    e(f"s_mov_b32 s22, {WS_SIZE}")
    e("s_mov_b32 s23, 0x20000")
    e("s_mov_b32 s26, 0x200000")
    e("s_mov_b32 s27, 0x20000")
    e("s_mov_b32 s30, 256")
    e("s_mov_b32 s31, 0x20000")
    e("s_waitcnt lgkmcnt(0)")
    e(f"s_cmp_eq_u32 s{sDFT}, 1")
    e("s_cselect_b64 s[8:9], s[48:49], s[52:53]")
    e("s_cselect_b64 s[12:13], s[50:51], s[54:55]")
    e("s_mov_b64 s[16:17], s[56:57]")
    e("s_mov_b64 s[24:25], s[58:59]")
    e("s_mov_b64 s[28:29], s[60:61]")
    e("s_mov_b64 s[20:21], s[62:63]")
    e(f"s_cmp_lt_u32 s{sWAVE}, 4")
    e("s_cbranch_scc1 CWAVE")
    e(f"s_cmp_eq_u32 s{sWAVE}, 6")
    e("s_cbranch_scc1 L2WAVE")
    e(f"s_cmp_eq_u32 s{sWAVE}, 7")
    e("s_cbranch_scc1 L3WAVE")


def wd_voffset(vd, vt):
    e(f"v_lshrrev_b32 v{vt}, 3, v0")
    e(f"v_lshlrev_b32 v{vd}, 10, v{vt}")
    e(f"v_bfe_u32 v{vt}, v0, 4, 1")
    e(f"v_lshlrev_b32 v{vt}, 2, v{vt}")
    e(f"v_and_b32 v{vt + 1}, 7, v0")
    e(f"v_xor_b32 v{vt}, v{vt}, v{vt + 1}")
    e(f"v_lshl_add_u32 v{vd}, v{vt}, 4, v{vd}")


def l01wave():
    vX0, vX1, vW, vWD = 2, 3, 4, 5
    sLW, sXa, sXb, sWo, sS0, sS1, sR4, sT, sCnt, sWd = 64, 65, 66, 67, 68, 69, 70, 71, 72, 73
    cm("================ L0/L1: DMA waves ================")
    e(f"s_sub_u32 s{sLW}, s{sWAVE}, 4")
    e(f"s_cmp_eq_u32 s{sLW}, 0")
    e("s_cselect_b64 s[32:33], s[8:9], s[12:13]")
    e("s_mov_b32 s34, s10")
    e("s_mov_b32 s35, 0x20000")
    e("v_lshrrev_b32 v6, 3, v0")
    e(f"v_lshlrev_b32 v{vX0}, 16, v6")
    e("v_lshrrev_b32 v6, 1, v6")
    e("v_and_b32 v7, 7, v0")
    e("v_xor_b32 v6, v6, v7")
    e(f"v_lshl_add_u32 v{vX0}, v6, 4, v{vX0}")
    e(f"v_xor_b32 v{vX1}, 64, v{vX0}")
    e("v_lshrrev_b32 v6, 4, v0")
    e(f"v_mul_lo_u32 v{vW}, v6, s{sRS}")
    e("v_bfe_u32 v7, v0, 2, 2")
    e("v_xor_b32 v7, v7, v6")
    e("v_lshlrev_b32 v7, 2, v7")
    e("v_and_b32 v8, 3, v0")
    e("v_or_b32 v7, v7, v8")
    e(f"v_lshl_add_u32 v{vW}, v7, 4, v{vW}")
    e(f"s_lshl_b32 s{sXa}, s{sI}, 1")
    e(f"s_add_u32 s{sXa}, s{sXa}, s{sLW}")
    e(f"s_lshl_b32 s{sXa}, s{sXa}, 10")
    e(f"s_add_u32 s{sXb}, s{sXa}, {32 * 1024}")
    e(f"s_mov_b32 s{sWo}, s{sCOL}")
    e(f"s_lshl_b32 s{sR4}, s{sRS}, 2")
    e(f"s_lshl_b32 s74, s{sLW}, 10")
    e(f"s_lshl_b32 s76, s{sLW}, 12")

    def wpieces(base_sgpr, imm):
        e(f"s_add_u32 s{sT}, s{base_sgpr}, s74")
        e(f"s_add_u32 m0, s{sT}, {imm}")
        e("s_nop 0")
        for k in range(8):
            e(f"buffer_load_dwordx4 v{vW}, {srd(SRD_WM)}, s{sWo} offen lds")
            if k < 7:
                e("s_add_u32 m0, m0, 2048")
            e(f"s_add_u32 s{sWo}, s{sWo}, s{sR4}")

    def xpieces(base_sgpr, half):
        sx = sXb if half else sXa
        e(f"s_add_u32 s{sT}, s{base_sgpr}, s76")
        e(f"s_add_u32 m0, s{sT}, {32768 + half * 8192}")
        e(f"s_mov_b32 s{sT}, s{sx}")
        for k in range(4):
            e(f"buffer_load_dwordx4 v{vX1 if k & 1 else vX0}, {srd(SRD_X)}, s{sT} offen lds")
            if k < 3:
                e("s_add_u32 m0, m0, 1024")
                e(f"s_add_u32 s{sT}, s{sT}, 0x80000")
        e(f"s_add_u32 s{sx}, s{sx}, 128")

    e(f"s_mov_b32 s{sS0}, {SLOT}")
    e(f"s_mov_b32 s{sS1}, {2 * SLOT}")
    cm("G0 = x0 + W0 ; G1 = W1 + x1a")
    xpieces(sS0, 0)
    xpieces(sS0, 1)
    wpieces(sS0, 0)
    wpieces(sS0, 16384)
    xpieces(sS1, 0)
    wd_voffset(vWD, 6)
    e(f"s_mov_b32 s{sS0}, {2 * SLOT}")
    e(f"s_mov_b32 s{sS1}, 0")
    e(f"s_mov_b32 s{sCnt}, 6")
    e("s_waitcnt vmcnt(12)")
    stamp(1)
    e("s_barrier")
    lab("L01LOOP")
    wpieces(sS0, 0)
    xpieces(sS0, 1)
    e("s_waitcnt vmcnt(12)")
    e("s_barrier")
    wpieces(sS0, 16384)
    xpieces(sS1, 0)
    e(f"s_mov_b32 s{sS0}, s{sS1}")
    e(f"s_add_u32 s{sS1}, s{sS1}, {SLOT}")
    e(f"s_cmp_eq_u32 s{sS1}, {3 * SLOT}")
    e(f"s_cselect_b32 s{sS1}, 0, s{sS1}")
    e(f"s_sub_u32 s{sCnt}, s{sCnt}, 1")
    e(f"s_cmp_lg_u32 s{sCnt}, 0")
    e("s_waitcnt vmcnt(12)")
    e("s_barrier")
    e("s_cbranch_scc1 L01LOOP")
    cm("after B12: G14")
    wpieces(sS0, 0)
    xpieces(sS0, 1)
    e("s_waitcnt vmcnt(12)")
    e("s_barrier")
    wpieces(sS0, 16384)
    e(f"s_lshl_b32 s{sWd}, s{sCB}, 7")
    e(f"s_lshl_b32 s{sT}, s{sLW}, 14")
    e(f"s_add_u32 s{sWd}, s{sWd}, s{sT}")
    e(f"s_lshl_b32 m0, s{sLW}, 11")
    e("s_nop 0")

    def units(n):
        for _ in range(n):
            e(f"buffer_load_dwordx4 v{vWD}, {srd(SRD_WD)}, s{sWd} offen lds")
            e("s_add_u32 m0, m0, 1024")
            e(f"s_add_u32 s{sWd}, s{sWd}, 8192")
            e(f"buffer_load_dwordx4 v{vWD}, {srd(SRD_WD)}, s{sWd} offen lds")
            e("s_add_u32 m0, m0, 3072")
            e(f"s_add_u32 s{sWd}, s{sWd}, 24576")

    units(2)
    e("s_waitcnt vmcnt(12)")
    e("s_barrier")
    units(6)
    e("s_waitcnt vmcnt(16)")
    e("s_barrier")
    units(6)
    e("s_barrier")
    e(f"s_mov_b32 s{sCnt}, 11")
    lab("L01WD")
    units(2)
    e(f"s_sub_u32 s{sCnt}, s{sCnt}, 1")
    e(f"s_cmp_lg_u32 s{sCnt}, 0")
    e("s_cbranch_scc1 L01WD")
    e("s_waitcnt vmcnt(0)")
    stamp(2)
    e("s_barrier")
    stamp_flush(3, 8)
    e("s_endpgm")


def l23_phase2(which):
    vWD, vZ, vF = 2, 3, 4
    sWd, sZ = 64, 65
    ST0 = 64
    wd_voffset(vWD, 6)
    e("v_and_b32 v6, 3, v0")
    e("v_bfe_u32 v7, v0, 3, 2")
    e("v_lshl_add_u32 v6, v7, 2, v6")
    e("v_bfe_u32 v7, v0, 2, 1")
    e("v_lshl_add_u32 v6, v7, 4, v6")
    e("v_and_b32 v7, 32, v0")
    e("v_add_u32 v6, v6, v7")
    e(f"s_lshl_b32 s66, s{sCB}, 6")
    e("v_add_u32 v6, s66, v6")
    e("v_sub_u32 v7, 512, v6")
    e("v_and_b32 v7, 255, v7")
    e(f"s_cmp_ge_u32 s{sCB}, 4")
    e("s_cselect_b64 s[68:69], -1, 0")
    e(f"s_sub_u32 s67, 32, s{sT1}")
    e("s_and_b32 s67, s67, 31")
    e(f"s_cmp_ge_u32 s{sCB}, 4")
    e(f"s_cselect_b32 s67, s67, s{sT1}")
    e("v_cndmask_b32 v7, v6, v7, s[68:69]")
    e(f"v_lshlrev_b32 v{vZ}, 4, v7")
    e("v_cmp_eq_u32 vcc, 0, v6")
    e(f"v_mov_b32 v7, 0x40000000")
    e(f"s_lshl_b32 s{sZ}, s67, 16")
    e(f"v_cndmask_b32 v{vZ}, v{vZ}, v7, vcc")
    e(f"s_add_u32 s{sZ}, s{sZ}, {Z_OFF + which * 8 * 4096}")
    e(f"s_lshl_b32 s{sWd}, s{sCB}, 7")
    e(f"s_add_u32 s{sWd}, s{sWd}, {36 * 32768 + which * 16384}")
    for u in range(20):
        e(f"buffer_load_dwordx4 {vr(ST0 + 8 * u, 4)}, v{vWD}, {srd(SRD_WD)}, s{sWd} offen")
        e(f"s_add_u32 s{sWd}, s{sWd}, 8192")
        e(f"buffer_load_dwordx4 {vr(ST0 + 8 * u + 4, 4)}, v{vWD}, {srd(SRD_WD)}, s{sWd} offen")
        e(f"s_add_u32 s{sWd}, s{sWd}, 24576")
    e("v_bfe_u32 v6, v0, 1, 4")
    e("v_lshlrev_b32 v6, 4, v6")
    e("v_and_b32 v7, 1, v0")
    e("v_add3_u32 v6, v6, v7, 14")
    e(f"v_lshlrev_b32 v{vF}, 7, v6")
    e(f"s_mov_b32 s66, {FLH}")
    poll(5, vF, "s66", SRD_WS)
    stamp(4)
    for g in range(8):
        e(f"buffer_load_dwordx4 {vr(8 + 4 * g, 4)}, v{vZ}, {srd(SRD_WS)}, s{sZ} offen sc1")
        e(f"s_add_u32 s{sZ}, s{sZ}, 4096")
    e("v_lshlrev_b32 v6, 4, v0")
    e(f"v_add_u32 v7, {MISC + which * 8192}, v6")
    e(f"v_add_u32 v6, {which * 2048}, v6")
    e("s_waitcnt vmcnt(0)")
    for g in range(8):
        e(f"ds_write_b128 v7, {vr(8 + 4 * g, 4)} offset:{g * 1024}")
    stamp(5)
    e("s_barrier")
    for u in range(20):
        if u == 16:
            e("v_add_u32 v6, 0x10000, v6")
        off = (u * 4096) & 0xFFFF
        e(f"ds_write_b128 v6, {vr(ST0 + 8 * u, 4)} offset:{off}")
        e(f"ds_write_b128 v6, {vr(ST0 + 8 * u + 4, 4)} offset:{off + 1024}")
    e("s_waitcnt lgkmcnt(0)")
    stamp(6)
    e("s_barrier")
    stamp_flush(7, 8)
    e("s_endpgm")


def l2wave():
    vA, vS, vDum, vTD, vC = 2, 4, 6, 7, 8
    lab("L2WAVE")
    cm("================ L2: L2-cache touches, column sums ================")
    e(f"s_and_b32 s64, s{sJ}, 1")
    e(f"s_bfe_u32 s65, s{sJ}, 0x10001")
    e("s_lshl_b32 s65, s65, 5")
    e(f"s_lshl_b32 s66, s{sI}, 1")
    e("s_add_u32 s64, s64, s65")
    e("s_add_u32 s64, s64, s66")
    e("s_lshl_b32 s64, s64, 10")
    e("v_lshl_add_u32 v10, v0, 16, s64")
    e(f"s_and_b32 s65, s{sI}, 7")
    e("s_lshl_b32 s65, s65, 3")
    e("v_bfe_u32 v11, v0, 2, 3")
    e("v_add_u32 v11, s65, v11")
    e(f"v_mul_lo_u32 v11, v11, s{sRS}")
    e("v_and_b32 v12, 1, v0")
    e("v_lshl_add_u32 v11, v12, 7, v11")
    e(f"v_add_u32 v11, s{sCOL}, v11")
    e("v_cmp_lt_u32 vcc, 31, v0")
    e("v_and_b32 v12, 2, v0")
    e("v_cmp_ne_u32 s[66:67], 0, v12")
    e("v_mov_b32 v14, s8")
    e("v_mov_b32 v15, s9")
    e("v_mov_b32 v16, s12")
    e("v_mov_b32 v17, s13")
    e("v_cndmask_b32 v14, v14, v16, s[66:67]")
    e("v_cndmask_b32 v15, v15, v17, s[66:67]")
    e("v_mov_b32 v16, s4")
    e("v_mov_b32 v17, s5")
    e("v_cndmask_b32 v14, v16, v14, vcc")
    e("v_cndmask_b32 v15, v17, v15, vcc")
    e("v_cndmask_b32 v10, v10, v11, vcc")
    e("v_mov_b32 v11, 0")
    e(f"v_lshl_add_u64 {vr(vA, 2)}, v[10:11], 0, v[14:15]")
    e(f"s_lshl_b32 s65, s{sRS}, 6")
    e(f"v_mov_b32 v{vS}, 128")
    e("v_mov_b32 v12, s65")
    e(f"v_cndmask_b32 v{vS}, v{vS}, v12, vcc")
    e(f"v_mov_b32 v{vS + 1}, 0")

    def touch():
        if OPT["touch"]:
            e(f"global_load_dword v{vDum}, {vr(vA, 2)}, off")
            e(f"v_lshl_add_u64 {vr(vA, 2)}, {vr(vA, 2)}, 0, {vr(vS, 2)}")

    touch()
    touch()
    e("v_lshrrev_b32 v10, 3, v0")
    e("v_and_b32 v11, 7, v0")
    e(f"v_lshlrev_b32 v{vTD}, 10, v10")
    e(f"v_lshl_add_u32 v{vTD}, v11, 7, v{vTD}")
    e(f"v_mul_lo_u32 v{vC}, v10, s{sRS}")
    e(f"v_lshl_add_u32 v{vC}, v11, 4, v{vC}")
    e(f"s_lshl_b32 s68, s{sIDX}, 13")
    e(f"s_bitcmp1_b32 s{sI}, 1")
    e("s_cselect_b64 s[32:33], s[12:13], s[8:9]")
    e("s_mov_b32 s34, s10")
    e("s_mov_b32 s35, 0x20000")
    e(f"s_lshr_b32 s64, s{sI}, 2")
    e("s_lshl_b32 s64, s64, 7")
    e(f"s_mul_i32 s69, s64, s{sRS}")
    e(f"s_and_b32 s64, s{sI}, 1")
    e("s_lshl_b32 s64, s64, 7")
    e("s_add_u32 s69, s69, s64")
    e(f"s_add_u32 s69, s69, s{sCOL}")
    e(f"s_lshl_b32 s70, s{sRS}, 3")
    e("s_waitcnt vmcnt(0)")
    touch()
    touch()
    stamp(1)

    def td():
        if OPT["touch"]:
            e(f"buffer_load_dword v{vDum}, v{vTD}, {srd(SRD_WD)}, s68 offen")
            e("s_add_u32 s68, s68, 0x40000")

    LD = 32
    AC = 16

    def csload(y):
        e(f"buffer_load_dwordx4 {vr(LD + 4 * y, 4)}, v{vC}, {srd(SRD_WM)}, s69 offen")
        e("s_add_u32 s69, s69, s70")

    def csproc(y):
        for d in range(4):
            r = LD + 4 * y + d
            if y == 0:
                e(f"v_lshlrev_b32 v{AC + 2 * d}, 16, v{r}")
                e(f"v_and_b32 v{AC + 2 * d + 1}, v9, v{r}")
            else:
                e(f"v_lshlrev_b32 v10, 16, v{r}")
                e(f"v_and_b32 v11, v9, v{r}")
                e(f"v_add_f32 v{AC + 2 * d}, v{AC + 2 * d}, v10")
                e(f"v_add_f32 v{AC + 2 * d + 1}, v{AC + 2 * d + 1}, v11")

    e("v_mov_b32 v9, 0xffff0000")
    e("s_barrier")
    touch()
    e("s_barrier")
    touch()
    for y in range(8):
        csload(y)
    e("s_barrier")
    touch()
    for y in range(8, 16):
        csload(y)
    e("s_barrier")
    touch()
    nt = 1 if OPT["touch"] else 0
    e(f"s_waitcnt vmcnt({8 + 2 * nt})")
    for y in range(0, 4):
        csproc(y)
    e("s_barrier")
    for y in range(4, 8):
        csproc(y)
    e("s_barrier")
    e(f"s_waitcnt vmcnt({nt})")
    for y in range(8, 12):
        csproc(y)
    e("s_barrier")
    td()
    for y in range(12, 16):
        csproc(y)
    e("s_barrier")
    td()
    e("s_nop 0")
    for k in range(4):
        e(f"v_permlane32_swap_b32 v{AC + k}, v{AC + k + 4}")
    e("s_nop 1")
    for k in range(4):
        e(f"v_add_f32 v{AC + k}, v{AC + k}, v{AC + k + 4}")
    e("s_nop 1")
    for k in range(2):
        e(f"v_permlane16_swap_b32 v{AC + k}, v{AC + k + 2}")
    e("s_nop 1")
    for k in range(2):
        e(f"v_add_f32 v{AC + k}, v{AC + k}, v{AC + k + 2}")
    e("v_and_b32 v10, 7, v0")
    e("v_lshlrev_b32 v10, 3, v10")
    e(f"v_add_f32_dpp v24, v{AC}, v{AC} row_ror:8 row_mask:0xf bank_mask:0x3")
    e(f"v_add_f32_dpp v24, v{AC + 1}, v{AC + 1} row_ror:8 row_mask:0xf bank_mask:0xc")
    e("v_bfe_u32 v11, v0, 5, 1")
    e("v_lshl_add_u32 v10, v11, 2, v10")
    e("v_bfe_u32 v11, v0, 4, 1")
    e("v_lshl_add_u32 v10, v11, 1, v10")
    e("v_bfe_u32 v11, v0, 3, 1")
    e("v_add_u32 v10, v11, v10")
    e("v_lshlrev_b32 v10, 2, v10")
    e(f"s_lshl_b32 s64, s{sJ}, 12")
    e(f"s_lshl_b32 s65, s{sI}, 8")
    e("s_add_u32 s64, s64, s65")
    e(f"s_add_u32 s64, s64, {CS_OFF}")
    e(f"buffer_store_dword v24, v10, {srd(SRD_WS)}, s64 offen sc1")
    e(f"v_mov_b32 v12, {TAGL}")
    e("ds_read_b32 v13, v12")
    e("s_barrier")
    e("s_waitcnt vmcnt(0) lgkmcnt(0)")
    e(f"v_readfirstlane_b32 s{sTAG}, v13")
    e(f"s_lshl_b32 s64, s{sI}, 4")
    e(f"s_add_u32 s64, s64, s{sJ}")
    e("s_lshl_b32 s64, s64, 7")
    e(f"s_add_u32 s64, s64, {FLC}")
    e("v_mov_b32 v12, 0")
    e(f"buffer_store_dword v13, v12, {srd(SRD_WS)}, s64 offen sc1")
    stamp(2)
    td()
    e("s_barrier")
    td()
    e("s_barrier")
    td()
    e("s_barrier")
    td()
    e("s_barrier")
    td()
    e("s_barrier")
    e("s_barrier")
    e("v_and_b32 v10, 15, v0")
    e("v_lshlrev_b32 v10, 11, v10")
    e(f"s_lshl_b32 s64, s{sJ}, 7")
    e(f"s_add_u32 s64, s64, {FLC}")
    poll(11, 10, "s64", SRD_WS)
    e(f"s_lshl_b32 s64, s{sJ}, 12")
    e(f"s_add_u32 s64, s64, {CS_OFF}")
    e("v_lshlrev_b32 v10, 4, v0")
    for k in range(4):
        e(f"buffer_load_dwordx4 {vr(16 + 4 * k, 4)}, v10, {srd(SRD_WS)}, s64 offen offset:{1024 * k} sc1")
    e("s_barrier")
    e(f"v_add_u32 v10, {CSL}, v10")
    e("s_waitcnt vmcnt(0)")
    for d in range(4):
        e(f"v_add_f32 v{16 + d}, v{16 + d}, v{20 + d}")
        e(f"v_add_f32 v{24 + d}, v{24 + d}, v{28 + d}")
    for d in range(4):
        e(f"v_add_f32 v{16 + d}, v{16 + d}, v{24 + d}")
    e("ds_write_b128 v10, v[16:19]")
    e("s_waitcnt lgkmcnt(0)")
    stamp(3)
    e("s_barrier")
    e("s_barrier")
    l23_phase2(0)


def l3wave():
    lab("L3WAVE")
    cm("================ L3: launch tag, row statistics ================")
    e("s_cmp_lg_u32 s2, 0")
    e("s_cbranch_scc1 L3NOTAG")
    e("s_memrealtime s[64:65]")
    e("v_mov_b32 v2, 0")
    e("s_waitcnt lgkmcnt(0)")
    e("s_or_b32 s64, s64, 1")
    e("v_mov_b32 v3, s64")
    e(f"buffer_store_dword v3, v2, {srd(SRD_DBG)}, 0 offen sc1")
    lab("L3NOTAG")
    e(f"s_bfe_u32 s64, s{sJ}, 0x10002")
    e(f"s_bfe_u32 s65, s{sJ}, 0x10003")
    e("s_lshl_b32 s65, s65, 5")
    e(f"s_lshl_b32 s66, s{sI}, 1")
    e("s_add_u32 s64, s64, s65")
    e("s_add_u32 s64, s64, s66")
    e(f"s_and_b32 s65, s{sJ}, 3")
    e("s_lshl_b32 s65, s65, 9")
    e("s_add_u32 s64, s64, s65")
    e("s_lshl_b32 s64, s64, 10")
    e("v_lshrrev_b32 v4, 3, v0")
    e("v_and_b32 v5, 7, v0")
    e("v_lshlrev_b32 v6, 16, v4")
    e("v_lshl_add_u32 v6, v5, 4, v6")
    e("v_mov_b32 v9, 0xffff0000")
    LD, UP = 16, 64
    e("s_barrier")
    for y in range(8):
        e(f"buffer_load_dwordx4 {vr(LD + 4 * y, 4)}, v6, {srd(SRD_X)}, s64 offen offset:{128 * y}")
    e("s_barrier")
    e("s_barrier")
    e("s_waitcnt vmcnt(0)")

    def unp(d):
        e(f"v_lshlrev_b32 v{UP + 2 * d}, 16, v{LD + d}")
        e(f"v_and_b32 v{UP + 2 * d + 1}, v9, v{LD + d}")
        if d == 0:
            e(f"v_mov_b32 v10, v{UP}")
            e(f"v_mov_b32 v11, v{UP + 1}")
        else:
            e(f"v_add_f32 v10, v10, v{UP + 2 * d}")
            e(f"v_add_f32 v11, v11, v{UP + 2 * d + 1}")

    def red8(r):
        e("s_nop 1")
        e(f"v_add_f32_dpp v{r}, v{r}, v{r} quad_perm:[1,0,3,2] row_mask:0xf bank_mask:0xf")
        e("s_nop 1")
        e(f"v_add_f32_dpp v{r}, v{r}, v{r} quad_perm:[2,3,0,1] row_mask:0xf bank_mask:0xf")
        e("s_nop 1")
        e(f"v_add_f32_dpp v{r}, v{r}, v{r} row_half_mirror row_mask:0xf bank_mask:0xf")

    for d in range(16):
        unp(d)
    e("s_barrier")
    for d in range(16, 32):
        unp(d)
    e("v_add_f32 v10, v10, v11")
    red8(10)
    e(f"v_mul_f32 v10, {f2u(1.0 / 512):#x}, v10")
    e("v_mov_b32 v12, 0")
    e("v_mov_b32 v13, 0")
    e("s_barrier")

    def var(k):
        e(f"v_sub_f32 v{UP + k}, v{UP + k}, v10")
        e(f"v_fmac_f32 v{12 + (k & 1)}, v{UP + k}, v{UP + k}")

    for k in range(32):
        var(k)
    e("s_barrier")
    for k in range(32, 64):
        var(k)
    e("v_mov_b32 v2, 0")
    poll(3, 2, "0", SRD_DBG, cond_tag=False)
    e(f"v_mov_b32 v2, {TAGL}")
    e("ds_write_b32 v2, v3")
    e(f"v_readfirstlane_b32 s{sTAG}, v3")
    e("s_waitcnt lgkmcnt(0)")
    e("s_barrier")
    e("v_add_f32 v12, v12, v13")
    red8(12)
    e(f"v_mul_f32 v12, {f2u(1.0 / 512):#x}, v12")
    e("v_cvt_pk_bf16_f32 v14, v10, v12")
    e("v_lshlrev_b32 v10, 16, v14")
    e("v_and_b32 v12, v9, v14")
    e(f"v_add_f32 v12, {f2u(1e-5):#x}, v12")
    e("v_cvt_pk_bf16_f32 v12, v12, v12")
    e("v_and_b32 v12, v9, v12")
    e("v_sqrt_f32 v12, v12")
    e("s_nop 0")
    e("v_cvt_pk_bf16_f32 v12, v12, v12")
    e("v_and_b32 v12, v9, v12")
    e("v_rcp_f32 v11, v12")
    e("v_lshlrev_b32 v14, 3, v4")
    e("v_cmp_eq_u32 vcc, 0, v5")
    e("v_mov_b32 v15, 0x40000000")
    e(f"s_lshl_b32 s64, s{sI}, 10")
    e(f"s_lshl_b32 s65, s{sJ}, 6")
    e("v_cndmask_b32 v14, v15, v14, vcc")
    e("s_add_u32 s64, s64, s65")
    e(f"s_add_u32 s64, s64, {ST_OFF}")
    e(f"buffer_store_dwordx2 v[10:11], v14, {srd(SRD_WS)}, s64 offen sc1")
    e("s_barrier")
    e("s_waitcnt vmcnt(0)")
    e(f"s_lshl_b32 s66, s{sI}, 4")
    e(f"s_add_u32 s66, s66, s{sJ}")
    e("s_lshl_b32 s66, s66, 7")
    e(f"s_add_u32 s64, s66, {FLR}")
    e(f"s_add_u32 s67, s66, {FLH}")
    e("v_mov_b32 v2, 0")
    e(f"buffer_store_dword v3, v2, {srd(SRD_WS)}, s64 offen sc1")
    stamp(1)
    for n in range(8, 15):
        e("s_barrier")
    e("v_and_b32 v10, 15, v0")
    e("v_lshlrev_b32 v10, 7, v10")
    e(f"s_lshl_b32 s64, s{sI}, 11")
    e(f"s_add_u32 s64, s64, {FLR}")
    poll(11, 10, "s64", SRD_WS)
    e(f"s_lshl_b32 s64, s{sI}, 10")
    e(f"s_add_u32 s64, s64, {ST_OFF}")
    e("v_lshlrev_b32 v10, 4, v0")
    e(f"buffer_load_dwordx4 v[16:19], v10, {srd(SRD_WS)}, s64 offen sc1")
    e("s_barrier")
    e(f"v_add_u32 v10, {MRP}, v10")
    e(f"v_lshlrev_b32 v12, 3, v0")
    e(f"v_add_u32 v12, {RL}, v12")
    e("s_waitcnt vmcnt(0)")
    e("v_mov_b32 v20, v17")
    e("v_mov_b32 v21, v19")
    e("v_mul_f32 v22, v16, v17")
    e("v_mul_f32 v23, v18, v19")
    e("v_xor_b32 v22, 0x80000000, v22")
    e("v_xor_b32 v23, 0x80000000, v23")
    e("ds_write_b128 v10, v[16:19]")
    e("ds_write_b64 v12, v[20:21]")
    e("ds_write_b64 v12, v[22:23] offset:512")
    e("s_waitcnt lgkmcnt(0)")
    stamp(2)
    e("s_barrier")
    e("s_barrier")
    e(f"buffer_store_dword v3, v2, {srd(SRD_WS)}, s67 offen sc1")
    stamp(3)
    l23_phase2(1)


XF = [[64 + 4 * q for q in range(4)], [80 + 4 * q for q in range(4)]]
WF = [[96, 100], [104, 108]]
XA = [112, 113, 114, 115]
WA = 116
vLANE, vPM = 117, 118


def ACC(mat, q):
    return 128 + 32 * q + 16 * mat


def frag_reads(u, st):
    r = []
    for mat in range(2):
        for a in range(2):
            r.append(f"ds_read_b64_tr_b16 {vr(WF[st][mat] + 2 * a, 2)}, v{WA} offset:{u * 8192 + a * 2048 + mat * 1024}")
    for q in range(4):
        r.append(f"ds_read_b128 {vr(XF[st][q], 4)}, v{XA[u]} offset:{q * 4096}")
    return r


def mainloop(dft):
    sCnt, sDelta, sCur = 64, 65, 66
    tag = "D" if dft else "G"
    for s in frag_reads(0, 0):
        e(s)
    e(f"s_mov_b32 s{sCnt}, 8")
    e(f"s_mov_b32 s{sCur}, {SLOT}")
    e(f"s_mov_b32 s67, {(-2 * SLOT) & 0xffffffff:#x}")
    L.append(".p2align 3")
    lab(f"MAIN{tag}")
    for u in range(4):
        st = u & 1
        mf = []
        for mat in ((1, 0) if dft else (0, 1)):
            for q in range(4):
                a, b = (XF[st][q], WF[st][mat]) if dft else (WF[st][mat], XF[st][q])
                mf.append(f"v_mfma_f32_32x32x16_bf16 {vr(ACC(mat, q), 16)}, {vr(a, 4)}, {vr(b, 4)}, {vr(ACC(mat, q), 16)}")
        rd = frag_reads((u + 1) & 3, st ^ 1)
        gaps = [[] for _ in range(8)]
        if u == 3:
            gaps[0] += [f"v_add_u32 v{WA}, s{sDelta}, v{WA}", f"v_add_u32 v{XA[0]}, s{sDelta}, v{XA[0]}"]
            gaps[5] += [f"v_add_u32 v{XA[1]}, s{sDelta}, v{XA[1]}"]
            gaps[6] += [f"v_add_u32 v{XA[2]}, s{sDelta}, v{XA[2]}", f"v_add_u32 v{XA[3]}, s{sDelta}, v{XA[3]}",
                        f"s_sub_u32 s{sCnt}, s{sCnt}, 1"]
            gaps[7] += [f"s_cmp_lg_u32 s{sCnt}, 0"]
        if u == 2:
            gaps[5] += [f"s_cmp_eq_u32 s{sCur}, {2 * SLOT}", f"s_cselect_b32 s{sDelta}, s67, {SLOT}"]
            gaps[6] += [f"s_add_u32 s{sCur}, s{sCur}, s{sDelta}"]
        if u & 1:
            gaps[0] += ["s_barrier"]
        if dft:
            gaps[0] = [f"v_cndmask_b32 v{WF[st][0] + k}, v{WF[st][0] + k}, v{vPM}, s[68:69]" for k in range(2)] + gaps[0]
            gaps[1] += [f"v_cndmask_b32 v{WF[st][0] + k}, v{WF[st][0] + k}, v{vPM}, s[68:69]" for k in range(2, 4)]
        for k in range(4):
            gaps[k + (1 if (u & 1) else 0)] += rd[2 * k:2 * k + 2]
        e("s_waitcnt lgkmcnt(0)")
        for k in range(8):
            e(mf[k])
            for s in gaps[k]:
                e(s)
    e(f"s_cbranch_scc1 MAIN{tag}")


def glu_epilogue():
    CG, CU, MR = 0, 16, 32
    e(f"v_lshrrev_b32 v40, 5, v{vLANE}")
    e(f"s_lshl_b32 s64, s{sWAVE}, 7")
    e(f"s_add_u32 s64, s64, {CSL}")
    e("v_lshl_add_u32 v40, v40, 4, s64")
    e(f"v_and_b32 v41, 31, v{vLANE}")
    e(f"v_lshlrev_b32 v41, 3, v41")
    e(f"v_add_u32 v41, {MRP}, v41")
    e(f"v_mov_b32 v42, {TAGL}")
    for q in range(4):
        e(f"ds_read_b64 {vr(MR + 2 * q, 2)}, v41 offset:{256 * q}")
    for a in range(4):
        e(f"ds_read_b128 {vr(CG + 4 * a, 4)}, v40 offset:{32 * a}")
    for a in range(4):
        e(f"ds_read_b128 {vr(CU + 4 * a, 4)}, v40 offset:{512 + 32 * a}")
    e("ds_read_b32 v43, v42")
    e(f"s_lshl_b32 s64, s{sJ}, 2")
    e(f"s_add_u32 s64, s64, s{sWAVE}")
    e("s_lshl_b32 s64, s64, 10")
    e(f"s_mul_i32 s65, s{sI}, {2 * 4 * 56 * 1024}")
    e("s_add_u32 s64, s64, s65")
    e(f"v_lshlrev_b32 v44, 4, v{vLANE}")
    e("s_mov_b32 s66, 1.0")
    e("s_mov_b32 s67, 1.0")
    e("s_waitcnt lgkmcnt(0)")
    e(f"v_readfirstlane_b32 s{sTAG}, v43")
    for q in range(4):
        e(f"v_mul_f32 v{MR + 2 * q + 1}, {NLOG2E:#x}, v{MR + 2 * q + 1}")
    stamp(3)
    out = 0
    for q in range(4):
        b, p = q & 1, q >> 1
        mr = vr(MR + 2 * q, 2)
        for z in range(2):
            G = ACC(0, q) + 8 * z
            U = ACC(1, q) + 8 * z
            for k in range(4):
                e(f"v_pk_fma_f32 {vr(G + 2 * k, 2)}, {vr(CG + 8 * z + 2 * k, 2)}, {mr}, {vr(G + 2 * k, 2)} op_sel_hi:[1,0,1] neg_lo:[0,1,0] neg_hi:[0,1,0]")
            for k in range(4):
                e(f"v_pk_mul_f32 {vr(G + 2 * k, 2)}, {vr(G + 2 * k, 2)}, {mr} op_sel:[0,1] op_sel_hi:[1,1]")
            for k in range(8):
                e(f"v_exp_f32 v{G + k}, v{G + k}")
            for k in range(4):
                e(f"v_pk_add_f32 {vr(G + 2 * k, 2)}, {vr(G + 2 * k, 2)}, s[66:67]")
            for k in range(8):
                e(f"v_rcp_f32 v{G + k}, v{G + k}")
            for k in range(4):
                e(f"v_pk_fma_f32 {vr(U + 2 * k, 2)}, {vr(CU + 8 * z + 2 * k, 2)}, {mr}, {vr(U + 2 * k, 2)} op_sel_hi:[1,0,1] neg_lo:[0,1,0] neg_hi:[0,1,0]")
            for k in range(4):
                e(f"v_pk_mul_f32 {vr(U + 2 * k, 2)}, {vr(U + 2 * k, 2)}, {vr(G + 2 * k, 2)}")
            o = 64 + 4 * out
            out += 1
            for k in range(4):
                e(f"v_cvt_pk_bf16_f32 v{o + k}, v{U + 2 * k}, v{U + 2 * k + 1}")
            e(f"s_add_u32 s65, s64, {((b * 2 + p) * 2 + z) * 56 * 1024 + H_OFF}")
            e(f"buffer_store_dwordx4 {vr(o, 4)}, v44, {srd(SRD_WS)}, s65 offen sc1")


def TW(q, cs, z):
    return 16 * q + 8 * cs + 4 * z


def dft_prologue():
    e(f"v_and_b32 v2, 31, v{vLANE}")
    e("v_cvt_f32_u32 v3, v2")
    e(f"v_mul_f32 v3, {f2u(1.0 / 2048):#x}, v3")
    e(f"s_and_b32 s64, s{sWAVE}, 1")
    e(f"s_lshr_b32 s65, s{sWAVE}, 1")
    e("s_lshl_b32 s65, s65, 5")
    e("s_add_u32 s64, s64, s65")
    e(f"s_lshl_b32 s65, s{sI}, 1")
    e("s_add_u32 s64, s64, s65")
    e(f"v_lshrrev_b32 v4, 5, v{vLANE}")
    e("v_lshl_add_u32 v4, v4, 8, s64")
    e("v_cvt_f32_u32 v4, v4")
    e("v_mul_f32 v4, v3, v4")
    e("v_and_b32 v5, 1, v2")
    e("v_mul_u32_u24 v5, 0x8000, v5")
    e("v_lshl_or_b32 v5, v5, 16, v5")
    for jj in range(8):
        c = 64.0 * (8 * (jj >> 2) + (jj & 3))
        e(f"v_fmamk_f32 v{8 + jj}, v3, {f2u(c):#x}, v4")
    for jj in range(8):
        e(f"v_fract_f32 v{8 + jj}, v{8 + jj}")
    for jj in range(8):
        e(f"v_cos_f32 v{16 + jj}, v{8 + jj}")
        e(f"v_sin_f32 v{24 + jj}, v{8 + jj}")
    e("s_nop 0")
    for k in range(4):
        e(f"v_cvt_pk_bf16_f32 v{32 + k}, v{16 + 2 * k}, v{17 + 2 * k}")
        e(f"v_cvt_pk_bf16_f32 v{40 + k}, v{24 + 2 * k}, v{25 + 2 * k}")
    for k in range(4):
        e(f"v_xor_b32 v{36 + k}, v5, v{32 + k}")
        e(f"v_xor_b32 v{44 + k}, v5, v{40 + k}")
    e(f"s_lshl_b32 s64, s{sWAVE}, 12")
    e(f"s_add_u32 s64, s64, {MISC}")
    e(f"v_lshl_add_u32 v6, v{vLANE}, 4, s64")
    for k in range(4):
        e(f"ds_write_b128 v6, {vr(32 + 4 * k, 4)} offset:{1024 * k}")
    e(f"s_cmp_eq_u32 s{sJ}, 14")
    e("s_cselect_b32 s68, 1, 0")
    e(f"s_cmp_eq_u32 s{sWAVE}, 0")
    e("s_cselect_b32 s68, s68, 0")
    e("s_mov_b32 s69, s68")
    e(f"v_mov_b32 v{vPM}, 0xbf803f80")
    e(f"v_lshlrev_b32 v119, 4, v{vLANE}")
    e(f"v_add_u32 v119, {MISC}, v119")
    e("s_waitcnt lgkmcnt(0)")


def dft_epilogue():
    R0, N0 = 64, 80
    TA, TB, NTA = 96, 104, 120
    e(f"v_and_b32 v112, 31, v{vLANE}")
    e(f"s_lshl_b32 s64, s{sWAVE}, 7")
    e(f"s_add_u32 s64, s64, {CSL}")
    e("v_lshl_add_u32 v113, v112, 2, s64")
    e(f"v_lshrrev_b32 v114, 5, v{vLANE}")
    e(f"v_lshlrev_b32 v115, 4, v114")
    e(f"v_add_u32 v115, {RL}, v115")
    e(f"v_mov_b32 v116, {TAGL}")
    e("s_waitcnt lgkmcnt(0)")
    e("ds_read_b32 v118, v113")
    e("ds_read_b32 v119, v113 offset:512")
    e("ds_read_b32 v116, v116")

    def rd(q):
        for a in range(4):
            e(f"ds_read_b128 {vr(R0 + 4 * a, 4)}, v115 offset:{128 * q + 32 * a}")
            e(f"ds_read_b128 {vr(N0 + 4 * a, 4)}, v115 offset:{512 + 128 * q + 32 * a}")

    rd(0)
    e("v_lshlrev_b32 v112, 4, v112")
    e("v_lshl_add_u32 v112, v114, 18, v112")
    e(f"s_lshl_b32 s64, s{sI}, 12")
    e(f"s_and_b32 s65, s{sJ}, 1")
    e("s_lshl_b32 s65, s65, 11")
    e("s_add_u32 s64, s64, s65")
    e(f"s_lshl_b32 s65, s{sWAVE}, 9")
    e("s_add_u32 s64, s64, s65")
    e(f"s_add_u32 s64, s64, {Z_OFF}")
    e("s_waitcnt lgkmcnt(0)")
    e(f"v_readfirstlane_b32 s{sTAG}, v116")
    e("v_cndmask_b32 v118, v118, 0, s[68:69]")
    stamp(3)
    for q in range(4):
        if q:
            e("s_waitcnt lgkmcnt(0)")
        for mat, T, cs in ((0, TA, 118), (1, TB, 119)):
            A = ACC(mat, q)
            for r in range(16):
                e(f"v_mul_f32 v{A + r}, v{A + r}, v{R0 + r}")
            for r in range(16):
                e(f"v_fmac_f32 v{A + r}, v{N0 + r}, v{cs}")
            for k in range(8):
                e(f"v_cvt_pk_bf16_f32 v{T + k}, v{A + 2 * k}, v{A + 2 * k + 1}")
        for k in range(8):
            e(f"v_xor_b32 v{NTA + k}, 0x80008000, v{TA + k}")
        if q < 3:
            rd(q + 1)
        zr, zi = ACC(0, q), ACC(1, q)
        e("s_nop 1")
        e(f"v_mfma_f32_32x32x16_bf16 {vr(zr, 16)}, {vr(TW(q, 0, 0), 4)}, {vr(TA, 4)}, 0")
        e(f"v_mfma_f32_32x32x16_bf16 {vr(zi, 16)}, {vr(TW(q, 0, 0), 4)}, {vr(TB, 4)}, 0")
        e(f"v_mfma_f32_32x32x16_bf16 {vr(zr, 16)}, {vr(TW(q, 0, 1), 4)}, {vr(TA + 4, 4)}, {vr(zr, 16)}")
        e(f"v_mfma_f32_32x32x16_bf16 {vr(zi, 16)}, {vr(TW(q, 0, 1), 4)}, {vr(TB + 4, 4)}, {vr(zi, 16)}")
        e(f"v_mfma_f32_32x32x16_bf16 {vr(zr, 16)}, {vr(TW(q, 1, 0), 4)}, {vr(TB, 4)}, {vr(zr, 16)}")
        e(f"v_mfma_f32_32x32x16_bf16 {vr(zi, 16)}, {vr(TW(q, 1, 0), 4)}, {vr(NTA, 4)}, {vr(zi, 16)}")
        e(f"v_mfma_f32_32x32x16_bf16 {vr(zr, 16)}, {vr(TW(q, 1, 1), 4)}, {vr(TB + 4, 4)}, {vr(zr, 16)}")
        e(f"v_mfma_f32_32x32x16_bf16 {vr(zi, 16)}, {vr(TW(q, 1, 1), 4)}, {vr(NTA + 4, 4)}, {vr(zi, 16)}")
    e("s_nop 7")
    e("s_nop 3")
    for r in range(16):
        o = 64 + 4 * (r & 7)
        for q in range(4):
            e(f"v_cvt_pk_bf16_f32 v{o + q}, v{ACC(0, q) + r}, v{ACC(1, q) + r}")
        e(f"s_add_u32 s65, s64, {(8 * (r >> 2) + (r & 3)) * 65536}")
        e(f"buffer_store_dwordx4 {vr(o, 4)}, v112, {srd(SRD_WS)}, s65 offen sc1")


def phase2():
    OWN, OTH, Y, EF, XR, vR = 0, 16, 32, 48, 80, 88
    W2 = [[96, 100], [104, 108]]
    WD = [112, 113]
    vH, vXO, vZA = 114, 115, 116
    HR, ZF = 128, 192
    sP, sKH, sH, sXO = 64, 65, 66, 67
    lab("PHASE2")
    e("s_waitcnt vmcnt(0)")
    stamp(4)
    e("s_barrier")
    e(f"s_and_b32 s{sP}, s{sWAVE}, 1")
    e(f"s_lshr_b32 s{sKH}, s{sWAVE}, 1")
    e(f"v_and_b32 v89, 31, v{vLANE}")
    e(f"v_lshrrev_b32 v90, 5, v{vLANE}")
    e(f"v_lshlrev_b32 v{vXO}, 16, v89")
    e(f"v_lshl_add_u32 v{vXO}, v90, 5, v{vXO}")
    e(f"s_lshl_b32 s68, s{sP}, 5")
    e(f"s_add_u32 s68, s68, s{sT1}")
    e(f"s_lshl_b32 s{sXO}, s68, 10")
    e(f"s_lshl_b32 s68, s{sCB}, 7")
    e(f"s_add_u32 s{sXO}, s{sXO}, s68")
    e(f"s_lshl_b32 s68, s{sKH}, 6")
    e(f"s_add_u32 s{sXO}, s{sXO}, s68")
    e(f"buffer_load_dwordx4 {vr(XR, 4)}, v{vXO}, {srd(SRD_X)}, s{sXO} offen")
    e(f"buffer_load_dwordx4 {vr(XR + 4, 4)}, v{vXO}, {srd(SRD_X)}, s{sXO} offen offset:16")
    e(f"v_bfe_u32 v91, v{vLANE}, 2, 2")
    e("v_lshl_add_u32 v92, v90, 2, v91")
    e(f"s_lshl_b32 s68, s{sKH}, 11")
    e("v_lshl_add_u32 v92, v92, 7, s68")
    e(f"v_and_b32 v93, 1, v{vLANE}")
    e("v_lshlrev_b32 v93, 2, v93")
    e(f"v_bfe_u32 v94, v{vLANE}, 4, 1")
    e("v_lshl_add_u32 v93, v94, 1, v93")
    e(f"v_bfe_u32 v94, v{vLANE}, 1, 1")
    e("v_add_u32 v93, v93, v94")
    e("v_lshl_add_u32 v92, v93, 3, v92")
    e("v_lshrrev_b32 v91, 1, v91")
    e(f"v_xor_b32 v91, s{sKH}, v91")
    e(f"v_lshl_add_u32 v{WD[0]}, v91, 6, v92")
    e(f"v_xor_b32 v{WD[1]}, 64, v{WD[0]}")

    def wreads(v, st):
        slot = v if v < 36 else v - 36
        off = (slot * 4096) & 0xFFFF
        return [f"ds_read_b64_tr_b16 {vr(W2[st][c] + 2 * a, 2)}, v{WD[c]} offset:{off + 1024 * a}" for c in range(2) for a in range(2)]

    for s in wreads(0, 0):
        e(s)
    e(f"s_lshl_b32 s68, s{sKH}, 9")
    e(f"s_add_u32 s68, s68, {MISC}")
    e(f"v_lshl_add_u32 v{vZA}, v89, 4, s68")
    e(f"v_lshl_add_u32 v{vZA}, v90, 10, v{vZA}")
    e(f"v_lshl_add_u32 v91, v89, 1, s{sP}")
    e(f"s_cmp_eq_u32 s{sT1}, 0")
    e("s_cselect_b32 s68, 64, 63")
    e("v_sub_u32 v92, s68, v91")
    e(f"s_cmp_ge_u32 s{sCB}, 4")
    e("s_cselect_b64 s[70:71], -1, 0")
    e("v_cndmask_b32 v91, v91, v92, s[70:71]")
    e("v_and_b32 v92, 1, v91")
    e("v_mul_u32_u24 v92, 0x8000, v92")
    e("v_lshl_or_b32 v92, v92, 16, v92")
    e("v_cvt_f32_u32 v91, v91")
    e(f"v_mul_f32 v91, {f2u(1.0 / 64):#x}, v91")
    e("v_lshlrev_b32 v93, 1, v90")
    e("v_cvt_f32_u32 v93, v93")
    e("v_mul_f32 v93, v91, v93")
    T = HR
    for sg in range(8):
        for b in range(2):
            e(f"v_fmamk_f32 v{T + 2 * sg + b}, v91, {f2u(float(4 * sg + b)):#x}, v93")
    for k in range(16):
        e(f"v_fract_f32 v{T + k}, v{T + k}")
    for k in range(16):
        e(f"v_cos_f32 v{T + 16 + k}, v{T + k}")
        e(f"v_sin_f32 v{T + 32 + k}, v{T + k}")
    e("s_nop 0")
    for sg in range(8):
        for b in range(2):
            e(f"v_cvt_pk_bf16_f32 v{EF + 4 * sg + b}, v{T + 16 + 2 * sg + b}, v{T + 32 + 2 * sg + b}")
        for b in range(2):
            e(f"v_xor_b32 v{EF + 4 * sg + 2 + b}, v92, v{EF + 4 * sg + b}")
    e(f"s_lshl_b32 s68, s{sT1}, 2")
    e(f"s_lshl_b32 s69, s{sP}, 1")
    e("s_add_u32 s68, s68, s69")
    e(f"s_add_u32 s68, s68, s{sKH}")
    e(f"s_mul_i32 s{sH}, s68, {56 * 1024}")
    if H_OFF:
        e(f"s_add_u32 s{sH}, s{sH}, {H_OFF}")
    e(f"v_lshlrev_b32 v{vH}, 4, v{vLANE}")
    e(f"v_min_u32 v91, 13, v{vLANE}")
    e("v_lshlrev_b32 v91, 7, v91")
    e(f"s_lshr_b32 s68, s{sT1}, 1")
    e("s_lshl_b32 s69, s68, 11")
    e(f"s_add_u32 s69, s69, {FLH}")
    stamp(5)
    poll(92, 91, "s69", SRD_WS)
    stamp(6)
    e("s_lshl_b32 s68, s68, 10")
    e(f"s_and_b32 s69, s{sT1}, 1")
    e(f"s_lshl_b32 s70, s{sP}, 1")
    e("s_add_u32 s69, s69, s70")
    e("s_lshl_b32 s69, s69, 8")
    e("s_add_u32 s68, s68, s69")
    e(f"s_add_u32 s68, s68, {ST_OFF}")
    e("v_lshlrev_b32 v91, 3, v89")
    e(f"buffer_load_dword v{vR}, v91, {srd(SRD_WS)}, s68 offen offset:4 sc1")

    def hload(v):
        r = [f"buffer_load_dwordx4 {vr(HR + 4 * (v % D), 4)}, v{vH}, {srd(SRD_WS)}, s{sH} offen offset:{1024 * (v & 3)} sc1"]
        if v & 3 == 3:
            r.append(f"s_add_u32 s{sH}, s{sH}, 4096")
        return r

    for v in range(D):
        for s in hload(v):
            e(s)
    for v in range(56):
        st = v & 1
        outstanding = min(D - 1, 55 - v)
        e(f"s_waitcnt vmcnt({outstanding}) lgkmcnt(0)")
        h = vr(HR + 4 * (v % D), 4)
        c0 = "0" if v == 0 else vr(OWN, 16)
        c1 = "0" if v == 0 else vr(OTH, 16)
        e(f"v_mfma_f32_32x32x16_bf16 {vr(OWN, 16)}, {vr(W2[st][0], 4)}, {h}, {c0}")
        if v in (19, 35):
            e("s_barrier")
        nv = v + 1
        if nv < 56:
            if nv in (16, 32, 52):
                for c in range(2):
                    e(f"v_add_u32 v{WD[c]}, 0x10000, v{WD[c]}")
            if nv == 36:
                for c in range(2):
                    e(f"v_subrev_u32 v{WD[c]}, 0x20000, v{WD[c]}")
            for s in wreads(nv, st ^ 1):
                e(s)
        if 40 <= v < 48:
            e(f"ds_read_b128 {vr(ZF + 4 * (v - 40), 4)}, v{vZA} offset:{2048 * (v - 40)}")
        e(f"v_mfma_f32_32x32x16_bf16 {vr(OTH, 16)}, {vr(W2[st][1], 4)}, {h}, {c1}")
        if v + D < 56:
            for s in hload(v + D):
                e(s)
        if v >= 48:
            sg = v - 48
            cy = "0" if sg == 0 else vr(Y, 16)
            e(f"v_mfma_f32_32x32x16_bf16 {vr(Y, 16)}, {vr(ZF + 4 * sg, 4)}, {vr(EF + 4 * sg, 4)}, {cy}")
    stamp(7)
    e(f"s_lshl_b32 s68, s{sWAVE}, 12")
    e(f"s_add_u32 s68, s68, {RED}")
    e(f"v_add_u32 v91, s68, v{vH}")
    e(f"v_xor_b32 v92, 8192, v91")
    e("s_mov_b32 s70, 1.0")
    e("s_mov_b32 s71, 1.0")
    e(f"v_mul_f32 v{vR + 1}, {NLOG2E:#x}, v{vR}")
    e("s_nop 5")
    for a in range(4):
        e(f"ds_write_b128 v91, {vr(OTH + 4 * a, 4)} offset:{1024 * a}")
    XU = 128
    e("v_mov_b32 v93, 0xffff0000")
    for k in range(8):
        e(f"v_lshlrev_b32 v{XU + 2 * k}, 16, v{XR + k}")
        e(f"v_and_b32 v{XU + 2 * k + 1}, v93, v{XR + k}")
    e("s_waitcnt lgkmcnt(0)")
    e("s_barrier")
    PT = 144
    for a in range(4):
        e(f"ds_read_b128 {vr(PT + 4 * a, 4)}, v92 offset:{1024 * a}")
    e("s_waitcnt lgkmcnt(0)")
    rr = vr(vR, 2)
    TT = 160
    for k in range(8):
        e(f"v_pk_add_f32 {vr(OWN + 2 * k, 2)}, {vr(OWN + 2 * k, 2)}, {vr(PT + 2 * k, 2)}")
    for k in range(8):
        e(f"v_pk_mul_f32 {vr(TT + 2 * k, 2)}, {vr(OWN + 2 * k, 2)}, {rr} op_sel:[0,1] op_sel_hi:[1,1]")
    for k in range(16):
        e(f"v_exp_f32 v{TT + k}, v{TT + k}")
    for k in range(8):
        e(f"v_pk_add_f32 {vr(TT + 2 * k, 2)}, {vr(TT + 2 * k, 2)}, s[70:71]")
    for k in range(16):
        e(f"v_rcp_f32 v{TT + k}, v{TT + k}")
    for k in range(8):
        e(f"v_pk_mul_f32 {vr(OWN + 2 * k, 2)}, {vr(OWN + 2 * k, 2)}, {rr} op_sel_hi:[1,0]")
    for k in range(8):
        e(f"v_pk_mul_f32 {vr(OWN + 2 * k, 2)}, {vr(OWN + 2 * k, 2)}, {vr(TT + 2 * k, 2)}")
    for k in range(8):
        e(f"v_pk_fma_f32 {vr(OWN + 2 * k, 2)}, {vr(OWN + 2 * k, 2)}, {vr(Y + 2 * k, 2)}, {vr(XU + 2 * k, 2)}")
    for k in range(8):
        e(f"v_cvt_pk_bf16_f32 v{TT + k}, v{OWN + 2 * k}, v{OWN + 2 * k + 1}")
    e(f"buffer_store_dwordx4 {vr(TT, 4)}, v{vXO}, {srd(SRD_OUT)}, s{sXO} offen")
    e(f"buffer_store_dwordx4 {vr(TT + 4, 4)}, v{vXO}, {srd(SRD_OUT)}, s{sXO} offen offset:16")
    stamp_flush(8, 176)
    e("s_endpgm")


def cwave():
    lab("CWAVE")
    cm("================ C waves: matrix work ================")
    e("s_setprio 2")
    e(f"v_mov_b32 v{vLANE}, v0")
    e("v_and_b32 v2, 31, v0")
    e("v_lshrrev_b32 v3, 5, v0")
    e("v_bfe_u32 v4, v0, 1, 3")
    e("v_lshlrev_b32 v5, 7, v2")
    e(f"v_add_u32 v5, {SLOT + 32768}, v5")
    for u in range(4):
        e(f"v_add_u32 v6, {2 * u}, v3")
        e("v_xor_b32 v6, v6, v4")
        e(f"v_lshl_add_u32 v{XA[u]}, v6, 4, v5")
    e("v_bfe_u32 v4, v0, 2, 2")
    e(f"v_lshlrev_b32 v{WA}, 12, v3")
    e(f"v_lshl_add_u32 v{WA}, v4, 8, v{WA}")
    e(f"v_xor_b32 v4, s{sWAVE}, v4")
    e(f"v_lshl_add_u32 v{WA}, v4, 6, v{WA}")
    e("v_bfe_u32 v4, v0, 4, 1")
    e(f"v_lshl_add_u32 v{WA}, v4, 5, v{WA}")
    e("v_and_b32 v4, 3, v0")
    e(f"v_lshl_add_u32 v{WA}, v4, 3, v{WA}")
    e(f"v_add_u32 v{WA}, {SLOT}, v{WA}")
    for r in range(128, 256):
        e(f"v_mov_b32 v{r}, 0")
    e(f"s_cmp_eq_u32 s{sDFT}, 1")
    e("s_cbranch_scc1 CDFT")
    stamp(1)
    e("s_barrier")
    e("s_nop 0")
    mainloop(False)
    stamp(2)
    glu_epilogue()
    phase2()
    lab("CDFT")
    dft_prologue()
    stamp(1)
    e("s_barrier")
    for k in range(16):
        e(f"ds_read_b128 {vr(4 * k, 4)}, v119 offset:{1024 * k}")
    mainloop(True)
    stamp(2)
    dft_epilogue()
    e("s_branch PHASE2")


hdr = open("cdna_kernels/" + NAME + ".s.ref").read().split("\n")
head = [l for l in hdr if l.startswith(";") and "@launch" not in l and "Override launch" not in l and "grid=ceil" not in l]
K = NAME + "_kernel"
out = head + ["; @launch grid=(256,1,1) block=(512,1,1) lds=163840",
              '.amdgcn_target "amdgcn-amd-amdhsa--gfx950"', ".text", f".globl {K}", ".p2align 8", f".type {K},@function", f"{K}:"]
prologue()
l01wave()
l2wave()
l3wave()
cwave()
lab("END")
e("s_endpgm")
out += L
out += ['.section .rodata,"a"', ".p2align 6", f".amdhsa_kernel {K}", "  .amdhsa_next_free_vgpr 256", "  .amdhsa_next_free_sgpr 102",
        "  .amdhsa_accum_offset 256", "  .amdhsa_group_segment_fixed_size 0", "  .amdhsa_kernarg_size 96",
        "  .amdhsa_user_sgpr_count 2", "  .amdhsa_user_sgpr_kernarg_segment_ptr 1", "  .amdhsa_system_sgpr_workgroup_id_x 1",
        ".end_amdhsa_kernel", ""]
open(sys.argv[1], "w").write("\n".join(out))
```

```python
import sys

NAME = "recurrent_scan__spectral_fnet__glu_gated_glu__prompt"
OPT = dict(prof=0, D=16, touch=1, spin=200000)
for a in sys.argv[2:]:
    k, v = a.split("=")
    OPT[k] = int(v)
PROF = OPT["prof"]
D = OPT["D"]

H_OFF, Z_OFF, ST_OFF, CS_OFF = 0, 0x800000, 0xA00000, 0xA10000
FLR, FLC, FLH, PROF_OFF, WS_SIZE = 0xA40000, 0xA48000, 0xA50000, 0xA60000, 0xB00000
SLOT = 49152
MISC = 147456
CSL, MRP, RL, NMRL, TAGL = MISC, MISC + 1024, MISC + 2048, MISC + 2560, MISC + 3072
RED = 20 * 4096
LOG2E = 0x3FB8AA3B
NLOG2E = 0xBFB8AA3B


def f2u(x):
    import struct
    return struct.unpack("<I", struct.pack("<f", x))[0]


L = []


def e(s):
    L.append("    " + s)


def lab(s):
    L.append(s + ":")


def cm(s):
    L.append("    ; " + s)


def vr(a, n):
    return f"v[{a}:{a + n - 1}]"


SRD_X, SRD_W0, SRD_W1, SRD_WD, SRD_WS, SRD_OUT, SRD_DBG, SRD_WM = 4, 8, 12, 16, 20, 24, 28, 32
sWAVE, sI, sJ, sT1, sCB, sRS, sCOL, sDFT, sTAG, sIDX = 36, 37, 38, 39, 40, 41, 42, 43, 44, 45
sSTAMP = 80
nstamp = [0]


def srd(n):
    return f"s[{n}:{n + 3}]"


def stamp(i):
    if PROF:
        e(f"s_memtime s[{sSTAMP + 2 * i}:{sSTAMP + 2 * i + 1}]")


def stamp_flush(n, vt):
    if not PROF:
        return
    e("s_waitcnt lgkmcnt(0)")
    for i in range(8):
        e(f"v_mov_b32 v{vt + i}, s{sSTAMP + 2 * i}" if i < n else f"v_mov_b32 v{vt + i}, 0")
    e(f"s_lshl_b32 s78, s2, 3")
    e(f"s_add_u32 s78, s78, s{sWAVE}")
    e(f"s_lshl_b32 s78, s78, 6")
    e(f"s_add_u32 s78, s78, {PROF_OFF}")
    e(f"v_mov_b32 v{vt + 8}, 0")
    e(f"buffer_store_dwordx4 {vr(vt, 4)}, v{vt + 8}, {srd(SRD_WS)}, s78 offen")
    e(f"buffer_store_dwordx4 {vr(vt + 4, 4)}, v{vt + 8}, {srd(SRD_WS)}, s78 offen offset:16")
    e(f"s_memrealtime s[76:77]")
    e("s_waitcnt lgkmcnt(0)")
    e(f"v_mov_b32 v{vt}, s98")
    e(f"v_mov_b32 v{vt + 1}, s76")
    e(f"buffer_store_dwordx2 {vr(vt, 2)}, v{vt + 8}, {srd(SRD_WS)}, s78 offen offset:32")


uid = [0]


def poll(vdst, vaddr, ssoff, srdn, cond_tag=True):
    uid[0] += 1
    n = uid[0]
    e(f"s_mov_b32 s75, {OPT['spin']}")
    lab(f"POLL{n}")
    e(f"buffer_load_dword v{vdst}, v{vaddr}, {srd(srdn)}, {ssoff} offen sc1")
    e("s_waitcnt vmcnt(0)")
    if cond_tag:
        e(f"v_cmp_ne_u32 vcc, s{sTAG}, v{vdst}")
    else:
        e(f"v_cmp_eq_u32 vcc, 0, v{vdst}")
    e("s_nop 1")
    e("s_cmp_eq_u64 vcc, 0")
    e(f"s_cbranch_scc1 POLLD{n}")
    e("s_sleep 1")
    e("s_sub_u32 s75, s75, 1")
    e("s_cmp_lg_u32 s75, 0")
    e(f"s_cbranch_scc1 POLL{n}")
    lab(f"POLLD{n}")


def prologue():
    e("s_cmp_ge_u32 s2, 256")
    e("s_cbranch_scc1 END")
    e("s_load_dwordx2 s[4:5], s[0:1], 0")
    e("s_load_dwordx4 s[48:51], s[0:1], 24")
    e("s_load_dwordx8 s[52:59], s[0:1], 48")
    e("s_load_dwordx4 s[60:63], s[0:1], 80")
    if PROF:
        e("s_memrealtime s[98:99]")
        stamp(0)
    e("v_lshrrev_b32 v1, 6, v0")
    e("v_and_b32 v0, 63, v0")
    e(f"s_lshr_b32 s{sIDX}, s2, 3")
    e(f"v_readfirstlane_b32 s{sWAVE}, v1")
    e("s_and_b32 s64, s2, 1")
    e("s_lshl_b32 s64, s64, 3")
    e(f"s_and_b32 s65, s{sIDX}, 7")
    e(f"s_add_u32 s{sI}, s64, s65")
    e("s_bfe_u32 s64, s2, 0x20001")
    e("s_lshl_b32 s64, s64, 2")
    e(f"s_lshr_b32 s65, s{sIDX}, 3")
    e(f"s_add_u32 s{sJ}, s64, s65")
    e("s_and_b32 s64, s2, 7")
    e("s_lshl_b32 s64, s64, 2")
    e(f"s_and_b32 s65, s{sIDX}, 3")
    e(f"s_add_u32 s{sT1}, s64, s65")
    e(f"s_lshr_b32 s{sCB}, s{sIDX}, 2")
    e(f"s_lshl_b32 s{sCOL}, s{sJ}, 8")
    e(f"s_sub_u32 s64, s{sCOL}, {14 * 256}")
    e(f"s_cmp_ge_u32 s{sJ}, 14")
    e(f"s_cselect_b32 s{sDFT}, 1, 0")
    e(f"s_movk_i32 s{sRS}, 3584")
    e(f"s_cselect_b32 s{sRS}, 1024, s{sRS}")
    e(f"s_cselect_b32 s{sCOL}, s64, s{sCOL}")
    e(f"s_lshl_b32 s10, s{sRS}, 9")
    e("s_mov_b32 s14, s10")
    e("s_mov_b32 s6, 0x200000")
    e("s_mov_b32 s7, 0x20000")
    e("s_mov_b32 s11, 0x20000")
    e("s_mov_b32 s15, 0x20000")
    e(f"s_mov_b32 s18, {1792 * 1024}")
    e("s_mov_b32 s19, 0x20000")
    e(f"s_mov_b32 s22, {WS_SIZE}")
    e("s_mov_b32 s23, 0x20000")
    e("s_mov_b32 s26, 0x200000")
    e("s_mov_b32 s27, 0x20000")
    e("s_mov_b32 s30, 256")
    e("s_mov_b32 s31, 0x20000")
    e("s_waitcnt lgkmcnt(0)")
    e(f"s_cmp_eq_u32 s{sDFT}, 1")
    e("s_cselect_b64 s[8:9], s[48:49], s[52:53]")
    e("s_cselect_b64 s[12:13], s[50:51], s[54:55]")
    e("s_mov_b64 s[16:17], s[56:57]")
    e("s_mov_b64 s[24:25], s[58:59]")
    e("s_mov_b64 s[28:29], s[60:61]")
    e("s_mov_b64 s[20:21], s[62:63]")
    e(f"s_cmp_lt_u32 s{sWAVE}, 4")
    e("s_cbranch_scc1 CWAVE")
    e(f"s_cmp_eq_u32 s{sWAVE}, 6")
    e("s_cbranch_scc1 L2WAVE")
    e(f"s_cmp_eq_u32 s{sWAVE}, 7")
    e("s_cbranch_scc1 L3WAVE")


def wd_voffset(vd, vt):
    e(f"v_lshrrev_b32 v{vt}, 3, v0")
    e(f"v_lshlrev_b32 v{vd}, 10, v{vt}")
    e(f"v_bfe_u32 v{vt}, v0, 4, 1")
    e(f"v_lshlrev_b32 v{vt}, 2, v{vt}")
    e(f"v_and_b32 v{vt + 1}, 7, v0")
    e(f"v_xor_b32 v{vt}, v{vt}, v{vt + 1}")
    e(f"v_lshl_add_u32 v{vd}, v{vt}, 4, v{vd}")


def l01wave():
    vX0, vX1, vW, vWD = 2, 3, 4, 5
    sLW, sXa, sXb, sWo, sS0, sS1, sR4, sT, sCnt, sWd = 64, 65, 66, 67, 68, 69, 70, 71, 72, 73
    cm("================ L0/L1: DMA waves ================")
    e(f"s_sub_u32 s{sLW}, s{sWAVE}, 4")
    e(f"s_cmp_eq_u32 s{sLW}, 0")
    e("s_cselect_b64 s[32:33], s[8:9], s[12:13]")
    e("s_mov_b32 s34, s10")
    e("s_mov_b32 s35, 0x20000")
    e("v_lshrrev_b32 v6, 3, v0")
    e(f"v_lshlrev_b32 v{vX0}, 16, v6")
    e("v_lshrrev_b32 v6, 1, v6")
    e("v_and_b32 v7, 7, v0")
    e("v_xor_b32 v6, v6, v7")
    e(f"v_lshl_add_u32 v{vX0}, v6, 4, v{vX0}")
    e(f"v_xor_b32 v{vX1}, 64, v{vX0}")
    e("v_lshrrev_b32 v6, 4, v0")
    e(f"v_mul_lo_u32 v{vW}, v6, s{sRS}")
    e("v_bfe_u32 v7, v0, 2, 2")
    e("v_xor_b32 v7, v7, v6")
    e("v_lshlrev_b32 v7, 2, v7")
    e("v_and_b32 v8, 3, v0")
    e("v_or_b32 v7, v7, v8")
    e(f"v_lshl_add_u32 v{vW}, v7, 4, v{vW}")
    e(f"s_lshl_b32 s{sXa}, s{sI}, 1")
    e(f"s_add_u32 s{sXa}, s{sXa}, s{sLW}")
    e(f"s_lshl_b32 s{sXa}, s{sXa}, 10")
    e(f"s_add_u32 s{sXb}, s{sXa}, {32 * 1024}")
    e(f"s_mov_b32 s{sWo}, s{sCOL}")
    e(f"s_lshl_b32 s{sR4}, s{sRS}, 2")
    e(f"s_lshl_b32 s74, s{sLW}, 10")
    e(f"s_lshl_b32 s76, s{sLW}, 12")

    def wpieces(base_sgpr, imm):
        e(f"s_add_u32 s{sT}, s{base_sgpr}, s74")
        e(f"s_add_u32 m0, s{sT}, {imm}")
        e("s_nop 0")
        for k in range(8):
            e(f"buffer_load_dwordx4 v{vW}, {srd(SRD_WM)}, s{sWo} offen lds")
            if k < 7:
                e("s_add_u32 m0, m0, 2048")
            e(f"s_add_u32 s{sWo}, s{sWo}, s{sR4}")

    def xpieces(base_sgpr, half):
        sx = sXb if half else sXa
        e(f"s_add_u32 s{sT}, s{base_sgpr}, s76")
        e(f"s_add_u32 m0, s{sT}, {32768 + half * 8192}")
        e(f"s_mov_b32 s{sT}, s{sx}")
        for k in range(4):
            e(f"buffer_load_dwordx4 v{vX1 if k & 1 else vX0}, {srd(SRD_X)}, s{sT} offen lds")
            if k < 3:
                e("s_add_u32 m0, m0, 1024")
                e(f"s_add_u32 s{sT}, s{sT}, 0x80000")
        e(f"s_add_u32 s{sx}, s{sx}, 128")

    e(f"s_mov_b32 s{sS0}, {SLOT}")
    e(f"s_mov_b32 s{sS1}, {2 * SLOT}")
    cm("G0 = x0 + W0 ; G1 = W1 + x1a")
    xpieces(sS0, 0)
    xpieces(sS0, 1)
    wpieces(sS0, 0)
    wpieces(sS0, 16384)
    xpieces(sS1, 0)
    wd_voffset(vWD, 6)
    e(f"s_mov_b32 s{sS0}, {2 * SLOT}")
    e(f"s_mov_b32 s{sS1}, 0")
    e(f"s_mov_b32 s{sCnt}, 6")
    e("s_waitcnt vmcnt(12)")
    stamp(1)
    e("s_barrier")
    lab("L01LOOP")
    wpieces(sS0, 0)
    xpieces(sS0, 1)
    e("s_waitcnt vmcnt(12)")
    e("s_barrier")
    wpieces(sS0, 16384)
    xpieces(sS1, 0)
    e(f"s_mov_b32 s{sS0}, s{sS1}")
    e(f"s_add_u32 s{sS1}, s{sS1}, {SLOT}")
    e(f"s_cmp_eq_u32 s{sS1}, {3 * SLOT}")
    e(f"s_cselect_b32 s{sS1}, 0, s{sS1}")
    e(f"s_sub_u32 s{sCnt}, s{sCnt}, 1")
    e(f"s_cmp_lg_u32 s{sCnt}, 0")
    e("s_waitcnt vmcnt(12)")
    e("s_barrier")
    e("s_cbranch_scc1 L01LOOP")
    cm("after B12: G14")
    wpieces(sS0, 0)
    xpieces(sS0, 1)
    e("s_waitcnt vmcnt(12)")
    e("s_barrier")
    wpieces(sS0, 16384)
    e(f"s_lshl_b32 s{sWd}, s{sCB}, 7")
    e(f"s_lshl_b32 s{sT}, s{sLW}, 14")
    e(f"s_add_u32 s{sWd}, s{sWd}, s{sT}")
    e(f"s_lshl_b32 m0, s{sLW}, 11")
    e("s_nop 0")

    def units(n):
        for _ in range(n):
            e(f"buffer_load_dwordx4 v{vWD}, {srd(SRD_WD)}, s{sWd} offen lds")
            e("s_add_u32 m0, m0, 1024")
            e(f"s_add_u32 s{sWd}, s{sWd}, 8192")
            e(f"buffer_load_dwordx4 v{vWD}, {srd(SRD_WD)}, s{sWd} offen lds")
            e("s_add_u32 m0, m0, 3072")
            e(f"s_add_u32 s{sWd}, s{sWd}, 24576")

    units(2)
    e("s_waitcnt vmcnt(12)")
    e("s_barrier")
    units(6)
    e("s_waitcnt vmcnt(16)")
    e("s_barrier")
    units(6)
    e("s_barrier")
    e(f"s_mov_b32 s{sCnt}, 11")
    lab("L01WD")
    units(2)
    e(f"s_sub_u32 s{sCnt}, s{sCnt}, 1")
    e(f"s_cmp_lg_u32 s{sCnt}, 0")
    e("s_cbranch_scc1 L01WD")
    e("s_waitcnt vmcnt(0)")
    stamp(2)
    e("s_barrier")
    stamp_flush(3, 8)
    e("s_endpgm")


def l23_phase2(which):
    vWD, vZ, vF = 2, 3, 4
    sWd, sZ = 64, 65
    ST0 = 64
    wd_voffset(vWD, 6)
    e("v_and_b32 v6, 3, v0")
    e("v_bfe_u32 v7, v0, 3, 2")
    e("v_lshl_add_u32 v6, v7, 2, v6")
    e("v_bfe_u32 v7, v0, 2, 1")
    e("v_lshl_add_u32 v6, v7, 4, v6")
    e("v_and_b32 v7, 32, v0")
    e("v_add_u32 v6, v6, v7")
    e(f"s_lshl_b32 s66, s{sCB}, 6")
    e("v_add_u32 v6, s66, v6")
    e("v_sub_u32 v7, 512, v6")
    e("v_and_b32 v7, 255, v7")
    e(f"s_cmp_ge_u32 s{sCB}, 4")
    e("s_cselect_b64 s[68:69], -1, 0")
    e(f"s_sub_u32 s67, 32, s{sT1}")
    e("s_and_b32 s67, s67, 31")
    e(f"s_cmp_ge_u32 s{sCB}, 4")
    e(f"s_cselect_b32 s67, s67, s{sT1}")
    e("v_cndmask_b32 v7, v6, v7, s[68:69]")
    e(f"v_lshlrev_b32 v{vZ}, 4, v7")
    e("v_cmp_eq_u32 vcc, 0, v6")
    e(f"v_mov_b32 v7, 0x40000000")
    e(f"s_lshl_b32 s{sZ}, s67, 16")
    e(f"v_cndmask_b32 v{vZ}, v{vZ}, v7, vcc")
    e(f"s_add_u32 s{sZ}, s{sZ}, {Z_OFF + which * 8 * 4096}")
    e(f"s_lshl_b32 s{sWd}, s{sCB}, 7")
    e(f"s_add_u32 s{sWd}, s{sWd}, {36 * 32768 + which * 16384}")
    for u in range(20):
        e(f"buffer_load_dwordx4 {vr(ST0 + 8 * u, 4)}, v{vWD}, {srd(SRD_WD)}, s{sWd} offen")
        e(f"s_add_u32 s{sWd}, s{sWd}, 8192")
        e(f"buffer_load_dwordx4 {vr(ST0 + 8 * u + 4, 4)}, v{vWD}, {srd(SRD_WD)}, s{sWd} offen")
        e(f"s_add_u32 s{sWd}, s{sWd}, 24576")
    e("v_bfe_u32 v6, v0, 1, 4")
    e("v_lshlrev_b32 v6, 4, v6")
    e("v_and_b32 v7, 1, v0")
    e("v_add3_u32 v6, v6, v7, 14")
    e(f"v_lshlrev_b32 v{vF}, 7, v6")
    e(f"s_mov_b32 s66, {FLH}")
    poll(5, vF, "s66", SRD_WS)
    stamp(4)
    for g in range(8):
        e(f"buffer_load_dwordx4 {vr(8 + 4 * g, 4)}, v{vZ}, {srd(SRD_WS)}, s{sZ} offen sc1")
        e(f"s_add_u32 s{sZ}, s{sZ}, 4096")
    e("v_lshlrev_b32 v6, 4, v0")
    e(f"v_add_u32 v7, {MISC + which * 8192}, v6")
    e(f"v_add_u32 v6, {which * 2048}, v6")
    e("s_waitcnt vmcnt(0)")
    for g in range(8):
        e(f"ds_write_b128 v7, {vr(8 + 4 * g, 4)} offset:{g * 1024}")
    stamp(5)
    e("s_barrier")
    for u in range(20):
        if u == 16:
            e("v_add_u32 v6, 0x10000, v6")
        off = (u * 4096) & 0xFFFF
        e(f"ds_write_b128 v6, {vr(ST0 + 8 * u, 4)} offset:{off}")
        e(f"ds_write_b128 v6, {vr(ST0 + 8 * u + 4, 4)} offset:{off + 1024}")
    e("s_waitcnt lgkmcnt(0)")
    stamp(6)
    e("s_barrier")
    stamp_flush(7, 8)
    e("s_endpgm")


def l2wave():
    vA, vS, vDum, vTD, vC = 2, 4, 6, 7, 8
    lab("L2WAVE")
    cm("================ L2: L2-cache touches, column sums ================")
    e(f"s_and_b32 s64, s{sJ}, 1")
    e(f"s_bfe_u32 s65, s{sJ}, 0x10001")
    e("s_lshl_b32 s65, s65, 5")
    e(f"s_lshl_b32 s66, s{sI}, 1")
    e("s_add_u32 s64, s64, s65")
    e("s_add_u32 s64, s64, s66")
    e("s_lshl_b32 s64, s64, 10")
    e("v_lshl_add_u32 v10, v0, 16, s64")
    e(f"s_and_b32 s65, s{sI}, 7")
    e("s_lshl_b32 s65, s65, 3")
    e("v_bfe_u32 v11, v0, 2, 3")
    e("v_add_u32 v11, s65, v11")
    e(f"v_mul_lo_u32 v11, v11, s{sRS}")
    e("v_and_b32 v12, 1, v0")
    e("v_lshl_add_u32 v11, v12, 7, v11")
    e(f"v_add_u32 v11, s{sCOL}, v11")
    e("v_cmp_lt_u32 vcc, 31, v0")
    e("v_and_b32 v12, 2, v0")
    e("v_cmp_ne_u32 s[66:67], 0, v12")
    e("v_mov_b32 v14, s8")
    e("v_mov_b32 v15, s9")
    e("v_mov_b32 v16, s12")
    e("v_mov_b32 v17, s13")
    e("v_cndmask_b32 v14, v14, v16, s[66:67]")
    e("v_cndmask_b32 v15, v15, v17, s[66:67]")
    e("v_mov_b32 v16, s4")
    e("v_mov_b32 v17, s5")
    e("v_cndmask_b32 v14, v16, v14, vcc")
    e("v_cndmask_b32 v15, v17, v15, vcc")
    e("v_cndmask_b32 v10, v10, v11, vcc")
    e("v_mov_b32 v11, 0")
    e(f"v_lshl_add_u64 {vr(vA, 2)}, v[10:11], 0, v[14:15]")
    e(f"s_lshl_b32 s65, s{sRS}, 6")
    e(f"v_mov_b32 v{vS}, 128")
    e("v_mov_b32 v12, s65")
    e(f"v_cndmask_b32 v{vS}, v{vS}, v12, vcc")
    e(f"v_mov_b32 v{vS + 1}, 0")

    def touch():
        if OPT["touch"]:
            e(f"global_load_dword v{vDum}, {vr(vA, 2)}, off")
            e(f"v_lshl_add_u64 {vr(vA, 2)}, {vr(vA, 2)}, 0, {vr(vS, 2)}")

    touch()
    touch()
    e("v_lshrrev_b32 v10, 3, v0")
    e("v_and_b32 v11, 7, v0")
    e(f"v_lshlrev_b32 v{vTD}, 10, v10")
    e(f"v_lshl_add_u32 v{vTD}, v11, 7, v{vTD}")
    e(f"v_mul_lo_u32 v{vC}, v10, s{sRS}")
    e(f"v_lshl_add_u32 v{vC}, v11, 4, v{vC}")
    e(f"s_lshl_b32 s68, s{sIDX}, 13")
    e(f"s_bitcmp1_b32 s{sI}, 1")
    e("s_cselect_b64 s[32:33], s[12:13], s[8:9]")
    e("s_mov_b32 s34, s10")
    e("s_mov_b32 s35, 0x20000")
    e(f"s_lshr_b32 s64, s{sI}, 2")
    e("s_lshl_b32 s64, s64, 7")
    e(f"s_mul_i32 s69, s64, s{sRS}")
    e(f"s_and_b32 s64, s{sI}, 1")
    e("s_lshl_b32 s64, s64, 7")
    e("s_add_u32 s69, s69, s64")
    e(f"s_add_u32 s69, s69, s{sCOL}")
    e(f"s_lshl_b32 s70, s{sRS}, 3")
    e("s_waitcnt vmcnt(0)")
    touch()
    touch()
    stamp(1)

    def td():
        if OPT["touch"]:
            e(f"buffer_load_dword v{vDum}, v{vTD}, {srd(SRD_WD)}, s68 offen")
            e("s_add_u32 s68, s68, 0x40000")

    LD = 32
    AC = 16

    def csload(y):
        e(f"buffer_load_dwordx4 {vr(LD + 4 * y, 4)}, v{vC}, {srd(SRD_WM)}, s69 offen")
        e("s_add_u32 s69, s69, s70")

    def csproc(y):
        for d in range(4):
            r = LD + 4 * y + d
            if y == 0:
                e(f"v_lshlrev_b32 v{AC + 2 * d}, 16, v{r}")
                e(f"v_and_b32 v{AC + 2 * d + 1}, v9, v{r}")
            else:
                e(f"v_lshlrev_b32 v10, 16, v{r}")
                e(f"v_and_b32 v11, v9, v{r}")
                e(f"v_add_f32 v{AC + 2 * d}, v{AC + 2 * d}, v10")
                e(f"v_add_f32 v{AC + 2 * d + 1}, v{AC + 2 * d + 1}, v11")

    e("v_mov_b32 v9, 0xffff0000")
    e("s_barrier")
    touch()
    e("s_barrier")
    touch()
    for y in range(8):
        csload(y)
    e("s_barrier")
    touch()
    for y in range(8, 16):
        csload(y)
    e("s_barrier")
    touch()
    nt = 1 if OPT["touch"] else 0
    e(f"s_waitcnt vmcnt({8 + 2 * nt})")
    for y in range(0, 4):
        csproc(y)
    e("s_barrier")
    for y in range(4, 8):
        csproc(y)
    e("s_barrier")
    e(f"s_waitcnt vmcnt({nt})")
    for y in range(8, 12):
        csproc(y)
    e("s_barrier")
    td()
    for y in range(12, 16):
        csproc(y)
    e("s_barrier")
    td()
    e("s_nop 0")
    for k in range(4):
        e(f"v_permlane32_swap_b32 v{AC + k}, v{AC + k + 4}")
    e("s_nop 1")
    for k in range(4):
        e(f"v_add_f32 v{AC + k}, v{AC + k}, v{AC + k + 4}")
    e("s_nop 1")
    for k in range(2):
        e(f"v_permlane16_swap_b32 v{AC + k}, v{AC + k + 2}")
    e("s_nop 1")
    for k in range(2):
        e(f"v_add_f32 v{AC + k}, v{AC + k}, v{AC + k + 2}")
    e("v_and_b32 v10, 7, v0")
    e("v_lshlrev_b32 v10, 3, v10")
    e(f"v_add_f32_dpp v24, v{AC}, v{AC} row_ror:8 row_mask:0xf bank_mask:0x3")
    e(f"v_add_f32_dpp v24, v{AC + 1}, v{AC + 1} row_ror:8 row_mask:0xf bank_mask:0xc")
    e("v_bfe_u32 v11, v0, 5, 1")
    e("v_lshl_add_u32 v10, v11, 2, v10")
    e("v_bfe_u32 v11, v0, 4, 1")
    e("v_lshl_add_u32 v10, v11, 1, v10")
    e("v_bfe_u32 v11, v0, 3, 1")
    e("v_add_u32 v10, v11, v10")
    e("v_lshlrev_b32 v10, 2, v10")
    e(f"s_lshl_b32 s64, s{sJ}, 12")
    e(f"s_lshl_b32 s65, s{sI}, 8")
    e("s_add_u32 s64, s64, s65")
    e(f"s_add_u32 s64, s64, {CS_OFF}")
    e(f"buffer_store_dword v24, v10, {srd(SRD_WS)}, s64 offen sc1")
    e(f"v_mov_b32 v12, {TAGL}")
    e("ds_read_b32 v13, v12")
    e("s_barrier")
    e("s_waitcnt vmcnt(0) lgkmcnt(0)")
    e(f"v_readfirstlane_b32 s{sTAG}, v13")
    e(f"s_lshl_b32 s64, s{sI}, 4")
    e(f"s_add_u32 s64, s64, s{sJ}")
    e("s_lshl_b32 s64, s64, 7")
    e(f"s_add_u32 s64, s64, {FLC}")
    e("v_mov_b32 v12, 0")
    e(f"buffer_store_dword v13, v12, {srd(SRD_WS)}, s64 offen sc1")
    stamp(2)
    td()
    e("s_barrier")
    td()
    e("s_barrier")
    td()
    e("s_barrier")
    td()
    e("s_barrier")
    td()
    e("s_barrier")
    e("s_barrier")
    e("v_and_b32 v10, 15, v0")
    e("v_lshlrev_b32 v10, 11, v10")
    e(f"s_lshl_b32 s64, s{sJ}, 7")
    e(f"s_add_u32 s64, s64, {FLC}")
    poll(11, 10, "s64", SRD_WS)
    e(f"s_lshl_b32 s64, s{sJ}, 12")
    e(f"s_add_u32 s64, s64, {CS_OFF}")
    e("v_lshlrev_b32 v10, 4, v0")
    for k in range(4):
        e(f"buffer_load_dwordx4 {vr(16 + 4 * k, 4)}, v10, {srd(SRD_WS)}, s64 offen offset:{1024 * k} sc1")
    e("s_barrier")
    e(f"v_add_u32 v10, {CSL}, v10")
    e("s_waitcnt vmcnt(0)")
    for d in range(4):
        e(f"v_add_f32 v{16 + d}, v{16 + d}, v{20 + d}")
        e(f"v_add_f32 v{24 + d}, v{24 + d}, v{28 + d}")
    for d in range(4):
        e(f"v_add_f32 v{16 + d}, v{16 + d}, v{24 + d}")
    e("ds_write_b128 v10, v[16:19]")
    e("s_waitcnt lgkmcnt(0)")
    stamp(3)
    e("s_barrier")
    e("s_barrier")
    l23_phase2(0)


def l3wave():
    lab("L3WAVE")
    cm("================ L3: launch tag, row statistics ================")
    e("s_cmp_lg_u32 s2, 0")
    e("s_cbranch_scc1 L3NOTAG")
    e("s_memrealtime s[64:65]")
    e("v_mov_b32 v2, 0")
    e("s_waitcnt lgkmcnt(0)")
    e("s_or_b32 s64, s64, 1")
    e("v_mov_b32 v3, s64")
    e(f"buffer_store_dword v3, v2, {srd(SRD_DBG)}, 0 offen sc1")
    lab("L3NOTAG")
    e(f"s_bfe_u32 s64, s{sJ}, 0x10002")
    e(f"s_bfe_u32 s65, s{sJ}, 0x10003")
    e("s_lshl_b32 s65, s65, 5")
    e(f"s_lshl_b32 s66, s{sI}, 1")
    e("s_add_u32 s64, s64, s65")
    e("s_add_u32 s64, s64, s66")
    e(f"s_and_b32 s65, s{sJ}, 3")
    e("s_lshl_b32 s65, s65, 9")
    e("s_add_u32 s64, s64, s65")
    e("s_lshl_b32 s64, s64, 10")
    e("v_lshrrev_b32 v4, 3, v0")
    e("v_and_b32 v5, 7, v0")
    e("v_lshlrev_b32 v6, 16, v4")
    e("v_lshl_add_u32 v6, v5, 4, v6")
    e("v_mov_b32 v9, 0xffff0000")
    LD, UP = 16, 64
    e("s_barrier")
    for y in range(8):
        e(f"buffer_load_dwordx4 {vr(LD + 4 * y, 4)}, v6, {srd(SRD_X)}, s64 offen offset:{128 * y}")
    e("s_barrier")
    e("s_barrier")
    e("s_waitcnt vmcnt(0)")

    def unp(d):
        e(f"v_lshlrev_b32 v{UP + 2 * d}, 16, v{LD + d}")
        e(f"v_and_b32 v{UP + 2 * d + 1}, v9, v{LD + d}")
        if d == 0:
            e(f"v_mov_b32 v10, v{UP}")
            e(f"v_mov_b32 v11, v{UP + 1}")
        else:
            e(f"v_add_f32 v10, v10, v{UP + 2 * d}")
            e(f"v_add_f32 v11, v11, v{UP + 2 * d + 1}")

    def red8(r):
        e("s_nop 1")
        e(f"v_add_f32_dpp v{r}, v{r}, v{r} quad_perm:[1,0,3,2] row_mask:0xf bank_mask:0xf")
        e("s_nop 1")
        e(f"v_add_f32_dpp v{r}, v{r}, v{r} quad_perm:[2,3,0,1] row_mask:0xf bank_mask:0xf")
        e("s_nop 1")
        e(f"v_add_f32_dpp v{r}, v{r}, v{r} row_half_mirror row_mask:0xf bank_mask:0xf")

    for d in range(16):
        unp(d)
    e("s_barrier")
    for d in range(16, 32):
        unp(d)
    e("v_add_f32 v10, v10, v11")
    red8(10)
    e(f"v_mul_f32 v10, {f2u(1.0 / 512):#x}, v10")
    e("v_mov_b32 v12, 0")
    e("v_mov_b32 v13, 0")
    e("s_barrier")

    def var(k):
        e(f"v_sub_f32 v{UP + k}, v{UP + k}, v10")
        e(f"v_fmac_f32 v{12 + (k & 1)}, v{UP + k}, v{UP + k}")

    for k in range(32):
        var(k)
    e("s_barrier")
    for k in range(32, 64):
        var(k)
    e("v_mov_b32 v2, 0")
    poll(3, 2, "0", SRD_DBG, cond_tag=False)
    e(f"v_mov_b32 v2, {TAGL}")
    e("ds_write_b32 v2, v3")
    e(f"v_readfirstlane_b32 s{sTAG}, v3")
    e("s_waitcnt lgkmcnt(0)")
    e("s_barrier")
    e("v_add_f32 v12, v12, v13")
    red8(12)
    e(f"v_mul_f32 v12, {f2u(1.0 / 512):#x}, v12")
    e("v_cvt_pk_bf16_f32 v14, v10, v12")
    e("v_lshlrev_b32 v10, 16, v14")
    e("v_and_b32 v12, v9, v14")
    e(f"v_add_f32 v12, {f2u(1e-5):#x}, v12")
    e("v_cvt_pk_bf16_f32 v12, v12, v12")
    e("v_and_b32 v12, v9, v12")
    e("v_sqrt_f32 v12, v12")
    e("s_nop 0")
    e("v_cvt_pk_bf16_f32 v12, v12, v12")
    e("v_and_b32 v12, v9, v12")
    e("v_rcp_f32 v11, v12")
    e("v_lshlrev_b32 v14, 3, v4")
    e("v_cmp_eq_u32 vcc, 0, v5")
    e("v_mov_b32 v15, 0x40000000")
    e(f"s_lshl_b32 s64, s{sI}, 10")
    e(f"s_lshl_b32 s65, s{sJ}, 6")
    e("v_cndmask_b32 v14, v15, v14, vcc")
    e("s_add_u32 s64, s64, s65")
    e(f"s_add_u32 s64, s64, {ST_OFF}")
    e(f"buffer_store_dwordx2 v[10:11], v14, {srd(SRD_WS)}, s64 offen sc1")
    e("s_barrier")
    e("s_waitcnt vmcnt(0)")
    e(f"s_lshl_b32 s66, s{sI}, 4")
    e(f"s_add_u32 s66, s66, s{sJ}")
    e("s_lshl_b32 s66, s66, 7")
    e(f"s_add_u32 s64, s66, {FLR}")
    e(f"s_add_u32 s67, s66, {FLH}")
    e("v_mov_b32 v2, 0")
    e(f"buffer_store_dword v3, v2, {srd(SRD_WS)}, s64 offen sc1")
    stamp(1)
    for n in range(8, 15):
        e("s_barrier")
    e("v_and_b32 v10, 15, v0")
    e("v_lshlrev_b32 v10, 7, v10")
    e(f"s_lshl_b32 s64, s{sI}, 11")
    e(f"s_add_u32 s64, s64, {FLR}")
    poll(11, 10, "s64", SRD_WS)
    e(f"s_lshl_b32 s64, s{sI}, 10")
    e(f"s_add_u32 s64, s64, {ST_OFF}")
    e("v_lshlrev_b32 v10, 4, v0")
    e(f"buffer_load_dwordx4 v[16:19], v10, {srd(SRD_WS)}, s64 offen sc1")
    e("s_barrier")
    e(f"v_add_u32 v10, {MRP}, v10")
    e(f"v_lshlrev_b32 v12, 3, v0")
    e(f"v_add_u32 v12, {RL}, v12")
    e("s_waitcnt vmcnt(0)")
    e("v_mov_b32 v20, v17")
    e("v_mov_b32 v21, v19")
    e("v_mul_f32 v22, v16, v17")
    e("v_mul_f32 v23, v18, v19")
    e("v_xor_b32 v22, 0x80000000, v22")
    e("v_xor_b32 v23, 0x80000000, v23")
    e("ds_write_b128 v10, v[16:19]")
    e("ds_write_b64 v12, v[20:21]")
    e("ds_write_b64 v12, v[22:23] offset:512")
    e("s_waitcnt lgkmcnt(0)")
    stamp(2)
    e("s_barrier")
    e("s_barrier")
    e(f"buffer_store_dword v3, v2, {srd(SRD_WS)}, s67 offen sc1")
    stamp(3)
    l23_phase2(1)


XF = [[64 + 4 * q for q in range(4)], [80 + 4 * q for q in range(4)]]
WF = [[96, 100], [104, 108]]
XA = [112, 113, 114, 115]
WA = 116
vLANE, vPM = 117, 118


def ACC(mat, q):
    return 128 + 32 * q + 16 * mat


def frag_reads(u, st):
    r = []
    for mat in range(2):
        for a in range(2):
            r.append(f"ds_read_b64_tr_b16 {vr(WF[st][mat] + 2 * a, 2)}, v{WA} offset:{u * 8192 + a * 2048 + mat * 1024}")
    for q in range(4):
        r.append(f"ds_read_b128 {vr(XF[st][q], 4)}, v{XA[u]} offset:{q * 4096}")
    return r


def mainloop(dft):
    sCnt, sDelta, sCur = 64, 65, 66
    tag = "D" if dft else "G"
    for s in frag_reads(0, 0):
        e(s)
    e(f"s_mov_b32 s{sCnt}, 8")
    e(f"s_mov_b32 s{sCur}, {SLOT}")
    e(f"s_mov_b32 s67, {(-2 * SLOT) & 0xffffffff:#x}")
    L.append(".p2align 3")
    lab(f"MAIN{tag}")
    for u in range(4):
        st = u & 1
        mf = []
        for mat in ((1, 0) if dft else (0, 1)):
            for q in range(4):
                a, b = (XF[st][q], WF[st][mat]) if dft else (WF[st][mat], XF[st][q])
                mf.append(f"v_mfma_f32_32x32x16_bf16 {vr(ACC(mat, q), 16)}, {vr(a, 4)}, {vr(b, 4)}, {vr(ACC(mat, q), 16)}")
        rd = frag_reads((u + 1) & 3, st ^ 1)
        gaps = [[] for _ in range(8)]
        if u == 3:
            gaps[0] += [f"v_add_u32 v{WA}, s{sDelta}, v{WA}", f"v_add_u32 v{XA[0]}, s{sDelta}, v{XA[0]}"]
            gaps[5] += [f"v_add_u32 v{XA[1]}, s{sDelta}, v{XA[1]}"]
            gaps[6] += [f"v_add_u32 v{XA[2]}, s{sDelta}, v{XA[2]}", f"v_add_u32 v{XA[3]}, s{sDelta}, v{XA[3]}",
                        f"s_sub_u32 s{sCnt}, s{sCnt}, 1"]
            gaps[7] += [f"s_cmp_lg_u32 s{sCnt}, 0"]
        if u == 2:
            gaps[5] += [f"s_cmp_eq_u32 s{sCur}, {2 * SLOT}", f"s_cselect_b32 s{sDelta}, s67, {SLOT}"]
            gaps[6] += [f"s_add_u32 s{sCur}, s{sCur}, s{sDelta}"]
        if u & 1:
            gaps[0] += ["s_barrier"]
        if dft:
            gaps[0] = [f"v_cndmask_b32 v{WF[st][0] + k}, v{WF[st][0] + k}, v{vPM}, s[68:69]" for k in range(2)] + gaps[0]
            gaps[1] += [f"v_cndmask_b32 v{WF[st][0] + k}, v{WF[st][0] + k}, v{vPM}, s[68:69]" for k in range(2, 4)]
        for k in range(4):
            gaps[k + (1 if (u & 1) else 0)] += rd[2 * k:2 * k + 2]
        e("s_waitcnt lgkmcnt(0)")
        for k in range(8):
            e(mf[k])
            for s in gaps[k]:
                e(s)
    e(f"s_cbranch_scc1 MAIN{tag}")


def glu_epilogue():
    CG, CU, MR = 0, 16, 32
    e(f"v_lshrrev_b32 v40, 5, v{vLANE}")
    e(f"s_lshl_b32 s64, s{sWAVE}, 7")
    e(f"s_add_u32 s64, s64, {CSL}")
    e("v_lshl_add_u32 v40, v40, 4, s64")
    e(f"v_and_b32 v41, 31, v{vLANE}")
    e(f"v_lshlrev_b32 v41, 3, v41")
    e(f"v_add_u32 v41, {MRP}, v41")
    e(f"v_mov_b32 v42, {TAGL}")
    for q in range(4):
        e(f"ds_read_b64 {vr(MR + 2 * q, 2)}, v41 offset:{256 * q}")
    for a in range(4):
        e(f"ds_read_b128 {vr(CG + 4 * a, 4)}, v40 offset:{32 * a}")
    for a in range(4):
        e(f"ds_read_b128 {vr(CU + 4 * a, 4)}, v40 offset:{512 + 32 * a}")
    e("ds_read_b32 v43, v42")
    e(f"s_lshl_b32 s64, s{sJ}, 2")
    e(f"s_add_u32 s64, s64, s{sWAVE}")
    e("s_lshl_b32 s64, s64, 10")
    e(f"s_mul_i32 s65, s{sI}, {2 * 4 * 56 * 1024}")
    e("s_add_u32 s64, s64, s65")
    e(f"v_lshlrev_b32 v44, 4, v{vLANE}")
    e("s_mov_b32 s66, 1.0")
    e("s_mov_b32 s67, 1.0")
    e("s_waitcnt lgkmcnt(0)")
    e(f"v_readfirstlane_b32 s{sTAG}, v43")
    for q in range(4):
        e(f"v_mul_f32 v{MR + 2 * q + 1}, {NLOG2E:#x}, v{MR + 2 * q + 1}")
    stamp(3)
    out = 0
    for q in range(4):
        b, p = q & 1, q >> 1
        mr = vr(MR + 2 * q, 2)
        for z in range(2):
            G = ACC(0, q) + 8 * z
            U = ACC(1, q) + 8 * z
            for k in range(4):
                e(f"v_pk_fma_f32 {vr(G + 2 * k, 2)}, {vr(CG + 8 * z + 2 * k, 2)}, {mr}, {vr(G + 2 * k, 2)} op_sel_hi:[1,0,1] neg_lo:[0,1,0] neg_hi:[0,1,0]")
            for k in range(4):
                e(f"v_pk_mul_f32 {vr(G + 2 * k, 2)}, {vr(G + 2 * k, 2)}, {mr} op_sel:[0,1] op_sel_hi:[1,1]")
            for k in range(8):
                e(f"v_exp_f32 v{G + k}, v{G + k}")
            for k in range(4):
                e(f"v_pk_add_f32 {vr(G + 2 * k, 2)}, {vr(G + 2 * k, 2)}, s[66:67]")
            for k in range(8):
                e(f"v_rcp_f32 v{G + k}, v{G + k}")
            for k in range(4):
                e(f"v_pk_fma_f32 {vr(U + 2 * k, 2)}, {vr(CU + 8 * z + 2 * k, 2)}, {mr}, {vr(U + 2 * k, 2)} op_sel_hi:[1,0,1] neg_lo:[0,1,0] neg_hi:[0,1,0]")
            for k in range(4):
                e(f"v_pk_mul_f32 {vr(U + 2 * k, 2)}, {vr(U + 2 * k, 2)}, {vr(G + 2 * k, 2)}")
            o = 64 + 4 * out
            out += 1
            for k in range(4):
                e(f"v_cvt_pk_bf16_f32 v{o + k}, v{U + 2 * k}, v{U + 2 * k + 1}")
            e(f"s_add_u32 s65, s64, {((b * 2 + p) * 2 + z) * 56 * 1024 + H_OFF}")
            e(f"buffer_store_dwordx4 {vr(o, 4)}, v44, {srd(SRD_WS)}, s65 offen sc1")


def TW(q, cs, z):
    return 16 * q + 8 * cs + 4 * z


def dft_prologue():
    e(f"v_and_b32 v2, 31, v{vLANE}")
    e("v_cvt_f32_u32 v3, v2")
    e(f"v_mul_f32 v3, {f2u(1.0 / 2048):#x}, v3")
    e(f"s_and_b32 s64, s{sWAVE}, 1")
    e(f"s_lshr_b32 s65, s{sWAVE}, 1")
    e("s_lshl_b32 s65, s65, 5")
    e("s_add_u32 s64, s64, s65")
    e(f"s_lshl_b32 s65, s{sI}, 1")
    e("s_add_u32 s64, s64, s65")
    e(f"v_lshrrev_b32 v4, 5, v{vLANE}")
    e("v_lshl_add_u32 v4, v4, 8, s64")
    e("v_cvt_f32_u32 v4, v4")
    e("v_mul_f32 v4, v3, v4")
    e("v_and_b32 v5, 1, v2")
    e("v_mul_u32_u24 v5, 0x8000, v5")
    e("v_lshl_or_b32 v5, v5, 16, v5")
    for jj in range(8):
        c = 64.0 * (8 * (jj >> 2) + (jj & 3))
        e(f"v_fmamk_f32 v{8 + jj}, v3, {f2u(c):#x}, v4")
    for jj in range(8):
        e(f"v_fract_f32 v{8 + jj}, v{8 + jj}")
    for jj in range(8):
        e(f"v_cos_f32 v{16 + jj}, v{8 + jj}")
        e(f"v_sin_f32 v{24 + jj}, v{8 + jj}")
    e("s_nop 0")
    for k in range(4):
        e(f"v_cvt_pk_bf16_f32 v{32 + k}, v{16 + 2 * k}, v{17 + 2 * k}")
        e(f"v_cvt_pk_bf16_f32 v{40 + k}, v{24 + 2 * k}, v{25 + 2 * k}")
    for k in range(4):
        e(f"v_xor_b32 v{36 + k}, v5, v{32 + k}")
        e(f"v_xor_b32 v{44 + k}, v5, v{40 + k}")
    e(f"s_lshl_b32 s64, s{sWAVE}, 12")
    e(f"s_add_u32 s64, s64, {MISC}")
    e(f"v_lshl_add_u32 v6, v{vLANE}, 4, s64")
    for k in range(4):
        e(f"ds_write_b128 v6, {vr(32 + 4 * k, 4)} offset:{1024 * k}")
    e(f"s_cmp_eq_u32 s{sJ}, 14")
    e("s_cselect_b32 s68, 1, 0")
    e(f"s_cmp_eq_u32 s{sWAVE}, 0")
    e("s_cselect_b32 s68, s68, 0")
    e("s_mov_b32 s69, s68")
    e(f"v_mov_b32 v{vPM}, 0xbf803f80")
    e(f"v_lshlrev_b32 v119, 4, v{vLANE}")
    e(f"v_add_u32 v119, {MISC}, v119")
    e("s_waitcnt lgkmcnt(0)")


def dft_epilogue():
    R0, N0 = 64, 80
    TA, TB, NTA = 96, 104, 120
    e(f"v_and_b32 v112, 31, v{vLANE}")
    e(f"s_lshl_b32 s64, s{sWAVE}, 7")
    e(f"s_add_u32 s64, s64, {CSL}")
    e("v_lshl_add_u32 v113, v112, 2, s64")
    e(f"v_lshrrev_b32 v114, 5, v{vLANE}")
    e(f"v_lshlrev_b32 v115, 4, v114")
    e(f"v_add_u32 v115, {RL}, v115")
    e(f"v_mov_b32 v116, {TAGL}")
    e("s_waitcnt lgkmcnt(0)")
    e("ds_read_b32 v118, v113")
    e("ds_read_b32 v119, v113 offset:512")
    e("ds_read_b32 v116, v116")

    def rd(q):
        for a in range(4):
            e(f"ds_read_b128 {vr(R0 + 4 * a, 4)}, v115 offset:{128 * q + 32 * a}")
            e(f"ds_read_b128 {vr(N0 + 4 * a, 4)}, v115 offset:{512 + 128 * q + 32 * a}")

    rd(0)
    e("v_lshlrev_b32 v112, 4, v112")
    e("v_lshl_add_u32 v112, v114, 18, v112")
    e(f"s_lshl_b32 s64, s{sI}, 12")
    e(f"s_and_b32 s65, s{sJ}, 1")
    e("s_lshl_b32 s65, s65, 11")
    e("s_add_u32 s64, s64, s65")
    e(f"s_lshl_b32 s65, s{sWAVE}, 9")
    e("s_add_u32 s64, s64, s65")
    e(f"s_add_u32 s64, s64, {Z_OFF}")
    e("s_waitcnt lgkmcnt(0)")
    e(f"v_readfirstlane_b32 s{sTAG}, v116")
    e("v_cndmask_b32 v118, v118, 0, s[68:69]")
    stamp(3)
    for q in range(4):
        if q:
            e("s_waitcnt lgkmcnt(0)")
        for mat, T, cs in ((0, TA, 118), (1, TB, 119)):
            A = ACC(mat, q)
            for r in range(16):
                e(f"v_mul_f32 v{A + r}, v{A + r}, v{R0 + r}")
            for r in range(16):
                e(f"v_fmac_f32 v{A + r}, v{N0 + r}, v{cs}")
            for k in range(8):
                e(f"v_cvt_pk_bf16_f32 v{T + k}, v{A + 2 * k}, v{A + 2 * k + 1}")
        for k in range(8):
            e(f"v_xor_b32 v{NTA + k}, 0x80008000, v{TA + k}")
        if q < 3:
            rd(q + 1)
        zr, zi = ACC(0, q), ACC(1, q)
        e("s_nop 1")
        e(f"v_mfma_f32_32x32x16_bf16 {vr(zr, 16)}, {vr(TW(q, 0, 0), 4)}, {vr(TA, 4)}, 0")
        e(f"v_mfma_f32_32x32x16_bf16 {vr(zi, 16)}, {vr(TW(q, 0, 0), 4)}, {vr(TB, 4)}, 0")
        e(f"v_mfma_f32_32x32x16_bf16 {vr(zr, 16)}, {vr(TW(q, 0, 1), 4)}, {vr(TA + 4, 4)}, {vr(zr, 16)}")
        e(f"v_mfma_f32_32x32x16_bf16 {vr(zi, 16)}, {vr(TW(q, 0, 1), 4)}, {vr(TB + 4, 4)}, {vr(zi, 16)}")
        e(f"v_mfma_f32_32x32x16_bf16 {vr(zr, 16)}, {vr(TW(q, 1, 0), 4)}, {vr(TB, 4)}, {vr(zr, 16)}")
        e(f"v_mfma_f32_32x32x16_bf16 {vr(zi, 16)}, {vr(TW(q, 1, 0), 4)}, {vr(NTA, 4)}, {vr(zi, 16)}")
        e(f"v_mfma_f32_32x32x16_bf16 {vr(zr, 16)}, {vr(TW(q, 1, 1), 4)}, {vr(TB + 4, 4)}, {vr(zr, 16)}")
        e(f"v_mfma_f32_32x32x16_bf16 {vr(zi, 16)}, {vr(TW(q, 1, 1), 4)}, {vr(NTA + 4, 4)}, {vr(zi, 16)}")
    e("s_nop 7")
    e("s_nop 3")
    for r in range(16):
        o = 64 + 4 * (r & 7)
        for q in range(4):
            e(f"v_cvt_pk_bf16_f32 v{o + q}, v{ACC(0, q) + r}, v{ACC(1, q) + r}")
        e(f"s_add_u32 s65, s64, {(8 * (r >> 2) + (r & 3)) * 65536}")
        e(f"buffer_store_dwordx4 {vr(o, 4)}, v112, {srd(SRD_WS)}, s65 offen sc1")


def phase2():
    OWN, OTH, Y, EF, XR, vR = 0, 16, 32, 48, 80, 88
    W2 = [[96, 100], [104, 108]]
    WD = [112, 113]
    vH, vXO, vZA = 114, 115, 116
    HR, ZF = 128, 192
    sP, sKH, sH, sXO = 64, 65, 66, 67
    lab("PHASE2")
    e("s_waitcnt vmcnt(0)")
    stamp(4)
    e("s_barrier")
    e(f"s_and_b32 s{sP}, s{sWAVE}, 1")
    e(f"s_lshr_b32 s{sKH}, s{sWAVE}, 1")
    e(f"v_and_b32 v89, 31, v{vLANE}")
    e(f"v_lshrrev_b32 v90, 5, v{vLANE}")
    e(f"v_lshlrev_b32 v{vXO}, 16, v89")
    e(f"v_lshl_add_u32 v{vXO}, v90, 5, v{vXO}")
    e(f"s_lshl_b32 s68, s{sP}, 5")
    e(f"s_add_u32 s68, s68, s{sT1}")
    e(f"s_lshl_b32 s{sXO}, s68, 10")
    e(f"s_lshl_b32 s68, s{sCB}, 7")
    e(f"s_add_u32 s{sXO}, s{sXO}, s68")
    e(f"s_lshl_b32 s68, s{sKH}, 6")
    e(f"s_add_u32 s{sXO}, s{sXO}, s68")
    e(f"buffer_load_dwordx4 {vr(XR, 4)}, v{vXO}, {srd(SRD_X)}, s{sXO} offen")
    e(f"buffer_load_dwordx4 {vr(XR + 4, 4)}, v{vXO}, {srd(SRD_X)}, s{sXO} offen offset:16")
    e(f"v_bfe_u32 v91, v{vLANE}, 2, 2")
    e("v_lshl_add_u32 v92, v90, 2, v91")
    e(f"s_lshl_b32 s68, s{sKH}, 11")
    e("v_lshl_add_u32 v92, v92, 7, s68")
    e(f"v_and_b32 v93, 1, v{vLANE}")
    e("v_lshlrev_b32 v93, 2, v93")
    e(f"v_bfe_u32 v94, v{vLANE}, 4, 1")
    e("v_lshl_add_u32 v93, v94, 1, v93")
    e(f"v_bfe_u32 v94, v{vLANE}, 1, 1")
    e("v_add_u32 v93, v93, v94")
    e("v_lshl_add_u32 v92, v93, 3, v92")
    e("v_lshrrev_b32 v91, 1, v91")
    e(f"v_xor_b32 v91, s{sKH}, v91")
    e(f"v_lshl_add_u32 v{WD[0]}, v91, 6, v92")
    e(f"v_xor_b32 v{WD[1]}, 64, v{WD[0]}")

    def wreads(v, st):
        slot = v if v < 36 else v - 36
        off = (slot * 4096) & 0xFFFF
        return [f"ds_read_b64_tr_b16 {vr(W2[st][c] + 2 * a, 2)}, v{WD[c]} offset:{off + 1024 * a}" for c in range(2) for a in range(2)]

    for s in wreads(0, 0):
        e(s)
    e(f"s_lshl_b32 s68, s{sKH}, 9")
    e(f"s_add_u32 s68, s68, {MISC}")
    e(f"v_lshl_add_u32 v{vZA}, v89, 4, s68")
    e(f"v_lshl_add_u32 v{vZA}, v90, 10, v{vZA}")
    e(f"v_lshl_add_u32 v91, v89, 1, s{sP}")
    e(f"s_cmp_eq_u32 s{sT1}, 0")
    e("s_cselect_b32 s68, 64, 63")
    e("v_sub_u32 v92, s68, v91")
    e(f"s_cmp_ge_u32 s{sCB}, 4")
    e("s_cselect_b64 s[70:71], -1, 0")
    e("v_cndmask_b32 v91, v91, v92, s[70:71]")
    e("v_and_b32 v92, 1, v91")
    e("v_mul_u32_u24 v92, 0x8000, v92")
    e("v_lshl_or_b32 v92, v92, 16, v92")
    e("v_cvt_f32_u32 v91, v91")
    e(f"v_mul_f32 v91, {f2u(1.0 / 64):#x}, v91")
    e("v_lshlrev_b32 v93, 1, v90")
    e("v_cvt_f32_u32 v93, v93")
    e("v_mul_f32 v93, v91, v93")
    T = HR
    for sg in range(8):
        for b in range(2):
            e(f"v_fmamk_f32 v{T + 2 * sg + b}, v91, {f2u(float(4 * sg + b)):#x}, v93")
    for k in range(16):
        e(f"v_fract_f32 v{T + k}, v{T + k}")
    for k in range(16):
        e(f"v_cos_f32 v{T + 16 + k}, v{T + k}")
        e(f"v_sin_f32 v{T + 32 + k}, v{T + k}")
    e("s_nop 0")
    for sg in range(8):
        for b in range(2):
            e(f"v_cvt_pk_bf16_f32 v{EF + 4 * sg + b}, v{T + 16 + 2 * sg + b}, v{T + 32 + 2 * sg + b}")
        for b in range(2):
            e(f"v_xor_b32 v{EF + 4 * sg + 2 + b}, v92, v{EF + 4 * sg + b}")
    e(f"s_lshl_b32 s68, s{sT1}, 2")
    e(f"s_lshl_b32 s69, s{sP}, 1")
    e("s_add_u32 s68, s68, s69")
    e(f"s_add_u32 s68, s68, s{sKH}")
    e(f"s_mul_i32 s{sH}, s68, {56 * 1024}")
    if H_OFF:
        e(f"s_add_u32 s{sH}, s{sH}, {H_OFF}")
    e(f"v_lshlrev_b32 v{vH}, 4, v{vLANE}")
    e(f"v_min_u32 v91, 13, v{vLANE}")
    e("v_lshlrev_b32 v91, 7, v91")
    e(f"s_lshr_b32 s68, s{sT1}, 1")
    e("s_lshl_b32 s69, s68, 11")
    e(f"s_add_u32 s69, s69, {FLH}")
    stamp(5)
    poll(92, 91, "s69", SRD_WS)
    stamp(6)
    e("s_lshl_b32 s68, s68, 10")
    e(f"s_and_b32 s69, s{sT1}, 1")
    e(f"s_lshl_b32 s70, s{sP}, 1")
    e("s_add_u32 s69, s69, s70")
    e("s_lshl_b32 s69, s69, 8")
    e("s_add_u32 s68, s68, s69")
    e(f"s_add_u32 s68, s68, {ST_OFF}")
    e("v_lshlrev_b32 v91, 3, v89")
    e(f"buffer_load_dword v{vR}, v91, {srd(SRD_WS)}, s68 offen offset:4 sc1")

    def hload(v):
        r = [f"buffer_load_dwordx4 {vr(HR + 4 * (v % D), 4)}, v{vH}, {srd(SRD_WS)}, s{sH} offen offset:{1024 * (v & 3)} sc1"]
        if v & 3 == 3:
            r.append(f"s_add_u32 s{sH}, s{sH}, 4096")
        return r

    for v in range(D):
        for s in hload(v):
            e(s)
    for v in range(56):
        st = v & 1
        outstanding = min(D - 1, 55 - v)
        e(f"s_waitcnt vmcnt({outstanding}) lgkmcnt(0)")
        h = vr(HR + 4 * (v % D), 4)
        c0 = "0" if v == 0 else vr(OWN, 16)
        c1 = "0" if v == 0 else vr(OTH, 16)
        e(f"v_mfma_f32_32x32x16_bf16 {vr(OWN, 16)}, {vr(W2[st][0], 4)}, {h}, {c0}")
        if v in (19, 35):
            e("s_barrier")
        nv = v + 1
        if nv < 56:
            if nv in (16, 32, 52):
                for c in range(2):
                    e(f"v_add_u32 v{WD[c]}, 0x10000, v{WD[c]}")
            if nv == 36:
                for c in range(2):
                    e(f"v_subrev_u32 v{WD[c]}, 0x20000, v{WD[c]}")
            for s in wreads(nv, st ^ 1):
                e(s)
        if 40 <= v < 48:
            e(f"ds_read_b128 {vr(ZF + 4 * (v - 40), 4)}, v{vZA} offset:{2048 * (v - 40)}")
        e(f"v_mfma_f32_32x32x16_bf16 {vr(OTH, 16)}, {vr(W2[st][1], 4)}, {h}, {c1}")
        if v + D < 56:
            for s in hload(v + D):
                e(s)
        if v >= 48:
            sg = v - 48
            cy = "0" if sg == 0 else vr(Y, 16)
            e(f"v_mfma_f32_32x32x16_bf16 {vr(Y, 16)}, {vr(ZF + 4 * sg, 4)}, {vr(EF + 4 * sg, 4)}, {cy}")
    stamp(7)
    e(f"s_lshl_b32 s68, s{sWAVE}, 12")
    e(f"s_add_u32 s68, s68, {RED}")
    e(f"v_add_u32 v91, s68, v{vH}")
    e(f"v_xor_b32 v92, 8192, v91")
    e("s_mov_b32 s70, 1.0")
    e("s_mov_b32 s71, 1.0")
    e(f"v_mul_f32 v{vR + 1}, {NLOG2E:#x}, v{vR}")
    e("s_nop 5")
    for a in range(4):
        e(f"ds_write_b128 v91, {vr(OTH + 4 * a, 4)} offset:{1024 * a}")
    XU = 128
    e("v_mov_b32 v93, 0xffff0000")
    for k in range(8):
        e(f"v_lshlrev_b32 v{XU + 2 * k}, 16, v{XR + k}")
        e(f"v_and_b32 v{XU + 2 * k + 1}, v93, v{XR + k}")
    e("s_waitcnt lgkmcnt(0)")
    e("s_barrier")
    PT = 144
    for a in range(4):
        e(f"ds_read_b128 {vr(PT + 4 * a, 4)}, v92 offset:{1024 * a}")
    e("s_waitcnt lgkmcnt(0)")
    rr = vr(vR, 2)
    TT = 160
    for k in range(8):
        e(f"v_pk_add_f32 {vr(OWN + 2 * k, 2)}, {vr(OWN + 2 * k, 2)}, {vr(PT + 2 * k, 2)}")
    for k in range(8):
        e(f"v_pk_mul_f32 {vr(TT + 2 * k, 2)}, {vr(OWN + 2 * k, 2)}, {rr} op_sel:[0,1] op_sel_hi:[1,1]")
    for k in range(16):
        e(f"v_exp_f32 v{TT + k}, v{TT + k}")
    for k in range(8):
        e(f"v_pk_add_f32 {vr(TT + 2 * k, 2)}, {vr(TT + 2 * k, 2)}, s[70:71]")
    for k in range(16):
        e(f"v_rcp_f32 v{TT + k}, v{TT + k}")
    for k in range(8):
        e(f"v_pk_mul_f32 {vr(OWN + 2 * k, 2)}, {vr(OWN + 2 * k, 2)}, {rr} op_sel_hi:[1,0]")
    for k in range(8):
        e(f"v_pk_mul_f32 {vr(OWN + 2 * k, 2)}, {vr(OWN + 2 * k, 2)}, {vr(TT + 2 * k, 2)}")
    for k in range(8):
        e(f"v_pk_fma_f32 {vr(OWN + 2 * k, 2)}, {vr(OWN + 2 * k, 2)}, {vr(Y + 2 * k, 2)}, {vr(XU + 2 * k, 2)}")
    for k in range(8):
        e(f"v_cvt_pk_bf16_f32 v{TT + k}, v{OWN + 2 * k}, v{OWN + 2 * k + 1}")
    e(f"buffer_store_dwordx4 {vr(TT, 4)}, v{vXO}, {srd(SRD_OUT)}, s{sXO} offen")
    e(f"buffer_store_dwordx4 {vr(TT + 4, 4)}, v{vXO}, {srd(SRD_OUT)}, s{sXO} offen offset:16")
    stamp_flush(8, 176)
    if OPT.get("delay"):
        e("s_memtime s[80:81]")
        e("s_waitcnt lgkmcnt(0)")
        lab("DLY")
        e("s_memtime s[82:83]")
        e("s_waitcnt lgkmcnt(0)")
        e("s_sub_u32 s82, s82, s80")
        e(f"s_cmp_lt_u32 s82, {OPT['delay']}")
        e("s_cbranch_scc1 DLY")
    if OPT.get("rdelay"):
        e("s_memrealtime s[80:81]")
        e("s_waitcnt lgkmcnt(0)")
        lab("DLY")
        e("s_memrealtime s[82:83]")
        e("s_waitcnt lgkmcnt(0)")
        e("s_sub_u32 s82, s82, s80")
        e(f"s_cmp_lt_u32 s82, {OPT['rdelay']}")
        e("s_cbranch_scc1 DLY")
    e("s_endpgm")


def cwave():
    lab("CWAVE")
    cm("================ C waves: matrix work ================")
    e("s_setprio 2")
    e(f"v_mov_b32 v{vLANE}, v0")
    e("v_and_b32 v2, 31, v0")
    e("v_lshrrev_b32 v3, 5, v0")
    e("v_bfe_u32 v4, v0, 1, 3")
    e("v_lshlrev_b32 v5, 7, v2")
    e(f"v_add_u32 v5, {SLOT + 32768}, v5")
    for u in range(4):
        e(f"v_add_u32 v6, {2 * u}, v3")
        e("v_xor_b32 v6, v6, v4")
        e(f"v_lshl_add_u32 v{XA[u]}, v6, 4, v5")
    e("v_bfe_u32 v4, v0, 2, 2")
    e(f"v_lshlrev_b32 v{WA}, 12, v3")
    e(f"v_lshl_add_u32 v{WA}, v4, 8, v{WA}")
    e(f"v_xor_b32 v4, s{sWAVE}, v4")
    e(f"v_lshl_add_u32 v{WA}, v4, 6, v{WA}")
    e("v_bfe_u32 v4, v0, 4, 1")
    e(f"v_lshl_add_u32 v{WA}, v4, 5, v{WA}")
    e("v_and_b32 v4, 3, v0")
    e(f"v_lshl_add_u32 v{WA}, v4, 3, v{WA}")
    e(f"v_add_u32 v{WA}, {SLOT}, v{WA}")
    for r in range(128, 256):
        e(f"v_mov_b32 v{r}, 0")
    e(f"s_cmp_eq_u32 s{sDFT}, 1")
    e("s_cbranch_scc1 CDFT")
    stamp(1)
    e("s_barrier")
    e("s_nop 0")
    mainloop(False)
    stamp(2)
    glu_epilogue()
    phase2()
    lab("CDFT")
    dft_prologue()
    stamp(1)
    e("s_barrier")
    for k in range(16):
        e(f"ds_read_b128 {vr(4 * k, 4)}, v119 offset:{1024 * k}")
    mainloop(True)
    stamp(2)
    dft_epilogue()
    e("s_branch PHASE2")


hdr = open("cdna_kernels/" + NAME + ".s.ref").read().split("\n")
head = [l for l in hdr if l.startswith(";") and "@launch" not in l and "Override launch" not in l and "grid=ceil" not in l]
K = NAME + "_kernel"
out = head + ["; @launch grid=(256,1,1) block=(512,1,1) lds=163840",
              '.amdgcn_target "amdgcn-amd-amdhsa--gfx950"', ".text", f".globl {K}", ".p2align 8", f".type {K},@function", f"{K}:"]
prologue()
l01wave()
l2wave()
l3wave()
cwave()
lab("END")
e("s_endpgm")
out += L
out += ['.section .rodata,"a"', ".p2align 6", f".amdhsa_kernel {K}", "  .amdhsa_next_free_vgpr 256", "  .amdhsa_next_free_sgpr 102",
        "  .amdhsa_accum_offset 256", "  .amdhsa_group_segment_fixed_size 0", "  .amdhsa_kernarg_size 96",
        "  .amdhsa_user_sgpr_count 2", "  .amdhsa_user_sgpr_kernarg_segment_ptr 1", "  .amdhsa_system_sgpr_workgroup_id_x 1",
        ".end_amdhsa_kernel", ""]
open(sys.argv[1], "w").write("\n".join(out))
```

```python
import sys

NAME = "recurrent_scan__spectral_fnet__glu_gated_glu__prompt"
OPT = dict(prof=0, D=16, touch=1, spin=200000)
for a in sys.argv[2:]:
    k, v = a.split("=")
    OPT[k] = int(v)
PROF = OPT["prof"]
D = OPT["D"]

H_OFF, Z_OFF, ST_OFF, CS_OFF = 0, 0x800000, 0xA00000, 0xA10000
FLR, FLC, FLH, PROF_OFF, WS_SIZE = 0xA40000, 0xA48000, 0xA50000, 0xA60000, 0xB00000
SLOT = 49152
MISC = 147456
CSL, MRP, RL, NMRL, TAGL = MISC, MISC + 1024, MISC + 2048, MISC + 2560, MISC + 3072
RED = 20 * 4096
LOG2E = 0x3FB8AA3B
NLOG2E = 0xBFB8AA3B


def f2u(x):
    import struct
    return struct.unpack("<I", struct.pack("<f", x))[0]


L = []


def e(s):
    L.append("    " + s)


def lab(s):
    L.append(s + ":")


def cm(s):
    L.append("    ; " + s)


def vr(a, n):
    return f"v[{a}:{a + n - 1}]"


SRD_X, SRD_W0, SRD_W1, SRD_WD, SRD_WS, SRD_OUT, SRD_DBG, SRD_WM = 4, 8, 12, 16, 20, 24, 28, 32
sWAVE, sI, sJ, sT1, sCB, sRS, sCOL, sDFT, sTAG, sIDX = 36, 37, 38, 39, 40, 41, 42, 43, 44, 45
sSTAMP = 80
nstamp = [0]


def srd(n):
    return f"s[{n}:{n + 3}]"


def stamp(i):
    if PROF:
        e(f"s_memtime s[{sSTAMP + 2 * i}:{sSTAMP + 2 * i + 1}]")


def stamp_flush(n, vt):
    if not PROF:
        return
    e("s_waitcnt lgkmcnt(0)")
    for i in range(8):
        e(f"v_mov_b32 v{vt + i}, s{sSTAMP + 2 * i}" if i < n else f"v_mov_b32 v{vt + i}, 0")
    e(f"s_lshl_b32 s78, s2, 3")
    e(f"s_add_u32 s78, s78, s{sWAVE}")
    e(f"s_lshl_b32 s78, s78, 6")
    e(f"s_add_u32 s78, s78, {PROF_OFF}")
    e(f"v_mov_b32 v{vt + 8}, 0")
    e(f"buffer_store_dwordx4 {vr(vt, 4)}, v{vt + 8}, {srd(SRD_WS)}, s78 offen")
    e(f"buffer_store_dwordx4 {vr(vt + 4, 4)}, v{vt + 8}, {srd(SRD_WS)}, s78 offen offset:16")
    e(f"s_memrealtime s[76:77]")
    e("s_waitcnt lgkmcnt(0)")
    e(f"v_mov_b32 v{vt}, s98")
    e(f"v_mov_b32 v{vt + 1}, s76")
    e(f"buffer_store_dwordx2 {vr(vt, 2)}, v{vt + 8}, {srd(SRD_WS)}, s78 offen offset:32")


uid = [0]


def poll(vdst, vaddr, ssoff, srdn, cond_tag=True):
    uid[0] += 1
    n = uid[0]
    e(f"s_mov_b32 s75, {OPT['spin']}")
    lab(f"POLL{n}")
    e(f"buffer_load_dword v{vdst}, v{vaddr}, {srd(srdn)}, {ssoff} offen sc1")
    e("s_waitcnt vmcnt(0)")
    if cond_tag:
        e(f"v_cmp_ne_u32 vcc, s{sTAG}, v{vdst}")
    else:
        e(f"v_cmp_eq_u32 vcc, 0, v{vdst}")
    e("s_nop 1")
    e("s_cmp_eq_u64 vcc, 0")
    e(f"s_cbranch_scc1 POLLD{n}")
    e("s_sleep 1")
    e("s_sub_u32 s75, s75, 1")
    e("s_cmp_lg_u32 s75, 0")
    e(f"s_cbranch_scc1 POLL{n}")
    lab(f"POLLD{n}")


def prologue():
    e("s_cmp_ge_u32 s2, 256")
    e("s_cbranch_scc1 END")
    e("s_load_dwordx2 s[4:5], s[0:1], 0")
    e("s_load_dwordx4 s[48:51], s[0:1], 24")
    e("s_load_dwordx8 s[52:59], s[0:1], 48")
    e("s_load_dwordx4 s[60:63], s[0:1], 80")
    if PROF or OPT.get("rabs"):
        e("s_memrealtime s[98:99]")
        stamp(0)
    e("v_lshrrev_b32 v1, 6, v0")
    e("v_and_b32 v0, 63, v0")
    e(f"s_lshr_b32 s{sIDX}, s2, 3")
    e(f"v_readfirstlane_b32 s{sWAVE}, v1")
    e("s_and_b32 s64, s2, 1")
    e("s_lshl_b32 s64, s64, 3")
    e(f"s_and_b32 s65, s{sIDX}, 7")
    e(f"s_add_u32 s{sI}, s64, s65")
    e("s_bfe_u32 s64, s2, 0x20001")
    e("s_lshl_b32 s64, s64, 2")
    e(f"s_lshr_b32 s65, s{sIDX}, 3")
    e(f"s_add_u32 s{sJ}, s64, s65")
    e("s_and_b32 s64, s2, 7")
    e("s_lshl_b32 s64, s64, 2")
    e(f"s_and_b32 s65, s{sIDX}, 3")
    e(f"s_add_u32 s{sT1}, s64, s65")
    e(f"s_lshr_b32 s{sCB}, s{sIDX}, 2")
    e(f"s_lshl_b32 s{sCOL}, s{sJ}, 8")
    e(f"s_sub_u32 s64, s{sCOL}, {14 * 256}")
    e(f"s_cmp_ge_u32 s{sJ}, 14")
    e(f"s_cselect_b32 s{sDFT}, 1, 0")
    e(f"s_movk_i32 s{sRS}, 3584")
    e(f"s_cselect_b32 s{sRS}, 1024, s{sRS}")
    e(f"s_cselect_b32 s{sCOL}, s64, s{sCOL}")
    e(f"s_lshl_b32 s10, s{sRS}, 9")
    e("s_mov_b32 s14, s10")
    e("s_mov_b32 s6, 0x200000")
    e("s_mov_b32 s7, 0x20000")
    e("s_mov_b32 s11, 0x20000")
    e("s_mov_b32 s15, 0x20000")
    e(f"s_mov_b32 s18, {1792 * 1024}")
    e("s_mov_b32 s19, 0x20000")
    e(f"s_mov_b32 s22, {WS_SIZE}")
    e("s_mov_b32 s23, 0x20000")
    e("s_mov_b32 s26, 0x200000")
    e("s_mov_b32 s27, 0x20000")
    e("s_mov_b32 s30, 256")
    e("s_mov_b32 s31, 0x20000")
    e("s_waitcnt lgkmcnt(0)")
    e(f"s_cmp_eq_u32 s{sDFT}, 1")
    e("s_cselect_b64 s[8:9], s[48:49], s[52:53]")
    e("s_cselect_b64 s[12:13], s[50:51], s[54:55]")
    e("s_mov_b64 s[16:17], s[56:57]")
    e("s_mov_b64 s[24:25], s[58:59]")
    e("s_mov_b64 s[28:29], s[60:61]")
    e("s_mov_b64 s[20:21], s[62:63]")
    e(f"s_cmp_lt_u32 s{sWAVE}, 4")
    e("s_cbranch_scc1 CWAVE")
    e(f"s_cmp_eq_u32 s{sWAVE}, 6")
    e("s_cbranch_scc1 L2WAVE")
    e(f"s_cmp_eq_u32 s{sWAVE}, 7")
    e("s_cbranch_scc1 L3WAVE")


def wd_voffset(vd, vt):
    e(f"v_lshrrev_b32 v{vt}, 3, v0")
    e(f"v_lshlrev_b32 v{vd}, 10, v{vt}")
    e(f"v_bfe_u32 v{vt}, v0, 4, 1")
    e(f"v_lshlrev_b32 v{vt}, 2, v{vt}")
    e(f"v_and_b32 v{vt + 1}, 7, v0")
    e(f"v_xor_b32 v{vt}, v{vt}, v{vt + 1}")
    e(f"v_lshl_add_u32 v{vd}, v{vt}, 4, v{vd}")


def l01wave():
    vX0, vX1, vW, vWD = 2, 3, 4, 5
    sLW, sXa, sXb, sWo, sS0, sS1, sR4, sT, sCnt, sWd = 64, 65, 66, 67, 68, 69, 70, 71, 72, 73
    cm("================ L0/L1: DMA waves ================")
    e(f"s_sub_u32 s{sLW}, s{sWAVE}, 4")
    e(f"s_cmp_eq_u32 s{sLW}, 0")
    e("s_cselect_b64 s[32:33], s[8:9], s[12:13]")
    e("s_mov_b32 s34, s10")
    e("s_mov_b32 s35, 0x20000")
    e("v_lshrrev_b32 v6, 3, v0")
    e(f"v_lshlrev_b32 v{vX0}, 16, v6")
    e("v_lshrrev_b32 v6, 1, v6")
    e("v_and_b32 v7, 7, v0")
    e("v_xor_b32 v6, v6, v7")
    e(f"v_lshl_add_u32 v{vX0}, v6, 4, v{vX0}")
    e(f"v_xor_b32 v{vX1}, 64, v{vX0}")
    e("v_lshrrev_b32 v6, 4, v0")
    e(f"v_mul_lo_u32 v{vW}, v6, s{sRS}")
    e("v_bfe_u32 v7, v0, 2, 2")
    e("v_xor_b32 v7, v7, v6")
    e("v_lshlrev_b32 v7, 2, v7")
    e("v_and_b32 v8, 3, v0")
    e("v_or_b32 v7, v7, v8")
    e(f"v_lshl_add_u32 v{vW}, v7, 4, v{vW}")
    e(f"s_lshl_b32 s{sXa}, s{sI}, 1")
    e(f"s_add_u32 s{sXa}, s{sXa}, s{sLW}")
    e(f"s_lshl_b32 s{sXa}, s{sXa}, 10")
    e(f"s_add_u32 s{sXb}, s{sXa}, {32 * 1024}")
    e(f"s_mov_b32 s{sWo}, s{sCOL}")
    e(f"s_lshl_b32 s{sR4}, s{sRS}, 2")
    e(f"s_lshl_b32 s74, s{sLW}, 10")
    e(f"s_lshl_b32 s76, s{sLW}, 12")

    def wpieces(base_sgpr, imm):
        e(f"s_add_u32 s{sT}, s{base_sgpr}, s74")
        e(f"s_add_u32 m0, s{sT}, {imm}")
        e("s_nop 0")
        for k in range(8):
            e(f"buffer_load_dwordx4 v{vW}, {srd(SRD_WM)}, s{sWo} offen lds")
            if k < 7:
                e("s_add_u32 m0, m0, 2048")
            e(f"s_add_u32 s{sWo}, s{sWo}, s{sR4}")

    def xpieces(base_sgpr, half):
        sx = sXb if half else sXa
        e(f"s_add_u32 s{sT}, s{base_sgpr}, s76")
        e(f"s_add_u32 m0, s{sT}, {32768 + half * 8192}")
        e(f"s_mov_b32 s{sT}, s{sx}")
        for k in range(4):
            e(f"buffer_load_dwordx4 v{vX1 if k & 1 else vX0}, {srd(SRD_X)}, s{sT} offen lds")
            if k < 3:
                e("s_add_u32 m0, m0, 1024")
                e(f"s_add_u32 s{sT}, s{sT}, 0x80000")
        e(f"s_add_u32 s{sx}, s{sx}, 128")

    e(f"s_mov_b32 s{sS0}, {SLOT}")
    e(f"s_mov_b32 s{sS1}, {2 * SLOT}")
    cm("G0 = x0 + W0 ; G1 = W1 + x1a")
    xpieces(sS0, 0)
    xpieces(sS0, 1)
    wpieces(sS0, 0)
    wpieces(sS0, 16384)
    xpieces(sS1, 0)
    wd_voffset(vWD, 6)
    e(f"s_mov_b32 s{sS0}, {2 * SLOT}")
    e(f"s_mov_b32 s{sS1}, 0")
    e(f"s_mov_b32 s{sCnt}, 6")
    e("s_waitcnt vmcnt(12)")
    stamp(1)
    e("s_barrier")
    lab("L01LOOP")
    wpieces(sS0, 0)
    xpieces(sS0, 1)
    e("s_waitcnt vmcnt(12)")
    e("s_barrier")
    wpieces(sS0, 16384)
    xpieces(sS1, 0)
    e(f"s_mov_b32 s{sS0}, s{sS1}")
    e(f"s_add_u32 s{sS1}, s{sS1}, {SLOT}")
    e(f"s_cmp_eq_u32 s{sS1}, {3 * SLOT}")
    e(f"s_cselect_b32 s{sS1}, 0, s{sS1}")
    e(f"s_sub_u32 s{sCnt}, s{sCnt}, 1")
    e(f"s_cmp_lg_u32 s{sCnt}, 0")
    e("s_waitcnt vmcnt(12)")
    e("s_barrier")
    e("s_cbranch_scc1 L01LOOP")
    cm("after B12: G14")
    wpieces(sS0, 0)
    xpieces(sS0, 1)
    e("s_waitcnt vmcnt(12)")
    e("s_barrier")
    wpieces(sS0, 16384)
    e(f"s_lshl_b32 s{sWd}, s{sCB}, 7")
    e(f"s_lshl_b32 s{sT}, s{sLW}, 14")
    e(f"s_add_u32 s{sWd}, s{sWd}, s{sT}")
    e(f"s_lshl_b32 m0, s{sLW}, 11")
    e("s_nop 0")

    def units(n):
        for _ in range(n):
            e(f"buffer_load_dwordx4 v{vWD}, {srd(SRD_WD)}, s{sWd} offen lds")
            e("s_add_u32 m0, m0, 1024")
            e(f"s_add_u32 s{sWd}, s{sWd}, 8192")
            e(f"buffer_load_dwordx4 v{vWD}, {srd(SRD_WD)}, s{sWd} offen lds")
            e("s_add_u32 m0, m0, 3072")
            e(f"s_add_u32 s{sWd}, s{sWd}, 24576")

    units(2)
    e("s_waitcnt vmcnt(12)")
    e("s_barrier")
    units(6)
    e("s_waitcnt vmcnt(16)")
    e("s_barrier")
    units(6)
    e("s_barrier")
    e(f"s_mov_b32 s{sCnt}, 11")
    lab("L01WD")
    units(2)
    e(f"s_sub_u32 s{sCnt}, s{sCnt}, 1")
    e(f"s_cmp_lg_u32 s{sCnt}, 0")
    e("s_cbranch_scc1 L01WD")
    e("s_waitcnt vmcnt(0)")
    stamp(2)
    e("s_barrier")
    stamp_flush(3, 8)
    e("s_endpgm")


def l23_phase2(which):
    vWD, vZ, vF = 2, 3, 4
    sWd, sZ = 64, 65
    ST0 = 64
    wd_voffset(vWD, 6)
    e("v_and_b32 v6, 3, v0")
    e("v_bfe_u32 v7, v0, 3, 2")
    e("v_lshl_add_u32 v6, v7, 2, v6")
    e("v_bfe_u32 v7, v0, 2, 1")
    e("v_lshl_add_u32 v6, v7, 4, v6")
    e("v_and_b32 v7, 32, v0")
    e("v_add_u32 v6, v6, v7")
    e(f"s_lshl_b32 s66, s{sCB}, 6")
    e("v_add_u32 v6, s66, v6")
    e("v_sub_u32 v7, 512, v6")
    e("v_and_b32 v7, 255, v7")
    e(f"s_cmp_ge_u32 s{sCB}, 4")
    e("s_cselect_b64 s[68:69], -1, 0")
    e(f"s_sub_u32 s67, 32, s{sT1}")
    e("s_and_b32 s67, s67, 31")
    e(f"s_cmp_ge_u32 s{sCB}, 4")
    e(f"s_cselect_b32 s67, s67, s{sT1}")
    e("v_cndmask_b32 v7, v6, v7, s[68:69]")
    e(f"v_lshlrev_b32 v{vZ}, 4, v7")
    e("v_cmp_eq_u32 vcc, 0, v6")
    e(f"v_mov_b32 v7, 0x40000000")
    e(f"s_lshl_b32 s{sZ}, s67, 16")
    e(f"v_cndmask_b32 v{vZ}, v{vZ}, v7, vcc")
    e(f"s_add_u32 s{sZ}, s{sZ}, {Z_OFF + which * 8 * 4096}")
    e(f"s_lshl_b32 s{sWd}, s{sCB}, 7")
    e(f"s_add_u32 s{sWd}, s{sWd}, {36 * 32768 + which * 16384}")
    for u in range(20):
        e(f"buffer_load_dwordx4 {vr(ST0 + 8 * u, 4)}, v{vWD}, {srd(SRD_WD)}, s{sWd} offen")
        e(f"s_add_u32 s{sWd}, s{sWd}, 8192")
        e(f"buffer_load_dwordx4 {vr(ST0 + 8 * u + 4, 4)}, v{vWD}, {srd(SRD_WD)}, s{sWd} offen")
        e(f"s_add_u32 s{sWd}, s{sWd}, 24576")
    e("v_bfe_u32 v6, v0, 1, 4")
    e("v_lshlrev_b32 v6, 4, v6")
    e("v_and_b32 v7, 1, v0")
    e("v_add3_u32 v6, v6, v7, 14")
    e(f"v_lshlrev_b32 v{vF}, 7, v6")
    e(f"s_mov_b32 s66, {FLH}")
    poll(5, vF, "s66", SRD_WS)
    stamp(4)
    for g in range(8):
        e(f"buffer_load_dwordx4 {vr(8 + 4 * g, 4)}, v{vZ}, {srd(SRD_WS)}, s{sZ} offen sc1")
        e(f"s_add_u32 s{sZ}, s{sZ}, 4096")
    e("v_lshlrev_b32 v6, 4, v0")
    e(f"v_add_u32 v7, {MISC + which * 8192}, v6")
    e(f"v_add_u32 v6, {which * 2048}, v6")
    e("s_waitcnt vmcnt(0)")
    for g in range(8):
        e(f"ds_write_b128 v7, {vr(8 + 4 * g, 4)} offset:{g * 1024}")
    stamp(5)
    e("s_barrier")
    for u in range(20):
        if u == 16:
            e("v_add_u32 v6, 0x10000, v6")
        off = (u * 4096) & 0xFFFF
        e(f"ds_write_b128 v6, {vr(ST0 + 8 * u, 4)} offset:{off}")
        e(f"ds_write_b128 v6, {vr(ST0 + 8 * u + 4, 4)} offset:{off + 1024}")
    e("s_waitcnt lgkmcnt(0)")
    stamp(6)
    e("s_barrier")
    stamp_flush(7, 8)
    e("s_endpgm")


def l2wave():
    vA, vS, vDum, vTD, vC = 2, 4, 6, 7, 8
    lab("L2WAVE")
    cm("================ L2: L2-cache touches, column sums ================")
    e(f"s_and_b32 s64, s{sJ}, 1")
    e(f"s_bfe_u32 s65, s{sJ}, 0x10001")
    e("s_lshl_b32 s65, s65, 5")
    e(f"s_lshl_b32 s66, s{sI}, 1")
    e("s_add_u32 s64, s64, s65")
    e("s_add_u32 s64, s64, s66")
    e("s_lshl_b32 s64, s64, 10")
    e("v_lshl_add_u32 v10, v0, 16, s64")
    e(f"s_and_b32 s65, s{sI}, 7")
    e("s_lshl_b32 s65, s65, 3")
    e("v_bfe_u32 v11, v0, 2, 3")
    e("v_add_u32 v11, s65, v11")
    e(f"v_mul_lo_u32 v11, v11, s{sRS}")
    e("v_and_b32 v12, 1, v0")
    e("v_lshl_add_u32 v11, v12, 7, v11")
    e(f"v_add_u32 v11, s{sCOL}, v11")
    e("v_cmp_lt_u32 vcc, 31, v0")
    e("v_and_b32 v12, 2, v0")
    e("v_cmp_ne_u32 s[66:67], 0, v12")
    e("v_mov_b32 v14, s8")
    e("v_mov_b32 v15, s9")
    e("v_mov_b32 v16, s12")
    e("v_mov_b32 v17, s13")
    e("v_cndmask_b32 v14, v14, v16, s[66:67]")
    e("v_cndmask_b32 v15, v15, v17, s[66:67]")
    e("v_mov_b32 v16, s4")
    e("v_mov_b32 v17, s5")
    e("v_cndmask_b32 v14, v16, v14, vcc")
    e("v_cndmask_b32 v15, v17, v15, vcc")
    e("v_cndmask_b32 v10, v10, v11, vcc")
    e("v_mov_b32 v11, 0")
    e(f"v_lshl_add_u64 {vr(vA, 2)}, v[10:11], 0, v[14:15]")
    e(f"s_lshl_b32 s65, s{sRS}, 6")
    e(f"v_mov_b32 v{vS}, 128")
    e("v_mov_b32 v12, s65")
    e(f"v_cndmask_b32 v{vS}, v{vS}, v12, vcc")
    e(f"v_mov_b32 v{vS + 1}, 0")

    def touch():
        if OPT["touch"]:
            e(f"global_load_dword v{vDum}, {vr(vA, 2)}, off")
            e(f"v_lshl_add_u64 {vr(vA, 2)}, {vr(vA, 2)}, 0, {vr(vS, 2)}")

    touch()
    touch()
    e("v_lshrrev_b32 v10, 3, v0")
    e("v_and_b32 v11, 7, v0")
    e(f"v_lshlrev_b32 v{vTD}, 10, v10")
    e(f"v_lshl_add_u32 v{vTD}, v11, 7, v{vTD}")
    e(f"v_mul_lo_u32 v{vC}, v10, s{sRS}")
    e(f"v_lshl_add_u32 v{vC}, v11, 4, v{vC}")
    e(f"s_lshl_b32 s68, s{sIDX}, 13")
    e(f"s_bitcmp1_b32 s{sI}, 1")
    e("s_cselect_b64 s[32:33], s[12:13], s[8:9]")
    e("s_mov_b32 s34, s10")
    e("s_mov_b32 s35, 0x20000")
    e(f"s_lshr_b32 s64, s{sI}, 2")
    e("s_lshl_b32 s64, s64, 7")
    e(f"s_mul_i32 s69, s64, s{sRS}")
    e(f"s_and_b32 s64, s{sI}, 1")
    e("s_lshl_b32 s64, s64, 7")
    e("s_add_u32 s69, s69, s64")
    e(f"s_add_u32 s69, s69, s{sCOL}")
    e(f"s_lshl_b32 s70, s{sRS}, 3")
    e("s_waitcnt vmcnt(0)")
    touch()
    touch()
    stamp(1)

    def td():
        if OPT["touch"]:
            e(f"buffer_load_dword v{vDum}, v{vTD}, {srd(SRD_WD)}, s68 offen")
            e("s_add_u32 s68, s68, 0x40000")

    LD = 32
    AC = 16

    def csload(y):
        e(f"buffer_load_dwordx4 {vr(LD + 4 * y, 4)}, v{vC}, {srd(SRD_WM)}, s69 offen")
        e("s_add_u32 s69, s69, s70")

    def csproc(y):
        for d in range(4):
            r = LD + 4 * y + d
            if y == 0:
                e(f"v_lshlrev_b32 v{AC + 2 * d}, 16, v{r}")
                e(f"v_and_b32 v{AC + 2 * d + 1}, v9, v{r}")
            else:
                e(f"v_lshlrev_b32 v10, 16, v{r}")
                e(f"v_and_b32 v11, v9, v{r}")
                e(f"v_add_f32 v{AC + 2 * d}, v{AC + 2 * d}, v10")
                e(f"v_add_f32 v{AC + 2 * d + 1}, v{AC + 2 * d + 1}, v11")

    e("v_mov_b32 v9, 0xffff0000")
    e("s_barrier")
    touch()
    e("s_barrier")
    touch()
    for y in range(8):
        csload(y)
    e("s_barrier")
    touch()
    for y in range(8, 16):
        csload(y)
    e("s_barrier")
    touch()
    nt = 1 if OPT["touch"] else 0
    e(f"s_waitcnt vmcnt({8 + 2 * nt})")
    for y in range(0, 4):
        csproc(y)
    e("s_barrier")
    for y in range(4, 8):
        csproc(y)
    e("s_barrier")
    e(f"s_waitcnt vmcnt({nt})")
    for y in range(8, 12):
        csproc(y)
    e("s_barrier")
    td()
    for y in range(12, 16):
        csproc(y)
    e("s_barrier")
    td()
    e("s_nop 0")
    for k in range(4):
        e(f"v_permlane32_swap_b32 v{AC + k}, v{AC + k + 4}")
    e("s_nop 1")
    for k in range(4):
        e(f"v_add_f32 v{AC + k}, v{AC + k}, v{AC + k + 4}")
    e("s_nop 1")
    for k in range(2):
        e(f"v_permlane16_swap_b32 v{AC + k}, v{AC + k + 2}")
    e("s_nop 1")
    for k in range(2):
        e(f"v_add_f32 v{AC + k}, v{AC + k}, v{AC + k + 2}")
    e("v_and_b32 v10, 7, v0")
    e("v_lshlrev_b32 v10, 3, v10")
    e(f"v_add_f32_dpp v24, v{AC}, v{AC} row_ror:8 row_mask:0xf bank_mask:0x3")
    e(f"v_add_f32_dpp v24, v{AC + 1}, v{AC + 1} row_ror:8 row_mask:0xf bank_mask:0xc")
    e("v_bfe_u32 v11, v0, 5, 1")
    e("v_lshl_add_u32 v10, v11, 2, v10")
    e("v_bfe_u32 v11, v0, 4, 1")
    e("v_lshl_add_u32 v10, v11, 1, v10")
    e("v_bfe_u32 v11, v0, 3, 1")
    e("v_add_u32 v10, v11, v10")
    e("v_lshlrev_b32 v10, 2, v10")
    e(f"s_lshl_b32 s64, s{sJ}, 12")
    e(f"s_lshl_b32 s65, s{sI}, 8")
    e("s_add_u32 s64, s64, s65")
    e(f"s_add_u32 s64, s64, {CS_OFF}")
    e(f"buffer_store_dword v24, v10, {srd(SRD_WS)}, s64 offen sc1")
    e(f"v_mov_b32 v12, {TAGL}")
    e("ds_read_b32 v13, v12")
    e("s_barrier")
    e("s_waitcnt vmcnt(0) lgkmcnt(0)")
    e(f"v_readfirstlane_b32 s{sTAG}, v13")
    e(f"s_lshl_b32 s64, s{sI}, 4")
    e(f"s_add_u32 s64, s64, s{sJ}")
    e("s_lshl_b32 s64, s64, 7")
    e(f"s_add_u32 s64, s64, {FLC}")
    e("v_mov_b32 v12, 0")
    e(f"buffer_store_dword v13, v12, {srd(SRD_WS)}, s64 offen sc1")
    stamp(2)
    td()
    e("s_barrier")
    td()
    e("s_barrier")
    td()
    e("s_barrier")
    td()
    e("s_barrier")
    td()
    e("s_barrier")
    e("s_barrier")
    e("v_and_b32 v10, 15, v0")
    e("v_lshlrev_b32 v10, 11, v10")
    e(f"s_lshl_b32 s64, s{sJ}, 7")
    e(f"s_add_u32 s64, s64, {FLC}")
    poll(11, 10, "s64", SRD_WS)
    e(f"s_lshl_b32 s64, s{sJ}, 12")
    e(f"s_add_u32 s64, s64, {CS_OFF}")
    e("v_lshlrev_b32 v10, 4, v0")
    for k in range(4):
        e(f"buffer_load_dwordx4 {vr(16 + 4 * k, 4)}, v10, {srd(SRD_WS)}, s64 offen offset:{1024 * k} sc1")
    e("s_barrier")
    e(f"v_add_u32 v10, {CSL}, v10")
    e("s_waitcnt vmcnt(0)")
    for d in range(4):
        e(f"v_add_f32 v{16 + d}, v{16 + d}, v{20 + d}")
        e(f"v_add_f32 v{24 + d}, v{24 + d}, v{28 + d}")
    for d in range(4):
        e(f"v_add_f32 v{16 + d}, v{16 + d}, v{24 + d}")
    e("ds_write_b128 v10, v[16:19]")
    e("s_waitcnt lgkmcnt(0)")
    stamp(3)
    e("s_barrier")
    e("s_barrier")
    l23_phase2(0)


def l3wave():
    lab("L3WAVE")
    cm("================ L3: launch tag, row statistics ================")
    e("s_cmp_lg_u32 s2, 0")
    e("s_cbranch_scc1 L3NOTAG")
    e("s_memrealtime s[64:65]")
    e("v_mov_b32 v2, 0")
    e("s_waitcnt lgkmcnt(0)")
    e("s_or_b32 s64, s64, 1")
    e("v_mov_b32 v3, s64")
    e(f"buffer_store_dword v3, v2, {srd(SRD_DBG)}, 0 offen sc1")
    lab("L3NOTAG")
    e(f"s_bfe_u32 s64, s{sJ}, 0x10002")
    e(f"s_bfe_u32 s65, s{sJ}, 0x10003")
    e("s_lshl_b32 s65, s65, 5")
    e(f"s_lshl_b32 s66, s{sI}, 1")
    e("s_add_u32 s64, s64, s65")
    e("s_add_u32 s64, s64, s66")
    e(f"s_and_b32 s65, s{sJ}, 3")
    e("s_lshl_b32 s65, s65, 9")
    e("s_add_u32 s64, s64, s65")
    e("s_lshl_b32 s64, s64, 10")
    e("v_lshrrev_b32 v4, 3, v0")
    e("v_and_b32 v5, 7, v0")
    e("v_lshlrev_b32 v6, 16, v4")
    e("v_lshl_add_u32 v6, v5, 4, v6")
    e("v_mov_b32 v9, 0xffff0000")
    LD, UP = 16, 64
    e("s_barrier")
    for y in range(8):
        e(f"buffer_load_dwordx4 {vr(LD + 4 * y, 4)}, v6, {srd(SRD_X)}, s64 offen offset:{128 * y}")
    e("s_barrier")
    e("s_barrier")
    e("s_waitcnt vmcnt(0)")

    def unp(d):
        e(f"v_lshlrev_b32 v{UP + 2 * d}, 16, v{LD + d}")
        e(f"v_and_b32 v{UP + 2 * d + 1}, v9, v{LD + d}")
        if d == 0:
            e(f"v_mov_b32 v10, v{UP}")
            e(f"v_mov_b32 v11, v{UP + 1}")
        else:
            e(f"v_add_f32 v10, v10, v{UP + 2 * d}")
            e(f"v_add_f32 v11, v11, v{UP + 2 * d + 1}")

    def red8(r):
        e("s_nop 1")
        e(f"v_add_f32_dpp v{r}, v{r}, v{r} quad_perm:[1,0,3,2] row_mask:0xf bank_mask:0xf")
        e("s_nop 1")
        e(f"v_add_f32_dpp v{r}, v{r}, v{r} quad_perm:[2,3,0,1] row_mask:0xf bank_mask:0xf")
        e("s_nop 1")
        e(f"v_add_f32_dpp v{r}, v{r}, v{r} row_half_mirror row_mask:0xf bank_mask:0xf")

    for d in range(16):
        unp(d)
    e("s_barrier")
    for d in range(16, 32):
        unp(d)
    e("v_add_f32 v10, v10, v11")
    red8(10)
    e(f"v_mul_f32 v10, {f2u(1.0 / 512):#x}, v10")
    e("v_mov_b32 v12, 0")
    e("v_mov_b32 v13, 0")
    e("s_barrier")

    def var(k):
        e(f"v_sub_f32 v{UP + k}, v{UP + k}, v10")
        e(f"v_fmac_f32 v{12 + (k & 1)}, v{UP + k}, v{UP + k}")

    for k in range(32):
        var(k)
    e("s_barrier")
    for k in range(32, 64):
        var(k)
    e("v_mov_b32 v2, 0")
    poll(3, 2, "0", SRD_DBG, cond_tag=False)
    e(f"v_mov_b32 v2, {TAGL}")
    e("ds_write_b32 v2, v3")
    e(f"v_readfirstlane_b32 s{sTAG}, v3")
    e("s_waitcnt lgkmcnt(0)")
    e("s_barrier")
    e("v_add_f32 v12, v12, v13")
    red8(12)
    e(f"v_mul_f32 v12, {f2u(1.0 / 512):#x}, v12")
    e("v_cvt_pk_bf16_f32 v14, v10, v12")
    e("v_lshlrev_b32 v10, 16, v14")
    e("v_and_b32 v12, v9, v14")
    e(f"v_add_f32 v12, {f2u(1e-5):#x}, v12")
    e("v_cvt_pk_bf16_f32 v12, v12, v12")
    e("v_and_b32 v12, v9, v12")
    e("v_sqrt_f32 v12, v12")
    e("s_nop 0")
    e("v_cvt_pk_bf16_f32 v12, v12, v12")
    e("v_and_b32 v12, v9, v12")
    e("v_rcp_f32 v11, v12")
    e("v_lshlrev_b32 v14, 3, v4")
    e("v_cmp_eq_u32 vcc, 0, v5")
    e("v_mov_b32 v15, 0x40000000")
    e(f"s_lshl_b32 s64, s{sI}, 10")
    e(f"s_lshl_b32 s65, s{sJ}, 6")
    e("v_cndmask_b32 v14, v15, v14, vcc")
    e("s_add_u32 s64, s64, s65")
    e(f"s_add_u32 s64, s64, {ST_OFF}")
    e(f"buffer_store_dwordx2 v[10:11], v14, {srd(SRD_WS)}, s64 offen sc1")
    e("s_barrier")
    e("s_waitcnt vmcnt(0)")
    e(f"s_lshl_b32 s66, s{sI}, 4")
    e(f"s_add_u32 s66, s66, s{sJ}")
    e("s_lshl_b32 s66, s66, 7")
    e(f"s_add_u32 s64, s66, {FLR}")
    e(f"s_add_u32 s67, s66, {FLH}")
    e("v_mov_b32 v2, 0")
    e(f"buffer_store_dword v3, v2, {srd(SRD_WS)}, s64 offen sc1")
    stamp(1)
    for n in range(8, 15):
        e("s_barrier")
    e("v_and_b32 v10, 15, v0")
    e("v_lshlrev_b32 v10, 7, v10")
    e(f"s_lshl_b32 s64, s{sI}, 11")
    e(f"s_add_u32 s64, s64, {FLR}")
    poll(11, 10, "s64", SRD_WS)
    e(f"s_lshl_b32 s64, s{sI}, 10")
    e(f"s_add_u32 s64, s64, {ST_OFF}")
    e("v_lshlrev_b32 v10, 4, v0")
    e(f"buffer_load_dwordx4 v[16:19], v10, {srd(SRD_WS)}, s64 offen sc1")
    e("s_barrier")
    e(f"v_add_u32 v10, {MRP}, v10")
    e(f"v_lshlrev_b32 v12, 3, v0")
    e(f"v_add_u32 v12, {RL}, v12")
    e("s_waitcnt vmcnt(0)")
    e("v_mov_b32 v20, v17")
    e("v_mov_b32 v21, v19")
    e("v_mul_f32 v22, v16, v17")
    e("v_mul_f32 v23, v18, v19")
    e("v_xor_b32 v22, 0x80000000, v22")
    e("v_xor_b32 v23, 0x80000000, v23")
    e("ds_write_b128 v10, v[16:19]")
    e("ds_write_b64 v12, v[20:21]")
    e("ds_write_b64 v12, v[22:23] offset:512")
    e("s_waitcnt lgkmcnt(0)")
    stamp(2)
    e("s_barrier")
    e("s_barrier")
    e(f"buffer_store_dword v3, v2, {srd(SRD_WS)}, s67 offen sc1")
    stamp(3)
    l23_phase2(1)


XF = [[64 + 4 * q for q in range(4)], [80 + 4 * q for q in range(4)]]
WF = [[96, 100], [104, 108]]
XA = [112, 113, 114, 115]
WA = 116
vLANE, vPM = 117, 118


def ACC(mat, q):
    return 128 + 32 * q + 16 * mat


def frag_reads(u, st):
    r = []
    for mat in range(2):
        for a in range(2):
            r.append(f"ds_read_b64_tr_b16 {vr(WF[st][mat] + 2 * a, 2)}, v{WA} offset:{u * 8192 + a * 2048 + mat * 1024}")
    for q in range(4):
        r.append(f"ds_read_b128 {vr(XF[st][q], 4)}, v{XA[u]} offset:{q * 4096}")
    return r


def mainloop(dft):
    sCnt, sDelta, sCur = 64, 65, 66
    tag = "D" if dft else "G"
    for s in frag_reads(0, 0):
        e(s)
    e(f"s_mov_b32 s{sCnt}, 8")
    e(f"s_mov_b32 s{sCur}, {SLOT}")
    e(f"s_mov_b32 s67, {(-2 * SLOT) & 0xffffffff:#x}")
    L.append(".p2align 3")
    lab(f"MAIN{tag}")
    for u in range(4):
        st = u & 1
        mf = []
        for mat in ((1, 0) if dft else (0, 1)):
            for q in range(4):
                a, b = (XF[st][q], WF[st][mat]) if dft else (WF[st][mat], XF[st][q])
                mf.append(f"v_mfma_f32_32x32x16_bf16 {vr(ACC(mat, q), 16)}, {vr(a, 4)}, {vr(b, 4)}, {vr(ACC(mat, q), 16)}")
        rd = frag_reads((u + 1) & 3, st ^ 1)
        gaps = [[] for _ in range(8)]
        if u == 3:
            gaps[0] += [f"v_add_u32 v{WA}, s{sDelta}, v{WA}", f"v_add_u32 v{XA[0]}, s{sDelta}, v{XA[0]}"]
            gaps[5] += [f"v_add_u32 v{XA[1]}, s{sDelta}, v{XA[1]}"]
            gaps[6] += [f"v_add_u32 v{XA[2]}, s{sDelta}, v{XA[2]}", f"v_add_u32 v{XA[3]}, s{sDelta}, v{XA[3]}",
                        f"s_sub_u32 s{sCnt}, s{sCnt}, 1"]
            gaps[7] += [f"s_cmp_lg_u32 s{sCnt}, 0"]
        if u == 2:
            gaps[5] += [f"s_cmp_eq_u32 s{sCur}, {2 * SLOT}", f"s_cselect_b32 s{sDelta}, s67, {SLOT}"]
            gaps[6] += [f"s_add_u32 s{sCur}, s{sCur}, s{sDelta}"]
        if u & 1:
            gaps[0] += ["s_barrier"]
        if dft:
            gaps[0] = [f"v_cndmask_b32 v{WF[st][0] + k}, v{WF[st][0] + k}, v{vPM}, s[68:69]" for k in range(2)] + gaps[0]
            gaps[1] += [f"v_cndmask_b32 v{WF[st][0] + k}, v{WF[st][0] + k}, v{vPM}, s[68:69]" for k in range(2, 4)]
        for k in range(4):
            gaps[k + (1 if (u & 1) else 0)] += rd[2 * k:2 * k + 2]
        e("s_waitcnt lgkmcnt(0)")
        for k in range(8):
            e(mf[k])
            for s in gaps[k]:
                e(s)
    e(f"s_cbranch_scc1 MAIN{tag}")


def glu_epilogue():
    CG, CU, MR = 0, 16, 32
    e(f"v_lshrrev_b32 v40, 5, v{vLANE}")
    e(f"s_lshl_b32 s64, s{sWAVE}, 7")
    e(f"s_add_u32 s64, s64, {CSL}")
    e("v_lshl_add_u32 v40, v40, 4, s64")
    e(f"v_and_b32 v41, 31, v{vLANE}")
    e(f"v_lshlrev_b32 v41, 3, v41")
    e(f"v_add_u32 v41, {MRP}, v41")
    e(f"v_mov_b32 v42, {TAGL}")
    for q in range(4):
        e(f"ds_read_b64 {vr(MR + 2 * q, 2)}, v41 offset:{256 * q}")
    for a in range(4):
        e(f"ds_read_b128 {vr(CG + 4 * a, 4)}, v40 offset:{32 * a}")
    for a in range(4):
        e(f"ds_read_b128 {vr(CU + 4 * a, 4)}, v40 offset:{512 + 32 * a}")
    e("ds_read_b32 v43, v42")
    e(f"s_lshl_b32 s64, s{sJ}, 2")
    e(f"s_add_u32 s64, s64, s{sWAVE}")
    e("s_lshl_b32 s64, s64, 10")
    e(f"s_mul_i32 s65, s{sI}, {2 * 4 * 56 * 1024}")
    e("s_add_u32 s64, s64, s65")
    e(f"v_lshlrev_b32 v44, 4, v{vLANE}")
    e("s_mov_b32 s66, 1.0")
    e("s_mov_b32 s67, 1.0")
    e("s_waitcnt lgkmcnt(0)")
    e(f"v_readfirstlane_b32 s{sTAG}, v43")
    for q in range(4):
        e(f"v_mul_f32 v{MR + 2 * q + 1}, {NLOG2E:#x}, v{MR + 2 * q + 1}")
    stamp(3)
    out = 0
    for q in range(4):
        b, p = q & 1, q >> 1
        mr = vr(MR + 2 * q, 2)
        for z in range(2):
            G = ACC(0, q) + 8 * z
            U = ACC(1, q) + 8 * z
            for k in range(4):
                e(f"v_pk_fma_f32 {vr(G + 2 * k, 2)}, {vr(CG + 8 * z + 2 * k, 2)}, {mr}, {vr(G + 2 * k, 2)} op_sel_hi:[1,0,1] neg_lo:[0,1,0] neg_hi:[0,1,0]")
            for k in range(4):
                e(f"v_pk_mul_f32 {vr(G + 2 * k, 2)}, {vr(G + 2 * k, 2)}, {mr} op_sel:[0,1] op_sel_hi:[1,1]")
            for k in range(8):
                e(f"v_exp_f32 v{G + k}, v{G + k}")
            for k in range(4):
                e(f"v_pk_add_f32 {vr(G + 2 * k, 2)}, {vr(G + 2 * k, 2)}, s[66:67]")
            for k in range(8):
                e(f"v_rcp_f32 v{G + k}, v{G + k}")
            for k in range(4):
                e(f"v_pk_fma_f32 {vr(U + 2 * k, 2)}, {vr(CU + 8 * z + 2 * k, 2)}, {mr}, {vr(U + 2 * k, 2)} op_sel_hi:[1,0,1] neg_lo:[0,1,0] neg_hi:[0,1,0]")
            for k in range(4):
                e(f"v_pk_mul_f32 {vr(U + 2 * k, 2)}, {vr(U + 2 * k, 2)}, {vr(G + 2 * k, 2)}")
            o = 64 + 4 * out
            out += 1
            for k in range(4):
                e(f"v_cvt_pk_bf16_f32 v{o + k}, v{U + 2 * k}, v{U + 2 * k + 1}")
            e(f"s_add_u32 s65, s64, {((b * 2 + p) * 2 + z) * 56 * 1024 + H_OFF}")
            e(f"buffer_store_dwordx4 {vr(o, 4)}, v44, {srd(SRD_WS)}, s65 offen sc1")


def TW(q, cs, z):
    return 16 * q + 8 * cs + 4 * z


def dft_prologue():
    e(f"v_and_b32 v2, 31, v{vLANE}")
    e("v_cvt_f32_u32 v3, v2")
    e(f"v_mul_f32 v3, {f2u(1.0 / 2048):#x}, v3")
    e(f"s_and_b32 s64, s{sWAVE}, 1")
    e(f"s_lshr_b32 s65, s{sWAVE}, 1")
    e("s_lshl_b32 s65, s65, 5")
    e("s_add_u32 s64, s64, s65")
    e(f"s_lshl_b32 s65, s{sI}, 1")
    e("s_add_u32 s64, s64, s65")
    e(f"v_lshrrev_b32 v4, 5, v{vLANE}")
    e("v_lshl_add_u32 v4, v4, 8, s64")
    e("v_cvt_f32_u32 v4, v4")
    e("v_mul_f32 v4, v3, v4")
    e("v_and_b32 v5, 1, v2")
    e("v_mul_u32_u24 v5, 0x8000, v5")
    e("v_lshl_or_b32 v5, v5, 16, v5")
    for jj in range(8):
        c = 64.0 * (8 * (jj >> 2) + (jj & 3))
        e(f"v_fmamk_f32 v{8 + jj}, v3, {f2u(c):#x}, v4")
    for jj in range(8):
        e(f"v_fract_f32 v{8 + jj}, v{8 + jj}")
    for jj in range(8):
        e(f"v_cos_f32 v{16 + jj}, v{8 + jj}")
        e(f"v_sin_f32 v{24 + jj}, v{8 + jj}")
    e("s_nop 0")
    for k in range(4):
        e(f"v_cvt_pk_bf16_f32 v{32 + k}, v{16 + 2 * k}, v{17 + 2 * k}")
        e(f"v_cvt_pk_bf16_f32 v{40 + k}, v{24 + 2 * k}, v{25 + 2 * k}")
    for k in range(4):
        e(f"v_xor_b32 v{36 + k}, v5, v{32 + k}")
        e(f"v_xor_b32 v{44 + k}, v5, v{40 + k}")
    e(f"s_lshl_b32 s64, s{sWAVE}, 12")
    e(f"s_add_u32 s64, s64, {MISC}")
    e(f"v_lshl_add_u32 v6, v{vLANE}, 4, s64")
    for k in range(4):
        e(f"ds_write_b128 v6, {vr(32 + 4 * k, 4)} offset:{1024 * k}")
    e(f"s_cmp_eq_u32 s{sJ}, 14")
    e("s_cselect_b32 s68, 1, 0")
    e(f"s_cmp_eq_u32 s{sWAVE}, 0")
    e("s_cselect_b32 s68, s68, 0")
    e("s_mov_b32 s69, s68")
    e(f"v_mov_b32 v{vPM}, 0xbf803f80")
    e(f"v_lshlrev_b32 v119, 4, v{vLANE}")
    e(f"v_add_u32 v119, {MISC}, v119")
    e("s_waitcnt lgkmcnt(0)")


def dft_epilogue():
    R0, N0 = 64, 80
    TA, TB, NTA = 96, 104, 120
    e(f"v_and_b32 v112, 31, v{vLANE}")
    e(f"s_lshl_b32 s64, s{sWAVE}, 7")
    e(f"s_add_u32 s64, s64, {CSL}")
    e("v_lshl_add_u32 v113, v112, 2, s64")
    e(f"v_lshrrev_b32 v114, 5, v{vLANE}")
    e(f"v_lshlrev_b32 v115, 4, v114")
    e(f"v_add_u32 v115, {RL}, v115")
    e(f"v_mov_b32 v116, {TAGL}")
    e("s_waitcnt lgkmcnt(0)")
    e("ds_read_b32 v118, v113")
    e("ds_read_b32 v119, v113 offset:512")
    e("ds_read_b32 v116, v116")

    def rd(q):
        for a in range(4):
            e(f"ds_read_b128 {vr(R0 + 4 * a, 4)}, v115 offset:{128 * q + 32 * a}")
            e(f"ds_read_b128 {vr(N0 + 4 * a, 4)}, v115 offset:{512 + 128 * q + 32 * a}")

    rd(0)
    e("v_lshlrev_b32 v112, 4, v112")
    e("v_lshl_add_u32 v112, v114, 18, v112")
    e(f"s_lshl_b32 s64, s{sI}, 12")
    e(f"s_and_b32 s65, s{sJ}, 1")
    e("s_lshl_b32 s65, s65, 11")
    e("s_add_u32 s64, s64, s65")
    e(f"s_lshl_b32 s65, s{sWAVE}, 9")
    e("s_add_u32 s64, s64, s65")
    e(f"s_add_u32 s64, s64, {Z_OFF}")
    e("s_waitcnt lgkmcnt(0)")
    e(f"v_readfirstlane_b32 s{sTAG}, v116")
    e("v_cndmask_b32 v118, v118, 0, s[68:69]")
    stamp(3)
    for q in range(4):
        if q:
            e("s_waitcnt lgkmcnt(0)")
        for mat, T, cs in ((0, TA, 118), (1, TB, 119)):
            A = ACC(mat, q)
            for r in range(16):
                e(f"v_mul_f32 v{A + r}, v{A + r}, v{R0 + r}")
            for r in range(16):
                e(f"v_fmac_f32 v{A + r}, v{N0 + r}, v{cs}")
            for k in range(8):
                e(f"v_cvt_pk_bf16_f32 v{T + k}, v{A + 2 * k}, v{A + 2 * k + 1}")
        for k in range(8):
            e(f"v_xor_b32 v{NTA + k}, 0x80008000, v{TA + k}")
        if q < 3:
            rd(q + 1)
        zr, zi = ACC(0, q), ACC(1, q)
        e("s_nop 1")
        e(f"v_mfma_f32_32x32x16_bf16 {vr(zr, 16)}, {vr(TW(q, 0, 0), 4)}, {vr(TA, 4)}, 0")
        e(f"v_mfma_f32_32x32x16_bf16 {vr(zi, 16)}, {vr(TW(q, 0, 0), 4)}, {vr(TB, 4)}, 0")
        e(f"v_mfma_f32_32x32x16_bf16 {vr(zr, 16)}, {vr(TW(q, 0, 1), 4)}, {vr(TA + 4, 4)}, {vr(zr, 16)}")
        e(f"v_mfma_f32_32x32x16_bf16 {vr(zi, 16)}, {vr(TW(q, 0, 1), 4)}, {vr(TB + 4, 4)}, {vr(zi, 16)}")
        e(f"v_mfma_f32_32x32x16_bf16 {vr(zr, 16)}, {vr(TW(q, 1, 0), 4)}, {vr(TB, 4)}, {vr(zr, 16)}")
        e(f"v_mfma_f32_32x32x16_bf16 {vr(zi, 16)}, {vr(TW(q, 1, 0), 4)}, {vr(NTA, 4)}, {vr(zi, 16)}")
        e(f"v_mfma_f32_32x32x16_bf16 {vr(zr, 16)}, {vr(TW(q, 1, 1), 4)}, {vr(TB + 4, 4)}, {vr(zr, 16)}")
        e(f"v_mfma_f32_32x32x16_bf16 {vr(zi, 16)}, {vr(TW(q, 1, 1), 4)}, {vr(NTA + 4, 4)}, {vr(zi, 16)}")
    e("s_nop 7")
    e("s_nop 3")
    for r in range(16):
        o = 64 + 4 * (r & 7)
        for q in range(4):
            e(f"v_cvt_pk_bf16_f32 v{o + q}, v{ACC(0, q) + r}, v{ACC(1, q) + r}")
        e(f"s_add_u32 s65, s64, {(8 * (r >> 2) + (r & 3)) * 65536}")
        e(f"buffer_store_dwordx4 {vr(o, 4)}, v112, {srd(SRD_WS)}, s65 offen sc1")


def phase2():
    OWN, OTH, Y, EF, XR, vR = 0, 16, 32, 48, 80, 88
    W2 = [[96, 100], [104, 108]]
    WD = [112, 113]
    vH, vXO, vZA = 114, 115, 116
    HR, ZF = 128, 192
    sP, sKH, sH, sXO = 64, 65, 66, 67
    lab("PHASE2")
    e("s_waitcnt vmcnt(0)")
    stamp(4)
    e("s_barrier")
    e(f"s_and_b32 s{sP}, s{sWAVE}, 1")
    e(f"s_lshr_b32 s{sKH}, s{sWAVE}, 1")
    e(f"v_and_b32 v89, 31, v{vLANE}")
    e(f"v_lshrrev_b32 v90, 5, v{vLANE}")
    e(f"v_lshlrev_b32 v{vXO}, 16, v89")
    e(f"v_lshl_add_u32 v{vXO}, v90, 5, v{vXO}")
    e(f"s_lshl_b32 s68, s{sP}, 5")
    e(f"s_add_u32 s68, s68, s{sT1}")
    e(f"s_lshl_b32 s{sXO}, s68, 10")
    e(f"s_lshl_b32 s68, s{sCB}, 7")
    e(f"s_add_u32 s{sXO}, s{sXO}, s68")
    e(f"s_lshl_b32 s68, s{sKH}, 6")
    e(f"s_add_u32 s{sXO}, s{sXO}, s68")
    e(f"buffer_load_dwordx4 {vr(XR, 4)}, v{vXO}, {srd(SRD_X)}, s{sXO} offen")
    e(f"buffer_load_dwordx4 {vr(XR + 4, 4)}, v{vXO}, {srd(SRD_X)}, s{sXO} offen offset:16")
    e(f"v_bfe_u32 v91, v{vLANE}, 2, 2")
    e("v_lshl_add_u32 v92, v90, 2, v91")
    e(f"s_lshl_b32 s68, s{sKH}, 11")
    e("v_lshl_add_u32 v92, v92, 7, s68")
    e(f"v_and_b32 v93, 1, v{vLANE}")
    e("v_lshlrev_b32 v93, 2, v93")
    e(f"v_bfe_u32 v94, v{vLANE}, 4, 1")
    e("v_lshl_add_u32 v93, v94, 1, v93")
    e(f"v_bfe_u32 v94, v{vLANE}, 1, 1")
    e("v_add_u32 v93, v93, v94")
    e("v_lshl_add_u32 v92, v93, 3, v92")
    e("v_lshrrev_b32 v91, 1, v91")
    e(f"v_xor_b32 v91, s{sKH}, v91")
    e(f"v_lshl_add_u32 v{WD[0]}, v91, 6, v92")
    e(f"v_xor_b32 v{WD[1]}, 64, v{WD[0]}")

    def wreads(v, st):
        slot = v if v < 36 else v - 36
        off = (slot * 4096) & 0xFFFF
        return [f"ds_read_b64_tr_b16 {vr(W2[st][c] + 2 * a, 2)}, v{WD[c]} offset:{off + 1024 * a}" for c in range(2) for a in range(2)]

    for s in wreads(0, 0):
        e(s)
    e(f"s_lshl_b32 s68, s{sKH}, 9")
    e(f"s_add_u32 s68, s68, {MISC}")
    e(f"v_lshl_add_u32 v{vZA}, v89, 4, s68")
    e(f"v_lshl_add_u32 v{vZA}, v90, 10, v{vZA}")
    e(f"v_lshl_add_u32 v91, v89, 1, s{sP}")
    e(f"s_cmp_eq_u32 s{sT1}, 0")
    e("s_cselect_b32 s68, 64, 63")
    e("v_sub_u32 v92, s68, v91")
    e(f"s_cmp_ge_u32 s{sCB}, 4")
    e("s_cselect_b64 s[70:71], -1, 0")
    e("v_cndmask_b32 v91, v91, v92, s[70:71]")
    e("v_and_b32 v92, 1, v91")
    e("v_mul_u32_u24 v92, 0x8000, v92")
    e("v_lshl_or_b32 v92, v92, 16, v92")
    e("v_cvt_f32_u32 v91, v91")
    e(f"v_mul_f32 v91, {f2u(1.0 / 64):#x}, v91")
    e("v_lshlrev_b32 v93, 1, v90")
    e("v_cvt_f32_u32 v93, v93")
    e("v_mul_f32 v93, v91, v93")
    T = HR
    for sg in range(8):
        for b in range(2):
            e(f"v_fmamk_f32 v{T + 2 * sg + b}, v91, {f2u(float(4 * sg + b)):#x}, v93")
    for k in range(16):
        e(f"v_fract_f32 v{T + k}, v{T + k}")
    for k in range(16):
        e(f"v_cos_f32 v{T + 16 + k}, v{T + k}")
        e(f"v_sin_f32 v{T + 32 + k}, v{T + k}")
    e("s_nop 0")
    for sg in range(8):
        for b in range(2):
            e(f"v_cvt_pk_bf16_f32 v{EF + 4 * sg + b}, v{T + 16 + 2 * sg + b}, v{T + 32 + 2 * sg + b}")
        for b in range(2):
            e(f"v_xor_b32 v{EF + 4 * sg + 2 + b}, v92, v{EF + 4 * sg + b}")
    e(f"s_lshl_b32 s68, s{sT1}, 2")
    e(f"s_lshl_b32 s69, s{sP}, 1")
    e("s_add_u32 s68, s68, s69")
    e(f"s_add_u32 s68, s68, s{sKH}")
    e(f"s_mul_i32 s{sH}, s68, {56 * 1024}")
    if H_OFF:
        e(f"s_add_u32 s{sH}, s{sH}, {H_OFF}")
    e(f"v_lshlrev_b32 v{vH}, 4, v{vLANE}")
    e(f"v_min_u32 v91, 13, v{vLANE}")
    e("v_lshlrev_b32 v91, 7, v91")
    e(f"s_lshr_b32 s68, s{sT1}, 1")
    e("s_lshl_b32 s69, s68, 11")
    e(f"s_add_u32 s69, s69, {FLH}")
    stamp(5)
    poll(92, 91, "s69", SRD_WS)
    stamp(6)
    e("s_lshl_b32 s68, s68, 10")
    e(f"s_and_b32 s69, s{sT1}, 1")
    e(f"s_lshl_b32 s70, s{sP}, 1")
    e("s_add_u32 s69, s69, s70")
    e("s_lshl_b32 s69, s69, 8")
    e("s_add_u32 s68, s68, s69")
    e(f"s_add_u32 s68, s68, {ST_OFF}")
    e("v_lshlrev_b32 v91, 3, v89")
    e(f"buffer_load_dword v{vR}, v91, {srd(SRD_WS)}, s68 offen offset:4 sc1")

    def hload(v):
        r = [f"buffer_load_dwordx4 {vr(HR + 4 * (v % D), 4)}, v{vH}, {srd(SRD_WS)}, s{sH} offen offset:{1024 * (v & 3)} sc1"]
        if v & 3 == 3:
            r.append(f"s_add_u32 s{sH}, s{sH}, 4096")
        return r

    for v in range(D):
        for s in hload(v):
            e(s)
    for v in range(56):
        st = v & 1
        outstanding = min(D - 1, 55 - v)
        e(f"s_waitcnt vmcnt({outstanding}) lgkmcnt(0)")
        h = vr(HR + 4 * (v % D), 4)
        c0 = "0" if v == 0 else vr(OWN, 16)
        c1 = "0" if v == 0 else vr(OTH, 16)
        e(f"v_mfma_f32_32x32x16_bf16 {vr(OWN, 16)}, {vr(W2[st][0], 4)}, {h}, {c0}")
        if v in (19, 35):
            e("s_barrier")
        nv = v + 1
        if nv < 56:
            if nv in (16, 32, 52):
                for c in range(2):
                    e(f"v_add_u32 v{WD[c]}, 0x10000, v{WD[c]}")
            if nv == 36:
                for c in range(2):
                    e(f"v_subrev_u32 v{WD[c]}, 0x20000, v{WD[c]}")
            for s in wreads(nv, st ^ 1):
                e(s)
        if 40 <= v < 48:
            e(f"ds_read_b128 {vr(ZF + 4 * (v - 40), 4)}, v{vZA} offset:{2048 * (v - 40)}")
        e(f"v_mfma_f32_32x32x16_bf16 {vr(OTH, 16)}, {vr(W2[st][1], 4)}, {h}, {c1}")
        if v + D < 56:
            for s in hload(v + D):
                e(s)
        if v >= 48:
            sg = v - 48
            cy = "0" if sg == 0 else vr(Y, 16)
            e(f"v_mfma_f32_32x32x16_bf16 {vr(Y, 16)}, {vr(ZF + 4 * sg, 4)}, {vr(EF + 4 * sg, 4)}, {cy}")
    stamp(7)
    e(f"s_lshl_b32 s68, s{sWAVE}, 12")
    e(f"s_add_u32 s68, s68, {RED}")
    e(f"v_add_u32 v91, s68, v{vH}")
    e(f"v_xor_b32 v92, 8192, v91")
    e("s_mov_b32 s70, 1.0")
    e("s_mov_b32 s71, 1.0")
    e(f"v_mul_f32 v{vR + 1}, {NLOG2E:#x}, v{vR}")
    e("s_nop 5")
    for a in range(4):
        e(f"ds_write_b128 v91, {vr(OTH + 4 * a, 4)} offset:{1024 * a}")
    XU = 128
    e("v_mov_b32 v93, 0xffff0000")
    for k in range(8):
        e(f"v_lshlrev_b32 v{XU + 2 * k}, 16, v{XR + k}")
        e(f"v_and_b32 v{XU + 2 * k + 1}, v93, v{XR + k}")
    e("s_waitcnt lgkmcnt(0)")
    e("s_barrier")
    PT = 144
    for a in range(4):
        e(f"ds_read_b128 {vr(PT + 4 * a, 4)}, v92 offset:{1024 * a}")
    e("s_waitcnt lgkmcnt(0)")
    rr = vr(vR, 2)
    TT = 160
    for k in range(8):
        e(f"v_pk_add_f32 {vr(OWN + 2 * k, 2)}, {vr(OWN + 2 * k, 2)}, {vr(PT + 2 * k, 2)}")
    for k in range(8):
        e(f"v_pk_mul_f32 {vr(TT + 2 * k, 2)}, {vr(OWN + 2 * k, 2)}, {rr} op_sel:[0,1] op_sel_hi:[1,1]")
    for k in range(16):
        e(f"v_exp_f32 v{TT + k}, v{TT + k}")
    for k in range(8):
        e(f"v_pk_add_f32 {vr(TT + 2 * k, 2)}, {vr(TT + 2 * k, 2)}, s[70:71]")
    for k in range(16):
        e(f"v_rcp_f32 v{TT + k}, v{TT + k}")
    for k in range(8):
        e(f"v_pk_mul_f32 {vr(OWN + 2 * k, 2)}, {vr(OWN + 2 * k, 2)}, {rr} op_sel_hi:[1,0]")
    for k in range(8):
        e(f"v_pk_mul_f32 {vr(OWN + 2 * k, 2)}, {vr(OWN + 2 * k, 2)}, {vr(TT + 2 * k, 2)}")
    for k in range(8):
        e(f"v_pk_fma_f32 {vr(OWN + 2 * k, 2)}, {vr(OWN + 2 * k, 2)}, {vr(Y + 2 * k, 2)}, {vr(XU + 2 * k, 2)}")
    for k in range(8):
        e(f"v_cvt_pk_bf16_f32 v{TT + k}, v{OWN + 2 * k}, v{OWN + 2 * k + 1}")
    e(f"buffer_store_dwordx4 {vr(TT, 4)}, v{vXO}, {srd(SRD_OUT)}, s{sXO} offen")
    e(f"buffer_store_dwordx4 {vr(TT + 4, 4)}, v{vXO}, {srd(SRD_OUT)}, s{sXO} offen offset:16")
    stamp_flush(8, 176)
    if OPT.get("delay"):
        e("s_memtime s[80:81]")
        e("s_waitcnt lgkmcnt(0)")
        lab("DLY")
        e("s_memtime s[82:83]")
        e("s_waitcnt lgkmcnt(0)")
        e("s_sub_u32 s82, s82, s80")
        e(f"s_cmp_lt_u32 s82, {OPT['delay']}")
        e("s_cbranch_scc1 DLY")
    if OPT.get("rabs"):
        lab("DLY")
        e("s_memrealtime s[82:83]")
        e("s_waitcnt lgkmcnt(0)")
        e("s_sub_u32 s82, s82, s98")
        e(f"s_cmp_lt_u32 s82, {OPT['rabs']}")
        e("s_cbranch_scc1 DLY")
    if OPT.get("rdelay"):
        e("s_memrealtime s[80:81]")
        e("s_waitcnt lgkmcnt(0)")
        lab("DLY")
        e("s_memrealtime s[82:83]")
        e("s_waitcnt lgkmcnt(0)")
        e("s_sub_u32 s82, s82, s80")
        e(f"s_cmp_lt_u32 s82, {OPT['rdelay']}")
        e("s_cbranch_scc1 DLY")
    e("s_endpgm")


def cwave():
    lab("CWAVE")
    cm("================ C waves: matrix work ================")
    e("s_setprio 2")
    e(f"v_mov_b32 v{vLANE}, v0")
    e("v_and_b32 v2, 31, v0")
    e("v_lshrrev_b32 v3, 5, v0")
    e("v_bfe_u32 v4, v0, 1, 3")
    e("v_lshlrev_b32 v5, 7, v2")
    e(f"v_add_u32 v5, {SLOT + 32768}, v5")
    for u in range(4):
        e(f"v_add_u32 v6, {2 * u}, v3")
        e("v_xor_b32 v6, v6, v4")
        e(f"v_lshl_add_u32 v{XA[u]}, v6, 4, v5")
    e("v_bfe_u32 v4, v0, 2, 2")
    e(f"v_lshlrev_b32 v{WA}, 12, v3")
    e(f"v_lshl_add_u32 v{WA}, v4, 8, v{WA}")
    e(f"v_xor_b32 v4, s{sWAVE}, v4")
    e(f"v_lshl_add_u32 v{WA}, v4, 6, v{WA}")
    e("v_bfe_u32 v4, v0, 4, 1")
    e(f"v_lshl_add_u32 v{WA}, v4, 5, v{WA}")
    e("v_and_b32 v4, 3, v0")
    e(f"v_lshl_add_u32 v{WA}, v4, 3, v{WA}")
    e(f"v_add_u32 v{WA}, {SLOT}, v{WA}")
    for r in range(128, 256):
        e(f"v_mov_b32 v{r}, 0")
    e(f"s_cmp_eq_u32 s{sDFT}, 1")
    e("s_cbranch_scc1 CDFT")
    stamp(1)
    e("s_barrier")
    e("s_nop 0")
    mainloop(False)
    stamp(2)
    glu_epilogue()
    phase2()
    lab("CDFT")
    dft_prologue()
    stamp(1)
    e("s_barrier")
    for k in range(16):
        e(f"ds_read_b128 {vr(4 * k, 4)}, v119 offset:{1024 * k}")
    mainloop(True)
    stamp(2)
    dft_epilogue()
    e("s_branch PHASE2")


hdr = open("cdna_kernels/" + NAME + ".s.ref").read().split("\n")
head = [l for l in hdr if l.startswith(";") and "@launch" not in l and "Override launch" not in l and "grid=ceil" not in l]
K = NAME + "_kernel"
out = head + ["; @launch grid=(256,1,1) block=(512,1,1) lds=163840",
              '.amdgcn_target "amdgcn-amd-amdhsa--gfx950"', ".text", f".globl {K}", ".p2align 8", f".type {K},@function", f"{K}:"]
prologue()
l01wave()
l2wave()
l3wave()
cwave()
lab("END")
e("s_endpgm")
out += L
out += ['.section .rodata,"a"', ".p2align 6", f".amdhsa_kernel {K}", "  .amdhsa_next_free_vgpr 256", "  .amdhsa_next_free_sgpr 102",
        "  .amdhsa_accum_offset 256", "  .amdhsa_group_segment_fixed_size 0", "  .amdhsa_kernarg_size 96",
        "  .amdhsa_user_sgpr_count 2", "  .amdhsa_user_sgpr_kernarg_segment_ptr 1", "  .amdhsa_system_sgpr_workgroup_id_x 1",
        ".end_amdhsa_kernel", ""]
open(sys.argv[1], "w").write("\n".join(out))
```

```python
import sys

NAME = "recurrent_scan__spectral_fnet__glu_gated_glu__prompt"
OPT = dict(prof=0, D=12, D0=6, wt=0, t0=0, mt=0, sp=1, ct=1, rot=1, pre=8, th=9, th2=0, slp=2, spin=200000)
for a in sys.argv[2:]:
    k, v = a.split("=")
    OPT[k] = int(v)
PROF = OPT["prof"]
K = NAME + "_kernel"
D = OPT["D"]

H_OFF, Z_OFF, ST_OFF, CS_OFF = 0, 0x800000, 0xA00000, 0xA10000
FLR, FLC, FLH, FLZ, PROF_OFF, WS_SIZE = 0xA40000, 0xA48000, 0xA50000, 0xA58000, 0xA60000, 0xB00000
vLOOPST = 121
SLOT = 49152
MISC = 147456
CSL, MRP, RL, NMRL, TAGL, CNTL = MISC, MISC + 1024, MISC + 2048, MISC + 2560, MISC + 3072, MISC + 3076
RED = 20 * 4096
NRES = 39


def wslot(v):
    return v if v < 36 else v + 1 if v < NRES else v - NRES

LOG2E = 0x3FB8AA3B
NLOG2E = 0xBFB8AA3B


def f2u(x):
    import struct
    return struct.unpack("<I", struct.pack("<f", x))[0]


L = []


def e(s):
    L.append("    " + s)


def lab(s):
    L.append(s + ":")


def cm(s):
    L.append("    ; " + s)


def vr(a, n):
    return f"v[{a}:{a + n - 1}]"


SRD_X, SRD_W0, SRD_W1, SRD_WD, SRD_WS, SRD_OUT, SRD_DBG, SRD_WM = 4, 8, 12, 16, 20, 24, 28, 32
sWAVE, sI, sJ, sT1, sCB, sRS, sCOL, sDFT, sTAG, sIDX, sK4 = 36, 37, 38, 39, 40, 41, 42, 43, 44, 45, 46
sSTAMP = 80
nstamp = [0]


def srd(n):
    return f"s[{n}:{n + 3}]"


def stamp(i):
    if PROF:
        e(f"{'s_memrealtime' if PROF == 2 else 's_memtime'} s[{sSTAMP + 2 * i}:{sSTAMP + 2 * i + 1}]")


def stamp_flush(n, vt, loopst=False):
    if not PROF:
        return
    e("s_waitcnt lgkmcnt(0)")
    for i in range(8):
        e(f"v_mov_b32 v{vt + i}, s{sSTAMP + 2 * i}" if i < n else f"v_mov_b32 v{vt + i}, 0")
    e(f"s_lshl_b32 s78, s2, 3")
    e(f"s_add_u32 s78, s78, s{sWAVE}")
    e(f"s_lshl_b32 s78, s78, 8")
    e(f"s_add_u32 s78, s78, {PROF_OFF}")
    e(f"v_mov_b32 v{vt + 8}, 0")
    e(f"buffer_store_dwordx4 {vr(vt, 4)}, v{vt + 8}, {srd(SRD_WS)}, s78 offen")
    e(f"buffer_store_dwordx4 {vr(vt + 4, 4)}, v{vt + 8}, {srd(SRD_WS)}, s78 offen offset:16")
    if loopst:
        e(f"v_lshlrev_b32 v{vt + 9}, 2, v{vLANE if loopst == vLOOPST else 0}")
        e(f"v_min_u32 v{vt + 9}, 124, v{vt + 9}")
        e(f"buffer_store_dword v{loopst}, v{vt + 9}, {srd(SRD_WS)}, s78 offen offset:64")
    e(f"s_memrealtime s[76:77]")
    e("s_waitcnt lgkmcnt(0)")
    e(f"v_mov_b32 v{vt}, s98")
    e(f"v_mov_b32 v{vt + 1}, s76")
    e(f"buffer_store_dwordx2 {vr(vt, 2)}, v{vt + 8}, {srd(SRD_WS)}, s78 offen offset:32")


uid = [0]
vLST = 250


QUIET = [False]


def lbar():
    if PROF and not QUIET[0]:
        e("s_memtime s[96:97]")
        e("s_mov_b32 s100, m0")
        e("s_mov_b32 m0, s79")
        e("s_waitcnt lgkmcnt(0)")
        e(f"v_writelane_b32 v{vLST}, s96, m0")
        e("s_mov_b32 m0, s100")
        e("s_cselect_b32 s101, 1, 0")
        e("s_add_u32 s79, s79, 1")
        e("s_cmp_eq_u32 s101, 1")
    e("s_barrier")


def poll_issue(vdst, vaddr, ssoff, srdn, n=1):
    op = "buffer_load_dword" if n == 1 else "buffer_load_dwordx2"
    d = f"v{vdst}" if n == 1 else vr(vdst, 2)
    e(f"{op} {d}, v{vaddr}, {srd(srdn)}, {ssoff} offen sc1")


def poll_wait(vdst, vaddr, ssoff, srdn, cond_tag=True, n=1, first_wait=0):
    uid[0] += 1
    k = uid[0]
    e(f"s_mov_b32 s75, {OPT['spin']}")
    e(f"s_waitcnt vmcnt({first_wait})")
    lab(f"POLL{k}")
    if cond_tag:
        e(f"v_cmp_ne_u32 vcc, s{sTAG}, v{vdst}")
        if n == 2:
            e(f"v_cmp_ne_u32 s[76:77], s{sTAG}, v{vdst + 1}")
            e("s_nop 0")
            e("s_or_b64 vcc, vcc, s[76:77]")
    else:
        e(f"v_cmp_eq_u32 vcc, 0, v{vdst}")
    e("s_nop 1")
    e("s_cmp_eq_u64 vcc, 0")
    e(f"s_cbranch_scc1 POLLD{k}")
    if OPT["slp"]:
        e(f"s_sleep {OPT['slp']}")
    poll_issue(vdst, vaddr, ssoff, srdn, n)
    e("s_sub_u32 s75, s75, 1")
    e("s_cmp_lg_u32 s75, 0")
    e("s_waitcnt vmcnt(0)")
    e(f"s_cbranch_scc1 POLL{k}")
    lab(f"POLLD{k}")


def srd_finish():
    e("s_waitcnt lgkmcnt(0)")
    e(f"s_cmp_eq_u32 s{sDFT}, 1")
    e("s_cselect_b64 s[8:9], s[48:49], s[52:53]")
    e("s_cselect_b64 s[12:13], s[50:51], s[54:55]")
    e("s_mov_b64 s[16:17], s[56:57]")
    e("s_mov_b64 s[24:25], s[58:59]")
    e("s_mov_b64 s[28:29], s[60:61]")
    e("s_mov_b64 s[20:21], s[62:63]")


def prologue():
    e("s_cmp_ge_u32 s2, 256")
    e("s_cbranch_scc1 END")
    e("s_load_dwordx2 s[4:5], s[0:1], 0")
    e("s_load_dwordx4 s[48:51], s[0:1], 24")
    e("s_load_dwordx8 s[52:59], s[0:1], 48")
    e("s_load_dwordx4 s[60:63], s[0:1], 80")
    if PROF or OPT.get("rabs"):
        e("s_memrealtime s[98:99]")
    stamp(0)
    if PROF:
        e("s_mov_b32 s79, 0")
    e("v_lshrrev_b32 v1, 6, v0")
    e("v_and_b32 v0, 63, v0")
    e(f"s_lshr_b32 s{sIDX}, s2, 3")
    e(f"v_readfirstlane_b32 s{sWAVE}, v1")
    e("s_and_b32 s64, s2, 1")
    e("s_lshl_b32 s64, s64, 3")
    e(f"s_and_b32 s65, s{sIDX}, 7")
    e(f"s_add_u32 s{sI}, s64, s65")
    e("s_bfe_u32 s64, s2, 0x20001")
    e(f"s_lshr_b32 s{sK4}, s{sIDX}, 3")
    e("s_mul_i32 s65, s64, 3")
    e(f"s_add_u32 s65, s65, s{sK4}")
    e("s_add_u32 s66, s64, 14")
    e(f"s_cmp_eq_u32 s{sK4}, 3")
    e("s_cselect_b32 s65, s66, s65")
    e("s_lshl_b32 s66, s64, 2")
    e(f"s_add_u32 s66, s66, s{sK4}")
    e("s_sub_u32 s66, s66, 2")
    e("s_cmp_lt_u32 s64, 2")
    e(f"s_cselect_b32 s{sJ}, s65, s66")
    e("s_and_b32 s64, s2, 7")
    e("s_lshl_b32 s64, s64, 2")
    e(f"s_and_b32 s65, s{sIDX}, 3")
    e(f"s_add_u32 s{sT1}, s64, s65")
    e(f"s_lshr_b32 s{sCB}, s{sIDX}, 2")
    e(f"s_lshl_b32 s{sCOL}, s{sJ}, 8")
    e(f"s_sub_u32 s64, s{sCOL}, {14 * 256}")
    e(f"s_movk_i32 s{sRS}, 3584")
    e(f"s_cmp_ge_u32 s{sJ}, 14")
    e(f"s_cselect_b32 s{sDFT}, 1, 0")
    e(f"s_cselect_b32 s{sRS}, 1024, s{sRS}")
    e(f"s_cselect_b32 s{sCOL}, s64, s{sCOL}")
    e(f"s_lshl_b32 s10, s{sRS}, 9")
    e("s_mov_b32 s14, s10")
    e("s_mov_b32 s6, 0x200000")
    e("s_mov_b32 s7, 0x20000")
    e("s_mov_b32 s11, 0x20000")
    e("s_mov_b32 s15, 0x20000")
    e(f"s_mov_b32 s18, {1792 * 1024}")
    e("s_mov_b32 s19, 0x20000")
    e(f"s_mov_b32 s22, {WS_SIZE}")
    e("s_mov_b32 s23, 0x20000")
    e("s_mov_b32 s26, 0x200000")
    e("s_mov_b32 s27, 0x20000")
    e("s_mov_b32 s30, 256")
    e("s_mov_b32 s31, 0x20000")
    e("s_mov_b32 s34, s10")
    e("s_mov_b32 s35, 0x20000")
    e(f"s_cmp_lt_u32 s{sWAVE}, 4")
    e("s_cbranch_scc1 CWAVE")
    e(f"s_cmp_eq_u32 s{sWAVE}, 6")
    e("s_cbranch_scc1 L2WAVE")
    e(f"s_cmp_eq_u32 s{sWAVE}, 7")
    e("s_cbranch_scc1 L3WAVE")


def wd_voffset(vd, vt):
    e(f"v_lshrrev_b32 v{vt}, 3, v0")
    e(f"v_lshlrev_b32 v{vd}, 10, v{vt}")
    e(f"v_bfe_u32 v{vt}, v0, 4, 1")
    e(f"v_lshlrev_b32 v{vt}, 2, v{vt}")
    e(f"v_and_b32 v{vt + 1}, 7, v0")
    e(f"v_xor_b32 v{vt}, v{vt}, v{vt + 1}")
    e(f"v_lshl_add_u32 v{vd}, v{vt}, 4, v{vd}")


def rot_offsets(shift, add=None):
    for k in range(8):
        if OPT["rot"]:
            e(f"s_add_u32 s{48 + k}, s{sCB}, {k}")
            e(f"s_and_b32 s{48 + k}, s{48 + k}, 7")
            e(f"s_lshl_b32 s{48 + k}, s{48 + k}, {shift}")
        else:
            e(f"s_mov_b32 s{48 + k}, {k << shift}")
        if add:
            e(f"s_add_u32 s{48 + k}, s{48 + k}, {add}")


def wait_c_done():
    uid[0] += 1
    k = uid[0]
    e(f"v_mov_b32 v7, {CNTL}")
    e(f"s_mov_b32 s75, {OPT['spin']}")
    lab(f"CW{k}")
    e("ds_read_b32 v8, v7")
    e("s_waitcnt lgkmcnt(0)")
    e("v_readfirstlane_b32 s76, v8")
    e("s_sub_u32 s75, s75, 1")
    e("s_cmp_eq_u32 s75, 0")
    e(f"s_cbranch_scc1 CWD{k}")
    e("s_sleep 1")
    e("s_cmp_lt_u32 s76, 4")
    e(f"s_cbranch_scc1 CW{k}")
    lab(f"CWD{k}")


def l_stage_tail(poller):
    ST0 = 64
    n = 56 - NRES

    def staged():
        e(f"s_sub_u32 s64, s{sWAVE}, 4")
        e("s_lshl_b32 s65, s64, 13")
        for v in range(NRES, 56):
            if v == NRES or v & 7 == 0:
                e(f"s_add_u32 s66, s65, {(v >> 3) * 262144}")
            e(f"s_add_u32 s67, s66, s{48 + (v & 7)}")
            if not OPT.get("nowd"):
                e(f"buffer_load_dwordx4 {vr(ST0 + 4 * (v - NRES), 4)}, v5, {srd(SRD_WD)}, s67 offen")
            if OPT["th2"]:
                e(f"s_waitcnt vmcnt({OPT['th2']})")
        e("s_lshl_b32 s64, s64, 10")
        e("v_lshl_add_u32 v6, v0, 4, s64")

    if poller:
        e("v_min_u32 v10, 13, v0")
        e("v_lshlrev_b32 v10, 7, v10")
        e(f"s_lshr_b32 s68, s{sT1}, 1")
        e("s_lshl_b32 s68, s68, 11")
        e(f"s_add_u32 s68, s68, {FLH}")
        e("v_bfe_u32 v12, v0, 1, 4")
        e("v_lshlrev_b32 v12, 4, v12")
        e("v_and_b32 v13, 1, v0")
        e("v_add3_u32 v12, v12, v13, 14")
        e("v_lshlrev_b32 v12, 7, v12")
        e(f"s_mov_b32 s69, {FLH}")
        wait_c_done()
        poll_issue(11, 10, "s68", SRD_WS)
        poll_wait(11, 10, "s68", SRD_WS)
        stamp(4)
        lbar()
        staged()
    else:
        staged()
        e(f"s_waitcnt vmcnt({n})")
        stamp(4)
        lbar()
    e("s_waitcnt vmcnt(0)")
    stamp(5)
    lbar()
    for u in range(n):
        if u == 16:
            e("v_add_u32 v6, 0x10000, v6")
        e(f"ds_write_b128 v6, {vr(ST0 + 4 * u, 4)} offset:{(u * 4096) & 0xFFFF}")
    if poller:
        poll_issue(11, 12, "s69", SRD_WS)
    e("s_waitcnt lgkmcnt(0)")
    stamp(6)
    lbar()
    if poller:
        poll_wait(11, 12, "s69", SRD_WS)
        lbar()
    stamp_flush(7, 8, vLST)
    e("s_endpgm")


def l01wave():
    vX0, vX1, vW, vWD = 2, 3, 4, 5
    sLW, sXa, sXb, sWo, sS0, sS1, sR4, sT, sCnt, sWd = 64, 65, 66, 67, 68, 69, 70, 71, 72, 73
    cm("================ L0/L1: DMA waves ================")
    QUIET[0] = bool(OPT["sp"])
    e(f"s_sub_u32 s{sLW}, s{sWAVE}, 4")
    e("v_lshrrev_b32 v6, 3, v0")
    e(f"v_lshlrev_b32 v{vX0}, 16, v6")
    e("v_lshrrev_b32 v6, 1, v6")
    e("v_and_b32 v7, 7, v0")
    e("v_xor_b32 v6, v6, v7")
    e(f"v_lshl_add_u32 v{vX0}, v6, 4, v{vX0}")
    e(f"v_xor_b32 v{vX1}, 64, v{vX0}")
    e("v_lshrrev_b32 v6, 4, v0")
    e(f"v_mul_lo_u32 v{vW}, v6, s{sRS}")
    e("v_bfe_u32 v7, v0, 2, 2")
    e("v_xor_b32 v7, v7, v6")
    e("v_lshlrev_b32 v7, 2, v7")
    e("v_and_b32 v8, 3, v0")
    e("v_or_b32 v7, v7, v8")
    e(f"v_lshl_add_u32 v{vW}, v7, 4, v{vW}")
    e(f"s_lshl_b32 s{sXa}, s{sI}, 1")
    e(f"s_add_u32 s{sXa}, s{sXa}, s{sLW}")
    e(f"s_lshl_b32 s{sXa}, s{sXa}, 10")
    e(f"s_add_u32 s{sXb}, s{sXa}, {32 * 1024}")
    e(f"s_mov_b32 s{sWo}, s{sCOL}")
    e(f"s_lshl_b32 s{sR4}, s{sRS}, 2")
    e(f"s_lshl_b32 s74, s{sLW}, 10")
    e(f"s_lshl_b32 s76, s{sLW}, 12")
    wd_voffset(vWD, 6)

    def wpieces(base_sgpr, imm):
        e(f"s_add_u32 s{sT}, s{base_sgpr}, s74")
        e(f"s_add_u32 m0, s{sT}, {imm}")
        e("s_nop 0")
        for k in range(8):
            if not OPT.get("nodma"):
                e(f"buffer_load_dwordx4 v{vW}, {srd(SRD_WM)}, s{sWo} offen lds")
            if k < 7:
                e("s_add_u32 m0, m0, 2048")
            e(f"s_add_u32 s{sWo}, s{sWo}, s{sR4}")

    def xpieces(base_sgpr, half):
        sx = sXb if half else sXa
        e(f"s_add_u32 s{sT}, s{base_sgpr}, s76")
        e(f"s_add_u32 m0, s{sT}, {32768 + half * 8192}")
        e(f"s_mov_b32 s{sT}, s{sx}")
        for k in range(4):
            if not OPT.get("nodma"):
                e(f"buffer_load_dwordx4 v{vX1 if k & 1 else vX0}, {srd(SRD_X)}, s{sT} offen lds")
            if k < 3:
                e("s_add_u32 m0, m0, 1024")
                e(f"s_add_u32 s{sT}, s{sT}, 0x80000")
        e(f"s_add_u32 s{sx}, s{sx}, 128")

    e(f"s_mov_b32 s{sS0}, {SLOT}")
    e(f"s_mov_b32 s{sS1}, {2 * SLOT}")
    srd_finish()
    e(f"s_cmp_eq_u32 s{sLW}, 0")
    e("s_cselect_b64 s[32:33], s[8:9], s[12:13]")
    e("s_lshl_b32 s77, s2, 1")
    e(f"s_add_u32 s77, s77, s{sLW}")
    e("s_lshl_b32 s77, s77, 8")
    e("s_add_u32 s56, s16, s77")
    e("s_addc_u32 s57, s17, 0")

    def swarm(chunk):
        for k in range(4):
            if OPT["sp"]:
                e(f"s_load_dword s58, s[56:57], {chunk * 131072 + 64 * k}")

    cm("G0 = x0 + W0 ; G1 = W1 + x1a")
    xpieces(sS0, 0)
    xpieces(sS0, 1)
    wpieces(sS0, 0)
    wpieces(sS0, 16384)
    xpieces(sS1, 0)
    e(f"s_mov_b32 s{sS0}, {2 * SLOT}")
    e(f"s_mov_b32 s{sS1}, 0")
    swarm(0)
    swarm(1)
    e(f"s_mov_b32 s{sCnt}, 6")
    e(f"s_lshl_b32 s{sT}, s{sCB}, 7")
    rot_offsets(15, f"s{sT}")
    e("s_waitcnt vmcnt(12)")
    stamp(1)
    lbar()
    lab("L01LOOP")
    wpieces(sS0, 0)
    xpieces(sS0, 1)
    swarm(2)
    e("s_waitcnt vmcnt(12)")
    lbar()
    wpieces(sS0, 16384)
    xpieces(sS1, 0)
    swarm(3)
    e("s_add_u32 s56, s56, 262144")
    e("s_addc_u32 s57, s57, 0")
    e(f"s_mov_b32 s{sS0}, s{sS1}")
    e(f"s_add_u32 s{sS1}, s{sS1}, {SLOT}")
    e(f"s_cmp_eq_u32 s{sS1}, {3 * SLOT}")
    e(f"s_cselect_b32 s{sS1}, 0, s{sS1}")
    e(f"s_sub_u32 s{sCnt}, s{sCnt}, 1")
    e(f"s_cmp_lg_u32 s{sCnt}, 0")
    e("s_waitcnt vmcnt(12)")
    lbar()
    e("s_cbranch_scc1 L01LOOP")
    cm("after B12: G14")
    wpieces(sS0, 0)
    xpieces(sS0, 1)
    e("s_waitcnt vmcnt(12)")
    lbar()
    wpieces(sS0, 16384)
    e(f"s_lshl_b32 s{sWd}, s{sLW}, 14")
    e(f"s_lshl_b32 m0, s{sLW}, 11")

    def units(a, b):
        for v in range(a, b if not OPT.get("nowd") else a):
            if v and v & 7 == 0:
                e(f"s_add_u32 s{sWd}, s{sWd}, 262144")
            e(f"s_add_u32 s{sT}, s{sWd}, s{48 + (v & 7)}")
            e(f"buffer_load_dwordx4 v{vWD}, {srd(SRD_WD)}, s{sT} offen lds")
            e("s_add_u32 m0, m0, 1024")
            e(f"s_add_u32 s{sT}, s{sT}, 8192")
            e(f"buffer_load_dwordx4 v{vWD}, {srd(SRD_WD)}, s{sT} offen lds")
            e(f"s_add_u32 m0, m0, {3072 + (4096 if v == 35 else 0)}")
            if v >= 14 and OPT["th"]:
                e(f"s_waitcnt vmcnt({OPT['th']})")

    units(0, 2)
    e("s_waitcnt vmcnt(12)")
    lbar()
    units(2, 8)
    e("s_waitcnt vmcnt(16)")
    lbar()
    units(8, 14)
    stamp(2)
    lbar()
    units(14, NRES)
    stamp(3)
    QUIET[0] = False
    lab("LSTAGE")
    l_stage_tail(False)


def l2wave():
    vA, vDum, vTD, vC = 2, 6, 7, 8
    lab("L2WAVE")
    cm("================ L2: cache warming touches, column sums ================")
    if OPT.get("lprio"):
        e(f"s_setprio {OPT['lprio']}")
    e(f"s_and_b32 s64, s{sK4}, 1")
    e(f"s_lshr_b32 s65, s{sK4}, 1")
    e("s_lshl_b32 s65, s65, 5")
    e(f"s_lshl_b32 s66, s{sI}, 1")
    e("s_add_u32 s64, s64, s65")
    e("s_add_u32 s64, s64, s66")
    e("s_lshl_b32 s64, s64, 10")
    e("v_lshl_add_u32 v10, v0, 16, s64")
    e(f"s_and_b32 s65, s{sI}, 7")
    e("s_lshl_b32 s65, s65, 3")
    e("v_bfe_u32 v11, v0, 2, 3")
    e("v_add_u32 v11, s65, v11")
    e(f"v_mul_lo_u32 v11, v11, s{sRS}")
    e("v_and_b32 v12, 1, v0")
    e("v_lshl_add_u32 v11, v12, 7, v11")
    e(f"v_add_u32 v11, s{sCOL}, v11")
    e("v_cmp_lt_u32 vcc, 31, v0")
    e("v_and_b32 v12, 2, v0")
    e("v_cmp_ne_u32 s[66:67], 0, v12")
    e("v_cndmask_b32 v10, v10, v11, vcc")
    e("v_mov_b32 v11, 0")
    e("v_lshrrev_b32 v18, 3, v0")
    e("v_and_b32 v19, 7, v0")
    e(f"v_lshlrev_b32 v{vTD}, 10, v18")
    e(f"v_lshl_add_u32 v{vTD}, v19, 7, v{vTD}")
    e("v_mov_b32 v18, 0x40000000")
    e(f"v_cndmask_b32 v{vTD}, v{vTD}, v18, vcc")
    e(f"s_lshl_b32 s71, s{sIDX}, 12")
    e("v_lshrrev_b32 v18, 3, v0")
    e("v_and_b32 v19, 7, v0")
    e(f"v_mul_lo_u32 v{vC}, v18, s{sRS}")
    e(f"v_lshl_add_u32 v{vC}, v19, 4, v{vC}")
    e(f"s_lshr_b32 s64, s{sI}, 2")
    e("s_lshl_b32 s64, s64, 4")
    e(f"s_mul_i32 s69, s64, s{sRS}")
    e(f"s_and_b32 s64, s{sI}, 1")
    e("s_lshl_b32 s64, s64, 7")
    e("s_add_u32 s69, s69, s64")
    e(f"s_add_u32 s69, s69, s{sCOL}")
    e(f"s_lshl_b32 s70, s{sRS}, 3")
    e(f"s_mul_i32 s72, s{sRS}, 56")
    wd_voffset(5, 18)
    srd_finish()
    e(f"s_bitcmp1_b32 s{sI}, 1")
    e("s_cselect_b64 s[32:33], s[12:13], s[8:9]")
    if OPT["t0"]:
        e("v_mov_b32 v14, s8")
        e("v_mov_b32 v15, s9")
        e("v_mov_b32 v16, s12")
        e("v_mov_b32 v17, s13")
        e("v_cndmask_b32 v14, v14, v16, s[66:67]")
        e("v_cndmask_b32 v15, v15, v17, s[66:67]")
        e("v_mov_b32 v16, s4")
        e("v_mov_b32 v17, s5")
        e("v_cndmask_b32 v14, v16, v14, vcc")
        e("v_cndmask_b32 v15, v17, v15, vcc")
        e(f"v_lshl_add_u64 {vr(vA, 2)}, v[10:11], 0, v[14:15]")
        e(f"global_load_dword v{vDum}, {vr(vA, 2)}, off")

    LD = 32
    AC = 16

    def csload(y):
        if OPT.get("nostats"):
            return
        e(f"buffer_load_dwordx4 {vr(LD + 4 * y, 4)}, v{vC}, {srd(SRD_WM)}, s69 offen")
        e(f"s_add_u32 s69, s69, {'s72' if y & 1 else 's70'}")

    def csproc(y):
        for d in range(4 if not OPT.get("nostats") else 0):
            r = LD + 4 * y + d
            if y == 0:
                e(f"v_lshlrev_b32 v{AC + 2 * d}, 16, v{r}")
                e(f"v_and_b32 v{AC + 2 * d + 1}, v9, v{r}")
            else:
                e(f"v_lshlrev_b32 v10, 16, v{r}")
                e(f"v_and_b32 v11, v9, v{r}")
                e(f"v_add_f32 v{AC + 2 * d}, v{AC + 2 * d}, v10")
                e(f"v_add_f32 v{AC + 2 * d + 1}, v{AC + 2 * d + 1}, v11")

    PRE = OPT["pre"]
    for y in range(2 * PRE):
        csload(y)
    e(f"s_lshl_b32 s64, s{sCB}, 7")
    rot_offsets(15, "s64")
    e("v_mov_b32 v9, 0xffff0000")
    stamp(1)
    def wtouch():
        if OPT["wt"]:
            e(f"buffer_load_dword v{vDum}, v{vTD}, {srd(SRD_WD)}, s71 offen")
            e("s_add_u32 s71, s71, 131072")

    vm = [("c", y) for y in range(2 * PRE)]
    issued, done = 2 * PRE, 0
    for n in range(8):
        lbar()
        if issued < 16:
            csload(issued)
            csload(issued + 1)
            vm += [("c", issued), ("c", issued + 1)]
            issued += 2
        if n >= 2 and OPT["wt"]:
            wtouch()
            vm.append(("t", n))
        if n >= 2:
            k = min(done + 3, 16)
            e(f"s_waitcnt vmcnt({len(vm) - 1 - vm.index(('c', k - 1))})")
            for y in range(done, k):
                csproc(y)
            done = k
    assert done == 16 and issued == 16
    lbar()
    wtouch()
    e(f"v_mov_b32 v12, {TAGL}")
    e("ds_read_b32 v25, v12")
    for k in range(4):
        e(f"v_permlane32_swap_b32 v{AC + k}, v{AC + k + 4}")
    e("s_nop 1")
    for k in range(4):
        e(f"v_add_f32 v{AC + k}, v{AC + k}, v{AC + k + 4}")
    e("s_nop 1")
    for k in range(2):
        e(f"v_permlane16_swap_b32 v{AC + k}, v{AC + k + 2}")
    e("s_nop 1")
    for k in range(2):
        e(f"v_add_f32 v{AC + k}, v{AC + k}, v{AC + k + 2}")
    e("v_and_b32 v10, 7, v0")
    e("v_lshlrev_b32 v10, 3, v10")
    e(f"v_add_f32_dpp v24, v{AC}, v{AC} row_ror:8 row_mask:0xf bank_mask:0x3")
    e(f"v_add_f32_dpp v24, v{AC + 1}, v{AC + 1} row_ror:8 row_mask:0xf bank_mask:0xc")
    e("v_bfe_u32 v11, v0, 5, 1")
    e("v_lshl_add_u32 v10, v11, 2, v10")
    e("v_bfe_u32 v11, v0, 4, 1")
    e("v_lshl_add_u32 v10, v11, 1, v10")
    e("v_bfe_u32 v11, v0, 3, 1")
    e("v_add_u32 v10, v11, v10")
    e("v_lshlrev_b32 v10, 3, v10")
    e(f"s_lshl_b32 s64, s{sJ}, 13")
    e(f"s_add_u32 s64, s64, {CS_OFF}")
    e(f"s_lshl_b32 s65, s{sI}, 9")
    e("s_add_u32 s65, s64, s65")
    e("s_waitcnt lgkmcnt(0)")
    e(f"buffer_store_dwordx2 v[24:25], v10, {srd(SRD_WS)}, s65 offen sc1")
    e(f"v_readfirstlane_b32 s{sTAG}, v25")
    stamp(2)
    e("v_lshlrev_b32 v10, 5, v0")
    e("s_add_u32 s65, s64, 4096")

    def csget():
        for k in range(8):
            e(f"buffer_load_dwordx4 {vr(32 + 4 * k, 4)}, v10, {srd(SRD_WS)}, {'s65' if k >= 4 else 's64'} offen offset:{2048 * ((k >> 1) & 1) + 16 * (k & 1)} sc1")

    for n in range(9, 14):
        lbar()
        if n < 13:
            wtouch()
        if 10 <= n < 13:
            wtouch()
    csget()
    lbar()
    e(f"s_mov_b32 s75, {OPT['spin']}")
    lab("CSCHK")
    e("s_waitcnt vmcnt(0)")
    for k in range(16):
        e(f"v_xor_b32 v{64 + k}, s{sTAG}, v{33 + 2 * k}")
    e("v_or_b32 v12, v64, v65")
    for k in range(1, 8):
        e(f"v_or3_b32 v12, v12, v{64 + 2 * k}, v{65 + 2 * k}")
    e("v_cmp_ne_u32 vcc, 0, v12")
    e("s_nop 1")
    e("s_cmp_eq_u64 vcc, 0")
    e("s_cbranch_scc1 CSOK")
    csget()
    e("s_sub_u32 s75, s75, 1")
    e("s_cmp_lg_u32 s75, 0")
    e("s_cbranch_scc1 CSCHK")
    e("s_waitcnt vmcnt(0)")
    lab("CSOK")
    e("v_lshlrev_b32 v10, 4, v0")
    e(f"v_add_u32 v10, {CSL}, v10")
    for d in range(4):
        e(f"v_add_f32 v{16 + d}, v{32 + 2 * d}, v{40 + 2 * d}")
        e(f"v_add_f32 v{20 + d}, v{48 + 2 * d}, v{56 + 2 * d}")
    for d in range(4):
        e(f"v_add_f32 v{16 + d}, v{16 + d}, v{20 + d}")
    e("ds_write_b128 v10, v[16:19]")
    lbar()
    e("s_waitcnt lgkmcnt(0)")
    stamp(3)
    lbar()
    wait_c_done()
    e("s_branch LSTAGE")


def l3wave():
    lab("L3WAVE")
    cm("================ L3: launch tag, row statistics ================")
    if OPT.get("lprio"):
        e(f"s_setprio {OPT['lprio']}")
    if OPT["ct"]:
        e("s_getpc_b64 s[64:65]")
        lab("PCREF")
        e(f"s_sub_u32 s64, s64, PCREF-{K}")
        e("s_subb_u32 s65, s65, 0")
        e("v_and_b32 v2, 7, v0")
        e(f"s_lshl_b32 s66, s{sIDX}, 3")
        e("v_add_u32 v2, s66, v2")
        e("v_lshlrev_b32 v2, 7, v2")
        e(f"v_min_u32 v2, END-{K}, v2")
        e("global_load_dword v8, v2, s[64:65]")
    e(f"s_bfe_u32 s64, s{sJ}, 0x10002")
    e(f"s_bfe_u32 s65, s{sJ}, 0x10003")
    e("s_lshl_b32 s65, s65, 5")
    e(f"s_lshl_b32 s66, s{sI}, 1")
    e("s_add_u32 s64, s64, s65")
    e("s_add_u32 s64, s64, s66")
    e(f"s_and_b32 s65, s{sJ}, 3")
    e("s_lshl_b32 s65, s65, 9")
    e("s_add_u32 s64, s64, s65")
    e("s_lshl_b32 s64, s64, 10")
    e("v_lshrrev_b32 v4, 3, v0")
    e("v_and_b32 v14, 7, v0")
    e("v_lshlrev_b32 v6, 16, v4")
    e("v_lshl_add_u32 v6, v14, 4, v6")
    e("v_mov_b32 v9, 0xffff0000")
    wd_voffset(5, 10)
    e("s_memrealtime s[66:67]")
    srd_finish()
    e("v_mov_b32 v2, 0")
    e("s_cmp_lg_u32 s2, 0")
    e("s_cbranch_scc1 L3NOTAG")
    e("s_or_b32 s66, s66, 1")
    e("v_mov_b32 v3, s66")
    e(f"buffer_store_dword v3, v2, {srd(SRD_DBG)}, 0 offen sc1")
    lab("L3NOTAG")
    e(f"s_lshl_b32 s66, s{sCB}, 7")
    rot_offsets(15, "s66")
    LD, UP = 16, 64
    PRE = OPT["pre"]

    def rowload(y):
        e(f"buffer_load_dwordx4 {vr(LD + 4 * y, 4)}, v6, {srd(SRD_X)}, s64 offen offset:{128 * y}")

    for y in range(PRE):
        rowload(y)

    def unp(d):
        if OPT.get("nostats"):
            return
        e(f"v_lshlrev_b32 v{UP + 2 * d}, 16, v{LD + d}")
        e(f"v_and_b32 v{UP + 2 * d + 1}, v9, v{LD + d}")
        if d == 0:
            e(f"v_mov_b32 v10, v{UP}")
            e(f"v_mov_b32 v11, v{UP + 1}")
        else:
            e(f"v_add_f32 v10, v10, v{UP + 2 * d}")
            e(f"v_add_f32 v11, v11, v{UP + 2 * d + 1}")

    def red8(r):
        e("s_nop 1")
        e(f"v_add_f32_dpp v{r}, v{r}, v{r} quad_perm:[1,0,3,2] row_mask:0xf bank_mask:0xf")
        e("s_nop 1")
        e(f"v_add_f32_dpp v{r}, v{r}, v{r} quad_perm:[2,3,0,1] row_mask:0xf bank_mask:0xf")
        e("s_nop 1")
        e(f"v_add_f32_dpp v{r}, v{r}, v{r} row_half_mirror row_mask:0xf bank_mask:0xf")

    def var(k):
        if OPT.get("nostats"):
            return
        e(f"v_sub_f32 v{UP + k}, v{UP + k}, v10")
        e(f"v_fmac_f32 v{12 + (k & 1)}, v{UP + k}, v{UP + k}")

    issued, done = PRE, 0
    for n in range(6):
        lbar()
        if issued < 8:
            rowload(issued)
            issued += 1
        if n >= 2:
            k = min(done + 2, 8)
            e(f"s_waitcnt vmcnt({issued - k})")
            for d in range(4 * done, 4 * k):
                unp(d)
            done = k
    assert done == 8 and issued == 8
    poll_issue(3, 2, "0", SRD_DBG)
    e("v_add_f32 v10, v10, v11")
    red8(10)
    e(f"v_mul_f32 v10, {f2u(1.0 / 512):#x}, v10")
    e("v_mov_b32 v12, 0")
    e("v_mov_b32 v13, 0")
    lbar()
    for k in range(24):
        var(k)
    lbar()
    poll_wait(3, 2, "0", SRD_DBG, cond_tag=False)
    e(f"v_mov_b32 v15, {TAGL}")
    e("ds_write_b32 v15, v3")
    e("ds_write_b32 v15, v2 offset:4")
    e("ds_write_b32 v15, v2 offset:8")
    e(f"v_readfirstlane_b32 s{sTAG}, v3")
    for k in range(24, 44):
        var(k)
    e("s_waitcnt lgkmcnt(0)")
    lbar()
    for k in range(44, 64):
        var(k)
    e("v_add_f32 v12, v12, v13")
    red8(12)
    e(f"v_mul_f32 v12, {f2u(1.0 / 512):#x}, v12")
    e("v_cvt_pk_bf16_f32 v15, v10, v12")
    e("v_lshlrev_b32 v10, 16, v15")
    e("v_and_b32 v12, v9, v15")
    e(f"v_add_f32 v12, {f2u(1e-5):#x}, v12")
    e("v_cvt_pk_bf16_f32 v12, v12, v12")
    e("v_and_b32 v12, v9, v12")
    e("v_sqrt_f32 v12, v12")
    e("s_nop 0")
    e("v_cvt_pk_bf16_f32 v12, v12, v12")
    e("v_and_b32 v12, v9, v12")
    e("v_rcp_f32 v11, v12")
    e("v_cmp_eq_u32 vcc, 0, v14")
    e("v_lshlrev_b32 v14, 4, v4")
    e("v_mov_b32 v15, 0x40000000")
    e(f"s_lshl_b32 s64, s{sI}, 11")
    e(f"s_add_u32 s64, s64, {ST_OFF}")
    e("v_cndmask_b32 v14, v15, v14, vcc")
    e("v_mov_b32 v16, v10")
    e("v_mov_b32 v17, v11")
    e("v_mov_b32 v18, v3")
    e("v_mov_b32 v19, v3")
    e(f"s_lshl_b32 s65, s{sJ}, 7")
    e("s_add_u32 s65, s64, s65")
    e(f"buffer_store_dwordx4 v[16:19], v14, {srd(SRD_WS)}, s65 offen sc1")
    stamp(1)
    e("v_lshlrev_b32 v10, 5, v0")

    def stget():
        e(f"buffer_load_dwordx4 v[20:23], v10, {srd(SRD_WS)}, s64 offen sc1")
        e(f"buffer_load_dwordx4 v[24:27], v10, {srd(SRD_WS)}, s64 offen offset:16 sc1")

    for n in range(9, 14):
        lbar()
    stget()
    lbar()
    e(f"s_mov_b32 s75, {OPT['spin']}")
    lab("STCHK")
    e("s_waitcnt vmcnt(0)")
    e(f"v_cmp_ne_u32 vcc, s{sTAG}, v23")
    e(f"v_cmp_ne_u32 s[76:77], s{sTAG}, v27")
    e("s_nop 1")
    e("s_or_b64 vcc, vcc, s[76:77]")
    e("s_cmp_eq_u64 vcc, 0")
    e("s_cbranch_scc1 STOK")
    stget()
    e("s_sub_u32 s75, s75, 1")
    e("s_cmp_lg_u32 s75, 0")
    e("s_cbranch_scc1 STCHK")
    e("s_waitcnt vmcnt(0)")
    lab("STOK")
    e("v_lshlrev_b32 v10, 4, v0")
    e(f"v_add_u32 v10, {MRP}, v10")
    e(f"v_lshlrev_b32 v12, 3, v0")
    e(f"v_add_u32 v12, {RL}, v12")
    e("v_mov_b32 v22, v24")
    e("v_mov_b32 v23, v25")
    e("v_mov_b32 v24, v21")
    e("v_mul_f32 v26, v20, v21")
    e("v_mul_f32 v27, v22, v23")
    e("v_xor_b32 v26, 0x80000000, v26")
    e("v_xor_b32 v27, 0x80000000, v27")
    e("ds_write_b128 v10, v[20:23]")
    e("ds_write_b64 v12, v[24:25]")
    e("ds_write_b64 v12, v[26:27] offset:512")
    lbar()
    e("s_waitcnt lgkmcnt(0)")
    stamp(2)
    stamp(3)
    lbar()
    l_stage_tail(True)


XF = [[64 + 4 * q for q in range(4)], [80 + 4 * q for q in range(4)]]
WF = [[96, 100], [104, 108]]
XA = [112, 113, 114, 115]
WA = 116
vLANE, vPM = 117, 118


def ACC(mat, q):
    return 128 + 32 * q + 16 * mat


def frag_reads(u, st):
    r = []
    for mat in range(2):
        for a in range(2):
            r.append(f"ds_read_b64_tr_b16 {vr(WF[st][mat] + 2 * a, 2)}, v{WA} offset:{u * 8192 + a * 2048 + mat * 1024}")
    for q in range(4):
        r.append(f"ds_read_b128 {vr(XF[st][q], 4)}, v{XA[u]} offset:{q * 4096}")
    return r


CG, CU, MR = 0, 16, 32
vA_CS, vA_MR, vA_TAG = 45, 46, 47


def glu_stat_reads():
    r = [f"ds_read_b64 {vr(MR + 2 * q, 2)}, v{vA_MR} offset:{256 * q}" for q in range(4)]
    r += [f"ds_read_b128 {vr(CG + 4 * a, 4)}, v{vA_CS} offset:{32 * a}" for a in range(4)]
    r += [f"ds_read_b128 {vr(CU + 4 * a, 4)}, v{vA_CS} offset:{512 + 32 * a}" for a in range(4)]
    r += [f"ds_read_b32 v43, v{vA_TAG}"]
    return r


def mainloop(dft):
    sCnt, sDelta, sCur = 64, 65, 66
    tag = "D" if dft else "G"
    for s in frag_reads(0, 0):
        e(s)
    e(f"s_mov_b32 s{sCnt}, 8")
    e(f"s_mov_b32 s{sCur}, {SLOT}")
    e(f"s_mov_b32 s67, {(-2 * SLOT) & 0xffffffff:#x}")

    def step(u, last):
        st = u & 1
        mf = []
        for mat in ((1, 0) if dft else (0, 1)):
            for q in range(4):
                a, b = (XF[st][q], WF[st][mat]) if dft else (WF[st][mat], XF[st][q])
                mf.append(f"v_mfma_f32_32x32x16_bf16 {vr(ACC(mat, q), 16)}, {vr(a, 4)}, {vr(b, 4)}, {vr(ACC(mat, q), 16)}")
        rd = frag_reads((u + 1) & 3, st ^ 1)
        gaps = [[] for _ in range(8)]
        if u == 3 and not last:
            gaps[0] += [f"v_add_u32 v{WA}, s{sDelta}, v{WA}", f"v_add_u32 v{XA[0]}, s{sDelta}, v{XA[0]}"]
            gaps[5] += [f"v_add_u32 v{XA[1]}, s{sDelta}, v{XA[1]}"]
            gaps[6] += [f"v_add_u32 v{XA[2]}, s{sDelta}, v{XA[2]}", f"v_add_u32 v{XA[3]}, s{sDelta}, v{XA[3]}"]
        if PROF and u in (0, 2):
            gaps[0] += ["s_memtime s[70:71]"]
        if PROF and u in (1, 3):
            gaps[5] += [f"s_lshl_b32 s72, s{sCnt}, 1", f"s_sub_u32 m0, {16 if u == 1 else 15}, s72", f"v_writelane_b32 v{vLOOPST}, s70, m0"]
        if u == 2:
            gaps[5] += [f"s_cmp_eq_u32 s{sCur}, {2 * SLOT}", f"s_cselect_b32 s{sDelta}, s67, {SLOT}"]
            gaps[6] += [f"s_add_u32 s{sCur}, s{sCur}, s{sDelta}", f"s_sub_u32 s{sCnt}, s{sCnt}, 1"]
            gaps[7] += [f"s_cmp_eq_u32 s{sCnt}, 0"]
        if u & 1:
            gaps[0] += ["s_barrier"]
        if dft:
            gaps[0] = [f"v_cndmask_b32 v{WF[st][0] + k}, v{WF[st][0] + k}, v{vPM}, s[68:69]" for k in range(2)] + gaps[0]
            gaps[1] += [f"v_cndmask_b32 v{WF[st][0] + k}, v{WF[st][0] + k}, v{vPM}, s[68:69]" for k in range(2, 4)]
        if last:
            extra = dft_stat_reads() if dft else glu_stat_reads()
            for k, x in enumerate(extra):
                gaps[2 + min(k // 3, 4)].append(x)
        else:
            for k in range(4):
                gaps[k + (1 if (u & 1) else 0)] += rd[2 * k:2 * k + 2]
        e("s_waitcnt lgkmcnt(0)")
        for k in range(8):
            e(mf[k])
            for s in gaps[k]:
                e(s)

    L.append(".p2align 3")
    lab(f"MAIN{tag}")
    for u in range(3):
        step(u, False)
    e(f"s_cbranch_scc1 LAST{tag}")
    step(3, False)
    e(f"s_branch MAIN{tag}")
    lab(f"LAST{tag}")
    step(3, True)


def glu_epilogue():
    e(f"v_lshlrev_b32 v44, 4, v{vLANE}")
    e("v_mov_b32 v42, 0")
    e("s_mov_b32 s66, 1.0")
    e("s_mov_b32 s67, 1.0")
    e("s_waitcnt lgkmcnt(0)")
    e(f"v_readfirstlane_b32 s{sTAG}, v43")
    for q in range(4):
        e(f"v_mul_f32 v{MR + 2 * q + 1}, {NLOG2E:#x}, v{MR + 2 * q + 1}")
    L.append(".p2align 3")
    out = 0
    for q in range(4):
        b, p = q & 1, q >> 1
        mr = vr(MR + 2 * q, 2)
        for z in range(2):
            G = ACC(0, q) + 8 * z
            U = ACC(1, q) + 8 * z
            for k in range(4):
                e(f"v_pk_fma_f32 {vr(G + 2 * k, 2)}, {vr(CG + 8 * z + 2 * k, 2)}, {mr}, {vr(G + 2 * k, 2)} op_sel_hi:[1,0,1] neg_lo:[0,1,0] neg_hi:[0,1,0]")
            for k in range(4):
                e(f"v_pk_mul_f32 {vr(G + 2 * k, 2)}, {vr(G + 2 * k, 2)}, {mr} op_sel:[0,1] op_sel_hi:[1,1]")
            for k in range(8):
                e(f"v_exp_f32 v{G + k}, v{G + k}")
            for k in range(4):
                e(f"v_pk_add_f32 {vr(G + 2 * k, 2)}, {vr(G + 2 * k, 2)}, s[66:67]")
            for k in range(8):
                e(f"v_rcp_f32 v{G + k}, v{G + k}")
            for k in range(4):
                e(f"v_pk_fma_f32 {vr(U + 2 * k, 2)}, {vr(CU + 8 * z + 2 * k, 2)}, {mr}, {vr(U + 2 * k, 2)} op_sel_hi:[1,0,1] neg_lo:[0,1,0] neg_hi:[0,1,0]")
            for k in range(4):
                e(f"v_pk_mul_f32 {vr(U + 2 * k, 2)}, {vr(U + 2 * k, 2)}, {vr(G + 2 * k, 2)}")
            o = 64 + 4 * out
            out += 1
            for k in range(4):
                e(f"v_cvt_pk_bf16_f32 v{o + k}, v{U + 2 * k}, v{U + 2 * k + 1}")
            e(f"s_add_u32 s65, s{sOUT}, {((b * 2 + p) * 2 + z) * 56 * 1024 + H_OFF}")
            e(f"buffer_store_dwordx4 {vr(o, 4)}, v44, {srd(SRD_WS)}, s65 offen{'' if OPT.get('hplain') else ' sc1'}")
    stamp(3)
    e("v_mov_b32 v40, 1")
    e("s_mov_b64 exec, 1")
    e("s_waitcnt vmcnt(0)")
    e(f"ds_add_rtn_u32 v41, v{vA_TAG}, v40 offset:4")
    e("s_waitcnt lgkmcnt(0)")
    e("v_readfirstlane_b32 s64, v41")
    e("s_cmp_lg_u32 s64, 3")
    e("s_cbranch_scc1 HNOFLAG")
    e(f"buffer_store_dword v43, v42, {srd(SRD_WS)}, s{sFLG} offen sc1")
    lab("HNOFLAG")
    e("s_mov_b64 exec, -1")
    stamp(4)


def TW(q, cs, z):
    return 16 * q + 8 * cs + 4 * z


def dft_prologue():
    e(f"v_and_b32 v2, 31, v{vLANE}")
    e("v_cvt_f32_u32 v3, v2")
    e(f"v_mul_f32 v3, {f2u(1.0 / 2048):#x}, v3")
    e(f"s_and_b32 s64, s{sWAVE}, 1")
    e(f"s_lshr_b32 s65, s{sWAVE}, 1")
    e("s_lshl_b32 s65, s65, 5")
    e("s_add_u32 s64, s64, s65")
    e(f"s_lshl_b32 s65, s{sI}, 1")
    e("s_add_u32 s64, s64, s65")
    e(f"v_lshrrev_b32 v4, 5, v{vLANE}")
    e("v_lshl_add_u32 v4, v4, 8, s64")
    e("v_cvt_f32_u32 v4, v4")
    e("v_mul_f32 v4, v3, v4")
    e("v_and_b32 v5, 1, v2")
    e("v_mul_u32_u24 v5, 0x8000, v5")
    e("v_lshl_or_b32 v5, v5, 16, v5")
    for jj in range(8):
        c = 64.0 * (8 * (jj >> 2) + (jj & 3))
        e(f"v_fmamk_f32 v{8 + jj}, v3, {f2u(c):#x}, v4")
    for jj in range(8):
        e(f"v_fract_f32 v{8 + jj}, v{8 + jj}")
    for jj in range(8):
        e(f"v_cos_f32 v{16 + jj}, v{8 + jj}")
        e(f"v_sin_f32 v{24 + jj}, v{8 + jj}")
    e("s_nop 0")
    for k in range(4):
        e(f"v_cvt_pk_bf16_f32 v{32 + k}, v{16 + 2 * k}, v{17 + 2 * k}")
        e(f"v_cvt_pk_bf16_f32 v{40 + k}, v{24 + 2 * k}, v{25 + 2 * k}")
    for k in range(4):
        e(f"v_xor_b32 v{36 + k}, v5, v{32 + k}")
        e(f"v_xor_b32 v{44 + k}, v5, v{40 + k}")
    e(f"s_lshl_b32 s64, s{sWAVE}, 12")
    e(f"s_add_u32 s64, s64, {MISC}")
    e(f"v_lshl_add_u32 v6, v{vLANE}, 4, s64")
    for k in range(4):
        e(f"ds_write_b128 v6, {vr(32 + 4 * k, 4)} offset:{1024 * k}")
    e(f"s_cmp_eq_u32 s{sJ}, 14")
    e("s_cselect_b32 s68, 1, 0")
    e(f"s_cmp_eq_u32 s{sWAVE}, 0")
    e("s_cselect_b32 s68, s68, 0")
    e("s_mov_b32 s69, s68")
    e(f"v_mov_b32 v{vPM}, 0xbf803f80")
    e(f"v_lshlrev_b32 v119, 4, v{vLANE}")
    e(f"v_add_u32 v119, {MISC}, v119")
    e("s_waitcnt lgkmcnt(0)")


R0, N0 = 64, 80
vD_CS, vD_R, vD_TAG = 122, 123, 124


def dft_stat_reads():
    return [f"ds_read_b32 v118, v{vD_CS}", f"ds_read_b32 v119, v{vD_CS} offset:512", f"ds_read_b32 v{vD_TAG}, v{vD_TAG}"] + \
           [f"ds_read_b128 {vr(R0 + 4 * a, 4)}, v{vD_R} offset:{32 * a}" for a in range(4)]


def dft_epilogue():
    for a in range(4):
        e(f"ds_read_b128 {vr(N0 + 4 * a, 4)}, v{vD_R} offset:{512 + 32 * a}")
    e(f"v_mov_b32 v115, v{vD_R}")

    def rd(q):
        for a in range(4):
            e(f"ds_read_b128 {vr(R0 + 4 * a, 4)}, v115 offset:{128 * q + 32 * a}")
            e(f"ds_read_b128 {vr(N0 + 4 * a, 4)}, v115 offset:{512 + 128 * q + 32 * a}")

    e("s_waitcnt lgkmcnt(0)")
    e(f"v_readfirstlane_b32 s{sTAG}, v{vD_TAG}")
    e("v_cndmask_b32 v118, v118, 0, s[68:69]")

    def TS(q):
        return (120 if q & 1 else 96), (104 if q == 0 else TW(q - 1, 0, 0))

    def valu(q):
        r_ = []
        for mat, T, cs in ((0, TS(q)[0], 118), (1, TS(q)[1], 119)):
            A = ACC(mat, q)
            for r in range(16):
                r_.append(f"v_mul_f32 v{A + r}, v{A + r}, v{R0 + r}")
            for r in range(16):
                r_.append(f"v_fmac_f32 v{A + r}, v{N0 + r}, v{cs}")
            for k in range(8):
                r_.append(f"v_cvt_pk_bf16_f32 v{T + k}, v{A + 2 * k}, v{A + 2 * k + 1}")
        return r_

    def mfmas(q):
        ta, tb = TS(q)
        zr, zi = ACC(0, q), ACC(1, q)
        seq = [(zr, 1, 0, tb), (zi, 0, 0, tb), (zr, 1, 1, tb + 4), (zi, 0, 1, tb + 4),
               (zr, 0, 0, ta), (zr, 0, 1, ta + 4), (zi, 1, 0, ta), (zi, 1, 1, ta + 4)]
        return [f"v_mfma_f32_32x32x16_bf16 {vr(d, 16)}, {vr(TW(q, cs, z), 4)}, {vr(b, 4)}, {'0' if k < 2 else vr(d, 16)}"
                for k, (d, cs, z, b) in enumerate(seq)]

    for q in range(5):
        v_ = valu(q) if q < 4 else []
        m_ = mfmas(q - 1) if q else []
        if 0 < q < 4:
            e("s_waitcnt lgkmcnt(0)")
        if q:
            e("s_nop 1")
        per = len(v_) // 8
        for k in range(8):
            if m_:
                e(m_[k])
                if k in (3, 4):
                    for x in range(4):
                        rg = TW(q - 1, 1, k - 3) + x
                        e(f"v_xor_b32 v{rg}, 0x80008000, v{rg}")
            for x in v_[k * per:(k + 1) * per]:
                e(x)
        if q < 3:
            rd(q + 1)
    stamp(3)
    e("s_nop 7")
    e("s_nop 3")
    for r in range(16):
        for q in range(4):
            e(f"v_cvt_pk_bf16_f32 v{4 * r + q}, v{ACC(0, q) + r}, v{ACC(1, q) + r}")
    e(f"v_mov_b32 v64, {CNTL}")
    e("v_mov_b32 v65, 1")
    e("s_mov_b64 exec, 1")
    e("ds_add_u32 v64, v65")
    e("s_mov_b64 exec, -1")
    stamp(4)


sXO, sZ, sFZ, sPOLL, sRO, sFLG, sOUT, sC0, sP, sKH = 56, 57, 58, 59, 60, 61, 62, 63, 73, 74


def phase2(dft):
    OWN, OTH, Y, EF, HR, ET = 128, 144, 160, 32, 176, 248
    XR, vR = 80, 88
    W2 = [[96, 100], [104, 108], [240, 244]]
    WD = [112, 113]
    vH, vXO, vZ, vONE = 114, 115, 116, 118
    vEA, vEB, vES, vZS, vTG, vZERO = 122, 123, 124, 125, 126, 127
    ZF = 0
    tg = "D" if dft else "G"
    assert D <= 16
    vm = []

    def issue(tag, txt):
        vm.append(tag)
        e(txt)

    def younger(tag):
        return len(vm) - 1 - vm.index(tag)

    stamp(5)
    e(f"v_and_b32 v89, 31, v{vLANE}")
    e(f"v_lshrrev_b32 v90, 5, v{vLANE}")
    e(f"v_lshlrev_b32 v{vXO}, 16, v89")
    e(f"v_lshl_add_u32 v{vXO}, v90, 5, v{vXO}")
    e(f"buffer_load_dwordx4 {vr(XR, 4)}, v{vXO}, {srd(SRD_X)}, s{sXO} offen")
    e(f"buffer_load_dwordx4 {vr(XR + 4, 4)}, v{vXO}, {srd(SRD_X)}, s{sXO} offen offset:16")
    e(f"v_bfe_u32 v{ET}, v{vLANE}, 2, 2")
    e(f"v_lshl_add_u32 v92, v90, 2, v{ET}")
    e(f"s_lshl_b32 s68, s{sKH}, 11")
    e("v_lshl_add_u32 v92, v92, 7, s68")
    e(f"v_and_b32 v93, 1, v{vLANE}")
    e("v_lshlrev_b32 v93, 2, v93")
    e(f"v_bfe_u32 v{ET + 1}, v{vLANE}, 4, 1")
    e(f"v_lshl_add_u32 v93, v{ET + 1}, 1, v93")
    e(f"v_bfe_u32 v{ET + 1}, v{vLANE}, 1, 1")
    e(f"v_add_u32 v93, v93, v{ET + 1}")
    e("v_lshl_add_u32 v92, v93, 3, v92")
    e(f"v_lshrrev_b32 v{ET}, 1, v{ET}")
    e(f"v_xor_b32 v{ET}, s{sKH}, v{ET}")
    e(f"v_lshl_add_u32 v{WD[0]}, v{ET}, 6, v92")
    e(f"v_xor_b32 v{WD[1]}, 64, v{WD[0]}")
    e(f"v_lshlrev_b32 v{vH}, 4, v{vLANE}")
    e("v_lshlrev_b32 v93, 4, v89")
    if dft:
        e(f"v_lshl_add_u32 v{vZS}, v90, 18, v93")
        e(f"v_mov_b32 v{vTG}, s{sTAG}")
        e(f"v_mov_b32 v{vZERO}, 0")
        e(f"v_mov_b32 v{vONE}, 1")
        e(f"v_mov_b32 v94, {TAGL}")
    e("s_barrier")
    stamp(6)

    def hload(v):
        if v and v & 7 == 0:
            e(f"v_add_u32 v{vH}, 8192, v{vH}")
        issue(("h", v), f"buffer_load_dwordx4 {vr(HR + 4 * (v % D), 4)}, v{vH}, {srd(SRD_WS)}, s{48 + (v & 7)} offen sc1")

    base = [0]

    def wreads(v):
        a = wslot(v) * 4096
        r = []
        if (a & ~0xFFFF) != base[0]:
            d = (a & ~0xFFFF) - base[0]
            base[0] = a & ~0xFFFF
            r += [f"v_add_u32 v{WD[c]}, {d & 0xffffffff:#x}, v{WD[c]}" for c in range(2)]
        return r + [f"ds_read_b64_tr_b16 {vr(W2[v % 3][c] + 2 * k, 2)}, v{WD[c]} offset:{(a & 0xFFFF) + 1024 * k}" for c in range(2) for k in range(2)]

    nh = [0]

    def hmore(lim, cnt):
        while cnt and nh[0] < min(56, lim):
            hload(nh[0])
            nh[0] += 1
            cnt -= 1

    for v in range(OPT["D0"]):
        hmore(56, 1)
        if v == 1:
            for x in wreads(0) + wreads(1):
                e(x)
    issue("r", f"buffer_load_dword v{vR}, v93, {srd(SRD_WS)}, s{sRO} offen offset:4 sc1")

    fill = [f"v_and_b32 v91, 3, v{vLANE}", f"v_bfe_u32 v92, v{vLANE}, 3, 2", "v_lshl_add_u32 v91, v92, 2, v91",
            f"v_bfe_u32 v92, v{vLANE}, 2, 1", "v_lshl_add_u32 v91, v92, 4, v91",
            f"s_lshl_b32 s68, s{sCB}, 6", f"s_lshl_b32 s69, s{sKH}, 5", "s_add_u32 s68, s68, s69",
            "v_add_u32 v91, s68, v91", "v_sub_u32 v92, 512, v91", "v_and_b32 v92, 255, v92",
            [f"s_cmp_ge_u32 s{sCB}, 4", "s_cselect_b64 s[70:71], -1, 0"],
            "v_cmp_eq_u32 vcc, 0, v91", "v_cndmask_b32 v92, v91, v92, s[70:71]", f"v_lshlrev_b32 v{vZ}, 4, v92",
            f"v_lshl_add_u32 v{vZ}, v90, 12, v{vZ}", "v_mov_b32 v92, 0x40000000", f"v_cndmask_b32 v{vZ}, v{vZ}, v92, vcc",
            f"v_lshl_add_u32 v91, v89, 1, s{sP}", f"v_sub_u32 v92, s{sC0}, v91", "v_cndmask_b32 v91, v91, v92, s[70:71]",
            f"v_and_b32 v{vES}, 1, v91", f"v_mul_u32_u24 v{vES}, 0x8000, v{vES}", f"v_lshl_or_b32 v{vES}, v{vES}, 16, v{vES}",
            "v_cvt_f32_u32 v91, v91", f"v_mul_f32 v{vEA}, {f2u(1.0 / 64):#x}, v91",
            "v_lshlrev_b32 v92, 1, v90", "v_cvt_f32_u32 v92, v92", f"v_mul_f32 v{vEB}, v{vEA}, v92"]
    for sg in range(8):
        for b in range(2):
            fill.append(f"v_fmamk_f32 v{ET + b}, v{vEA}, {f2u(float(4 * sg + b)):#x}, v{vEB}")
        for b in range(2):
            fill.append(f"v_fract_f32 v{ET + b}, v{ET + b}")
        for b in range(2):
            fill.append(f"v_cos_f32 v{ET + 2 + b}, v{ET + b}")
            fill.append(f"v_sin_f32 v{ET + 4 + b}, v{ET + b}")
        fill.append([f"v_cvt_pk_bf16_f32 v{EF + 4 * sg}, v{ET + 2}, v{ET + 4}",
                     f"v_cvt_pk_bf16_f32 v{EF + 4 * sg + 1}, v{ET + 3}, v{ET + 5}"])
        for b in range(2):
            fill.append(f"v_xor_b32 v{EF + 4 * sg + 2 + b}, v{vES}, v{EF + 4 * sg + b}")
    VZL = OPT.get("vzl", 46)
    VP1, VP2 = 55 - NRES, NRES - 2
    zflag_done = not dft
    for v in range(56):
        e(f"s_waitcnt vmcnt({younger(('h', v))}) lgkmcnt({4 if v < 55 else 0})")
        h = vr(HR + 4 * (v % D), 4)
        st = v % 3
        c0 = "0" if v == 0 else vr(OWN, 16)
        c1 = "0" if v == 0 else vr(OTH, 16)
        e(f"v_mfma_f32_32x32x16_bf16 {vr(OWN, 16)}, {vr(W2[st][0], 4)}, {h}, {c0}")
        if v in (VP1, VP2):
            e("s_barrier")
        if v + 2 < 56:
            for x in wreads(v + 2):
                e(x)
        e(f"v_mfma_f32_32x32x16_bf16 {vr(OTH, 16)}, {vr(W2[st][1], 4)}, {h}, {c1}")
        if PROF and v % 4 == 0:
            e("s_memtime s[78:79]")
        if PROF and v % 4 == 2:
            e(f"v_writelane_b32 v{vLOOPST}, s78, {16 + v // 4}")
        if not zflag_done and ("zs", 15) in vm and vm.index(("h", v)) > vm.index(("zs", 15)):
            e("s_mov_b64 exec, 1")
            e(f"ds_add_rtn_u32 v95, v94, v{vONE} offset:8")
            e("s_waitcnt lgkmcnt(0)")
            e("v_readfirstlane_b32 s64, v95")
            e(f"s_mov_b32 s65, s{sFLG}")
            e("s_cmp_lg_u32 s64, 3")
            e("s_cselect_b32 s65, 0x40000000, s65")
            issue("zflag", f"buffer_store_dword v{vTG}, v{vZERO}, {srd(SRD_WS)}, s65 offen sc1")
            e("s_mov_b64 exec, -1")
            zflag_done = True
        if dft and v < 16:
            e(f"s_add_u32 s65, s{sOUT}, {(8 * (v >> 2) + (v & 3)) * 65536}")
            issue(("zs", v), f"buffer_store_dwordx4 {vr(4 * v, 4)}, v{vZS}, {srd(SRD_WS)}, s65 offen sc1")
        if v == VZL:
            e("s_barrier")
        if v in (VZL, VZL + 1):
            for sg in range(4 * (v - VZL), 4 * (v - VZL) + 4):
                issue(("z", sg), f"buffer_load_dwordx4 {vr(ZF + 4 * sg, 4)}, v{vZ}, {srd(SRD_WS)}, s{sZ} offen sc1")
                e(f"s_add_u32 s{sZ}, s{sZ}, 8192")
        hmore(v + 1 + D, 2)
        for _ in range(4):
            if fill and (len(fill) > 88 or v >= 26):
                x = fill.pop(0)
                for y in (x if isinstance(x, list) else [x]):
                    e(y)
    assert not fill and zflag_done
    stamp(7)

    def ymf(sg):
        e(f"v_mfma_f32_32x32x16_bf16 {vr(Y, 16)}, {vr(ZF + 4 * sg, 4)}, {vr(EF + 4 * sg, 4)}, {'0' if sg == 0 else vr(Y, 16)}")

    XU, PT, TT = 176, 192, 208
    e("s_waitcnt vmcnt(0)")
    ymf(0)
    e(f"s_lshl_b32 s68, s{sWAVE}, 12")
    e(f"s_add_u32 s68, s68, {RED}")
    e(f"v_lshl_add_u32 v91, v{vLANE}, 4, s68")
    e(f"v_xor_b32 v92, 8192, v91")
    e("s_mov_b32 s70, 1.0")
    e("s_mov_b32 s71, 1.0")
    ymf(1)
    e(f"v_mul_f32 v{vR + 1}, {NLOG2E:#x}, v{vR}")
    e("v_mov_b32 v93, 0xffff0000")
    e(f"v_lshlrev_b32 v{XU}, 16, v{XR}")
    e(f"v_and_b32 v{XU + 1}, v93, v{XR}")
    ymf(2)
    for a in range(4):
        e(f"ds_write_b128 v91, {vr(OTH + 4 * a, 4)} offset:{1024 * a}")
        if a & 1:
            ymf(3 + (a >> 1))
    for k in range(1, 8):
        e(f"v_lshlrev_b32 v{XU + 2 * k}, 16, v{XR + k}")
        e(f"v_and_b32 v{XU + 2 * k + 1}, v93, v{XR + k}")
        if k in (2, 4):
            ymf(5 + (k >> 2))
    e("s_waitcnt lgkmcnt(0)")
    e("s_barrier")
    for a in range(4):
        e(f"ds_read_b128 {vr(PT + 4 * a, 4)}, v92 offset:{1024 * a}")
    ymf(7)
    e("s_waitcnt lgkmcnt(0)")
    rr = vr(vR, 2)
    L.append(".p2align 3")
    for k in range(8):
        e(f"v_pk_add_f32 {vr(OWN + 2 * k, 2)}, {vr(OWN + 2 * k, 2)}, {vr(PT + 2 * k, 2)}")
    for k in range(8):
        e(f"v_pk_mul_f32 {vr(TT + 2 * k, 2)}, {vr(OWN + 2 * k, 2)}, {rr} op_sel:[0,1] op_sel_hi:[1,1]")
    for k in range(16):
        e(f"v_exp_f32 v{TT + k}, v{TT + k}")
    for k in range(8):
        e(f"v_pk_add_f32 {vr(TT + 2 * k, 2)}, {vr(TT + 2 * k, 2)}, s[70:71]")
    for k in range(16):
        e(f"v_rcp_f32 v{TT + k}, v{TT + k}")
    for k in range(8):
        e(f"v_pk_mul_f32 {vr(OWN + 2 * k, 2)}, {vr(OWN + 2 * k, 2)}, {rr} op_sel_hi:[1,0]")
    for k in range(8):
        e(f"v_pk_mul_f32 {vr(OWN + 2 * k, 2)}, {vr(OWN + 2 * k, 2)}, {vr(TT + 2 * k, 2)}")
    for k in range(8):
        e(f"v_pk_fma_f32 {vr(OWN + 2 * k, 2)}, {vr(OWN + 2 * k, 2)}, {vr(Y + 2 * k, 2)}, {vr(XU + 2 * k, 2)}")
    for k in range(8):
        e(f"v_cvt_pk_bf16_f32 v{TT + k}, v{OWN + 2 * k}, v{OWN + 2 * k + 1}")
    of = " sc1" if OPT.get("osc1") else ""
    e(f"buffer_store_dwordx4 {vr(TT, 4)}, v{vXO}, {srd(SRD_OUT)}, s{sXO} offen{of}")
    e(f"buffer_store_dwordx4 {vr(TT + 4, 4)}, v{vXO}, {srd(SRD_OUT)}, s{sXO} offen offset:16{of}")
    stamp_flush(8, 64, vLOOPST)
    if OPT.get("rabs"):
        lab(f"DLY{tg}")
        e("s_memrealtime s[82:83]")
        e("s_waitcnt lgkmcnt(0)")
        e("s_sub_u32 s82, s82, s98")
        e(f"s_cmp_lt_u32 s82, {OPT['rabs']}")
        e(f"s_cbranch_scc1 DLY{tg}")
    e("s_endpgm")


def cwave():
    lab("CWAVE")
    cm("================ C waves: matrix work ================")
    e("s_setprio 2")
    e(f"v_mov_b32 v{vLANE}, v0")
    e("v_and_b32 v2, 31, v0")
    e("v_lshrrev_b32 v3, 5, v0")
    e("v_bfe_u32 v4, v0, 1, 3")
    e("v_lshlrev_b32 v5, 7, v2")
    e(f"v_add_u32 v5, {SLOT + 32768}, v5")
    for u in range(4):
        e(f"v_add_u32 v6, {2 * u}, v3")
        e("v_xor_b32 v6, v6, v4")
        e(f"v_lshl_add_u32 v{XA[u]}, v6, 4, v5")
    e("v_bfe_u32 v4, v0, 2, 2")
    e(f"v_lshlrev_b32 v{WA}, 12, v3")
    e(f"v_lshl_add_u32 v{WA}, v4, 8, v{WA}")
    e(f"v_xor_b32 v4, s{sWAVE}, v4")
    e(f"v_lshl_add_u32 v{WA}, v4, 6, v{WA}")
    e("v_bfe_u32 v4, v0, 4, 1")
    e(f"v_lshl_add_u32 v{WA}, v4, 5, v{WA}")
    e("v_and_b32 v4, 3, v0")
    e(f"v_lshl_add_u32 v{WA}, v4, 3, v{WA}")
    e(f"v_add_u32 v{WA}, {SLOT}, v{WA}")
    e(f"s_lshl_b32 s64, s{sWAVE}, 7")
    e(f"s_add_u32 s64, s64, {CSL}")
    e(f"v_lshl_add_u32 v{vA_CS}, v3, 4, s64")
    e(f"v_lshlrev_b32 v{vA_MR}, 3, v2")
    e(f"v_add_u32 v{vA_MR}, {MRP}, v{vA_MR}")
    e(f"v_mov_b32 v{vA_TAG}, {TAGL}")
    e(f"v_lshl_add_u32 v{vD_CS}, v2, 2, s64")
    e(f"v_lshlrev_b32 v{vD_R}, 4, v3")
    e(f"v_add_u32 v{vD_R}, {RL}, v{vD_R}")
    e(f"v_mov_b32 v{vD_TAG}, {TAGL}")
    for r in range(128, 256):
        e(f"v_mov_b32 v{r}, 0")
    srd_finish()
    e(f"s_and_b32 s{sP}, s{sWAVE}, 1")
    e(f"s_lshr_b32 s{sKH}, s{sWAVE}, 1")
    e(f"s_lshl_b32 s68, s{sP}, 5")
    e(f"s_add_u32 s68, s68, s{sT1}")
    e(f"s_lshl_b32 s{sXO}, s68, 10")
    e(f"s_lshl_b32 s68, s{sCB}, 7")
    e(f"s_add_u32 s{sXO}, s{sXO}, s68")
    e(f"s_lshl_b32 s68, s{sKH}, 6")
    e(f"s_add_u32 s{sXO}, s{sXO}, s68")
    e(f"s_sub_u32 s69, 32, s{sT1}")
    e("s_and_b32 s69, s69, 31")
    e(f"s_cmp_ge_u32 s{sCB}, 4")
    e(f"s_cselect_b32 s69, s69, s{sT1}")
    e(f"s_lshl_b32 s{sZ}, s69, 16")
    e(f"s_add_u32 s{sZ}, s{sZ}, {Z_OFF}")
    e(f"s_mov_b32 s{sFZ}, {FLZ}")
    e(f"s_cmp_eq_u32 s{sT1}, 0")
    e(f"s_cselect_b32 s{sC0}, 64, 63")
    e(f"s_lshr_b32 s68, s{sT1}, 1")
    e("s_lshl_b32 s68, s68, 11")
    e(f"s_add_u32 s{sPOLL}, s68, {FLH}")
    e(f"s_and_b32 s70, s{sT1}, 1")
    e(f"s_lshl_b32 s71, s{sP}, 1")
    e("s_add_u32 s70, s70, s71")
    e("s_lshl_b32 s70, s70, 9")
    e("s_add_u32 s68, s68, s70")
    e(f"s_add_u32 s{sRO}, s68, {ST_OFF}")
    e(f"s_lshl_b32 s68, s{sT1}, 2")
    e("s_add_u32 s68, s68, s71")
    e(f"s_add_u32 s68, s68, s{sKH}")
    e(f"s_mul_i32 s68, s68, {56 * 1024}")
    rot_offsets(10, "s68")
    e(f"s_lshl_b32 s64, s{sI}, 4")
    e(f"s_add_u32 s64, s64, s{sJ}")
    e("s_lshl_b32 s64, s64, 7")
    e(f"s_add_u32 s{sFLG}, s64, {FLH}")
    e(f"s_cmp_eq_u32 s{sDFT}, 1")
    e("s_cbranch_scc1 CDFT")
    e(f"s_lshl_b32 s64, s{sJ}, 2")
    e(f"s_add_u32 s64, s64, s{sWAVE}")
    e("s_lshl_b32 s64, s64, 10")
    e(f"s_mul_i32 s65, s{sI}, {2 * 4 * 56 * 1024}")
    e(f"s_add_u32 s{sOUT}, s64, s65")
    stamp(1)
    e("s_barrier")
    mainloop(False)
    stamp(2)
    glu_epilogue()
    phase2(False)
    lab("CDFT")
    e(f"s_lshl_b32 s64, s{sI}, 12")
    e(f"s_and_b32 s65, s{sJ}, 1")
    e("s_lshl_b32 s66, s65, 11")
    e("s_add_u32 s64, s64, s66")
    e(f"s_lshl_b32 s66, s{sWAVE}, 9")
    e("s_add_u32 s64, s64, s66")
    e(f"s_add_u32 s{sOUT}, s64, {Z_OFF}")
    dft_prologue()
    stamp(1)
    e("s_barrier")
    for k in range(16):
        e(f"ds_read_b128 {vr(4 * k, 4)}, v119 offset:{1024 * k}")
    mainloop(True)
    stamp(2)
    dft_epilogue()
    phase2(True)


hdr = open("cdna_kernels/" + NAME + ".s.ref").read().split("\n")
head = [l for l in hdr if l.startswith(";") and "@launch" not in l and "Override launch" not in l and "grid=ceil" not in l]
out = head + ["; @launch grid=(256,1,1) block=(512,1,1) lds=163840",
              '.amdgcn_target "amdgcn-amd-amdhsa--gfx950"', ".text", f".globl {K}", ".p2align 8", f".type {K},@function", f"{K}:"]
prologue()
l01wave()
l2wave()
l3wave()
cwave()
lab("END")
e("s_endpgm")
out += L
out += ['.section .rodata,"a"', ".p2align 6", f".amdhsa_kernel {K}", "  .amdhsa_next_free_vgpr 256", "  .amdhsa_next_free_sgpr 102",
        "  .amdhsa_accum_offset 256", "  .amdhsa_group_segment_fixed_size 0", "  .amdhsa_kernarg_size 96",
        "  .amdhsa_user_sgpr_count 2", "  .amdhsa_user_sgpr_kernarg_segment_ptr 1", "  .amdhsa_system_sgpr_workgroup_id_x 1",
        ".end_amdhsa_kernel", ""]
open(sys.argv[1], "w").write("\n".join(out))
```

```python
import sys

NAME = "recurrent_scan__spectral_fnet__glu_gated_glu__prompt"
OPT = dict(map48=1, prof=0, D=12, D0=6, wt=0, t0=0, mt=0, sp=1, ct=1, rot=1, pre=8, th=0, trk=0, ua=30, slp=2, spin=200000)
for a in sys.argv[2:]:
    k, v = a.split("=")
    OPT[k] = int(v)
PROF = OPT["prof"]
K = NAME + "_kernel"
D = OPT["D"]

H_OFF, Z_OFF, ST_OFF, CS_OFF = 0, 0x800000, 0xA00000, 0xA10000
FLR, FLC, FLH, FLZ, PROF_OFF, WS_SIZE = 0xA40000, 0xA48000, 0xA50000, 0xA58000, 0xA60000, 0xB00000
vLOOPST = 121
SLOT = 49152
MISC = 147456
CSL, MRP, RL, NMRL, TAGL, CNTL = MISC, MISC + 1024, MISC + 2048, MISC + 2560, MISC + 3072, MISC + 3076
RED = 20 * 4096
NRES = 39


def wslot(v):
    return v if v < 36 else v + 1 if v < NRES else v - NRES

LOG2E = 0x3FB8AA3B
NLOG2E = 0xBFB8AA3B


def f2u(x):
    import struct
    return struct.unpack("<I", struct.pack("<f", x))[0]


L = []


def e(s):
    L.append("    " + s)


def lab(s):
    L.append(s + ":")


def cm(s):
    L.append("    ; " + s)


def vr(a, n):
    return f"v[{a}:{a + n - 1}]"


SRD_X, SRD_W0, SRD_W1, SRD_WD, SRD_WS, SRD_OUT, SRD_DBG, SRD_WM = 4, 8, 12, 16, 20, 24, 28, 32
sWAVE, sI, sJ, sT1, sCB, sRS, sCOL, sDFT, sTAG, sIDX, sK4 = 36, 37, 38, 39, 40, 41, 42, 43, 44, 45, 46
sSTAMP = 80
nstamp = [0]


def srd(n):
    return f"s[{n}:{n + 3}]"


def stamp(i):
    if PROF:
        e(f"{'s_memrealtime' if PROF == 2 else 's_memtime'} s[{sSTAMP + 2 * i}:{sSTAMP + 2 * i + 1}]")


def stamp_flush(n, vt, loopst=False):
    if not PROF:
        return
    e("s_waitcnt lgkmcnt(0)")
    for i in range(8):
        e(f"v_mov_b32 v{vt + i}, s{sSTAMP + 2 * i}" if i < n else f"v_mov_b32 v{vt + i}, 0")
    e(f"s_lshl_b32 s78, s2, 3")
    e(f"s_add_u32 s78, s78, s{sWAVE}")
    e(f"s_lshl_b32 s78, s78, 8")
    e(f"s_add_u32 s78, s78, {PROF_OFF}")
    e(f"v_mov_b32 v{vt + 8}, 0")
    e(f"buffer_store_dwordx4 {vr(vt, 4)}, v{vt + 8}, {srd(SRD_WS)}, s78 offen")
    e(f"buffer_store_dwordx4 {vr(vt + 4, 4)}, v{vt + 8}, {srd(SRD_WS)}, s78 offen offset:16")
    if loopst:
        e(f"v_lshlrev_b32 v{vt + 9}, 2, v{vLANE if loopst == vLOOPST else 0}")
        e(f"v_min_u32 v{vt + 9}, 124, v{vt + 9}")
        e(f"buffer_store_dword v{loopst}, v{vt + 9}, {srd(SRD_WS)}, s78 offen offset:64")
    e(f"s_memrealtime s[76:77]")
    e("s_waitcnt lgkmcnt(0)")
    e(f"v_mov_b32 v{vt}, s98")
    e(f"v_mov_b32 v{vt + 1}, s76")
    e(f"buffer_store_dwordx2 {vr(vt, 2)}, v{vt + 8}, {srd(SRD_WS)}, s78 offen offset:32")


uid = [0]
vLST = 250


QUIET = [False]


def lbar():
    if PROF and not QUIET[0]:
        e("s_memtime s[96:97]")
        e("s_mov_b32 s100, m0")
        e("s_mov_b32 m0, s79")
        e("s_waitcnt lgkmcnt(0)")
        e(f"v_writelane_b32 v{vLST}, s96, m0")
        e("s_mov_b32 m0, s100")
        e("s_cselect_b32 s101, 1, 0")
        e("s_add_u32 s79, s79, 1")
        e("s_cmp_eq_u32 s101, 1")
    e("s_barrier")


def poll_issue(vdst, vaddr, ssoff, srdn, n=1):
    op = "buffer_load_dword" if n == 1 else "buffer_load_dwordx2"
    d = f"v{vdst}" if n == 1 else vr(vdst, 2)
    e(f"{op} {d}, v{vaddr}, {srd(srdn)}, {ssoff} offen sc1")


def poll_wait(vdst, vaddr, ssoff, srdn, cond_tag=True, n=1, first_wait=0):
    uid[0] += 1
    k = uid[0]
    e(f"s_mov_b32 s75, {OPT['spin']}")
    e(f"s_waitcnt vmcnt({first_wait})")
    lab(f"POLL{k}")
    if cond_tag:
        e(f"v_cmp_ne_u32 vcc, s{sTAG}, v{vdst}")
        if n == 2:
            e(f"v_cmp_ne_u32 s[76:77], s{sTAG}, v{vdst + 1}")
            e("s_nop 0")
            e("s_or_b64 vcc, vcc, s[76:77]")
    else:
        e(f"v_cmp_eq_u32 vcc, 0, v{vdst}")
    e("s_nop 1")
    e("s_cmp_eq_u64 vcc, 0")
    e(f"s_cbranch_scc1 POLLD{k}")
    if OPT["slp"]:
        e(f"s_sleep {OPT['slp']}")
    poll_issue(vdst, vaddr, ssoff, srdn, n)
    e("s_sub_u32 s75, s75, 1")
    e("s_cmp_lg_u32 s75, 0")
    e("s_waitcnt vmcnt(0)")
    e(f"s_cbranch_scc1 POLL{k}")
    lab(f"POLLD{k}")


def srd_finish():
    e("s_waitcnt lgkmcnt(0)")
    e(f"s_cmp_eq_u32 s{sDFT}, 1")
    e("s_cselect_b64 s[8:9], s[48:49], s[52:53]")
    e("s_cselect_b64 s[12:13], s[50:51], s[54:55]")
    e("s_mov_b64 s[16:17], s[56:57]")
    e("s_mov_b64 s[24:25], s[58:59]")
    e("s_mov_b64 s[28:29], s[60:61]")
    e("s_mov_b64 s[20:21], s[62:63]")


def prologue():
    e("s_cmp_ge_u32 s2, 256")
    e("s_cbranch_scc1 END")
    e("s_load_dwordx2 s[4:5], s[0:1], 0")
    e("s_load_dwordx4 s[48:51], s[0:1], 24")
    e("s_load_dwordx8 s[52:59], s[0:1], 48")
    e("s_load_dwordx4 s[60:63], s[0:1], 80")
    if PROF or OPT.get("rabs"):
        e("s_memrealtime s[98:99]")
    stamp(0)
    if PROF:
        e("s_mov_b32 s79, 0")
    e("v_lshrrev_b32 v1, 6, v0")
    e("v_and_b32 v0, 63, v0")
    e(f"s_lshr_b32 s{sIDX}, s2, 3")
    e(f"v_readfirstlane_b32 s{sWAVE}, v1")
    if OPT["map48"]:
        e("s_and_b32 s64, s2, 3")
        e("s_lshl_b32 s64, s64, 2")
        e(f"s_and_b32 s65, s{sIDX}, 3")
        e(f"s_add_u32 s{sI}, s64, s65")
        e("s_bfe_u32 s64, s2, 0x10002")
        e(f"s_lshr_b32 s{sK4}, s{sIDX}, 2")
        e("s_mul_i32 s65, s64, 7")
        e(f"s_add_u32 s65, s65, s{sK4}")
        e("s_add_u32 s66, s64, 14")
        e(f"s_cmp_eq_u32 s{sK4}, 7")
        e(f"s_cselect_b32 s{sJ}, s66, s65")
    else:
        e("s_and_b32 s64, s2, 1")
        e("s_lshl_b32 s64, s64, 3")
        e(f"s_and_b32 s65, s{sIDX}, 7")
        e(f"s_add_u32 s{sI}, s64, s65")
        e("s_bfe_u32 s64, s2, 0x20001")
        e(f"s_lshr_b32 s{sK4}, s{sIDX}, 3")
        e("s_mul_i32 s65, s64, 3")
        e(f"s_add_u32 s65, s65, s{sK4}")
        e("s_add_u32 s66, s64, 14")
        e(f"s_cmp_eq_u32 s{sK4}, 3")
        e("s_cselect_b32 s65, s66, s65")
        e("s_lshl_b32 s66, s64, 2")
        e(f"s_add_u32 s66, s66, s{sK4}")
        e("s_sub_u32 s66, s66, 2")
        e("s_cmp_lt_u32 s64, 2")
        e(f"s_cselect_b32 s{sJ}, s65, s66")
    e("s_and_b32 s64, s2, 7")
    e("s_lshl_b32 s64, s64, 2")
    e(f"s_and_b32 s65, s{sIDX}, 3")
    e(f"s_add_u32 s{sT1}, s64, s65")
    e(f"s_lshr_b32 s{sCB}, s{sIDX}, 2")
    e(f"s_lshl_b32 s{sCOL}, s{sJ}, 8")
    e(f"s_sub_u32 s64, s{sCOL}, {14 * 256}")
    e(f"s_movk_i32 s{sRS}, 3584")
    e(f"s_cmp_ge_u32 s{sJ}, 14")
    e(f"s_cselect_b32 s{sDFT}, 1, 0")
    e(f"s_cselect_b32 s{sRS}, 1024, s{sRS}")
    e(f"s_cselect_b32 s{sCOL}, s64, s{sCOL}")
    e(f"s_lshl_b32 s10, s{sRS}, 9")
    e("s_mov_b32 s14, s10")
    e("s_mov_b32 s6, 0x200000")
    e("s_mov_b32 s7, 0x20000")
    e("s_mov_b32 s11, 0x20000")
    e("s_mov_b32 s15, 0x20000")
    e(f"s_mov_b32 s18, {1792 * 1024}")
    e("s_mov_b32 s19, 0x20000")
    e(f"s_mov_b32 s22, {WS_SIZE}")
    e("s_mov_b32 s23, 0x20000")
    e("s_mov_b32 s26, 0x200000")
    e("s_mov_b32 s27, 0x20000")
    e("s_mov_b32 s30, 256")
    e("s_mov_b32 s31, 0x20000")
    e("s_mov_b32 s34, s10")
    e("s_mov_b32 s35, 0x20000")
    e(f"s_cmp_lt_u32 s{sWAVE}, 4")
    e("s_cbranch_scc1 CWAVE")
    e(f"s_cmp_eq_u32 s{sWAVE}, 6")
    e("s_cbranch_scc1 L2WAVE")
    e(f"s_cmp_eq_u32 s{sWAVE}, 7")
    e("s_cbranch_scc1 L3WAVE")


def wd_voffset(vd, vt):
    e(f"v_lshrrev_b32 v{vt}, 3, v0")
    e(f"v_lshlrev_b32 v{vd}, 10, v{vt}")
    e(f"v_bfe_u32 v{vt}, v0, 4, 1")
    e(f"v_lshlrev_b32 v{vt}, 2, v{vt}")
    e(f"v_and_b32 v{vt + 1}, 7, v0")
    e(f"v_xor_b32 v{vt}, v{vt}, v{vt + 1}")
    e(f"v_lshl_add_u32 v{vd}, v{vt}, 4, v{vd}")


def rot_offsets(shift, add=None):
    for k in range(8):
        if OPT["rot"]:
            e(f"s_add_u32 s{48 + k}, s{sCB}, {k}")
            e(f"s_and_b32 s{48 + k}, s{48 + k}, 7")
            e(f"s_lshl_b32 s{48 + k}, s{48 + k}, {shift}")
        else:
            e(f"s_mov_b32 s{48 + k}, {k << shift}")
        if add:
            e(f"s_add_u32 s{48 + k}, s{48 + k}, {add}")


def wait_c_done():
    uid[0] += 1
    k = uid[0]
    e(f"v_mov_b32 v7, {CNTL}")
    e(f"s_mov_b32 s75, {OPT['spin']}")
    lab(f"CW{k}")
    e("ds_read_b32 v8, v7")
    e("s_waitcnt lgkmcnt(0)")
    e("v_readfirstlane_b32 s76, v8")
    e("s_sub_u32 s75, s75, 1")
    e("s_cmp_eq_u32 s75, 0")
    e(f"s_cbranch_scc1 CWD{k}")
    e("s_sleep 1")
    e("s_cmp_lt_u32 s76, 4")
    e(f"s_cbranch_scc1 CW{k}")
    lab(f"CWD{k}")


UA = OPT["ua"]
assert 18 < UA < 39
P2BAR = {12: "BPa", 16: "BP1", UA - 2: "BPb", 37: "BP2", 45: "BP3"}


def l3_tail():
    e("v_min_u32 v10, 13, v0")
    e("v_lshlrev_b32 v10, 7, v10")
    e(f"s_lshr_b32 s68, s{sT1}, 1")
    e("s_lshl_b32 s68, s68, 11")
    e(f"s_add_u32 s68, s68, {FLH}")
    e("v_bfe_u32 v12, v0, 1, 4")
    e("v_lshlrev_b32 v12, 4, v12")
    e("v_and_b32 v13, 1, v0")
    e("v_add3_u32 v12, v12, v13, 14")
    e("v_lshlrev_b32 v12, 7, v12")
    e(f"s_mov_b32 s69, {FLH}")
    wait_c_done()
    poll_issue(11, 10, "s68", SRD_WS)
    poll_wait(11, 10, "s68", SRD_WS)
    stamp(4)
    lbar()
    lbar()
    lbar()
    poll_issue(11, 12, "s69", SRD_WS)
    lbar()
    poll_wait(11, 12, "s69", SRD_WS)
    stamp(5)
    stamp(6)
    lbar()
    stamp_flush(7, 8, vLST)
    e("s_endpgm")


def l01wave():
    vX0, vX1, vW, vWD = 2, 3, 4, 5
    sLW, sXa, sXb, sWo, sS0, sS1, sR4, sT, sCnt, sWd = 64, 65, 66, 67, 68, 69, 70, 71, 72, 73
    cm("================ L0/L1: DMA waves ================")
    QUIET[0] = bool(OPT["sp"])
    e(f"s_sub_u32 s{sLW}, s{sWAVE}, 4")
    e("v_lshrrev_b32 v6, 3, v0")
    e(f"v_lshlrev_b32 v{vX0}, 16, v6")
    e("v_lshrrev_b32 v6, 1, v6")
    e("v_and_b32 v7, 7, v0")
    e("v_xor_b32 v6, v6, v7")
    e(f"v_lshl_add_u32 v{vX0}, v6, 4, v{vX0}")
    e(f"v_xor_b32 v{vX1}, 64, v{vX0}")
    e("v_lshrrev_b32 v6, 4, v0")
    e(f"v_mul_lo_u32 v{vW}, v6, s{sRS}")
    e("v_bfe_u32 v7, v0, 2, 2")
    e("v_xor_b32 v7, v7, v6")
    e("v_lshlrev_b32 v7, 2, v7")
    e("v_and_b32 v8, 3, v0")
    e("v_or_b32 v7, v7, v8")
    e(f"v_lshl_add_u32 v{vW}, v7, 4, v{vW}")
    e(f"s_lshl_b32 s{sXa}, s{sI}, 1")
    e(f"s_add_u32 s{sXa}, s{sXa}, s{sLW}")
    e(f"s_lshl_b32 s{sXa}, s{sXa}, 10")
    e(f"s_add_u32 s{sXb}, s{sXa}, {32 * 1024}")
    e(f"s_mov_b32 s{sWo}, s{sCOL}")
    e(f"s_lshl_b32 s{sR4}, s{sRS}, 2")
    e(f"s_lshl_b32 s74, s{sLW}, 10")
    e(f"s_lshl_b32 s76, s{sLW}, 12")
    wd_voffset(vWD, 6)

    def wpieces(base_sgpr, imm):
        e(f"s_add_u32 s{sT}, s{base_sgpr}, s74")
        e(f"s_add_u32 m0, s{sT}, {imm}")
        e("s_nop 0")
        for k in range(8):
            if not OPT.get("nodma"):
                e(f"buffer_load_dwordx4 v{vW}, {srd(SRD_WM)}, s{sWo} offen lds")
            if k < 7:
                e("s_add_u32 m0, m0, 2048")
            e(f"s_add_u32 s{sWo}, s{sWo}, s{sR4}")

    def xpieces(base_sgpr, half):
        sx = sXb if half else sXa
        e(f"s_add_u32 s{sT}, s{base_sgpr}, s76")
        e(f"s_add_u32 m0, s{sT}, {32768 + half * 8192}")
        e(f"s_mov_b32 s{sT}, s{sx}")
        for k in range(4):
            if not OPT.get("nodma"):
                e(f"buffer_load_dwordx4 v{vX1 if k & 1 else vX0}, {srd(SRD_X)}, s{sT} offen lds")
            if k < 3:
                e("s_add_u32 m0, m0, 1024")
                e(f"s_add_u32 s{sT}, s{sT}, 0x80000")
        e(f"s_add_u32 s{sx}, s{sx}, 128")

    e(f"s_mov_b32 s{sS0}, {SLOT}")
    e(f"s_mov_b32 s{sS1}, {2 * SLOT}")
    srd_finish()
    e(f"s_cmp_eq_u32 s{sLW}, 0")
    e("s_cselect_b64 s[32:33], s[8:9], s[12:13]")
    e("s_lshl_b32 s77, s2, 1")
    e(f"s_add_u32 s77, s77, s{sLW}")
    e("s_lshl_b32 s77, s77, 8")
    e("s_add_u32 s56, s16, s77")
    e("s_addc_u32 s57, s17, 0")

    def swarm(chunk):
        for k in range(4):
            if OPT["sp"]:
                e(f"s_load_dword s58, s[56:57], {chunk * 131072 + 64 * k}")

    cm("G0 = x0 + W0 ; G1 = W1 + x1a")
    xpieces(sS0, 0)
    xpieces(sS0, 1)
    wpieces(sS0, 0)
    wpieces(sS0, 16384)
    xpieces(sS1, 0)
    e(f"s_mov_b32 s{sS0}, {2 * SLOT}")
    e(f"s_mov_b32 s{sS1}, 0")
    swarm(0)
    swarm(1)
    e(f"s_mov_b32 s{sCnt}, 6")
    e(f"s_lshl_b32 s{sT}, s{sCB}, 7")
    rot_offsets(15, f"s{sT}")
    e("s_waitcnt vmcnt(12)")
    stamp(1)
    lbar()
    lab("L01LOOP")
    wpieces(sS0, 0)
    xpieces(sS0, 1)
    swarm(2)
    e("s_waitcnt vmcnt(12)")
    lbar()
    wpieces(sS0, 16384)
    xpieces(sS1, 0)
    swarm(3)
    e("s_add_u32 s56, s56, 262144")
    e("s_addc_u32 s57, s57, 0")
    e(f"s_mov_b32 s{sS0}, s{sS1}")
    e(f"s_add_u32 s{sS1}, s{sS1}, {SLOT}")
    e(f"s_cmp_eq_u32 s{sS1}, {3 * SLOT}")
    e(f"s_cselect_b32 s{sS1}, 0, s{sS1}")
    e(f"s_sub_u32 s{sCnt}, s{sCnt}, 1")
    e(f"s_cmp_lg_u32 s{sCnt}, 0")
    e("s_waitcnt vmcnt(12)")
    lbar()
    e("s_cbranch_scc1 L01LOOP")
    cm("after B12: G14")
    wpieces(sS0, 0)
    xpieces(sS0, 1)
    e("s_waitcnt vmcnt(12)")
    lbar()
    wpieces(sS0, 16384)
    e(f"s_lshl_b32 s{sWd}, s{sLW}, 14")
    e(f"s_lshl_b32 m0, s{sLW}, 11")

    def units(a, b, th=0):
        for v in range(a, b if not OPT.get("nowd") else a):
            if v and v & 7 == 0:
                e(f"s_add_u32 s{sWd}, s{sWd}, 262144")
            e(f"s_add_u32 s{sT}, s{sWd}, s{48 + (v & 7)}")
            e(f"buffer_load_dwordx4 v{vWD}, {srd(SRD_WD)}, s{sT} offen lds")
            e("s_add_u32 m0, m0, 1024")
            e(f"s_add_u32 s{sT}, s{sT}, 8192")
            e(f"buffer_load_dwordx4 v{vWD}, {srd(SRD_WD)}, s{sT} offen lds")
            d = (wslot(v + 1) - wslot(v)) * 4096 - 1024
            e(f"s_add_u32 m0, m0, {d}" if d > 0 else f"s_sub_u32 m0, m0, {-d}")
            if th:
                e(f"s_waitcnt vmcnt({th})")

    units(0, 2)
    e("s_waitcnt vmcnt(12)")
    lbar()
    units(2, 8)
    e("s_waitcnt vmcnt(16)")
    lbar()
    units(8, 14)
    stamp(2)
    lbar()
    QUIET[0] = False
    TR = 14 + OPT["trk"]
    units(14, TR, OPT["th"])
    e(f"s_cmp_eq_u32 s{sDFT}, 1")
    e("s_cbranch_scc1 L01GO")
    wait_c_done()
    lab("L01GO")
    stamp(3)
    units(TR, UA)
    e(f"s_waitcnt vmcnt({2 * (UA - 14)})")
    stamp(4)
    lbar()
    units(UA, NRES)
    e(f"s_waitcnt vmcnt({2 * (NRES - UA)})")
    lbar()
    lbar()
    units(NRES, 47)
    e(f"s_waitcnt vmcnt({2 * (47 - NRES)})")
    stamp(5)
    lbar()
    units(47, 56)
    e(f"s_waitcnt vmcnt({2 * (56 - 47)})")
    stamp(6)
    lbar()
    e("s_waitcnt vmcnt(0)")
    lbar()
    stamp_flush(7, 8, vLST)
    e("s_endpgm")


def l2wave():
    vA, vDum, vTD, vC = 2, 6, 7, 8
    lab("L2WAVE")
    cm("================ L2: cache warming touches, column sums ================")
    if OPT.get("lprio"):
        e(f"s_setprio {OPT['lprio']}")
    e(f"s_and_b32 s64, s{sK4}, 1")
    e(f"s_lshr_b32 s65, s{sK4}, 1")
    e("s_lshl_b32 s65, s65, 5")
    e(f"s_lshl_b32 s66, s{sI}, 1")
    e("s_add_u32 s64, s64, s65")
    e("s_add_u32 s64, s64, s66")
    e("s_lshl_b32 s64, s64, 10")
    e("v_lshl_add_u32 v10, v0, 16, s64")
    e(f"s_and_b32 s65, s{sI}, 7")
    e("s_lshl_b32 s65, s65, 3")
    e("v_bfe_u32 v11, v0, 2, 3")
    e("v_add_u32 v11, s65, v11")
    e(f"v_mul_lo_u32 v11, v11, s{sRS}")
    e("v_and_b32 v12, 1, v0")
    e("v_lshl_add_u32 v11, v12, 7, v11")
    e(f"v_add_u32 v11, s{sCOL}, v11")
    e("v_cmp_lt_u32 vcc, 31, v0")
    e("v_and_b32 v12, 2, v0")
    e("v_cmp_ne_u32 s[66:67], 0, v12")
    e("v_cndmask_b32 v10, v10, v11, vcc")
    e("v_mov_b32 v11, 0")
    e("v_lshrrev_b32 v18, 3, v0")
    e("v_and_b32 v19, 7, v0")
    e(f"v_lshlrev_b32 v{vTD}, 10, v18")
    e(f"v_lshl_add_u32 v{vTD}, v19, 7, v{vTD}")
    e("v_mov_b32 v18, 0x40000000")
    e(f"v_cndmask_b32 v{vTD}, v{vTD}, v18, vcc")
    e(f"s_lshl_b32 s71, s{sIDX}, 12")
    e("v_lshrrev_b32 v18, 3, v0")
    e("v_and_b32 v19, 7, v0")
    e(f"v_mul_lo_u32 v{vC}, v18, s{sRS}")
    e(f"v_lshl_add_u32 v{vC}, v19, 4, v{vC}")
    e(f"s_lshr_b32 s64, s{sI}, 2")
    e("s_lshl_b32 s64, s64, 4")
    e(f"s_mul_i32 s69, s64, s{sRS}")
    e(f"s_and_b32 s64, s{sI}, 1")
    e("s_lshl_b32 s64, s64, 7")
    e("s_add_u32 s69, s69, s64")
    e(f"s_add_u32 s69, s69, s{sCOL}")
    e(f"s_lshl_b32 s70, s{sRS}, 3")
    e(f"s_mul_i32 s72, s{sRS}, 56")
    srd_finish()
    e(f"s_bitcmp1_b32 s{sI}, 1")
    e("s_cselect_b64 s[32:33], s[12:13], s[8:9]")
    if OPT["t0"]:
        e("v_mov_b32 v14, s8")
        e("v_mov_b32 v15, s9")
        e("v_mov_b32 v16, s12")
        e("v_mov_b32 v17, s13")
        e("v_cndmask_b32 v14, v14, v16, s[66:67]")
        e("v_cndmask_b32 v15, v15, v17, s[66:67]")
        e("v_mov_b32 v16, s4")
        e("v_mov_b32 v17, s5")
        e("v_cndmask_b32 v14, v16, v14, vcc")
        e("v_cndmask_b32 v15, v17, v15, vcc")
        e(f"v_lshl_add_u64 {vr(vA, 2)}, v[10:11], 0, v[14:15]")
        e(f"global_load_dword v{vDum}, {vr(vA, 2)}, off")

    LD = 32
    AC = 16

    def csload(y):
        if OPT.get("nostats"):
            return
        e(f"buffer_load_dwordx4 {vr(LD + 4 * y, 4)}, v{vC}, {srd(SRD_WM)}, s69 offen")
        e(f"s_add_u32 s69, s69, {'s72' if y & 1 else 's70'}")

    def csproc(y):
        for d in range(4 if not OPT.get("nostats") else 0):
            r = LD + 4 * y + d
            if y == 0:
                e(f"v_lshlrev_b32 v{AC + 2 * d}, 16, v{r}")
                e(f"v_and_b32 v{AC + 2 * d + 1}, v9, v{r}")
            else:
                e(f"v_lshlrev_b32 v10, 16, v{r}")
                e(f"v_and_b32 v11, v9, v{r}")
                e(f"v_add_f32 v{AC + 2 * d}, v{AC + 2 * d}, v10")
                e(f"v_add_f32 v{AC + 2 * d + 1}, v{AC + 2 * d + 1}, v11")

    PRE = OPT["pre"]
    for y in range(2 * PRE):
        csload(y)
    e("v_mov_b32 v9, 0xffff0000")
    stamp(1)
    def wtouch():
        if OPT["wt"]:
            e(f"buffer_load_dword v{vDum}, v{vTD}, {srd(SRD_WD)}, s71 offen")
            e("s_add_u32 s71, s71, 131072")

    vm = [("c", y) for y in range(2 * PRE)]
    issued, done = 2 * PRE, 0
    for n in range(8):
        lbar()
        if issued < 16:
            csload(issued)
            csload(issued + 1)
            vm += [("c", issued), ("c", issued + 1)]
            issued += 2
        if n >= 2 and OPT["wt"]:
            wtouch()
            vm.append(("t", n))
        if n >= 2:
            k = min(done + 3, 16)
            e(f"s_waitcnt vmcnt({len(vm) - 1 - vm.index(('c', k - 1))})")
            for y in range(done, k):
                csproc(y)
            done = k
    assert done == 16 and issued == 16
    lbar()
    wtouch()
    e(f"v_mov_b32 v12, {TAGL}")
    e("ds_read_b32 v25, v12")
    for k in range(4):
        e(f"v_permlane32_swap_b32 v{AC + k}, v{AC + k + 4}")
    e("s_nop 1")
    for k in range(4):
        e(f"v_add_f32 v{AC + k}, v{AC + k}, v{AC + k + 4}")
    e("s_nop 1")
    for k in range(2):
        e(f"v_permlane16_swap_b32 v{AC + k}, v{AC + k + 2}")
    e("s_nop 1")
    for k in range(2):
        e(f"v_add_f32 v{AC + k}, v{AC + k}, v{AC + k + 2}")
    e("v_and_b32 v10, 7, v0")
    e("v_lshlrev_b32 v10, 3, v10")
    e(f"v_add_f32_dpp v24, v{AC}, v{AC} row_ror:8 row_mask:0xf bank_mask:0x3")
    e(f"v_add_f32_dpp v24, v{AC + 1}, v{AC + 1} row_ror:8 row_mask:0xf bank_mask:0xc")
    e("v_bfe_u32 v11, v0, 5, 1")
    e("v_lshl_add_u32 v10, v11, 2, v10")
    e("v_bfe_u32 v11, v0, 4, 1")
    e("v_lshl_add_u32 v10, v11, 1, v10")
    e("v_bfe_u32 v11, v0, 3, 1")
    e("v_add_u32 v10, v11, v10")
    e("v_lshlrev_b32 v10, 3, v10")
    e(f"s_lshl_b32 s64, s{sJ}, 13")
    e(f"s_add_u32 s64, s64, {CS_OFF}")
    e(f"s_lshl_b32 s65, s{sI}, 9")
    e("s_add_u32 s65, s64, s65")
    e("s_waitcnt lgkmcnt(0)")
    e(f"buffer_store_dwordx2 v[24:25], v10, {srd(SRD_WS)}, s65 offen sc1")
    e(f"v_readfirstlane_b32 s{sTAG}, v25")
    stamp(2)
    e("v_lshlrev_b32 v10, 5, v0")
    e("s_add_u32 s65, s64, 4096")

    def csget():
        for k in range(8):
            e(f"buffer_load_dwordx4 {vr(32 + 4 * k, 4)}, v10, {srd(SRD_WS)}, {'s65' if k >= 4 else 's64'} offen offset:{2048 * ((k >> 1) & 1) + 16 * (k & 1)} sc1")

    for n in range(9, 14):
        lbar()
        if n < 13:
            wtouch()
        if 10 <= n < 13:
            wtouch()
    csget()
    lbar()
    e(f"s_mov_b32 s75, {OPT['spin']}")
    lab("CSCHK")
    e("s_waitcnt vmcnt(0)")
    for k in range(16):
        e(f"v_xor_b32 v{64 + k}, s{sTAG}, v{33 + 2 * k}")
    e("v_or_b32 v12, v64, v65")
    for k in range(1, 8):
        e(f"v_or3_b32 v12, v12, v{64 + 2 * k}, v{65 + 2 * k}")
    e("v_cmp_ne_u32 vcc, 0, v12")
    e("s_nop 1")
    e("s_cmp_eq_u64 vcc, 0")
    e("s_cbranch_scc1 CSOK")
    csget()
    e("s_sub_u32 s75, s75, 1")
    e("s_cmp_lg_u32 s75, 0")
    e("s_cbranch_scc1 CSCHK")
    e("s_waitcnt vmcnt(0)")
    lab("CSOK")
    e("v_lshlrev_b32 v10, 4, v0")
    e(f"v_add_u32 v10, {CSL}, v10")
    for d in range(4):
        e(f"v_add_f32 v{16 + d}, v{32 + 2 * d}, v{40 + 2 * d}")
        e(f"v_add_f32 v{20 + d}, v{48 + 2 * d}, v{56 + 2 * d}")
    for d in range(4):
        e(f"v_add_f32 v{16 + d}, v{16 + d}, v{20 + d}")
    e("ds_write_b128 v10, v[16:19]")
    lbar()
    e("s_waitcnt lgkmcnt(0)")
    stamp(3)
    lbar()
    for k in range(4, 7):
        stamp(k)
    stamp_flush(7, 8, vLST)
    e("s_endpgm")


def l3wave():
    lab("L3WAVE")
    cm("================ L3: launch tag, row statistics ================")
    if OPT.get("lprio"):
        e(f"s_setprio {OPT['lprio']}")
    if OPT["ct"]:
        e("s_getpc_b64 s[64:65]")
        lab("PCREF")
        e(f"s_sub_u32 s64, s64, PCREF-{K}")
        e("s_subb_u32 s65, s65, 0")
        e("v_and_b32 v2, 7, v0")
        e(f"s_lshl_b32 s66, s{sIDX}, 3")
        e("v_add_u32 v2, s66, v2")
        e("v_lshlrev_b32 v2, 7, v2")
        e(f"v_min_u32 v2, END-{K}, v2")
        e("global_load_dword v8, v2, s[64:65]")
    e(f"s_bfe_u32 s64, s{sJ}, 0x10002")
    e(f"s_bfe_u32 s65, s{sJ}, 0x10003")
    e("s_lshl_b32 s65, s65, 5")
    e(f"s_lshl_b32 s66, s{sI}, 1")
    e("s_add_u32 s64, s64, s65")
    e("s_add_u32 s64, s64, s66")
    e(f"s_and_b32 s65, s{sJ}, 3")
    e("s_lshl_b32 s65, s65, 9")
    e("s_add_u32 s64, s64, s65")
    e("s_lshl_b32 s64, s64, 10")
    e("v_lshrrev_b32 v4, 3, v0")
    e("v_and_b32 v14, 7, v0")
    e("v_lshlrev_b32 v6, 16, v4")
    e("v_lshl_add_u32 v6, v14, 4, v6")
    e("v_mov_b32 v9, 0xffff0000")
    e("s_memrealtime s[66:67]")
    srd_finish()
    e("v_mov_b32 v2, 0")
    e("s_cmp_lg_u32 s2, 0")
    e("s_cbranch_scc1 L3NOTAG")
    e("s_or_b32 s66, s66, 1")
    e("v_mov_b32 v3, s66")
    e(f"buffer_store_dword v3, v2, {srd(SRD_DBG)}, 0 offen sc1")
    lab("L3NOTAG")
    LD, UP = 16, 64
    PRE = OPT["pre"]

    def rowload(y):
        e(f"buffer_load_dwordx4 {vr(LD + 4 * y, 4)}, v6, {srd(SRD_X)}, s64 offen offset:{128 * y}")

    for y in range(PRE):
        rowload(y)

    def unp(d):
        if OPT.get("nostats"):
            return
        e(f"v_lshlrev_b32 v{UP + 2 * d}, 16, v{LD + d}")
        e(f"v_and_b32 v{UP + 2 * d + 1}, v9, v{LD + d}")
        if d == 0:
            e(f"v_mov_b32 v10, v{UP}")
            e(f"v_mov_b32 v11, v{UP + 1}")
        else:
            e(f"v_add_f32 v10, v10, v{UP + 2 * d}")
            e(f"v_add_f32 v11, v11, v{UP + 2 * d + 1}")

    def red8(r):
        e("s_nop 1")
        e(f"v_add_f32_dpp v{r}, v{r}, v{r} quad_perm:[1,0,3,2] row_mask:0xf bank_mask:0xf")
        e("s_nop 1")
        e(f"v_add_f32_dpp v{r}, v{r}, v{r} quad_perm:[2,3,0,1] row_mask:0xf bank_mask:0xf")
        e("s_nop 1")
        e(f"v_add_f32_dpp v{r}, v{r}, v{r} row_half_mirror row_mask:0xf bank_mask:0xf")

    def var(k):
        if OPT.get("nostats"):
            return
        e(f"v_sub_f32 v{UP + k}, v{UP + k}, v10")
        e(f"v_fmac_f32 v{12 + (k & 1)}, v{UP + k}, v{UP + k}")

    issued, done = PRE, 0
    for n in range(6):
        lbar()
        if issued < 8:
            rowload(issued)
            issued += 1
        if n >= 2:
            k = min(done + 2, 8)
            e(f"s_waitcnt vmcnt({issued - k})")
            for d in range(4 * done, 4 * k):
                unp(d)
            done = k
    assert done == 8 and issued == 8
    poll_issue(3, 2, "0", SRD_DBG)
    e("v_add_f32 v10, v10, v11")
    red8(10)
    e(f"v_mul_f32 v10, {f2u(1.0 / 512):#x}, v10")
    e("v_mov_b32 v12, 0")
    e("v_mov_b32 v13, 0")
    lbar()
    for k in range(24):
        var(k)
    lbar()
    poll_wait(3, 2, "0", SRD_DBG, cond_tag=False)
    e(f"v_mov_b32 v15, {TAGL}")
    e("ds_write_b32 v15, v3")
    e("ds_write_b32 v15, v2 offset:4")
    e("ds_write_b32 v15, v2 offset:8")
    e(f"v_readfirstlane_b32 s{sTAG}, v3")
    for k in range(24, 44):
        var(k)
    e("s_waitcnt lgkmcnt(0)")
    lbar()
    for k in range(44, 64):
        var(k)
    e("v_add_f32 v12, v12, v13")
    red8(12)
    e(f"v_mul_f32 v12, {f2u(1.0 / 512):#x}, v12")
    e("v_cvt_pk_bf16_f32 v15, v10, v12")
    e("v_lshlrev_b32 v10, 16, v15")
    e("v_and_b32 v12, v9, v15")
    e(f"v_add_f32 v12, {f2u(1e-5):#x}, v12")
    e("v_cvt_pk_bf16_f32 v12, v12, v12")
    e("v_and_b32 v12, v9, v12")
    e("v_sqrt_f32 v12, v12")
    e("s_nop 0")
    e("v_cvt_pk_bf16_f32 v12, v12, v12")
    e("v_and_b32 v12, v9, v12")
    e("v_rcp_f32 v11, v12")
    e("v_cmp_eq_u32 vcc, 0, v14")
    e("v_lshlrev_b32 v14, 4, v4")
    e("v_mov_b32 v15, 0x40000000")
    e(f"s_lshl_b32 s64, s{sI}, 11")
    e(f"s_add_u32 s64, s64, {ST_OFF}")
    e("v_cndmask_b32 v14, v15, v14, vcc")
    e("v_mov_b32 v16, v10")
    e("v_mov_b32 v17, v11")
    e("v_mov_b32 v18, v3")
    e("v_mov_b32 v19, v3")
    e(f"s_lshl_b32 s65, s{sJ}, 7")
    e("s_add_u32 s65, s64, s65")
    e(f"buffer_store_dwordx4 v[16:19], v14, {srd(SRD_WS)}, s65 offen sc1")
    stamp(1)
    e("v_lshlrev_b32 v10, 5, v0")

    def stget():
        e(f"buffer_load_dwordx4 v[20:23], v10, {srd(SRD_WS)}, s64 offen sc1")
        e(f"buffer_load_dwordx4 v[24:27], v10, {srd(SRD_WS)}, s64 offen offset:16 sc1")

    for n in range(9, 14):
        lbar()
    stget()
    lbar()
    e(f"s_mov_b32 s75, {OPT['spin']}")
    lab("STCHK")
    e("s_waitcnt vmcnt(0)")
    e(f"v_cmp_ne_u32 vcc, s{sTAG}, v23")
    e(f"v_cmp_ne_u32 s[76:77], s{sTAG}, v27")
    e("s_nop 1")
    e("s_or_b64 vcc, vcc, s[76:77]")
    e("s_cmp_eq_u64 vcc, 0")
    e("s_cbranch_scc1 STOK")
    stget()
    e("s_sub_u32 s75, s75, 1")
    e("s_cmp_lg_u32 s75, 0")
    e("s_cbranch_scc1 STCHK")
    e("s_waitcnt vmcnt(0)")
    lab("STOK")
    e("v_lshlrev_b32 v10, 4, v0")
    e(f"v_add_u32 v10, {MRP}, v10")
    e(f"v_lshlrev_b32 v12, 3, v0")
    e(f"v_add_u32 v12, {RL}, v12")
    e("v_mov_b32 v22, v24")
    e("v_mov_b32 v23, v25")
    e("v_mov_b32 v24, v21")
    e("v_mul_f32 v26, v20, v21")
    e("v_mul_f32 v27, v22, v23")
    e("v_xor_b32 v26, 0x80000000, v26")
    e("v_xor_b32 v27, 0x80000000, v27")
    e("ds_write_b128 v10, v[20:23]")
    e("ds_write_b64 v12, v[24:25]")
    e("ds_write_b64 v12, v[26:27] offset:512")
    lbar()
    e("s_waitcnt lgkmcnt(0)")
    stamp(2)
    stamp(3)
    lbar()
    l3_tail()


XF = [[64 + 4 * q for q in range(4)], [80 + 4 * q for q in range(4)]]
WF = [[96, 100], [104, 108]]
XA = [112, 113, 114, 115]
WA = 116
vLANE, vPM = 117, 118


def ACC(mat, q):
    return 128 + 32 * q + 16 * mat


def frag_reads(u, st):
    r = []
    for mat in range(2):
        for a in range(2):
            r.append(f"ds_read_b64_tr_b16 {vr(WF[st][mat] + 2 * a, 2)}, v{WA} offset:{u * 8192 + a * 2048 + mat * 1024}")
    for q in range(4):
        r.append(f"ds_read_b128 {vr(XF[st][q], 4)}, v{XA[u]} offset:{q * 4096}")
    return r


CG, CU, MR = 0, 16, 32
vA_CS, vA_MR, vA_TAG = 45, 46, 47


def glu_stat_reads():
    r = [f"ds_read_b64 {vr(MR + 2 * q, 2)}, v{vA_MR} offset:{256 * q}" for q in range(4)]
    r += [f"ds_read_b128 {vr(CG + 4 * a, 4)}, v{vA_CS} offset:{32 * a}" for a in range(4)]
    r += [f"ds_read_b128 {vr(CU + 4 * a, 4)}, v{vA_CS} offset:{512 + 32 * a}" for a in range(4)]
    r += [f"ds_read_b32 v43, v{vA_TAG}"]
    return r


def mainloop(dft):
    sCnt, sDelta, sCur = 64, 65, 66
    tag = "D" if dft else "G"
    for s in frag_reads(0, 0):
        e(s)
    e(f"s_mov_b32 s{sCnt}, 8")
    e(f"s_mov_b32 s{sCur}, {SLOT}")
    e(f"s_mov_b32 s67, {(-2 * SLOT) & 0xffffffff:#x}")

    def step(u, last):
        st = u & 1
        mf = []
        for mat in ((1, 0) if dft else (0, 1)):
            for q in range(4):
                a, b = (XF[st][q], WF[st][mat]) if dft else (WF[st][mat], XF[st][q])
                mf.append(f"v_mfma_f32_32x32x16_bf16 {vr(ACC(mat, q), 16)}, {vr(a, 4)}, {vr(b, 4)}, {vr(ACC(mat, q), 16)}")
        rd = frag_reads((u + 1) & 3, st ^ 1)
        gaps = [[] for _ in range(8)]
        if u == 3 and not last:
            gaps[0] += [f"v_add_u32 v{WA}, s{sDelta}, v{WA}", f"v_add_u32 v{XA[0]}, s{sDelta}, v{XA[0]}"]
            gaps[5] += [f"v_add_u32 v{XA[1]}, s{sDelta}, v{XA[1]}"]
            gaps[6] += [f"v_add_u32 v{XA[2]}, s{sDelta}, v{XA[2]}", f"v_add_u32 v{XA[3]}, s{sDelta}, v{XA[3]}"]
        if PROF and u in (0, 2):
            gaps[0] += ["s_memtime s[70:71]"]
        if PROF and u in (1, 3):
            gaps[5] += [f"s_lshl_b32 s72, s{sCnt}, 1", f"s_sub_u32 m0, {16 if u == 1 else 15}, s72", f"v_writelane_b32 v{vLOOPST}, s70, m0"]
        if u == 2:
            gaps[5] += [f"s_cmp_eq_u32 s{sCur}, {2 * SLOT}", f"s_cselect_b32 s{sDelta}, s67, {SLOT}"]
            gaps[6] += [f"s_add_u32 s{sCur}, s{sCur}, s{sDelta}", f"s_sub_u32 s{sCnt}, s{sCnt}, 1"]
            gaps[7] += [f"s_cmp_eq_u32 s{sCnt}, 0"]
        if u & 1:
            gaps[0] += ["s_barrier"]
        if dft:
            gaps[0] = [f"v_cndmask_b32 v{WF[st][0] + k}, v{WF[st][0] + k}, v{vPM}, s[68:69]" for k in range(2)] + gaps[0]
            gaps[1] += [f"v_cndmask_b32 v{WF[st][0] + k}, v{WF[st][0] + k}, v{vPM}, s[68:69]" for k in range(2, 4)]
        if last:
            extra = dft_stat_reads() if dft else glu_stat_reads()
            for k, x in enumerate(extra):
                gaps[2 + min(k // 3, 4)].append(x)
        else:
            for k in range(4):
                gaps[k + (1 if (u & 1) else 0)] += rd[2 * k:2 * k + 2]
        e("s_waitcnt lgkmcnt(0)")
        for k in range(8):
            e(mf[k])
            for s in gaps[k]:
                e(s)

    L.append(".p2align 3")
    lab(f"MAIN{tag}")
    for u in range(3):
        step(u, False)
    e(f"s_cbranch_scc1 LAST{tag}")
    step(3, False)
    e(f"s_branch MAIN{tag}")
    lab(f"LAST{tag}")
    step(3, True)


def glu_epilogue():
    e(f"v_lshlrev_b32 v44, 4, v{vLANE}")
    e("v_mov_b32 v42, 0")
    e("s_mov_b32 s66, 1.0")
    e("s_mov_b32 s67, 1.0")
    e("s_waitcnt lgkmcnt(0)")
    e(f"v_readfirstlane_b32 s{sTAG}, v43")
    for q in range(4):
        e(f"v_mul_f32 v{MR + 2 * q + 1}, {NLOG2E:#x}, v{MR + 2 * q + 1}")
    L.append(".p2align 3")
    out = 0
    for q in range(4):
        b, p = q & 1, q >> 1
        mr = vr(MR + 2 * q, 2)
        for z in range(2):
            G = ACC(0, q) + 8 * z
            U = ACC(1, q) + 8 * z
            for k in range(4):
                e(f"v_pk_fma_f32 {vr(G + 2 * k, 2)}, {vr(CG + 8 * z + 2 * k, 2)}, {mr}, {vr(G + 2 * k, 2)} op_sel_hi:[1,0,1] neg_lo:[0,1,0] neg_hi:[0,1,0]")
            for k in range(4):
                e(f"v_pk_mul_f32 {vr(G + 2 * k, 2)}, {vr(G + 2 * k, 2)}, {mr} op_sel:[0,1] op_sel_hi:[1,1]")
            for k in range(8):
                e(f"v_exp_f32 v{G + k}, v{G + k}")
            for k in range(4):
                e(f"v_pk_add_f32 {vr(G + 2 * k, 2)}, {vr(G + 2 * k, 2)}, s[66:67]")
            for k in range(8):
                e(f"v_rcp_f32 v{G + k}, v{G + k}")
            for k in range(4):
                e(f"v_pk_fma_f32 {vr(U + 2 * k, 2)}, {vr(CU + 8 * z + 2 * k, 2)}, {mr}, {vr(U + 2 * k, 2)} op_sel_hi:[1,0,1] neg_lo:[0,1,0] neg_hi:[0,1,0]")
            for k in range(4):
                e(f"v_pk_mul_f32 {vr(U + 2 * k, 2)}, {vr(U + 2 * k, 2)}, {vr(G + 2 * k, 2)}")
            o = 64 + 4 * out
            out += 1
            for k in range(4):
                e(f"v_cvt_pk_bf16_f32 v{o + k}, v{U + 2 * k}, v{U + 2 * k + 1}")
            e(f"s_add_u32 s65, s{sOUT}, {((b * 2 + p) * 2 + z) * 56 * 1024 + H_OFF}")
            e(f"buffer_store_dwordx4 {vr(o, 4)}, v44, {srd(SRD_WS)}, s65 offen{'' if OPT.get('hplain') else ' sc1'}")
    stamp(3)
    lab("PUBLISH")
    e(f"v_mov_b32 v40, {CNTL}")
    e("v_mov_b32 v41, 1")
    e("v_mov_b32 v42, 0")
    e(f"v_mov_b32 v43, s{sTAG}")
    e("s_mov_b64 exec, 1")
    e("s_waitcnt vmcnt(0)")
    e("ds_add_rtn_u32 v41, v40, v41")
    e("s_waitcnt lgkmcnt(0)")
    e("v_readfirstlane_b32 s64, v41")
    e("s_cmp_lg_u32 s64, 3")
    e("s_cbranch_scc1 HNOFLAG")
    e(f"buffer_store_dword v43, v42, {srd(SRD_WS)}, s{sFLG} offen sc1")
    lab("HNOFLAG")
    e("s_mov_b64 exec, -1")
    stamp(4)


def TW(q, cs, z):
    return 16 * q + 8 * cs + 4 * z


def dft_prologue():
    e(f"v_and_b32 v2, 31, v{vLANE}")
    e("v_cvt_f32_u32 v3, v2")
    e(f"v_mul_f32 v3, {f2u(1.0 / 2048):#x}, v3")
    e(f"s_and_b32 s64, s{sWAVE}, 1")
    e(f"s_lshr_b32 s65, s{sWAVE}, 1")
    e("s_lshl_b32 s65, s65, 5")
    e("s_add_u32 s64, s64, s65")
    e(f"s_lshl_b32 s65, s{sI}, 1")
    e("s_add_u32 s64, s64, s65")
    e(f"v_lshrrev_b32 v4, 5, v{vLANE}")
    e("v_lshl_add_u32 v4, v4, 8, s64")
    e("v_cvt_f32_u32 v4, v4")
    e("v_mul_f32 v4, v3, v4")
    e("v_and_b32 v5, 1, v2")
    e("v_mul_u32_u24 v5, 0x8000, v5")
    e("v_lshl_or_b32 v5, v5, 16, v5")
    for jj in range(8):
        c = 64.0 * (8 * (jj >> 2) + (jj & 3))
        e(f"v_fmamk_f32 v{8 + jj}, v3, {f2u(c):#x}, v4")
    for jj in range(8):
        e(f"v_fract_f32 v{8 + jj}, v{8 + jj}")
    for jj in range(8):
        e(f"v_cos_f32 v{16 + jj}, v{8 + jj}")
        e(f"v_sin_f32 v{24 + jj}, v{8 + jj}")
    e("s_nop 0")
    for k in range(4):
        e(f"v_cvt_pk_bf16_f32 v{32 + k}, v{16 + 2 * k}, v{17 + 2 * k}")
        e(f"v_cvt_pk_bf16_f32 v{40 + k}, v{24 + 2 * k}, v{25 + 2 * k}")
    for k in range(4):
        e(f"v_xor_b32 v{36 + k}, v5, v{32 + k}")
        e(f"v_xor_b32 v{44 + k}, v5, v{40 + k}")
    e(f"s_lshl_b32 s64, s{sWAVE}, 12")
    e(f"s_add_u32 s64, s64, {MISC}")
    e(f"v_lshl_add_u32 v6, v{vLANE}, 4, s64")
    for k in range(4):
        e(f"ds_write_b128 v6, {vr(32 + 4 * k, 4)} offset:{1024 * k}")
    e(f"s_cmp_eq_u32 s{sJ}, 14")
    e("s_cselect_b32 s68, 1, 0")
    e(f"s_cmp_eq_u32 s{sWAVE}, 0")
    e("s_cselect_b32 s68, s68, 0")
    e("s_mov_b32 s69, s68")
    e(f"v_mov_b32 v{vPM}, 0xbf803f80")
    e(f"v_lshlrev_b32 v119, 4, v{vLANE}")
    e(f"v_add_u32 v119, {MISC}, v119")
    e("s_waitcnt lgkmcnt(0)")


R0, N0 = 64, 80
vD_CS, vD_R, vD_TAG = 122, 123, 124


def dft_stat_reads():
    return [f"ds_read_b32 v118, v{vD_CS}", f"ds_read_b32 v119, v{vD_CS} offset:512", f"ds_read_b32 v{vD_TAG}, v{vD_TAG}"] + \
           [f"ds_read_b128 {vr(R0 + 4 * a, 4)}, v{vD_R} offset:{32 * a}" for a in range(4)]


def dft_epilogue():
    for a in range(4):
        e(f"ds_read_b128 {vr(N0 + 4 * a, 4)}, v{vD_R} offset:{512 + 32 * a}")
    e(f"v_mov_b32 v115, v{vD_R}")

    def rd(q):
        for a in range(4):
            e(f"ds_read_b128 {vr(R0 + 4 * a, 4)}, v115 offset:{128 * q + 32 * a}")
            e(f"ds_read_b128 {vr(N0 + 4 * a, 4)}, v115 offset:{512 + 128 * q + 32 * a}")

    e("s_waitcnt lgkmcnt(0)")
    e(f"v_readfirstlane_b32 s{sTAG}, v{vD_TAG}")
    e("v_cndmask_b32 v118, v118, 0, s[68:69]")

    def TS(q):
        return (120 if q & 1 else 96), (104 if q == 0 else TW(q - 1, 0, 0))

    def valu(q):
        r_ = []
        for mat, T, cs in ((0, TS(q)[0], 118), (1, TS(q)[1], 119)):
            A = ACC(mat, q)
            if q == 0:
                for r in range(0, 16, 2):
                    r_.append(f"v_pk_mul_f32 {vr(A + r, 2)}, {vr(A + r, 2)}, {vr(R0 + r, 2)}")
            else:
                for r in range(16):
                    r_.append(f"v_mul_f32 v{A + r}, v{A + r}, v{R0 + r}")
            if mat and q < 3:
                r_[-1] = [r_[-1]] + [f"ds_read_b128 {vr(R0 + 4 * a, 4)}, v115 offset:{128 * (q + 1) + 32 * a}" for a in range(4)]
            if q == 0:
                sel = "op_sel:[0,1,0] op_sel_hi:[1,1,1]" if mat else "op_sel_hi:[1,0,1]"
                for r in range(0, 16, 2):
                    r_.append(f"v_pk_fma_f32 {vr(A + r, 2)}, {vr(N0 + r, 2)}, v[118:119], {vr(A + r, 2)} {sel}")
            else:
                for r in range(16):
                    r_.append(f"v_fmac_f32 v{A + r}, v{N0 + r}, v{cs}")
            if mat and q < 3:
                r_[-1] = [r_[-1]] + [f"ds_read_b128 {vr(N0 + 4 * a, 4)}, v115 offset:{512 + 128 * (q + 1) + 32 * a}" for a in range(4)]
            for k in range(8):
                r_.append(f"v_cvt_pk_bf16_f32 v{T + k}, v{A + 2 * k}, v{A + 2 * k + 1}")
        return r_

    def mfmas(q):
        ta, tb = TS(q)
        zr, zi = ACC(0, q), ACC(1, q)
        seq = [(zr, 1, 0, tb), (zi, 0, 0, tb), (zr, 1, 1, tb + 4), (zi, 0, 1, tb + 4),
               (zr, 0, 0, ta), (zr, 0, 1, ta + 4), (zi, 1, 0, ta), (zi, 1, 1, ta + 4)]
        return [f"v_mfma_f32_32x32x16_bf16 {vr(d, 16)}, {vr(TW(q, cs, z), 4)}, {vr(b, 4)}, {'0' if k < 2 else vr(d, 16)}"
                for k, (d, cs, z, b) in enumerate(seq)]

    for q in range(5):
        v_ = valu(q) if q < 4 else []
        m_ = mfmas(q - 1) if q else []
        if 0 < q < 4:
            e("s_waitcnt lgkmcnt(0)")
        if q:
            e("s_nop 1")
        per = len(v_) // 8
        for k in range(8):
            if m_:
                e(m_[k])
                if k in (3, 4):
                    for x in range(4):
                        rg = TW(q - 1, 1, k - 3) + x
                        e(f"v_xor_b32 v{rg}, 0x80008000, v{rg}")
            for x in v_[k * per:(k + 1) * per]:
                for y in (x if isinstance(x, list) else [x]):
                    e(y)
    e(f"v_and_b32 v112, 31, v{vLANE}")
    e(f"v_lshrrev_b32 v114, 5, v{vLANE}")
    e("v_lshlrev_b32 v112, 4, v112")
    e("v_lshl_add_u32 v112, v114, 18, v112")
    e("s_nop 7")
    for r in range(16):
        for q in range(4):
            e(f"v_cvt_pk_bf16_f32 v{4 * r + q}, v{ACC(0, q) + r}, v{ACC(1, q) + r}")
        e(f"s_add_u32 s65, s{sOUT}, {(8 * (r >> 2) + (r & 3)) * 65536}")
        e(f"buffer_store_dwordx4 {vr(4 * r, 4)}, v112, {srd(SRD_WS)}, s65 offen sc1")
    stamp(3)
    e(f"v_mov_b32 v64, {CNTL}")
    e("v_mov_b32 v65, 1")
    e("s_mov_b64 exec, 1")
    e("ds_add_u32 v64, v65")
    e("s_mov_b64 exec, -1")
    stamp(4)
    e("s_branch PHASE2")


sXO, sZ, sFZ, sPOLL, sRO, sFLG, sOUT, sC0, sP, sKH = 56, 57, 58, 59, 60, 61, 62, 63, 73, 74


def phase2(dft):
    OWN, OTH, Y, EF, HR, ET = 128, 144, 160, 32, 176, 248
    XR, vR = 80, 88
    W2 = [[96, 100], [104, 108], [240, 244]]
    WD = [112, 113]
    vH, vXO, vZ, vONE = 114, 115, 116, 118
    vEA, vEB, vES, vZS, vTG, vZERO = 122, 123, 124, 125, 126, 127
    ZF = 0
    tg = "D" if dft else "G"
    assert D <= 16
    vm = []

    def issue(tag, txt):
        vm.append(tag)
        e(txt)

    def younger(tag):
        return len(vm) - 1 - vm.index(tag)

    lab("PHASE2")
    stamp(5)
    e(f"v_and_b32 v89, 31, v{vLANE}")
    e(f"v_lshrrev_b32 v90, 5, v{vLANE}")
    e(f"v_lshlrev_b32 v{vXO}, 16, v89")
    e(f"v_lshl_add_u32 v{vXO}, v90, 5, v{vXO}")
    e(f"buffer_load_dwordx4 {vr(XR, 4)}, v{vXO}, {srd(SRD_X)}, s{sXO} offen")
    e(f"buffer_load_dwordx4 {vr(XR + 4, 4)}, v{vXO}, {srd(SRD_X)}, s{sXO} offen offset:16")
    e(f"v_bfe_u32 v{ET}, v{vLANE}, 2, 2")
    e(f"v_lshl_add_u32 v92, v90, 2, v{ET}")
    e(f"s_lshl_b32 s68, s{sKH}, 11")
    e("v_lshl_add_u32 v92, v92, 7, s68")
    e(f"v_and_b32 v93, 1, v{vLANE}")
    e("v_lshlrev_b32 v93, 2, v93")
    e(f"v_bfe_u32 v{ET + 1}, v{vLANE}, 4, 1")
    e(f"v_lshl_add_u32 v93, v{ET + 1}, 1, v93")
    e(f"v_bfe_u32 v{ET + 1}, v{vLANE}, 1, 1")
    e(f"v_add_u32 v93, v93, v{ET + 1}")
    e("v_lshl_add_u32 v92, v93, 3, v92")
    e(f"v_lshrrev_b32 v{ET}, 1, v{ET}")
    e(f"v_xor_b32 v{ET}, s{sKH}, v{ET}")
    e(f"v_lshl_add_u32 v{WD[0]}, v{ET}, 6, v92")
    e(f"v_xor_b32 v{WD[1]}, 64, v{WD[0]}")
    e(f"v_lshlrev_b32 v{vH}, 4, v{vLANE}")
    e("v_lshlrev_b32 v93, 4, v89")
    if dft:
        e(f"v_lshl_add_u32 v{vZS}, v90, 18, v93")
        e(f"v_mov_b32 v{vTG}, s{sTAG}")
        e(f"v_mov_b32 v{vZERO}, 0")
        e(f"v_mov_b32 v{vONE}, 1")
        e(f"v_mov_b32 v94, {TAGL}")
    e("s_barrier")
    stamp(6)

    def hload(v):
        if v and v & 7 == 0:
            e(f"v_add_u32 v{vH}, 8192, v{vH}")
        issue(("h", v), f"buffer_load_dwordx4 {vr(HR + 4 * (v % D), 4)}, v{vH}, {srd(SRD_WS)}, s{48 + (v & 7)} offen sc1")

    base = [0]

    def wreads(v):
        a = wslot(v) * 4096
        r = []
        if (a & ~0xFFFF) != base[0]:
            d = (a & ~0xFFFF) - base[0]
            base[0] = a & ~0xFFFF
            r += [f"v_add_u32 v{WD[c]}, {d & 0xffffffff:#x}, v{WD[c]}" for c in range(2)]
        return r + [f"ds_read_b64_tr_b16 {vr(W2[v % 3][c] + 2 * k, 2)}, v{WD[c]} offset:{(a & 0xFFFF) + 1024 * k}" for c in range(2) for k in range(2)]

    nh = [0]

    def hmore(lim, cnt):
        while cnt and nh[0] < min(56, lim):
            hload(nh[0])
            nh[0] += 1
            cnt -= 1

    for v in range(OPT["D0"]):
        hmore(56, 1)
        if v == 1:
            for x in wreads(0) + wreads(1):
                e(x)
    issue("r", f"buffer_load_dword v{vR}, v93, {srd(SRD_WS)}, s{sRO} offen offset:4 sc1")

    fill = [f"v_and_b32 v91, 3, v{vLANE}", f"v_bfe_u32 v92, v{vLANE}, 3, 2", "v_lshl_add_u32 v91, v92, 2, v91",
            f"v_bfe_u32 v92, v{vLANE}, 2, 1", "v_lshl_add_u32 v91, v92, 4, v91",
            f"s_lshl_b32 s68, s{sCB}, 6", f"s_lshl_b32 s69, s{sKH}, 5", "s_add_u32 s68, s68, s69",
            "v_add_u32 v91, s68, v91", "v_sub_u32 v92, 512, v91", "v_and_b32 v92, 255, v92",
            [f"s_cmp_ge_u32 s{sCB}, 4", "s_cselect_b64 s[70:71], -1, 0"],
            "v_cmp_eq_u32 vcc, 0, v91", "v_cndmask_b32 v92, v91, v92, s[70:71]", f"v_lshlrev_b32 v{vZ}, 4, v92",
            f"v_lshl_add_u32 v{vZ}, v90, 12, v{vZ}", "v_mov_b32 v92, 0x40000000", f"v_cndmask_b32 v{vZ}, v{vZ}, v92, vcc",
            f"v_lshl_add_u32 v91, v89, 1, s{sP}", f"v_sub_u32 v92, s{sC0}, v91", "v_cndmask_b32 v91, v91, v92, s[70:71]",
            f"v_and_b32 v{vES}, 1, v91", f"v_mul_u32_u24 v{vES}, 0x8000, v{vES}", f"v_lshl_or_b32 v{vES}, v{vES}, 16, v{vES}",
            "v_cvt_f32_u32 v91, v91", f"v_mul_f32 v{vEA}, {f2u(1.0 / 64):#x}, v91",
            "v_lshlrev_b32 v92, 1, v90", "v_cvt_f32_u32 v92, v92", f"v_mul_f32 v{vEB}, v{vEA}, v92"]
    for sg in range(8):
        for b in range(2):
            fill.append(f"v_fmamk_f32 v{ET + b}, v{vEA}, {f2u(float(4 * sg + b)):#x}, v{vEB}")
        for b in range(2):
            fill.append(f"v_fract_f32 v{ET + b}, v{ET + b}")
        for b in range(2):
            fill.append(f"v_cos_f32 v{ET + 2 + b}, v{ET + b}")
            fill.append(f"v_sin_f32 v{ET + 4 + b}, v{ET + b}")
        fill.append([f"v_cvt_pk_bf16_f32 v{EF + 4 * sg}, v{ET + 2}, v{ET + 4}",
                     f"v_cvt_pk_bf16_f32 v{EF + 4 * sg + 1}, v{ET + 3}, v{ET + 5}"])
        for b in range(2):
            fill.append(f"v_xor_b32 v{EF + 4 * sg + 2 + b}, v{vES}, v{EF + 4 * sg + b}")
    VZL = OPT.get("vzl", 38)
    VP1, VP2 = 55 - NRES, NRES - 2
    zflag_done = not dft
    for v in range(56):
        e(f"s_waitcnt vmcnt({younger(('h', v))}) lgkmcnt({4 if v < 55 else 0})")
        h = vr(HR + 4 * (v % D), 4)
        st = v % 3
        c0 = "0" if v == 0 else vr(OWN, 16)
        c1 = "0" if v == 0 else vr(OTH, 16)
        e(f"v_mfma_f32_32x32x16_bf16 {vr(OWN, 16)}, {vr(W2[st][0], 4)}, {h}, {c0}")
        if v in P2BAR:
            e(f"s_barrier  ; {P2BAR[v]}")
        if v + 2 < 56:
            for x in wreads(v + 2):
                e(x)
        e(f"v_mfma_f32_32x32x16_bf16 {vr(OTH, 16)}, {vr(W2[st][1], 4)}, {h}, {c1}")
        if PROF and v % 4 == 0:
            e("s_memtime s[78:79]")
        if PROF and v % 4 == 2:
            e(f"v_writelane_b32 v{vLOOPST}, s78, {16 + v // 4}")
        if v == 1:
            e(f"s_cmp_eq_u32 s{sDFT}, 0")
            e("s_cbranch_scc1 NOZF")
            e(f"v_mov_b32 v94, {TAGL}")
            e("v_mov_b32 v95, 1")
            e("s_mov_b64 exec, 1")
            e("ds_add_rtn_u32 v95, v94, v95 offset:8")
            e(f"v_mov_b32 v{vTG}, s{sTAG}")
            e(f"v_mov_b32 v{vZERO}, 0")
            e("s_waitcnt lgkmcnt(0)")
            e("v_readfirstlane_b32 s64, v95")
            e("s_cmp_lg_u32 s64, 3")
            e("s_cbranch_scc1 NOZF1")
            e(f"buffer_store_dword v{vTG}, v{vZERO}, {srd(SRD_WS)}, s{sFLG} offen sc1")
            lab("NOZF1")
            e("s_mov_b64 exec, -1")
            lab("NOZF")
        if not zflag_done and ("zs", 15) in vm and vm.index(("h", v)) > vm.index(("zs", 15)):
            e("s_mov_b64 exec, 1")
            e(f"ds_add_rtn_u32 v95, v94, v{vONE} offset:8")
            e("s_waitcnt lgkmcnt(0)")
            e("v_readfirstlane_b32 s64, v95")
            e(f"s_mov_b32 s65, s{sFLG}")
            e("s_cmp_lg_u32 s64, 3")
            e("s_cselect_b32 s65, 0x40000000, s65")
            issue("zflag", f"buffer_store_dword v{vTG}, v{vZERO}, {srd(SRD_WS)}, s65 offen sc1")
            e("s_mov_b64 exec, -1")
            zflag_done = True
        if dft and v < 16:
            e(f"s_add_u32 s65, s{sOUT}, {(8 * (v >> 2) + (v & 3)) * 65536}")
            issue(("zs", v), f"buffer_store_dwordx4 {vr(4 * v, 4)}, v{vZS}, {srd(SRD_WS)}, s65 offen sc1")
        if v in (VZL, VZL + 1):
            for sg in range(4 * (v - VZL), 4 * (v - VZL) + 4):
                issue(("z", sg), f"buffer_load_dwordx4 {vr(ZF + 4 * sg, 4)}, v{vZ}, {srd(SRD_WS)}, s{sZ} offen sc1")
                e(f"s_add_u32 s{sZ}, s{sZ}, 8192")
        hmore(v + 1 + D, 2)
        for _ in range(4):
            if fill and True:
                x = fill.pop(0)
                for y in (x if isinstance(x, list) else [x]):
                    e(y)
    assert not fill and zflag_done
    stamp(7)

    def ymf(sg):
        e(f"v_mfma_f32_32x32x16_bf16 {vr(Y, 16)}, {vr(ZF + 4 * sg, 4)}, {vr(EF + 4 * sg, 4)}, {'0' if sg == 0 else vr(Y, 16)}")

    XU, PT, TT = 176, 192, 208
    e("s_waitcnt vmcnt(0)")
    ymf(0)
    e(f"s_lshl_b32 s68, s{sWAVE}, 12")
    e(f"s_add_u32 s68, s68, {RED}")
    e(f"v_lshl_add_u32 v91, v{vLANE}, 4, s68")
    e(f"v_xor_b32 v92, 8192, v91")
    e("s_mov_b32 s70, 1.0")
    e("s_mov_b32 s71, 1.0")
    ymf(1)
    e(f"v_mul_f32 v{vR + 1}, {NLOG2E:#x}, v{vR}")
    e("v_mov_b32 v93, 0xffff0000")
    e(f"v_lshlrev_b32 v{XU}, 16, v{XR}")
    e(f"v_and_b32 v{XU + 1}, v93, v{XR}")
    ymf(2)
    for a in range(4):
        e(f"ds_write_b128 v91, {vr(OTH + 4 * a, 4)} offset:{1024 * a}")
        if a & 1:
            ymf(3 + (a >> 1))
    for k in range(1, 8):
        e(f"v_lshlrev_b32 v{XU + 2 * k}, 16, v{XR + k}")
        e(f"v_and_b32 v{XU + 2 * k + 1}, v93, v{XR + k}")
        if k in (2, 4):
            ymf(5 + (k >> 2))
    e("s_waitcnt lgkmcnt(0)")
    e("s_barrier")
    for a in range(4):
        e(f"ds_read_b128 {vr(PT + 4 * a, 4)}, v92 offset:{1024 * a}")
    ymf(7)
    e("s_waitcnt lgkmcnt(0)")
    rr = vr(vR, 2)
    L.append(".p2align 3")
    for k in range(8):
        e(f"v_pk_add_f32 {vr(OWN + 2 * k, 2)}, {vr(OWN + 2 * k, 2)}, {vr(PT + 2 * k, 2)}")
    for k in range(8):
        e(f"v_pk_mul_f32 {vr(TT + 2 * k, 2)}, {vr(OWN + 2 * k, 2)}, {rr} op_sel:[0,1] op_sel_hi:[1,1]")
    for k in range(16):
        e(f"v_exp_f32 v{TT + k}, v{TT + k}")
    for k in range(8):
        e(f"v_pk_add_f32 {vr(TT + 2 * k, 2)}, {vr(TT + 2 * k, 2)}, s[70:71]")
    for k in range(16):
        e(f"v_rcp_f32 v{TT + k}, v{TT + k}")
    for k in range(8):
        e(f"v_pk_mul_f32 {vr(OWN + 2 * k, 2)}, {vr(OWN + 2 * k, 2)}, {rr} op_sel_hi:[1,0]")
    for k in range(8):
        e(f"v_pk_mul_f32 {vr(OWN + 2 * k, 2)}, {vr(OWN + 2 * k, 2)}, {vr(TT + 2 * k, 2)}")
    for k in range(8):
        e(f"v_pk_fma_f32 {vr(OWN + 2 * k, 2)}, {vr(OWN + 2 * k, 2)}, {vr(Y + 2 * k, 2)}, {vr(XU + 2 * k, 2)}")
    for k in range(8):
        e(f"v_cvt_pk_bf16_f32 v{TT + k}, v{OWN + 2 * k}, v{OWN + 2 * k + 1}")
    of = " sc1" if OPT.get("osc1") else ""
    e(f"buffer_store_dwordx4 {vr(TT, 4)}, v{vXO}, {srd(SRD_OUT)}, s{sXO} offen{of}")
    e(f"buffer_store_dwordx4 {vr(TT + 4, 4)}, v{vXO}, {srd(SRD_OUT)}, s{sXO} offen offset:16{of}")
    stamp_flush(8, 64, vLOOPST)
    if OPT.get("rabs"):
        lab(f"DLY{tg}")
        e("s_memrealtime s[82:83]")
        e("s_waitcnt lgkmcnt(0)")
        e("s_sub_u32 s82, s82, s98")
        e(f"s_cmp_lt_u32 s82, {OPT['rabs']}")
        e(f"s_cbranch_scc1 DLY{tg}")
    e("s_endpgm")


def cwave():
    lab("CWAVE")
    cm("================ C waves: matrix work ================")
    e("s_setprio 2")
    e(f"v_mov_b32 v{vLANE}, v0")
    e("v_and_b32 v2, 31, v0")
    e("v_lshrrev_b32 v3, 5, v0")
    e("v_bfe_u32 v4, v0, 1, 3")
    e("v_lshlrev_b32 v5, 7, v2")
    e(f"v_add_u32 v5, {SLOT + 32768}, v5")
    for u in range(4):
        e(f"v_add_u32 v6, {2 * u}, v3")
        e("v_xor_b32 v6, v6, v4")
        e(f"v_lshl_add_u32 v{XA[u]}, v6, 4, v5")
    e("v_bfe_u32 v4, v0, 2, 2")
    e(f"v_lshlrev_b32 v{WA}, 12, v3")
    e(f"v_lshl_add_u32 v{WA}, v4, 8, v{WA}")
    e(f"v_xor_b32 v4, s{sWAVE}, v4")
    e(f"v_lshl_add_u32 v{WA}, v4, 6, v{WA}")
    e("v_bfe_u32 v4, v0, 4, 1")
    e(f"v_lshl_add_u32 v{WA}, v4, 5, v{WA}")
    e("v_and_b32 v4, 3, v0")
    e(f"v_lshl_add_u32 v{WA}, v4, 3, v{WA}")
    e(f"v_add_u32 v{WA}, {SLOT}, v{WA}")
    e(f"s_lshl_b32 s64, s{sWAVE}, 7")
    e(f"s_add_u32 s64, s64, {CSL}")
    e(f"v_lshl_add_u32 v{vA_CS}, v3, 4, s64")
    e(f"v_lshlrev_b32 v{vA_MR}, 3, v2")
    e(f"v_add_u32 v{vA_MR}, {MRP}, v{vA_MR}")
    e(f"v_mov_b32 v{vA_TAG}, {TAGL}")
    e(f"v_lshl_add_u32 v{vD_CS}, v2, 2, s64")
    e(f"v_lshlrev_b32 v{vD_R}, 4, v3")
    e(f"v_add_u32 v{vD_R}, {RL}, v{vD_R}")
    e(f"v_mov_b32 v{vD_TAG}, {TAGL}")
    for r in range(128, 256):
        e(f"v_mov_b32 v{r}, 0")
    srd_finish()
    e(f"s_and_b32 s{sP}, s{sWAVE}, 1")
    e(f"s_lshr_b32 s{sKH}, s{sWAVE}, 1")
    e(f"s_lshl_b32 s68, s{sP}, 5")
    e(f"s_add_u32 s68, s68, s{sT1}")
    e(f"s_lshl_b32 s{sXO}, s68, 10")
    e(f"s_lshl_b32 s68, s{sCB}, 7")
    e(f"s_add_u32 s{sXO}, s{sXO}, s68")
    e(f"s_lshl_b32 s68, s{sKH}, 6")
    e(f"s_add_u32 s{sXO}, s{sXO}, s68")
    e(f"s_sub_u32 s69, 32, s{sT1}")
    e("s_and_b32 s69, s69, 31")
    e(f"s_cmp_ge_u32 s{sCB}, 4")
    e(f"s_cselect_b32 s69, s69, s{sT1}")
    e(f"s_lshl_b32 s{sZ}, s69, 16")
    e(f"s_add_u32 s{sZ}, s{sZ}, {Z_OFF}")
    e(f"s_mov_b32 s{sFZ}, {FLZ}")
    e(f"s_cmp_eq_u32 s{sT1}, 0")
    e(f"s_cselect_b32 s{sC0}, 64, 63")
    e(f"s_lshr_b32 s68, s{sT1}, 1")
    e("s_lshl_b32 s68, s68, 11")
    e(f"s_add_u32 s{sPOLL}, s68, {FLH}")
    e(f"s_and_b32 s70, s{sT1}, 1")
    e(f"s_lshl_b32 s71, s{sP}, 1")
    e("s_add_u32 s70, s70, s71")
    e("s_lshl_b32 s70, s70, 9")
    e("s_add_u32 s68, s68, s70")
    e(f"s_add_u32 s{sRO}, s68, {ST_OFF}")
    e(f"s_lshl_b32 s68, s{sT1}, 2")
    e("s_add_u32 s68, s68, s71")
    e(f"s_add_u32 s68, s68, s{sKH}")
    e(f"s_mul_i32 s68, s68, {56 * 1024}")
    rot_offsets(10, "s68")
    e(f"s_lshl_b32 s64, s{sI}, 4")
    e(f"s_add_u32 s64, s64, s{sJ}")
    e("s_lshl_b32 s64, s64, 7")
    e(f"s_add_u32 s{sFLG}, s64, {FLH}")
    e(f"s_cmp_eq_u32 s{sDFT}, 1")
    e("s_cbranch_scc1 CDFT")
    e(f"s_lshl_b32 s64, s{sJ}, 2")
    e(f"s_add_u32 s64, s64, s{sWAVE}")
    e("s_lshl_b32 s64, s64, 10")
    e(f"s_mul_i32 s65, s{sI}, {2 * 4 * 56 * 1024}")
    e(f"s_add_u32 s{sOUT}, s64, s65")
    stamp(1)
    e("s_barrier")
    mainloop(False)
    stamp(2)
    glu_epilogue()
    phase2(False)
    lab("CDFT")
    e(f"s_lshl_b32 s64, s{sI}, 12")
    e(f"s_and_b32 s65, s{sJ}, 1")
    e("s_lshl_b32 s66, s65, 11")
    e("s_add_u32 s64, s64, s66")
    e(f"s_lshl_b32 s66, s{sWAVE}, 9")
    e("s_add_u32 s64, s64, s66")
    e(f"s_add_u32 s{sOUT}, s64, {Z_OFF}")
    dft_prologue()
    stamp(1)
    e("s_barrier")
    for k in range(16):
        e(f"ds_read_b128 {vr(4 * k, 4)}, v119 offset:{1024 * k}")
    mainloop(True)
    stamp(2)
    dft_epilogue()


hdr = open("cdna_kernels/" + NAME + ".s.ref").read().split("\n")
head = [l for l in hdr if l.startswith(";") and "@launch" not in l and "Override launch" not in l and "grid=ceil" not in l]
out = head + ["; @launch grid=(256,1,1) block=(512,1,1) lds=163840",
              '.amdgcn_target "amdgcn-amd-amdhsa--gfx950"', ".text", f".globl {K}", ".p2align 8", f".type {K},@function", f"{K}:"]
prologue()
l01wave()
l2wave()
l3wave()
cwave()
lab("END")
e("s_endpgm")
out += L
out += ['.section .rodata,"a"', ".p2align 6", f".amdhsa_kernel {K}", "  .amdhsa_next_free_vgpr 256", "  .amdhsa_next_free_sgpr 102",
        "  .amdhsa_accum_offset 256", "  .amdhsa_group_segment_fixed_size 0", "  .amdhsa_kernarg_size 96",
        "  .amdhsa_user_sgpr_count 2", "  .amdhsa_user_sgpr_kernarg_segment_ptr 1", "  .amdhsa_system_sgpr_workgroup_id_x 1",
        ".end_amdhsa_kernel", ""]
open(sys.argv[1], "w").write("\n".join(out))
```

```python
import sys

NAME = "recurrent_scan__spectral_fnet__glu_gated_glu__prompt"
OPT = dict(map48=1, prof=0, D=12, D0=6, wt=0, t0=0, mt=0, sp=2, n23=8, n01=6, ct=1, rot=1, pre=8, th=0, trk=0, ua=30, slp=2, spin=200000)
for a in sys.argv[2:]:
    k, v = a.split("=")
    OPT[k] = int(v)
PROF = OPT["prof"]
K = NAME + "_kernel"
D = OPT["D"]

H_OFF, Z_OFF, ST_OFF, CS_OFF = 0, 0x800000, 0xA00000, 0xA10000
FLR, FLC, FLH, FLZ, PROF_OFF, WS_SIZE = 0xA40000, 0xA48000, 0xA50000, 0xA58000, 0xA60000, 0xB00000
vLOOPST = 121
SLOT = 49152
MISC = 147456
CSL, MRP, RL, NMRL, TAGL, CNTL = MISC, MISC + 1024, MISC + 2048, MISC + 2560, MISC + 3072, MISC + 3076
RED = 20 * 4096
NRES = 39


def wslot(v):
    return v if v < 36 else v + 1 if v < NRES else v - NRES

LOG2E = 0x3FB8AA3B
NLOG2E = 0xBFB8AA3B


def f2u(x):
    import struct
    return struct.unpack("<I", struct.pack("<f", x))[0]


L = []


def e(s):
    L.append("    " + s)


def lab(s):
    L.append(s + ":")


def cm(s):
    L.append("    ; " + s)


def vr(a, n):
    return f"v[{a}:{a + n - 1}]"


SRD_X, SRD_W0, SRD_W1, SRD_WD, SRD_WS, SRD_OUT, SRD_DBG, SRD_WM = 4, 8, 12, 16, 20, 24, 28, 32
sWAVE, sI, sJ, sT1, sCB, sRS, sCOL, sDFT, sTAG, sIDX, sK4 = 36, 37, 38, 39, 40, 41, 42, 43, 44, 45, 46
sSTAMP = 80
nstamp = [0]


def srd(n):
    return f"s[{n}:{n + 3}]"


def stamp(i):
    if PROF:
        e(f"{'s_memrealtime' if PROF == 2 else 's_memtime'} s[{sSTAMP + 2 * i}:{sSTAMP + 2 * i + 1}]")


def stamp_flush(n, vt, loopst=False):
    if not PROF:
        return
    e("s_waitcnt lgkmcnt(0)")
    for i in range(8):
        e(f"v_mov_b32 v{vt + i}, s{sSTAMP + 2 * i}" if i < n else f"v_mov_b32 v{vt + i}, 0")
    e(f"s_lshl_b32 s78, s2, 3")
    e(f"s_add_u32 s78, s78, s{sWAVE}")
    e(f"s_lshl_b32 s78, s78, 8")
    e(f"s_add_u32 s78, s78, {PROF_OFF}")
    e(f"v_mov_b32 v{vt + 8}, 0")
    e(f"buffer_store_dwordx4 {vr(vt, 4)}, v{vt + 8}, {srd(SRD_WS)}, s78 offen")
    e(f"buffer_store_dwordx4 {vr(vt + 4, 4)}, v{vt + 8}, {srd(SRD_WS)}, s78 offen offset:16")
    if loopst:
        e(f"v_lshlrev_b32 v{vt + 9}, 2, v{vLANE if loopst == vLOOPST else 0}")
        e(f"v_min_u32 v{vt + 9}, 124, v{vt + 9}")
        e(f"buffer_store_dword v{loopst}, v{vt + 9}, {srd(SRD_WS)}, s78 offen offset:64")
    e(f"s_memrealtime s[76:77]")
    e("s_waitcnt lgkmcnt(0)")
    e(f"v_mov_b32 v{vt}, s98")
    e(f"v_mov_b32 v{vt + 1}, s76")
    e(f"buffer_store_dwordx2 {vr(vt, 2)}, v{vt + 8}, {srd(SRD_WS)}, s78 offen offset:32")


uid = [0]
vLST = 250


QUIET = [False]


def lbar():
    if PROF and not QUIET[0]:
        e("s_memtime s[96:97]")
        e("s_mov_b32 s100, m0")
        e("s_mov_b32 m0, s79")
        e("s_waitcnt lgkmcnt(0)")
        e(f"v_writelane_b32 v{vLST}, s96, m0")
        e("s_mov_b32 m0, s100")
        e("s_cselect_b32 s101, 1, 0")
        e("s_add_u32 s79, s79, 1")
        e("s_cmp_eq_u32 s101, 1")
    e("s_barrier")


def poll_issue(vdst, vaddr, ssoff, srdn, n=1):
    op = "buffer_load_dword" if n == 1 else "buffer_load_dwordx2"
    d = f"v{vdst}" if n == 1 else vr(vdst, 2)
    e(f"{op} {d}, v{vaddr}, {srd(srdn)}, {ssoff} offen sc1")


def poll_wait(vdst, vaddr, ssoff, srdn, cond_tag=True, n=1, first_wait=0):
    uid[0] += 1
    k = uid[0]
    e(f"s_mov_b32 s75, {OPT['spin']}")
    e(f"s_waitcnt vmcnt({first_wait})")
    lab(f"POLL{k}")
    if cond_tag:
        e(f"v_cmp_ne_u32 vcc, s{sTAG}, v{vdst}")
        if n == 2:
            e(f"v_cmp_ne_u32 s[76:77], s{sTAG}, v{vdst + 1}")
            e("s_nop 0")
            e("s_or_b64 vcc, vcc, s[76:77]")
    else:
        e(f"v_cmp_eq_u32 vcc, 0, v{vdst}")
    e("s_nop 1")
    e("s_cmp_eq_u64 vcc, 0")
    e(f"s_cbranch_scc1 POLLD{k}")
    if OPT["slp"]:
        e(f"s_sleep {OPT['slp']}")
    poll_issue(vdst, vaddr, ssoff, srdn, n)
    e("s_sub_u32 s75, s75, 1")
    e("s_cmp_lg_u32 s75, 0")
    e("s_waitcnt vmcnt(0)")
    e(f"s_cbranch_scc1 POLL{k}")
    lab(f"POLLD{k}")


def srd_finish():
    e("s_waitcnt lgkmcnt(0)")
    e(f"s_cmp_eq_u32 s{sDFT}, 1")
    e("s_cselect_b64 s[8:9], s[48:49], s[52:53]")
    e("s_cselect_b64 s[12:13], s[50:51], s[54:55]")
    e("s_mov_b64 s[16:17], s[56:57]")
    e("s_mov_b64 s[24:25], s[58:59]")
    e("s_mov_b64 s[28:29], s[60:61]")
    e("s_mov_b64 s[20:21], s[62:63]")


def prologue():
    e("s_cmp_ge_u32 s2, 256")
    e("s_cbranch_scc1 END")
    e("s_load_dwordx2 s[4:5], s[0:1], 0")
    e("s_load_dwordx4 s[48:51], s[0:1], 24")
    e("s_load_dwordx8 s[52:59], s[0:1], 48")
    e("s_load_dwordx4 s[60:63], s[0:1], 80")
    if PROF or OPT.get("rabs"):
        e("s_memrealtime s[98:99]")
    stamp(0)
    if PROF:
        e("s_mov_b32 s79, 0")
    e("v_lshrrev_b32 v1, 6, v0")
    e("v_and_b32 v0, 63, v0")
    e(f"s_lshr_b32 s{sIDX}, s2, 3")
    e(f"v_readfirstlane_b32 s{sWAVE}, v1")
    if OPT["map48"]:
        e("s_and_b32 s64, s2, 3")
        e("s_lshl_b32 s64, s64, 2")
        e(f"s_and_b32 s65, s{sIDX}, 3")
        e(f"s_add_u32 s{sI}, s64, s65")
        e("s_bfe_u32 s64, s2, 0x10002")
        e(f"s_lshr_b32 s{sK4}, s{sIDX}, 2")
        e("s_mul_i32 s65, s64, 7")
        e(f"s_add_u32 s65, s65, s{sK4}")
        e("s_add_u32 s66, s64, 14")
        e(f"s_cmp_eq_u32 s{sK4}, 7")
        e(f"s_cselect_b32 s{sJ}, s66, s65")
    else:
        e("s_and_b32 s64, s2, 1")
        e("s_lshl_b32 s64, s64, 3")
        e(f"s_and_b32 s65, s{sIDX}, 7")
        e(f"s_add_u32 s{sI}, s64, s65")
        e("s_bfe_u32 s64, s2, 0x20001")
        e(f"s_lshr_b32 s{sK4}, s{sIDX}, 3")
        e("s_mul_i32 s65, s64, 3")
        e(f"s_add_u32 s65, s65, s{sK4}")
        e("s_add_u32 s66, s64, 14")
        e(f"s_cmp_eq_u32 s{sK4}, 3")
        e("s_cselect_b32 s65, s66, s65")
        e("s_lshl_b32 s66, s64, 2")
        e(f"s_add_u32 s66, s66, s{sK4}")
        e("s_sub_u32 s66, s66, 2")
        e("s_cmp_lt_u32 s64, 2")
        e(f"s_cselect_b32 s{sJ}, s65, s66")
    e("s_and_b32 s64, s2, 7")
    e("s_lshl_b32 s64, s64, 2")
    e(f"s_and_b32 s65, s{sIDX}, 3")
    e(f"s_add_u32 s{sT1}, s64, s65")
    e(f"s_lshr_b32 s{sCB}, s{sIDX}, 2")
    e(f"s_lshl_b32 s{sCOL}, s{sJ}, 8")
    e(f"s_sub_u32 s64, s{sCOL}, {14 * 256}")
    e(f"s_movk_i32 s{sRS}, 3584")
    e(f"s_cmp_ge_u32 s{sJ}, 14")
    e(f"s_cselect_b32 s{sDFT}, 1, 0")
    e(f"s_cselect_b32 s{sRS}, 1024, s{sRS}")
    e(f"s_cselect_b32 s{sCOL}, s64, s{sCOL}")
    e(f"s_lshl_b32 s10, s{sRS}, 9")
    e("s_mov_b32 s14, s10")
    e("s_mov_b32 s6, 0x200000")
    e("s_mov_b32 s7, 0x20000")
    e("s_mov_b32 s11, 0x20000")
    e("s_mov_b32 s15, 0x20000")
    e(f"s_mov_b32 s18, {1792 * 1024}")
    e("s_mov_b32 s19, 0x20000")
    e(f"s_mov_b32 s22, {WS_SIZE}")
    e("s_mov_b32 s23, 0x20000")
    e("s_mov_b32 s26, 0x200000")
    e("s_mov_b32 s27, 0x20000")
    e("s_mov_b32 s30, 256")
    e("s_mov_b32 s31, 0x20000")
    e("s_mov_b32 s34, s10")
    e("s_mov_b32 s35, 0x20000")
    e(f"s_cmp_lt_u32 s{sWAVE}, 4")
    e("s_cbranch_scc1 CWAVE")
    e(f"s_cmp_eq_u32 s{sWAVE}, 6")
    e("s_cbranch_scc1 L2WAVE")
    e(f"s_cmp_eq_u32 s{sWAVE}, 7")
    e("s_cbranch_scc1 L3WAVE")


def wd_voffset(vd, vt):
    e(f"v_lshrrev_b32 v{vt}, 3, v0")
    e(f"v_lshlrev_b32 v{vd}, 10, v{vt}")
    e(f"v_bfe_u32 v{vt}, v0, 4, 1")
    e(f"v_lshlrev_b32 v{vt}, 2, v{vt}")
    e(f"v_and_b32 v{vt + 1}, 7, v0")
    e(f"v_xor_b32 v{vt}, v{vt}, v{vt + 1}")
    e(f"v_lshl_add_u32 v{vd}, v{vt}, 4, v{vd}")


NB = 2 * OPT["n23"] + 2 * OPT["n01"]
assert 448 % NB == 0 and 56 % NB == 0 or OPT["sp"] != 2


def xw_init(first_sgpr_or_imm):
    if OPT["sp"] != 2:
        return
    e(f"s_lshl_b32 s60, s{sIDX}, 7")
    e(f"s_add_u32 s60, s60, {first_sgpr_or_imm}")
    e(f"s_add_u32 s62, s60, {448 * 4096}")
    e("s_and_b32 s63, s2, 7")
    e(f"s_mul_i32 s63, s63, {56 * 4096}")
    e("s_add_u32 s60, s60, s63")


def xw(n):
    if OPT["sp"] != 2:
        return
    for k in range(n):
        e(f"s_buffer_load_dwordx2 s[58:59], {srd(SRD_WD)}, s60 offset:{4096 * k + 60}")
    e(f"s_add_u32 s60, s60, {NB * 4096}")
    e("s_cmp_ge_u32 s60, s62")
    e(f"s_cselect_b32 s63, {448 * 4096}, 0")
    e("s_sub_u32 s60, s60, s63")


def rot_offsets(shift, add=None):
    for k in range(8):
        if OPT["rot"]:
            e(f"s_add_u32 s{48 + k}, s{sCB}, {k}")
            e(f"s_and_b32 s{48 + k}, s{48 + k}, 7")
            e(f"s_lshl_b32 s{48 + k}, s{48 + k}, {shift}")
        else:
            e(f"s_mov_b32 s{48 + k}, {k << shift}")
        if add:
            e(f"s_add_u32 s{48 + k}, s{48 + k}, {add}")


def wait_c_done():
    uid[0] += 1
    k = uid[0]
    e(f"v_mov_b32 v7, {CNTL}")
    e(f"s_mov_b32 s75, {OPT['spin']}")
    lab(f"CW{k}")
    e("ds_read_b32 v8, v7")
    e("s_waitcnt lgkmcnt(0)")
    e("v_readfirstlane_b32 s76, v8")
    e("s_sub_u32 s75, s75, 1")
    e("s_cmp_eq_u32 s75, 0")
    e(f"s_cbranch_scc1 CWD{k}")
    e("s_sleep 1")
    e("s_cmp_lt_u32 s76, 4")
    e(f"s_cbranch_scc1 CW{k}")
    lab(f"CWD{k}")


UA = OPT["ua"]
assert 18 < UA < 39
P2BAR = {12: "BPa", 16: "BP1", UA - 2: "BPb", 37: "BP2", 45: "BP3"}


def l3_tail():
    e("v_min_u32 v10, 13, v0")
    e("v_lshlrev_b32 v10, 7, v10")
    e(f"s_lshr_b32 s68, s{sT1}, 1")
    e("s_lshl_b32 s68, s68, 11")
    e(f"s_add_u32 s68, s68, {FLH}")
    e("v_bfe_u32 v12, v0, 1, 4")
    e("v_lshlrev_b32 v12, 4, v12")
    e("v_and_b32 v13, 1, v0")
    e("v_add3_u32 v12, v12, v13, 14")
    e("v_lshlrev_b32 v12, 7, v12")
    e(f"s_mov_b32 s69, {FLH}")
    QUIET[0] = False
    wait_c_done()
    poll_issue(11, 10, "s68", SRD_WS)
    poll_wait(11, 10, "s68", SRD_WS)
    stamp(4)
    lbar()
    lbar()
    lbar()
    poll_issue(11, 12, "s69", SRD_WS)
    lbar()
    poll_wait(11, 12, "s69", SRD_WS)
    stamp(5)
    stamp(6)
    lbar()
    stamp_flush(7, 8, vLST)
    e("s_endpgm")


def l01wave():
    vX0, vX1, vW, vWD = 2, 3, 4, 5
    sLW, sXa, sXb, sWo, sS0, sS1, sR4, sT, sCnt, sWd = 64, 65, 66, 67, 68, 69, 70, 71, 72, 73
    cm("================ L0/L1: DMA waves ================")
    QUIET[0] = bool(OPT["sp"])
    e(f"s_sub_u32 s{sLW}, s{sWAVE}, 4")
    e("v_lshrrev_b32 v6, 3, v0")
    e(f"v_lshlrev_b32 v{vX0}, 16, v6")
    e("v_lshrrev_b32 v6, 1, v6")
    e("v_and_b32 v7, 7, v0")
    e("v_xor_b32 v6, v6, v7")
    e(f"v_lshl_add_u32 v{vX0}, v6, 4, v{vX0}")
    e(f"v_xor_b32 v{vX1}, 64, v{vX0}")
    e("v_lshrrev_b32 v6, 4, v0")
    e(f"v_mul_lo_u32 v{vW}, v6, s{sRS}")
    e("v_bfe_u32 v7, v0, 2, 2")
    e("v_xor_b32 v7, v7, v6")
    e("v_lshlrev_b32 v7, 2, v7")
    e("v_and_b32 v8, 3, v0")
    e("v_or_b32 v7, v7, v8")
    e(f"v_lshl_add_u32 v{vW}, v7, 4, v{vW}")
    e(f"s_lshl_b32 s{sXa}, s{sI}, 1")
    e(f"s_add_u32 s{sXa}, s{sXa}, s{sLW}")
    e(f"s_lshl_b32 s{sXa}, s{sXa}, 10")
    e(f"s_add_u32 s{sXb}, s{sXa}, {32 * 1024}")
    e(f"s_mov_b32 s{sWo}, s{sCOL}")
    e(f"s_lshl_b32 s{sR4}, s{sRS}, 2")
    e(f"s_lshl_b32 s74, s{sLW}, 10")
    e(f"s_lshl_b32 s76, s{sLW}, 12")
    wd_voffset(vWD, 6)

    def wpieces(base_sgpr, imm):
        e(f"s_add_u32 s{sT}, s{base_sgpr}, s74")
        e(f"s_add_u32 m0, s{sT}, {imm}")
        e("s_nop 0")
        for k in range(8):
            if not OPT.get("nodma"):
                e(f"buffer_load_dwordx4 v{vW}, {srd(SRD_WM)}, s{sWo} offen lds")
            if k < 7:
                e("s_add_u32 m0, m0, 2048")
            e(f"s_add_u32 s{sWo}, s{sWo}, s{sR4}")

    def xpieces(base_sgpr, half):
        sx = sXb if half else sXa
        e(f"s_add_u32 s{sT}, s{base_sgpr}, s76")
        e(f"s_add_u32 m0, s{sT}, {32768 + half * 8192}")
        e(f"s_mov_b32 s{sT}, s{sx}")
        for k in range(4):
            if not OPT.get("nodma"):
                e(f"buffer_load_dwordx4 v{vX1 if k & 1 else vX0}, {srd(SRD_X)}, s{sT} offen lds")
            if k < 3:
                e("s_add_u32 m0, m0, 1024")
                e(f"s_add_u32 s{sT}, s{sT}, 0x80000")
        e(f"s_add_u32 s{sx}, s{sx}, 128")

    e(f"s_mov_b32 s{sS0}, {SLOT}")
    e(f"s_mov_b32 s{sS1}, {2 * SLOT}")
    srd_finish()
    e(f"s_cmp_eq_u32 s{sLW}, 0")
    e("s_cselect_b64 s[32:33], s[8:9], s[12:13]")
    e("s_lshl_b32 s77, s2, 1")
    e(f"s_add_u32 s77, s77, s{sLW}")
    e("s_lshl_b32 s77, s77, 8")
    e("s_add_u32 s56, s16, s77")
    e("s_addc_u32 s57, s17, 0")

    def swarm(chunk):
        for k in range(4):
            if OPT["sp"] == 1:
                e(f"s_load_dword s58, s[56:57], {chunk * 131072 + 64 * k}")

    cm("G0 = x0 + W0 ; G1 = W1 + x1a")
    xpieces(sS0, 0)
    xpieces(sS0, 1)
    wpieces(sS0, 0)
    wpieces(sS0, 16384)
    xpieces(sS1, 0)
    e(f"s_mov_b32 s{sS0}, {2 * SLOT}")
    e(f"s_mov_b32 s{sS1}, 0")
    swarm(0)
    swarm(1)
    e(f"s_mul_i32 s77, s{sLW}, {OPT['n01'] * 4096}")
    e(f"s_add_u32 s77, s77, {2 * OPT['n23'] * 4096}")
    xw_init("s77")
    xw(OPT["n01"])
    e(f"s_mov_b32 s{sCnt}, 6")
    e(f"s_lshl_b32 s{sT}, s{sCB}, 7")
    rot_offsets(15, f"s{sT}")
    e("s_waitcnt vmcnt(12)")
    stamp(1)
    lbar()
    lab("L01LOOP")
    wpieces(sS0, 0)
    xpieces(sS0, 1)
    swarm(2)
    xw(OPT['n01'])
    e("s_waitcnt vmcnt(12)")
    lbar()
    wpieces(sS0, 16384)
    xpieces(sS1, 0)
    swarm(3)
    xw(OPT['n01'])
    e("s_add_u32 s56, s56, 262144")
    e("s_addc_u32 s57, s57, 0")
    e(f"s_mov_b32 s{sS0}, s{sS1}")
    e(f"s_add_u32 s{sS1}, s{sS1}, {SLOT}")
    e(f"s_cmp_eq_u32 s{sS1}, {3 * SLOT}")
    e(f"s_cselect_b32 s{sS1}, 0, s{sS1}")
    e(f"s_sub_u32 s{sCnt}, s{sCnt}, 1")
    e(f"s_cmp_lg_u32 s{sCnt}, 0")
    e("s_waitcnt vmcnt(12)")
    lbar()
    e("s_cbranch_scc1 L01LOOP")
    cm("after B12: G14")
    wpieces(sS0, 0)
    xpieces(sS0, 1)
    xw(OPT["n01"])
    e("s_waitcnt vmcnt(12)")
    lbar()
    wpieces(sS0, 16384)
    e(f"s_lshl_b32 s{sWd}, s{sLW}, 14")
    e(f"s_lshl_b32 m0, s{sLW}, 11")

    def units(a, b, th=0):
        for v in range(a, b if not OPT.get("nowd") else a):
            if v and v & 7 == 0:
                e(f"s_add_u32 s{sWd}, s{sWd}, 262144")
            e(f"s_add_u32 s{sT}, s{sWd}, s{48 + (v & 7)}")
            e(f"buffer_load_dwordx4 v{vWD}, {srd(SRD_WD)}, s{sT} offen lds")
            e("s_add_u32 m0, m0, 1024")
            e(f"s_add_u32 s{sT}, s{sT}, 8192")
            e(f"buffer_load_dwordx4 v{vWD}, {srd(SRD_WD)}, s{sT} offen lds")
            d = (wslot(v + 1) - wslot(v)) * 4096 - 1024
            e(f"s_add_u32 m0, m0, {d}" if d > 0 else f"s_sub_u32 m0, m0, {-d}")
            if th:
                e(f"s_waitcnt vmcnt({th})")

    units(0, 2)
    xw(OPT["n01"])
    e("s_waitcnt vmcnt(12)")
    lbar()
    units(2, 8)
    xw(OPT["n01"])
    e("s_waitcnt vmcnt(16)")
    lbar()
    units(8, 14)
    stamp(2)
    lbar()
    QUIET[0] = False
    TR = 14 + OPT["trk"]
    units(14, TR, OPT["th"])
    e(f"s_cmp_eq_u32 s{sDFT}, 1")
    e("s_cbranch_scc1 L01GO")
    wait_c_done()
    lab("L01GO")
    stamp(3)
    units(TR, UA)
    e(f"s_waitcnt vmcnt({2 * (UA - 14)})")
    stamp(4)
    lbar()
    units(UA, NRES)
    e(f"s_waitcnt vmcnt({2 * (NRES - UA)})")
    lbar()
    lbar()
    units(NRES, 47)
    e(f"s_waitcnt vmcnt({2 * (47 - NRES)})")
    stamp(5)
    lbar()
    units(47, 56)
    e(f"s_waitcnt vmcnt({2 * (56 - 47)})")
    stamp(6)
    lbar()
    e("s_waitcnt vmcnt(0)")
    lbar()
    stamp_flush(7, 8, vLST)
    e("s_endpgm")


def l2wave():
    vA, vDum, vTD, vC = 2, 6, 7, 8
    lab("L2WAVE")
    cm("================ L2: cache warming touches, column sums ================")
    if OPT.get("lprio"):
        e(f"s_setprio {OPT['lprio']}")
    e(f"s_and_b32 s64, s{sK4}, 1")
    e(f"s_lshr_b32 s65, s{sK4}, 1")
    e("s_lshl_b32 s65, s65, 5")
    e(f"s_lshl_b32 s66, s{sI}, 1")
    e("s_add_u32 s64, s64, s65")
    e("s_add_u32 s64, s64, s66")
    e("s_lshl_b32 s64, s64, 10")
    e("v_lshl_add_u32 v10, v0, 16, s64")
    e(f"s_and_b32 s65, s{sI}, 7")
    e("s_lshl_b32 s65, s65, 3")
    e("v_bfe_u32 v11, v0, 2, 3")
    e("v_add_u32 v11, s65, v11")
    e(f"v_mul_lo_u32 v11, v11, s{sRS}")
    e("v_and_b32 v12, 1, v0")
    e("v_lshl_add_u32 v11, v12, 7, v11")
    e(f"v_add_u32 v11, s{sCOL}, v11")
    e("v_cmp_lt_u32 vcc, 31, v0")
    e("v_and_b32 v12, 2, v0")
    e("v_cmp_ne_u32 s[66:67], 0, v12")
    e("v_cndmask_b32 v10, v10, v11, vcc")
    e("v_mov_b32 v11, 0")
    e("v_lshrrev_b32 v18, 3, v0")
    e("v_and_b32 v19, 7, v0")
    e(f"v_lshlrev_b32 v{vTD}, 10, v18")
    e(f"v_lshl_add_u32 v{vTD}, v19, 7, v{vTD}")
    e("v_mov_b32 v18, 0x40000000")
    e(f"v_cndmask_b32 v{vTD}, v{vTD}, v18, vcc")
    e(f"s_lshl_b32 s71, s{sIDX}, 12")
    e("v_lshrrev_b32 v18, 3, v0")
    e("v_and_b32 v19, 7, v0")
    e(f"v_mul_lo_u32 v{vC}, v18, s{sRS}")
    e(f"v_lshl_add_u32 v{vC}, v19, 4, v{vC}")
    e(f"s_lshr_b32 s64, s{sI}, 2")
    e("s_lshl_b32 s64, s64, 4")
    e(f"s_mul_i32 s69, s64, s{sRS}")
    e(f"s_and_b32 s64, s{sI}, 1")
    e("s_lshl_b32 s64, s64, 7")
    e("s_add_u32 s69, s69, s64")
    e(f"s_add_u32 s69, s69, s{sCOL}")
    e(f"s_lshl_b32 s70, s{sRS}, 3")
    e(f"s_mul_i32 s72, s{sRS}, 56")
    srd_finish()
    e(f"s_bitcmp1_b32 s{sI}, 1")
    e("s_cselect_b64 s[32:33], s[12:13], s[8:9]")
    if OPT["t0"]:
        e("v_mov_b32 v14, s8")
        e("v_mov_b32 v15, s9")
        e("v_mov_b32 v16, s12")
        e("v_mov_b32 v17, s13")
        e("v_cndmask_b32 v14, v14, v16, s[66:67]")
        e("v_cndmask_b32 v15, v15, v17, s[66:67]")
        e("v_mov_b32 v16, s4")
        e("v_mov_b32 v17, s5")
        e("v_cndmask_b32 v14, v16, v14, vcc")
        e("v_cndmask_b32 v15, v17, v15, vcc")
        e(f"v_lshl_add_u64 {vr(vA, 2)}, v[10:11], 0, v[14:15]")
        e(f"global_load_dword v{vDum}, {vr(vA, 2)}, off")

    LD = 32
    AC = 16

    def csload(y):
        if OPT.get("nostats"):
            return
        e(f"buffer_load_dwordx4 {vr(LD + 4 * y, 4)}, v{vC}, {srd(SRD_WM)}, s69 offen")
        e(f"s_add_u32 s69, s69, {'s72' if y & 1 else 's70'}")

    def csproc(y):
        for d in range(4 if not OPT.get("nostats") else 0):
            r = LD + 4 * y + d
            if y == 0:
                e(f"v_lshlrev_b32 v{AC + 2 * d}, 16, v{r}")
                e(f"v_and_b32 v{AC + 2 * d + 1}, v9, v{r}")
            else:
                e(f"v_lshlrev_b32 v10, 16, v{r}")
                e(f"v_and_b32 v11, v9, v{r}")
                e(f"v_add_f32 v{AC + 2 * d}, v{AC + 2 * d}, v10")
                e(f"v_add_f32 v{AC + 2 * d + 1}, v{AC + 2 * d + 1}, v11")

    PRE = OPT["pre"]
    for y in range(2 * PRE):
        csload(y)
    e("v_mov_b32 v9, 0xffff0000")
    QUIET[0] = OPT["sp"] == 2
    xw_init(0)
    xw(OPT["n23"])
    stamp(1)
    def wtouch():
        if OPT["wt"]:
            e(f"buffer_load_dword v{vDum}, v{vTD}, {srd(SRD_WD)}, s71 offen")
            e("s_add_u32 s71, s71, 131072")

    vm = [("c", y) for y in range(2 * PRE)]
    issued, done = 2 * PRE, 0
    for n in range(8):
        lbar()
        xw(OPT["n23"])
        if issued < 16:
            csload(issued)
            csload(issued + 1)
            vm += [("c", issued), ("c", issued + 1)]
            issued += 2
        if n >= 2 and OPT["wt"]:
            wtouch()
            vm.append(("t", n))
        if n >= 2:
            k = min(done + 3, 16)
            e(f"s_waitcnt vmcnt({len(vm) - 1 - vm.index(('c', k - 1))})")
            for y in range(done, k):
                csproc(y)
            done = k
    assert done == 16 and issued == 16
    lbar()
    wtouch()
    e(f"v_mov_b32 v12, {TAGL}")
    e("ds_read_b32 v25, v12")
    for k in range(4):
        e(f"v_permlane32_swap_b32 v{AC + k}, v{AC + k + 4}")
    e("s_nop 1")
    for k in range(4):
        e(f"v_add_f32 v{AC + k}, v{AC + k}, v{AC + k + 4}")
    e("s_nop 1")
    for k in range(2):
        e(f"v_permlane16_swap_b32 v{AC + k}, v{AC + k + 2}")
    e("s_nop 1")
    for k in range(2):
        e(f"v_add_f32 v{AC + k}, v{AC + k}, v{AC + k + 2}")
    e("v_and_b32 v10, 7, v0")
    e("v_lshlrev_b32 v10, 3, v10")
    e(f"v_add_f32_dpp v24, v{AC}, v{AC} row_ror:8 row_mask:0xf bank_mask:0x3")
    e(f"v_add_f32_dpp v24, v{AC + 1}, v{AC + 1} row_ror:8 row_mask:0xf bank_mask:0xc")
    e("v_bfe_u32 v11, v0, 5, 1")
    e("v_lshl_add_u32 v10, v11, 2, v10")
    e("v_bfe_u32 v11, v0, 4, 1")
    e("v_lshl_add_u32 v10, v11, 1, v10")
    e("v_bfe_u32 v11, v0, 3, 1")
    e("v_add_u32 v10, v11, v10")
    e("v_lshlrev_b32 v10, 3, v10")
    e(f"s_lshl_b32 s64, s{sJ}, 13")
    e(f"s_add_u32 s64, s64, {CS_OFF}")
    e(f"s_lshl_b32 s65, s{sI}, 9")
    e("s_add_u32 s65, s64, s65")
    e("s_waitcnt lgkmcnt(0)")
    e(f"buffer_store_dwordx2 v[24:25], v10, {srd(SRD_WS)}, s65 offen sc1")
    e(f"v_readfirstlane_b32 s{sTAG}, v25")
    xw(OPT["n23"])
    stamp(2)
    e("v_lshlrev_b32 v10, 5, v0")
    e("s_add_u32 s65, s64, 4096")

    def csget():
        for k in range(8):
            e(f"buffer_load_dwordx4 {vr(32 + 4 * k, 4)}, v10, {srd(SRD_WS)}, {'s65' if k >= 4 else 's64'} offen offset:{2048 * ((k >> 1) & 1) + 16 * (k & 1)} sc1")

    for n in range(9, 14):
        lbar()
        xw(OPT["n23"])
        if n < 13:
            wtouch()
        if 10 <= n < 13:
            wtouch()
    csget()
    lbar()
    e(f"s_mov_b32 s75, {OPT['spin']}")
    lab("CSCHK")
    e("s_waitcnt vmcnt(0)")
    for k in range(16):
        e(f"v_xor_b32 v{64 + k}, s{sTAG}, v{33 + 2 * k}")
    e("v_or_b32 v12, v64, v65")
    for k in range(1, 8):
        e(f"v_or3_b32 v12, v12, v{64 + 2 * k}, v{65 + 2 * k}")
    e("v_cmp_ne_u32 vcc, 0, v12")
    e("s_nop 1")
    e("s_cmp_eq_u64 vcc, 0")
    e("s_cbranch_scc1 CSOK")
    csget()
    e("s_sub_u32 s75, s75, 1")
    e("s_cmp_lg_u32 s75, 0")
    e("s_cbranch_scc1 CSCHK")
    e("s_waitcnt vmcnt(0)")
    lab("CSOK")
    e("v_lshlrev_b32 v10, 4, v0")
    e(f"v_add_u32 v10, {CSL}, v10")
    for d in range(4):
        e(f"v_add_f32 v{16 + d}, v{32 + 2 * d}, v{40 + 2 * d}")
        e(f"v_add_f32 v{20 + d}, v{48 + 2 * d}, v{56 + 2 * d}")
    for d in range(4):
        e(f"v_add_f32 v{16 + d}, v{16 + d}, v{20 + d}")
    e("ds_write_b128 v10, v[16:19]")
    lbar()
    e("s_waitcnt lgkmcnt(0)")
    stamp(3)
    lbar()
    for k in range(4, 7):
        stamp(k)
    stamp_flush(7, 8, vLST)
    e("s_endpgm")


def l3wave():
    lab("L3WAVE")
    cm("================ L3: launch tag, row statistics ================")
    if OPT.get("lprio"):
        e(f"s_setprio {OPT['lprio']}")
    if OPT["ct"]:
        e("s_getpc_b64 s[64:65]")
        lab("PCREF")
        e(f"s_sub_u32 s64, s64, PCREF-{K}")
        e("s_subb_u32 s65, s65, 0")
        e("v_and_b32 v2, 7, v0")
        e(f"s_lshl_b32 s66, s{sIDX}, 3")
        e("v_add_u32 v2, s66, v2")
        e("v_lshlrev_b32 v2, 7, v2")
        e(f"v_min_u32 v2, END-{K}, v2")
        e("global_load_dword v8, v2, s[64:65]")
    e(f"s_bfe_u32 s64, s{sJ}, 0x10002")
    e(f"s_bfe_u32 s65, s{sJ}, 0x10003")
    e("s_lshl_b32 s65, s65, 5")
    e(f"s_lshl_b32 s66, s{sI}, 1")
    e("s_add_u32 s64, s64, s65")
    e("s_add_u32 s64, s64, s66")
    e(f"s_and_b32 s65, s{sJ}, 3")
    e("s_lshl_b32 s65, s65, 9")
    e("s_add_u32 s64, s64, s65")
    e("s_lshl_b32 s64, s64, 10")
    e("v_lshrrev_b32 v4, 3, v0")
    e("v_and_b32 v14, 7, v0")
    e("v_lshlrev_b32 v6, 16, v4")
    e("v_lshl_add_u32 v6, v14, 4, v6")
    e("v_mov_b32 v9, 0xffff0000")
    e("s_memrealtime s[66:67]")
    srd_finish()
    e("v_mov_b32 v2, 0")
    e("s_cmp_lg_u32 s2, 0")
    e("s_cbranch_scc1 L3NOTAG")
    e("s_or_b32 s66, s66, 1")
    e("v_mov_b32 v3, s66")
    e(f"buffer_store_dword v3, v2, {srd(SRD_DBG)}, 0 offen sc1")
    lab("L3NOTAG")
    LD, UP = 16, 64
    PRE = OPT["pre"]

    def rowload(y):
        e(f"buffer_load_dwordx4 {vr(LD + 4 * y, 4)}, v6, {srd(SRD_X)}, s64 offen offset:{128 * y}")

    for y in range(PRE):
        rowload(y)
    xw_init(OPT["n23"] * 4096)
    xw(OPT["n23"])

    def unp(d):
        if OPT.get("nostats"):
            return
        e(f"v_lshlrev_b32 v{UP + 2 * d}, 16, v{LD + d}")
        e(f"v_and_b32 v{UP + 2 * d + 1}, v9, v{LD + d}")
        if d == 0:
            e(f"v_mov_b32 v10, v{UP}")
            e(f"v_mov_b32 v11, v{UP + 1}")
        else:
            e(f"v_add_f32 v10, v10, v{UP + 2 * d}")
            e(f"v_add_f32 v11, v11, v{UP + 2 * d + 1}")

    def red8(r):
        e("s_nop 1")
        e(f"v_add_f32_dpp v{r}, v{r}, v{r} quad_perm:[1,0,3,2] row_mask:0xf bank_mask:0xf")
        e("s_nop 1")
        e(f"v_add_f32_dpp v{r}, v{r}, v{r} quad_perm:[2,3,0,1] row_mask:0xf bank_mask:0xf")
        e("s_nop 1")
        e(f"v_add_f32_dpp v{r}, v{r}, v{r} row_half_mirror row_mask:0xf bank_mask:0xf")

    def var(k):
        if OPT.get("nostats"):
            return
        e(f"v_sub_f32 v{UP + k}, v{UP + k}, v10")
        e(f"v_fmac_f32 v{12 + (k & 1)}, v{UP + k}, v{UP + k}")

    issued, done = PRE, 0
    for n in range(6):
        lbar()
        xw(OPT["n23"])
        if issued < 8:
            rowload(issued)
            issued += 1
        if n >= 2:
            k = min(done + 2, 8)
            e(f"s_waitcnt vmcnt({issued - k})")
            for d in range(4 * done, 4 * k):
                unp(d)
            done = k
    assert done == 8 and issued == 8
    poll_issue(3, 2, "0", SRD_DBG)
    e("v_add_f32 v10, v10, v11")
    red8(10)
    e(f"v_mul_f32 v10, {f2u(1.0 / 512):#x}, v10")
    e("v_mov_b32 v12, 0")
    e("v_mov_b32 v13, 0")
    lbar()
    xw(OPT["n23"])
    for k in range(24):
        var(k)
    lbar()
    poll_wait(3, 2, "0", SRD_DBG, cond_tag=False)
    e(f"v_mov_b32 v15, {TAGL}")
    e("ds_write_b32 v15, v3")
    e("ds_write_b32 v15, v2 offset:4")
    e("ds_write_b32 v15, v2 offset:8")
    e(f"v_readfirstlane_b32 s{sTAG}, v3")
    for k in range(24, 44):
        var(k)
    e("s_waitcnt lgkmcnt(0)")
    xw(OPT["n23"])
    lbar()
    for k in range(44, 64):
        var(k)
    e("v_add_f32 v12, v12, v13")
    red8(12)
    e(f"v_mul_f32 v12, {f2u(1.0 / 512):#x}, v12")
    e("v_cvt_pk_bf16_f32 v15, v10, v12")
    e("v_lshlrev_b32 v10, 16, v15")
    e("v_and_b32 v12, v9, v15")
    e(f"v_add_f32 v12, {f2u(1e-5):#x}, v12")
    e("v_cvt_pk_bf16_f32 v12, v12, v12")
    e("v_and_b32 v12, v9, v12")
    e("v_sqrt_f32 v12, v12")
    e("s_nop 0")
    e("v_cvt_pk_bf16_f32 v12, v12, v12")
    e("v_and_b32 v12, v9, v12")
    e("v_rcp_f32 v11, v12")
    e("v_cmp_eq_u32 vcc, 0, v14")
    e("v_lshlrev_b32 v14, 4, v4")
    e("v_mov_b32 v15, 0x40000000")
    e(f"s_lshl_b32 s64, s{sI}, 11")
    e(f"s_add_u32 s64, s64, {ST_OFF}")
    e("v_cndmask_b32 v14, v15, v14, vcc")
    e("v_mov_b32 v16, v10")
    e("v_mov_b32 v17, v11")
    e("v_mov_b32 v18, v3")
    e("v_mov_b32 v19, v3")
    e(f"s_lshl_b32 s65, s{sJ}, 7")
    e("s_add_u32 s65, s64, s65")
    e(f"buffer_store_dwordx4 v[16:19], v14, {srd(SRD_WS)}, s65 offen sc1")
    xw(OPT["n23"])
    stamp(1)
    e("v_lshlrev_b32 v10, 5, v0")

    def stget():
        e(f"buffer_load_dwordx4 v[20:23], v10, {srd(SRD_WS)}, s64 offen sc1")
        e(f"buffer_load_dwordx4 v[24:27], v10, {srd(SRD_WS)}, s64 offen offset:16 sc1")

    for n in range(9, 14):
        lbar()
        xw(OPT["n23"])
    stget()
    lbar()
    e(f"s_mov_b32 s75, {OPT['spin']}")
    lab("STCHK")
    e("s_waitcnt vmcnt(0)")
    e(f"v_cmp_ne_u32 vcc, s{sTAG}, v23")
    e(f"v_cmp_ne_u32 s[76:77], s{sTAG}, v27")
    e("s_nop 1")
    e("s_or_b64 vcc, vcc, s[76:77]")
    e("s_cmp_eq_u64 vcc, 0")
    e("s_cbranch_scc1 STOK")
    stget()
    e("s_sub_u32 s75, s75, 1")
    e("s_cmp_lg_u32 s75, 0")
    e("s_cbranch_scc1 STCHK")
    e("s_waitcnt vmcnt(0)")
    lab("STOK")
    e("v_lshlrev_b32 v10, 4, v0")
    e(f"v_add_u32 v10, {MRP}, v10")
    e(f"v_lshlrev_b32 v12, 3, v0")
    e(f"v_add_u32 v12, {RL}, v12")
    e("v_mov_b32 v22, v24")
    e("v_mov_b32 v23, v25")
    e("v_mov_b32 v24, v21")
    e("v_mul_f32 v26, v20, v21")
    e("v_mul_f32 v27, v22, v23")
    e("v_xor_b32 v26, 0x80000000, v26")
    e("v_xor_b32 v27, 0x80000000, v27")
    e("ds_write_b128 v10, v[20:23]")
    e("ds_write_b64 v12, v[24:25]")
    e("ds_write_b64 v12, v[26:27] offset:512")
    lbar()
    e("s_waitcnt lgkmcnt(0)")
    stamp(2)
    stamp(3)
    lbar()
    l3_tail()


XF = [[64 + 4 * q for q in range(4)], [80 + 4 * q for q in range(4)]]
WF = [[96, 100], [104, 108]]
XA = [112, 113, 114, 115]
WA = 116
vLANE, vPM = 117, 118


def ACC(mat, q):
    return 128 + 32 * q + 16 * mat


def frag_reads(u, st):
    r = []
    for mat in range(2):
        for a in range(2):
            r.append(f"ds_read_b64_tr_b16 {vr(WF[st][mat] + 2 * a, 2)}, v{WA} offset:{u * 8192 + a * 2048 + mat * 1024}")
    for q in range(4):
        r.append(f"ds_read_b128 {vr(XF[st][q], 4)}, v{XA[u]} offset:{q * 4096}")
    return r


CG, CU, MR = 0, 16, 32
vA_CS, vA_MR, vA_TAG = 45, 46, 47


def glu_stat_reads():
    r = [f"ds_read_b64 {vr(MR + 2 * q, 2)}, v{vA_MR} offset:{256 * q}" for q in range(4)]
    r += [f"ds_read_b128 {vr(CG + 4 * a, 4)}, v{vA_CS} offset:{32 * a}" for a in range(4)]
    r += [f"ds_read_b128 {vr(CU + 4 * a, 4)}, v{vA_CS} offset:{512 + 32 * a}" for a in range(4)]
    r += [f"ds_read_b32 v43, v{vA_TAG}"]
    return r


def mainloop(dft):
    sCnt, sDelta, sCur = 64, 65, 66
    tag = "D" if dft else "G"
    for s in frag_reads(0, 0):
        e(s)
    e(f"s_mov_b32 s{sCnt}, 8")
    e(f"s_mov_b32 s{sCur}, {SLOT}")
    e(f"s_mov_b32 s67, {(-2 * SLOT) & 0xffffffff:#x}")

    def step(u, last):
        st = u & 1
        mf = []
        for mat in ((1, 0) if dft else (0, 1)):
            for q in range(4):
                a, b = (XF[st][q], WF[st][mat]) if dft else (WF[st][mat], XF[st][q])
                mf.append(f"v_mfma_f32_32x32x16_bf16 {vr(ACC(mat, q), 16)}, {vr(a, 4)}, {vr(b, 4)}, {vr(ACC(mat, q), 16)}")
        rd = frag_reads((u + 1) & 3, st ^ 1)
        gaps = [[] for _ in range(8)]
        if u == 3 and not last:
            gaps[0] += [f"v_add_u32 v{WA}, s{sDelta}, v{WA}", f"v_add_u32 v{XA[0]}, s{sDelta}, v{XA[0]}"]
            gaps[5] += [f"v_add_u32 v{XA[1]}, s{sDelta}, v{XA[1]}"]
            gaps[6] += [f"v_add_u32 v{XA[2]}, s{sDelta}, v{XA[2]}", f"v_add_u32 v{XA[3]}, s{sDelta}, v{XA[3]}"]
        if PROF and u in (0, 2):
            gaps[0] += ["s_memtime s[70:71]"]
        if PROF and u in (1, 3):
            gaps[5] += [f"s_lshl_b32 s72, s{sCnt}, 1", f"s_sub_u32 m0, {16 if u == 1 else 15}, s72", f"v_writelane_b32 v{vLOOPST}, s70, m0"]
        if u == 2:
            gaps[5] += [f"s_cmp_eq_u32 s{sCur}, {2 * SLOT}", f"s_cselect_b32 s{sDelta}, s67, {SLOT}"]
            gaps[6] += [f"s_add_u32 s{sCur}, s{sCur}, s{sDelta}", f"s_sub_u32 s{sCnt}, s{sCnt}, 1"]
            gaps[7] += [f"s_cmp_eq_u32 s{sCnt}, 0"]
        if u & 1:
            gaps[0] += ["s_barrier"]
        if dft:
            gaps[0] = [f"v_cndmask_b32 v{WF[st][0] + k}, v{WF[st][0] + k}, v{vPM}, s[68:69]" for k in range(2)] + gaps[0]
            gaps[1] += [f"v_cndmask_b32 v{WF[st][0] + k}, v{WF[st][0] + k}, v{vPM}, s[68:69]" for k in range(2, 4)]
        if last:
            extra = dft_stat_reads() if dft else glu_stat_reads()
            for k, x in enumerate(extra):
                gaps[2 + min(k // 3, 4)].append(x)
        else:
            for k in range(4):
                gaps[k + (1 if (u & 1) else 0)] += rd[2 * k:2 * k + 2]
        e("s_waitcnt lgkmcnt(0)")
        for k in range(8):
            e(mf[k])
            for s in gaps[k]:
                e(s)

    L.append(".p2align 3")
    lab(f"MAIN{tag}")
    for u in range(3):
        step(u, False)
    e(f"s_cbranch_scc1 LAST{tag}")
    step(3, False)
    e(f"s_branch MAIN{tag}")
    lab(f"LAST{tag}")
    step(3, True)


def glu_epilogue():
    e(f"v_lshlrev_b32 v44, 4, v{vLANE}")
    e("v_mov_b32 v42, 0")
    e("s_mov_b32 s66, 1.0")
    e("s_mov_b32 s67, 1.0")
    e("s_waitcnt lgkmcnt(0)")
    e(f"v_readfirstlane_b32 s{sTAG}, v43")
    for q in range(4):
        e(f"v_mul_f32 v{MR + 2 * q + 1}, {NLOG2E:#x}, v{MR + 2 * q + 1}")
    L.append(".p2align 3")
    out = 0
    for q in range(4):
        b, p = q & 1, q >> 1
        mr = vr(MR + 2 * q, 2)
        for z in range(2):
            G = ACC(0, q) + 8 * z
            U = ACC(1, q) + 8 * z
            for k in range(4):
                e(f"v_pk_fma_f32 {vr(G + 2 * k, 2)}, {vr(CG + 8 * z + 2 * k, 2)}, {mr}, {vr(G + 2 * k, 2)} op_sel_hi:[1,0,1] neg_lo:[0,1,0] neg_hi:[0,1,0]")
            for k in range(4):
                e(f"v_pk_mul_f32 {vr(G + 2 * k, 2)}, {vr(G + 2 * k, 2)}, {mr} op_sel:[0,1] op_sel_hi:[1,1]")
            for k in range(8):
                e(f"v_exp_f32 v{G + k}, v{G + k}")
            for k in range(4):
                e(f"v_pk_add_f32 {vr(G + 2 * k, 2)}, {vr(G + 2 * k, 2)}, s[66:67]")
            for k in range(8):
                e(f"v_rcp_f32 v{G + k}, v{G + k}")
            for k in range(4):
                e(f"v_pk_fma_f32 {vr(U + 2 * k, 2)}, {vr(CU + 8 * z + 2 * k, 2)}, {mr}, {vr(U + 2 * k, 2)} op_sel_hi:[1,0,1] neg_lo:[0,1,0] neg_hi:[0,1,0]")
            for k in range(4):
                e(f"v_pk_mul_f32 {vr(U + 2 * k, 2)}, {vr(U + 2 * k, 2)}, {vr(G + 2 * k, 2)}")
            o = 64 + 4 * out
            out += 1
            for k in range(4):
                e(f"v_cvt_pk_bf16_f32 v{o + k}, v{U + 2 * k}, v{U + 2 * k + 1}")
            e(f"s_add_u32 s65, s{sOUT}, {((b * 2 + p) * 2 + z) * 56 * 1024 + H_OFF}")
            e(f"buffer_store_dwordx4 {vr(o, 4)}, v44, {srd(SRD_WS)}, s65 offen{'' if OPT.get('hplain') else ' sc1'}")
    stamp(3)
    lab("PUBLISH")
    e(f"v_mov_b32 v40, {CNTL}")
    e("v_mov_b32 v41, 1")
    e("v_mov_b32 v42, 0")
    e(f"v_mov_b32 v43, s{sTAG}")
    e("s_mov_b64 exec, 1")
    e("s_waitcnt vmcnt(0)")
    e("ds_add_rtn_u32 v41, v40, v41")
    e("s_waitcnt lgkmcnt(0)")
    e("v_readfirstlane_b32 s64, v41")
    e("s_cmp_lg_u32 s64, 3")
    e("s_cbranch_scc1 HNOFLAG")
    e(f"buffer_store_dword v43, v42, {srd(SRD_WS)}, s{sFLG} offen sc1")
    lab("HNOFLAG")
    e("s_mov_b64 exec, -1")
    stamp(4)


def TW(q, cs, z):
    return 16 * q + 8 * cs + 4 * z


def dft_prologue():
    e(f"v_and_b32 v2, 31, v{vLANE}")
    e("v_cvt_f32_u32 v3, v2")
    e(f"v_mul_f32 v3, {f2u(1.0 / 2048):#x}, v3")
    e(f"s_and_b32 s64, s{sWAVE}, 1")
    e(f"s_lshr_b32 s65, s{sWAVE}, 1")
    e("s_lshl_b32 s65, s65, 5")
    e("s_add_u32 s64, s64, s65")
    e(f"s_lshl_b32 s65, s{sI}, 1")
    e("s_add_u32 s64, s64, s65")
    e(f"v_lshrrev_b32 v4, 5, v{vLANE}")
    e("v_lshl_add_u32 v4, v4, 8, s64")
    e("v_cvt_f32_u32 v4, v4")
    e("v_mul_f32 v4, v3, v4")
    e("v_and_b32 v5, 1, v2")
    e("v_mul_u32_u24 v5, 0x8000, v5")
    e("v_lshl_or_b32 v5, v5, 16, v5")
    for jj in range(8):
        c = 64.0 * (8 * (jj >> 2) + (jj & 3))
        e(f"v_fmamk_f32 v{8 + jj}, v3, {f2u(c):#x}, v4")
    for jj in range(8):
        e(f"v_fract_f32 v{8 + jj}, v{8 + jj}")
    for jj in range(8):
        e(f"v_cos_f32 v{16 + jj}, v{8 + jj}")
        e(f"v_sin_f32 v{24 + jj}, v{8 + jj}")
    e("s_nop 0")
    for k in range(4):
        e(f"v_cvt_pk_bf16_f32 v{32 + k}, v{16 + 2 * k}, v{17 + 2 * k}")
        e(f"v_cvt_pk_bf16_f32 v{40 + k}, v{24 + 2 * k}, v{25 + 2 * k}")
    for k in range(4):
        e(f"v_xor_b32 v{36 + k}, v5, v{32 + k}")
        e(f"v_xor_b32 v{44 + k}, v5, v{40 + k}")
    e(f"s_lshl_b32 s64, s{sWAVE}, 12")
    e(f"s_add_u32 s64, s64, {MISC}")
    e(f"v_lshl_add_u32 v6, v{vLANE}, 4, s64")
    for k in range(4):
        e(f"ds_write_b128 v6, {vr(32 + 4 * k, 4)} offset:{1024 * k}")
    e(f"s_cmp_eq_u32 s{sJ}, 14")
    e("s_cselect_b32 s68, 1, 0")
    e(f"s_cmp_eq_u32 s{sWAVE}, 0")
    e("s_cselect_b32 s68, s68, 0")
    e("s_mov_b32 s69, s68")
    e(f"v_mov_b32 v{vPM}, 0xbf803f80")
    e(f"v_lshlrev_b32 v119, 4, v{vLANE}")
    e(f"v_add_u32 v119, {MISC}, v119")
    e("s_waitcnt lgkmcnt(0)")


R0, N0 = 64, 80
vD_CS, vD_R, vD_TAG = 122, 123, 124


def dft_stat_reads():
    return [f"ds_read_b32 v118, v{vD_CS}", f"ds_read_b32 v119, v{vD_CS} offset:512", f"ds_read_b32 v{vD_TAG}, v{vD_TAG}"] + \
           [f"ds_read_b128 {vr(R0 + 4 * a, 4)}, v{vD_R} offset:{32 * a}" for a in range(4)]


def dft_epilogue():
    for a in range(4):
        e(f"ds_read_b128 {vr(N0 + 4 * a, 4)}, v{vD_R} offset:{512 + 32 * a}")
    e(f"v_mov_b32 v115, v{vD_R}")

    def rd(q):
        for a in range(4):
            e(f"ds_read_b128 {vr(R0 + 4 * a, 4)}, v115 offset:{128 * q + 32 * a}")
            e(f"ds_read_b128 {vr(N0 + 4 * a, 4)}, v115 offset:{512 + 128 * q + 32 * a}")

    e("s_waitcnt lgkmcnt(0)")
    e(f"v_readfirstlane_b32 s{sTAG}, v{vD_TAG}")
    e("v_cndmask_b32 v118, v118, 0, s[68:69]")

    def TS(q):
        return (120 if q & 1 else 96), (104 if q == 0 else TW(q - 1, 0, 0))

    def valu(q):
        r_ = []
        for mat, T, cs in ((0, TS(q)[0], 118), (1, TS(q)[1], 119)):
            A = ACC(mat, q)
            if q == 0:
                for r in range(0, 16, 2):
                    r_.append(f"v_pk_mul_f32 {vr(A + r, 2)}, {vr(A + r, 2)}, {vr(R0 + r, 2)}")
            else:
                for r in range(16):
                    r_.append(f"v_mul_f32 v{A + r}, v{A + r}, v{R0 + r}")
            if mat and q < 3:
                r_[-1] = [r_[-1]] + [f"ds_read_b128 {vr(R0 + 4 * a, 4)}, v115 offset:{128 * (q + 1) + 32 * a}" for a in range(4)]
            if q == 0:
                sel = "op_sel:[0,1,0] op_sel_hi:[1,1,1]" if mat else "op_sel_hi:[1,0,1]"
                for r in range(0, 16, 2):
                    r_.append(f"v_pk_fma_f32 {vr(A + r, 2)}, {vr(N0 + r, 2)}, v[118:119], {vr(A + r, 2)} {sel}")
            else:
                for r in range(16):
                    r_.append(f"v_fmac_f32 v{A + r}, v{N0 + r}, v{cs}")
            if mat and q < 3:
                r_[-1] = [r_[-1]] + [f"ds_read_b128 {vr(N0 + 4 * a, 4)}, v115 offset:{512 + 128 * (q + 1) + 32 * a}" for a in range(4)]
            for k in range(8):
                r_.append(f"v_cvt_pk_bf16_f32 v{T + k}, v{A + 2 * k}, v{A + 2 * k + 1}")
        return r_

    def mfmas(q):
        ta, tb = TS(q)
        zr, zi = ACC(0, q), ACC(1, q)
        seq = [(zr, 1, 0, tb), (zi, 0, 0, tb), (zr, 1, 1, tb + 4), (zi, 0, 1, tb + 4),
               (zr, 0, 0, ta), (zr, 0, 1, ta + 4), (zi, 1, 0, ta), (zi, 1, 1, ta + 4)]
        return [f"v_mfma_f32_32x32x16_bf16 {vr(d, 16)}, {vr(TW(q, cs, z), 4)}, {vr(b, 4)}, {'0' if k < 2 else vr(d, 16)}"
                for k, (d, cs, z, b) in enumerate(seq)]

    for q in range(5):
        v_ = valu(q) if q < 4 else []
        m_ = mfmas(q - 1) if q else []
        if 0 < q < 4:
            e("s_waitcnt lgkmcnt(0)")
        if q:
            e("s_nop 1")
        per = len(v_) // 8
        for k in range(8):
            if m_:
                e(m_[k])
                if k in (3, 4):
                    for x in range(4):
                        rg = TW(q - 1, 1, k - 3) + x
                        e(f"v_xor_b32 v{rg}, 0x80008000, v{rg}")
            for x in v_[k * per:(k + 1) * per]:
                for y in (x if isinstance(x, list) else [x]):
                    e(y)
    e(f"v_and_b32 v112, 31, v{vLANE}")
    e(f"v_lshrrev_b32 v114, 5, v{vLANE}")
    e("v_lshlrev_b32 v112, 4, v112")
    e("v_lshl_add_u32 v112, v114, 18, v112")
    e("s_nop 7")
    for r in range(16):
        for q in range(4):
            e(f"v_cvt_pk_bf16_f32 v{4 * r + q}, v{ACC(0, q) + r}, v{ACC(1, q) + r}")
        e(f"s_add_u32 s65, s{sOUT}, {(8 * (r >> 2) + (r & 3)) * 65536}")
        e(f"buffer_store_dwordx4 {vr(4 * r, 4)}, v112, {srd(SRD_WS)}, s65 offen sc1")
    stamp(3)
    e(f"v_mov_b32 v64, {CNTL}")
    e("v_mov_b32 v65, 1")
    e("s_mov_b64 exec, 1")
    e("ds_add_u32 v64, v65")
    e("s_mov_b64 exec, -1")
    stamp(4)
    e("s_branch PHASE2")


sXO, sZ, sFZ, sPOLL, sRO, sFLG, sOUT, sC0, sP, sKH = 56, 57, 58, 59, 60, 61, 62, 63, 73, 74


def phase2(dft):
    OWN, OTH, Y, EF, HR, ET = 128, 144, 160, 32, 176, 248
    XR, vR = 80, 88
    W2 = [[96, 100], [104, 108], [240, 244]]
    WD = [112, 113]
    vH, vXO, vZ, vONE = 114, 115, 116, 118
    vEA, vEB, vES, vZS, vTG, vZERO = 122, 123, 124, 125, 126, 127
    ZF = 0
    tg = "D" if dft else "G"
    assert D <= 16
    vm = []

    def issue(tag, txt):
        vm.append(tag)
        e(txt)

    def younger(tag):
        return len(vm) - 1 - vm.index(tag)

    lab("PHASE2")
    stamp(5)
    e(f"v_and_b32 v89, 31, v{vLANE}")
    e(f"v_lshrrev_b32 v90, 5, v{vLANE}")
    e(f"v_lshlrev_b32 v{vXO}, 16, v89")
    e(f"v_lshl_add_u32 v{vXO}, v90, 5, v{vXO}")
    e(f"buffer_load_dwordx4 {vr(XR, 4)}, v{vXO}, {srd(SRD_X)}, s{sXO} offen")
    e(f"buffer_load_dwordx4 {vr(XR + 4, 4)}, v{vXO}, {srd(SRD_X)}, s{sXO} offen offset:16")
    e(f"v_bfe_u32 v{ET}, v{vLANE}, 2, 2")
    e(f"v_lshl_add_u32 v92, v90, 2, v{ET}")
    e(f"s_lshl_b32 s68, s{sKH}, 11")
    e("v_lshl_add_u32 v92, v92, 7, s68")
    e(f"v_and_b32 v93, 1, v{vLANE}")
    e("v_lshlrev_b32 v93, 2, v93")
    e(f"v_bfe_u32 v{ET + 1}, v{vLANE}, 4, 1")
    e(f"v_lshl_add_u32 v93, v{ET + 1}, 1, v93")
    e(f"v_bfe_u32 v{ET + 1}, v{vLANE}, 1, 1")
    e(f"v_add_u32 v93, v93, v{ET + 1}")
    e("v_lshl_add_u32 v92, v93, 3, v92")
    e(f"v_lshrrev_b32 v{ET}, 1, v{ET}")
    e(f"v_xor_b32 v{ET}, s{sKH}, v{ET}")
    e(f"v_lshl_add_u32 v{WD[0]}, v{ET}, 6, v92")
    e(f"v_xor_b32 v{WD[1]}, 64, v{WD[0]}")
    e(f"v_lshlrev_b32 v{vH}, 4, v{vLANE}")
    e("v_lshlrev_b32 v93, 4, v89")
    if dft:
        e(f"v_lshl_add_u32 v{vZS}, v90, 18, v93")
        e(f"v_mov_b32 v{vTG}, s{sTAG}")
        e(f"v_mov_b32 v{vZERO}, 0")
        e(f"v_mov_b32 v{vONE}, 1")
        e(f"v_mov_b32 v94, {TAGL}")
    e("s_barrier")
    stamp(6)

    def hload(v):
        if v and v & 7 == 0:
            e(f"v_add_u32 v{vH}, 8192, v{vH}")
        issue(("h", v), f"buffer_load_dwordx4 {vr(HR + 4 * (v % D), 4)}, v{vH}, {srd(SRD_WS)}, s{48 + (v & 7)} offen sc1")

    base = [0]

    def wreads(v):
        a = wslot(v) * 4096
        r = []
        if (a & ~0xFFFF) != base[0]:
            d = (a & ~0xFFFF) - base[0]
            base[0] = a & ~0xFFFF
            r += [f"v_add_u32 v{WD[c]}, {d & 0xffffffff:#x}, v{WD[c]}" for c in range(2)]
        return r + [f"ds_read_b64_tr_b16 {vr(W2[v % 3][c] + 2 * k, 2)}, v{WD[c]} offset:{(a & 0xFFFF) + 1024 * k}" for c in range(2) for k in range(2)]

    nh = [0]

    def hmore(lim, cnt):
        while cnt and nh[0] < min(56, lim):
            hload(nh[0])
            nh[0] += 1
            cnt -= 1

    for v in range(OPT["D0"]):
        hmore(56, 1)
        if v == 1:
            for x in wreads(0) + wreads(1):
                e(x)
    issue("r", f"buffer_load_dword v{vR}, v93, {srd(SRD_WS)}, s{sRO} offen offset:4 sc1")

    fill = [f"v_and_b32 v91, 3, v{vLANE}", f"v_bfe_u32 v92, v{vLANE}, 3, 2", "v_lshl_add_u32 v91, v92, 2, v91",
            f"v_bfe_u32 v92, v{vLANE}, 2, 1", "v_lshl_add_u32 v91, v92, 4, v91",
            f"s_lshl_b32 s68, s{sCB}, 6", f"s_lshl_b32 s69, s{sKH}, 5", "s_add_u32 s68, s68, s69",
            "v_add_u32 v91, s68, v91", "v_sub_u32 v92, 512, v91", "v_and_b32 v92, 255, v92",
            [f"s_cmp_ge_u32 s{sCB}, 4", "s_cselect_b64 s[70:71], -1, 0"],
            "v_cmp_eq_u32 vcc, 0, v91", "v_cndmask_b32 v92, v91, v92, s[70:71]", f"v_lshlrev_b32 v{vZ}, 4, v92",
            f"v_lshl_add_u32 v{vZ}, v90, 12, v{vZ}", "v_mov_b32 v92, 0x40000000", f"v_cndmask_b32 v{vZ}, v{vZ}, v92, vcc",
            f"v_lshl_add_u32 v91, v89, 1, s{sP}", f"v_sub_u32 v92, s{sC0}, v91", "v_cndmask_b32 v91, v91, v92, s[70:71]",
            f"v_and_b32 v{vES}, 1, v91", f"v_mul_u32_u24 v{vES}, 0x8000, v{vES}", f"v_lshl_or_b32 v{vES}, v{vES}, 16, v{vES}",
            "v_cvt_f32_u32 v91, v91", f"v_mul_f32 v{vEA}, {f2u(1.0 / 64):#x}, v91",
            "v_lshlrev_b32 v92, 1, v90", "v_cvt_f32_u32 v92, v92", f"v_mul_f32 v{vEB}, v{vEA}, v92"]
    for sg in range(8):
        for b in range(2):
            fill.append(f"v_fmamk_f32 v{ET + b}, v{vEA}, {f2u(float(4 * sg + b)):#x}, v{vEB}")
        for b in range(2):
            fill.append(f"v_fract_f32 v{ET + b}, v{ET + b}")
        for b in range(2):
            fill.append(f"v_cos_f32 v{ET + 2 + b}, v{ET + b}")
            fill.append(f"v_sin_f32 v{ET + 4 + b}, v{ET + b}")
        fill.append([f"v_cvt_pk_bf16_f32 v{EF + 4 * sg}, v{ET + 2}, v{ET + 4}",
                     f"v_cvt_pk_bf16_f32 v{EF + 4 * sg + 1}, v{ET + 3}, v{ET + 5}"])
        for b in range(2):
            fill.append(f"v_xor_b32 v{EF + 4 * sg + 2 + b}, v{vES}, v{EF + 4 * sg + b}")
    VZL = OPT.get("vzl", 38)
    VP1, VP2 = 55 - NRES, NRES - 2
    zflag_done = not dft
    for v in range(56):
        e(f"s_waitcnt vmcnt({younger(('h', v))}) lgkmcnt({4 if v < 55 else 0})")
        h = vr(HR + 4 * (v % D), 4)
        st = v % 3
        c0 = "0" if v == 0 else vr(OWN, 16)
        c1 = "0" if v == 0 else vr(OTH, 16)
        e(f"v_mfma_f32_32x32x16_bf16 {vr(OWN, 16)}, {vr(W2[st][0], 4)}, {h}, {c0}")
        if v in P2BAR:
            e(f"s_barrier  ; {P2BAR[v]}")
        if v + 2 < 56:
            for x in wreads(v + 2):
                e(x)
        e(f"v_mfma_f32_32x32x16_bf16 {vr(OTH, 16)}, {vr(W2[st][1], 4)}, {h}, {c1}")
        if PROF and v % 4 == 0:
            e("s_memtime s[78:79]")
        if PROF and v % 4 == 2:
            e(f"v_writelane_b32 v{vLOOPST}, s78, {16 + v // 4}")
        if v == 1:
            e(f"s_cmp_eq_u32 s{sDFT}, 0")
            e("s_cbranch_scc1 NOZF")
            e(f"v_mov_b32 v94, {TAGL}")
            e("v_mov_b32 v95, 1")
            e("s_mov_b64 exec, 1")
            e("ds_add_rtn_u32 v95, v94, v95 offset:8")
            e(f"v_mov_b32 v{vTG}, s{sTAG}")
            e(f"v_mov_b32 v{vZERO}, 0")
            e("s_waitcnt lgkmcnt(0)")
            e("v_readfirstlane_b32 s64, v95")
            e("s_cmp_lg_u32 s64, 3")
            e("s_cbranch_scc1 NOZF1")
            e(f"buffer_store_dword v{vTG}, v{vZERO}, {srd(SRD_WS)}, s{sFLG} offen sc1")
            lab("NOZF1")
            e("s_mov_b64 exec, -1")
            lab("NOZF")
        if not zflag_done and ("zs", 15) in vm and vm.index(("h", v)) > vm.index(("zs", 15)):
            e("s_mov_b64 exec, 1")
            e(f"ds_add_rtn_u32 v95, v94, v{vONE} offset:8")
            e("s_waitcnt lgkmcnt(0)")
            e("v_readfirstlane_b32 s64, v95")
            e(f"s_mov_b32 s65, s{sFLG}")
            e("s_cmp_lg_u32 s64, 3")
            e("s_cselect_b32 s65, 0x40000000, s65")
            issue("zflag", f"buffer_store_dword v{vTG}, v{vZERO}, {srd(SRD_WS)}, s65 offen sc1")
            e("s_mov_b64 exec, -1")
            zflag_done = True
        if dft and v < 16:
            e(f"s_add_u32 s65, s{sOUT}, {(8 * (v >> 2) + (v & 3)) * 65536}")
            issue(("zs", v), f"buffer_store_dwordx4 {vr(4 * v, 4)}, v{vZS}, {srd(SRD_WS)}, s65 offen sc1")
        if v in (VZL, VZL + 1):
            for sg in range(4 * (v - VZL), 4 * (v - VZL) + 4):
                issue(("z", sg), f"buffer_load_dwordx4 {vr(ZF + 4 * sg, 4)}, v{vZ}, {srd(SRD_WS)}, s{sZ} offen sc1")
                e(f"s_add_u32 s{sZ}, s{sZ}, 8192")
        hmore(v + 1 + D, 2)
        for _ in range(4):
            if fill and True:
                x = fill.pop(0)
                for y in (x if isinstance(x, list) else [x]):
                    e(y)
    assert not fill and zflag_done
    stamp(7)

    def ymf(sg):
        e(f"v_mfma_f32_32x32x16_bf16 {vr(Y, 16)}, {vr(ZF + 4 * sg, 4)}, {vr(EF + 4 * sg, 4)}, {'0' if sg == 0 else vr(Y, 16)}")

    XU, PT, TT = 176, 192, 208
    e("s_waitcnt vmcnt(0)")
    ymf(0)
    e(f"s_lshl_b32 s68, s{sWAVE}, 12")
    e(f"s_add_u32 s68, s68, {RED}")
    e(f"v_lshl_add_u32 v91, v{vLANE}, 4, s68")
    e(f"v_xor_b32 v92, 8192, v91")
    e("s_mov_b32 s70, 1.0")
    e("s_mov_b32 s71, 1.0")
    ymf(1)
    e(f"v_mul_f32 v{vR + 1}, {NLOG2E:#x}, v{vR}")
    e("v_mov_b32 v93, 0xffff0000")
    e(f"v_lshlrev_b32 v{XU}, 16, v{XR}")
    e(f"v_and_b32 v{XU + 1}, v93, v{XR}")
    ymf(2)
    for a in range(4):
        e(f"ds_write_b128 v91, {vr(OTH + 4 * a, 4)} offset:{1024 * a}")
        if a & 1:
            ymf(3 + (a >> 1))
    for k in range(1, 8):
        e(f"v_lshlrev_b32 v{XU + 2 * k}, 16, v{XR + k}")
        e(f"v_and_b32 v{XU + 2 * k + 1}, v93, v{XR + k}")
        if k in (2, 4):
            ymf(5 + (k >> 2))
    e("s_waitcnt lgkmcnt(0)")
    e("s_barrier")
    for a in range(4):
        e(f"ds_read_b128 {vr(PT + 4 * a, 4)}, v92 offset:{1024 * a}")
    ymf(7)
    e("s_waitcnt lgkmcnt(0)")
    rr = vr(vR, 2)
    L.append(".p2align 3")
    for k in range(8):
        e(f"v_pk_add_f32 {vr(OWN + 2 * k, 2)}, {vr(OWN + 2 * k, 2)}, {vr(PT + 2 * k, 2)}")
    for k in range(8):
        e(f"v_pk_mul_f32 {vr(TT + 2 * k, 2)}, {vr(OWN + 2 * k, 2)}, {rr} op_sel:[0,1] op_sel_hi:[1,1]")
    for k in range(16):
        e(f"v_exp_f32 v{TT + k}, v{TT + k}")
    for k in range(8):
        e(f"v_pk_add_f32 {vr(TT + 2 * k, 2)}, {vr(TT + 2 * k, 2)}, s[70:71]")
    for k in range(16):
        e(f"v_rcp_f32 v{TT + k}, v{TT + k}")
    for k in range(8):
        e(f"v_pk_mul_f32 {vr(OWN + 2 * k, 2)}, {vr(OWN + 2 * k, 2)}, {rr} op_sel_hi:[1,0]")
    for k in range(8):
        e(f"v_pk_mul_f32 {vr(OWN + 2 * k, 2)}, {vr(OWN + 2 * k, 2)}, {vr(TT + 2 * k, 2)}")
    for k in range(8):
        e(f"v_pk_fma_f32 {vr(OWN + 2 * k, 2)}, {vr(OWN + 2 * k, 2)}, {vr(Y + 2 * k, 2)}, {vr(XU + 2 * k, 2)}")
    for k in range(8):
        e(f"v_cvt_pk_bf16_f32 v{TT + k}, v{OWN + 2 * k}, v{OWN + 2 * k + 1}")
    of = " sc1" if OPT.get("osc1") else ""
    e(f"buffer_store_dwordx4 {vr(TT, 4)}, v{vXO}, {srd(SRD_OUT)}, s{sXO} offen{of}")
    e(f"buffer_store_dwordx4 {vr(TT + 4, 4)}, v{vXO}, {srd(SRD_OUT)}, s{sXO} offen offset:16{of}")
    stamp_flush(8, 64, vLOOPST)
    if OPT.get("rabs"):
        lab(f"DLY{tg}")
        e("s_memrealtime s[82:83]")
        e("s_waitcnt lgkmcnt(0)")
        e("s_sub_u32 s82, s82, s98")
        e(f"s_cmp_lt_u32 s82, {OPT['rabs']}")
        e(f"s_cbranch_scc1 DLY{tg}")
    e("s_endpgm")


def cwave():
    lab("CWAVE")
    cm("================ C waves: matrix work ================")
    e("s_setprio 2")
    e(f"v_mov_b32 v{vLANE}, v0")
    e("v_and_b32 v2, 31, v0")
    e("v_lshrrev_b32 v3, 5, v0")
    e("v_bfe_u32 v4, v0, 1, 3")
    e("v_lshlrev_b32 v5, 7, v2")
    e(f"v_add_u32 v5, {SLOT + 32768}, v5")
    for u in range(4):
        e(f"v_add_u32 v6, {2 * u}, v3")
        e("v_xor_b32 v6, v6, v4")
        e(f"v_lshl_add_u32 v{XA[u]}, v6, 4, v5")
    e("v_bfe_u32 v4, v0, 2, 2")
    e(f"v_lshlrev_b32 v{WA}, 12, v3")
    e(f"v_lshl_add_u32 v{WA}, v4, 8, v{WA}")
    e(f"v_xor_b32 v4, s{sWAVE}, v4")
    e(f"v_lshl_add_u32 v{WA}, v4, 6, v{WA}")
    e("v_bfe_u32 v4, v0, 4, 1")
    e(f"v_lshl_add_u32 v{WA}, v4, 5, v{WA}")
    e("v_and_b32 v4, 3, v0")
    e(f"v_lshl_add_u32 v{WA}, v4, 3, v{WA}")
    e(f"v_add_u32 v{WA}, {SLOT}, v{WA}")
    e(f"s_lshl_b32 s64, s{sWAVE}, 7")
    e(f"s_add_u32 s64, s64, {CSL}")
    e(f"v_lshl_add_u32 v{vA_CS}, v3, 4, s64")
    e(f"v_lshlrev_b32 v{vA_MR}, 3, v2")
    e(f"v_add_u32 v{vA_MR}, {MRP}, v{vA_MR}")
    e(f"v_mov_b32 v{vA_TAG}, {TAGL}")
    e(f"v_lshl_add_u32 v{vD_CS}, v2, 2, s64")
    e(f"v_lshlrev_b32 v{vD_R}, 4, v3")
    e(f"v_add_u32 v{vD_R}, {RL}, v{vD_R}")
    e(f"v_mov_b32 v{vD_TAG}, {TAGL}")
    for r in range(128, 256):
        e(f"v_mov_b32 v{r}, 0")
    srd_finish()
    e(f"s_and_b32 s{sP}, s{sWAVE}, 1")
    e(f"s_lshr_b32 s{sKH}, s{sWAVE}, 1")
    e(f"s_lshl_b32 s68, s{sP}, 5")
    e(f"s_add_u32 s68, s68, s{sT1}")
    e(f"s_lshl_b32 s{sXO}, s68, 10")
    e(f"s_lshl_b32 s68, s{sCB}, 7")
    e(f"s_add_u32 s{sXO}, s{sXO}, s68")
    e(f"s_lshl_b32 s68, s{sKH}, 6")
    e(f"s_add_u32 s{sXO}, s{sXO}, s68")
    e(f"s_sub_u32 s69, 32, s{sT1}")
    e("s_and_b32 s69, s69, 31")
    e(f"s_cmp_ge_u32 s{sCB}, 4")
    e(f"s_cselect_b32 s69, s69, s{sT1}")
    e(f"s_lshl_b32 s{sZ}, s69, 16")
    e(f"s_add_u32 s{sZ}, s{sZ}, {Z_OFF}")
    e(f"s_mov_b32 s{sFZ}, {FLZ}")
    e(f"s_cmp_eq_u32 s{sT1}, 0")
    e(f"s_cselect_b32 s{sC0}, 64, 63")
    e(f"s_lshr_b32 s68, s{sT1}, 1")
    e("s_lshl_b32 s68, s68, 11")
    e(f"s_add_u32 s{sPOLL}, s68, {FLH}")
    e(f"s_and_b32 s70, s{sT1}, 1")
    e(f"s_lshl_b32 s71, s{sP}, 1")
    e("s_add_u32 s70, s70, s71")
    e("s_lshl_b32 s70, s70, 9")
    e("s_add_u32 s68, s68, s70")
    e(f"s_add_u32 s{sRO}, s68, {ST_OFF}")
    e(f"s_lshl_b32 s68, s{sT1}, 2")
    e("s_add_u32 s68, s68, s71")
    e(f"s_add_u32 s68, s68, s{sKH}")
    e(f"s_mul_i32 s68, s68, {56 * 1024}")
    rot_offsets(10, "s68")
    e(f"s_lshl_b32 s64, s{sI}, 4")
    e(f"s_add_u32 s64, s64, s{sJ}")
    e("s_lshl_b32 s64, s64, 7")
    e(f"s_add_u32 s{sFLG}, s64, {FLH}")
    e(f"s_cmp_eq_u32 s{sDFT}, 1")
    e("s_cbranch_scc1 CDFT")
    e(f"s_lshl_b32 s64, s{sJ}, 2")
    e(f"s_add_u32 s64, s64, s{sWAVE}")
    e("s_lshl_b32 s64, s64, 10")
    e(f"s_mul_i32 s65, s{sI}, {2 * 4 * 56 * 1024}")
    e(f"s_add_u32 s{sOUT}, s64, s65")
    stamp(1)
    e("s_barrier")
    mainloop(False)
    stamp(2)
    glu_epilogue()
    phase2(False)
    lab("CDFT")
    e(f"s_lshl_b32 s64, s{sI}, 12")
    e(f"s_and_b32 s65, s{sJ}, 1")
    e("s_lshl_b32 s66, s65, 11")
    e("s_add_u32 s64, s64, s66")
    e(f"s_lshl_b32 s66, s{sWAVE}, 9")
    e("s_add_u32 s64, s64, s66")
    e(f"s_add_u32 s{sOUT}, s64, {Z_OFF}")
    dft_prologue()
    stamp(1)
    e("s_barrier")
    for k in range(16):
        e(f"ds_read_b128 {vr(4 * k, 4)}, v119 offset:{1024 * k}")
    mainloop(True)
    stamp(2)
    dft_epilogue()


hdr = open("cdna_kernels/" + NAME + ".s.ref").read().split("\n")
head = [l for l in hdr if l.startswith(";") and "@launch" not in l and "Override launch" not in l and "grid=ceil" not in l]
out = head + ["; @launch grid=(256,1,1) block=(512,1,1) lds=163840",
              '.amdgcn_target "amdgcn-amd-amdhsa--gfx950"', ".text", f".globl {K}", ".p2align 8", f".type {K},@function", f"{K}:"]
prologue()
l01wave()
l2wave()
l3wave()
cwave()
lab("END")
e("s_endpgm")
out += L
out += ['.section .rodata,"a"', ".p2align 6", f".amdhsa_kernel {K}", "  .amdhsa_next_free_vgpr 256", "  .amdhsa_next_free_sgpr 102",
        "  .amdhsa_accum_offset 256", "  .amdhsa_group_segment_fixed_size 0", "  .amdhsa_kernarg_size 96",
        "  .amdhsa_user_sgpr_count 2", "  .amdhsa_user_sgpr_kernarg_segment_ptr 1", "  .amdhsa_system_sgpr_workgroup_id_x 1",
        ".end_amdhsa_kernel", ""]
open(sys.argv[1], "w").write("\n".join(out))
```

```python
import sys

NAME = "recurrent_scan__spectral_fnet__glu_gated_glu__prompt"
OPT = dict(map48=0, prof=0, D=12, D0=6, wt=0, t0=0, mt=0, sp=2, n23=4, n01=4, hp=0, hb0=2, p84=1, ct=1, rot=1, pre=8, th=0, trk=0, ua=30, slp=2, spin=200000)
for a in sys.argv[2:]:
    k, v = a.split("=")
    OPT[k] = int(v)
PROF = OPT["prof"]
K = NAME + "_kernel"
D = OPT["D"]

H_OFF, Z_OFF, ST_OFF, CS_OFF = 0, 0x800000, 0xA00000, 0xA10000
FLR, FLC, FLH, FLZ, PROF_OFF, WS_SIZE = 0xA40000, 0xA48000, 0xA50000, 0xA58000, 0xA60000, 0xB00000
vLOOPST = 121
SLOT = 49152
MISC = 147456
CSL, MRP, RL, NMRL, TAGL, CNTL = MISC, MISC + 1024, MISC + 2048, MISC + 2560, MISC + 3072, MISC + 3076
RED = 20 * 4096
NRES = 39


def wslot(v):
    return v if v < 36 else v + 1 if v < NRES else v - NRES

LOG2E = 0x3FB8AA3B
NLOG2E = 0xBFB8AA3B


def f2u(x):
    import struct
    return struct.unpack("<I", struct.pack("<f", x))[0]


L = []


def e(s):
    L.append("    " + s)


def lab(s):
    L.append(s + ":")


def cm(s):
    L.append("    ; " + s)


def vr(a, n):
    return f"v[{a}:{a + n - 1}]"


SRD_X, SRD_W0, SRD_W1, SRD_WD, SRD_WS, SRD_OUT, SRD_DBG, SRD_WM = 4, 8, 12, 16, 20, 24, 28, 32
sWAVE, sI, sJ, sT1, sCB, sRS, sCOL, sDFT, sTAG, sIDX, sK4 = 36, 37, 38, 39, 40, 41, 42, 43, 44, 45, 46
sSTAMP = 80
nstamp = [0]


def srd(n):
    return f"s[{n}:{n + 3}]"


def stamp(i):
    if PROF:
        e(f"{'s_memrealtime' if PROF == 2 else 's_memtime'} s[{sSTAMP + 2 * i}:{sSTAMP + 2 * i + 1}]")


def stamp_flush(n, vt, loopst=False):
    if not PROF:
        return
    e("s_waitcnt lgkmcnt(0)")
    for i in range(8):
        e(f"v_mov_b32 v{vt + i}, s{sSTAMP + 2 * i}" if i < n else f"v_mov_b32 v{vt + i}, 0")
    e(f"s_lshl_b32 s78, s2, 3")
    e(f"s_add_u32 s78, s78, s{sWAVE}")
    e(f"s_lshl_b32 s78, s78, 8")
    e(f"s_add_u32 s78, s78, {PROF_OFF}")
    e(f"v_mov_b32 v{vt + 8}, 0")
    e(f"buffer_store_dwordx4 {vr(vt, 4)}, v{vt + 8}, {srd(SRD_WS)}, s78 offen")
    e(f"buffer_store_dwordx4 {vr(vt + 4, 4)}, v{vt + 8}, {srd(SRD_WS)}, s78 offen offset:16")
    if loopst:
        e(f"v_lshlrev_b32 v{vt + 9}, 2, v{vLANE if loopst == vLOOPST else 0}")
        e(f"v_min_u32 v{vt + 9}, 124, v{vt + 9}")
        e(f"buffer_store_dword v{loopst}, v{vt + 9}, {srd(SRD_WS)}, s78 offen offset:64")
    e(f"s_memrealtime s[76:77]")
    e("s_waitcnt lgkmcnt(0)")
    e(f"v_mov_b32 v{vt}, s98")
    e(f"v_mov_b32 v{vt + 1}, s76")
    e(f"buffer_store_dwordx2 {vr(vt, 2)}, v{vt + 8}, {srd(SRD_WS)}, s78 offen offset:32")


uid = [0]
vLST = 250


QUIET = [False]


def lbar():
    if PROF and not QUIET[0]:
        e("s_memtime s[96:97]")
        e("s_mov_b32 s100, m0")
        e("s_mov_b32 m0, s79")
        e("s_waitcnt lgkmcnt(0)")
        e(f"v_writelane_b32 v{vLST}, s96, m0")
        e("s_mov_b32 m0, s100")
        e("s_cselect_b32 s101, 1, 0")
        e("s_add_u32 s79, s79, 1")
        e("s_cmp_eq_u32 s101, 1")
    e("s_barrier")


def poll_issue(vdst, vaddr, ssoff, srdn, n=1):
    op = "buffer_load_dword" if n == 1 else "buffer_load_dwordx2"
    d = f"v{vdst}" if n == 1 else vr(vdst, 2)
    e(f"{op} {d}, v{vaddr}, {srd(srdn)}, {ssoff} offen sc1")


def poll_wait(vdst, vaddr, ssoff, srdn, cond_tag=True, n=1, first_wait=0):
    uid[0] += 1
    k = uid[0]
    e(f"s_mov_b32 s75, {OPT['spin']}")
    e(f"s_waitcnt vmcnt({first_wait})")
    lab(f"POLL{k}")
    if cond_tag:
        e(f"v_cmp_ne_u32 vcc, s{sTAG}, v{vdst}")
        if n == 2:
            e(f"v_cmp_ne_u32 s[76:77], s{sTAG}, v{vdst + 1}")
            e("s_nop 0")
            e("s_or_b64 vcc, vcc, s[76:77]")
    else:
        e(f"v_cmp_eq_u32 vcc, 0, v{vdst}")
    e("s_nop 1")
    e("s_cmp_eq_u64 vcc, 0")
    e(f"s_cbranch_scc1 POLLD{k}")
    if OPT["slp"]:
        e(f"s_sleep {OPT['slp']}")
    poll_issue(vdst, vaddr, ssoff, srdn, n)
    e("s_sub_u32 s75, s75, 1")
    e("s_cmp_lg_u32 s75, 0")
    e("s_waitcnt vmcnt(0)")
    e(f"s_cbranch_scc1 POLL{k}")
    lab(f"POLLD{k}")


def srd_finish():
    e("s_waitcnt lgkmcnt(0)")
    e(f"s_cmp_eq_u32 s{sDFT}, 1")
    e("s_cselect_b64 s[8:9], s[48:49], s[52:53]")
    e("s_cselect_b64 s[12:13], s[50:51], s[54:55]")
    e("s_mov_b64 s[16:17], s[56:57]")
    e("s_mov_b64 s[24:25], s[58:59]")
    e("s_mov_b64 s[28:29], s[60:61]")
    e("s_mov_b64 s[20:21], s[62:63]")


def prologue():
    e("s_cmp_ge_u32 s2, 256")
    e("s_cbranch_scc1 END")
    e("s_load_dwordx2 s[4:5], s[0:1], 0")
    e("s_load_dwordx4 s[48:51], s[0:1], 24")
    e("s_load_dwordx8 s[52:59], s[0:1], 48")
    e("s_load_dwordx4 s[60:63], s[0:1], 80")
    if PROF or OPT.get("rabs"):
        e("s_memrealtime s[98:99]")
    stamp(0)
    if PROF:
        e("s_mov_b32 s79, 0")
    e("v_lshrrev_b32 v1, 6, v0")
    e("v_and_b32 v0, 63, v0")
    e(f"s_lshr_b32 s{sIDX}, s2, 3")
    e(f"v_readfirstlane_b32 s{sWAVE}, v1")
    if OPT["map48"]:
        e("s_and_b32 s64, s2, 3")
        e("s_lshl_b32 s64, s64, 2")
        e(f"s_and_b32 s65, s{sIDX}, 3")
        e(f"s_add_u32 s{sI}, s64, s65")
        e("s_bfe_u32 s64, s2, 0x10002")
        e(f"s_lshr_b32 s{sK4}, s{sIDX}, 2")
        e("s_mul_i32 s65, s64, 7")
        e(f"s_add_u32 s65, s65, s{sK4}")
        e("s_add_u32 s66, s64, 14")
        e(f"s_cmp_eq_u32 s{sK4}, 7")
        e(f"s_cselect_b32 s{sJ}, s66, s65")
    else:
        e("s_and_b32 s64, s2, 1")
        e("s_lshl_b32 s64, s64, 3")
        e(f"s_and_b32 s65, s{sIDX}, 7")
        e(f"s_add_u32 s{sI}, s64, s65")
        e("s_bfe_u32 s64, s2, 0x20001")
        e(f"s_lshr_b32 s{sK4}, s{sIDX}, 3")
        e("s_mul_i32 s65, s64, 3")
        e(f"s_add_u32 s65, s65, s{sK4}")
        e("s_add_u32 s66, s64, 14")
        e(f"s_cmp_eq_u32 s{sK4}, 3")
        e("s_cselect_b32 s65, s66, s65")
        e("s_lshl_b32 s66, s64, 2")
        e(f"s_add_u32 s66, s66, s{sK4}")
        e("s_sub_u32 s66, s66, 2")
        e("s_cmp_lt_u32 s64, 2")
        e(f"s_cselect_b32 s{sJ}, s65, s66")
    if OPT["p84"]:
        e("s_bfe_u32 s64, s2, 0x20001")
        e("s_lshl_b32 s64, s64, 3")
        e(f"s_and_b32 s65, s{sIDX}, 7")
        e(f"s_add_u32 s{sT1}, s64, s65")
        e("s_and_b32 s64, s2, 1")
        e("s_lshl_b32 s64, s64, 2")
        e(f"s_lshr_b32 s65, s{sIDX}, 3")
        e(f"s_add_u32 s{sCB}, s64, s65")
    else:
        e("s_and_b32 s64, s2, 7")
        e("s_lshl_b32 s64, s64, 2")
        e(f"s_and_b32 s65, s{sIDX}, 3")
        e(f"s_add_u32 s{sT1}, s64, s65")
        e(f"s_lshr_b32 s{sCB}, s{sIDX}, 2")
    e(f"s_lshl_b32 s{sCOL}, s{sJ}, 8")
    e(f"s_sub_u32 s64, s{sCOL}, {14 * 256}")
    e(f"s_movk_i32 s{sRS}, 3584")
    e(f"s_cmp_ge_u32 s{sJ}, 14")
    e(f"s_cselect_b32 s{sDFT}, 1, 0")
    e(f"s_cselect_b32 s{sRS}, 1024, s{sRS}")
    e(f"s_cselect_b32 s{sCOL}, s64, s{sCOL}")
    e(f"s_lshl_b32 s10, s{sRS}, 9")
    e("s_mov_b32 s14, s10")
    e("s_mov_b32 s6, 0x200000")
    e("s_mov_b32 s7, 0x20000")
    e("s_mov_b32 s11, 0x20000")
    e("s_mov_b32 s15, 0x20000")
    e(f"s_mov_b32 s18, {1792 * 1024}")
    e("s_mov_b32 s19, 0x20000")
    e(f"s_mov_b32 s22, {WS_SIZE}")
    e("s_mov_b32 s23, 0x20000")
    e("s_mov_b32 s26, 0x200000")
    e("s_mov_b32 s27, 0x20000")
    e("s_mov_b32 s30, 256")
    e("s_mov_b32 s31, 0x20000")
    e("s_mov_b32 s34, s10")
    e("s_mov_b32 s35, 0x20000")
    e(f"s_cmp_lt_u32 s{sWAVE}, 4")
    e("s_cbranch_scc1 CWAVE")
    e(f"s_cmp_eq_u32 s{sWAVE}, 6")
    e("s_cbranch_scc1 L2WAVE")
    e(f"s_cmp_eq_u32 s{sWAVE}, 7")
    e("s_cbranch_scc1 L3WAVE")


def wd_voffset(vd, vt):
    e(f"v_lshrrev_b32 v{vt}, 3, v0")
    e(f"v_lshlrev_b32 v{vd}, 10, v{vt}")
    e(f"v_bfe_u32 v{vt}, v0, 4, 1")
    e(f"v_lshlrev_b32 v{vt}, 2, v{vt}")
    e(f"v_and_b32 v{vt + 1}, 7, v0")
    e(f"v_xor_b32 v{vt}, v{vt}, v{vt + 1}")
    e(f"v_lshl_add_u32 v{vd}, v{vt}, 4, v{vd}")


NB = 2 * OPT["n23"] + 2 * OPT["n01"]
XM, XS = (224, 8192) if OPT["p84"] else (448, 4096)
assert XM % NB == 0 or OPT["sp"] != 2
XROT = 64


def xw_init(first_sgpr_or_imm):
    if OPT["sp"] != 2:
        return
    if OPT["p84"]:
        e(f"s_lshr_b32 s60, s{sIDX}, 2")
        e("s_lshl_b32 s60, s60, 10")
        e(f"s_and_b32 s63, s{sIDX}, 3")
        e("s_lshl_b32 s63, s63, 7")
        e("s_add_u32 s60, s60, s63")
        e("s_and_b32 s63, s2, 1")
        e("s_lshl_b32 s63, s63, 9")
        e("s_add_u32 s60, s60, s63")
        e("s_bfe_u32 s63, s2, 0x20001")
    else:
        e(f"s_lshl_b32 s60, s{sIDX}, 7")
        e("s_and_b32 s63, s2, 7")
    e(f"s_add_u32 s60, s60, {first_sgpr_or_imm}")
    e(f"s_add_u32 s62, s60, {XM * XS}")
    e(f"s_mul_i32 s63, s63, {XROT * XS}")
    e(f"s_cmp_ge_u32 s63, {XM * XS}")
    e("s_cselect_b32 s63, 0, s63")
    e("s_add_u32 s60, s60, s63")


def xw(n, interval=None):
    if OPT["sp"] != 2 or (interval in (0, 2) and OPT.get("xskip")):
        return
    for k in range(n):
        e(f"s_buffer_load_dwordx2 s[58:59], {srd(SRD_WD)}, s60 offset:{XS * k + 60}")
    e(f"s_add_u32 s60, s60, {NB * XS}")
    e("s_cmp_ge_u32 s60, s62")
    e(f"s_cselect_b32 s63, {XM * XS}, 0")
    e("s_sub_u32 s60, s60, s63")


def rot_offsets(shift, add=None):
    for k in range(8):
        if OPT["rot"]:
            e(f"s_add_u32 s{48 + k}, s{sCB}, {k}")
            e(f"s_and_b32 s{48 + k}, s{48 + k}, 7")
            e(f"s_lshl_b32 s{48 + k}, s{48 + k}, {shift}")
        else:
            e(f"s_mov_b32 s{48 + k}, {k << shift}")
        if add:
            e(f"s_add_u32 s{48 + k}, s{48 + k}, {add}")


def wait_c_done():
    uid[0] += 1
    k = uid[0]
    e(f"v_mov_b32 v7, {CNTL}")
    e(f"s_mov_b32 s75, {OPT['spin']}")
    lab(f"CW{k}")
    e("ds_read_b32 v8, v7")
    e("s_waitcnt lgkmcnt(0)")
    e("v_readfirstlane_b32 s76, v8")
    e("s_sub_u32 s75, s75, 1")
    e("s_cmp_eq_u32 s75, 0")
    e(f"s_cbranch_scc1 CWD{k}")
    e("s_sleep 1")
    e("s_cmp_lt_u32 s76, 4")
    e(f"s_cbranch_scc1 CW{k}")
    lab(f"CWD{k}")


P2BAR = {55 - NRES: "BP1", NRES - 2: "BP2"}


def l_tail(poller):
    ST0 = 64
    n = 56 - NRES
    e(f"s_sub_u32 s64, s{sWAVE}, 4")
    e("s_lshl_b32 s65, s64, 13")
    for v in range(NRES, 56):
        if v == NRES or v & 7 == 0:
            e(f"s_add_u32 s66, s65, {(v >> 3) * 262144}")
        e(f"s_add_u32 s67, s66, s{48 + (v & 7)}")
        if not OPT.get("nowd"):
            e(f"buffer_load_dwordx4 {vr(ST0 + 4 * (v - NRES), 4)}, v5, {srd(SRD_WD)}, s67 offen")
    e(f"s_lshl_b32 s65, s{sT1}, 2")
    e("s_add_u32 s65, s65, s64")
    e(f"s_mul_i32 s60, s65, {56 * 1024}")
    e(f"s_lshl_b32 s65, s{sCB}, 10")
    e("s_add_u32 s60, s60, s65")
    e("s_lshl_b32 s64, s64, 10")
    e("v_lshl_add_u32 v6, v0, 4, s64")

    def hwarm(b):
        if OPT["hp"]:
            for k in range(8):
                e(f"s_buffer_load_dwordx2 s[58:59], {srd(SRD_WS)}, s60 offset:{8192 * b + 128 * k + 60}")

    if poller:
        poll_issue(11, 10, "s68", SRD_WS)
        poll_wait(11, 10, "s68", SRD_WS)
    else:
        e(f"s_waitcnt vmcnt({n})")
    stamp(4)
    QUIET[0] = bool(OPT["hp"])
    lbar()
    b0 = OPT["hb0"]
    for b in range(b0, b0 + 3):
        hwarm(b)
    e("s_waitcnt vmcnt(0)")
    stamp(5)
    lbar()
    rest = list(range(b0 + 3, 7))
    for u in range(n):
        if u == 16:
            e("v_add_u32 v6, 0x10000, v6")
        e(f"ds_write_b128 v6, {vr(ST0 + 4 * u, 4)} offset:{(u * 4096) & 0xFFFF}")
        if u % 6 == 5 and rest:
            hwarm(rest.pop(0))
    for b in rest:
        hwarm(b)
    if poller:
        poll_issue(11, 12, "s69", SRD_WS)
        poll_wait(11, 12, "s69", SRD_WS)
    e("s_waitcnt lgkmcnt(0)")
    stamp(6)
    QUIET[0] = False
    lbar()
    stamp_flush(7, 8, vLST)
    e("s_endpgm")


def l3_tail():
    e("v_min_u32 v10, 13, v0")
    e("v_lshlrev_b32 v10, 7, v10")
    e(f"s_lshr_b32 s68, s{sT1}, 1")
    e("s_lshl_b32 s68, s68, 11")
    e(f"s_add_u32 s68, s68, {FLH}")
    e("v_bfe_u32 v12, v0, 1, 4")
    e("v_lshlrev_b32 v12, 4, v12")
    e("v_and_b32 v13, 1, v0")
    e("v_add3_u32 v12, v12, v13, 14")
    e("v_lshlrev_b32 v12, 7, v12")
    e(f"s_mov_b32 s69, {FLH}")
    wd_voffset(5, 14)
    e(f"s_lshl_b32 s64, s{sCB}, 7")
    rot_offsets(15, "s64")
    QUIET[0] = False
    wait_c_done()
    l_tail(True)


def l01wave():
    vX0, vX1, vW, vWD = 2, 3, 4, 5
    sLW, sXa, sXb, sWo, sS0, sS1, sR4, sT, sCnt, sWd = 64, 65, 66, 67, 68, 69, 70, 71, 72, 73
    cm("================ L0/L1: DMA waves ================")
    QUIET[0] = bool(OPT["sp"])
    e(f"s_sub_u32 s{sLW}, s{sWAVE}, 4")
    e("v_lshrrev_b32 v6, 3, v0")
    e(f"v_lshlrev_b32 v{vX0}, 16, v6")
    e("v_lshrrev_b32 v6, 1, v6")
    e("v_and_b32 v7, 7, v0")
    e("v_xor_b32 v6, v6, v7")
    e(f"v_lshl_add_u32 v{vX0}, v6, 4, v{vX0}")
    e(f"v_xor_b32 v{vX1}, 64, v{vX0}")
    e("v_lshrrev_b32 v6, 4, v0")
    e(f"v_mul_lo_u32 v{vW}, v6, s{sRS}")
    e("v_bfe_u32 v7, v0, 2, 2")
    e("v_xor_b32 v7, v7, v6")
    e("v_lshlrev_b32 v7, 2, v7")
    e("v_and_b32 v8, 3, v0")
    e("v_or_b32 v7, v7, v8")
    e(f"v_lshl_add_u32 v{vW}, v7, 4, v{vW}")
    e(f"s_lshl_b32 s{sXa}, s{sI}, 1")
    e(f"s_add_u32 s{sXa}, s{sXa}, s{sLW}")
    e(f"s_lshl_b32 s{sXa}, s{sXa}, 10")
    e(f"s_add_u32 s{sXb}, s{sXa}, {32 * 1024}")
    e(f"s_mov_b32 s{sWo}, s{sCOL}")
    e(f"s_lshl_b32 s{sR4}, s{sRS}, 2")
    e(f"s_lshl_b32 s74, s{sLW}, 10")
    e(f"s_lshl_b32 s76, s{sLW}, 12")
    wd_voffset(vWD, 6)

    def wpieces(base_sgpr, imm):
        e(f"s_add_u32 s{sT}, s{base_sgpr}, s74")
        e(f"s_add_u32 m0, s{sT}, {imm}")
        e("s_nop 0")
        for k in range(8):
            if not OPT.get("nodma"):
                e(f"buffer_load_dwordx4 v{vW}, {srd(SRD_WM)}, s{sWo} offen lds")
            if k < 7:
                e("s_add_u32 m0, m0, 2048")
            e(f"s_add_u32 s{sWo}, s{sWo}, s{sR4}")

    def xpieces(base_sgpr, half):
        sx = sXb if half else sXa
        e(f"s_add_u32 s{sT}, s{base_sgpr}, s76")
        e(f"s_add_u32 m0, s{sT}, {32768 + half * 8192}")
        e(f"s_mov_b32 s{sT}, s{sx}")
        for k in range(4):
            if not OPT.get("nodma"):
                e(f"buffer_load_dwordx4 v{vX1 if k & 1 else vX0}, {srd(SRD_X)}, s{sT} offen lds")
            if k < 3:
                e("s_add_u32 m0, m0, 1024")
                e(f"s_add_u32 s{sT}, s{sT}, 0x80000")
        e(f"s_add_u32 s{sx}, s{sx}, 128")

    e(f"s_mov_b32 s{sS0}, {SLOT}")
    e(f"s_mov_b32 s{sS1}, {2 * SLOT}")
    srd_finish()
    e(f"s_cmp_eq_u32 s{sLW}, 0")
    e("s_cselect_b64 s[32:33], s[8:9], s[12:13]")
    e("s_lshl_b32 s77, s2, 1")
    e(f"s_add_u32 s77, s77, s{sLW}")
    e("s_lshl_b32 s77, s77, 8")
    e("s_add_u32 s56, s16, s77")
    e("s_addc_u32 s57, s17, 0")

    def swarm(chunk):
        for k in range(4):
            if OPT["sp"] == 1:
                e(f"s_load_dword s58, s[56:57], {chunk * 131072 + 64 * k}")

    cm("G0 = x0 + W0 ; G1 = W1 + x1a")
    xpieces(sS0, 0)
    xpieces(sS0, 1)
    wpieces(sS0, 0)
    wpieces(sS0, 16384)
    xpieces(sS1, 0)
    e(f"s_mov_b32 s{sS0}, {2 * SLOT}")
    e(f"s_mov_b32 s{sS1}, 0")
    swarm(0)
    swarm(1)
    e(f"s_mul_i32 s77, s{sLW}, {OPT['n01'] * XS}")
    e(f"s_add_u32 s77, s77, {2 * OPT['n23'] * XS}")
    xw_init("s77")
    xw(OPT["n01"])
    e(f"s_mov_b32 s{sCnt}, 6")
    e(f"s_lshl_b32 s{sT}, s{sCB}, 7")
    rot_offsets(15, f"s{sT}")
    e("s_waitcnt vmcnt(12)")
    stamp(1)
    lbar()
    lab("L01LOOP")
    wpieces(sS0, 0)
    xpieces(sS0, 1)
    swarm(2)
    if OPT["sp"] == 2:
        if OPT.get("xskip"):
            e(f"s_cmp_ge_u32 s{sCnt}, 5")
            e("s_cbranch_scc1 L01NOXW")
        xw(OPT['n01'])
        lab("L01NOXW")
    e("s_waitcnt vmcnt(12)")
    lbar()
    wpieces(sS0, 16384)
    xpieces(sS1, 0)
    swarm(3)
    xw(OPT['n01'])
    e("s_add_u32 s56, s56, 262144")
    e("s_addc_u32 s57, s57, 0")
    e(f"s_mov_b32 s{sS0}, s{sS1}")
    e(f"s_add_u32 s{sS1}, s{sS1}, {SLOT}")
    e(f"s_cmp_eq_u32 s{sS1}, {3 * SLOT}")
    e(f"s_cselect_b32 s{sS1}, 0, s{sS1}")
    e(f"s_sub_u32 s{sCnt}, s{sCnt}, 1")
    e(f"s_cmp_lg_u32 s{sCnt}, 0")
    e("s_waitcnt vmcnt(12)")
    lbar()
    e("s_cbranch_scc1 L01LOOP")
    cm("after B12: G14")
    wpieces(sS0, 0)
    xpieces(sS0, 1)
    xw(OPT["n01"])
    e("s_waitcnt vmcnt(12)")
    lbar()
    wpieces(sS0, 16384)
    e(f"s_lshl_b32 s{sWd}, s{sLW}, 14")
    e(f"s_lshl_b32 m0, s{sLW}, 11")

    def units(a, b, th=0):
        for v in range(a, b if not OPT.get("nowd") else a):
            if v and v & 7 == 0:
                e(f"s_add_u32 s{sWd}, s{sWd}, 262144")
            e(f"s_add_u32 s{sT}, s{sWd}, s{48 + (v & 7)}")
            e(f"buffer_load_dwordx4 v{vWD}, {srd(SRD_WD)}, s{sT} offen lds")
            e("s_add_u32 m0, m0, 1024")
            e(f"s_add_u32 s{sT}, s{sT}, 8192")
            e(f"buffer_load_dwordx4 v{vWD}, {srd(SRD_WD)}, s{sT} offen lds")
            d = (wslot(v + 1) - wslot(v)) * 4096 - 1024
            e(f"s_add_u32 m0, m0, {d}" if d > 0 else f"s_sub_u32 m0, m0, {-d}")
            if th:
                e(f"s_waitcnt vmcnt({th})")

    units(0, 2)
    xw(OPT["n01"])
    e("s_waitcnt vmcnt(12)")
    lbar()
    units(2, 8)
    e("s_waitcnt vmcnt(16)")
    lbar()
    units(8, 14)
    stamp(2)
    lbar()
    QUIET[0] = False
    TR = 14 + OPT["trk"]
    units(14, TR, OPT["th"])
    e(f"s_cmp_eq_u32 s{sDFT}, 1")
    e("s_cbranch_scc1 L01GO")
    wait_c_done()
    lab("L01GO")
    stamp(3)
    units(TR, NRES)
    lab("LTAIL")
    l_tail(False)


def l2wave():
    vA, vDum, vTD, vC = 2, 6, 7, 8
    lab("L2WAVE")
    cm("================ L2: cache warming touches, column sums ================")
    if OPT.get("lprio"):
        e(f"s_setprio {OPT['lprio']}")
    e(f"s_and_b32 s64, s{sK4}, 1")
    e(f"s_lshr_b32 s65, s{sK4}, 1")
    e("s_lshl_b32 s65, s65, 5")
    e(f"s_lshl_b32 s66, s{sI}, 1")
    e("s_add_u32 s64, s64, s65")
    e("s_add_u32 s64, s64, s66")
    e("s_lshl_b32 s64, s64, 10")
    e("v_lshl_add_u32 v10, v0, 16, s64")
    e(f"s_and_b32 s65, s{sI}, 7")
    e("s_lshl_b32 s65, s65, 3")
    e("v_bfe_u32 v11, v0, 2, 3")
    e("v_add_u32 v11, s65, v11")
    e(f"v_mul_lo_u32 v11, v11, s{sRS}")
    e("v_and_b32 v12, 1, v0")
    e("v_lshl_add_u32 v11, v12, 7, v11")
    e(f"v_add_u32 v11, s{sCOL}, v11")
    e("v_cmp_lt_u32 vcc, 31, v0")
    e("v_and_b32 v12, 2, v0")
    e("v_cmp_ne_u32 s[66:67], 0, v12")
    e("v_cndmask_b32 v10, v10, v11, vcc")
    e("v_mov_b32 v11, 0")
    e("v_lshrrev_b32 v18, 3, v0")
    e("v_and_b32 v19, 7, v0")
    e(f"v_lshlrev_b32 v{vTD}, 10, v18")
    e(f"v_lshl_add_u32 v{vTD}, v19, 7, v{vTD}")
    e("v_mov_b32 v18, 0x40000000")
    e(f"v_cndmask_b32 v{vTD}, v{vTD}, v18, vcc")
    e(f"s_lshl_b32 s71, s{sIDX}, 12")
    e("v_lshrrev_b32 v18, 3, v0")
    e("v_and_b32 v19, 7, v0")
    e(f"v_mul_lo_u32 v{vC}, v18, s{sRS}")
    e(f"v_lshl_add_u32 v{vC}, v19, 4, v{vC}")
    e(f"s_lshr_b32 s64, s{sI}, 2")
    e("s_lshl_b32 s64, s64, 4")
    e(f"s_mul_i32 s69, s64, s{sRS}")
    e(f"s_and_b32 s64, s{sI}, 1")
    e("s_lshl_b32 s64, s64, 7")
    e("s_add_u32 s69, s69, s64")
    e(f"s_add_u32 s69, s69, s{sCOL}")
    e(f"s_lshl_b32 s70, s{sRS}, 3")
    e(f"s_mul_i32 s72, s{sRS}, 56")
    srd_finish()
    e(f"s_bitcmp1_b32 s{sI}, 1")
    e("s_cselect_b64 s[32:33], s[12:13], s[8:9]")
    if OPT["t0"]:
        e("v_mov_b32 v14, s8")
        e("v_mov_b32 v15, s9")
        e("v_mov_b32 v16, s12")
        e("v_mov_b32 v17, s13")
        e("v_cndmask_b32 v14, v14, v16, s[66:67]")
        e("v_cndmask_b32 v15, v15, v17, s[66:67]")
        e("v_mov_b32 v16, s4")
        e("v_mov_b32 v17, s5")
        e("v_cndmask_b32 v14, v16, v14, vcc")
        e("v_cndmask_b32 v15, v17, v15, vcc")
        e(f"v_lshl_add_u64 {vr(vA, 2)}, v[10:11], 0, v[14:15]")
        e(f"global_load_dword v{vDum}, {vr(vA, 2)}, off")

    LD = 32
    AC = 16

    def csload(y):
        if OPT.get("nostats"):
            return
        e(f"buffer_load_dwordx4 {vr(LD + 4 * y, 4)}, v{vC}, {srd(SRD_WM)}, s69 offen")
        e(f"s_add_u32 s69, s69, {'s72' if y & 1 else 's70'}")

    def csproc(y):
        for d in range(4 if not OPT.get("nostats") else 0):
            r = LD + 4 * y + d
            if y == 0:
                e(f"v_lshlrev_b32 v{AC + 2 * d}, 16, v{r}")
                e(f"v_and_b32 v{AC + 2 * d + 1}, v9, v{r}")
            else:
                e(f"v_lshlrev_b32 v10, 16, v{r}")
                e(f"v_and_b32 v11, v9, v{r}")
                e(f"v_add_f32 v{AC + 2 * d}, v{AC + 2 * d}, v10")
                e(f"v_add_f32 v{AC + 2 * d + 1}, v{AC + 2 * d + 1}, v11")

    PRE = OPT["pre"]
    for y in range(2 * PRE):
        csload(y)
    e("v_mov_b32 v9, 0xffff0000")
    QUIET[0] = OPT["sp"] == 2
    xw_init(0)
    xw(OPT["n23"])
    stamp(1)
    def wtouch():
        if OPT["wt"]:
            e(f"buffer_load_dword v{vDum}, v{vTD}, {srd(SRD_WD)}, s71 offen")
            e("s_add_u32 s71, s71, 131072")

    vm = [("c", y) for y in range(2 * PRE)]
    issued, done = 2 * PRE, 0
    for n in range(8):
        lbar()
        xw(OPT["n23"], n)
        if issued < 16:
            csload(issued)
            csload(issued + 1)
            vm += [("c", issued), ("c", issued + 1)]
            issued += 2
        if n >= 2 and OPT["wt"]:
            wtouch()
            vm.append(("t", n))
        if n >= 2:
            k = min(done + 3, 16)
            e(f"s_waitcnt vmcnt({len(vm) - 1 - vm.index(('c', k - 1))})")
            for y in range(done, k):
                csproc(y)
            done = k
    assert done == 16 and issued == 16
    lbar()
    wtouch()
    e(f"v_mov_b32 v12, {TAGL}")
    e("ds_read_b32 v25, v12")
    for k in range(4):
        e(f"v_permlane32_swap_b32 v{AC + k}, v{AC + k + 4}")
    e("s_nop 1")
    for k in range(4):
        e(f"v_add_f32 v{AC + k}, v{AC + k}, v{AC + k + 4}")
    e("s_nop 1")
    for k in range(2):
        e(f"v_permlane16_swap_b32 v{AC + k}, v{AC + k + 2}")
    e("s_nop 1")
    for k in range(2):
        e(f"v_add_f32 v{AC + k}, v{AC + k}, v{AC + k + 2}")
    e("v_and_b32 v10, 7, v0")
    e("v_lshlrev_b32 v10, 3, v10")
    e(f"v_add_f32_dpp v24, v{AC}, v{AC} row_ror:8 row_mask:0xf bank_mask:0x3")
    e(f"v_add_f32_dpp v24, v{AC + 1}, v{AC + 1} row_ror:8 row_mask:0xf bank_mask:0xc")
    e("v_bfe_u32 v11, v0, 5, 1")
    e("v_lshl_add_u32 v10, v11, 2, v10")
    e("v_bfe_u32 v11, v0, 4, 1")
    e("v_lshl_add_u32 v10, v11, 1, v10")
    e("v_bfe_u32 v11, v0, 3, 1")
    e("v_add_u32 v10, v11, v10")
    e("v_lshlrev_b32 v10, 3, v10")
    e(f"s_lshl_b32 s64, s{sJ}, 13")
    e(f"s_add_u32 s64, s64, {CS_OFF}")
    e(f"s_lshl_b32 s65, s{sI}, 9")
    e("s_add_u32 s65, s64, s65")
    e("s_waitcnt lgkmcnt(0)")
    e(f"buffer_store_dwordx2 v[24:25], v10, {srd(SRD_WS)}, s65 offen sc1")
    e(f"v_readfirstlane_b32 s{sTAG}, v25")
    xw(OPT["n23"])
    stamp(2)
    e("v_lshlrev_b32 v10, 5, v0")
    e("s_add_u32 s65, s64, 4096")

    def csget():
        for k in range(8):
            e(f"buffer_load_dwordx4 {vr(32 + 4 * k, 4)}, v10, {srd(SRD_WS)}, {'s65' if k >= 4 else 's64'} offen offset:{2048 * ((k >> 1) & 1) + 16 * (k & 1)} sc1")

    for n in range(9, 14):
        lbar()
        xw(OPT["n23"])
        if n < 13:
            wtouch()
        if 10 <= n < 13:
            wtouch()
    csget()
    lbar()
    e(f"s_mov_b32 s75, {OPT['spin']}")
    lab("CSCHK")
    e("s_waitcnt vmcnt(0)")
    for k in range(16):
        e(f"v_xor_b32 v{64 + k}, s{sTAG}, v{33 + 2 * k}")
    e("v_or_b32 v12, v64, v65")
    for k in range(1, 8):
        e(f"v_or3_b32 v12, v12, v{64 + 2 * k}, v{65 + 2 * k}")
    e("v_cmp_ne_u32 vcc, 0, v12")
    e("s_nop 1")
    e("s_cmp_eq_u64 vcc, 0")
    e("s_cbranch_scc1 CSOK")
    csget()
    e("s_sub_u32 s75, s75, 1")
    e("s_cmp_lg_u32 s75, 0")
    e("s_cbranch_scc1 CSCHK")
    e("s_waitcnt vmcnt(0)")
    lab("CSOK")
    e("v_lshlrev_b32 v10, 4, v0")
    e(f"v_add_u32 v10, {CSL}, v10")
    for d in range(4):
        e(f"v_add_f32 v{16 + d}, v{32 + 2 * d}, v{40 + 2 * d}")
        e(f"v_add_f32 v{20 + d}, v{48 + 2 * d}, v{56 + 2 * d}")
    for d in range(4):
        e(f"v_add_f32 v{16 + d}, v{16 + d}, v{20 + d}")
    e("ds_write_b128 v10, v[16:19]")
    lbar()
    e("s_waitcnt lgkmcnt(0)")
    stamp(3)
    lbar()
    wd_voffset(5, 14)
    e(f"s_lshl_b32 s64, s{sCB}, 7")
    rot_offsets(15, "s64")
    e(f"s_cmp_eq_u32 s{sDFT}, 1")
    e("s_cbranch_scc1 LTAIL")
    wait_c_done()
    e("s_branch LTAIL")


def l3wave():
    lab("L3WAVE")
    cm("================ L3: launch tag, row statistics ================")
    if OPT.get("lprio"):
        e(f"s_setprio {OPT['lprio']}")
    if OPT["ct"]:
        e("s_getpc_b64 s[64:65]")
        lab("PCREF")
        e(f"s_sub_u32 s64, s64, PCREF-{K}")
        e("s_subb_u32 s65, s65, 0")
        e("v_and_b32 v2, 7, v0")
        e(f"s_lshl_b32 s66, s{sIDX}, 3")
        e("v_add_u32 v2, s66, v2")
        e("v_lshlrev_b32 v2, 7, v2")
        e(f"v_min_u32 v2, END-{K}, v2")
        e("global_load_dword v8, v2, s[64:65]")
    e(f"s_bfe_u32 s64, s{sJ}, 0x10002")
    e(f"s_bfe_u32 s65, s{sJ}, 0x10003")
    e("s_lshl_b32 s65, s65, 5")
    e(f"s_lshl_b32 s66, s{sI}, 1")
    e("s_add_u32 s64, s64, s65")
    e("s_add_u32 s64, s64, s66")
    e(f"s_and_b32 s65, s{sJ}, 3")
    e("s_lshl_b32 s65, s65, 9")
    e("s_add_u32 s64, s64, s65")
    e("s_lshl_b32 s64, s64, 10")
    e("v_lshrrev_b32 v4, 3, v0")
    e("v_and_b32 v14, 7, v0")
    e("v_lshlrev_b32 v6, 16, v4")
    e("v_lshl_add_u32 v6, v14, 4, v6")
    e("v_mov_b32 v9, 0xffff0000")
    e("s_memrealtime s[66:67]")
    srd_finish()
    e("v_mov_b32 v2, 0")
    e("s_cmp_lg_u32 s2, 0")
    e("s_cbranch_scc1 L3NOTAG")
    e("s_or_b32 s66, s66, 1")
    e("v_mov_b32 v3, s66")
    e(f"buffer_store_dword v3, v2, {srd(SRD_DBG)}, 0 offen sc1")
    lab("L3NOTAG")
    LD, UP = 16, 64
    PRE = OPT["pre"]

    def rowload(y):
        e(f"buffer_load_dwordx4 {vr(LD + 4 * y, 4)}, v6, {srd(SRD_X)}, s64 offen offset:{128 * y}")

    for y in range(PRE):
        rowload(y)
    xw_init(OPT["n23"] * XS)
    xw(OPT["n23"])

    def unp(d):
        if OPT.get("nostats"):
            return
        e(f"v_lshlrev_b32 v{UP + 2 * d}, 16, v{LD + d}")
        e(f"v_and_b32 v{UP + 2 * d + 1}, v9, v{LD + d}")
        if d == 0:
            e(f"v_mov_b32 v10, v{UP}")
            e(f"v_mov_b32 v11, v{UP + 1}")
        else:
            e(f"v_add_f32 v10, v10, v{UP + 2 * d}")
            e(f"v_add_f32 v11, v11, v{UP + 2 * d + 1}")

    def red8(r):
        e("s_nop 1")
        e(f"v_add_f32_dpp v{r}, v{r}, v{r} quad_perm:[1,0,3,2] row_mask:0xf bank_mask:0xf")
        e("s_nop 1")
        e(f"v_add_f32_dpp v{r}, v{r}, v{r} quad_perm:[2,3,0,1] row_mask:0xf bank_mask:0xf")
        e("s_nop 1")
        e(f"v_add_f32_dpp v{r}, v{r}, v{r} row_half_mirror row_mask:0xf bank_mask:0xf")

    def var(k):
        if OPT.get("nostats"):
            return
        e(f"v_sub_f32 v{UP + k}, v{UP + k}, v10")
        e(f"v_fmac_f32 v{12 + (k & 1)}, v{UP + k}, v{UP + k}")

    issued, done = PRE, 0
    for n in range(6):
        lbar()
        xw(OPT["n23"], n)
        if issued < 8:
            rowload(issued)
            issued += 1
        if n >= 2:
            k = min(done + 2, 8)
            e(f"s_waitcnt vmcnt({issued - k})")
            for d in range(4 * done, 4 * k):
                unp(d)
            done = k
    assert done == 8 and issued == 8
    poll_issue(3, 2, "0", SRD_DBG)
    e("v_add_f32 v10, v10, v11")
    red8(10)
    e(f"v_mul_f32 v10, {f2u(1.0 / 512):#x}, v10")
    e("v_mov_b32 v12, 0")
    e("v_mov_b32 v13, 0")
    lbar()
    xw(OPT["n23"])
    for k in range(24):
        var(k)
    lbar()
    poll_wait(3, 2, "0", SRD_DBG, cond_tag=False)
    e(f"v_mov_b32 v15, {TAGL}")
    e("ds_write_b32 v15, v3")
    e("ds_write_b32 v15, v2 offset:4")
    e("ds_write_b32 v15, v2 offset:8")
    e(f"v_readfirstlane_b32 s{sTAG}, v3")
    for k in range(24, 44):
        var(k)
    e("s_waitcnt lgkmcnt(0)")
    xw(OPT["n23"])
    lbar()
    for k in range(44, 64):
        var(k)
    e("v_add_f32 v12, v12, v13")
    red8(12)
    e(f"v_mul_f32 v12, {f2u(1.0 / 512):#x}, v12")
    e("v_cvt_pk_bf16_f32 v15, v10, v12")
    e("v_lshlrev_b32 v10, 16, v15")
    e("v_and_b32 v12, v9, v15")
    e(f"v_add_f32 v12, {f2u(1e-5):#x}, v12")
    e("v_cvt_pk_bf16_f32 v12, v12, v12")
    e("v_and_b32 v12, v9, v12")
    e("v_sqrt_f32 v12, v12")
    e("s_nop 0")
    e("v_cvt_pk_bf16_f32 v12, v12, v12")
    e("v_and_b32 v12, v9, v12")
    e("v_rcp_f32 v11, v12")
    e("v_cmp_eq_u32 vcc, 0, v14")
    e("v_lshlrev_b32 v14, 4, v4")
    e("v_mov_b32 v15, 0x40000000")
    e(f"s_lshl_b32 s64, s{sI}, 11")
    e(f"s_add_u32 s64, s64, {ST_OFF}")
    e("v_cndmask_b32 v14, v15, v14, vcc")
    e("v_mov_b32 v16, v10")
    e("v_mov_b32 v17, v11")
    e("v_mov_b32 v18, v3")
    e("v_mov_b32 v19, v3")
    e(f"s_lshl_b32 s65, s{sJ}, 7")
    e("s_add_u32 s65, s64, s65")
    e(f"buffer_store_dwordx4 v[16:19], v14, {srd(SRD_WS)}, s65 offen sc1")
    xw(OPT["n23"])
    stamp(1)
    e("v_lshlrev_b32 v10, 5, v0")

    def stget():
        e(f"buffer_load_dwordx4 v[20:23], v10, {srd(SRD_WS)}, s64 offen sc1")
        e(f"buffer_load_dwordx4 v[24:27], v10, {srd(SRD_WS)}, s64 offen offset:16 sc1")

    for n in range(9, 14):
        lbar()
        xw(OPT["n23"])
    stget()
    lbar()
    e(f"s_mov_b32 s75, {OPT['spin']}")
    lab("STCHK")
    e("s_waitcnt vmcnt(0)")
    e(f"v_cmp_ne_u32 vcc, s{sTAG}, v23")
    e(f"v_cmp_ne_u32 s[76:77], s{sTAG}, v27")
    e("s_nop 1")
    e("s_or_b64 vcc, vcc, s[76:77]")
    e("s_cmp_eq_u64 vcc, 0")
    e("s_cbranch_scc1 STOK")
    stget()
    e("s_sub_u32 s75, s75, 1")
    e("s_cmp_lg_u32 s75, 0")
    e("s_cbranch_scc1 STCHK")
    e("s_waitcnt vmcnt(0)")
    lab("STOK")
    e("v_lshlrev_b32 v10, 4, v0")
    e(f"v_add_u32 v10, {MRP}, v10")
    e(f"v_lshlrev_b32 v12, 3, v0")
    e(f"v_add_u32 v12, {RL}, v12")
    e("v_mov_b32 v22, v24")
    e("v_mov_b32 v23, v25")
    e("v_mov_b32 v24, v21")
    e("v_mul_f32 v26, v20, v21")
    e("v_mul_f32 v27, v22, v23")
    e("v_xor_b32 v26, 0x80000000, v26")
    e("v_xor_b32 v27, 0x80000000, v27")
    e("ds_write_b128 v10, v[20:23]")
    e("ds_write_b64 v12, v[24:25]")
    e("ds_write_b64 v12, v[26:27] offset:512")
    lbar()
    e("s_waitcnt lgkmcnt(0)")
    stamp(2)
    stamp(3)
    lbar()
    l3_tail()


XF = [[64 + 4 * q for q in range(4)], [80 + 4 * q for q in range(4)]]
WF = [[96, 100], [104, 108]]
XA = [112, 113, 114, 115]
WA = 116
vLANE, vPM = 117, 118


def ACC(mat, q):
    return 128 + 32 * q + 16 * mat


def frag_reads(u, st):
    r = []
    for mat in range(2):
        for a in range(2):
            r.append(f"ds_read_b64_tr_b16 {vr(WF[st][mat] + 2 * a, 2)}, v{WA} offset:{u * 8192 + a * 2048 + mat * 1024}")
    for q in range(4):
        r.append(f"ds_read_b128 {vr(XF[st][q], 4)}, v{XA[u]} offset:{q * 4096}")
    return r


CG, CU, MR = 0, 16, 32
vA_CS, vA_MR, vA_TAG = 45, 46, 47


def glu_stat_reads():
    r = [f"ds_read_b64 {vr(MR + 2 * q, 2)}, v{vA_MR} offset:{256 * q}" for q in range(4)]
    r += [f"ds_read_b128 {vr(CG + 4 * a, 4)}, v{vA_CS} offset:{32 * a}" for a in range(4)]
    r += [f"ds_read_b128 {vr(CU + 4 * a, 4)}, v{vA_CS} offset:{512 + 32 * a}" for a in range(4)]
    r += [f"ds_read_b32 v43, v{vA_TAG}"]
    return r


def mainloop(dft):
    sCnt, sDelta, sCur = 64, 65, 66
    tag = "D" if dft else "G"
    for s in frag_reads(0, 0):
        e(s)
    e(f"s_mov_b32 s{sCnt}, 8")
    e(f"s_mov_b32 s{sCur}, {SLOT}")
    e(f"s_mov_b32 s67, {(-2 * SLOT) & 0xffffffff:#x}")

    def step(u, last):
        st = u & 1
        mf = []
        for mat in ((1, 0) if dft else (0, 1)):
            for q in range(4):
                a, b = (XF[st][q], WF[st][mat]) if dft else (WF[st][mat], XF[st][q])
                mf.append(f"v_mfma_f32_32x32x16_bf16 {vr(ACC(mat, q), 16)}, {vr(a, 4)}, {vr(b, 4)}, {vr(ACC(mat, q), 16)}")
        rd = frag_reads((u + 1) & 3, st ^ 1)
        gaps = [[] for _ in range(8)]
        if u == 3 and not last:
            gaps[0] += [f"v_add_u32 v{WA}, s{sDelta}, v{WA}", f"v_add_u32 v{XA[0]}, s{sDelta}, v{XA[0]}"]
            gaps[5] += [f"v_add_u32 v{XA[1]}, s{sDelta}, v{XA[1]}"]
            gaps[6] += [f"v_add_u32 v{XA[2]}, s{sDelta}, v{XA[2]}", f"v_add_u32 v{XA[3]}, s{sDelta}, v{XA[3]}"]
        if PROF and u in (0, 2):
            gaps[0] += ["s_memtime s[70:71]"]
        if PROF and u in (1, 3):
            gaps[5] += [f"s_lshl_b32 s72, s{sCnt}, 1", f"s_sub_u32 m0, {16 if u == 1 else 15}, s72", f"v_writelane_b32 v{vLOOPST}, s70, m0"]
        if u == 2:
            gaps[5] += [f"s_cmp_eq_u32 s{sCur}, {2 * SLOT}", f"s_cselect_b32 s{sDelta}, s67, {SLOT}"]
            gaps[6] += [f"s_add_u32 s{sCur}, s{sCur}, s{sDelta}", f"s_sub_u32 s{sCnt}, s{sCnt}, 1"]
            gaps[7] += [f"s_cmp_eq_u32 s{sCnt}, 0"]
        if u & 1:
            gaps[0] += ["s_barrier"]
        if dft:
            gaps[0] = [f"v_cndmask_b32 v{WF[st][0] + k}, v{WF[st][0] + k}, v{vPM}, s[68:69]" for k in range(2)] + gaps[0]
            gaps[1] += [f"v_cndmask_b32 v{WF[st][0] + k}, v{WF[st][0] + k}, v{vPM}, s[68:69]" for k in range(2, 4)]
        if last:
            extra = dft_stat_reads() if dft else glu_stat_reads()
            for k, x in enumerate(extra):
                gaps[2 + min(k // 3, 4)].append(x)
        else:
            for k in range(4):
                gaps[k + (1 if (u & 1) else 0)] += rd[2 * k:2 * k + 2]
        e("s_waitcnt lgkmcnt(0)")
        for k in range(8):
            e(mf[k])
            for s in gaps[k]:
                e(s)

    L.append(".p2align 3")
    lab(f"MAIN{tag}")
    for u in range(3):
        step(u, False)
    e(f"s_cbranch_scc1 LAST{tag}")
    step(3, False)
    e(f"s_branch MAIN{tag}")
    lab(f"LAST{tag}")
    step(3, True)


def glu_epilogue():
    e(f"v_lshlrev_b32 v44, 4, v{vLANE}")
    e("v_mov_b32 v42, 0")
    e("s_mov_b32 s66, 1.0")
    e("s_mov_b32 s67, 1.0")
    e("s_waitcnt lgkmcnt(0)")
    e(f"v_readfirstlane_b32 s{sTAG}, v43")
    for q in range(4):
        e(f"v_mul_f32 v{MR + 2 * q + 1}, {NLOG2E:#x}, v{MR + 2 * q + 1}")
    L.append(".p2align 3")
    out = 0
    for q in range(4):
        b, p = q & 1, q >> 1
        mr = vr(MR + 2 * q, 2)
        for z in range(2):
            G = ACC(0, q) + 8 * z
            U = ACC(1, q) + 8 * z
            for k in range(4):
                e(f"v_pk_fma_f32 {vr(G + 2 * k, 2)}, {vr(CG + 8 * z + 2 * k, 2)}, {mr}, {vr(G + 2 * k, 2)} op_sel_hi:[1,0,1] neg_lo:[0,1,0] neg_hi:[0,1,0]")
            for k in range(4):
                e(f"v_pk_mul_f32 {vr(G + 2 * k, 2)}, {vr(G + 2 * k, 2)}, {mr} op_sel:[0,1] op_sel_hi:[1,1]")
            for k in range(8):
                e(f"v_exp_f32 v{G + k}, v{G + k}")
            for k in range(4):
                e(f"v_pk_add_f32 {vr(G + 2 * k, 2)}, {vr(G + 2 * k, 2)}, s[66:67]")
            for k in range(8):
                e(f"v_rcp_f32 v{G + k}, v{G + k}")
            for k in range(4):
                e(f"v_pk_fma_f32 {vr(U + 2 * k, 2)}, {vr(CU + 8 * z + 2 * k, 2)}, {mr}, {vr(U + 2 * k, 2)} op_sel_hi:[1,0,1] neg_lo:[0,1,0] neg_hi:[0,1,0]")
            for k in range(4):
                e(f"v_pk_mul_f32 {vr(U + 2 * k, 2)}, {vr(U + 2 * k, 2)}, {vr(G + 2 * k, 2)}")
            o = 64 + 4 * out
            out += 1
            for k in range(4):
                e(f"v_cvt_pk_bf16_f32 v{o + k}, v{U + 2 * k}, v{U + 2 * k + 1}")
            e(f"s_add_u32 s65, s{sOUT}, {((b * 2 + p) * 2 + z) * 56 * 1024 + H_OFF}")
            e(f"buffer_store_dwordx4 {vr(o, 4)}, v44, {srd(SRD_WS)}, s65 offen{'' if OPT.get('hplain') else ' sc1'}")
    stamp(3)
    lab("PUBLISH")
    e(f"v_mov_b32 v40, {CNTL}")
    e("v_mov_b32 v41, 1")
    e("v_mov_b32 v42, 0")
    e(f"v_mov_b32 v43, s{sTAG}")
    e("s_mov_b64 exec, 1")
    e("s_waitcnt vmcnt(0)")
    e("ds_add_rtn_u32 v41, v40, v41")
    e("s_waitcnt lgkmcnt(0)")
    e("v_readfirstlane_b32 s64, v41")
    e("s_cmp_lg_u32 s64, 3")
    e("s_cbranch_scc1 HNOFLAG")
    e(f"buffer_store_dword v43, v42, {srd(SRD_WS)}, s{sFLG} offen sc1")
    lab("HNOFLAG")
    e("s_mov_b64 exec, -1")
    stamp(4)


def TW(q, cs, z):
    return 16 * q + 8 * cs + 4 * z


def dft_prologue():
    e(f"v_and_b32 v2, 31, v{vLANE}")
    e("v_cvt_f32_u32 v3, v2")
    e(f"v_mul_f32 v3, {f2u(1.0 / 2048):#x}, v3")
    e(f"s_and_b32 s64, s{sWAVE}, 1")
    e(f"s_lshr_b32 s65, s{sWAVE}, 1")
    e("s_lshl_b32 s65, s65, 5")
    e("s_add_u32 s64, s64, s65")
    e(f"s_lshl_b32 s65, s{sI}, 1")
    e("s_add_u32 s64, s64, s65")
    e(f"v_lshrrev_b32 v4, 5, v{vLANE}")
    e("v_lshl_add_u32 v4, v4, 8, s64")
    e("v_cvt_f32_u32 v4, v4")
    e("v_mul_f32 v4, v3, v4")
    e("v_and_b32 v5, 1, v2")
    e("v_mul_u32_u24 v5, 0x8000, v5")
    e("v_lshl_or_b32 v5, v5, 16, v5")
    for jj in range(8):
        c = 64.0 * (8 * (jj >> 2) + (jj & 3))
        e(f"v_fmamk_f32 v{8 + jj}, v3, {f2u(c):#x}, v4")
    for jj in range(8):
        e(f"v_fract_f32 v{8 + jj}, v{8 + jj}")
    for jj in range(8):
        e(f"v_cos_f32 v{16 + jj}, v{8 + jj}")
        e(f"v_sin_f32 v{24 + jj}, v{8 + jj}")
    e("s_nop 0")
    for k in range(4):
        e(f"v_cvt_pk_bf16_f32 v{32 + k}, v{16 + 2 * k}, v{17 + 2 * k}")
        e(f"v_cvt_pk_bf16_f32 v{40 + k}, v{24 + 2 * k}, v{25 + 2 * k}")
    for k in range(4):
        e(f"v_xor_b32 v{36 + k}, v5, v{32 + k}")
        e(f"v_xor_b32 v{44 + k}, v5, v{40 + k}")
    e(f"s_lshl_b32 s64, s{sWAVE}, 12")
    e(f"s_add_u32 s64, s64, {MISC}")
    e(f"v_lshl_add_u32 v6, v{vLANE}, 4, s64")
    for k in range(4):
        e(f"ds_write_b128 v6, {vr(32 + 4 * k, 4)} offset:{1024 * k}")
    e(f"s_cmp_eq_u32 s{sJ}, 14")
    e("s_cselect_b32 s68, 1, 0")
    e(f"s_cmp_eq_u32 s{sWAVE}, 0")
    e("s_cselect_b32 s68, s68, 0")
    e("s_mov_b32 s69, s68")
    e(f"v_mov_b32 v{vPM}, 0xbf803f80")
    e(f"v_lshlrev_b32 v119, 4, v{vLANE}")
    e(f"v_add_u32 v119, {MISC}, v119")
    e("s_waitcnt lgkmcnt(0)")


R0, N0 = 64, 80
vD_CS, vD_R, vD_TAG = 122, 123, 124


def dft_stat_reads():
    return [f"ds_read_b32 v118, v{vD_CS}", f"ds_read_b32 v119, v{vD_CS} offset:512", f"ds_read_b32 v{vD_TAG}, v{vD_TAG}"] + \
           [f"ds_read_b128 {vr(R0 + 4 * a, 4)}, v{vD_R} offset:{32 * a}" for a in range(4)]


def dft_epilogue():
    for a in range(4):
        e(f"ds_read_b128 {vr(N0 + 4 * a, 4)}, v{vD_R} offset:{512 + 32 * a}")
    e(f"v_mov_b32 v115, v{vD_R}")

    def rd(q):
        for a in range(4):
            e(f"ds_read_b128 {vr(R0 + 4 * a, 4)}, v115 offset:{128 * q + 32 * a}")
            e(f"ds_read_b128 {vr(N0 + 4 * a, 4)}, v115 offset:{512 + 128 * q + 32 * a}")

    e("s_waitcnt lgkmcnt(0)")
    e(f"v_readfirstlane_b32 s{sTAG}, v{vD_TAG}")
    e("v_cndmask_b32 v118, v118, 0, s[68:69]")

    def TS(q):
        return (120 if q & 1 else 96), (104 if q == 0 else TW(q - 1, 0, 0))

    def valu(q):
        r_ = []
        for mat, T, cs in ((0, TS(q)[0], 118), (1, TS(q)[1], 119)):
            A = ACC(mat, q)
            if q == 0:
                for r in range(0, 16, 2):
                    r_.append(f"v_pk_mul_f32 {vr(A + r, 2)}, {vr(A + r, 2)}, {vr(R0 + r, 2)}")
            else:
                for r in range(16):
                    r_.append(f"v_mul_f32 v{A + r}, v{A + r}, v{R0 + r}")
            if mat and q < 3:
                r_[-1] = [r_[-1]] + [f"ds_read_b128 {vr(R0 + 4 * a, 4)}, v115 offset:{128 * (q + 1) + 32 * a}" for a in range(4)]
            if q == 0:
                sel = "op_sel:[0,1,0] op_sel_hi:[1,1,1]" if mat else "op_sel_hi:[1,0,1]"
                for r in range(0, 16, 2):
                    r_.append(f"v_pk_fma_f32 {vr(A + r, 2)}, {vr(N0 + r, 2)}, v[118:119], {vr(A + r, 2)} {sel}")
            else:
                for r in range(16):
                    r_.append(f"v_fmac_f32 v{A + r}, v{N0 + r}, v{cs}")
            if mat and q < 3:
                r_[-1] = [r_[-1]] + [f"ds_read_b128 {vr(N0 + 4 * a, 4)}, v115 offset:{512 + 128 * (q + 1) + 32 * a}" for a in range(4)]
            for k in range(8):
                r_.append(f"v_cvt_pk_bf16_f32 v{T + k}, v{A + 2 * k}, v{A + 2 * k + 1}")
        return r_

    def mfmas(q):
        ta, tb = TS(q)
        zr, zi = ACC(0, q), ACC(1, q)
        seq = [(zr, 1, 0, tb), (zi, 0, 0, tb), (zr, 1, 1, tb + 4), (zi, 0, 1, tb + 4),
               (zr, 0, 0, ta), (zr, 0, 1, ta + 4), (zi, 1, 0, ta), (zi, 1, 1, ta + 4)]
        return [f"v_mfma_f32_32x32x16_bf16 {vr(d, 16)}, {vr(TW(q, cs, z), 4)}, {vr(b, 4)}, {'0' if k < 2 else vr(d, 16)}"
                for k, (d, cs, z, b) in enumerate(seq)]

    for q in range(5):
        v_ = valu(q) if q < 4 else []
        m_ = mfmas(q - 1) if q else []
        if 0 < q < 4:
            e("s_waitcnt lgkmcnt(0)")
        if q:
            e("s_nop 1")
        per = len(v_) // 8
        for k in range(8):
            if m_:
                e(m_[k])
                if k in (3, 4):
                    for x in range(4):
                        rg = TW(q - 1, 1, k - 3) + x
                        e(f"v_xor_b32 v{rg}, 0x80008000, v{rg}")
            for x in v_[k * per:(k + 1) * per]:
                for y in (x if isinstance(x, list) else [x]):
                    e(y)
    e(f"v_and_b32 v112, 31, v{vLANE}")
    e(f"v_lshrrev_b32 v114, 5, v{vLANE}")
    e("v_lshlrev_b32 v112, 4, v112")
    e("v_lshl_add_u32 v112, v114, 18, v112")
    e("s_nop 7")
    for r in range(16):
        for q in range(4):
            e(f"v_cvt_pk_bf16_f32 v{4 * r + q}, v{ACC(0, q) + r}, v{ACC(1, q) + r}")
        e(f"s_add_u32 s65, s{sOUT}, {(8 * (r >> 2) + (r & 3)) * 65536}")
        e(f"buffer_store_dwordx4 {vr(4 * r, 4)}, v112, {srd(SRD_WS)}, s65 offen sc1")
    stamp(3)
    e(f"v_mov_b32 v64, {CNTL}")
    e("v_mov_b32 v65, 1")
    e("s_mov_b64 exec, 1")
    e("ds_add_u32 v64, v65")
    e("s_mov_b64 exec, -1")
    stamp(4)
    e("s_branch PHASE2")


sXO, sZ, sFZ, sPOLL, sRO, sFLG, sOUT, sC0, sP, sKH = 56, 57, 58, 59, 60, 61, 62, 63, 73, 74


def phase2(dft):
    OWN, OTH, Y, EF, HR, ET = 128, 144, 160, 32, 176, 248
    XR, vR = 80, 88
    W2 = [[96, 100], [104, 108], [240, 244]]
    WD = [112, 113]
    vH, vXO, vZ, vONE = 114, 115, 116, 118
    vEA, vEB, vES, vZS, vTG, vZERO = 122, 123, 124, 125, 126, 127
    ZF = 0
    tg = "D" if dft else "G"
    assert D <= 16
    vm = []

    def issue(tag, txt):
        vm.append(tag)
        e(txt)

    def younger(tag):
        return len(vm) - 1 - vm.index(tag)

    lab("PHASE2")
    stamp(5)
    e(f"v_and_b32 v89, 31, v{vLANE}")
    e(f"v_lshrrev_b32 v90, 5, v{vLANE}")
    e(f"v_lshlrev_b32 v{vXO}, 16, v89")
    e(f"v_lshl_add_u32 v{vXO}, v90, 5, v{vXO}")
    e(f"buffer_load_dwordx4 {vr(XR, 4)}, v{vXO}, {srd(SRD_X)}, s{sXO} offen")
    e(f"buffer_load_dwordx4 {vr(XR + 4, 4)}, v{vXO}, {srd(SRD_X)}, s{sXO} offen offset:16")
    e(f"v_bfe_u32 v{ET}, v{vLANE}, 2, 2")
    e(f"v_lshl_add_u32 v92, v90, 2, v{ET}")
    e(f"s_lshl_b32 s68, s{sKH}, 11")
    e("v_lshl_add_u32 v92, v92, 7, s68")
    e(f"v_and_b32 v93, 1, v{vLANE}")
    e("v_lshlrev_b32 v93, 2, v93")
    e(f"v_bfe_u32 v{ET + 1}, v{vLANE}, 4, 1")
    e(f"v_lshl_add_u32 v93, v{ET + 1}, 1, v93")
    e(f"v_bfe_u32 v{ET + 1}, v{vLANE}, 1, 1")
    e(f"v_add_u32 v93, v93, v{ET + 1}")
    e("v_lshl_add_u32 v92, v93, 3, v92")
    e(f"v_lshrrev_b32 v{ET}, 1, v{ET}")
    e(f"v_xor_b32 v{ET}, s{sKH}, v{ET}")
    e(f"v_lshl_add_u32 v{WD[0]}, v{ET}, 6, v92")
    e(f"v_xor_b32 v{WD[1]}, 64, v{WD[0]}")
    e(f"v_lshlrev_b32 v{vH}, 4, v{vLANE}")
    e("v_lshlrev_b32 v93, 4, v89")
    if dft:
        e(f"v_lshl_add_u32 v{vZS}, v90, 18, v93")
        e(f"v_mov_b32 v{vTG}, s{sTAG}")
        e(f"v_mov_b32 v{vZERO}, 0")
        e(f"v_mov_b32 v{vONE}, 1")
        e(f"v_mov_b32 v94, {TAGL}")
    e("s_barrier")
    stamp(6)

    def hload(v):
        if v and v & 7 == 0:
            e(f"v_add_u32 v{vH}, 8192, v{vH}")
        issue(("h", v), f"buffer_load_dwordx4 {vr(HR + 4 * (v % D), 4)}, v{vH}, {srd(SRD_WS)}, s{48 + (v & 7)} offen sc1")

    base = [0]

    def wreads(v):
        a = wslot(v) * 4096
        r = []
        if (a & ~0xFFFF) != base[0]:
            d = (a & ~0xFFFF) - base[0]
            base[0] = a & ~0xFFFF
            r += [f"v_add_u32 v{WD[c]}, {d & 0xffffffff:#x}, v{WD[c]}" for c in range(2)]
        return r + [f"ds_read_b64_tr_b16 {vr(W2[v % 3][c] + 2 * k, 2)}, v{WD[c]} offset:{(a & 0xFFFF) + 1024 * k}" for c in range(2) for k in range(2)]

    nh = [0]

    def hmore(lim, cnt):
        while cnt and nh[0] < min(56, lim):
            hload(nh[0])
            nh[0] += 1
            cnt -= 1

    for v in range(OPT["D0"]):
        hmore(56, 1)
        if v == 1:
            for x in wreads(0) + wreads(1):
                e(x)
    issue("r", f"buffer_load_dword v{vR}, v93, {srd(SRD_WS)}, s{sRO} offen offset:4 sc1")

    fill = [f"v_and_b32 v91, 3, v{vLANE}", f"v_bfe_u32 v92, v{vLANE}, 3, 2", "v_lshl_add_u32 v91, v92, 2, v91",
            f"v_bfe_u32 v92, v{vLANE}, 2, 1", "v_lshl_add_u32 v91, v92, 4, v91",
            f"s_lshl_b32 s68, s{sCB}, 6", f"s_lshl_b32 s69, s{sKH}, 5", "s_add_u32 s68, s68, s69",
            "v_add_u32 v91, s68, v91", "v_sub_u32 v92, 512, v91", "v_and_b32 v92, 255, v92",
            [f"s_cmp_ge_u32 s{sCB}, 4", "s_cselect_b64 s[70:71], -1, 0"],
            "v_cmp_eq_u32 vcc, 0, v91", "v_cndmask_b32 v92, v91, v92, s[70:71]", f"v_lshlrev_b32 v{vZ}, 4, v92",
            f"v_lshl_add_u32 v{vZ}, v90, 12, v{vZ}", "v_mov_b32 v92, 0x40000000", f"v_cndmask_b32 v{vZ}, v{vZ}, v92, vcc",
            f"v_lshl_add_u32 v91, v89, 1, s{sP}", f"v_sub_u32 v92, s{sC0}, v91", "v_cndmask_b32 v91, v91, v92, s[70:71]",
            f"v_and_b32 v{vES}, 1, v91", f"v_mul_u32_u24 v{vES}, 0x8000, v{vES}", f"v_lshl_or_b32 v{vES}, v{vES}, 16, v{vES}",
            "v_cvt_f32_u32 v91, v91", f"v_mul_f32 v{vEA}, {f2u(1.0 / 64):#x}, v91",
            "v_lshlrev_b32 v92, 1, v90", "v_cvt_f32_u32 v92, v92", f"v_mul_f32 v{vEB}, v{vEA}, v92"]
    for sg in range(8):
        for b in range(2):
            fill.append(f"v_fmamk_f32 v{ET + b}, v{vEA}, {f2u(float(4 * sg + b)):#x}, v{vEB}")
        for b in range(2):
            fill.append(f"v_fract_f32 v{ET + b}, v{ET + b}")
        for b in range(2):
            fill.append(f"v_cos_f32 v{ET + 2 + b}, v{ET + b}")
            fill.append(f"v_sin_f32 v{ET + 4 + b}, v{ET + b}")
        fill.append([f"v_cvt_pk_bf16_f32 v{EF + 4 * sg}, v{ET + 2}, v{ET + 4}",
                     f"v_cvt_pk_bf16_f32 v{EF + 4 * sg + 1}, v{ET + 3}, v{ET + 5}"])
        for b in range(2):
            fill.append(f"v_xor_b32 v{EF + 4 * sg + 2 + b}, v{vES}, v{EF + 4 * sg + b}")
    VZL = OPT.get("vzl", 38)
    VP1, VP2 = 55 - NRES, NRES - 2
    zflag_done = not dft
    for v in range(56):
        e(f"s_waitcnt vmcnt({younger(('h', v))}) lgkmcnt({4 if v < 55 else 0})")
        h = vr(HR + 4 * (v % D), 4)
        st = v % 3
        c0 = "0" if v == 0 else vr(OWN, 16)
        c1 = "0" if v == 0 else vr(OTH, 16)
        e(f"v_mfma_f32_32x32x16_bf16 {vr(OWN, 16)}, {vr(W2[st][0], 4)}, {h}, {c0}")
        if v in P2BAR:
            e(f"s_barrier  ; {P2BAR[v]}")
        if v + 2 < 56:
            for x in wreads(v + 2):
                e(x)
        e(f"v_mfma_f32_32x32x16_bf16 {vr(OTH, 16)}, {vr(W2[st][1], 4)}, {h}, {c1}")
        if PROF and v % 4 == 0:
            e("s_memtime s[78:79]")
        if PROF and v % 4 == 2:
            e(f"v_writelane_b32 v{vLOOPST}, s78, {16 + v // 4}")
        if v == 1:
            e(f"s_cmp_eq_u32 s{sDFT}, 0")
            e("s_cbranch_scc1 NOZF")
            e(f"v_mov_b32 v94, {TAGL}")
            e("v_mov_b32 v95, 1")
            e("s_mov_b64 exec, 1")
            e("ds_add_rtn_u32 v95, v94, v95 offset:8")
            e(f"v_mov_b32 v{vTG}, s{sTAG}")
            e(f"v_mov_b32 v{vZERO}, 0")
            e("s_waitcnt lgkmcnt(0)")
            e("v_readfirstlane_b32 s64, v95")
            e("s_cmp_lg_u32 s64, 3")
            e("s_cbranch_scc1 NOZF1")
            e(f"buffer_store_dword v{vTG}, v{vZERO}, {srd(SRD_WS)}, s{sFLG} offen sc1")
            lab("NOZF1")
            e("s_mov_b64 exec, -1")
            lab("NOZF")
        if not zflag_done and ("zs", 15) in vm and vm.index(("h", v)) > vm.index(("zs", 15)):
            e("s_mov_b64 exec, 1")
            e(f"ds_add_rtn_u32 v95, v94, v{vONE} offset:8")
            e("s_waitcnt lgkmcnt(0)")
            e("v_readfirstlane_b32 s64, v95")
            e(f"s_mov_b32 s65, s{sFLG}")
            e("s_cmp_lg_u32 s64, 3")
            e("s_cselect_b32 s65, 0x40000000, s65")
            issue("zflag", f"buffer_store_dword v{vTG}, v{vZERO}, {srd(SRD_WS)}, s65 offen sc1")
            e("s_mov_b64 exec, -1")
            zflag_done = True
        if dft and v < 16:
            e(f"s_add_u32 s65, s{sOUT}, {(8 * (v >> 2) + (v & 3)) * 65536}")
            issue(("zs", v), f"buffer_store_dwordx4 {vr(4 * v, 4)}, v{vZS}, {srd(SRD_WS)}, s65 offen sc1")
        if v in (VZL, VZL + 1):
            for sg in range(4 * (v - VZL), 4 * (v - VZL) + 4):
                issue(("z", sg), f"buffer_load_dwordx4 {vr(ZF + 4 * sg, 4)}, v{vZ}, {srd(SRD_WS)}, s{sZ} offen sc1")
                e(f"s_add_u32 s{sZ}, s{sZ}, 8192")
        hmore(v + 1 + D, 2)
        for _ in range(4):
            if fill and True:
                x = fill.pop(0)
                for y in (x if isinstance(x, list) else [x]):
                    e(y)
    assert not fill and zflag_done
    stamp(7)

    def ymf(sg):
        e(f"v_mfma_f32_32x32x16_bf16 {vr(Y, 16)}, {vr(ZF + 4 * sg, 4)}, {vr(EF + 4 * sg, 4)}, {'0' if sg == 0 else vr(Y, 16)}")

    XU, PT, TT = 176, 192, 208
    e("s_waitcnt vmcnt(0)")
    ymf(0)
    e(f"s_lshl_b32 s68, s{sWAVE}, 12")
    e(f"s_add_u32 s68, s68, {RED}")
    e(f"v_lshl_add_u32 v91, v{vLANE}, 4, s68")
    e(f"v_xor_b32 v92, 8192, v91")
    e("s_mov_b32 s70, 1.0")
    e("s_mov_b32 s71, 1.0")
    ymf(1)
    e(f"v_mul_f32 v{vR + 1}, {NLOG2E:#x}, v{vR}")
    e("v_mov_b32 v93, 0xffff0000")
    e(f"v_lshlrev_b32 v{XU}, 16, v{XR}")
    e(f"v_and_b32 v{XU + 1}, v93, v{XR}")
    ymf(2)
    for a in range(4):
        e(f"ds_write_b128 v91, {vr(OTH + 4 * a, 4)} offset:{1024 * a}")
        if a & 1:
            ymf(3 + (a >> 1))
    for k in range(1, 8):
        e(f"v_lshlrev_b32 v{XU + 2 * k}, 16, v{XR + k}")
        e(f"v_and_b32 v{XU + 2 * k + 1}, v93, v{XR + k}")
        if k in (2, 4):
            ymf(5 + (k >> 2))
    e("s_waitcnt lgkmcnt(0)")
    e("s_barrier")
    for a in range(4):
        e(f"ds_read_b128 {vr(PT + 4 * a, 4)}, v92 offset:{1024 * a}")
    ymf(7)
    e("s_waitcnt lgkmcnt(0)")
    rr = vr(vR, 2)
    L.append(".p2align 3")
    for k in range(8):
        e(f"v_pk_add_f32 {vr(OWN + 2 * k, 2)}, {vr(OWN + 2 * k, 2)}, {vr(PT + 2 * k, 2)}")
    for k in range(8):
        e(f"v_pk_mul_f32 {vr(TT + 2 * k, 2)}, {vr(OWN + 2 * k, 2)}, {rr} op_sel:[0,1] op_sel_hi:[1,1]")
    for k in range(16):
        e(f"v_exp_f32 v{TT + k}, v{TT + k}")
    for k in range(8):
        e(f"v_pk_add_f32 {vr(TT + 2 * k, 2)}, {vr(TT + 2 * k, 2)}, s[70:71]")
    for k in range(16):
        e(f"v_rcp_f32 v{TT + k}, v{TT + k}")
    for k in range(8):
        e(f"v_pk_mul_f32 {vr(OWN + 2 * k, 2)}, {vr(OWN + 2 * k, 2)}, {rr} op_sel_hi:[1,0]")
    for k in range(8):
        e(f"v_pk_mul_f32 {vr(OWN + 2 * k, 2)}, {vr(OWN + 2 * k, 2)}, {vr(TT + 2 * k, 2)}")
    for k in range(8):
        e(f"v_pk_fma_f32 {vr(OWN + 2 * k, 2)}, {vr(OWN + 2 * k, 2)}, {vr(Y + 2 * k, 2)}, {vr(XU + 2 * k, 2)}")
    for k in range(8):
        e(f"v_cvt_pk_bf16_f32 v{TT + k}, v{OWN + 2 * k}, v{OWN + 2 * k + 1}")
    of = " sc1" if OPT.get("osc1") else ""
    e(f"buffer_store_dwordx4 {vr(TT, 4)}, v{vXO}, {srd(SRD_OUT)}, s{sXO} offen{of}")
    e(f"buffer_store_dwordx4 {vr(TT + 4, 4)}, v{vXO}, {srd(SRD_OUT)}, s{sXO} offen offset:16{of}")
    stamp_flush(8, 64, vLOOPST)
    if OPT.get("rabs"):
        lab(f"DLY{tg}")
        e("s_memrealtime s[82:83]")
        e("s_waitcnt lgkmcnt(0)")
        e("s_sub_u32 s82, s82, s98")
        e(f"s_cmp_lt_u32 s82, {OPT['rabs']}")
        e(f"s_cbranch_scc1 DLY{tg}")
    e("s_endpgm")


def cwave():
    lab("CWAVE")
    cm("================ C waves: matrix work ================")
    e("s_setprio 2")
    e(f"v_mov_b32 v{vLANE}, v0")
    e("v_and_b32 v2, 31, v0")
    e("v_lshrrev_b32 v3, 5, v0")
    e("v_bfe_u32 v4, v0, 1, 3")
    e("v_lshlrev_b32 v5, 7, v2")
    e(f"v_add_u32 v5, {SLOT + 32768}, v5")
    for u in range(4):
        e(f"v_add_u32 v6, {2 * u}, v3")
        e("v_xor_b32 v6, v6, v4")
        e(f"v_lshl_add_u32 v{XA[u]}, v6, 4, v5")
    e("v_bfe_u32 v4, v0, 2, 2")
    e(f"v_lshlrev_b32 v{WA}, 12, v3")
    e(f"v_lshl_add_u32 v{WA}, v4, 8, v{WA}")
    e(f"v_xor_b32 v4, s{sWAVE}, v4")
    e(f"v_lshl_add_u32 v{WA}, v4, 6, v{WA}")
    e("v_bfe_u32 v4, v0, 4, 1")
    e(f"v_lshl_add_u32 v{WA}, v4, 5, v{WA}")
    e("v_and_b32 v4, 3, v0")
    e(f"v_lshl_add_u32 v{WA}, v4, 3, v{WA}")
    e(f"v_add_u32 v{WA}, {SLOT}, v{WA}")
    e(f"s_lshl_b32 s64, s{sWAVE}, 7")
    e(f"s_add_u32 s64, s64, {CSL}")
    e(f"v_lshl_add_u32 v{vA_CS}, v3, 4, s64")
    e(f"v_lshlrev_b32 v{vA_MR}, 3, v2")
    e(f"v_add_u32 v{vA_MR}, {MRP}, v{vA_MR}")
    e(f"v_mov_b32 v{vA_TAG}, {TAGL}")
    e(f"v_lshl_add_u32 v{vD_CS}, v2, 2, s64")
    e(f"v_lshlrev_b32 v{vD_R}, 4, v3")
    e(f"v_add_u32 v{vD_R}, {RL}, v{vD_R}")
    e(f"v_mov_b32 v{vD_TAG}, {TAGL}")
    for r in range(128, 256):
        e(f"v_mov_b32 v{r}, 0")
    srd_finish()
    e(f"s_and_b32 s{sP}, s{sWAVE}, 1")
    e(f"s_lshr_b32 s{sKH}, s{sWAVE}, 1")
    e(f"s_lshl_b32 s68, s{sP}, 5")
    e(f"s_add_u32 s68, s68, s{sT1}")
    e(f"s_lshl_b32 s{sXO}, s68, 10")
    e(f"s_lshl_b32 s68, s{sCB}, 7")
    e(f"s_add_u32 s{sXO}, s{sXO}, s68")
    e(f"s_lshl_b32 s68, s{sKH}, 6")
    e(f"s_add_u32 s{sXO}, s{sXO}, s68")
    e(f"s_sub_u32 s69, 32, s{sT1}")
    e("s_and_b32 s69, s69, 31")
    e(f"s_cmp_ge_u32 s{sCB}, 4")
    e(f"s_cselect_b32 s69, s69, s{sT1}")
    e(f"s_lshl_b32 s{sZ}, s69, 16")
    e(f"s_add_u32 s{sZ}, s{sZ}, {Z_OFF}")
    e(f"s_mov_b32 s{sFZ}, {FLZ}")
    e(f"s_cmp_eq_u32 s{sT1}, 0")
    e(f"s_cselect_b32 s{sC0}, 64, 63")
    e(f"s_lshr_b32 s68, s{sT1}, 1")
    e("s_lshl_b32 s68, s68, 11")
    e(f"s_add_u32 s{sPOLL}, s68, {FLH}")
    e(f"s_and_b32 s70, s{sT1}, 1")
    e(f"s_lshl_b32 s71, s{sP}, 1")
    e("s_add_u32 s70, s70, s71")
    e("s_lshl_b32 s70, s70, 9")
    e("s_add_u32 s68, s68, s70")
    e(f"s_add_u32 s{sRO}, s68, {ST_OFF}")
    e(f"s_lshl_b32 s68, s{sT1}, 2")
    e("s_add_u32 s68, s68, s71")
    e(f"s_add_u32 s68, s68, s{sKH}")
    e(f"s_mul_i32 s68, s68, {56 * 1024}")
    rot_offsets(10, "s68")
    e(f"s_lshl_b32 s64, s{sI}, 4")
    e(f"s_add_u32 s64, s64, s{sJ}")
    e("s_lshl_b32 s64, s64, 7")
    e(f"s_add_u32 s{sFLG}, s64, {FLH}")
    e(f"s_cmp_eq_u32 s{sDFT}, 1")
    e("s_cbranch_scc1 CDFT")
    e(f"s_lshl_b32 s64, s{sJ}, 2")
    e(f"s_add_u32 s64, s64, s{sWAVE}")
    e("s_lshl_b32 s64, s64, 10")
    e(f"s_mul_i32 s65, s{sI}, {2 * 4 * 56 * 1024}")
    e(f"s_add_u32 s{sOUT}, s64, s65")
    stamp(1)
    e("s_barrier")
    mainloop(False)
    stamp(2)
    glu_epilogue()
    phase2(False)
    lab("CDFT")
    e(f"s_lshl_b32 s64, s{sI}, 12")
    e(f"s_and_b32 s65, s{sJ}, 1")
    e("s_lshl_b32 s66, s65, 11")
    e("s_add_u32 s64, s64, s66")
    e(f"s_lshl_b32 s66, s{sWAVE}, 9")
    e("s_add_u32 s64, s64, s66")
    e(f"s_add_u32 s{sOUT}, s64, {Z_OFF}")
    dft_prologue()
    stamp(1)
    e("s_barrier")
    for k in range(16):
        e(f"ds_read_b128 {vr(4 * k, 4)}, v119 offset:{1024 * k}")
    mainloop(True)
    stamp(2)
    dft_epilogue()


hdr = open("cdna_kernels/" + NAME + ".s.ref").read().split("\n")
head = [l for l in hdr if l.startswith(";") and "@launch" not in l and "Override launch" not in l and "grid=ceil" not in l]
out = head + ["; @launch grid=(256,1,1) block=(512,1,1) lds=163840",
              '.amdgcn_target "amdgcn-amd-amdhsa--gfx950"', ".text", f".globl {K}", ".p2align 8", f".type {K},@function", f"{K}:"]
prologue()
l01wave()
l2wave()
l3wave()
cwave()
lab("END")
e("s_endpgm")
out += L
out += ['.section .rodata,"a"', ".p2align 6", f".amdhsa_kernel {K}", "  .amdhsa_next_free_vgpr 256", "  .amdhsa_next_free_sgpr 102",
        "  .amdhsa_accum_offset 256", "  .amdhsa_group_segment_fixed_size 0", "  .amdhsa_kernarg_size 96",
        "  .amdhsa_user_sgpr_count 2", "  .amdhsa_user_sgpr_kernarg_segment_ptr 1", "  .amdhsa_system_sgpr_workgroup_id_x 1",
        ".end_amdhsa_kernel", ""]
open(sys.argv[1], "w").write("\n".join(out))
```

```python
import sys

NAME = "recurrent_scan__spectral_fnet__glu_gated_glu__prompt"
OPT = dict(map48=0, prof=0, D=12, D0=6, wt=0, t0=0, mt=0, sp=2, n23=4, n01=4, hp=0, hb0=2, p84=1, ct=1, rot=1, pre=8, th=4, trk=8, ua=30, slp=2, spin=200000)
for a in sys.argv[2:]:
    k, v = a.split("=")
    OPT[k] = int(v)
LITE = OPT["prof"] == 3
PROF = 0 if LITE else OPT["prof"]
K = NAME + "_kernel"
D = OPT["D"]

H_OFF, Z_OFF, ST_OFF, CS_OFF = 0, 0x800000, 0xA00000, 0xA10000
FLR, FLC, FLH, FLZ, PROF_OFF, WS_SIZE = 0xA40000, 0xA48000, 0xA50000, 0xA58000, 0xA60000, 0xB00000
vLOOPST = 121
SLOT = 49152
MISC = 147456
CSL, MRP, RL, NMRL, TAGL, CNTL = MISC, MISC + 1024, MISC + 2048, MISC + 2560, MISC + 3072, MISC + 3076
RED = 20 * 4096
NRES = 39


def wslot(v):
    return v if v < 36 else v + 1 if v < NRES else v - NRES

LOG2E = 0x3FB8AA3B
NLOG2E = 0xBFB8AA3B


def f2u(x):
    import struct
    return struct.unpack("<I", struct.pack("<f", x))[0]


L = []


def e(s):
    L.append("    " + s)


def lab(s):
    L.append(s + ":")


def cm(s):
    L.append("    ; " + s)


def vr(a, n):
    return f"v[{a}:{a + n - 1}]"


SRD_X, SRD_W0, SRD_W1, SRD_WD, SRD_WS, SRD_OUT, SRD_DBG, SRD_WM = 4, 8, 12, 16, 20, 24, 28, 32
sWAVE, sI, sJ, sT1, sCB, sRS, sCOL, sDFT, sTAG, sIDX, sK4 = 36, 37, 38, 39, 40, 41, 42, 43, 44, 45, 46
sSTAMP = 80
nstamp = [0]


def srd(n):
    return f"s[{n}:{n + 3}]"


def stamp(i):
    if PROF:
        e(f"{'s_memrealtime' if PROF == 2 else 's_memtime'} s[{sSTAMP + 2 * i}:{sSTAMP + 2 * i + 1}]")


def stamp_flush(n, vt, loopst=False):
    if LITE and loopst == vLOOPST:
        e("s_memrealtime s[76:77]")
        e(f"s_lshl_b32 s78, s2, 3")
        e(f"s_add_u32 s78, s78, s{sWAVE}")
        e(f"s_lshl_b32 s78, s78, 8")
        e(f"s_add_u32 s78, s78, {PROF_OFF}")
        e(f"v_mov_b32 v{vt + 8}, 0")
        e("s_waitcnt lgkmcnt(0)")
        e(f"v_mov_b32 v{vt}, s98")
        e(f"v_mov_b32 v{vt + 1}, s76")
        e(f"buffer_store_dwordx2 {vr(vt, 2)}, v{vt + 8}, {srd(SRD_WS)}, s78 offen offset:32")
    if not PROF:
        return
    e("s_waitcnt lgkmcnt(0)")
    for i in range(8):
        e(f"v_mov_b32 v{vt + i}, s{sSTAMP + 2 * i}" if i < n else f"v_mov_b32 v{vt + i}, 0")
    e(f"s_lshl_b32 s78, s2, 3")
    e(f"s_add_u32 s78, s78, s{sWAVE}")
    e(f"s_lshl_b32 s78, s78, 8")
    e(f"s_add_u32 s78, s78, {PROF_OFF}")
    e(f"v_mov_b32 v{vt + 8}, 0")
    e(f"buffer_store_dwordx4 {vr(vt, 4)}, v{vt + 8}, {srd(SRD_WS)}, s78 offen")
    e(f"buffer_store_dwordx4 {vr(vt + 4, 4)}, v{vt + 8}, {srd(SRD_WS)}, s78 offen offset:16")
    if loopst:
        e(f"v_lshlrev_b32 v{vt + 9}, 2, v{vLANE if loopst == vLOOPST else 0}")
        e(f"v_min_u32 v{vt + 9}, 124, v{vt + 9}")
        e(f"buffer_store_dword v{loopst}, v{vt + 9}, {srd(SRD_WS)}, s78 offen offset:64")
    e(f"s_memrealtime s[76:77]")
    e("s_waitcnt lgkmcnt(0)")
    e(f"v_mov_b32 v{vt}, s98")
    e(f"v_mov_b32 v{vt + 1}, s76")
    e(f"buffer_store_dwordx2 {vr(vt, 2)}, v{vt + 8}, {srd(SRD_WS)}, s78 offen offset:32")


uid = [0]
vLST = 250


QUIET = [False]


def lbar():
    if PROF and not QUIET[0]:
        e("s_memtime s[96:97]")
        e("s_mov_b32 s100, m0")
        e("s_mov_b32 m0, s79")
        e("s_waitcnt lgkmcnt(0)")
        e(f"v_writelane_b32 v{vLST}, s96, m0")
        e("s_mov_b32 m0, s100")
        e("s_cselect_b32 s101, 1, 0")
        e("s_add_u32 s79, s79, 1")
        e("s_cmp_eq_u32 s101, 1")
    e("s_barrier")


def poll_issue(vdst, vaddr, ssoff, srdn, n=1):
    op = "buffer_load_dword" if n == 1 else "buffer_load_dwordx2"
    d = f"v{vdst}" if n == 1 else vr(vdst, 2)
    e(f"{op} {d}, v{vaddr}, {srd(srdn)}, {ssoff} offen sc1")


def poll_wait(vdst, vaddr, ssoff, srdn, cond_tag=True, n=1, first_wait=0):
    uid[0] += 1
    k = uid[0]
    e(f"s_mov_b32 s75, {OPT['spin']}")
    e(f"s_waitcnt vmcnt({first_wait})")
    lab(f"POLL{k}")
    if cond_tag:
        e(f"v_cmp_ne_u32 vcc, s{sTAG}, v{vdst}")
        if n == 2:
            e(f"v_cmp_ne_u32 s[76:77], s{sTAG}, v{vdst + 1}")
            e("s_nop 0")
            e("s_or_b64 vcc, vcc, s[76:77]")
    else:
        e(f"v_cmp_eq_u32 vcc, 0, v{vdst}")
    e("s_nop 1")
    e("s_cmp_eq_u64 vcc, 0")
    e(f"s_cbranch_scc1 POLLD{k}")
    if OPT["slp"]:
        e(f"s_sleep {OPT['slp']}")
    poll_issue(vdst, vaddr, ssoff, srdn, n)
    e("s_sub_u32 s75, s75, 1")
    e("s_cmp_lg_u32 s75, 0")
    e("s_waitcnt vmcnt(0)")
    e(f"s_cbranch_scc1 POLL{k}")
    lab(f"POLLD{k}")


def srd_finish():
    e("s_waitcnt lgkmcnt(0)")
    e(f"s_cmp_eq_u32 s{sDFT}, 1")
    e("s_cselect_b64 s[8:9], s[48:49], s[52:53]")
    e("s_cselect_b64 s[12:13], s[50:51], s[54:55]")
    e("s_mov_b64 s[16:17], s[56:57]")
    e("s_mov_b64 s[24:25], s[58:59]")
    e("s_mov_b64 s[28:29], s[60:61]")
    if OPT.get("wsmb"):
        e(f"s_add_u32 s20, s62, {OPT['wsmb'] << 20:#x}")
        e("s_addc_u32 s21, s63, 0")
    else:
        e("s_mov_b64 s[20:21], s[62:63]")


def prologue():
    e("s_cmp_ge_u32 s2, 256")
    e("s_cbranch_scc1 END")
    e("s_load_dwordx2 s[4:5], s[0:1], 0")
    e("s_load_dwordx4 s[48:51], s[0:1], 24")
    e("s_load_dwordx8 s[52:59], s[0:1], 48")
    e("s_load_dwordx4 s[60:63], s[0:1], 80")
    if PROF or LITE or OPT.get("rabs"):
        e("s_memrealtime s[98:99]")
    stamp(0)
    if PROF:
        e("s_mov_b32 s79, 0")
    e("v_lshrrev_b32 v1, 6, v0")
    e("v_and_b32 v0, 63, v0")
    e(f"s_lshr_b32 s{sIDX}, s2, 3")
    e(f"v_readfirstlane_b32 s{sWAVE}, v1")
    if OPT.get("map216"):
        e("s_and_b32 s64, s2, 7")
        e("s_lshl_b32 s64, s64, 1")
        e(f"s_and_b32 s65, s{sIDX}, 1")
        e(f"s_add_u32 s{sI}, s64, s65")
        e(f"s_lshr_b32 s{sJ}, s{sIDX}, 1")
        e(f"s_mov_b32 s{sK4}, 0")
    elif OPT["map48"]:
        e("s_and_b32 s64, s2, 3")
        e("s_lshl_b32 s64, s64, 2")
        e(f"s_and_b32 s65, s{sIDX}, 3")
        e(f"s_add_u32 s{sI}, s64, s65")
        e("s_bfe_u32 s64, s2, 0x10002")
        e(f"s_lshr_b32 s{sK4}, s{sIDX}, 2")
        e("s_mul_i32 s65, s64, 7")
        e(f"s_add_u32 s65, s65, s{sK4}")
        e("s_add_u32 s66, s64, 14")
        e(f"s_cmp_eq_u32 s{sK4}, 7")
        e(f"s_cselect_b32 s{sJ}, s66, s65")
    else:
        e("s_and_b32 s64, s2, 1")
        e("s_lshl_b32 s64, s64, 3")
        e(f"s_and_b32 s65, s{sIDX}, 7")
        e(f"s_add_u32 s{sI}, s64, s65")
        e("s_bfe_u32 s64, s2, 0x20001")
        e(f"s_lshr_b32 s{sK4}, s{sIDX}, 3")
        e("s_mul_i32 s65, s64, 3")
        e(f"s_add_u32 s65, s65, s{sK4}")
        e("s_add_u32 s66, s64, 14")
        e(f"s_cmp_eq_u32 s{sK4}, 3")
        e("s_cselect_b32 s65, s66, s65")
        e("s_lshl_b32 s66, s64, 2")
        e(f"s_add_u32 s66, s66, s{sK4}")
        e("s_sub_u32 s66, s66, 2")
        e("s_cmp_lt_u32 s64, 2")
        e(f"s_cselect_b32 s{sJ}, s65, s66")
    if OPT["p84"]:
        e("s_bfe_u32 s64, s2, 0x20001")
        e("s_lshl_b32 s64, s64, 3")
        e(f"s_and_b32 s65, s{sIDX}, 7")
        e(f"s_add_u32 s{sT1}, s64, s65")
        e("s_and_b32 s64, s2, 1")
        e("s_lshl_b32 s64, s64, 2")
        e(f"s_lshr_b32 s65, s{sIDX}, 3")
        e(f"s_add_u32 s{sCB}, s64, s65")
    else:
        e("s_and_b32 s64, s2, 7")
        e("s_lshl_b32 s64, s64, 2")
        e(f"s_and_b32 s65, s{sIDX}, 3")
        e(f"s_add_u32 s{sT1}, s64, s65")
        e(f"s_lshr_b32 s{sCB}, s{sIDX}, 2")
    e(f"s_lshl_b32 s{sCOL}, s{sJ}, 8")
    e(f"s_sub_u32 s64, s{sCOL}, {14 * 256}")
    e(f"s_movk_i32 s{sRS}, 3584")
    e(f"s_cmp_ge_u32 s{sJ}, 14")
    e(f"s_cselect_b32 s{sDFT}, 1, 0")
    e(f"s_cselect_b32 s{sRS}, 1024, s{sRS}")
    e(f"s_cselect_b32 s{sCOL}, s64, s{sCOL}")
    e(f"s_lshl_b32 s10, s{sRS}, 9")
    e("s_mov_b32 s14, s10")
    e("s_mov_b32 s6, 0x200000")
    e("s_mov_b32 s7, 0x20000")
    e("s_mov_b32 s11, 0x20000")
    e("s_mov_b32 s15, 0x20000")
    e(f"s_mov_b32 s18, {1792 * 1024}")
    e("s_mov_b32 s19, 0x20000")
    e(f"s_mov_b32 s22, {WS_SIZE}")
    e("s_mov_b32 s23, 0x20000")
    e("s_mov_b32 s26, 0x200000")
    e("s_mov_b32 s27, 0x20000")
    e("s_mov_b32 s30, 256")
    e("s_mov_b32 s31, 0x20000")
    e("s_mov_b32 s34, s10")
    e("s_mov_b32 s35, 0x20000")
    e(f"s_cmp_lt_u32 s{sWAVE}, 4")
    e("s_cbranch_scc1 CWAVE")
    e(f"s_cmp_eq_u32 s{sWAVE}, 6")
    e("s_cbranch_scc1 L2WAVE")
    e(f"s_cmp_eq_u32 s{sWAVE}, 7")
    e("s_cbranch_scc1 L3WAVE")


def wd_voffset(vd, vt):
    e(f"v_lshrrev_b32 v{vt}, 3, v0")
    e(f"v_lshlrev_b32 v{vd}, 10, v{vt}")
    e(f"v_bfe_u32 v{vt}, v0, 4, 1")
    e(f"v_lshlrev_b32 v{vt}, 2, v{vt}")
    e(f"v_and_b32 v{vt + 1}, 7, v0")
    e(f"v_xor_b32 v{vt}, v{vt}, v{vt + 1}")
    e(f"v_lshl_add_u32 v{vd}, v{vt}, 4, v{vd}")


NB = 2 * OPT["n23"] + 2 * OPT["n01"]
XM, XS = (224, 8192) if OPT["p84"] else (448, 4096)
assert XM % NB == 0 or OPT["sp"] != 2
XROT = 64


def xw_init(first_sgpr_or_imm):
    if OPT["sp"] != 2:
        return
    if OPT["p84"]:
        e(f"s_lshr_b32 s60, s{sIDX}, 2")
        e("s_lshl_b32 s60, s60, 10")
        e(f"s_and_b32 s63, s{sIDX}, 3")
        e("s_lshl_b32 s63, s63, 7")
        e("s_add_u32 s60, s60, s63")
        e("s_and_b32 s63, s2, 1")
        e("s_lshl_b32 s63, s63, 9")
        e("s_add_u32 s60, s60, s63")
        e("s_bfe_u32 s63, s2, 0x20001")
    else:
        e(f"s_lshl_b32 s60, s{sIDX}, 7")
        e("s_and_b32 s63, s2, 7")
    e(f"s_add_u32 s60, s60, {first_sgpr_or_imm}")
    e(f"s_add_u32 s62, s60, {XM * XS}")
    e(f"s_mul_i32 s63, s63, {XROT * XS}")
    e(f"s_cmp_ge_u32 s63, {XM * XS}")
    e("s_cselect_b32 s63, 0, s63")
    e("s_add_u32 s60, s60, s63")


def xw(n, interval=None):
    if OPT["sp"] != 2 or (interval in (0, 2) and OPT.get("xskip")):
        return
    for k in range(n):
        e(f"s_buffer_load_dwordx2 s[58:59], {srd(SRD_WD)}, s60 offset:{XS * k + 60}")
    e(f"s_add_u32 s60, s60, {NB * XS}")
    e("s_cmp_ge_u32 s60, s62")
    e(f"s_cselect_b32 s63, {XM * XS}, 0")
    e("s_sub_u32 s60, s60, s63")


def rot_offsets(shift, add=None):
    for k in range(8):
        if OPT["rot"]:
            e(f"s_add_u32 s{48 + k}, s{sCB}, {k}")
            e(f"s_and_b32 s{48 + k}, s{48 + k}, 7")
            e(f"s_lshl_b32 s{48 + k}, s{48 + k}, {shift}")
        else:
            e(f"s_mov_b32 s{48 + k}, {k << shift}")
        if add:
            e(f"s_add_u32 s{48 + k}, s{48 + k}, {add}")


def wait_c_done():
    uid[0] += 1
    k = uid[0]
    e(f"v_mov_b32 v7, {CNTL}")
    e(f"s_mov_b32 s75, {OPT['spin']}")
    lab(f"CW{k}")
    e("ds_read_b32 v8, v7")
    e("s_waitcnt lgkmcnt(0)")
    e("v_readfirstlane_b32 s76, v8")
    e("s_sub_u32 s75, s75, 1")
    e("s_cmp_eq_u32 s75, 0")
    e(f"s_cbranch_scc1 CWD{k}")
    e("s_sleep 1")
    e("s_cmp_lt_u32 s76, 4")
    e(f"s_cbranch_scc1 CW{k}")
    lab(f"CWD{k}")


P2BAR = {55 - NRES: "BP1", NRES - 2: "BP2"}


def l_tail(poller):
    ST0 = 64
    n = 56 - NRES
    e(f"s_sub_u32 s64, s{sWAVE}, 4")
    e("s_lshl_b32 s65, s64, 13")
    for v in range(NRES, 56):
        if v == NRES or v & 7 == 0:
            e(f"s_add_u32 s66, s65, {(v >> 3) * 262144}")
        e(f"s_add_u32 s67, s66, s{48 + (v & 7)}")
        if not OPT.get("nowd"):
            e(f"buffer_load_dwordx4 {vr(ST0 + 4 * (v - NRES), 4)}, v5, {srd(SRD_WD)}, s67 offen")
    e(f"s_lshl_b32 s65, s{sT1}, 2")
    e("s_add_u32 s65, s65, s64")
    e(f"s_mul_i32 s60, s65, {56 * 1024}")
    e(f"s_lshl_b32 s65, s{sCB}, 10")
    e("s_add_u32 s60, s60, s65")
    e("s_lshl_b32 s64, s64, 10")
    e("v_lshl_add_u32 v6, v0, 4, s64")

    def hwarm(b):
        if OPT["hp"]:
            for k in range(8):
                e(f"s_buffer_load_dwordx2 s[58:59], {srd(SRD_WS)}, s60 offset:{8192 * b + 128 * k + 60}")

    if poller:
        poll_issue(11, 10, "s68", SRD_WS)
        poll_wait(11, 10, "s68", SRD_WS)
    else:
        e(f"s_waitcnt vmcnt({n})")
    stamp(4)
    QUIET[0] = bool(OPT["hp"])
    lbar()
    b0 = OPT["hb0"]
    for b in range(b0, b0 + 3):
        hwarm(b)
    e("s_waitcnt vmcnt(0)")
    stamp(5)
    lbar()
    if poller:
        poll_issue(11, 12, "s69", SRD_WS)
    rest = list(range(b0 + 3, 7))
    for u in range(n):
        if u == 16:
            e("v_add_u32 v6, 0x10000, v6")
        e(f"ds_write_b128 v6, {vr(ST0 + 4 * u, 4)} offset:{(u * 4096) & 0xFFFF}")
        if u % 6 == 5 and rest:
            hwarm(rest.pop(0))
    for b in rest:
        hwarm(b)
    if poller:
        poll_wait(11, 12, "s69", SRD_WS)
    e("s_waitcnt lgkmcnt(0)")
    stamp(6)
    QUIET[0] = False
    lbar()
    stamp_flush(7, 8, vLST)
    e("s_endpgm")


def l3_tail():
    e("v_min_u32 v10, 13, v0")
    e("v_lshlrev_b32 v10, 7, v10")
    e(f"s_lshr_b32 s68, s{sT1}, 1")
    e("s_lshl_b32 s68, s68, 11")
    e(f"s_add_u32 s68, s68, {FLH}")
    e("v_bfe_u32 v12, v0, 1, 4")
    e("v_lshlrev_b32 v12, 4, v12")
    e("v_and_b32 v13, 1, v0")
    e("v_add3_u32 v12, v12, v13, 14")
    e("v_lshlrev_b32 v12, 7, v12")
    e(f"s_mov_b32 s69, {FLH}")
    wd_voffset(5, 14)
    e(f"s_lshl_b32 s64, s{sCB}, 7")
    rot_offsets(15, "s64")
    QUIET[0] = False
    wait_c_done()
    l_tail(True)


def l01wave():
    vX0, vX1, vW, vWD = 2, 3, 4, 5
    sLW, sXa, sXb, sWo, sS0, sS1, sR4, sT, sCnt, sWd = 64, 65, 66, 67, 68, 69, 70, 71, 72, 73
    cm("================ L0/L1: DMA waves ================")
    QUIET[0] = bool(OPT["sp"])
    e(f"s_sub_u32 s{sLW}, s{sWAVE}, 4")
    e("v_lshrrev_b32 v6, 3, v0")
    e(f"v_lshlrev_b32 v{vX0}, 16, v6")
    e("v_lshrrev_b32 v6, 1, v6")
    e("v_and_b32 v7, 7, v0")
    e("v_xor_b32 v6, v6, v7")
    e(f"v_lshl_add_u32 v{vX0}, v6, 4, v{vX0}")
    e(f"v_xor_b32 v{vX1}, 64, v{vX0}")
    e("v_lshrrev_b32 v6, 4, v0")
    e(f"v_mul_lo_u32 v{vW}, v6, s{sRS}")
    e("v_bfe_u32 v7, v0, 2, 2")
    e("v_xor_b32 v7, v7, v6")
    e("v_lshlrev_b32 v7, 2, v7")
    e("v_and_b32 v8, 3, v0")
    e("v_or_b32 v7, v7, v8")
    e(f"v_lshl_add_u32 v{vW}, v7, 4, v{vW}")
    e(f"s_lshl_b32 s{sXa}, s{sI}, 1")
    e(f"s_add_u32 s{sXa}, s{sXa}, s{sLW}")
    e(f"s_lshl_b32 s{sXa}, s{sXa}, 10")
    e(f"s_add_u32 s{sXb}, s{sXa}, {32 * 1024}")
    e(f"s_mov_b32 s{sWo}, s{sCOL}")
    e(f"s_lshl_b32 s{sR4}, s{sRS}, 2")
    e(f"s_lshl_b32 s74, s{sLW}, 10")
    e(f"s_lshl_b32 s76, s{sLW}, 12")
    wd_voffset(vWD, 6)

    def wpieces(base_sgpr, imm):
        e(f"s_add_u32 s{sT}, s{base_sgpr}, s74")
        e(f"s_add_u32 m0, s{sT}, {imm}")
        e("s_nop 0")
        for k in range(8):
            if not OPT.get("nodma"):
                e(f"buffer_load_dwordx4 v{vW}, {srd(SRD_WM)}, s{sWo} offen lds")
            if k < 7:
                e("s_add_u32 m0, m0, 2048")
            e(f"s_add_u32 s{sWo}, s{sWo}, s{sR4}")

    def xpieces(base_sgpr, half):
        sx = sXb if half else sXa
        e(f"s_add_u32 s{sT}, s{base_sgpr}, s76")
        e(f"s_add_u32 m0, s{sT}, {32768 + half * 8192}")
        e(f"s_mov_b32 s{sT}, s{sx}")
        for k in range(4):
            if not OPT.get("nodma"):
                e(f"buffer_load_dwordx4 v{vX1 if k & 1 else vX0}, {srd(SRD_X)}, s{sT} offen lds")
            if k < 3:
                e("s_add_u32 m0, m0, 1024")
                e(f"s_add_u32 s{sT}, s{sT}, 0x80000")
        e(f"s_add_u32 s{sx}, s{sx}, 128")

    e(f"s_mov_b32 s{sS0}, {SLOT}")
    e(f"s_mov_b32 s{sS1}, {2 * SLOT}")
    srd_finish()
    e(f"s_cmp_eq_u32 s{sLW}, 0")
    e("s_cselect_b64 s[32:33], s[8:9], s[12:13]")
    e("s_lshl_b32 s77, s2, 1")
    e(f"s_add_u32 s77, s77, s{sLW}")
    e("s_lshl_b32 s77, s77, 8")
    e("s_add_u32 s56, s16, s77")
    e("s_addc_u32 s57, s17, 0")

    def swarm(chunk):
        for k in range(4):
            if OPT["sp"] == 1:
                e(f"s_load_dword s58, s[56:57], {chunk * 131072 + 64 * k}")

    cm("G0 = x0 + W0 ; G1 = W1 + x1a")
    xpieces(sS0, 0)
    xpieces(sS0, 1)
    wpieces(sS0, 0)
    wpieces(sS0, 16384)
    xpieces(sS1, 0)
    e(f"s_mov_b32 s{sS0}, {2 * SLOT}")
    e(f"s_mov_b32 s{sS1}, 0")
    swarm(0)
    swarm(1)
    e(f"s_mul_i32 s77, s{sLW}, {OPT['n01'] * XS}")
    e(f"s_add_u32 s77, s77, {2 * OPT['n23'] * XS}")
    xw_init("s77")
    xw(OPT["n01"])
    e(f"s_mov_b32 s{sCnt}, 6")
    e(f"s_lshl_b32 s{sT}, s{sCB}, 7")
    rot_offsets(15, f"s{sT}")
    e("s_waitcnt vmcnt(12)")
    stamp(1)
    lbar()
    lab("L01LOOP")
    wpieces(sS0, 0)
    xpieces(sS0, 1)
    swarm(2)
    if OPT["sp"] == 2:
        if OPT.get("xskip"):
            e(f"s_cmp_ge_u32 s{sCnt}, 5")
            e("s_cbranch_scc1 L01NOXW")
        xw(OPT['n01'])
        lab("L01NOXW")
    e("s_waitcnt vmcnt(12)")
    lbar()
    wpieces(sS0, 16384)
    xpieces(sS1, 0)
    swarm(3)
    xw(OPT['n01'])
    e("s_add_u32 s56, s56, 262144")
    e("s_addc_u32 s57, s57, 0")
    e(f"s_mov_b32 s{sS0}, s{sS1}")
    e(f"s_add_u32 s{sS1}, s{sS1}, {SLOT}")
    e(f"s_cmp_eq_u32 s{sS1}, {3 * SLOT}")
    e(f"s_cselect_b32 s{sS1}, 0, s{sS1}")
    e(f"s_sub_u32 s{sCnt}, s{sCnt}, 1")
    e(f"s_cmp_lg_u32 s{sCnt}, 0")
    e("s_waitcnt vmcnt(12)")
    lbar()
    e("s_cbranch_scc1 L01LOOP")
    cm("after B12: G14")
    wpieces(sS0, 0)
    xpieces(sS0, 1)
    xw(OPT["n01"])
    e("s_waitcnt vmcnt(12)")
    lbar()
    wpieces(sS0, 16384)
    e(f"s_lshl_b32 s{sWd}, s{sLW}, 14")
    e(f"s_lshl_b32 m0, s{sLW}, 11")

    def units(a, b, th=0):
        for v in range(a, b if not OPT.get("nowd") else a):
            if v and v & 7 == 0:
                e(f"s_add_u32 s{sWd}, s{sWd}, 262144")
            e(f"s_add_u32 s{sT}, s{sWd}, s{48 + (v & 7)}")
            e(f"buffer_load_dwordx4 v{vWD}, {srd(SRD_WD)}, s{sT} offen lds")
            e("s_add_u32 m0, m0, 1024")
            e(f"s_add_u32 s{sT}, s{sT}, 8192")
            e(f"buffer_load_dwordx4 v{vWD}, {srd(SRD_WD)}, s{sT} offen lds")
            d = (wslot(v + 1) - wslot(v)) * 4096 - 1024
            e(f"s_add_u32 m0, m0, {d}" if d > 0 else f"s_sub_u32 m0, m0, {-d}")
            if th:
                e(f"s_waitcnt vmcnt({th})")

    units(0, 2)
    xw(OPT["n01"])
    e("s_waitcnt vmcnt(12)")
    lbar()
    units(2, 8)
    e("s_waitcnt vmcnt(16)")
    lbar()
    units(8, 14)
    stamp(2)
    lbar()
    QUIET[0] = False
    TR = 14 + OPT["trk"]
    units(14, TR, OPT["th"])
    e(f"s_cmp_eq_u32 s{sDFT}, 1")
    e("s_cbranch_scc1 L01GO")
    wait_c_done()
    lab("L01GO")
    stamp(3)
    units(TR, NRES)
    lab("LTAIL")
    l_tail(False)


def l2wave():
    vA, vDum, vTD, vC = 2, 6, 7, 8
    lab("L2WAVE")
    cm("================ L2: cache warming touches, column sums ================")
    if OPT.get("lprio"):
        e(f"s_setprio {OPT['lprio']}")
    e(f"s_and_b32 s64, s{sK4}, 1")
    e(f"s_lshr_b32 s65, s{sK4}, 1")
    e("s_lshl_b32 s65, s65, 5")
    e(f"s_lshl_b32 s66, s{sI}, 1")
    e("s_add_u32 s64, s64, s65")
    e("s_add_u32 s64, s64, s66")
    e("s_lshl_b32 s64, s64, 10")
    e("v_lshl_add_u32 v10, v0, 16, s64")
    e(f"s_and_b32 s65, s{sI}, 7")
    e("s_lshl_b32 s65, s65, 3")
    e("v_bfe_u32 v11, v0, 2, 3")
    e("v_add_u32 v11, s65, v11")
    e(f"v_mul_lo_u32 v11, v11, s{sRS}")
    e("v_and_b32 v12, 1, v0")
    e("v_lshl_add_u32 v11, v12, 7, v11")
    e(f"v_add_u32 v11, s{sCOL}, v11")
    e("v_cmp_lt_u32 vcc, 31, v0")
    e("v_and_b32 v12, 2, v0")
    e("v_cmp_ne_u32 s[66:67], 0, v12")
    e("v_cndmask_b32 v10, v10, v11, vcc")
    e("v_mov_b32 v11, 0")
    e("v_lshrrev_b32 v18, 3, v0")
    e("v_and_b32 v19, 7, v0")
    e(f"v_lshlrev_b32 v{vTD}, 10, v18")
    e(f"v_lshl_add_u32 v{vTD}, v19, 7, v{vTD}")
    e("v_mov_b32 v18, 0x40000000")
    e(f"v_cndmask_b32 v{vTD}, v{vTD}, v18, vcc")
    e(f"s_lshl_b32 s71, s{sIDX}, 12")
    e("v_lshrrev_b32 v18, 3, v0")
    e("v_and_b32 v19, 7, v0")
    e(f"v_mul_lo_u32 v{vC}, v18, s{sRS}")
    e(f"v_lshl_add_u32 v{vC}, v19, 4, v{vC}")
    e(f"s_lshr_b32 s64, s{sI}, 2")
    e("s_lshl_b32 s64, s64, 4")
    e(f"s_mul_i32 s69, s64, s{sRS}")
    e(f"s_and_b32 s64, s{sI}, 1")
    e("s_lshl_b32 s64, s64, 7")
    e("s_add_u32 s69, s69, s64")
    e(f"s_add_u32 s69, s69, s{sCOL}")
    e(f"s_lshl_b32 s70, s{sRS}, 3")
    e(f"s_mul_i32 s72, s{sRS}, 56")
    srd_finish()
    e(f"s_bitcmp1_b32 s{sI}, 1")
    e("s_cselect_b64 s[32:33], s[12:13], s[8:9]")
    if OPT["t0"]:
        e("v_mov_b32 v14, s8")
        e("v_mov_b32 v15, s9")
        e("v_mov_b32 v16, s12")
        e("v_mov_b32 v17, s13")
        e("v_cndmask_b32 v14, v14, v16, s[66:67]")
        e("v_cndmask_b32 v15, v15, v17, s[66:67]")
        e("v_mov_b32 v16, s4")
        e("v_mov_b32 v17, s5")
        e("v_cndmask_b32 v14, v16, v14, vcc")
        e("v_cndmask_b32 v15, v17, v15, vcc")
        e(f"v_lshl_add_u64 {vr(vA, 2)}, v[10:11], 0, v[14:15]")
        e(f"global_load_dword v{vDum}, {vr(vA, 2)}, off")

    LD = 32
    AC = 16

    def csload(y):
        if OPT.get("nostats"):
            return
        e(f"buffer_load_dwordx4 {vr(LD + 4 * y, 4)}, v{vC}, {srd(SRD_WM)}, s69 offen")
        e(f"s_add_u32 s69, s69, {'s72' if y & 1 else 's70'}")

    def csproc(y):
        for d in range(4 if not OPT.get("nostats") else 0):
            r = LD + 4 * y + d
            if y == 0:
                e(f"v_lshlrev_b32 v{AC + 2 * d}, 16, v{r}")
                e(f"v_and_b32 v{AC + 2 * d + 1}, v9, v{r}")
            else:
                e(f"v_lshlrev_b32 v10, 16, v{r}")
                e(f"v_and_b32 v11, v9, v{r}")
                e(f"v_add_f32 v{AC + 2 * d}, v{AC + 2 * d}, v10")
                e(f"v_add_f32 v{AC + 2 * d + 1}, v{AC + 2 * d + 1}, v11")

    PRE = OPT["pre"]
    for y in range(2 * PRE):
        csload(y)
    e("v_mov_b32 v9, 0xffff0000")
    QUIET[0] = OPT["sp"] == 2
    xw_init(0)
    xw(OPT["n23"])
    stamp(1)
    def wtouch():
        if OPT["wt"]:
            e(f"buffer_load_dword v{vDum}, v{vTD}, {srd(SRD_WD)}, s71 offen")
            e("s_add_u32 s71, s71, 131072")

    vm = [("c", y) for y in range(2 * PRE)]
    issued, done = 2 * PRE, 0
    for n in range(8):
        lbar()
        xw(OPT["n23"], n)
        if issued < 16:
            csload(issued)
            csload(issued + 1)
            vm += [("c", issued), ("c", issued + 1)]
            issued += 2
        if n >= 2 and OPT["wt"]:
            wtouch()
            vm.append(("t", n))
        if n >= 2:
            k = min(done + 3, 16)
            e(f"s_waitcnt vmcnt({len(vm) - 1 - vm.index(('c', k - 1))})")
            for y in range(done, k):
                csproc(y)
            done = k
    assert done == 16 and issued == 16
    lbar()
    wtouch()
    e(f"v_mov_b32 v12, {TAGL}")
    e("ds_read_b32 v25, v12")
    for k in range(4):
        e(f"v_permlane32_swap_b32 v{AC + k}, v{AC + k + 4}")
    e("s_nop 1")
    for k in range(4):
        e(f"v_add_f32 v{AC + k}, v{AC + k}, v{AC + k + 4}")
    e("s_nop 1")
    for k in range(2):
        e(f"v_permlane16_swap_b32 v{AC + k}, v{AC + k + 2}")
    e("s_nop 1")
    for k in range(2):
        e(f"v_add_f32 v{AC + k}, v{AC + k}, v{AC + k + 2}")
    e("v_and_b32 v10, 7, v0")
    e("v_lshlrev_b32 v10, 3, v10")
    e(f"v_add_f32_dpp v24, v{AC}, v{AC} row_ror:8 row_mask:0xf bank_mask:0x3")
    e(f"v_add_f32_dpp v24, v{AC + 1}, v{AC + 1} row_ror:8 row_mask:0xf bank_mask:0xc")
    e("v_bfe_u32 v11, v0, 5, 1")
    e("v_lshl_add_u32 v10, v11, 2, v10")
    e("v_bfe_u32 v11, v0, 4, 1")
    e("v_lshl_add_u32 v10, v11, 1, v10")
    e("v_bfe_u32 v11, v0, 3, 1")
    e("v_add_u32 v10, v11, v10")
    e("v_lshlrev_b32 v10, 3, v10")
    e(f"s_lshl_b32 s64, s{sJ}, 13")
    e(f"s_add_u32 s64, s64, {CS_OFF}")
    e(f"s_lshl_b32 s65, s{sI}, 9")
    e("s_add_u32 s65, s64, s65")
    e("s_waitcnt lgkmcnt(0)")
    e(f"buffer_store_dwordx2 v[24:25], v10, {srd(SRD_WS)}, s65 offen sc1")
    e(f"v_readfirstlane_b32 s{sTAG}, v25")
    xw(OPT["n23"])
    stamp(2)
    e("v_lshlrev_b32 v10, 5, v0")
    e("s_add_u32 s65, s64, 4096")

    def csget():
        for k in range(8):
            e(f"buffer_load_dwordx4 {vr(32 + 4 * k, 4)}, v10, {srd(SRD_WS)}, {'s65' if k >= 4 else 's64'} offen offset:{2048 * ((k >> 1) & 1) + 16 * (k & 1)} sc1")

    for n in range(9, 14):
        lbar()
        xw(OPT["n23"])
        if n < 13:
            wtouch()
        if 10 <= n < 13:
            wtouch()
    csget()
    lbar()
    e(f"s_mov_b32 s75, {OPT['spin']}")
    lab("CSCHK")
    e("s_waitcnt vmcnt(0)")
    for k in range(16):
        e(f"v_xor_b32 v{64 + k}, s{sTAG}, v{33 + 2 * k}")
    e("v_or_b32 v12, v64, v65")
    for k in range(1, 8):
        e(f"v_or3_b32 v12, v12, v{64 + 2 * k}, v{65 + 2 * k}")
    e("v_cmp_ne_u32 vcc, 0, v12")
    e("s_nop 1")
    e("s_cmp_eq_u64 vcc, 0")
    e("s_cbranch_scc1 CSOK")
    csget()
    e("s_sub_u32 s75, s75, 1")
    e("s_cmp_lg_u32 s75, 0")
    e("s_cbranch_scc1 CSCHK")
    e("s_waitcnt vmcnt(0)")
    lab("CSOK")
    e("v_lshlrev_b32 v10, 4, v0")
    e(f"v_add_u32 v10, {CSL}, v10")
    for d in range(4):
        e(f"v_add_f32 v{16 + d}, v{32 + 2 * d}, v{40 + 2 * d}")
        e(f"v_add_f32 v{20 + d}, v{48 + 2 * d}, v{56 + 2 * d}")
    for d in range(4):
        e(f"v_add_f32 v{16 + d}, v{16 + d}, v{20 + d}")
    e("ds_write_b128 v10, v[16:19]")
    lbar()
    e("s_waitcnt lgkmcnt(0)")
    stamp(3)
    lbar()
    wd_voffset(5, 14)
    e(f"s_lshl_b32 s64, s{sCB}, 7")
    rot_offsets(15, "s64")
    e(f"s_cmp_eq_u32 s{sDFT}, 1")
    e("s_cbranch_scc1 LTAIL")
    wait_c_done()
    e("s_branch LTAIL")


def l3wave():
    lab("L3WAVE")
    cm("================ L3: launch tag, row statistics ================")
    if OPT.get("lprio"):
        e(f"s_setprio {OPT['lprio']}")
    if OPT["ct"]:
        e("s_getpc_b64 s[64:65]")
        lab("PCREF")
        e(f"s_sub_u32 s64, s64, PCREF-{K}")
        e("s_subb_u32 s65, s65, 0")
        e("v_and_b32 v2, 7, v0")
        e(f"s_lshl_b32 s66, s{sIDX}, 3")
        e("v_add_u32 v2, s66, v2")
        e("v_lshlrev_b32 v2, 7, v2")
        e(f"v_min_u32 v2, END-{K}, v2")
        e("global_load_dword v8, v2, s[64:65]")
    e(f"s_bfe_u32 s64, s{sJ}, 0x10002")
    e(f"s_bfe_u32 s65, s{sJ}, 0x10003")
    e("s_lshl_b32 s65, s65, 5")
    e(f"s_lshl_b32 s66, s{sI}, 1")
    e("s_add_u32 s64, s64, s65")
    e("s_add_u32 s64, s64, s66")
    e(f"s_and_b32 s65, s{sJ}, 3")
    e("s_lshl_b32 s65, s65, 9")
    e("s_add_u32 s64, s64, s65")
    e("s_lshl_b32 s64, s64, 10")
    e("v_lshrrev_b32 v4, 3, v0")
    e("v_and_b32 v14, 7, v0")
    e("v_lshlrev_b32 v6, 16, v4")
    e("v_lshl_add_u32 v6, v14, 4, v6")
    e("v_mov_b32 v9, 0xffff0000")
    e("s_memrealtime s[66:67]")
    srd_finish()
    e("v_mov_b32 v2, 0")
    e("s_cmp_lg_u32 s2, 0")
    e("s_cbranch_scc1 L3NOTAG")
    e("s_or_b32 s66, s66, 1")
    e("v_mov_b32 v3, s66")
    e(f"buffer_store_dword v3, v2, {srd(SRD_DBG)}, 0 offen sc1")
    lab("L3NOTAG")
    LD, UP = 16, 64
    PRE = OPT["pre"]

    def rowload(y):
        e(f"buffer_load_dwordx4 {vr(LD + 4 * y, 4)}, v6, {srd(SRD_X)}, s64 offen offset:{128 * y}")

    for y in range(PRE):
        rowload(y)
    xw_init(OPT["n23"] * XS)
    xw(OPT["n23"])

    def unp(d):
        if OPT.get("nostats"):
            return
        e(f"v_lshlrev_b32 v{UP + 2 * d}, 16, v{LD + d}")
        e(f"v_and_b32 v{UP + 2 * d + 1}, v9, v{LD + d}")
        if d == 0:
            e(f"v_mov_b32 v10, v{UP}")
            e(f"v_mov_b32 v11, v{UP + 1}")
        else:
            e(f"v_add_f32 v10, v10, v{UP + 2 * d}")
            e(f"v_add_f32 v11, v11, v{UP + 2 * d + 1}")

    def red8(r):
        e("s_nop 1")
        e(f"v_add_f32_dpp v{r}, v{r}, v{r} quad_perm:[1,0,3,2] row_mask:0xf bank_mask:0xf")
        e("s_nop 1")
        e(f"v_add_f32_dpp v{r}, v{r}, v{r} quad_perm:[2,3,0,1] row_mask:0xf bank_mask:0xf")
        e("s_nop 1")
        e(f"v_add_f32_dpp v{r}, v{r}, v{r} row_half_mirror row_mask:0xf bank_mask:0xf")

    def var(k):
        if OPT.get("nostats"):
            return
        e(f"v_sub_f32 v{UP + k}, v{UP + k}, v10")
        e(f"v_fmac_f32 v{12 + (k & 1)}, v{UP + k}, v{UP + k}")

    issued, done = PRE, 0
    for n in range(6):
        lbar()
        xw(OPT["n23"], n)
        if issued < 8:
            rowload(issued)
            issued += 1
        if n >= 2:
            k = min(done + 2, 8)
            e(f"s_waitcnt vmcnt({issued - k})")
            for d in range(4 * done, 4 * k):
                unp(d)
            done = k
    assert done == 8 and issued == 8
    poll_issue(3, 2, "0", SRD_DBG)
    e("v_add_f32 v10, v10, v11")
    red8(10)
    e(f"v_mul_f32 v10, {f2u(1.0 / 512):#x}, v10")
    e("v_mov_b32 v12, 0")
    e("v_mov_b32 v13, 0")
    lbar()
    xw(OPT["n23"])
    for k in range(24):
        var(k)
    lbar()
    poll_wait(3, 2, "0", SRD_DBG, cond_tag=False)
    e(f"v_mov_b32 v15, {TAGL}")
    e("ds_write_b32 v15, v3")
    e("ds_write_b32 v15, v2 offset:4")
    e("ds_write_b32 v15, v2 offset:8")
    e(f"v_readfirstlane_b32 s{sTAG}, v3")
    for k in range(24, 44):
        var(k)
    e("s_waitcnt lgkmcnt(0)")
    xw(OPT["n23"])
    lbar()
    for k in range(44, 64):
        var(k)
    e("v_add_f32 v12, v12, v13")
    red8(12)
    e(f"v_mul_f32 v12, {f2u(1.0 / 512):#x}, v12")
    e("v_cvt_pk_bf16_f32 v15, v10, v12")
    e("v_lshlrev_b32 v10, 16, v15")
    e("v_and_b32 v12, v9, v15")
    e(f"v_add_f32 v12, {f2u(1e-5):#x}, v12")
    e("v_cvt_pk_bf16_f32 v12, v12, v12")
    e("v_and_b32 v12, v9, v12")
    e("v_sqrt_f32 v12, v12")
    e("s_nop 0")
    e("v_cvt_pk_bf16_f32 v12, v12, v12")
    e("v_and_b32 v12, v9, v12")
    e("v_rcp_f32 v11, v12")
    e("v_cmp_eq_u32 vcc, 0, v14")
    e("v_lshlrev_b32 v14, 4, v4")
    e("v_mov_b32 v15, 0x40000000")
    e(f"s_lshl_b32 s64, s{sI}, 11")
    e(f"s_add_u32 s64, s64, {ST_OFF}")
    e("v_cndmask_b32 v14, v15, v14, vcc")
    e("v_mov_b32 v16, v10")
    e("v_mov_b32 v17, v11")
    e("v_mov_b32 v18, v3")
    e("v_mov_b32 v19, v3")
    e(f"s_lshl_b32 s65, s{sJ}, 7")
    e("s_add_u32 s65, s64, s65")
    e(f"buffer_store_dwordx4 v[16:19], v14, {srd(SRD_WS)}, s65 offen sc1")
    xw(OPT["n23"])
    stamp(1)
    e("v_lshlrev_b32 v10, 5, v0")

    def stget():
        e(f"buffer_load_dwordx4 v[20:23], v10, {srd(SRD_WS)}, s64 offen sc1")
        e(f"buffer_load_dwordx4 v[24:27], v10, {srd(SRD_WS)}, s64 offen offset:16 sc1")

    for n in range(9, 14):
        lbar()
        xw(OPT["n23"])
    stget()
    lbar()
    e(f"s_mov_b32 s75, {OPT['spin']}")
    lab("STCHK")
    e("s_waitcnt vmcnt(0)")
    e(f"v_cmp_ne_u32 vcc, s{sTAG}, v23")
    e(f"v_cmp_ne_u32 s[76:77], s{sTAG}, v27")
    e("s_nop 1")
    e("s_or_b64 vcc, vcc, s[76:77]")
    e("s_cmp_eq_u64 vcc, 0")
    e("s_cbranch_scc1 STOK")
    stget()
    e("s_sub_u32 s75, s75, 1")
    e("s_cmp_lg_u32 s75, 0")
    e("s_cbranch_scc1 STCHK")
    e("s_waitcnt vmcnt(0)")
    lab("STOK")
    e("v_lshlrev_b32 v10, 4, v0")
    e(f"v_add_u32 v10, {MRP}, v10")
    e(f"v_lshlrev_b32 v12, 3, v0")
    e(f"v_add_u32 v12, {RL}, v12")
    e("v_mov_b32 v22, v24")
    e("v_mov_b32 v23, v25")
    e("v_mov_b32 v24, v21")
    e("v_mul_f32 v26, v20, v21")
    e("v_mul_f32 v27, v22, v23")
    e("v_xor_b32 v26, 0x80000000, v26")
    e("v_xor_b32 v27, 0x80000000, v27")
    e("ds_write_b128 v10, v[20:23]")
    e("ds_write_b64 v12, v[24:25]")
    e("ds_write_b64 v12, v[26:27] offset:512")
    lbar()
    e("s_waitcnt lgkmcnt(0)")
    stamp(2)
    stamp(3)
    lbar()
    l3_tail()


XF = [[64 + 4 * q for q in range(4)], [80 + 4 * q for q in range(4)]]
WF = [[96, 100], [104, 108]]
XA = [112, 113, 114, 115]
WA = 116
vLANE, vPM = 117, 118


def ACC(mat, q):
    return 128 + 32 * q + 16 * mat


def frag_reads(u, st):
    r = []
    for mat in range(2):
        for a in range(2):
            r.append(f"ds_read_b64_tr_b16 {vr(WF[st][mat] + 2 * a, 2)}, v{WA} offset:{u * 8192 + a * 2048 + mat * 1024}")
    for q in range(4):
        r.append(f"ds_read_b128 {vr(XF[st][q], 4)}, v{XA[u]} offset:{q * 4096}")
    return r


CG, CU, MR = 0, 16, 32
vA_CS, vA_MR, vA_TAG = 45, 46, 47


def glu_stat_reads():
    r = [f"ds_read_b64 {vr(MR + 2 * q, 2)}, v{vA_MR} offset:{256 * q}" for q in range(4)]
    r += [f"ds_read_b128 {vr(CG + 4 * a, 4)}, v{vA_CS} offset:{32 * a}" for a in range(4)]
    r += [f"ds_read_b128 {vr(CU + 4 * a, 4)}, v{vA_CS} offset:{512 + 32 * a}" for a in range(4)]
    r += [f"ds_read_b32 v43, v{vA_TAG}"]
    return r


def mainloop(dft):
    sCnt, sDelta, sCur = 64, 65, 66
    tag = "D" if dft else "G"
    for s in frag_reads(0, 0):
        e(s)
    e(f"s_mov_b32 s{sCnt}, 8")
    e(f"s_mov_b32 s{sCur}, {SLOT}")
    e(f"s_mov_b32 s67, {(-2 * SLOT) & 0xffffffff:#x}")

    def step(u, last):
        st = u & 1
        mf = []
        for mat in ((1, 0) if dft else (0, 1)):
            for q in range(4):
                a, b = (XF[st][q], WF[st][mat]) if dft else (WF[st][mat], XF[st][q])
                mf.append(f"v_mfma_f32_32x32x16_bf16 {vr(ACC(mat, q), 16)}, {vr(a, 4)}, {vr(b, 4)}, {vr(ACC(mat, q), 16)}")
        rd = frag_reads((u + 1) & 3, st ^ 1)
        gaps = [[] for _ in range(8)]
        if u == 3 and not last:
            gaps[0] += [f"v_add_u32 v{WA}, s{sDelta}, v{WA}", f"v_add_u32 v{XA[0]}, s{sDelta}, v{XA[0]}"]
            gaps[5] += [f"v_add_u32 v{XA[1]}, s{sDelta}, v{XA[1]}"]
            gaps[6] += [f"v_add_u32 v{XA[2]}, s{sDelta}, v{XA[2]}", f"v_add_u32 v{XA[3]}, s{sDelta}, v{XA[3]}"]
        if PROF and u in (0, 2):
            gaps[0] += ["s_memtime s[70:71]"]
        if PROF and u in (1, 3):
            gaps[5] += [f"s_lshl_b32 s72, s{sCnt}, 1", f"s_sub_u32 m0, {16 if u == 1 else 15}, s72", f"v_writelane_b32 v{vLOOPST}, s70, m0"]
        if u == 2:
            gaps[5] += [f"s_cmp_eq_u32 s{sCur}, {2 * SLOT}", f"s_cselect_b32 s{sDelta}, s67, {SLOT}"]
            gaps[6] += [f"s_add_u32 s{sCur}, s{sCur}, s{sDelta}", f"s_sub_u32 s{sCnt}, s{sCnt}, 1"]
            gaps[7] += [f"s_cmp_eq_u32 s{sCnt}, 0"]
        if u & 1:
            gaps[0] += ["s_barrier"]
        if dft:
            gaps[0] = [f"v_cndmask_b32 v{WF[st][0] + k}, v{WF[st][0] + k}, v{vPM}, s[68:69]" for k in range(2)] + gaps[0]
            gaps[1] += [f"v_cndmask_b32 v{WF[st][0] + k}, v{WF[st][0] + k}, v{vPM}, s[68:69]" for k in range(2, 4)]
        if last:
            extra = dft_stat_reads() if dft else glu_stat_reads()
            for k, x in enumerate(extra):
                gaps[2 + min(k // 3, 4)].append(x)
        else:
            for k in range(4):
                gaps[k + (1 if (u & 1) else 0)] += rd[2 * k:2 * k + 2]
        e("s_waitcnt lgkmcnt(0)")
        for k in range(8):
            e(mf[k])
            for s in gaps[k]:
                e(s)

    L.append(".p2align 3")
    lab(f"MAIN{tag}")
    for u in range(3):
        step(u, False)
    e(f"s_cbranch_scc1 LAST{tag}")
    step(3, False)
    e(f"s_branch MAIN{tag}")
    lab(f"LAST{tag}")
    step(3, True)


def glu_epilogue():
    e(f"v_lshlrev_b32 v44, 4, v{vLANE}")
    e("v_mov_b32 v42, 0")
    e("s_mov_b32 s66, 1.0")
    e("s_mov_b32 s67, 1.0")
    e("s_waitcnt lgkmcnt(0)")
    e(f"v_readfirstlane_b32 s{sTAG}, v43")
    for q in range(4):
        e(f"v_mul_f32 v{MR + 2 * q + 1}, {NLOG2E:#x}, v{MR + 2 * q + 1}")
    L.append(".p2align 3")
    out = 0
    for q in range(4):
        b, p = q & 1, q >> 1
        mr = vr(MR + 2 * q, 2)
        for z in range(2):
            G = ACC(0, q) + 8 * z
            U = ACC(1, q) + 8 * z
            for k in range(4):
                e(f"v_pk_fma_f32 {vr(G + 2 * k, 2)}, {vr(CG + 8 * z + 2 * k, 2)}, {mr}, {vr(G + 2 * k, 2)} op_sel_hi:[1,0,1] neg_lo:[0,1,0] neg_hi:[0,1,0]")
            for k in range(4):
                e(f"v_pk_mul_f32 {vr(G + 2 * k, 2)}, {vr(G + 2 * k, 2)}, {mr} op_sel:[0,1] op_sel_hi:[1,1]")
            for k in range(8):
                e(f"v_exp_f32 v{G + k}, v{G + k}")
            for k in range(4):
                e(f"v_pk_add_f32 {vr(G + 2 * k, 2)}, {vr(G + 2 * k, 2)}, s[66:67]")
            for k in range(8):
                e(f"v_rcp_f32 v{G + k}, v{G + k}")
            for k in range(4):
                e(f"v_pk_fma_f32 {vr(U + 2 * k, 2)}, {vr(CU + 8 * z + 2 * k, 2)}, {mr}, {vr(U + 2 * k, 2)} op_sel_hi:[1,0,1] neg_lo:[0,1,0] neg_hi:[0,1,0]")
            for k in range(4):
                e(f"v_pk_mul_f32 {vr(U + 2 * k, 2)}, {vr(U + 2 * k, 2)}, {vr(G + 2 * k, 2)}")
            o = 64 + 4 * out
            out += 1
            for k in range(4):
                e(f"v_cvt_pk_bf16_f32 v{o + k}, v{U + 2 * k}, v{U + 2 * k + 1}")
            e(f"s_add_u32 s65, s{sOUT}, {((b * 2 + p) * 2 + z) * 56 * 1024 + H_OFF}")
            e(f"buffer_store_dwordx4 {vr(o, 4)}, v44, {srd(SRD_WS)}, s65 offen{'' if OPT.get('hplain') else ' sc1'}")
    stamp(3)
    lab("PUBLISH")
    e(f"v_mov_b32 v40, {CNTL}")
    e("v_mov_b32 v41, 1")
    e("v_mov_b32 v42, 0")
    e(f"v_mov_b32 v43, s{sTAG}")
    e("s_mov_b64 exec, 1")
    e("s_waitcnt vmcnt(0)")
    e("ds_add_rtn_u32 v41, v40, v41")
    e("s_waitcnt lgkmcnt(0)")
    e("v_readfirstlane_b32 s64, v41")
    e("s_cmp_lg_u32 s64, 3")
    e("s_cbranch_scc1 HNOFLAG")
    e(f"buffer_store_dword v43, v42, {srd(SRD_WS)}, s{sFLG} offen{'' if OPT.get('fplain') else ' sc1'}")
    lab("HNOFLAG")
    e("s_mov_b64 exec, -1")
    stamp(4)


def TW(q, cs, z):
    return 16 * q + 8 * cs + 4 * z


def dft_prologue():
    e(f"v_and_b32 v2, 31, v{vLANE}")
    e("v_cvt_f32_u32 v3, v2")
    e(f"v_mul_f32 v3, {f2u(1.0 / 2048):#x}, v3")
    e(f"s_and_b32 s64, s{sWAVE}, 1")
    e(f"s_lshr_b32 s65, s{sWAVE}, 1")
    e("s_lshl_b32 s65, s65, 5")
    e("s_add_u32 s64, s64, s65")
    e(f"s_lshl_b32 s65, s{sI}, 1")
    e("s_add_u32 s64, s64, s65")
    e(f"v_lshrrev_b32 v4, 5, v{vLANE}")
    e("v_lshl_add_u32 v4, v4, 8, s64")
    e("v_cvt_f32_u32 v4, v4")
    e("v_mul_f32 v4, v3, v4")
    e("v_and_b32 v5, 1, v2")
    e("v_mul_u32_u24 v5, 0x8000, v5")
    e("v_lshl_or_b32 v5, v5, 16, v5")
    for jj in range(8):
        c = 64.0 * (8 * (jj >> 2) + (jj & 3))
        e(f"v_fmamk_f32 v{8 + jj}, v3, {f2u(c):#x}, v4")
    for jj in range(8):
        e(f"v_fract_f32 v{8 + jj}, v{8 + jj}")
    for jj in range(8):
        e(f"v_cos_f32 v{16 + jj}, v{8 + jj}")
        e(f"v_sin_f32 v{24 + jj}, v{8 + jj}")
    e("s_nop 0")
    for k in range(4):
        e(f"v_cvt_pk_bf16_f32 v{32 + k}, v{16 + 2 * k}, v{17 + 2 * k}")
        e(f"v_cvt_pk_bf16_f32 v{40 + k}, v{24 + 2 * k}, v{25 + 2 * k}")
    for k in range(4):
        e(f"v_xor_b32 v{36 + k}, v5, v{32 + k}")
        e(f"v_xor_b32 v{44 + k}, v5, v{40 + k}")
    e(f"s_lshl_b32 s64, s{sWAVE}, 12")
    e(f"s_add_u32 s64, s64, {MISC}")
    e(f"v_lshl_add_u32 v6, v{vLANE}, 4, s64")
    for k in range(4):
        e(f"ds_write_b128 v6, {vr(32 + 4 * k, 4)} offset:{1024 * k}")
    e(f"s_cmp_eq_u32 s{sJ}, 14")
    e("s_cselect_b32 s68, 1, 0")
    e(f"s_cmp_eq_u32 s{sWAVE}, 0")
    e("s_cselect_b32 s68, s68, 0")
    e("s_mov_b32 s69, s68")
    e(f"v_mov_b32 v{vPM}, 0xbf803f80")
    e(f"v_lshlrev_b32 v119, 4, v{vLANE}")
    e(f"v_add_u32 v119, {MISC}, v119")
    e("s_waitcnt lgkmcnt(0)")


R0, N0 = 64, 80
vD_CS, vD_R, vD_TAG = 122, 123, 124


def dft_stat_reads():
    return [f"ds_read_b32 v118, v{vD_CS}", f"ds_read_b32 v119, v{vD_CS} offset:512", f"ds_read_b32 v{vD_TAG}, v{vD_TAG}"] + \
           [f"ds_read_b128 {vr(R0 + 4 * a, 4)}, v{vD_R} offset:{32 * a}" for a in range(4)]


def dft_epilogue():
    for a in range(4):
        e(f"ds_read_b128 {vr(N0 + 4 * a, 4)}, v{vD_R} offset:{512 + 32 * a}")
    e(f"v_mov_b32 v115, v{vD_R}")

    def rd(q):
        for a in range(4):
            e(f"ds_read_b128 {vr(R0 + 4 * a, 4)}, v115 offset:{128 * q + 32 * a}")
            e(f"ds_read_b128 {vr(N0 + 4 * a, 4)}, v115 offset:{512 + 128 * q + 32 * a}")

    e("s_waitcnt lgkmcnt(0)")
    e(f"v_readfirstlane_b32 s{sTAG}, v{vD_TAG}")
    e("v_cndmask_b32 v118, v118, 0, s[68:69]")

    def TS(q):
        return (120 if q & 1 else 96), (104 if q == 0 else TW(q - 1, 0, 0))

    def valu(q):
        r_ = []
        for mat, T, cs in ((0, TS(q)[0], 118), (1, TS(q)[1], 119)):
            A = ACC(mat, q)
            if q == 0:
                for r in range(0, 16, 2):
                    r_.append(f"v_pk_mul_f32 {vr(A + r, 2)}, {vr(A + r, 2)}, {vr(R0 + r, 2)}")
            else:
                for r in range(16):
                    r_.append(f"v_mul_f32 v{A + r}, v{A + r}, v{R0 + r}")
            if mat and q < 3:
                r_[-1] = [r_[-1]] + [f"ds_read_b128 {vr(R0 + 4 * a, 4)}, v115 offset:{128 * (q + 1) + 32 * a}" for a in range(4)]
            if q == 0:
                sel = "op_sel:[0,1,0] op_sel_hi:[1,1,1]" if mat else "op_sel_hi:[1,0,1]"
                for r in range(0, 16, 2):
                    r_.append(f"v_pk_fma_f32 {vr(A + r, 2)}, {vr(N0 + r, 2)}, v[118:119], {vr(A + r, 2)} {sel}")
            else:
                for r in range(16):
                    r_.append(f"v_fmac_f32 v{A + r}, v{N0 + r}, v{cs}")
            if mat and q < 3:
                r_[-1] = [r_[-1]] + [f"ds_read_b128 {vr(N0 + 4 * a, 4)}, v115 offset:{512 + 128 * (q + 1) + 32 * a}" for a in range(4)]
            for k in range(8):
                r_.append(f"v_cvt_pk_bf16_f32 v{T + k}, v{A + 2 * k}, v{A + 2 * k + 1}")
        return r_

    def mfmas(q):
        ta, tb = TS(q)
        zr, zi = ACC(0, q), ACC(1, q)
        seq = [(zr, 1, 0, tb), (zi, 0, 0, tb), (zr, 1, 1, tb + 4), (zi, 0, 1, tb + 4),
               (zr, 0, 0, ta), (zr, 0, 1, ta + 4), (zi, 1, 0, ta), (zi, 1, 1, ta + 4)]
        return [f"v_mfma_f32_32x32x16_bf16 {vr(d, 16)}, {vr(TW(q, cs, z), 4)}, {vr(b, 4)}, {'0' if k < 2 else vr(d, 16)}"
                for k, (d, cs, z, b) in enumerate(seq)]

    for q in range(5):
        v_ = valu(q) if q < 4 else []
        m_ = mfmas(q - 1) if q else []
        if 0 < q < 4:
            e("s_waitcnt lgkmcnt(0)")
        if q:
            e("s_nop 1")
        per = len(v_) // 8
        for k in range(8):
            if m_:
                e(m_[k])
                if k in (3, 4):
                    for x in range(4):
                        rg = TW(q - 1, 1, k - 3) + x
                        e(f"v_xor_b32 v{rg}, 0x80008000, v{rg}")
            for x in v_[k * per:(k + 1) * per]:
                for y in (x if isinstance(x, list) else [x]):
                    e(y)
    e(f"v_and_b32 v112, 31, v{vLANE}")
    e(f"v_lshrrev_b32 v114, 5, v{vLANE}")
    e("v_lshlrev_b32 v112, 4, v112")
    e("v_lshl_add_u32 v112, v114, 18, v112")
    e("s_nop 7")
    for r in range(16):
        for q in range(4):
            e(f"v_cvt_pk_bf16_f32 v{4 * r + q}, v{ACC(0, q) + r}, v{ACC(1, q) + r}")
        e(f"s_add_u32 s65, s{sOUT}, {(8 * (r >> 2) + (r & 3)) * 65536}")
        e(f"buffer_store_dwordx4 {vr(4 * r, 4)}, v112, {srd(SRD_WS)}, s65 offen sc1")
    stamp(3)
    e(f"v_mov_b32 v64, {CNTL}")
    e("v_mov_b32 v65, 1")
    e("s_mov_b64 exec, 1")
    e("ds_add_u32 v64, v65")
    e("s_mov_b64 exec, -1")
    stamp(4)
    e("s_branch PHASE2")


sXO, sZ, sFZ, sPOLL, sRO, sFLG, sOUT, sC0, sP, sKH = 56, 57, 58, 59, 60, 61, 62, 63, 73, 74


def phase2(dft):
    OWN, OTH, Y, EF, HR, ET = 128, 144, 160, 32, 176, 248
    XR, vR = 80, 88
    W2 = [[96, 100], [104, 108], [240, 244]]
    WD = [112, 113]
    vH, vXO, vZ, vONE = 114, 115, 116, 118
    vEA, vEB, vES, vZS, vTG, vZERO = 122, 123, 124, 125, 126, 127
    ZF = 0
    tg = "D" if dft else "G"
    assert D <= 16
    vm = []

    def issue(tag, txt):
        vm.append(tag)
        e(txt)

    def younger(tag):
        return len(vm) - 1 - vm.index(tag)

    lab("PHASE2")
    stamp(5)
    e(f"v_and_b32 v89, 31, v{vLANE}")
    e(f"v_lshrrev_b32 v90, 5, v{vLANE}")
    e(f"v_lshlrev_b32 v{vXO}, 16, v89")
    e(f"v_lshl_add_u32 v{vXO}, v90, 5, v{vXO}")
    e(f"buffer_load_dwordx4 {vr(XR, 4)}, v{vXO}, {srd(SRD_X)}, s{sXO} offen")
    e(f"buffer_load_dwordx4 {vr(XR + 4, 4)}, v{vXO}, {srd(SRD_X)}, s{sXO} offen offset:16")
    e(f"v_bfe_u32 v{ET}, v{vLANE}, 2, 2")
    e(f"v_lshl_add_u32 v92, v90, 2, v{ET}")
    e(f"s_lshl_b32 s68, s{sKH}, 11")
    e("v_lshl_add_u32 v92, v92, 7, s68")
    e(f"v_and_b32 v93, 1, v{vLANE}")
    e("v_lshlrev_b32 v93, 2, v93")
    e(f"v_bfe_u32 v{ET + 1}, v{vLANE}, 4, 1")
    e(f"v_lshl_add_u32 v93, v{ET + 1}, 1, v93")
    e(f"v_bfe_u32 v{ET + 1}, v{vLANE}, 1, 1")
    e(f"v_add_u32 v93, v93, v{ET + 1}")
    e("v_lshl_add_u32 v92, v93, 3, v92")
    e(f"v_lshrrev_b32 v{ET}, 1, v{ET}")
    e(f"v_xor_b32 v{ET}, s{sKH}, v{ET}")
    e(f"v_lshl_add_u32 v{WD[0]}, v{ET}, 6, v92")
    e(f"v_xor_b32 v{WD[1]}, 64, v{WD[0]}")
    e(f"v_lshlrev_b32 v{vH}, 4, v{vLANE}")
    e("v_lshlrev_b32 v93, 4, v89")
    if dft:
        e(f"v_lshl_add_u32 v{vZS}, v90, 18, v93")
        e(f"v_mov_b32 v{vTG}, s{sTAG}")
        e(f"v_mov_b32 v{vZERO}, 0")
        e(f"v_mov_b32 v{vONE}, 1")
        e(f"v_mov_b32 v94, {TAGL}")
    e("s_barrier")
    stamp(6)

    def hload(v):
        if v and v & 7 == 0:
            e(f"v_add_u32 v{vH}, 8192, v{vH}")
        issue(("h", v), f"buffer_load_dwordx4 {vr(HR + 4 * (v % D), 4)}, v{vH}, {srd(SRD_WS)}, s{48 + (v & 7)} offen{'' if OPT.get('hldp') else ' sc1'}")

    base = [0]

    def wreads(v):
        a = wslot(v) * 4096
        r = []
        if (a & ~0xFFFF) != base[0]:
            d = (a & ~0xFFFF) - base[0]
            base[0] = a & ~0xFFFF
            r += [f"v_add_u32 v{WD[c]}, {d & 0xffffffff:#x}, v{WD[c]}" for c in range(2)]
        return r + [f"ds_read_b64_tr_b16 {vr(W2[v % 3][c] + 2 * k, 2)}, v{WD[c]} offset:{(a & 0xFFFF) + 1024 * k}" for c in range(2) for k in range(2)]

    nh = [0]

    def hmore(lim, cnt):
        while cnt and nh[0] < min(56, lim):
            hload(nh[0])
            nh[0] += 1
            cnt -= 1

    for v in range(OPT["D0"]):
        hmore(56, 1)
        if v == 1:
            for x in wreads(0) + wreads(1):
                e(x)
    issue("r", f"buffer_load_dword v{vR}, v93, {srd(SRD_WS)}, s{sRO} offen offset:4 sc1")

    fill = [f"v_and_b32 v91, 3, v{vLANE}", f"v_bfe_u32 v92, v{vLANE}, 3, 2", "v_lshl_add_u32 v91, v92, 2, v91",
            f"v_bfe_u32 v92, v{vLANE}, 2, 1", "v_lshl_add_u32 v91, v92, 4, v91",
            f"s_lshl_b32 s68, s{sCB}, 6", f"s_lshl_b32 s69, s{sKH}, 5", "s_add_u32 s68, s68, s69",
            "v_add_u32 v91, s68, v91", "v_sub_u32 v92, 512, v91", "v_and_b32 v92, 255, v92",
            [f"s_cmp_ge_u32 s{sCB}, 4", "s_cselect_b64 s[70:71], -1, 0"],
            "v_cmp_eq_u32 vcc, 0, v91", "v_cndmask_b32 v92, v91, v92, s[70:71]", f"v_lshlrev_b32 v{vZ}, 4, v92",
            f"v_lshl_add_u32 v{vZ}, v90, 12, v{vZ}", "v_mov_b32 v92, 0x40000000", f"v_cndmask_b32 v{vZ}, v{vZ}, v92, vcc",
            f"v_lshl_add_u32 v91, v89, 1, s{sP}", f"v_sub_u32 v92, s{sC0}, v91", "v_cndmask_b32 v91, v91, v92, s[70:71]",
            f"v_and_b32 v{vES}, 1, v91", f"v_mul_u32_u24 v{vES}, 0x8000, v{vES}", f"v_lshl_or_b32 v{vES}, v{vES}, 16, v{vES}",
            "v_cvt_f32_u32 v91, v91", f"v_mul_f32 v{vEA}, {f2u(1.0 / 64):#x}, v91",
            "v_lshlrev_b32 v92, 1, v90", "v_cvt_f32_u32 v92, v92", f"v_mul_f32 v{vEB}, v{vEA}, v92"]
    for sg in range(8):
        for b in range(2):
            fill.append(f"v_fmamk_f32 v{ET + b}, v{vEA}, {f2u(float(4 * sg + b)):#x}, v{vEB}")
        for b in range(2):
            fill.append(f"v_fract_f32 v{ET + b}, v{ET + b}")
        for b in range(2):
            fill.append(f"v_cos_f32 v{ET + 2 + b}, v{ET + b}")
            fill.append(f"v_sin_f32 v{ET + 4 + b}, v{ET + b}")
        fill.append([f"v_cvt_pk_bf16_f32 v{EF + 4 * sg}, v{ET + 2}, v{ET + 4}",
                     f"v_cvt_pk_bf16_f32 v{EF + 4 * sg + 1}, v{ET + 3}, v{ET + 5}"])
        for b in range(2):
            fill.append(f"v_xor_b32 v{EF + 4 * sg + 2 + b}, v{vES}, v{EF + 4 * sg + b}")
    VZL = OPT.get("vzl", 38)
    VP1, VP2 = 55 - NRES, NRES - 2
    zflag_done = not dft
    for v in range(56):
        e(f"s_waitcnt vmcnt({younger(('h', v))}) lgkmcnt({4 if v < 55 else 0})")
        h = vr(HR + 4 * (v % D), 4)
        st = v % 3
        c0 = "0" if v == 0 else vr(OWN, 16)
        c1 = "0" if v == 0 else vr(OTH, 16)
        e(f"v_mfma_f32_32x32x16_bf16 {vr(OWN, 16)}, {vr(W2[st][0], 4)}, {h}, {c0}")
        if v in P2BAR:
            e(f"s_barrier  ; {P2BAR[v]}")
        if v + 2 < 56:
            for x in wreads(v + 2):
                e(x)
        e(f"v_mfma_f32_32x32x16_bf16 {vr(OTH, 16)}, {vr(W2[st][1], 4)}, {h}, {c1}")
        if PROF and v % 4 == 0:
            e("s_memtime s[78:79]")
        if PROF and v % 4 == 2:
            e(f"v_writelane_b32 v{vLOOPST}, s78, {16 + v // 4}")
        if v == 1:
            e(f"s_cmp_eq_u32 s{sDFT}, 0")
            e("s_cbranch_scc1 NOZF")
            e(f"v_mov_b32 v94, {TAGL}")
            e("v_mov_b32 v95, 1")
            e("s_mov_b64 exec, 1")
            e("ds_add_rtn_u32 v95, v94, v95 offset:8")
            e(f"v_mov_b32 v{vTG}, s{sTAG}")
            e(f"v_mov_b32 v{vZERO}, 0")
            e("s_waitcnt lgkmcnt(0)")
            e("v_readfirstlane_b32 s64, v95")
            e("s_cmp_lg_u32 s64, 3")
            e("s_cbranch_scc1 NOZF1")
            e(f"buffer_store_dword v{vTG}, v{vZERO}, {srd(SRD_WS)}, s{sFLG} offen sc1")
            lab("NOZF1")
            e("s_mov_b64 exec, -1")
            lab("NOZF")
        if not zflag_done and ("zs", 15) in vm and vm.index(("h", v)) > vm.index(("zs", 15)):
            e("s_mov_b64 exec, 1")
            e(f"ds_add_rtn_u32 v95, v94, v{vONE} offset:8")
            e("s_waitcnt lgkmcnt(0)")
            e("v_readfirstlane_b32 s64, v95")
            e(f"s_mov_b32 s65, s{sFLG}")
            e("s_cmp_lg_u32 s64, 3")
            e("s_cselect_b32 s65, 0x40000000, s65")
            issue("zflag", f"buffer_store_dword v{vTG}, v{vZERO}, {srd(SRD_WS)}, s65 offen sc1")
            e("s_mov_b64 exec, -1")
            zflag_done = True
        if dft and v < 16:
            e(f"s_add_u32 s65, s{sOUT}, {(8 * (v >> 2) + (v & 3)) * 65536}")
            issue(("zs", v), f"buffer_store_dwordx4 {vr(4 * v, 4)}, v{vZS}, {srd(SRD_WS)}, s65 offen sc1")
        if v in (VZL, VZL + 1):
            for sg in range(4 * (v - VZL), 4 * (v - VZL) + 4):
                issue(("z", sg), f"buffer_load_dwordx4 {vr(ZF + 4 * sg, 4)}, v{vZ}, {srd(SRD_WS)}, s{sZ} offen sc1")
                e(f"s_add_u32 s{sZ}, s{sZ}, 8192")
        hmore(v + 1 + D, 2)
        for _ in range(4):
            if fill and True:
                x = fill.pop(0)
                for y in (x if isinstance(x, list) else [x]):
                    e(y)
    assert not fill and zflag_done
    stamp(7)

    def ymf(sg):
        e(f"v_mfma_f32_32x32x16_bf16 {vr(Y, 16)}, {vr(ZF + 4 * sg, 4)}, {vr(EF + 4 * sg, 4)}, {'0' if sg == 0 else vr(Y, 16)}")

    XU, PT, TT = 176, 192, 208
    e("s_waitcnt vmcnt(0)")
    ymf(0)
    e(f"s_lshl_b32 s68, s{sWAVE}, 12")
    e(f"s_add_u32 s68, s68, {RED}")
    e(f"v_lshl_add_u32 v91, v{vLANE}, 4, s68")
    e(f"v_xor_b32 v92, 8192, v91")
    e("s_mov_b32 s70, 1.0")
    e("s_mov_b32 s71, 1.0")
    ymf(1)
    e(f"v_mul_f32 v{vR + 1}, {NLOG2E:#x}, v{vR}")
    e("v_mov_b32 v93, 0xffff0000")
    e(f"v_lshlrev_b32 v{XU}, 16, v{XR}")
    e(f"v_and_b32 v{XU + 1}, v93, v{XR}")
    ymf(2)
    for a in range(4):
        e(f"ds_write_b128 v91, {vr(OTH + 4 * a, 4)} offset:{1024 * a}")
        if a & 1:
            ymf(3 + (a >> 1))
    for k in range(1, 8):
        e(f"v_lshlrev_b32 v{XU + 2 * k}, 16, v{XR + k}")
        e(f"v_and_b32 v{XU + 2 * k + 1}, v93, v{XR + k}")
        if k in (2, 4):
            ymf(5 + (k >> 2))
    e("s_waitcnt lgkmcnt(0)")
    e("s_barrier")
    for a in range(4):
        e(f"ds_read_b128 {vr(PT + 4 * a, 4)}, v92 offset:{1024 * a}")
    ymf(7)
    e("s_waitcnt lgkmcnt(0)")
    rr = vr(vR, 2)
    L.append(".p2align 3")
    for k in range(8):
        e(f"v_pk_add_f32 {vr(OWN + 2 * k, 2)}, {vr(OWN + 2 * k, 2)}, {vr(PT + 2 * k, 2)}")
    for k in range(8):
        e(f"v_pk_mul_f32 {vr(TT + 2 * k, 2)}, {vr(OWN + 2 * k, 2)}, {rr} op_sel:[0,1] op_sel_hi:[1,1]")
    for k in range(16):
        e(f"v_exp_f32 v{TT + k}, v{TT + k}")
    for k in range(8):
        e(f"v_pk_add_f32 {vr(TT + 2 * k, 2)}, {vr(TT + 2 * k, 2)}, s[70:71]")
    for k in range(16):
        e(f"v_rcp_f32 v{TT + k}, v{TT + k}")
    for k in range(8):
        e(f"v_pk_mul_f32 {vr(OWN + 2 * k, 2)}, {vr(OWN + 2 * k, 2)}, {rr} op_sel_hi:[1,0]")
    for k in range(8):
        e(f"v_pk_mul_f32 {vr(OWN + 2 * k, 2)}, {vr(OWN + 2 * k, 2)}, {vr(TT + 2 * k, 2)}")
    for k in range(8):
        e(f"v_pk_fma_f32 {vr(OWN + 2 * k, 2)}, {vr(OWN + 2 * k, 2)}, {vr(Y + 2 * k, 2)}, {vr(XU + 2 * k, 2)}")
    for k in range(8):
        e(f"v_cvt_pk_bf16_f32 v{TT + k}, v{OWN + 2 * k}, v{OWN + 2 * k + 1}")
    of = " sc1" if OPT.get("osc1") else ""
    e(f"buffer_store_dwordx4 {vr(TT, 4)}, v{vXO}, {srd(SRD_OUT)}, s{sXO} offen{of}")
    e(f"buffer_store_dwordx4 {vr(TT + 4, 4)}, v{vXO}, {srd(SRD_OUT)}, s{sXO} offen offset:16{of}")
    stamp_flush(8, 64, vLOOPST)
    if OPT.get("rabs"):
        lab(f"DLY{tg}")
        e("s_memrealtime s[82:83]")
        e("s_waitcnt lgkmcnt(0)")
        e("s_sub_u32 s82, s82, s98")
        e(f"s_cmp_lt_u32 s82, {OPT['rabs']}")
        e(f"s_cbranch_scc1 DLY{tg}")
    e("s_endpgm")


def cwave():
    lab("CWAVE")
    cm("================ C waves: matrix work ================")
    e("s_setprio 2")
    e(f"v_mov_b32 v{vLANE}, v0")
    e("v_and_b32 v2, 31, v0")
    e("v_lshrrev_b32 v3, 5, v0")
    e("v_bfe_u32 v4, v0, 1, 3")
    e("v_lshlrev_b32 v5, 7, v2")
    e(f"v_add_u32 v5, {SLOT + 32768}, v5")
    for u in range(4):
        e(f"v_add_u32 v6, {2 * u}, v3")
        e("v_xor_b32 v6, v6, v4")
        e(f"v_lshl_add_u32 v{XA[u]}, v6, 4, v5")
    e("v_bfe_u32 v4, v0, 2, 2")
    e(f"v_lshlrev_b32 v{WA}, 12, v3")
    e(f"v_lshl_add_u32 v{WA}, v4, 8, v{WA}")
    e(f"v_xor_b32 v4, s{sWAVE}, v4")
    e(f"v_lshl_add_u32 v{WA}, v4, 6, v{WA}")
    e("v_bfe_u32 v4, v0, 4, 1")
    e(f"v_lshl_add_u32 v{WA}, v4, 5, v{WA}")
    e("v_and_b32 v4, 3, v0")
    e(f"v_lshl_add_u32 v{WA}, v4, 3, v{WA}")
    e(f"v_add_u32 v{WA}, {SLOT}, v{WA}")
    e(f"s_lshl_b32 s64, s{sWAVE}, 7")
    e(f"s_add_u32 s64, s64, {CSL}")
    e(f"v_lshl_add_u32 v{vA_CS}, v3, 4, s64")
    e(f"v_lshlrev_b32 v{vA_MR}, 3, v2")
    e(f"v_add_u32 v{vA_MR}, {MRP}, v{vA_MR}")
    e(f"v_mov_b32 v{vA_TAG}, {TAGL}")
    e(f"v_lshl_add_u32 v{vD_CS}, v2, 2, s64")
    e(f"v_lshlrev_b32 v{vD_R}, 4, v3")
    e(f"v_add_u32 v{vD_R}, {RL}, v{vD_R}")
    e(f"v_mov_b32 v{vD_TAG}, {TAGL}")
    for r in range(128, 256):
        e(f"v_mov_b32 v{r}, 0")
    srd_finish()
    e(f"s_and_b32 s{sP}, s{sWAVE}, 1")
    e(f"s_lshr_b32 s{sKH}, s{sWAVE}, 1")
    e(f"s_lshl_b32 s68, s{sP}, 5")
    e(f"s_add_u32 s68, s68, s{sT1}")
    e(f"s_lshl_b32 s{sXO}, s68, 10")
    e(f"s_lshl_b32 s68, s{sCB}, 7")
    e(f"s_add_u32 s{sXO}, s{sXO}, s68")
    e(f"s_lshl_b32 s68, s{sKH}, 6")
    e(f"s_add_u32 s{sXO}, s{sXO}, s68")
    e(f"s_sub_u32 s69, 32, s{sT1}")
    e("s_and_b32 s69, s69, 31")
    e(f"s_cmp_ge_u32 s{sCB}, 4")
    e(f"s_cselect_b32 s69, s69, s{sT1}")
    e(f"s_lshl_b32 s{sZ}, s69, 16")
    e(f"s_add_u32 s{sZ}, s{sZ}, {Z_OFF}")
    e(f"s_mov_b32 s{sFZ}, {FLZ}")
    e(f"s_cmp_eq_u32 s{sT1}, 0")
    e(f"s_cselect_b32 s{sC0}, 64, 63")
    e(f"s_lshr_b32 s68, s{sT1}, 1")
    e("s_lshl_b32 s68, s68, 11")
    e(f"s_add_u32 s{sPOLL}, s68, {FLH}")
    e(f"s_and_b32 s70, s{sT1}, 1")
    e(f"s_lshl_b32 s71, s{sP}, 1")
    e("s_add_u32 s70, s70, s71")
    e("s_lshl_b32 s70, s70, 9")
    e("s_add_u32 s68, s68, s70")
    e(f"s_add_u32 s{sRO}, s68, {ST_OFF}")
    e(f"s_lshl_b32 s68, s{sT1}, 2")
    e("s_add_u32 s68, s68, s71")
    e(f"s_add_u32 s68, s68, s{sKH}")
    e(f"s_mul_i32 s68, s68, {56 * 1024}")
    rot_offsets(10, "s68")
    e(f"s_lshl_b32 s64, s{sI}, 4")
    e(f"s_add_u32 s64, s64, s{sJ}")
    e("s_lshl_b32 s64, s64, 7")
    e(f"s_add_u32 s{sFLG}, s64, {FLH}")
    e(f"s_cmp_eq_u32 s{sDFT}, 1")
    e("s_cbranch_scc1 CDFT")
    e(f"s_lshl_b32 s64, s{sJ}, 2")
    e(f"s_add_u32 s64, s64, s{sWAVE}")
    e("s_lshl_b32 s64, s64, 10")
    e(f"s_mul_i32 s65, s{sI}, {2 * 4 * 56 * 1024}")
    e(f"s_add_u32 s{sOUT}, s64, s65")
    stamp(1)
    e("s_barrier")
    mainloop(False)
    stamp(2)
    glu_epilogue()
    phase2(False)
    lab("CDFT")
    e(f"s_lshl_b32 s64, s{sI}, 12")
    e(f"s_and_b32 s65, s{sJ}, 1")
    e("s_lshl_b32 s66, s65, 11")
    e("s_add_u32 s64, s64, s66")
    e(f"s_lshl_b32 s66, s{sWAVE}, 9")
    e("s_add_u32 s64, s64, s66")
    e(f"s_add_u32 s{sOUT}, s64, {Z_OFF}")
    dft_prologue()
    stamp(1)
    e("s_barrier")
    for k in range(16):
        e(f"ds_read_b128 {vr(4 * k, 4)}, v119 offset:{1024 * k}")
    mainloop(True)
    stamp(2)
    dft_epilogue()


hdr = open("cdna_kernels/" + NAME + ".s.ref").read().split("\n")
head = [l for l in hdr if l.startswith(";") and "@launch" not in l and "Override launch" not in l and "grid=ceil" not in l]
out = head + ["; @launch grid=(256,1,1) block=(512,1,1) lds=163840",
              '.amdgcn_target "amdgcn-amd-amdhsa--gfx950"', ".text", f".globl {K}", ".p2align 8", f".type {K},@function", f"{K}:"]
prologue()
l01wave()
l2wave()
l3wave()
cwave()
lab("END")
e("s_endpgm")
out += L
out += ['.section .rodata,"a"', ".p2align 6", f".amdhsa_kernel {K}", "  .amdhsa_next_free_vgpr 256", "  .amdhsa_next_free_sgpr 102",
        "  .amdhsa_accum_offset 256", "  .amdhsa_group_segment_fixed_size 0", "  .amdhsa_kernarg_size 96",
        "  .amdhsa_user_sgpr_count 2", "  .amdhsa_user_sgpr_kernarg_segment_ptr 1", "  .amdhsa_system_sgpr_workgroup_id_x 1",
        ".end_amdhsa_kernel", ""]
open(sys.argv[1], "w").write("\n".join(out))
```

```python
import struct
import sys

NAME = "recurrent_scan__spectral_fnet__glu_gated_glu__prompt"
OPT = dict(prof=0, map48=0, D=12, D0=6, pre=3, preb=0, th=4, trk=8, slp=6, spin=200000,
           nx=4, sg0=99, sgn=3, dw=0, dw0=1, vz0=44, zdef=0, zs0=0, spoll=0, xlate=2, l0poll=1, lprio=3, xrot=0, ct=1, al=1)
for a in sys.argv[2:]:
    k, v = a.split("=")
    OPT[k] = int(v)
LITE = OPT["prof"] == 3
PROF = 0 if LITE else OPT["prof"]
K = NAME + "_kernel"
D = OPT["D"]

H_OFF, Z_OFF, ST_OFF, CS_OFF = 0, 0x800000, 0xA00000, 0xA10000
FLH, FLZ, PROF_OFF, WS_SIZE = 0xA50000, 0xA58000, 0xA60000, 0xB00000
SLOT = 49152
MISC = 147456
CSL, MRP, RL, NMRL, TAGL, CNTL = MISC, MISC + 1024, MISC + 2048, MISC + 2560, MISC + 3072, MISC + 3076
RED = 20 * 4096
ZL = 24 * 4096
NRES = 39
NST = 56 - NRES
NLOG2E = 0xBFB8AA3B
OOB = 0x40000000


def wslot(v):
    return v if v < 36 else v + 1 if v < NRES else v - NRES


def f2u(x):
    return struct.unpack("<I", struct.pack("<f", x))[0]


SEC = {}
CUR = [None]


def section(n):
    CUR[0] = SEC.setdefault(n, [])


def e(s):
    CUR[0].append("    " + s)


def es(lst):
    for x in lst:
        for y in (x if isinstance(x, list) else [x]):
            e(y)


def lab(s):
    CUR[0].append(s + ":")


def raw(s):
    CUR[0].append(s)


def cm(s):
    CUR[0].append("    ; " + s)


def vr(a, n):
    return f"v[{a}:{a + n - 1}]"


def srd(n):
    return f"s[{n}:{n + 3}]"


class Q:
    def __init__(self):
        self.l = []

    def add(self, tag, txt=None):
        self.l.append(tag)
        if txt:
            e(txt)

    def younger(self, tag):
        return len(self.l) - 1 - self.l.index(tag)


SRD_X, SRD_W0, SRD_W1, SRD_WD, SRD_WS, SRD_OUT, SRD_DBG, SRD_WM = 4, 8, 12, 16, 20, 24, 28, 32
sWAVE, sI, sJ, sT1, sCB, sRS, sCOL, sDFT, sTAG, sIDX = 36, 37, 38, 39, 40, 41, 42, 43, 44, 45
sSTAMP = 80
vLOOPST, vLST, vLANE = 121, 118, 117
uid = [0]
QUIET = [True]


def stamp(i):
    if PROF:
        e(f"{'s_memrealtime' if PROF == 2 else 's_memtime'} s[{sSTAMP + 2 * i}:{sSTAMP + 2 * i + 1}]")


def stamp_flush(n, vt, cw):
    if not (PROF or (LITE and cw)):
        return
    e("s_waitcnt lgkmcnt(0)")
    e("s_lshl_b32 s78, s2, 3")
    e(f"s_add_u32 s78, s78, s{sWAVE}")
    e("s_lshl_b32 s78, s78, 8")
    e(f"s_add_u32 s78, s78, {PROF_OFF}")
    e(f"v_mov_b32 v{vt + 8}, 0")
    if PROF:
        for i in range(8):
            e(f"v_mov_b32 v{vt + i}, s{sSTAMP + 2 * i}" if i < n else f"v_mov_b32 v{vt + i}, 0")
        e(f"buffer_store_dwordx4 {vr(vt, 4)}, v{vt + 8}, {srd(SRD_WS)}, s78 offen")
        e(f"buffer_store_dwordx4 {vr(vt + 4, 4)}, v{vt + 8}, {srd(SRD_WS)}, s78 offen offset:16")
        if cw:
            e(f"v_lshlrev_b32 v{vt + 9}, 2, v{vLANE}")
            e(f"v_min_u32 v{vt + 9}, 124, v{vt + 9}")
            e(f"buffer_store_dword v{vLOOPST}, v{vt + 9}, {srd(SRD_WS)}, s78 offen offset:64")
    e("s_memrealtime s[76:77]")
    e("s_waitcnt lgkmcnt(0)")
    e(f"v_mov_b32 v{vt + 10}, s98")
    e(f"v_mov_b32 v{vt + 11}, s76")
    e(f"buffer_store_dwordx2 {vr(vt + 10, 2)}, v{vt + 8}, {srd(SRD_WS)}, s78 offen offset:32")


def bar(name=""):
    e("s_barrier" + (f"  ; {name}" if name else ""))


def poll_issue(vdst, vaddr, ssoff, srdn):
    e(f"buffer_load_dword v{vdst}, v{vaddr}, {srd(srdn)}, {ssoff} offen sc1")


def poll_wait(vdst, vaddr, ssoff, srdn, cond_tag=True, first_wait=0):
    uid[0] += 1
    k = uid[0]
    e(f"s_mov_b32 s75, {OPT['spin']}")
    e(f"s_waitcnt vmcnt({first_wait})")
    lab(f"POLL{k}")
    e(f"v_cmp_ne_u32 vcc, s{sTAG}, v{vdst}" if cond_tag else f"v_cmp_eq_u32 vcc, 0, v{vdst}")
    e("s_nop 1")
    e("s_cmp_eq_u64 vcc, 0")
    e(f"s_cbranch_scc1 POLLD{k}")
    if OPT["slp"]:
        e(f"s_sleep {OPT['slp']}")
    poll_issue(vdst, vaddr, ssoff, srdn)
    e("s_sub_u32 s75, s75, 1")
    e("s_cmp_lg_u32 s75, 0")
    e("s_waitcnt vmcnt(0)")
    e(f"s_cbranch_scc1 POLL{k}")
    lab(f"POLLD{k}")


def spoll(ssoff, npairs, nloads=1):
    uid[0] += 1
    k = uid[0]
    e(f"s_mov_b32 s75, {OPT['spin']}")
    e(f"s_mov_b32 s46, s{sTAG}")
    e(f"s_mov_b32 s47, s{sTAG}")
    lab(f"SP{k}")
    for l in range(nloads):
        e(f"s_buffer_load_dwordx16 s[48:63], {srd(SRD_WS)}, {ssoff} offset:{64 * l} glc")
        e("s_waitcnt lgkmcnt(0)")
        for p in range(npairs):
            e(f"s_xor_b64 s[{48 + 2 * p}:{49 + 2 * p}], s[{48 + 2 * p}:{49 + 2 * p}], s[46:47]")
        for p in range(npairs):
            if l == 0 and p == 0:
                e("s_mov_b64 s[76:77], s[48:49]")
            else:
                e(f"s_or_b64 s[76:77], s[76:77], s[{48 + 2 * p}:{49 + 2 * p}]")
    e(f"s_cbranch_scc0 SPD{k}")
    if OPT["slp"]:
        e(f"s_sleep {OPT['slp']}")
    e("s_sub_u32 s75, s75, 1")
    e("s_cmp_lg_u32 s75, 0")
    e(f"s_cbranch_scc1 SP{k}")
    lab(f"SPD{k}")


def wait_c_done():
    uid[0] += 1
    k = uid[0]
    e(f"v_mov_b32 v7, {CNTL}")
    e(f"s_mov_b32 s75, {OPT['spin']}")
    lab(f"CW{k}")
    e("ds_read_b32 v8, v7")
    e("s_waitcnt lgkmcnt(0)")
    e("v_readfirstlane_b32 s76, v8")
    e("s_sub_u32 s75, s75, 1")
    e("s_cmp_eq_u32 s75, 0")
    e(f"s_cbranch_scc1 CWD{k}")
    e("s_sleep 1")
    e("s_cmp_lt_u32 s76, 4")
    e(f"s_cbranch_scc1 CW{k}")
    lab(f"CWD{k}")


def ids1():
    if OPT["map48"]:
        e("s_and_b32 s64, s2, 3")
        e("s_lshl_b32 s64, s64, 2")
        e(f"s_and_b32 s65, s{sIDX}, 3")
        e(f"s_add_u32 s{sI}, s64, s65")
        e("s_bfe_u32 s64, s2, 0x10002")
        e(f"s_lshr_b32 s67, s{sIDX}, 2")
        e("s_mul_i32 s65, s64, 7")
        e("s_add_u32 s65, s65, s67")
        e("s_add_u32 s66, s64, 14")
        e("s_cmp_eq_u32 s67, 7")
        e(f"s_cselect_b32 s{sJ}, s66, s65")
    else:
        e("s_and_b32 s64, s2, 1")
        e("s_lshl_b32 s64, s64, 3")
        e(f"s_and_b32 s65, s{sIDX}, 7")
        e(f"s_add_u32 s{sI}, s64, s65")
        e("s_bfe_u32 s64, s2, 0x20001")
        e(f"s_lshr_b32 s67, s{sIDX}, 3")
        e("s_mul_i32 s65, s64, 3")
        e("s_add_u32 s65, s65, s67")
        e("s_add_u32 s66, s64, 14")
        e("s_cmp_eq_u32 s67, 3")
        e("s_cselect_b32 s65, s66, s65")
        e("s_lshl_b32 s66, s64, 2")
        e("s_add_u32 s66, s66, s67")
        e("s_sub_u32 s66, s66, 2")
        e("s_cmp_lt_u32 s64, 2")
        e(f"s_cselect_b32 s{sJ}, s65, s66")
    e(f"s_lshl_b32 s{sCOL}, s{sJ}, 8")
    e(f"s_sub_u32 s64, s{sCOL}, {14 * 256}")
    e(f"s_movk_i32 s{sRS}, 3584")
    e(f"s_cmp_ge_u32 s{sJ}, 14")
    e(f"s_cselect_b32 s{sDFT}, 1, 0")
    e(f"s_cselect_b32 s{sRS}, 1024, s{sRS}")
    e(f"s_cselect_b32 s{sCOL}, s64, s{sCOL}")
    e(f"s_lshl_b32 s34, s{sRS}, 9")
    e("s_mov_b32 s35, 0x20000")
    e("s_mov_b32 s6, 0x200000")
    e("s_mov_b32 s7, 0x20000")


def wm_select(scc_instr):
    e(f"s_cmp_eq_u32 s{sDFT}, 1")
    e("s_cselect_b64 s[8:9], s[48:49], s[52:53]")
    e("s_cselect_b64 s[12:13], s[50:51], s[54:55]")
    e(scc_instr)
    e("s_cselect_b64 s[32:33], s[12:13], s[8:9]")


def ids2():
    e("s_bfe_u32 s46, s2, 0x20001")
    e("s_lshl_b32 s46, s46, 3")
    e(f"s_and_b32 s47, s{sIDX}, 7")
    e(f"s_add_u32 s{sT1}, s46, s47")
    e("s_and_b32 s46, s2, 1")
    e("s_lshl_b32 s46, s46, 2")
    e(f"s_lshr_b32 s47, s{sIDX}, 3")
    e(f"s_add_u32 s{sCB}, s46, s47")
    e("s_mov_b64 s[16:17], s[56:57]")
    e(f"s_mov_b32 s18, {1792 * 1024}")
    e("s_mov_b32 s19, 0x20000")
    e("s_mov_b64 s[20:21], s[62:63]")
    e(f"s_mov_b32 s22, {WS_SIZE}")
    e("s_mov_b32 s23, 0x20000")
    e("s_mov_b64 s[24:25], s[58:59]")
    e("s_mov_b32 s26, 0x200000")
    e("s_mov_b32 s27, 0x20000")
    e("s_mov_b64 s[28:29], s[60:61]")
    e("s_mov_b32 s30, 256")
    e("s_mov_b32 s31, 0x20000")


def entry():
    section("A")
    e("s_cmp_ge_u32 s2, 256")
    e("s_cbranch_scc1 END")
    e("s_load_dwordx2 s[4:5], s[0:1], 0")
    e("s_load_dwordx4 s[48:51], s[0:1], 24")
    e("s_load_dwordx8 s[52:59], s[0:1], 48")
    e("s_load_dwordx4 s[60:63], s[0:1], 80")
    if PROF or LITE or OPT.get("rabs"):
        e("s_memrealtime s[98:99]")
    stamp(0)
    e("v_lshrrev_b32 v1, 6, v0")
    e("v_and_b32 v0, 63, v0")
    e(f"s_lshr_b32 s{sIDX}, s2, 3")
    e(f"v_readfirstlane_b32 s{sWAVE}, v1")
    e("s_getpc_b64 s[64:65]")
    lab("PCREF")
    e(f"s_cmp_ge_u32 s{sWAVE}, 4")
    e("s_cbranch_scc1 LSTART")
    if OPT["ct"]:
        cm("pull the kernel's own code into this die's L2: three lines per matrix wave")
        e(f"s_lshl_b32 s66, s{sIDX}, 2")
        e(f"s_add_u32 s66, s66, s{sWAVE}")
        e("s_mul_i32 s66, s66, 384")
        e(f"s_min_u32 s66, s66, END-PCREF-384")
        e("s_and_b32 s64, s64, 0xffffff80")
        e("s_load_dwordx2 s[68:69], s[64:65], s66 offset:60")
        e("s_load_dwordx2 s[70:71], s[64:65], s66 offset:188")
        e("s_load_dwordx2 s[72:73], s[64:65], s66 offset:316")
    e("s_branch CWAVE")
    lab("LSTART")
    ids1()
    e(f"s_cmp_eq_u32 s{sWAVE}, 6")
    e("s_cbranch_scc1 L2WAVE")
    e(f"s_cmp_eq_u32 s{sWAVE}, 7")
    e("s_cbranch_scc1 L3WAVE")


def wd_voffset(vd, vt):
    e(f"v_lshrrev_b32 v{vt}, 3, v0")
    e(f"v_lshlrev_b32 v{vd}, 10, v{vt}")
    e(f"v_bfe_u32 v{vt}, v0, 4, 1")
    e(f"v_lshlrev_b32 v{vt}, 2, v{vt}")
    e(f"v_and_b32 v{vt + 1}, 7, v0")
    e(f"v_xor_b32 v{vt}, v{vt}, v{vt + 1}")
    e(f"v_lshl_add_u32 v{vd}, v{vt}, 4, v{vd}")


NX = OPT["nx"]
XM, XS = 224, 8192
assert XM % (4 * NX) == 0


def xw_init():
    e(f"s_lshr_b32 s60, s{sIDX}, 2")
    e("s_lshl_b32 s60, s60, 10")
    e(f"s_and_b32 s63, s{sIDX}, 3")
    e("s_lshl_b32 s63, s63, 7")
    e("s_add_u32 s60, s60, s63")
    e("s_and_b32 s63, s2, 1")
    e("s_lshl_b32 s63, s63, 9")
    e("s_add_u32 s60, s60, s63")
    e(f"s_sub_u32 s63, s{sWAVE}, 4")
    e(f"s_mul_i32 s63, s63, {NX * XS}")
    e("s_add_u32 s60, s60, s63")
    e(f"s_add_u32 s62, s60, {XM * XS}")
    e(f"s_add_u32 s60, s60, {128 * XS}")
    if OPT["xrot"]:
        e("s_bfe_u32 s63, s2, 0x10001")
        e(f"s_mul_i32 s63, s63, {OPT['xrot'] * XS}")
        e("s_add_u32 s60, s60, s63")


def xw():
    for k in range(NX if not OPT.get("nox") else 0):
        e(f"s_buffer_load_dwordx2 s[58:59], {srd(SRD_WD)}, s60 offset:{XS * k + 60}")
    e(f"s_add_u32 s60, s60, {4 * NX * XS}")
    e("s_cmp_ge_u32 s60, s62")
    e(f"s_cselect_b32 s63, {XM * XS}, 0")
    e("s_sub_u32 s60, s60, s63")


def rot_offsets(shift, add):
    for k in range(8):
        e(f"s_add_u32 s{48 + k}, s{sCB}, {k}")
        e(f"s_and_b32 s{48 + k}, s{48 + k}, 7")
        e(f"s_lshl_b32 s{48 + k}, s{48 + k}, {shift}")
        e(f"s_add_u32 s{48 + k}, s{48 + k}, {add}")


def l01wave():
    vX0, vX1, vW, vWD, vZ = 2, 3, 4, 5, 9
    sLW, sXa, sXb, sWo, sS0, sS1, sR4, sT, sCnt, sWd = 64, 65, 66, 67, 68, 69, 70, 71, 72, 73
    section("A2")
    lab("L01WAVE")
    cm("================ L0/L1: DMA waves ================")
    e(f"s_sub_u32 s{sLW}, s{sWAVE}, 4")
    e("v_lshrrev_b32 v6, 3, v0")
    e(f"v_lshlrev_b32 v{vX0}, 16, v6")
    e("v_lshrrev_b32 v6, 1, v6")
    e("v_and_b32 v7, 7, v0")
    e("v_xor_b32 v6, v6, v7")
    e(f"v_lshl_add_u32 v{vX0}, v6, 4, v{vX0}")
    e(f"v_xor_b32 v{vX1}, 64, v{vX0}")
    e("v_lshrrev_b32 v6, 4, v0")
    e(f"v_mul_lo_u32 v{vW}, v6, s{sRS}")
    e("v_bfe_u32 v7, v0, 2, 2")
    e("v_xor_b32 v7, v7, v6")
    e("v_lshlrev_b32 v7, 2, v7")
    e("v_and_b32 v8, 3, v0")
    e("v_or_b32 v7, v7, v8")
    e(f"v_lshl_add_u32 v{vW}, v7, 4, v{vW}")
    e(f"s_lshl_b32 s{sXa}, s{sI}, 1")
    e(f"s_add_u32 s{sXa}, s{sXa}, s{sLW}")
    e(f"s_lshl_b32 s{sXa}, s{sXa}, 10")
    e(f"s_add_u32 s{sXb}, s{sXa}, {32 * 1024}")
    e(f"s_mov_b32 s{sWo}, s{sCOL}")
    e(f"s_lshl_b32 s{sR4}, s{sRS}, 2")
    e(f"s_lshl_b32 s74, s{sLW}, 10")
    e(f"s_lshl_b32 s77, s{sLW}, 12")

    def wpieces(base_sgpr, imm):
        e(f"s_add_u32 s{sT}, s{base_sgpr}, s74")
        e(f"s_add_u32 m0, s{sT}, {imm}")
        e("s_nop 0")
        for k in range(8):
            e(f"buffer_load_dwordx4 v{vW}, {srd(SRD_WM)}, s{sWo} offen lds")
            if k < 7:
                e("s_add_u32 m0, m0, 2048")
            e(f"s_add_u32 s{sWo}, s{sWo}, s{sR4}")

    def xpieces(base_sgpr, half):
        sx = sXb if half else sXa
        e(f"s_add_u32 s{sT}, s{base_sgpr}, s77")
        e(f"s_add_u32 m0, s{sT}, {32768 + half * 8192}")
        e(f"s_mov_b32 s{sT}, s{sx}")
        for k in range(4):
            e(f"buffer_load_dwordx4 v{vX1 if k & 1 else vX0}, {srd(SRD_X)}, s{sT} offen lds")
            if k < 3:
                e("s_add_u32 m0, m0, 1024")
                e(f"s_add_u32 s{sT}, s{sT}, 0x80000")
        e(f"s_add_u32 s{sx}, s{sx}, 128")

    e(f"s_mov_b32 s{sS0}, {SLOT}")
    e(f"s_mov_b32 s{sS1}, {2 * SLOT}")
    e("s_waitcnt lgkmcnt(0)")
    stamp(5)
    cm("G0 = x0 + W0 ; G1 = W1 + x1a")
    xpieces(sS0, 0)
    wm_select(f"s_cmp_eq_u32 s{sLW}, 1")
    wpieces(sS0, 0)
    xpieces(sS0, 1)
    wpieces(sS0, 16384)
    xpieces(sS1, 0)
    ids2()
    xw_init()
    xw()
    e(f"s_mov_b32 s{sS0}, {2 * SLOT}")
    e(f"s_mov_b32 s{sS1}, 0")
    e(f"s_mov_b32 s{sCnt}, 6")
    e("s_waitcnt vmcnt(12)")
    stamp(1)
    bar("B0")
    lab("L01LOOP")
    wpieces(sS0, 0)
    xpieces(sS0, 1)
    xw()
    e("s_waitcnt vmcnt(12)")
    bar("B(2s+1)")
    wpieces(sS0, 16384)
    xpieces(sS1, 0)
    xw()
    e(f"s_mov_b32 s{sS0}, s{sS1}")
    e(f"s_add_u32 s{sS1}, s{sS1}, {SLOT}")
    e(f"s_cmp_eq_u32 s{sS1}, {3 * SLOT}")
    e(f"s_cselect_b32 s{sS1}, 0, s{sS1}")
    e(f"s_sub_u32 s{sCnt}, s{sCnt}, 1")
    e(f"s_cmp_lg_u32 s{sCnt}, 0")
    e("s_waitcnt vmcnt(12)")
    bar("B(2s+2)")
    e("s_cbranch_scc1 L01LOOP")
    wpieces(sS0, 0)
    xpieces(sS0, 1)
    xw()
    wd_voffset(vWD, 6)
    e(f"s_lshl_b32 s{sT}, s{sCB}, 7")
    rot_offsets(15, f"s{sT}")
    e("s_waitcnt vmcnt(12)")
    bar("B13")
    wpieces(sS0, 16384)
    e(f"s_lshl_b32 s{sWd}, s{sLW}, 14")
    e(f"s_lshl_b32 m0, s{sLW}, 11")

    def units(a, b, th=0):
        for v in range(a, b):
            if v and v & 7 == 0:
                e(f"s_add_u32 s{sWd}, s{sWd}, 262144")
            e(f"s_add_u32 s{sT}, s{sWd}, s{48 + (v & 7)}")
            e(f"buffer_load_dwordx4 v{vWD}, {srd(SRD_WD)}, s{sT} offen lds")
            e("s_add_u32 m0, m0, 1024")
            e(f"s_add_u32 s{sT}, s{sT}, 8192")
            e(f"buffer_load_dwordx4 v{vWD}, {srd(SRD_WD)}, s{sT} offen lds")
            if v + 1 < NRES:
                e(f"s_add_u32 m0, m0, {(wslot(v + 1) - wslot(v)) * 4096 - 1024}")
            if th:
                e(f"s_waitcnt vmcnt({th})")

    units(0, 2)
    e("s_waitcnt vmcnt(12)")
    bar("B14")
    units(2, 8)
    e("s_waitcnt vmcnt(16)")
    bar("B15")
    units(8, 14)
    if OPT["l0poll"]:
        e(f"v_mov_b32 v7, {TAGL}")
        e("ds_read_b32 v8, v7")
        e("v_min_u32 v10, 13, v0")
        e("v_lshlrev_b32 v10, 7, v10")
        e(f"s_lshr_b32 s70, s{sT1}, 1")
        e("s_lshl_b32 s70, s70, 11")
        e(f"s_add_u32 s70, s70, {FLH}")
        e(f"s_cmp_eq_u32 s{sLW}, 0")
        e(f"s_cselect_b32 s70, s70, {OOB:#x}")
        e("s_waitcnt lgkmcnt(0)")
        e(f"v_readfirstlane_b32 s{sTAG}, v8")
    stamp(2)
    bar("B16")
    TR = 14 + OPT["trk"]
    units(14, TR, OPT["th"])
    e(f"s_cmp_eq_u32 s{sDFT}, 1")
    e("s_cbranch_scc1 L01GO")
    wait_c_done()
    lab("L01GO")
    stamp(3)
    if OPT.get("fine"):
        units(TR, 22)
        stamp(1)
        units(22, 30)
        stamp(2)
        units(30, NRES)
        stamp(5)
    else:
        units(TR, NRES)
    if OPT["l0poll"]:
        e(f"s_cmp_eq_u32 s{sDFT}, 0")
        e("s_cbranch_scc1 L01GO2")
        wait_c_done()
        lab("L01GO2")
        cm("L0 waits for the 14 producers of row block t1>>1 (queued behind its w_down loads)")
        poll_issue(11, 10, "s70", SRD_WS)
    e("v_and_b32 v6, 3, v0")
    e("v_bfe_u32 v7, v0, 3, 2")
    e("v_lshl_add_u32 v6, v7, 2, v6")
    e("v_bfe_u32 v7, v0, 2, 1")
    e("v_lshl_add_u32 v6, v7, 4, v6")
    e("v_and_b32 v7, 32, v0")
    e(f"s_lshl_b32 s66, s{sCB}, 6")
    e("v_add3_u32 v6, v6, v7, s66")
    e("v_sub_u32 v7, 512, v6")
    e("v_and_b32 v7, 255, v7")
    e(f"s_sub_u32 s67, 32, s{sT1}")
    e("s_and_b32 s67, s67, 31")
    e(f"s_cmp_ge_u32 s{sCB}, 4")
    e("s_cselect_b64 s[68:69], -1, 0")
    e(f"s_cselect_b32 s67, s67, s{sT1}")
    e("v_cmp_eq_u32 vcc, 0, v6")
    e("v_cndmask_b32 v7, v6, v7, s[68:69]")
    e(f"v_lshlrev_b32 v{vZ}, 4, v7")
    e(f"v_mov_b32 v7, {OOB:#x}")
    e("s_lshl_b32 s67, s67, 16")
    e(f"v_cndmask_b32 v{vZ}, v{vZ}, v7, vcc")
    e(f"s_lshl_b32 s66, s{sLW}, 15")
    e("s_add_u32 s67, s67, s66")
    e(f"s_add_u32 s67, s67, {Z_OFF}")
    e(f"s_lshl_b32 s66, s{sLW}, 13")
    e(f"s_add_u32 m0, s66, {ZL}")
    if OPT["l0poll"]:
        e(f"s_cmp_eq_u32 s{sLW}, 0")
        e("s_cbranch_scc0 L1NOPOLL")
        poll_wait(11, 10, "s70", SRD_WS)
        lab("L1NOPOLL")
    e("s_waitcnt vmcnt(0)")
    stamp(4)
    bar("BW")
    bar("BP1")
    bar("BP2")
    bar("BZ0")
    for g in range(8):
        e(f"buffer_load_dwordx4 v{vZ}, {srd(SRD_WS)}, s67 offen sc1 lds")
        e("s_add_u32 m0, m0, 1024")
        e("s_add_u32 s67, s67, 4096")
    e("s_waitcnt vmcnt(0)")
    stamp(6)
    bar("BR")
    stamp_flush(7, 10, False)
    e("s_endpgm")


class Stager:
    def __init__(self, which, vm):
        self.w, self.vm, self.k, self.d = which, vm, 0, 0

    def init(self):
        wd_voffset(5, 116)
        e(f"s_lshl_b32 s56, s{sCB}, 7")
        e(f"s_add_u32 s56, s56, {self.w * 16384}")
        rot_offsets(15, "s56")
        if OPT["dw"]:
            e("v_lshlrev_b32 v119, 4, v0")
            e(f"s_lshl_b32 s61, s{sJ}, 12")
            e(f"s_mul_i32 s57, s{sI}, {2 * 4 * 56 * 1024}")
            e("s_add_u32 s61, s61, s57")
            e(f"s_add_u32 s61, s61, {H_OFF + self.w * 2048}")
            e(f"s_lshl_b32 s57, s{sI}, 12")
            e(f"s_and_b32 s73, s{sJ}, 1")
            e("s_lshl_b32 s73, s73, 11")
            e("s_add_u32 s57, s57, s73")
            e(f"s_add_u32 s57, s57, {Z_OFF + self.w * 1024}")
            e(f"s_cmp_eq_u32 s{sDFT}, 1")
            e("s_cselect_b32 s61, s57, s61")
            e(f"s_mov_b32 s73, {56 * 1024 - 1024}")
            e("s_cselect_b32 s73, 0x20000, s73")
            e("s_movk_i32 s74, 1024")
            e("s_cselect_b32 s74, 0x20000, s74")

    def issue(self, n):
        for _ in range(n):
            if self.k >= 2 * NST:
                return
            v = NRES + (self.k >> 1)
            e(f"s_add_u32 s57, s{48 + (v & 7)}, {(v >> 3) * 262144 + (self.k & 1) * 8192}")
            self.vm.add(("s", self.k), f"buffer_load_dwordx4 {vr(120 + 4 * self.k, 4)}, v5, {srd(SRD_WD)}, s57 offen")
            self.k += 1

    def at(self, n):
        if n >= OPT["sg0"]:
            self.issue(OPT["sgn"])
        if OPT["dw"] and n >= OPT["dw0"] and self.d < 16:
            for _ in range(OPT["dw"]):
                if self.d < 16:
                    self.vm.add(("d", self.d), f"buffer_store_dwordx4 v[112:115], v119, {srd(SRD_WS)}, s61 offen sc1")
                    if self.d & 1:
                        e("s_add_u32 s61, s61, s73")
                    else:
                        e("s_add_u32 s61, s61, s74")
                    self.d += 1

    def write(self):
        e(f"v_lshlrev_b32 v6, 4, v0")
        e(f"v_add_u32 v6, {self.w * 2048}, v6")
        for k in range(2 * NST):
            if k == 32:
                e("v_add_u32 v6, 0x10000, v6")
            e(f"ds_write_b128 v6, {vr(120 + 4 * k, 4)} offset:{((k >> 1) * 4096 + (k & 1) * 1024) & 0xFFFF}")


def l2wave():
    vC = 8
    vm = Q()
    sg = Stager(0, vm)
    section("A")
    e("s_branch L01WAVE")
    lab("L2WAVE")
    cm("================ L2: column sums (64 columns x rows 64s + 16kq + 0..15) ================")
    e("v_lshrrev_b32 v18, 3, v0")
    e("v_and_b32 v19, 7, v0")
    e(f"v_mul_lo_u32 v{vC}, v18, s{sRS}")
    e(f"v_lshl_add_u32 v{vC}, v19, 4, v{vC}")
    e(f"s_lshr_b32 s64, s{sI}, 2")
    e("s_lshl_b32 s64, s64, 4")
    e(f"s_mul_i32 s69, s64, s{sRS}")
    e(f"s_and_b32 s64, s{sI}, 1")
    e("s_lshl_b32 s64, s64, 7")
    e("s_add_u32 s69, s69, s64")
    e(f"s_add_u32 s69, s69, s{sCOL}")
    e(f"s_lshl_b32 s70, s{sRS}, 3")
    e(f"s_mul_i32 s72, s{sRS}, 56")
    e("s_waitcnt lgkmcnt(0)")
    wm_select(f"s_bitcmp1_b32 s{sI}, 1")
    LD, AC = 32, 16

    def csload(y):
        vm.add(("c", y), f"buffer_load_dwordx4 {vr(LD + 4 * y, 4)}, v{vC}, {srd(SRD_WM)}, s69 offen")
        e(f"s_add_u32 s69, s69, {'s72' if y & 1 else 's70'}")

    def csproc(y):
        for d in range(4):
            r = LD + 4 * y + d
            if y == 0:
                e(f"v_lshlrev_b32 v{AC + 2 * d}, 16, v{r}")
                e(f"v_and_b32 v{AC + 2 * d + 1}, v9, v{r}")
            else:
                e(f"v_lshlrev_b32 v10, 16, v{r}")
                e(f"v_and_b32 v11, v9, v{r}")
                e(f"v_add_f32 v{AC + 2 * d}, v{AC + 2 * d}, v10")
                e(f"v_add_f32 v{AC + 2 * d + 1}, v{AC + 2 * d + 1}, v11")

    for y in range(2 * OPT["pre"]):
        csload(y)
    e("s_branch L2REST")
    section("L2")
    lab("L2REST")
    ids2()
    xw_init()
    xw()
    sg.init()
    e("v_mov_b32 v9, 0xffff0000")
    stamp(1)
    issued, done = 2 * OPT["pre"], 0
    for n in range(8):
        bar(f"B{n}")
        while issued < 16 and n >= OPT["preb"]:
            csload(issued)
            issued += 1
        xw()
        sg.at(n)
        if n >= 2:
            k = min(done + 3, 16)
            e(f"s_waitcnt vmcnt({vm.younger(('c', k - 1))})")
            for y in range(done, k):
                csproc(y)
            done = k
    assert done == 16 and issued == 16
    bar("B8")
    e(f"v_mov_b32 v12, {TAGL}")
    e("ds_read_b32 v25, v12")
    for k in range(4):
        e(f"v_permlane32_swap_b32 v{AC + k}, v{AC + k + 4}")
    e("s_nop 1")
    for k in range(4):
        e(f"v_add_f32 v{AC + k}, v{AC + k}, v{AC + k + 4}")
    e("s_nop 1")
    for k in range(2):
        e(f"v_permlane16_swap_b32 v{AC + k}, v{AC + k + 2}")
    e("s_nop 1")
    for k in range(2):
        e(f"v_add_f32 v{AC + k}, v{AC + k}, v{AC + k + 2}")
    e("v_and_b32 v10, 7, v0")
    e("v_lshlrev_b32 v10, 3, v10")
    e(f"v_add_f32_dpp v24, v{AC}, v{AC} row_ror:8 row_mask:0xf bank_mask:0x3")
    e(f"v_add_f32_dpp v24, v{AC + 1}, v{AC + 1} row_ror:8 row_mask:0xf bank_mask:0xc")
    e("v_bfe_u32 v11, v0, 5, 1")
    e("v_lshl_add_u32 v10, v11, 2, v10")
    e("v_bfe_u32 v11, v0, 4, 1")
    e("v_lshl_add_u32 v10, v11, 1, v10")
    e("v_bfe_u32 v11, v0, 3, 1")
    e("v_add_u32 v10, v11, v10")
    e("v_lshlrev_b32 v10, 3, v10")
    e(f"s_lshl_b32 s64, s{sJ}, 13")
    e(f"s_add_u32 s64, s64, {CS_OFF}")
    e(f"s_lshl_b32 s65, s{sI}, 9")
    e("s_add_u32 s65, s64, s65")
    e("s_waitcnt lgkmcnt(0)")
    vm.add("pub", f"buffer_store_dwordx2 v[24:25], v10, {srd(SRD_WS)}, s65 offen sc1")
    e(f"v_readfirstlane_b32 s{sTAG}, v25")
    xw()
    sg.at(8)
    stamp(2)
    e("v_lshlrev_b32 v10, 5, v0")
    e("s_add_u32 s65, s64, 4096")

    def csget():
        for k in range(8):
            e(f"buffer_load_dwordx4 {vr(32 + 4 * k, 4)}, v10, {srd(SRD_WS)}, {'s65' if k >= 4 else 's64'} offen offset:{2048 * ((k >> 1) & 1) + 16 * (k & 1)} sc1")

    for n in range(9, 14):
        bar(f"B{n}")
        if n < 13:
            xw()
        sg.at(n)
    csget()
    if OPT["lprio"]:
        e(f"s_setprio {OPT['lprio']}")
    bar("B14")
    e(f"s_mov_b32 s75, {OPT['spin']}")
    lab("CSCHK")
    e("s_waitcnt vmcnt(0)")
    for k in range(16):
        e(f"v_xor_b32 v{64 + k}, s{sTAG}, v{33 + 2 * k}")
    e("v_or_b32 v12, v64, v65")
    for k in range(1, 8):
        e(f"v_or3_b32 v12, v12, v{64 + 2 * k}, v{65 + 2 * k}")
    e("v_cmp_ne_u32 vcc, 0, v12")
    e("s_nop 1")
    e("s_cmp_eq_u64 vcc, 0")
    e("s_cbranch_scc1 CSOK")
    e("s_sleep 2")
    csget()
    e("s_sub_u32 s75, s75, 1")
    e("s_cmp_lg_u32 s75, 0")
    e("s_cbranch_scc1 CSCHK")
    e("s_waitcnt vmcnt(0)")
    lab("CSOK")
    bar("B15")
    e("v_lshlrev_b32 v10, 4, v0")
    e(f"v_add_u32 v10, {CSL}, v10")
    for d in range(4):
        e(f"v_add_f32 v{16 + d}, v{32 + 2 * d}, v{40 + 2 * d}")
        e(f"v_add_f32 v{20 + d}, v{48 + 2 * d}, v{56 + 2 * d}")
    for d in range(4):
        e(f"v_add_f32 v{16 + d}, v{16 + d}, v{20 + d}")
    e("ds_write_b128 v10, v[16:19]")
    e("s_waitcnt lgkmcnt(0)")
    stamp(3)
    bar("B16")
    if OPT["lprio"]:
        e("s_setprio 0")
    if sg.k < 2 * NST:
        wait_c_done()
        sg.issue(99)
    stamp(4)
    bar("BW")
    e("s_waitcnt vmcnt(0)")
    stamp(5)
    bar("BP1")
    sg.write()
    e("s_waitcnt lgkmcnt(0)")
    stamp(6)
    bar("BP2")
    stamp_flush(7, 10, False)
    e("s_endpgm")


def l3wave():
    vm = Q()
    sg = Stager(1, vm)
    section("A")
    lab("L3WAVE")
    cm("================ L3: launch tag, row statistics (rows 8j..8j+7 of the row block), hand-off waits ================")
    e(f"s_bfe_u32 s64, s{sJ}, 0x10002")
    e(f"s_bfe_u32 s65, s{sJ}, 0x10003")
    e("s_lshl_b32 s65, s65, 5")
    e(f"s_lshl_b32 s66, s{sI}, 1")
    e("s_add_u32 s64, s64, s65")
    e("s_add_u32 s64, s64, s66")
    e(f"s_and_b32 s65, s{sJ}, 3")
    e("s_lshl_b32 s65, s65, 9")
    e("s_add_u32 s64, s64, s65")
    e("s_lshl_b32 s64, s64, 10")
    e("v_lshrrev_b32 v4, 3, v0")
    e("v_and_b32 v14, 7, v0")
    e("v_lshlrev_b32 v6, 16, v4")
    e("v_lshl_add_u32 v6, v14, 4, v6")
    e("s_memrealtime s[66:67]")
    e("s_waitcnt lgkmcnt(0)")
    LD, UP = 16, 48

    def rowload(y):
        vm.add(("r", y), f"buffer_load_dwordx4 {vr(LD + 4 * y, 4)}, v6, {srd(SRD_X)}, s64 offen offset:{128 * y}")

    for y in range(OPT["pre"]):
        rowload(y)
    e("s_branch L3REST")
    section("L3")
    lab("L3REST")
    ids2()
    e("v_mov_b32 v2, 0")
    e("s_or_b32 s66, s66, 1")
    e("v_mov_b32 v3, s66")
    e("s_cmp_eq_u32 s2, 0")
    e(f"s_cselect_b32 s66, 0, {OOB:#x}")
    vm.add("tag", f"buffer_store_dword v3, v2, {srd(SRD_DBG)}, s66 offen sc1")
    xw_init()
    xw()
    sg.init()
    e("v_mov_b32 v9, 0xffff0000")

    def unp(d):
        e(f"v_lshlrev_b32 v{UP + 2 * d}, 16, v{LD + d}")
        e(f"v_and_b32 v{UP + 2 * d + 1}, v9, v{LD + d}")
        if d == 0:
            e(f"v_mov_b32 v10, v{UP}")
            e(f"v_mov_b32 v11, v{UP + 1}")
        else:
            e(f"v_add_f32 v10, v10, v{UP + 2 * d}")
            e(f"v_add_f32 v11, v11, v{UP + 2 * d + 1}")

    def red8(r):
        e("s_nop 1")
        e(f"v_add_f32_dpp v{r}, v{r}, v{r} quad_perm:[1,0,3,2] row_mask:0xf bank_mask:0xf")
        e("s_nop 1")
        e(f"v_add_f32_dpp v{r}, v{r}, v{r} quad_perm:[2,3,0,1] row_mask:0xf bank_mask:0xf")
        e("s_nop 1")
        e(f"v_add_f32_dpp v{r}, v{r}, v{r} row_half_mirror row_mask:0xf bank_mask:0xf")

    def var(k):
        e(f"v_sub_f32 v{UP + k}, v{UP + k}, v10")
        e(f"v_fmac_f32 v{12 + (k & 1)}, v{UP + k}, v{UP + k}")

    issued, done = OPT["pre"], 0
    for n in range(6):
        bar(f"B{n}")
        while issued < 8 and n >= OPT["preb"]:
            rowload(issued)
            issued += 1
        xw()
        if n == 5:
            vm.add("np")
            poll_issue(3, 2, "0", SRD_DBG)
        sg.at(n)
        if n >= 2:
            k = min(done + 2, 8)
            e(f"s_waitcnt vmcnt({vm.younger(('r', k - 1))})")
            for d in range(4 * done, 4 * k):
                unp(d)
            done = k
    assert done == 8 and issued == 8
    e("v_add_f32 v10, v10, v11")
    red8(10)
    e(f"v_mul_f32 v10, {f2u(1.0 / 512):#x}, v10")
    e("v_mov_b32 v12, 0")
    e("v_mov_b32 v13, 0")
    bar("B6")
    xw()
    sg.at(6)
    for k in range(24):
        var(k)
    bar("B7")
    poll_wait(3, 2, "0", SRD_DBG, cond_tag=False, first_wait=vm.younger("np"))
    e(f"v_mov_b32 v15, {TAGL}")
    e("ds_write_b32 v15, v3")
    e("ds_write_b32 v15, v2 offset:4")
    e("ds_write_b32 v15, v2 offset:8")
    e(f"v_readfirstlane_b32 s{sTAG}, v3")
    sg.at(7)
    for k in range(24, 44):
        var(k)
    e("s_waitcnt lgkmcnt(0)")
    xw()
    bar("B8")
    for k in range(44, 64):
        var(k)
    e("v_add_f32 v12, v12, v13")
    red8(12)
    e(f"v_mul_f32 v12, {f2u(1.0 / 512):#x}, v12")
    cm("roundings as in the reference: m=bf(mean); sd=bf(sqrt(bf(bf(var)+eps))); r=1/sd")
    e("v_cvt_pk_bf16_f32 v15, v10, v12")
    e("v_lshlrev_b32 v16, 16, v15")
    e("v_and_b32 v12, v9, v15")
    e(f"v_add_f32 v12, {f2u(1e-5):#x}, v12")
    e("v_cvt_pk_bf16_f32 v12, v12, v12")
    e("v_and_b32 v12, v9, v12")
    e("v_sqrt_f32 v12, v12")
    e("v_cmp_eq_u32 vcc, 0, v14")
    e("v_cvt_pk_bf16_f32 v12, v12, v12")
    e("v_and_b32 v12, v9, v12")
    e("v_rcp_f32 v17, v12")
    e("v_lshlrev_b32 v14, 4, v4")
    e(f"v_mov_b32 v15, {OOB:#x}")
    e(f"s_lshl_b32 s64, s{sI}, 11")
    e(f"s_add_u32 s64, s64, {ST_OFF}")
    e("v_cndmask_b32 v14, v15, v14, vcc")
    e("v_mov_b32 v18, v3")
    e("v_mov_b32 v19, v3")
    e(f"s_lshl_b32 s65, s{sJ}, 7")
    e("s_add_u32 s65, s64, s65")
    vm.add("pub", f"buffer_store_dwordx4 v[16:19], v14, {srd(SRD_WS)}, s65 offen sc1")
    xw()
    sg.at(8)
    stamp(1)
    e("v_lshlrev_b32 v10, 5, v0")

    def stget():
        e(f"buffer_load_dwordx4 v[20:23], v10, {srd(SRD_WS)}, s64 offen sc1")
        e(f"buffer_load_dwordx4 v[24:27], v10, {srd(SRD_WS)}, s64 offen offset:16 sc1")

    for n in range(9, 14):
        bar(f"B{n}")
        if n < 13:
            xw()
        sg.at(n)
    stget()
    if OPT["lprio"]:
        e(f"s_setprio {OPT['lprio']}")
    bar("B14")
    e(f"s_mov_b32 s75, {OPT['spin']}")
    lab("STCHK")
    e("s_waitcnt vmcnt(0)")
    e(f"v_cmp_ne_u32 vcc, s{sTAG}, v23")
    e(f"v_cmp_ne_u32 s[76:77], s{sTAG}, v27")
    e("s_nop 1")
    e("s_or_b64 vcc, vcc, s[76:77]")
    e("s_cmp_eq_u64 vcc, 0")
    e("s_cbranch_scc1 STOK")
    e("s_sleep 2")
    stget()
    e("s_sub_u32 s75, s75, 1")
    e("s_cmp_lg_u32 s75, 0")
    e("s_cbranch_scc1 STCHK")
    e("s_waitcnt vmcnt(0)")
    lab("STOK")
    e("v_lshlrev_b32 v10, 4, v0")
    e(f"v_add_u32 v10, {MRP}, v10")
    e("v_lshlrev_b32 v12, 3, v0")
    e(f"v_add_u32 v12, {RL}, v12")
    e("v_mov_b32 v22, v24")
    e("v_mov_b32 v23, v25")
    e("v_mov_b32 v24, v21")
    e("v_mul_f32 v26, v20, v21")
    e("v_mul_f32 v27, v22, v23")
    e("v_xor_b32 v26, 0x80000000, v26")
    e("v_xor_b32 v27, 0x80000000, v27")
    e("ds_write_b128 v10, v[20:23]")
    e("ds_write_b64 v12, v[24:25]")
    e("ds_write_b64 v12, v[26:27] offset:512")
    bar("B15")
    if OPT["spoll"]:
        e(f"s_lshr_b32 s68, s{sT1}, 1")
        e("s_lshl_b32 s68, s68, 7")
        e(f"s_add_u32 s68, s68, {FLH}")
        e(f"s_mov_b32 s69, {FLZ}")
    else:
        e("v_min_u32 v10, 13, v0")
        e("v_lshlrev_b32 v10, 7, v10")
        e(f"s_lshr_b32 s68, s{sT1}, 1")
        e("s_lshl_b32 s68, s68, 11")
        e(f"s_add_u32 s68, s68, {FLH}")
        e("v_bfe_u32 v12, v0, 1, 4")
        e("v_lshlrev_b32 v12, 4, v12")
        e("v_and_b32 v13, 1, v0")
        e("v_add3_u32 v12, v12, v13, 14")
        e("v_lshlrev_b32 v12, 7, v12")
        e(f"s_mov_b32 s69, {FLH}")
    e("s_waitcnt lgkmcnt(0)")
    stamp(2)
    stamp(3)
    bar("B16")
    if OPT["lprio"]:
        e("s_setprio 0")
    if sg.k < 2 * NST or not OPT["l0poll"]:
        wait_c_done()
    sg.issue(99)
    if OPT["l0poll"]:
        pass
    elif OPT["spoll"]:
        spoll("s68", 7)
    else:
        poll_issue(11, 10, "s68", SRD_WS)
        poll_wait(11, 10, "s68", SRD_WS)
    stamp(4)
    bar("BW")
    e("s_waitcnt vmcnt(0)")
    stamp(5)
    bar("BP1")
    if not OPT["zdef"]:
        poll_issue(11, 12, "s69", SRD_WS)
    sg.write()
    e("s_waitcnt lgkmcnt(0)")
    if OPT["spoll"]:
        bar("BP2")
        spoll("s69", 8, 2)
    else:
        if OPT["zdef"]:
            poll_issue(11, 12, "s69", SRD_WS)
        bar("BP2")
        poll_wait(11, 12, "s69", SRD_WS)
    stamp(6)
    bar("BZ0")
    stamp_flush(7, 14, False)
    e("s_endpgm")


XF = [[64 + 4 * q for q in range(4)], [80 + 4 * q for q in range(4)]]
WF = [[96, 100], [104, 108]]
XA = [112, 113, 114, 115]
WA = 116
vPM = 118
CG, CU, MR = 0, 16, 32
vA_CS, vA_MR, vA_TAG = 45, 46, 47
R0, N0 = 64, 80
vD_CS, vD_R, vD_TAG = 122, 123, 124
sXO, sRO, sFLG, sOUT, sC0, sP, sKH = 56, 60, 61, 62, 63, 73, 74


def ACC(mat, q):
    return 128 + 32 * q + 16 * mat


def TW(q, cs, z):
    return 16 * q + 8 * cs + 4 * z


def frag_reads(u, st):
    r = []
    for mat in range(2):
        for a in range(2):
            r.append(f"ds_read_b64_tr_b16 {vr(WF[st][mat] + 2 * a, 2)}, v{WA} offset:{u * 8192 + a * 2048 + mat * 1024}")
    for q in range(4):
        r.append(f"ds_read_b128 {vr(XF[st][q], 4)}, v{XA[u]} offset:{q * 4096}")
    return r


def glu_stat_reads():
    r = [f"ds_read_b64 {vr(MR + 2 * q, 2)}, v{vA_MR} offset:{256 * q}" for q in range(4)]
    r += [f"ds_read_b128 {vr(CG + 4 * a, 4)}, v{vA_CS} offset:{32 * a}" for a in range(4)]
    r += [f"ds_read_b128 {vr(CU + 4 * a, 4)}, v{vA_CS} offset:{512 + 32 * a}" for a in range(4)]
    r += [f"ds_read_b32 v43, v{vA_TAG}"]
    return r


def dft_stat_reads():
    return [f"ds_read_b32 v118, v{vD_CS}", f"ds_read_b32 v119, v{vD_CS} offset:512", f"ds_read_b32 v{vD_TAG}, v{vD_TAG}"] + \
           [f"ds_read_b128 {vr(R0 + 4 * a, 4)}, v{vD_R} offset:{32 * a}" for a in range(4)]


def mainloop(dft):
    sCnt, sDelta, sCur = 64, 65, 66
    tag = "D" if dft else "G"
    es(frag_reads(0, 0))
    e(f"s_mov_b32 s{sCnt}, 8")
    e(f"s_mov_b32 s{sCur}, {SLOT}")
    e(f"s_mov_b32 s67, {(-2 * SLOT) & 0xffffffff:#x}")

    def step(u, last):
        st = u & 1
        mf = []
        for mat in ((1, 0) if dft else (0, 1)):
            for q in range(4):
                a, b = (XF[st][q], WF[st][mat]) if dft else (WF[st][mat], XF[st][q])
                mf.append(f"v_mfma_f32_32x32x16_bf16 {vr(ACC(mat, q), 16)}, {vr(a, 4)}, {vr(b, 4)}, {vr(ACC(mat, q), 16)}")
        rd = frag_reads((u + 1) & 3, st ^ 1)
        gaps = [[] for _ in range(8)]
        if u == 3 and not last:
            gaps[0] += [f"v_add_u32 v{WA}, s{sDelta}, v{WA}", f"v_add_u32 v{XA[0]}, s{sDelta}, v{XA[0]}"]
            gaps[5] += [f"v_add_u32 v{XA[1]}, s{sDelta}, v{XA[1]}"]
            gaps[6] += [f"v_add_u32 v{XA[2]}, s{sDelta}, v{XA[2]}", f"v_add_u32 v{XA[3]}, s{sDelta}, v{XA[3]}"]
        if PROF and u in (0, 2):
            gaps[0] += ["s_memtime s[70:71]"]
        if PROF and u in (1, 3):
            gaps[5] += [f"s_lshl_b32 s72, s{sCnt}, 1", f"s_sub_u32 m0, {16 if u == 1 else 15}, s72", f"v_writelane_b32 v{vLOOPST}, s70, m0"]
        if u == 2:
            gaps[5] += [f"s_cmp_eq_u32 s{sCur}, {2 * SLOT}", f"s_cselect_b32 s{sDelta}, s67, {SLOT}"]
            gaps[6] += [f"s_add_u32 s{sCur}, s{sCur}, s{sDelta}", f"s_sub_u32 s{sCnt}, s{sCnt}, 1"]
            gaps[7] += [f"s_cmp_eq_u32 s{sCnt}, 0"]
        if u & 1:
            gaps[0] += ["s_barrier"]
        if dft:
            gaps[0] = [f"v_cndmask_b32 v{WF[st][0] + k}, v{WF[st][0] + k}, v{vPM}, s[68:69]" for k in range(2)] + gaps[0]
            gaps[1] += [f"v_cndmask_b32 v{WF[st][0] + k}, v{WF[st][0] + k}, v{vPM}, s[68:69]" for k in range(2, 4)]
        if last:
            extra = dft_stat_reads() if dft else glu_stat_reads()
            for k, x in enumerate(extra):
                gaps[2 + min(k // 3, 4)].append(x)
        else:
            for k in range(4):
                gaps[k + (1 if (u & 1) else 0)] += rd[2 * k:2 * k + 2]
        e("s_waitcnt lgkmcnt(0)")
        for k in range(8):
            e(mf[k])
            es(gaps[k])

    raw(".p2align 3")
    lab(f"MAIN{tag}")
    for u in range(3):
        step(u, False)
    e(f"s_cbranch_scc1 LAST{tag}")
    step(3, False)
    e(f"s_branch MAIN{tag}")
    lab(f"LAST{tag}")
    step(3, True)


def glu_epilogue():
    e(f"v_lshlrev_b32 v44, 4, v{vLANE}")
    e("s_mov_b32 s66, 1.0")
    e("s_mov_b32 s67, 1.0")
    e("s_waitcnt lgkmcnt(0)")
    e(f"v_readfirstlane_b32 s{sTAG}, v43")
    for q in range(4):
        e(f"v_mul_f32 v{MR + 2 * q + 1}, {NLOG2E:#x}, v{MR + 2 * q + 1}")
    raw(".p2align 3")
    out = 0
    for q in range(4):
        b, p = q & 1, q >> 1
        mr = vr(MR + 2 * q, 2)
        for z in range(2):
            G = ACC(0, q) + 8 * z
            U = ACC(1, q) + 8 * z
            for k in range(4):
                e(f"v_pk_fma_f32 {vr(G + 2 * k, 2)}, {vr(CG + 8 * z + 2 * k, 2)}, {mr}, {vr(G + 2 * k, 2)} op_sel_hi:[1,0,1] neg_lo:[0,1,0] neg_hi:[0,1,0]")
            for k in range(4):
                e(f"v_pk_mul_f32 {vr(G + 2 * k, 2)}, {vr(G + 2 * k, 2)}, {mr} op_sel:[0,1] op_sel_hi:[1,1]")
            for k in range(8):
                e(f"v_exp_f32 v{G + k}, v{G + k}")
            for k in range(4):
                e(f"v_pk_add_f32 {vr(G + 2 * k, 2)}, {vr(G + 2 * k, 2)}, s[66:67]")
            for k in range(8):
                e(f"v_rcp_f32 v{G + k}, v{G + k}")
            for k in range(4):
                e(f"v_pk_fma_f32 {vr(U + 2 * k, 2)}, {vr(CU + 8 * z + 2 * k, 2)}, {mr}, {vr(U + 2 * k, 2)} op_sel_hi:[1,0,1] neg_lo:[0,1,0] neg_hi:[0,1,0]")
            for k in range(4):
                e(f"v_pk_mul_f32 {vr(U + 2 * k, 2)}, {vr(U + 2 * k, 2)}, {vr(G + 2 * k, 2)}")
            o = 64 + 4 * out
            out += 1
            for k in range(4):
                e(f"v_cvt_pk_bf16_f32 v{o + k}, v{U + 2 * k}, v{U + 2 * k + 1}")
            e(f"s_add_u32 s65, s{sOUT}, {((b * 2 + p) * 2 + z) * 56 * 1024 + H_OFF}")
            e(f"buffer_store_dwordx4 {vr(o, 4)}, v44, {srd(SRD_WS)}, s65 offen sc1")
    stamp(3)
    cm("publish: the last of the four waves whose stores have completed writes the workgroup's flag")
    e("v_mov_b32 v41, 1")
    e("v_mov_b32 v42, 0")
    e("s_mov_b64 exec, 1")
    e("s_waitcnt vmcnt(0)")
    e(f"ds_add_rtn_u32 v41, v{vA_TAG}, v41 offset:4")
    e("s_waitcnt lgkmcnt(0)")
    e("v_readfirstlane_b32 s64, v41")
    e("s_cmp_lg_u32 s64, 3")
    e("s_cbranch_scc1 HNOFLAG")
    e(f"buffer_store_dword v43, v42, {srd(SRD_WS)}, s{sFLG} offen sc1")
    lab("HNOFLAG")
    e("s_mov_b64 exec, -1")
    stamp(4)


def dft_prologue():
    e(f"v_and_b32 v2, 31, v{vLANE}")
    e("v_cvt_f32_u32 v3, v2")
    e(f"v_mul_f32 v3, {f2u(1.0 / 2048):#x}, v3")
    e(f"s_and_b32 s64, s{sWAVE}, 1")
    e(f"s_lshr_b32 s65, s{sWAVE}, 1")
    e("s_lshl_b32 s65, s65, 5")
    e("s_add_u32 s64, s64, s65")
    e(f"s_lshl_b32 s65, s{sI}, 1")
    e("s_add_u32 s64, s64, s65")
    e(f"v_lshrrev_b32 v4, 5, v{vLANE}")
    e("v_lshl_add_u32 v4, v4, 8, s64")
    e("v_cvt_f32_u32 v4, v4")
    e("v_mul_f32 v4, v3, v4")
    e("v_and_b32 v5, 1, v2")
    e("v_mul_u32_u24 v5, 0x8000, v5")
    e("v_lshl_or_b32 v5, v5, 16, v5")
    for jj in range(8):
        e(f"v_fmamk_f32 v{8 + jj}, v3, {f2u(64.0 * (8 * (jj >> 2) + (jj & 3))):#x}, v4")
    for jj in range(8):
        e(f"v_fract_f32 v{8 + jj}, v{8 + jj}")
    for jj in range(8):
        e(f"v_cos_f32 v{16 + jj}, v{8 + jj}")
        e(f"v_sin_f32 v{24 + jj}, v{8 + jj}")
    e("s_nop 0")
    for k in range(4):
        e(f"v_cvt_pk_bf16_f32 v{32 + k}, v{16 + 2 * k}, v{17 + 2 * k}")
        e(f"v_cvt_pk_bf16_f32 v{40 + k}, v{24 + 2 * k}, v{25 + 2 * k}")
    for k in range(4):
        e(f"v_xor_b32 v{36 + k}, v5, v{32 + k}")
        e(f"v_xor_b32 v{44 + k}, v5, v{40 + k}")
    e(f"s_lshl_b32 s64, s{sWAVE}, 12")
    e(f"s_add_u32 s64, s64, {MISC}")
    e(f"v_lshl_add_u32 v6, v{vLANE}, 4, s64")
    for k in range(4):
        e(f"ds_write_b128 v6, {vr(32 + 4 * k, 4)} offset:{1024 * k}")
    cm("column 0 carries the Nyquist bin: lanes 0 and 32 of wave 0 in column block 14 use (+1,-1,+1,...)")
    e(f"s_cmp_eq_u32 s{sJ}, 14")
    e("s_cselect_b32 s68, 1, 0")
    e(f"s_cmp_eq_u32 s{sWAVE}, 0")
    e("s_cselect_b32 s68, s68, 0")
    e("s_mov_b32 s69, s68")
    e(f"v_mov_b32 v{vPM}, 0xbf803f80")
    e(f"v_lshlrev_b32 v119, 4, v{vLANE}")
    e(f"v_add_u32 v119, {MISC}, v119")
    e("s_waitcnt lgkmcnt(0)")


def dft_epilogue():
    for a in range(4):
        e(f"ds_read_b128 {vr(N0 + 4 * a, 4)}, v{vD_R} offset:{512 + 32 * a}")
    e(f"v_mov_b32 v115, v{vD_R}")
    e("s_waitcnt lgkmcnt(0)")
    e(f"v_readfirstlane_b32 s{sTAG}, v{vD_TAG}")
    e("v_cndmask_b32 v118, v118, 0, s[68:69]")

    def TS(q):
        return (120 if q & 1 else 96), (104 if q == 0 else TW(q - 1, 0, 0))

    def valu(q):
        r_ = []
        for mat, T, cs in ((0, TS(q)[0], 118), (1, TS(q)[1], 119)):
            A = ACC(mat, q)
            if q == 0:
                for r in range(0, 16, 2):
                    r_.append(f"v_pk_mul_f32 {vr(A + r, 2)}, {vr(A + r, 2)}, {vr(R0 + r, 2)}")
            else:
                for r in range(16):
                    r_.append(f"v_mul_f32 v{A + r}, v{A + r}, v{R0 + r}")
            if mat and q < 3:
                r_[-1] = [r_[-1]] + [f"ds_read_b128 {vr(R0 + 4 * a, 4)}, v115 offset:{128 * (q + 1) + 32 * a}" for a in range(4)]
            if OPT.get("nocs"):
                pass
            elif q == 0:
                sel = "op_sel:[0,1,0] op_sel_hi:[1,1,1]" if mat else "op_sel_hi:[1,0,1]"
                for r in range(0, 16, 2):
                    r_.append(f"v_pk_fma_f32 {vr(A + r, 2)}, {vr(N0 + r, 2)}, v[118:119], {vr(A + r, 2)} {sel}")
            else:
                for r in range(16):
                    r_.append(f"v_fmac_f32 v{A + r}, v{N0 + r}, v{cs}")
            if mat and q < 3 and not OPT.get("nocs"):
                r_[-1] = [r_[-1]] + [f"ds_read_b128 {vr(N0 + 4 * a, 4)}, v115 offset:{512 + 128 * (q + 1) + 32 * a}" for a in range(4)]
            for k in range(8):
                r_.append(f"v_cvt_pk_bf16_f32 v{T + k}, v{A + 2 * k}, v{A + 2 * k + 1}")
        return r_

    def mfmas(q):
        ta, tb = TS(q)
        zr, zi = ACC(0, q), ACC(1, q)
        seq = [(zr, 1, 0, tb), (zi, 0, 0, tb), (zr, 1, 1, tb + 4), (zi, 0, 1, tb + 4),
               (zr, 0, 0, ta), (zr, 0, 1, ta + 4), (zi, 1, 0, ta), (zi, 1, 1, ta + 4)]
        return [f"v_mfma_f32_32x32x16_bf16 {vr(d, 16)}, {vr(TW(q, cs, z), 4)}, {vr(b, 4)}, {'0' if k < 2 else vr(d, 16)}"
                for k, (d, cs, z, b) in enumerate(seq)]

    for q in range(5):
        v_ = valu(q) if q < 4 else []
        m_ = mfmas(q - 1) if q else []
        if 0 < q < 4:
            e("s_waitcnt lgkmcnt(0)")
        if q:
            e("s_nop 1")
        per = len(v_) // 8
        for k in range(8):
            if m_:
                e(m_[k])
                if k in (3, 4):
                    for x in range(4):
                        rg = TW(q - 1, 1, k - 3) + x
                        e(f"v_xor_b32 v{rg}, 0x80008000, v{rg}")
            if OPT.get("nocs") and q:
                cut = [0, 6, 12, 18, 24, 30, 35, 40, 48]
                es(v_[cut[k]:cut[k + 1]])
            else:
                es(v_[k * per:(k + 1) * per])
    e(f"v_and_b32 v112, 31, v{vLANE}")
    e(f"v_lshrrev_b32 v114, 5, v{vLANE}")
    e("v_lshlrev_b32 v112, 4, v112")
    e("v_lshl_add_u32 v125, v114, 18, v112")
    e("s_nop 7")
    for r in range(16):
        for q in range(4):
            e(f"v_cvt_pk_bf16_f32 v{4 * r + q}, v{ACC(0, q) + r}, v{ACC(1, q) + r}")
        if r < OPT["zs0"] or not OPT["zdef"]:
            e(f"s_add_u32 s65, s{sOUT}, {(8 * (r >> 2) + (r & 3)) * 65536}")
            e(f"buffer_store_dwordx4 {vr(4 * r, 4)}, v125, {srd(SRD_WS)}, s65 offen sc1")
    stamp(3)
    e(f"v_mov_b32 v64, {CNTL}")
    e("v_mov_b32 v65, 1")
    e("s_mov_b64 exec, 1")
    e("ds_add_u32 v64, v65")
    e("s_mov_b64 exec, -1")
    stamp(4)
    if OPT["zdef"]:
        phase2(True)
    else:
        e("s_branch PHASE2G")


def phase2(dft):
    OWN, OTH, Y, EF, HR, ET = 128, 144, 160, 32, 176, 248
    XR, vR = 80, 88
    W2 = [[96, 100], [104, 108], [240, 244]]
    WD = [112, 113]
    vH, vXO, vZA = 114, 115, 116
    vEA, vEB, vES = 122, 123, 124
    ZF = 0
    assert D <= 16
    vm, lq = Q(), Q()
    tg = "D" if dft else "G"
    lab("PHASE2" + tg)
    stamp(5)
    e(f"v_and_b32 v89, 31, v{vLANE}")
    e(f"v_lshrrev_b32 v90, 5, v{vLANE}")
    e(f"v_lshlrev_b32 v{vXO}, 16, v89")
    e(f"v_lshl_add_u32 v{vXO}, v90, 5, v{vXO}")
    def xloads():
        vm.add("x0", f"buffer_load_dwordx4 {vr(XR, 4)}, v{vXO}, {srd(SRD_X)}, s{sXO} offen")
        vm.add("x1", f"buffer_load_dwordx4 {vr(XR + 4, 4)}, v{vXO}, {srd(SRD_X)}, s{sXO} offen offset:16")

    if not OPT["xlate"]:
        xloads()
    e(f"v_bfe_u32 v{ET}, v{vLANE}, 2, 2")
    e(f"v_lshl_add_u32 v92, v90, 2, v{ET}")
    e(f"s_lshl_b32 s68, s{sKH}, 11")
    e("v_lshl_add_u32 v92, v92, 7, s68")
    e(f"v_and_b32 v93, 1, v{vLANE}")
    e("v_lshlrev_b32 v93, 2, v93")
    e(f"v_bfe_u32 v{ET + 1}, v{vLANE}, 4, 1")
    e(f"v_lshl_add_u32 v93, v{ET + 1}, 1, v93")
    e(f"v_bfe_u32 v{ET + 1}, v{vLANE}, 1, 1")
    e(f"v_add_u32 v93, v93, v{ET + 1}")
    e("v_lshl_add_u32 v92, v93, 3, v92")
    e(f"v_lshrrev_b32 v{ET}, 1, v{ET}")
    e(f"v_xor_b32 v{ET}, s{sKH}, v{ET}")
    e(f"v_lshl_add_u32 v{WD[0]}, v{ET}, 6, v92")
    e(f"v_xor_b32 v{WD[1]}, 64, v{WD[0]}")
    e(f"v_lshlrev_b32 v{vH}, 4, v{vLANE}")
    e("v_lshlrev_b32 v93, 4, v89")
    bar("BW")
    stamp(6)
    nh = [0]

    def hmore(lim, cnt):
        while cnt and nh[0] < min(56, lim):
            v = nh[0]
            if v and v & 7 == 0:
                e(f"v_add_u32 v{vH}, 8192, v{vH}")
            vm.add(("h", v), f"buffer_load_dwordx4 {vr(HR + 4 * (v % D), 4)}, v{vH}, {srd(SRD_WS)}, s{48 + (v & 7)} offen sc1")
            nh[0] += 1
            cnt -= 1

    base = [0]

    def wreads(v):
        a = wslot(v) * 4096
        if (a & ~0xFFFF) != base[0]:
            d = (a & ~0xFFFF) - base[0]
            base[0] = a & ~0xFFFF
            es([f"v_add_u32 v{WD[c]}, {d & 0xffffffff:#x}, v{WD[c]}" for c in range(2)])
        for c in range(2):
            for k in range(2):
                lq.add(("w", v, c, k), f"ds_read_b64_tr_b16 {vr(W2[v % 3][c] + 2 * k, 2)}, v{WD[c]} offset:{(a & 0xFFFF) + 1024 * k}")

    for v in range(OPT["D0"]):
        hmore(56, 1)
        if v == 1:
            wreads(0)
            wreads(1)
    vm.add("r", f"buffer_load_dword v{vR}, v93, {srd(SRD_WS)}, s{sRO} offen offset:4 sc1")

    fill = [[f"s_cmp_ge_u32 s{sCB}, 4", "s_cselect_b64 s[70:71], -1, 0"],
            f"s_lshl_b32 s68, s{sKH}, 9", f"s_add_u32 s68, s68, {ZL}", f"v_lshl_add_u32 v{vZA}, v89, 4, s68",
            f"v_lshl_add_u32 v{vZA}, v90, 10, v{vZA}",
            f"v_lshl_add_u32 v91, v89, 1, s{sP}", f"v_sub_u32 v92, s{sC0}, v91", "v_cndmask_b32 v91, v91, v92, s[70:71]",
            f"v_and_b32 v{vES}, 1, v91", f"v_mul_u32_u24 v{vES}, 0x8000, v{vES}", f"v_lshl_or_b32 v{vES}, v{vES}, 16, v{vES}",
            "v_cvt_f32_u32 v91, v91", f"v_mul_f32 v{vEA}, {f2u(1.0 / 64):#x}, v91",
            "v_lshlrev_b32 v92, 1, v90", "v_cvt_f32_u32 v92, v92", f"v_mul_f32 v{vEB}, v{vEA}, v92"]
    for sg in range(8):
        for b in range(2):
            fill.append(f"v_fmamk_f32 v{ET + b}, v{vEA}, {f2u(float(4 * sg + b)):#x}, v{vEB}")
        for b in range(2):
            fill.append(f"v_fract_f32 v{ET + b}, v{ET + b}")
        for b in range(2):
            fill.append(f"v_cos_f32 v{ET + 2 + b}, v{ET + b}")
            fill.append(f"v_sin_f32 v{ET + 4 + b}, v{ET + b}")
        fill.append([f"v_cvt_pk_bf16_f32 v{EF + 4 * sg}, v{ET + 2}, v{ET + 4}",
                     f"v_cvt_pk_bf16_f32 v{EF + 4 * sg + 1}, v{ET + 3}, v{ET + 5}"])
        for b in range(2):
            fill.append(f"v_xor_b32 v{EF + 4 * sg + 2 + b}, v{vES}, v{EF + 4 * sg + b}")
    P2BAR = {55 - NRES: "BP1", NRES - 2: "BP2", OPT["vz0"]: "BZ0"}
    assert NRES - 2 < OPT["vz0"] < 55
    zs = list(range(OPT["zs0"], 16)) if dft else []
    shared = not OPT["zdef"]
    zpub = not (dft or shared)

    def zpublish():
        cm("spectral workgroups: this wave's Z stores have completed; the last wave publishes")
        cm("(that store is not counted in the waits below: they only get stricter)")
        if shared:
            e(f"s_cmp_eq_u32 s{sDFT}, 0")
            e("s_cbranch_scc1 NOZF")
        e(f"v_mov_b32 v94, {TAGL}")
        e("v_mov_b32 v95, 1")
        e("s_mov_b64 exec, 1")
        e("ds_add_rtn_u32 v95, v94, v95 offset:8")
        e(f"v_mov_b32 v126, s{sTAG}")
        e("v_mov_b32 v127, 0")
        e("s_waitcnt lgkmcnt(0)")
        e("v_readfirstlane_b32 s64, v95")
        e("s_cmp_lg_u32 s64, 3")
        e("s_cbranch_scc1 NOZF1")
        e(f"buffer_store_dword v126, v127, {srd(SRD_WS)}, s{sFLG} offen sc1")
        lab("NOZF1")
        e("s_mov_b64 exec, -1")
        lab("NOZF")

    for v in range(56):
        e(f"s_waitcnt vmcnt({vm.younger(('h', v))}) lgkmcnt({lq.younger(('w', v, 1, 1))})")
        h = vr(HR + 4 * (v % D), 4)
        st = v % 3
        e(f"v_mfma_f32_32x32x16_bf16 {vr(OWN, 16)}, {vr(W2[st][0], 4)}, {h}, {'0' if v == 0 else vr(OWN, 16)}")
        if v in P2BAR:
            bar(P2BAR[v])
        if v + 2 < 56:
            wreads(v + 2)
        e(f"v_mfma_f32_32x32x16_bf16 {vr(OTH, 16)}, {vr(W2[st][1], 4)}, {h}, {'0' if v == 0 else vr(OTH, 16)}")
        if PROF and v % 4 == 0:
            e("s_memtime s[78:79]")
        if PROF and v % 4 == 2:
            e(f"v_writelane_b32 v{vLOOPST}, s78, {16 + v // 4}")
        if not zpub and not zs and v >= 1 and (("zs", 15) not in vm.l or vm.l.index(("h", v)) > vm.l.index(("zs", 15))):
            assert v < OPT["vz0"]
            zpublish()
            zpub = True
        if zs and v % OPT["zdef"] == 0:
            r = zs.pop(0)
            e(f"s_add_u32 s65, s{sOUT}, {(8 * (r >> 2) + (r & 3)) * 65536}")
            vm.add(("zs", r), f"buffer_store_dwordx4 {vr(4 * r, 4)}, v125, {srd(SRD_WS)}, s65 offen sc1")
        hmore(v + 1 + D, 2)
        if (nh[0] == 56 or (OPT["xlate"] == 2 and v == OPT.get("xv", 8))) and "x0" not in vm.l:
            xloads()
        if len(fill) > 88 or not zs:
            n = 4 if v < 32 else 6
            es(fill[:n])
            del fill[:n]
    assert not fill and zpub
    stamp(7)

    def ymf(sg):
        e(f"v_mfma_f32_32x32x16_bf16 {vr(Y, 16)}, {vr(ZF + 4 * sg, 4)}, {vr(EF + 4 * sg, 4)}, {'0' if sg == 0 else vr(Y, 16)}")

    cm("cross-wave reduction over the two K halves")
    XU, PT, TT = 176, 192, 208
    e(f"s_lshl_b32 s68, s{sWAVE}, 12")
    e(f"s_add_u32 s68, s68, {RED}")
    e(f"v_lshl_add_u32 v91, v{vLANE}, 4, s68")
    e("v_xor_b32 v92, 8192, v91")
    e(f"v_mul_f32 v{vR + 1}, {NLOG2E:#x}, v{vR}")
    e("v_mov_b32 v93, 0xffff0000")
    e("s_waitcnt vmcnt(0)")
    for k in range(3):
        e(f"v_lshlrev_b32 v{XU + 2 * k}, 16, v{XR + k}")
        e(f"v_and_b32 v{XU + 2 * k + 1}, v93, v{XR + k}")
    for a in range(4):
        e(f"ds_write_b128 v91, {vr(OTH + 4 * a, 4)} offset:{1024 * a}")
    for k in range(3, 8):
        e(f"v_lshlrev_b32 v{XU + 2 * k}, 16, v{XR + k}")
        e(f"v_and_b32 v{XU + 2 * k + 1}, v93, v{XR + k}")
    e("s_waitcnt lgkmcnt(0)")
    bar("BR")
    for a in range(4):
        e(f"ds_read_b128 {vr(PT + 4 * a, 4)}, v92 offset:{1024 * a}")
    for sg in range(8):
        e(f"ds_read_b128 {vr(ZF + 4 * sg, 4)}, v{vZA} offset:{2048 * sg}")
    e("s_waitcnt lgkmcnt(8)")
    rr = vr(vR, 2)
    raw(".p2align 3")
    for k in range(8):
        e(f"v_pk_add_f32 {vr(OWN + 2 * k, 2)}, {vr(OWN + 2 * k, 2)}, {vr(PT + 2 * k, 2)}")
    for k in range(8):
        e(f"v_pk_mul_f32 {vr(TT + 2 * k, 2)}, {vr(OWN + 2 * k, 2)}, {rr} op_sel:[0,1] op_sel_hi:[1,1]")
    for k in range(8):
        e(f"v_pk_mul_f32 {vr(OWN + 2 * k, 2)}, {vr(OWN + 2 * k, 2)}, {rr} op_sel_hi:[1,0]")
    e("s_waitcnt lgkmcnt(0)")
    for k in range(16):
        if k % 3 == 0:
            ymf(k // 3)
        e(f"v_exp_f32 v{TT + k}, v{TT + k}")
    for k in range(16):
        if k in (2, 8):
            ymf(6 + (k >> 3))
        e(f"v_add_f32 v{TT + k}, 1.0, v{TT + k}")
    for k in range(16):
        e(f"v_rcp_f32 v{TT + k}, v{TT + k}")
    raw(".p2align 3")
    for k in range(8):
        e(f"v_pk_mul_f32 {vr(OWN + 2 * k, 2)}, {vr(OWN + 2 * k, 2)}, {vr(TT + 2 * k, 2)}")
    for k in range(8):
        e(f"v_pk_fma_f32 {vr(OWN + 2 * k, 2)}, {vr(OWN + 2 * k, 2)}, {vr(Y + 2 * k, 2)}, {vr(XU + 2 * k, 2)}")
    for k in range(8):
        e(f"v_cvt_pk_bf16_f32 v{TT + k}, v{OWN + 2 * k}, v{OWN + 2 * k + 1}")
    e(f"buffer_store_dwordx4 {vr(TT, 4)}, v{vXO}, {srd(SRD_OUT)}, s{sXO} offen")
    e(f"buffer_store_dwordx4 {vr(TT + 4, 4)}, v{vXO}, {srd(SRD_OUT)}, s{sXO} offen offset:16")
    stamp_flush(8, 64, True)
    if OPT.get("rabs"):
        lab("DLY" + tg)
        e("s_memrealtime s[82:83]")
        e("s_waitcnt lgkmcnt(0)")
        e("s_sub_u32 s82, s82, s98")
        e(f"s_cmp_lt_u32 s82, {OPT['rabs']}")
        e("s_cbranch_scc1 DLY" + tg)
    e("s_endpgm")


def cwave():
    section("C0")
    lab("CWAVE")
    cm("================ C waves: matrix work ================")
    e("s_setprio 2")
    ids1()
    e(f"v_mov_b32 v{vLANE}, v0")
    for k in range(4):
        e(f"v_mov_b32 v{8 + k}, 0")
    e("v_and_b32 v2, 31, v0")
    e("v_lshrrev_b32 v3, 5, v0")
    for k in range(8):
        e(f"v_mfma_f32_32x32x16_bf16 {vr(128 + 16 * k, 16)}, v[8:11], v[8:11], 0")
    e("v_bfe_u32 v4, v0, 1, 3")
    e("v_lshlrev_b32 v5, 7, v2")
    e(f"v_add_u32 v5, {SLOT + 32768}, v5")
    for u in range(4):
        e(f"v_add_u32 v6, {2 * u}, v3")
        e("v_xor_b32 v6, v6, v4")
        e(f"v_lshl_add_u32 v{XA[u]}, v6, 4, v5")
    e("v_bfe_u32 v4, v0, 2, 2")
    e(f"v_lshlrev_b32 v{WA}, 12, v3")
    e(f"v_lshl_add_u32 v{WA}, v4, 8, v{WA}")
    e(f"v_xor_b32 v4, s{sWAVE}, v4")
    e(f"v_lshl_add_u32 v{WA}, v4, 6, v{WA}")
    e("v_bfe_u32 v4, v0, 4, 1")
    e(f"v_lshl_add_u32 v{WA}, v4, 5, v{WA}")
    e("v_and_b32 v4, 3, v0")
    e(f"v_lshl_add_u32 v{WA}, v4, 3, v{WA}")
    e(f"v_add_u32 v{WA}, {SLOT}, v{WA}")
    e(f"s_lshl_b32 s64, s{sWAVE}, 7")
    e(f"s_add_u32 s64, s64, {CSL}")
    e(f"v_lshl_add_u32 v{vA_CS}, v3, 4, s64")
    e(f"v_lshlrev_b32 v{vA_MR}, 3, v2")
    e(f"v_add_u32 v{vA_MR}, {MRP}, v{vA_MR}")
    e(f"v_mov_b32 v{vA_TAG}, {TAGL}")
    e(f"v_lshl_add_u32 v{vD_CS}, v2, 2, s64")
    e(f"v_lshlrev_b32 v{vD_R}, 4, v3")
    e(f"v_add_u32 v{vD_R}, {RL}, v{vD_R}")
    e(f"v_mov_b32 v{vD_TAG}, {TAGL}")
    e("s_waitcnt lgkmcnt(0)")
    ids2()
    e(f"s_and_b32 s{sP}, s{sWAVE}, 1")
    e(f"s_lshr_b32 s{sKH}, s{sWAVE}, 1")
    e(f"s_lshl_b32 s68, s{sP}, 5")
    e(f"s_add_u32 s68, s68, s{sT1}")
    e(f"s_lshl_b32 s{sXO}, s68, 10")
    e(f"s_lshl_b32 s68, s{sCB}, 7")
    e(f"s_add_u32 s{sXO}, s{sXO}, s68")
    e(f"s_lshl_b32 s68, s{sKH}, 6")
    e(f"s_add_u32 s{sXO}, s{sXO}, s68")
    e(f"s_cmp_eq_u32 s{sT1}, 0")
    e(f"s_cselect_b32 s{sC0}, 64, 63")
    e(f"s_lshr_b32 s68, s{sT1}, 1")
    e("s_lshl_b32 s68, s68, 11")
    e(f"s_and_b32 s70, s{sT1}, 1")
    e(f"s_lshl_b32 s71, s{sP}, 1")
    e("s_add_u32 s70, s70, s71")
    e("s_lshl_b32 s70, s70, 9")
    e("s_add_u32 s68, s68, s70")
    e(f"s_add_u32 s{sRO}, s68, {ST_OFF}")
    e(f"s_lshl_b32 s68, s{sT1}, 2")
    e("s_add_u32 s68, s68, s71")
    e(f"s_add_u32 s68, s68, s{sKH}")
    e(f"s_mul_i32 s68, s68, {56 * 1024}")
    rot_offsets(10, "s68")
    if OPT["spoll"]:
        e(f"s_lshl_b32 s64, s{sI}, 7")
        e(f"s_lshl_b32 s65, s{sJ}, 2")
        e("s_add_u32 s64, s64, s65")
        e(f"s_add_u32 s{sFLG}, s64, {FLH}")
    else:
        e(f"s_lshl_b32 s64, s{sI}, 4")
        e(f"s_add_u32 s64, s64, s{sJ}")
        e("s_lshl_b32 s64, s64, 7")
        e(f"s_add_u32 s{sFLG}, s64, {FLH}")
    e(f"s_cmp_eq_u32 s{sDFT}, 1")
    e("s_cbranch_scc1 CDFT")
    e(f"s_lshl_b32 s64, s{sJ}, 2")
    e(f"s_add_u32 s64, s64, s{sWAVE}")
    e("s_lshl_b32 s64, s64, 10")
    e(f"s_mul_i32 s65, s{sI}, {2 * 4 * 56 * 1024}")
    e(f"s_add_u32 s{sOUT}, s64, s65")
    e("s_branch CGLU")
    section("CG")
    lab("CGLU")
    stamp(1)
    bar("B0")
    mainloop(False)
    stamp(2)
    glu_epilogue()
    phase2(False)
    section("CD")
    lab("CDFT")
    e(f"s_lshl_b32 s64, s{sI}, 12")
    e(f"s_and_b32 s65, s{sJ}, 1")
    e("s_lshl_b32 s66, s65, 11")
    e("s_add_u32 s64, s64, s66")
    e(f"s_lshl_b32 s66, s{sWAVE}, 9")
    e("s_add_u32 s64, s64, s66")
    e(f"s_add_u32 s{sOUT}, s64, {Z_OFF}")
    if OPT["spoll"]:
        e(f"s_lshl_b32 s64, s{sI}, 1")
        e("s_add_u32 s64, s64, s65")
        e("s_lshl_b32 s64, s64, 2")
        e(f"s_add_u32 s{sFLG}, s64, {FLZ}")
    dft_prologue()
    stamp(1)
    bar("B0")
    for k in range(16):
        e(f"ds_read_b128 {vr(4 * k, 4)}, v119 offset:{1024 * k}")
    mainloop(True)
    stamp(2)
    dft_epilogue()


hdr = open("cdna_kernels/" + NAME + ".s.ref").read().split("\n")
head = [l for l in hdr if l.startswith(";") and "@launch" not in l and "Override launch" not in l and "grid=ceil" not in l]
out = head + ["; @launch grid=(256,1,1) block=(512,1,1) lds=163840",
              '.amdgcn_target "amdgcn-amd-amdhsa--gfx950"', ".text", f".globl {K}"]
if OPT["al"]:
    out.append(".p2align 12")
out += [".p2align 8", f".type {K},@function", f"{K}:"]
entry()
l2wave()
l3wave()
l01wave()
cwave()
for name, align in (("A", 0), ("A2", 0), ("C0", 0), ("L2", 0), ("L3", 0), ("CG", 12 if OPT["al"] else 0), ("CD", 12 if OPT["al"] else 0)):
    if align:
        out.append(f".p2align {align}")
    out += SEC[name]
out += ["END:", "    s_endpgm"]
out += ['.section .rodata,"a"', ".p2align 6", f".amdhsa_kernel {K}", "  .amdhsa_next_free_vgpr 256", "  .amdhsa_next_free_sgpr 102",
        "  .amdhsa_accum_offset 256", "  .amdhsa_group_segment_fixed_size 0", "  .amdhsa_kernarg_size 96",
        "  .amdhsa_user_sgpr_count 2", "  .amdhsa_user_sgpr_kernarg_segment_ptr 1", "  .amdhsa_system_sgpr_workgroup_id_x 1",
        ".end_amdhsa_kernel", ""]
open(sys.argv[1], "w").write("\n".join(out))
```

```python
import struct
import sys

NAME = "recurrent_scan__spectral_fnet__glu_gated_glu__prompt"
OPT = dict(m16=1, nocs=1, prof=0, map48=0, D=12, D0=6, pre=2, preb=0, th=4, trk=22, u1=2, u2=8, pa=47, bs=4, sord=1, slp=6, spin=200000,
           nx=4, sg0=99, sgn=3, dw=0, dw0=1, vz0=44, zdef=0, zs0=0, spoll=0, xlate=2, l0poll=1, lprio=3, xa0=1, na=3, xb0=8, nb=7, xe=16, xt=4, chk=14, ct=1, al=1)
for a in sys.argv[2:]:
    k, v = a.split("=")
    OPT[k] = int(v)
LITE = OPT["prof"] == 3
PROF = 0 if LITE else OPT["prof"]
K = NAME + "_kernel"
D = OPT["D"]

H_OFF, Z_OFF, ST_OFF, CS_OFF = 0, 0x800000, 0xA00000, 0xA10000
FLH, FLZ, PROF_OFF, WS_SIZE = 0xA50000, 0xA58000, 0xA60000, 0xB00000
SLOT = 49152
MISC = 147456
CSL, MRP, RL, NMRL, TAGL, CNTL = MISC, MISC + 1024, MISC + 2048, MISC + 2560, MISC + 3072, MISC + 3076
RED = 20 * 4096
ZL = 24 * 4096
NRES = 39
NST = 56 - NRES
NLOG2E = 0xBFB8AA3B
OOB = 0x40000000


def wslot(v):
    return v if v < 36 else v + 1 if v < NRES else v - NRES


def f2u(x):
    return struct.unpack("<I", struct.pack("<f", x))[0]


SEC = {}
CUR = [None, False]


def section(n):
    CUR[0] = SEC.setdefault(n, [])


def e(s):
    CUR[0].append("    " + s)


def es(lst):
    for x in lst:
        for y in (x if isinstance(x, list) else [x]):
            e(y)


def lab(s):
    CUR[0].append(s + ":")


def raw(s):
    CUR[0].append(s)


def cm(s):
    CUR[0].append("    ; " + s)


def vr(a, n):
    return f"v[{a}:{a + n - 1}]"


def srd(n):
    return f"s[{n}:{n + 3}]"


class Q:
    def __init__(self):
        self.l = []

    def add(self, tag, txt=None):
        self.l.append(tag)
        if txt:
            e(txt)

    def younger(self, tag):
        return len(self.l) - 1 - self.l.index(tag)


SRD_X, SRD_W0, SRD_W1, SRD_WD, SRD_WS, SRD_OUT, SRD_DBG, SRD_WM = 4, 8, 12, 16, 20, 24, 28, 32
sWAVE, sI, sJ, sT1, sCB, sRS, sCOL, sDFT, sTAG, sIDX = 36, 37, 38, 39, 40, 41, 42, 43, 44, 45
sSTAMP = 80
vLOOPST, vLST, vLANE = 121, 118, 117
uid = [0]
QUIET = [True]


ARR = OPT.get("arr")


def stamp(i):
    if PROF and not (ARR is not None and i and CUR[0] in (SEC.get("L2"), SEC.get("L3"))):
        e(f"{'s_memrealtime' if PROF == 2 else 's_memtime'} s[{sSTAMP + 2 * i}:{sSTAMP + 2 * i + 1}]")


def stamp_flush(n, vt, cw):
    if not (PROF or (LITE and cw)):
        return
    e("s_waitcnt lgkmcnt(0)")
    e("s_lshl_b32 s78, s2, 3")
    e(f"s_add_u32 s78, s78, s{sWAVE}")
    e("s_lshl_b32 s78, s78, 8")
    e(f"s_add_u32 s78, s78, {PROF_OFF}")
    e(f"v_mov_b32 v{vt + 8}, 0")
    if PROF:
        for i in range(8):
            e(f"v_mov_b32 v{vt + i}, s{sSTAMP + 2 * i}" if i < n else f"v_mov_b32 v{vt + i}, 0")
        e(f"buffer_store_dwordx4 {vr(vt, 4)}, v{vt + 8}, {srd(SRD_WS)}, s78 offen")
        e(f"buffer_store_dwordx4 {vr(vt + 4, 4)}, v{vt + 8}, {srd(SRD_WS)}, s78 offen offset:16")
        if cw:
            e(f"v_lshlrev_b32 v{vt + 9}, 2, v{vLANE}")
            e(f"v_min_u32 v{vt + 9}, 124, v{vt + 9}")
            e(f"buffer_store_dword v{vLOOPST}, v{vt + 9}, {srd(SRD_WS)}, s78 offen offset:64")
    e("s_memrealtime s[76:77]")
    e("s_waitcnt lgkmcnt(0)")
    e(f"v_mov_b32 v{vt + 10}, s98")
    e(f"v_mov_b32 v{vt + 11}, s76")
    e(f"buffer_store_dwordx2 {vr(vt + 10, 2)}, v{vt + 8}, {srd(SRD_WS)}, s78 offen offset:32")


def bar(name=""):
    if PROF and ARR is not None and CUR[0] in (SEC.get("L2"), SEC.get("L3")) and name[1:].isdigit() and ARR <= int(name[1:]) < ARR + 6:
        i = int(name[1:]) - ARR + 1
        e(f"s_memtime s[{sSTAMP + 2 * i}:{sSTAMP + 2 * i + 1}]")
    e("s_barrier" + (f"  ; {name}" if name else ""))


def poll_issue(vdst, vaddr, ssoff, srdn):
    e(f"buffer_load_dword v{vdst}, v{vaddr}, {srd(srdn)}, {ssoff} offen sc1")


def poll_wait(vdst, vaddr, ssoff, srdn, cond_tag=True, first_wait=0):
    uid[0] += 1
    k = uid[0]
    e(f"s_mov_b32 s75, {OPT['spin']}")
    e(f"s_waitcnt vmcnt({first_wait})")
    lab(f"POLL{k}")
    e(f"v_cmp_ne_u32 vcc, s{sTAG}, v{vdst}" if cond_tag else f"v_cmp_eq_u32 vcc, 0, v{vdst}")
    e("s_nop 1")
    e("s_cmp_eq_u64 vcc, 0")
    e(f"s_cbranch_scc1 POLLD{k}")
    if OPT["slp"]:
        e(f"s_sleep {OPT['slp']}")
    poll_issue(vdst, vaddr, ssoff, srdn)
    e("s_sub_u32 s75, s75, 1")
    e("s_cmp_lg_u32 s75, 0")
    e("s_waitcnt vmcnt(0)")
    e(f"s_cbranch_scc1 POLL{k}")
    lab(f"POLLD{k}")


def spoll(ssoff, npairs, nloads=1):
    uid[0] += 1
    k = uid[0]
    e(f"s_mov_b32 s75, {OPT['spin']}")
    e(f"s_mov_b32 s46, s{sTAG}")
    e(f"s_mov_b32 s47, s{sTAG}")
    lab(f"SP{k}")
    for l in range(nloads):
        e(f"s_buffer_load_dwordx16 s[48:63], {srd(SRD_WS)}, {ssoff} offset:{64 * l} glc")
        e("s_waitcnt lgkmcnt(0)")
        for p in range(npairs):
            e(f"s_xor_b64 s[{48 + 2 * p}:{49 + 2 * p}], s[{48 + 2 * p}:{49 + 2 * p}], s[46:47]")
        for p in range(npairs):
            if l == 0 and p == 0:
                e("s_mov_b64 s[76:77], s[48:49]")
            else:
                e(f"s_or_b64 s[76:77], s[76:77], s[{48 + 2 * p}:{49 + 2 * p}]")
    e(f"s_cbranch_scc0 SPD{k}")
    if OPT["slp"]:
        e(f"s_sleep {OPT['slp']}")
    e("s_sub_u32 s75, s75, 1")
    e("s_cmp_lg_u32 s75, 0")
    e(f"s_cbranch_scc1 SP{k}")
    lab(f"SPD{k}")


def wait_c_done():
    uid[0] += 1
    k = uid[0]
    e(f"v_mov_b32 v7, {TAGL}")
    e(f"s_mov_b32 s75, {OPT['spin']}")
    lab(f"CW{k}")
    e("ds_read_b64 v[14:15], v7")
    e("s_waitcnt lgkmcnt(0)")
    e("v_readfirstlane_b32 s76, v15")
    e(f"v_readfirstlane_b32 s{sTAG}, v14")
    e("s_sub_u32 s75, s75, 1")
    e("s_cmp_eq_u32 s75, 0")
    e(f"s_cbranch_scc1 CWD{k}")
    e("s_sleep 1")
    e("s_cmp_lt_u32 s76, 4")
    e(f"s_cbranch_scc1 CW{k}")
    lab(f"CWD{k}")


def ids1():
    if OPT["map48"]:
        e("s_and_b32 s64, s2, 3")
        e("s_lshl_b32 s64, s64, 2")
        e(f"s_and_b32 s65, s{sIDX}, 3")
        e(f"s_add_u32 s{sI}, s64, s65")
        e("s_bfe_u32 s64, s2, 0x10002")
        e(f"s_lshr_b32 s67, s{sIDX}, 2")
        e("s_mul_i32 s65, s64, 7")
        e("s_add_u32 s65, s65, s67")
        e("s_add_u32 s66, s64, 14")
        e("s_cmp_eq_u32 s67, 7")
        e(f"s_cselect_b32 s{sJ}, s66, s65")
    else:
        e("s_and_b32 s64, s2, 1")
        e("s_lshl_b32 s64, s64, 3")
        e(f"s_and_b32 s65, s{sIDX}, 7")
        e(f"s_add_u32 s{sI}, s64, s65")
        e("s_bfe_u32 s64, s2, 0x20001")
        e(f"s_lshr_b32 s67, s{sIDX}, 3")
        e("s_mul_i32 s65, s64, 3")
        e("s_add_u32 s65, s65, s67")
        e("s_add_u32 s66, s64, 14")
        e("s_cmp_eq_u32 s67, 3")
        e("s_cselect_b32 s65, s66, s65")
        e("s_lshl_b32 s66, s64, 2")
        e("s_add_u32 s66, s66, s67")
        e("s_sub_u32 s66, s66, 2")
        e("s_cmp_lt_u32 s64, 2")
        e(f"s_cselect_b32 s{sJ}, s65, s66")
    e(f"s_lshl_b32 s{sCOL}, s{sJ}, 8")
    e(f"s_sub_u32 s64, s{sCOL}, {14 * 256}")
    e(f"s_movk_i32 s{sRS}, 3584")
    e(f"s_cmp_ge_u32 s{sJ}, 14")
    e(f"s_cselect_b32 s{sDFT}, 1, 0")
    e(f"s_cselect_b32 s{sRS}, 1024, s{sRS}")
    e(f"s_cselect_b32 s{sCOL}, s64, s{sCOL}")
    e(f"s_lshl_b32 s34, s{sRS}, 9")
    e("s_mov_b32 s35, 0x20000")
    e("s_mov_b32 s6, 0x200000")
    e("s_mov_b32 s7, 0x20000")


def wm_select(scc_instr):
    e(f"s_cmp_eq_u32 s{sDFT}, 1")
    e("s_cselect_b64 s[8:9], s[48:49], s[52:53]")
    e("s_cselect_b64 s[12:13], s[50:51], s[54:55]")
    e(scc_instr)
    e("s_cselect_b64 s[32:33], s[12:13], s[8:9]")


def ids2():
    e("s_bfe_u32 s46, s2, 0x20001")
    e("s_lshl_b32 s46, s46, 3")
    e(f"s_and_b32 s47, s{sIDX}, 7")
    e(f"s_add_u32 s{sT1}, s46, s47")
    e("s_and_b32 s46, s2, 1")
    e("s_lshl_b32 s46, s46, 2")
    e(f"s_lshr_b32 s47, s{sIDX}, 3")
    e(f"s_add_u32 s{sCB}, s46, s47")
    e("s_mov_b64 s[16:17], s[56:57]")
    e(f"s_mov_b32 s18, {1792 * 1024}")
    e("s_mov_b32 s19, 0x20000")
    e("s_mov_b64 s[20:21], s[62:63]")
    e(f"s_mov_b32 s22, {WS_SIZE}")
    e("s_mov_b32 s23, 0x20000")
    e("s_mov_b64 s[24:25], s[58:59]")
    e("s_mov_b32 s26, 0x200000")
    e("s_mov_b32 s27, 0x20000")
    e("s_mov_b64 s[28:29], s[60:61]")
    e("s_mov_b32 s30, 256")
    e("s_mov_b32 s31, 0x20000")


def entry():
    section("A")
    e("s_cmp_ge_u32 s2, 256")
    e("s_cbranch_scc1 END")
    e("s_load_dwordx2 s[4:5], s[0:1], 0")
    e("s_load_dwordx4 s[48:51], s[0:1], 24")
    e("s_load_dwordx8 s[52:59], s[0:1], 48")
    e("s_load_dwordx4 s[60:63], s[0:1], 80")
    if PROF or LITE or OPT.get("rabs"):
        e("s_memrealtime s[98:99]")
    stamp(0)
    e("v_lshrrev_b32 v1, 6, v0")
    e("v_and_b32 v0, 63, v0")
    e(f"s_lshr_b32 s{sIDX}, s2, 3")
    e(f"v_readfirstlane_b32 s{sWAVE}, v1")
    e("s_getpc_b64 s[64:65]")
    lab("PCREF")
    e(f"s_cmp_ge_u32 s{sWAVE}, 4")
    e("s_cbranch_scc1 LSTART")
    if OPT["ct"]:
        cm("pull the kernel's own code into this die's L2: three lines per matrix wave")
        e(f"s_lshl_b32 s66, s{sIDX}, 2")
        e(f"s_add_u32 s66, s66, s{sWAVE}")
        e("s_mul_i32 s66, s66, 384")
        e(f"s_min_u32 s66, s66, END-PCREF-384")
        e("s_and_b32 s64, s64, 0xffffff80")
        e("s_load_dwordx2 s[68:69], s[64:65], s66 offset:60")
        e("s_load_dwordx2 s[70:71], s[64:65], s66 offset:188")
        e("s_load_dwordx2 s[72:73], s[64:65], s66 offset:316")
    if OPT["bs"]:
        bar("BS")
    e("s_branch CWAVE")
    lab("LSTART")
    ids1()
    e(f"s_cmp_eq_u32 s{sWAVE}, 6")
    e("s_cbranch_scc1 L2WAVE")
    e(f"s_cmp_eq_u32 s{sWAVE}, 7")
    e("s_cbranch_scc1 L3WAVE")


def wd_voffset(vd, vt):
    e(f"v_lshrrev_b32 v{vt}, 3, v0")
    e(f"v_lshlrev_b32 v{vd}, 10, v{vt}")
    e(f"v_bfe_u32 v{vt}, v0, 4, 1")
    e(f"v_lshlrev_b32 v{vt}, 2, v{vt}")
    e(f"v_and_b32 v{vt + 1}, 7, v0")
    e(f"v_xor_b32 v{vt}, v{vt}, v{vt + 1}")
    e(f"v_lshl_add_u32 v{vd}, v{vt}, 4, v{vd}")


XS = 8192


def xw_base():
    e(f"s_lshr_b32 s60, s{sIDX}, 2")
    e("s_lshl_b32 s60, s60, 10")
    e(f"s_and_b32 s63, s{sIDX}, 3")
    e("s_lshl_b32 s63, s63, 7")
    e("s_add_u32 s60, s60, s63")
    e("s_and_b32 s63, s2, 1")
    e("s_lshl_b32 s63, s63, 9")
    e("s_add_u32 s60, s60, s63")
    e("s_bfe_u32 s63, s2, 0x20001")
    e(f"s_mul_i32 s62, s63, {56 * XS}")


def xload(n):
    for k in range(n if not OPT.get("nox") else 0):
        e(f"s_buffer_load_dwordx2 s[58:59], {srd(SRD_WD)}, s60 offset:{XS * k + 60}")


def xa_init():
    xw_base()
    e("s_add_u32 s60, s60, s62")
    e(f"s_sub_u32 s63, s{sWAVE}, 4")
    e(f"s_mul_i32 s63, s63, {28 * XS}")
    e("s_add_u32 s60, s60, s63")


def xa():
    xload(OPT["na"])
    e(f"s_add_u32 s60, s60, {OPT['na'] * XS}")


def xb_init(which):
    xw_base()
    e(f"s_add_u32 s60, s60, {which * OPT['nb'] * XS}")
    e("s_add_u32 s62, s62, s60")


XBN = [0, 0]


def xw(n, which):
    nb = OPT["nb"]
    if n < OPT["xb0"] or XBN[which] * 2 * nb >= 168:
        return
    XBN[which] += 1
    e("s_cmp_ge_u32 s60, s62")
    e(f"s_cselect_b32 s63, {56 * XS}, 0")
    e("s_cselect_b32 s62, -1, s62")
    e("s_add_u32 s60, s60, s63")
    xload(nb)
    e(f"s_add_u32 s60, s60, {2 * nb * XS}")


def rot_offsets(shift, add):
    for k in range(8):
        e(f"s_add_u32 s{48 + k}, s{sCB}, {k}")
        e(f"s_and_b32 s{48 + k}, s{48 + k}, 7")
        e(f"s_lshl_b32 s{48 + k}, s{48 + k}, {shift}")
        e(f"s_add_u32 s{48 + k}, s{48 + k}, {add}")


def l01wave():
    vX0, vX1, vW, vWD, vZ, vW1 = 2, 3, 4, 5, 9, 12
    sLW, sXa, sXb, sWo, sS0, sS1, sR4, sT, sCnt, sWd = 64, 65, 66, 67, 68, 69, 70, 71, 72, 73
    section("A2")
    lab("L01WAVE")
    cm("================ L0/L1: DMA waves ================")
    if OPT.get("dp"):
        e(f"s_setprio {OPT['dp']}")
    e(f"s_sub_u32 s{sLW}, s{sWAVE}, 4")
    e("v_lshrrev_b32 v6, 3, v0")
    e(f"v_lshlrev_b32 v{vX0}, 16, v6")
    e("v_lshrrev_b32 v6, 1, v6")
    e("v_and_b32 v7, 7, v0")
    e("v_xor_b32 v6, v6, v7")
    e(f"v_lshl_add_u32 v{vX0}, v6, 4, v{vX0}")
    e(f"v_xor_b32 v{vX1}, 64, v{vX0}")
    e("v_lshrrev_b32 v6, 4, v0")
    e(f"v_mul_lo_u32 v{vW}, v6, s{sRS}")
    e("v_bfe_u32 v7, v0, 2, 2")
    e("v_xor_b32 v7, v7, v6")
    e("v_lshlrev_b32 v7, 2, v7")
    e("v_and_b32 v8, 3, v0")
    e("v_or_b32 v7, v7, v8")
    e(f"v_lshl_add_u32 v{vW}, v7, 4, v{vW}")
    e("v_xor_b32 v7, 2, v7")
    e(f"v_mul_lo_u32 v{vW1}, v6, s{sRS}")
    e(f"v_lshl_add_u32 v{vW1}, v7, 4, v{vW1}")
    e(f"s_lshl_b32 s{sXa}, s{sI}, 1")
    e(f"s_add_u32 s{sXa}, s{sXa}, s{sLW}")
    e(f"s_lshl_b32 s{sXa}, s{sXa}, 10")
    e(f"s_add_u32 s{sXb}, s{sXa}, {32 * 1024}")
    e(f"s_mov_b32 s{sWo}, s{sCOL}")
    e(f"s_lshl_b32 s{sR4}, s{sRS}, 2")
    e(f"s_lshl_b32 s74, s{sLW}, 10")
    e(f"s_lshl_b32 s77, s{sLW}, 12")

    def wpieces(base_sgpr, imm):
        e(f"s_add_u32 s{sT}, s{base_sgpr}, s74")
        e(f"s_add_u32 m0, s{sT}, {imm}")
        e("s_nop 0")
        for k in range(8):
            if not (OPT.get("nodma", 0) & 1 and CUR[1]):
                e(f"buffer_load_dwordx4 v{vW1 if (k & 2) and OPT['m16'] else vW}, {srd(SRD_WM)}, s{sWo} offen lds")
            if k < 7:
                e("s_add_u32 m0, m0, 2048")
            e(f"s_add_u32 s{sWo}, s{sWo}, s{sR4}")

    def xpieces(base_sgpr, half):
        sx = sXb if half else sXa
        e(f"s_add_u32 s{sT}, s{base_sgpr}, s77")
        e(f"s_add_u32 m0, s{sT}, {32768 + half * 8192}")
        e(f"s_mov_b32 s{sT}, s{sx}")
        for k in range(4):
            if not (OPT.get("nodma", 0) & 2 and CUR[1]):
                e(f"buffer_load_dwordx4 v{vX1 if k & 1 else vX0}, {srd(SRD_X)}, s{sT} offen lds")
            if k < 3:
                e("s_add_u32 m0, m0, 1024")
                e(f"s_add_u32 s{sT}, s{sT}, 0x80000")
        e(f"s_add_u32 s{sx}, s{sx}, 128")

    e(f"s_mov_b32 s{sS0}, {SLOT}")
    e(f"s_mov_b32 s{sS1}, {2 * SLOT}")
    e("s_waitcnt lgkmcnt(0)")
    cm("G0 = x0 + W0 ; G1 = W1 + x1a")
    xpieces(sS0, 0)
    wm_select(f"s_cmp_eq_u32 s{sLW}, 1")
    wpieces(sS0, 0)
    xpieces(sS0, 1)
    if OPT["bs"]:
        bar("BS")
    wpieces(sS0, 16384)
    xpieces(sS1, 0)
    ids2()
    xa_init()
    wd_voffset(vWD, 6)
    e(f"s_lshl_b32 s{sT}, s{sCB}, 7")
    rot_offsets(15, f"s{sT}")
    e("v_min_u32 v10, 13, v0")
    e("v_lshlrev_b32 v10, 7, v10")
    e(f"s_lshr_b32 s61, s{sT1}, 1")
    e("s_lshl_b32 s61, s61, 11")
    e(f"s_add_u32 s61, s61, {FLH}")
    e(f"s_cmp_eq_u32 s{sLW}, 0")
    e(f"s_cselect_b32 s61, s61, {OOB:#x}")
    e("v_lshlrev_b32 v13, 4, v0")
    e(f"s_lshl_b32 s56, s{sJ}, 13")
    e("s_add_u32 s56, s56, s74")
    e(f"s_add_u32 s56, s56, {CS_OFF}")
    e("s_add_u32 s57, s56, 4096")
    e(f"s_lshl_b32 s62, s{sI}, 11")
    e("s_add_u32 s62, s62, s74")
    e(f"s_add_u32 s62, s62, {ST_OFF}")
    e(f"s_lshl_b32 s63, s{sLW}, 9")
    e(f"s_add_u32 s63, s63, {CSL}")
    e("v_lshl_add_u32 v45, v0, 3, s63")
    e(f"s_lshl_b32 s63, s{sLW}, 8")
    e(f"s_add_u32 s63, s63, {RL}")
    e("v_lshl_add_u32 v46, v0, 2, s63")
    e(f"s_mov_b32 s{sS0}, {2 * SLOT}")
    e(f"s_mov_b32 s{sS1}, 0")
    e(f"s_mov_b32 s{sCnt}, 6")
    e("s_waitcnt vmcnt(12)")
    stamp(1)
    bar("B0")
    lab("L01LOOP")
    CUR[1] = True
    wpieces(sS0, 0)
    xpieces(sS0, 1)
    A0 = OPT["xa0"]
    NA = -(-28 // OPT["na"])
    ev = [n for n in range(0, 12, 2) if A0 <= n < A0 + NA]
    od = [n for n in range(1, 12, 2) if A0 <= n < A0 + NA]
    e(f"s_sub_u32 s63, {6 - ev[0] // 2}, s{sCnt}")
    e(f"s_cmp_ge_u32 s63, {len(ev)}")
    e("s_cbranch_scc1 L01X0")
    xa()
    lab("L01X0")
    e("s_waitcnt vmcnt(12)")
    bar("B(2s+1)")
    wpieces(sS0, 16384)
    xpieces(sS1, 0)
    e(f"s_sub_u32 s63, {6 - od[0] // 2}, s{sCnt}")
    e(f"s_cmp_ge_u32 s63, {len(od)}")
    e("s_cbranch_scc1 L01X1")
    xa()
    lab("L01X1")
    e(f"s_mov_b32 s{sS0}, s{sS1}")
    e(f"s_add_u32 s{sS1}, s{sS1}, {SLOT}")
    e(f"s_cmp_eq_u32 s{sS1}, {3 * SLOT}")
    e(f"s_cselect_b32 s{sS1}, 0, s{sS1}")
    e(f"s_sub_u32 s{sCnt}, s{sCnt}, 1")
    e(f"s_cmp_lg_u32 s{sCnt}, 0")
    e("s_waitcnt vmcnt(12)")
    bar("B(2s+2)")
    e("s_cbranch_scc1 L01LOOP")
    wpieces(sS0, 0)
    xpieces(sS0, 1)
    e(f"v_mov_b32 v7, {TAGL}")
    e("ds_read_b32 v8, v7")
    e("s_waitcnt vmcnt(12)")
    bar("B13")
    wpieces(sS0, 16384)

    def gets():
        cm("statistics of the other workgroups: column sums (128 columns x 4 partial sums) and 64 rows per wave")
        for k in range(4):
            e(f"buffer_load_dwordx4 {vr(16 + 4 * k, 4)}, v13, {srd(SRD_WS)}, {'s57' if k >= 2 else 's56'} offen offset:{2048 * (k & 1)} sc1")
        e(f"buffer_load_dwordx4 v[32:35], v13, {srd(SRD_WS)}, s62 offen sc1")

    gets()
    e(f"s_lshl_b32 s{sWd}, s{sLW}, 14")
    e(f"s_lshl_b32 m0, s{sLW}, 11")

    def units(a, b, th=0):
        for v in range(a, b):
            if v and v & 7 == 0:
                e(f"s_add_u32 s{sWd}, s{sWd}, 262144")
            e(f"s_add_u32 s{sT}, s{sWd}, s{48 + (v & 7)}")
            if v < NRES:
                e(f"buffer_load_dwordx4 v{vWD}, {srd(SRD_WD)}, s{sT} offen lds")
                e("s_add_u32 m0, m0, 1024")
            else:
                e(f"buffer_load_dwordx4 {vr(ST0 + 8 * (v - NRES), 4)}, v{vWD}, {srd(SRD_WD)}, s{sT} offen")
            e(f"s_add_u32 s{sT}, s{sT}, 8192")
            if v < NRES:
                e(f"buffer_load_dwordx4 v{vWD}, {srd(SRD_WD)}, s{sT} offen lds")
            else:
                e(f"buffer_load_dwordx4 {vr(ST0 + 8 * (v - NRES) + 4, 4)}, v{vWD}, {srd(SRD_WD)}, s{sT} offen")
            if v + 1 < NRES:
                e(f"s_add_u32 m0, m0, {(wslot(v + 1) - wslot(v)) * 4096 - 1024}")
            if th:
                e(f"s_waitcnt vmcnt({th})")

    ST0 = 64
    U1, U2 = OPT["u1"], OPT["u2"]
    units(0, U1)
    e("s_waitcnt lgkmcnt(0)")
    e(f"v_readfirstlane_b32 s{sTAG}, v8")
    e(f"s_waitcnt vmcnt({8 + 5 + 2 * U1})")
    bar("B14")
    units(U1, U2)
    e(f"s_waitcnt vmcnt({5 + 2 * U2})")
    bar("B15")
    e(f"s_mov_b32 s75, {OPT['spin']}")
    e(f"s_waitcnt vmcnt({2 * U2})")
    lab("GCHK")
    for k in range(8):
        e(f"v_xor_b32 v{36 + k}, s{sTAG}, v{17 + 2 * k}")
    e(f"v_xor_b32 v44, s{sTAG}, v35")
    for k in range(4):
        e(f"v_or3_b32 v44, v44, v{36 + 2 * k}, v{37 + 2 * k}")
    e("v_cmp_ne_u32 vcc, 0, v44")
    e("v_add_f32 v36, v16, v20")
    e("v_add_f32 v37, v18, v22")
    e("s_cmp_eq_u64 vcc, 0")
    e("s_cbranch_scc1 GOK")
    e("s_sleep 2")
    gets()
    e("s_sub_u32 s75, s75, 1")
    e("s_cmp_lg_u32 s75, 0")
    e("s_waitcnt vmcnt(0)")
    e("s_cbranch_scc1 GCHK")
    lab("GOK")
    e("v_add_f32 v38, v24, v28")
    e("v_add_f32 v39, v26, v30")
    e("v_add_f32 v36, v36, v38")
    e("v_add_f32 v37, v37, v39")
    e("ds_write_b64 v45, v[36:37]")
    e(f"ds_write_b64 v45, v[32:33] offset:{MRP - CSL}")
    e("ds_write_b32 v46, v33")
    if not OPT["nocs"]:
        e("v_mul_f32 v38, v32, v33")
        e("v_xor_b32 v38, 0x80000000, v38")
        e("ds_write_b32 v46, v38 offset:512")
    e("s_waitcnt lgkmcnt(0)")
    stamp(2)
    bar("B16")
    TR = OPT["trk"]
    units(U2, TR, OPT["th"])
    e(f"s_cmp_eq_u32 s{sDFT}, 1")
    e("s_cbranch_scc1 L01GO")
    wait_c_done()
    lab("L01GO")
    stamp(3)
    PA = OPT["pa"]
    units(TR, PA)
    e(f"s_cmp_eq_u32 s{sDFT}, 0")
    e("s_cbranch_scc1 L01GO2")
    wait_c_done()
    lab("L01GO2")
    cm("L0 waits for the 14 producers of row block t1>>1 (queued behind the w_down loads)")
    poll_issue(11, 10, "s61", SRD_WS)
    units(PA, 56)
    e("v_and_b32 v6, 3, v0")
    e("v_bfe_u32 v7, v0, 3, 2")
    e("v_lshl_add_u32 v6, v7, 2, v6")
    e("v_bfe_u32 v7, v0, 2, 1")
    e("v_lshl_add_u32 v6, v7, 4, v6")
    e("v_and_b32 v7, 32, v0")
    e(f"s_lshl_b32 s66, s{sCB}, 6")
    e("v_add3_u32 v6, v6, v7, s66")
    e("v_sub_u32 v7, 512, v6")
    e("v_and_b32 v7, 255, v7")
    e(f"s_sub_u32 s67, 32, s{sT1}")
    e("s_and_b32 s67, s67, 31")
    e(f"s_cmp_ge_u32 s{sCB}, 4")
    e("s_cselect_b64 s[68:69], -1, 0")
    e(f"s_cselect_b32 s67, s67, s{sT1}")
    e("v_cmp_eq_u32 vcc, 0, v6")
    e("v_cndmask_b32 v7, v6, v7, s[68:69]")
    e(f"v_lshlrev_b32 v{vZ}, 4, v7")
    e(f"v_mov_b32 v7, {OOB:#x}")
    e("s_lshl_b32 s67, s67, 16")
    e(f"v_cndmask_b32 v{vZ}, v{vZ}, v7, vcc")
    e(f"s_lshl_b32 s66, s{sLW}, 15")
    e("s_add_u32 s67, s67, s66")
    e(f"s_add_u32 s67, s67, {Z_OFF}")
    e(f"s_lshl_b32 s66, s{sLW}, 13")
    e(f"s_add_u32 m0, s66, {ZL}")
    e("v_bfe_u32 v12, v0, 1, 4")
    e("v_lshlrev_b32 v12, 4, v12")
    e("v_and_b32 v13, 1, v0")
    e("v_add3_u32 v12, v12, v13, 14")
    e("v_lshlrev_b32 v12, 7, v12")
    e(f"s_mov_b32 s70, {FLH}")
    e(f"s_lshl_b32 s66, s{sLW}, 11")
    e("v_lshl_add_u32 v6, v0, 4, s66")
    e(f"s_cmp_eq_u32 s{sLW}, 1")
    e(f"s_cselect_b32 s70, s70, {OOB:#x}")
    e("s_cbranch_scc1 L1NOPOLL")
    poll_wait(11, 10, "s61", SRD_WS, first_wait=2 * (56 - PA))
    lab("L1NOPOLL")
    e(f"s_waitcnt vmcnt({2 * min(NST, 56 - PA)})")
    stamp(4)
    bar("BW")
    e("s_waitcnt vmcnt(0)")
    bar("BP1")
    poll_issue(11, 12, "s70", SRD_WS)
    for k in range(2 * NST):
        if k == 32:
            e("v_add_u32 v6, 0x10000, v6")
        e(f"ds_write_b128 v6, {vr(ST0 + 4 * k, 4)} offset:{((k >> 1) * 4096 + (k & 1) * 1024) & 0xFFFF}")
    e("s_waitcnt lgkmcnt(0)")
    bar("BP2")
    e(f"s_cmp_eq_u32 s{sLW}, 0")
    e("s_cbranch_scc1 L0NOPOLL")
    poll_wait(11, 12, "s70", SRD_WS)
    lab("L0NOPOLL")
    stamp(5)
    bar("BZ0")
    for g in range(8):
        e(f"buffer_load_dwordx4 v{vZ}, {srd(SRD_WS)}, s67 offen sc1 lds")
        e("s_add_u32 m0, m0, 1024")
        e("s_add_u32 s67, s67, 4096")
    e("s_waitcnt vmcnt(0)")
    stamp(6)
    bar("BR")
    stamp_flush(7, 14, False)
    e("s_endpgm")


def l23_tail(which):
    xb_init(which)
    xw(8, which)
    for n in range(9, OPT["xe"] + 1):
        bar(f"B{n}")
        xw(n, which)
    for n in range(OPT["xt"]):
        xw(20, which)


def l2wave():
    vC = 8
    vm = Q()
    section("A")
    e("s_branch L01WAVE")
    lab("L2WAVE")
    cm("================ L2: column sums (64 columns x rows 64s + 16kq + 0..15) ================")
    e("v_lshrrev_b32 v18, 3, v0")
    e("v_and_b32 v19, 7, v0")
    e(f"v_mul_lo_u32 v{vC}, v18, s{sRS}")
    e(f"v_lshl_add_u32 v{vC}, v19, 4, v{vC}")
    e(f"s_lshr_b32 s64, s{sI}, 2")
    e("s_lshl_b32 s64, s64, 4")
    e(f"s_mul_i32 s69, s64, s{sRS}")
    e(f"s_and_b32 s64, s{sI}, 1")
    e("s_lshl_b32 s64, s64, 7")
    e("s_add_u32 s69, s69, s64")
    e(f"s_add_u32 s69, s69, s{sCOL}")
    e(f"s_lshl_b32 s70, s{sRS}, 3")
    e(f"s_mul_i32 s72, s{sRS}, 56")
    if OPT["sord"]:
        e("s_add_u32 s69, s69, s70")
        e("s_add_u32 s69, s69, s72")
    e("s_waitcnt lgkmcnt(0)")
    wm_select(f"s_bitcmp1_b32 s{sI}, 1")
    LD, AC = 32, 16

    def csload(y):
        vm.add(("c", y), f"buffer_load_dwordx4 {vr(LD + 4 * y, 4)}, v{vC}, {srd(SRD_WM)}, s69 offen")
        e(f"s_add_u32 s69, s69, {'s72' if y & 1 else 's70'}")
        if OPT["sord"] and y == 13:
            e("s_sub_u32 s69, s69, s34")

    def csproc(y):
        for d in range(4):
            r = LD + 4 * y + d
            if y == 0:
                e(f"v_lshlrev_b32 v{AC + 2 * d}, 16, v{r}")
                e(f"v_and_b32 v{AC + 2 * d + 1}, v9, v{r}")
            else:
                e(f"v_lshlrev_b32 v10, 16, v{r}")
                e(f"v_and_b32 v11, v9, v{r}")
                e(f"v_add_f32 v{AC + 2 * d}, v{AC + 2 * d}, v10")
                e(f"v_add_f32 v{AC + 2 * d + 1}, v{AC + 2 * d + 1}, v11")

    for y in range(2 * OPT["pre"]):
        csload(y)
    if OPT["bs"]:
        bar("BS")
        for y in range(2 * OPT["pre"], 2 * OPT["bs"]):
            csload(y)
    e("s_branch L2REST")
    section("L2")
    lab("L2REST")
    if OPT.get("lp0"):
        e(f"s_setprio {OPT['lp0']}")
    ids2()
    e("v_mov_b32 v9, 0xffff0000")
    stamp(1)
    issued, done = 2 * max(OPT["pre"], OPT["bs"]), 0
    for n in range(8):
        bar(f"B{n}")
        while issued < 16 and n >= OPT["preb"]:
            csload(issued)
            issued += 1
        if n >= 2:
            k = min(done + 3, 16)
            e(f"s_waitcnt vmcnt({vm.younger(('c', k - 1))})")
            for y in range(done, k):
                csproc(y)
            done = k
    assert done == 16 and issued == 16
    bar("B8")
    e(f"v_mov_b32 v12, {TAGL}")
    e("ds_read_b32 v25, v12")
    for k in range(4):
        e(f"v_permlane32_swap_b32 v{AC + k}, v{AC + k + 4}")
    e("s_nop 1")
    for k in range(4):
        e(f"v_add_f32 v{AC + k}, v{AC + k}, v{AC + k + 4}")
    e("s_nop 1")
    for k in range(2):
        e(f"v_permlane16_swap_b32 v{AC + k}, v{AC + k + 2}")
    e("s_nop 1")
    for k in range(2):
        e(f"v_add_f32 v{AC + k}, v{AC + k}, v{AC + k + 2}")
    e("v_and_b32 v10, 7, v0")
    e("v_lshlrev_b32 v10, 3, v10")
    e(f"v_add_f32_dpp v24, v{AC}, v{AC} row_ror:8 row_mask:0xf bank_mask:0x3")
    e(f"v_add_f32_dpp v24, v{AC + 1}, v{AC + 1} row_ror:8 row_mask:0xf bank_mask:0xc")
    e("v_bfe_u32 v11, v0, 5, 1")
    e("v_lshl_add_u32 v10, v11, 2, v10")
    e("v_bfe_u32 v11, v0, 4, 1")
    e("v_lshl_add_u32 v10, v11, 1, v10")
    e("v_bfe_u32 v11, v0, 3, 1")
    e("v_add_u32 v10, v11, v10")
    e("v_lshlrev_b32 v10, 3, v10")
    e(f"s_lshl_b32 s64, s{sJ}, 13")
    e(f"s_add_u32 s64, s64, {CS_OFF}")
    e(f"s_lshl_b32 s65, s{sI}, 9")
    e("s_add_u32 s65, s64, s65")
    e("s_waitcnt lgkmcnt(0)")
    vm.add("pub", f"buffer_store_dwordx2 v[24:25], v10, {srd(SRD_WS)}, s65 offen sc1")
    stamp(2)
    l23_tail(0)
    stamp_flush(3, 26, False)
    e("s_endpgm")


def l3wave():
    vm = Q()
    section("A")
    lab("L3WAVE")
    cm("================ L3: launch tag, row statistics (rows 8j..8j+7 of the row block), hand-off waits ================")
    e(f"s_bfe_u32 s64, s{sJ}, 0x10002")
    e(f"s_bfe_u32 s65, s{sJ}, 0x10003")
    e("s_lshl_b32 s65, s65, 5")
    e(f"s_lshl_b32 s66, s{sI}, 1")
    e("s_add_u32 s64, s64, s65")
    e("s_add_u32 s64, s64, s66")
    e(f"s_and_b32 s65, s{sJ}, 3")
    e("s_lshl_b32 s65, s65, 9")
    e("s_add_u32 s64, s64, s65")
    e("s_lshl_b32 s64, s64, 10")
    e("v_lshrrev_b32 v4, 3, v0")
    e("v_and_b32 v14, 7, v0")
    e("v_lshlrev_b32 v6, 16, v4")
    e("v_lshl_add_u32 v6, v14, 4, v6")
    e("s_memrealtime s[66:67]")
    e("s_waitcnt lgkmcnt(0)")
    LD, UP = 16, 48

    def rowload(y):
        vm.add(("r", y), f"buffer_load_dwordx4 {vr(LD + 4 * y, 4)}, v6, {srd(SRD_X)}, s64 offen offset:{128 * ((y + OPT['sord']) & 7)}")

    for y in range(OPT["pre"]):
        rowload(y)
    if OPT["bs"]:
        bar("BS")
        for y in range(OPT["pre"], OPT["bs"]):
            rowload(y)
    e("s_branch L3REST")
    section("L3")
    lab("L3REST")
    if OPT.get("lp0"):
        e(f"s_setprio {OPT['lp0']}")
    ids2()
    e("v_mov_b32 v2, 0")
    e("s_or_b32 s66, s66, 1")
    e("v_mov_b32 v3, s66")
    e("s_cmp_eq_u32 s2, 0")
    e(f"s_cselect_b32 s66, 0, {OOB:#x}")
    vm.add("tag", f"buffer_store_dword v3, v2, {srd(SRD_DBG)}, s66 offen sc1")
    e("v_mov_b32 v9, 0xffff0000")

    def unp(d):
        e(f"v_lshlrev_b32 v{UP + 2 * d}, 16, v{LD + d}")
        e(f"v_and_b32 v{UP + 2 * d + 1}, v9, v{LD + d}")
        if d == 0:
            e(f"v_mov_b32 v10, v{UP}")
            e(f"v_mov_b32 v11, v{UP + 1}")
        else:
            e(f"v_add_f32 v10, v10, v{UP + 2 * d}")
            e(f"v_add_f32 v11, v11, v{UP + 2 * d + 1}")

    def red8(r):
        e("s_nop 1")
        e(f"v_add_f32_dpp v{r}, v{r}, v{r} quad_perm:[1,0,3,2] row_mask:0xf bank_mask:0xf")
        e("s_nop 1")
        e(f"v_add_f32_dpp v{r}, v{r}, v{r} quad_perm:[2,3,0,1] row_mask:0xf bank_mask:0xf")
        e("s_nop 1")
        e(f"v_add_f32_dpp v{r}, v{r}, v{r} row_half_mirror row_mask:0xf bank_mask:0xf")

    def var(k):
        e(f"v_sub_f32 v{UP + k}, v{UP + k}, v10")
        e(f"v_fmac_f32 v{12 + (k & 1)}, v{UP + k}, v{UP + k}")

    issued, done = max(OPT["pre"], OPT["bs"]), 0
    for n in range(6):
        bar(f"B{n}")
        while issued < 8 and n >= OPT["preb"]:
            rowload(issued)
            issued += 1
        if n == 5:
            vm.add("np")
            poll_issue(3, 2, "0", SRD_DBG)
        if n >= 2:
            k = min(done + 2, 8)
            e(f"s_waitcnt vmcnt({vm.younger(('r', k - 1))})")
            for d in range(4 * done, 4 * k):
                unp(d)
            done = k
    assert done == 8 and issued == 8
    e("v_add_f32 v10, v10, v11")
    red8(10)
    e(f"v_mul_f32 v10, {f2u(1.0 / 512):#x}, v10")
    e("v_mov_b32 v12, 0")
    e("v_mov_b32 v13, 0")
    bar("B6")
    for k in range(24):
        var(k)
    bar("B7")
    poll_wait(3, 2, "0", SRD_DBG, cond_tag=False, first_wait=vm.younger("np"))
    e(f"v_mov_b32 v15, {TAGL}")
    e("ds_write_b32 v15, v3")
    e("ds_write_b32 v15, v2 offset:4")
    e("ds_write_b32 v15, v2 offset:8")
    e(f"v_readfirstlane_b32 s{sTAG}, v3")
    for k in range(24, 44):
        var(k)
    e("s_waitcnt lgkmcnt(0)")
    bar("B8")
    for k in range(44, 64):
        var(k)
    e("v_add_f32 v12, v12, v13")
    red8(12)
    e(f"v_mul_f32 v12, {f2u(1.0 / 512):#x}, v12")
    cm("roundings as in the reference: m=bf(mean); sd=bf(sqrt(bf(bf(var)+eps))); r=1/sd")
    e("v_cvt_pk_bf16_f32 v15, v10, v12")
    e("v_lshlrev_b32 v16, 16, v15")
    e("v_and_b32 v12, v9, v15")
    e(f"v_add_f32 v12, {f2u(1e-5):#x}, v12")
    e("v_cvt_pk_bf16_f32 v12, v12, v12")
    e("v_and_b32 v12, v9, v12")
    e("v_sqrt_f32 v12, v12")
    e("v_cmp_eq_u32 vcc, 0, v14")
    e("v_cvt_pk_bf16_f32 v12, v12, v12")
    e("v_and_b32 v12, v9, v12")
    e("v_rcp_f32 v17, v12")
    e("v_lshlrev_b32 v14, 4, v4")
    e(f"v_mov_b32 v15, {OOB:#x}")
    e(f"s_lshl_b32 s64, s{sI}, 11")
    e(f"s_add_u32 s64, s64, {ST_OFF}")
    e("v_cndmask_b32 v14, v15, v14, vcc")
    e("v_mov_b32 v18, v3")
    e("v_mov_b32 v19, v3")
    e(f"s_lshl_b32 s65, s{sJ}, 7")
    e("s_add_u32 s65, s64, s65")
    vm.add("pub", f"buffer_store_dwordx4 v[16:19], v14, {srd(SRD_WS)}, s65 offen sc1")
    stamp(1)
    l23_tail(1)
    stamp_flush(2, 26, False)
    e("s_endpgm")


XF = [[64 + 4 * q for q in range(4)], [80 + 4 * q for q in range(4)]]
WF = [[96, 100], [104, 108]]
XA = [112, 113, 114, 115]
WA = 116
vPM = 118
CG, CU, MR = 0, 16, 32
vA_CS, vA_MR, vA_TAG = 45, 46, 116 if OPT['m16'] else 47
R0, N0 = 64, 80
vD_CS, vD_R, vD_TAG = 122, 123, 124
sXO, sRO, sFLG, sOUT, sC0, sP, sKH = 56, 60, 61, 62, 63, 73, 74


def ACC(mat, q):
    return 128 + 32 * q + 16 * mat


def TW(q, cs, z):
    return 16 * q + 8 * cs + 4 * z


def frag_reads(u, st):
    r = []
    for mat in range(2):
        for a in range(2):
            r.append(f"ds_read_b64_tr_b16 {vr(WF[st][mat] + 2 * a, 2)}, v{WA} offset:{u * 8192 + a * 2048 + mat * 1024}")
    for q in range(4):
        r.append(f"ds_read_b128 {vr(XF[st][q], 4)}, v{XA[u]} offset:{q * 4096}")
    return r


def glu_stat_reads():
    r = [f"ds_read_b64 {vr(MR + 2 * q, 2)}, v{vA_MR} offset:{256 * q}" for q in range(4)]
    r += [f"ds_read_b128 {vr(CG + 4 * a, 4)}, v{vA_CS} offset:{32 * a}" for a in range(4)]
    r += [f"ds_read_b128 {vr(CU + 4 * a, 4)}, v{vA_CS} offset:{512 + 32 * a}" for a in range(4)]
    r += [f"ds_read_b32 v43, v{vA_TAG}"]
    return r


def dft_stat_reads():
    return [f"ds_read_b32 v118, v{vD_CS}", f"ds_read_b32 v119, v{vD_CS} offset:512", f"ds_read_b32 v{vD_TAG}, v{vD_TAG}"] + \
           [f"ds_read_b128 {vr(R0 + 4 * a, 4)}, v{vD_R} offset:{32 * a}" for a in range(4)]


def mainloop(dft):
    sCnt, sDelta, sCur = 64, 65, 66
    tag = "D" if dft else "G"
    es(frag_reads(0, 0))
    e(f"s_mov_b32 s{sCnt}, 8")
    e(f"s_mov_b32 s{sCur}, {SLOT}")
    e(f"s_mov_b32 s67, {(-2 * SLOT) & 0xffffffff:#x}")

    def step(u, last):
        st = u & 1
        mf = []
        for mat in ((1, 0) if dft else (0, 1)):
            for q in range(4):
                a, b = (XF[st][q], WF[st][mat]) if dft else (WF[st][mat], XF[st][q])
                mf.append(f"v_mfma_f32_32x32x16_bf16 {vr(ACC(mat, q), 16)}, {vr(a, 4)}, {vr(b, 4)}, {vr(ACC(mat, q), 16)}")
        rd = frag_reads((u + 1) & 3, st ^ 1)
        gaps = [[] for _ in range(8)]
        if u == 3 and not last:
            gaps[0] += [f"v_add_u32 v{WA}, s{sDelta}, v{WA}", f"v_add_u32 v{XA[0]}, s{sDelta}, v{XA[0]}"]
            gaps[5] += [f"v_add_u32 v{XA[1]}, s{sDelta}, v{XA[1]}"]
            gaps[6] += [f"v_add_u32 v{XA[2]}, s{sDelta}, v{XA[2]}", f"v_add_u32 v{XA[3]}, s{sDelta}, v{XA[3]}"]
        if PROF and u in (0, 2):
            gaps[0] += ["s_memtime s[70:71]"]
        if PROF and u in (1, 3):
            gaps[5] += [f"s_lshl_b32 s72, s{sCnt}, 1", f"s_sub_u32 m0, {16 if u == 1 else 15}, s72", f"v_writelane_b32 v{vLOOPST}, s70, m0"]
        if u == 2:
            gaps[5] += [f"s_cmp_eq_u32 s{sCur}, {2 * SLOT}", f"s_cselect_b32 s{sDelta}, s67, {SLOT}"]
            gaps[6] += [f"s_add_u32 s{sCur}, s{sCur}, s{sDelta}", f"s_sub_u32 s{sCnt}, s{sCnt}, 1"]
            gaps[7] += [f"s_cmp_eq_u32 s{sCnt}, 0"]
        if u & 1:
            gaps[0] += ["s_barrier"]
        if dft:
            gaps[0] = [f"v_cndmask_b32 v{WF[st][0] + k}, v{WF[st][0] + k}, v{vPM}, s[68:69]" for k in range(2)] + gaps[0]
            gaps[1] += [f"v_cndmask_b32 v{WF[st][0] + k}, v{WF[st][0] + k}, v{vPM}, s[68:69]" for k in range(2, 4)]
        if last:
            extra = dft_stat_reads() if dft else glu_stat_reads()
            for k, x in enumerate(extra):
                gaps[2 + min(k // 3, 4)].append(x)
        else:
            for k in range(4):
                gaps[k + (1 if (u & 1) else 0)] += rd[2 * k:2 * k + 2]
        e("s_waitcnt lgkmcnt(0)")
        for k in range(8):
            e(mf[k])
            es(gaps[k])

    raw(".p2align 3")
    lab(f"MAIN{tag}")
    for u in range(3):
        step(u, False)
    e(f"s_cbranch_scc1 LAST{tag}")
    step(3, False)
    e(f"s_branch MAIN{tag}")
    lab(f"LAST{tag}")
    step(3, True)


X16 = [4 * k for k in range(8)]
W16 = [[64 + 4 * n for n in range(4)], [80 + 4 * n for n in range(4)]]
XA16, WA16 = [112, 113], [114, 115]
MR16, CG16, CU16, TG16 = 32, 48, 56, 96
vB_CS, vB_MR = 119, 120


def A16(sg, n):
    return 128 + 16 * sg + 4 * n


def mainloop16():
    sCnt, sDelta, sCur = 64, 65, 66
    lq = Q()
    gen = [0]

    def rdx(sg, h):
        lq.add(("x", sg), f"ds_read_b128 {vr(X16[sg], 4)}, v{XA16[h]} offset:{sg * 2048}")

    def rdw(n, a, h):
        lq.add(("w", n, a), f"ds_read_b64_tr_b16 {vr(W16[h][n] + 2 * a, 2)}, v{WA16[n & 1]} offset:{h * 16384 + a * 2048 + (n >> 1) * 1024}")

    def wait(tag):
        idx = max(i for i, t in enumerate(lq.l) if t == tag)
        n = len(lq.l) - 1 - idx
        if n < gen[0]:
            e(f"s_waitcnt lgkmcnt({n})")
            gen[0] = n

    def second_half_reads(h):
        return [lambda: rdw(0, 0, h), lambda: rdw(0, 1, h), lambda: rdx(0, h), lambda: rdw(1, 0, h), lambda: rdw(1, 1, h),
                lambda: rdw(2, 0, h), lambda: rdw(2, 1, h), lambda: rdw(3, 0, h), lambda: rdw(3, 1, h),
                lambda: rdx(1, h), lambda: rdx(2, h), lambda: rdx(3, h)]

    def issue(f):
        f()
        gen[0] += 1

    for f in second_half_reads(0):
        issue(f)
    e(f"s_mov_b32 s{sCnt}, 8")
    e(f"s_mov_b32 s{sCur}, {SLOT}")
    e(f"s_mov_b32 s67, {(-2 * SLOT) & 0xffffffff:#x}")

    def step(h, last):
        gen[0] = 15
        gaps = [[] for _ in range(32)]
        for k, sg in enumerate((4, 5, 6, 7)):
            gaps[1 + 2 * k].append(lambda sg=sg: rdx(sg, h))
        txt = [[] for _ in range(32)]
        if h == 0:
            txt[9] += [f"s_cmp_eq_u32 s{sCur}, {2 * SLOT}", f"s_cselect_b32 s{sDelta}, s67, {SLOT}"]
            txt[10] += [f"s_add_u32 s{sCur}, s{sCur}, s{sDelta}", f"s_sub_u32 s{sCnt}, s{sCnt}, 1"]
            txt[31] += [f"s_cmp_eq_u32 s{sCnt}, 0"]
        elif not last:
            txt[9] += [f"v_add_u32 v{XA16[0]}, s{sDelta}, v{XA16[0]}", f"v_add_u32 v{XA16[1]}, s{sDelta}, v{XA16[1]}"]
            txt[10] += [f"v_add_u32 v{WA16[0]}, s{sDelta}, v{WA16[0]}", f"v_add_u32 v{WA16[1]}, s{sDelta}, v{WA16[1]}"]
        if PROF:
            txt[11] += ["s_memtime s[70:71]"]
            txt[29] += [f"s_lshl_b32 s72, s{sCnt}, 1", f"s_sub_u32 m0, {14 + h}, s72"]
            txt[30] += [f"v_writelane_b32 v{vLOOPST}, s70, m0"]
        if last:
            st = [f"ds_read_b64 {vr(MR16 + 2 * sg, 2)}, v{vB_MR} offset:{128 * sg}" for sg in range(8)]
            st += [f"ds_read_b128 {vr(CG16 + 4 * n, 4)}, v{vB_CS} offset:{64 * n}" for n in range(2)]
            st += [f"ds_read_b128 {vr(CU16 + 4 * n, 4)}, v{vB_CS} offset:{512 + 64 * n}" for n in range(2)]
            st += [f"ds_read_b32 v{TG16}, v{vA_TAG}"]
            for k, x in enumerate(st):
                txt[17 + k].append(x)
        else:
            for k, f in enumerate(second_half_reads(h ^ 1)):
                gaps[17 + k].append(f)
        for m in range(32):
            sg, n = m >> 2, m & 3
            if sg == 0:
                wait(("w", n, 1))
            if n == 0:
                wait(("x", 7 if sg == 4 else sg))
            e(f"v_mfma_f32_16x16x32_bf16 {vr(A16(sg, n), 4)}, {vr(W16[h][n], 4)}, {vr(X16[sg], 4)}, {vr(A16(sg, n), 4)}")
            if m == 16:
                bar()
            for f in gaps[m]:
                issue(f)
            es(txt[m])

    raw(".p2align 3")
    lab("MAING")
    step(0, False)
    e("s_cbranch_scc1 LASTG")
    keep = list(lq.l)
    step(1, False)
    e("s_branch MAING")
    lab("LASTG")
    lq.l = keep
    step(1, True)


def glu_epilogue16():
    e(f"v_and_b32 v97, 15, v{vLANE}")
    e(f"v_bfe_u32 v98, v{vLANE}, 4, 1")
    e("v_lshlrev_b32 v97, 4, v97")
    e("v_lshl_add_u32 v97, v98, 9, v97")
    e(f"v_lshrrev_b32 v98, 5, v{vLANE}")
    e(f"v_mul_u32_u24 v98, {56 * 1024}, v98")
    e("v_add_u32 v97, v97, v98")
    e("s_mov_b32 s66, 1.0")
    e("s_mov_b32 s67, 1.0")
    e("s_waitcnt lgkmcnt(0)")
    e(f"v_readfirstlane_b32 s{sTAG}, v{TG16}")
    for sg in range(8):
        e(f"v_mul_f32 v{MR16 + 2 * sg + 1}, {NLOG2E:#x}, v{MR16 + 2 * sg + 1}")
    raw(".p2align 3")
    for sg in range(8):
        q = sg >> 1
        b, p = q & 1, q >> 1
        mr = vr(MR16 + 2 * sg, 2)
        G, U = A16(sg, 0), A16(sg, 2)
        for k in range(4):
            e(f"v_pk_fma_f32 {vr(G + 2 * k, 2)}, {vr(CG16 + 2 * k, 2)}, {mr}, {vr(G + 2 * k, 2)} op_sel_hi:[1,0,1] neg_lo:[0,1,0] neg_hi:[0,1,0]")
        for k in range(4):
            e(f"v_pk_mul_f32 {vr(G + 2 * k, 2)}, {vr(G + 2 * k, 2)}, {mr} op_sel:[0,1] op_sel_hi:[1,1]")
        for k in range(8):
            e(f"v_exp_f32 v{G + k}, v{G + k}")
        for k in range(4):
            e(f"v_pk_add_f32 {vr(G + 2 * k, 2)}, {vr(G + 2 * k, 2)}, s[66:67]")
        for k in range(8):
            e(f"v_rcp_f32 v{G + k}, v{G + k}")
        for k in range(4):
            e(f"v_pk_fma_f32 {vr(U + 2 * k, 2)}, {vr(CU16 + 2 * k, 2)}, {mr}, {vr(U + 2 * k, 2)} op_sel_hi:[1,0,1] neg_lo:[0,1,0] neg_hi:[0,1,0]")
        for k in range(4):
            e(f"v_pk_mul_f32 {vr(U + 2 * k, 2)}, {vr(U + 2 * k, 2)}, {vr(G + 2 * k, 2)}")
        o = 4 * sg
        for k in range(4):
            e(f"v_cvt_pk_bf16_f32 v{o + k}, v{U + 2 * k}, v{U + 2 * k + 1}")
        e(f"s_add_u32 s65, s{sOUT}, {(b * 2 + p) * 2 * 56 * 1024 + (sg & 1) * 256 + H_OFF}")
        e(f"buffer_store_dwordx4 {vr(o, 4)}, v97, {srd(SRD_WS)}, s65 offen sc1")
    e(f"v_mov_b32 v43, v{TG16}")
    publish()


def glu_epilogue():
    e(f"v_lshlrev_b32 v44, 4, v{vLANE}")
    e("s_mov_b32 s66, 1.0")
    e("s_mov_b32 s67, 1.0")
    e("s_waitcnt lgkmcnt(0)")
    e(f"v_readfirstlane_b32 s{sTAG}, v43")
    for q in range(4):
        e(f"v_mul_f32 v{MR + 2 * q + 1}, {NLOG2E:#x}, v{MR + 2 * q + 1}")
    raw(".p2align 3")
    out = 0
    for q in range(4):
        b, p = q & 1, q >> 1
        mr = vr(MR + 2 * q, 2)
        for z in range(2):
            G = ACC(0, q) + 8 * z
            U = ACC(1, q) + 8 * z
            for k in range(4):
                e(f"v_pk_fma_f32 {vr(G + 2 * k, 2)}, {vr(CG + 8 * z + 2 * k, 2)}, {mr}, {vr(G + 2 * k, 2)} op_sel_hi:[1,0,1] neg_lo:[0,1,0] neg_hi:[0,1,0]")
            for k in range(4):
                e(f"v_pk_mul_f32 {vr(G + 2 * k, 2)}, {vr(G + 2 * k, 2)}, {mr} op_sel:[0,1] op_sel_hi:[1,1]")
            for k in range(8):
                e(f"v_exp_f32 v{G + k}, v{G + k}")
            for k in range(4):
                e(f"v_pk_add_f32 {vr(G + 2 * k, 2)}, {vr(G + 2 * k, 2)}, s[66:67]")
            for k in range(8):
                e(f"v_rcp_f32 v{G + k}, v{G + k}")
            for k in range(4):
                e(f"v_pk_fma_f32 {vr(U + 2 * k, 2)}, {vr(CU + 8 * z + 2 * k, 2)}, {mr}, {vr(U + 2 * k, 2)} op_sel_hi:[1,0,1] neg_lo:[0,1,0] neg_hi:[0,1,0]")
            for k in range(4):
                e(f"v_pk_mul_f32 {vr(U + 2 * k, 2)}, {vr(U + 2 * k, 2)}, {vr(G + 2 * k, 2)}")
            o = 64 + 4 * out
            out += 1
            for k in range(4):
                e(f"v_cvt_pk_bf16_f32 v{o + k}, v{U + 2 * k}, v{U + 2 * k + 1}")
            e(f"s_add_u32 s65, s{sOUT}, {((b * 2 + p) * 2 + z) * 56 * 1024 + H_OFF}")
            e(f"buffer_store_dwordx4 {vr(o, 4)}, v44, {srd(SRD_WS)}, s65 offen sc1")
    publish()


def publish():
    stamp(3)
    cm("publish: the last of the four waves whose stores have completed writes the workgroup's flag")
    e("v_mov_b32 v41, 1")
    e("v_mov_b32 v42, 0")
    e("s_mov_b64 exec, 1")
    e("s_waitcnt vmcnt(0)")
    e(f"ds_add_rtn_u32 v41, v{vA_TAG}, v41 offset:4")
    e("s_waitcnt lgkmcnt(0)")
    e("v_readfirstlane_b32 s64, v41")
    e("s_cmp_lg_u32 s64, 3")
    e("s_cbranch_scc1 HNOFLAG")
    e(f"buffer_store_dword v43, v42, {srd(SRD_WS)}, s{sFLG} offen sc1")
    lab("HNOFLAG")
    e("s_mov_b64 exec, -1")
    stamp(4)


def dft_prologue():
    e(f"v_and_b32 v2, 31, v{vLANE}")
    e("v_cvt_f32_u32 v3, v2")
    e(f"v_mul_f32 v3, {f2u(1.0 / 2048):#x}, v3")
    e(f"s_and_b32 s64, s{sWAVE}, 1")
    e(f"s_lshr_b32 s65, s{sWAVE}, 1")
    e("s_lshl_b32 s65, s65, 5")
    e("s_add_u32 s64, s64, s65")
    e(f"s_lshl_b32 s65, s{sI}, 1")
    e("s_add_u32 s64, s64, s65")
    e(f"v_lshrrev_b32 v4, 5, v{vLANE}")
    e("v_lshl_add_u32 v4, v4, 8, s64")
    e("v_cvt_f32_u32 v4, v4")
    e("v_mul_f32 v4, v3, v4")
    e("v_and_b32 v5, 1, v2")
    e("v_mul_u32_u24 v5, 0x8000, v5")
    e("v_lshl_or_b32 v5, v5, 16, v5")
    for jj in range(8):
        e(f"v_fmamk_f32 v{8 + jj}, v3, {f2u(64.0 * (8 * (jj >> 2) + (jj & 3))):#x}, v4")
    for jj in range(8):
        e(f"v_fract_f32 v{8 + jj}, v{8 + jj}")
    for jj in range(8):
        e(f"v_cos_f32 v{16 + jj}, v{8 + jj}")
        e(f"v_sin_f32 v{24 + jj}, v{8 + jj}")
    e("s_nop 0")
    for k in range(4):
        e(f"v_cvt_pk_bf16_f32 v{32 + k}, v{16 + 2 * k}, v{17 + 2 * k}")
        e(f"v_cvt_pk_bf16_f32 v{40 + k}, v{24 + 2 * k}, v{25 + 2 * k}")
    for k in range(4):
        e(f"v_xor_b32 v{36 + k}, v5, v{32 + k}")
        e(f"v_xor_b32 v{44 + k}, v5, v{40 + k}")
    e(f"s_lshl_b32 s64, s{sWAVE}, 12")
    e(f"s_add_u32 s64, s64, {MISC}")
    e(f"v_lshl_add_u32 v6, v{vLANE}, 4, s64")
    for k in range(4):
        e(f"ds_write_b128 v6, {vr(32 + 4 * k, 4)} offset:{1024 * k}")
    cm("column 0 carries the Nyquist bin: lanes 0 and 32 of wave 0 in column block 14 use (+1,-1,+1,...)")
    e(f"s_cmp_eq_u32 s{sJ}, 14")
    e("s_cselect_b32 s68, 1, 0")
    e(f"s_cmp_eq_u32 s{sWAVE}, 0")
    e("s_cselect_b32 s68, s68, 0")
    e("s_mov_b32 s69, s68")
    e(f"v_mov_b32 v{vPM}, 0xbf803f80")
    e(f"v_lshlrev_b32 v119, 4, v{vLANE}")
    e(f"v_add_u32 v119, {MISC}, v119")
    e("s_waitcnt lgkmcnt(0)")


def dft_epilogue():
    for a in range(4):
        e(f"ds_read_b128 {vr(N0 + 4 * a, 4)}, v{vD_R} offset:{512 + 32 * a}")
    e(f"v_mov_b32 v115, v{vD_R}")
    e("s_waitcnt lgkmcnt(0)")
    e(f"v_readfirstlane_b32 s{sTAG}, v{vD_TAG}")
    e("v_cndmask_b32 v118, v118, 0, s[68:69]")

    def TS(q):
        return (120 if q & 1 else 96), (104 if q == 0 else TW(q - 1, 0, 0))

    def valu(q):
        r_ = []
        for mat, T, cs in ((0, TS(q)[0], 118), (1, TS(q)[1], 119)):
            A = ACC(mat, q)
            if q == 0:
                for r in range(0, 16, 2):
                    r_.append(f"v_pk_mul_f32 {vr(A + r, 2)}, {vr(A + r, 2)}, {vr(R0 + r, 2)}")
            else:
                for r in range(16):
                    r_.append(f"v_mul_f32 v{A + r}, v{A + r}, v{R0 + r}")
            if mat and q < 3:
                r_[-1] = [r_[-1]] + [f"ds_read_b128 {vr(R0 + 4 * a, 4)}, v115 offset:{128 * (q + 1) + 32 * a}" for a in range(4)]
            if OPT.get("nocs"):
                pass
            elif q == 0:
                sel = "op_sel:[0,1,0] op_sel_hi:[1,1,1]" if mat else "op_sel_hi:[1,0,1]"
                for r in range(0, 16, 2):
                    r_.append(f"v_pk_fma_f32 {vr(A + r, 2)}, {vr(N0 + r, 2)}, v[118:119], {vr(A + r, 2)} {sel}")
            else:
                for r in range(16):
                    r_.append(f"v_fmac_f32 v{A + r}, v{N0 + r}, v{cs}")
            if mat and q < 3 and not OPT.get("nocs"):
                r_[-1] = [r_[-1]] + [f"ds_read_b128 {vr(N0 + 4 * a, 4)}, v115 offset:{512 + 128 * (q + 1) + 32 * a}" for a in range(4)]
            for k in range(8):
                r_.append(f"v_cvt_pk_bf16_f32 v{T + k}, v{A + 2 * k}, v{A + 2 * k + 1}")
        return r_

    def mfmas(q):
        ta, tb = TS(q)
        zr, zi = ACC(0, q), ACC(1, q)
        seq = [(zr, 1, 0, tb), (zi, 0, 0, tb), (zr, 1, 1, tb + 4), (zi, 0, 1, tb + 4),
               (zr, 0, 0, ta), (zr, 0, 1, ta + 4), (zi, 1, 0, ta), (zi, 1, 1, ta + 4)]
        return [f"v_mfma_f32_32x32x16_bf16 {vr(d, 16)}, {vr(TW(q, cs, z), 4)}, {vr(b, 4)}, {'0' if k < 2 else vr(d, 16)}"
                for k, (d, cs, z, b) in enumerate(seq)]

    for q in range(5):
        v_ = valu(q) if q < 4 else []
        m_ = mfmas(q - 1) if q else []
        if 0 < q < 4:
            e("s_waitcnt lgkmcnt(0)")
        if q:
            e("s_nop 1")
        per = len(v_) // 8
        for k in range(8):
            if m_:
                e(m_[k])
                if k in (3, 4):
                    for x in range(4):
                        rg = TW(q - 1, 1, k - 3) + x
                        e(f"v_xor_b32 v{rg}, 0x80008000, v{rg}")
            if OPT.get("nocs") and q:
                cut = [0, 6, 12, 18, 24, 30, 35, 40, 48]
                es(v_[cut[k]:cut[k + 1]])
            else:
                es(v_[k * per:(k + 1) * per])
    e(f"v_and_b32 v112, 31, v{vLANE}")
    e(f"v_lshrrev_b32 v114, 5, v{vLANE}")
    e("v_lshlrev_b32 v112, 4, v112")
    e("v_lshl_add_u32 v125, v114, 18, v112")
    e("s_nop 7")
    for r in range(16):
        for q in range(4):
            e(f"v_cvt_pk_bf16_f32 v{4 * r + q}, v{ACC(0, q) + r}, v{ACC(1, q) + r}")
        if r < OPT["zs0"] or not OPT["zdef"]:
            e(f"s_add_u32 s65, s{sOUT}, {(8 * (r >> 2) + (r & 3)) * 65536}")
            e(f"buffer_store_dwordx4 {vr(4 * r, 4)}, v125, {srd(SRD_WS)}, s65 offen sc1")
    stamp(3)
    e(f"v_mov_b32 v64, {CNTL}")
    e("v_mov_b32 v65, 1")
    e("s_mov_b64 exec, 1")
    e("ds_add_u32 v64, v65")
    e("s_mov_b64 exec, -1")
    stamp(4)
    if OPT["zdef"]:
        phase2(True)
    else:
        e("s_branch PHASE2G")


def phase2(dft):
    OWN, OTH, Y, EF, HR, ET = 128, 144, 160, 32, 176, 248
    XR, vR = 80, 88
    W2 = [[96, 100], [104, 108], [240, 244]]
    WD = [112, 113]
    vH, vXO, vZA = 114, 115, 116
    vEA, vEB, vES = 122, 123, 124
    ZF = 0
    assert D <= 16
    vm, lq = Q(), Q()
    tg = "D" if dft else "G"
    lab("PHASE2" + tg)
    stamp(5)
    e(f"v_and_b32 v89, 31, v{vLANE}")
    e(f"v_lshrrev_b32 v90, 5, v{vLANE}")
    e(f"v_lshlrev_b32 v{vXO}, 16, v89")
    e(f"v_lshl_add_u32 v{vXO}, v90, 5, v{vXO}")
    def xloads():
        vm.add("x0", f"buffer_load_dwordx4 {vr(XR, 4)}, v{vXO}, {srd(SRD_X)}, s{sXO} offen")
        vm.add("x1", f"buffer_load_dwordx4 {vr(XR + 4, 4)}, v{vXO}, {srd(SRD_X)}, s{sXO} offen offset:16")

    if not OPT["xlate"]:
        xloads()
    e(f"v_bfe_u32 v{ET}, v{vLANE}, 2, 2")
    e(f"v_lshl_add_u32 v92, v90, 2, v{ET}")
    e(f"s_lshl_b32 s68, s{sKH}, {10 if OPT['m16'] else 11}")
    e("v_lshl_add_u32 v92, v92, 7, s68")
    e(f"v_and_b32 v93, 1, v{vLANE}")
    e("v_lshlrev_b32 v93, 2, v93")
    e(f"v_bfe_u32 v{ET + 1}, v{vLANE}, 4, 1")
    e(f"v_lshl_add_u32 v93, v{ET + 1}, 1, v93")
    e(f"v_bfe_u32 v{ET + 1}, v{vLANE}, 1, 1")
    e(f"v_add_u32 v93, v93, v{ET + 1}")
    e("v_lshl_add_u32 v92, v93, 3, v92")
    e(f"v_lshrrev_b32 v{ET}, 1, v{ET}")
    e(f"v_xor_b32 v{ET}, s{sKH}, v{ET}")
    e(f"v_lshl_add_u32 v{WD[0]}, v{ET}, 6, v92")
    e(f"v_xor_b32 v{WD[1]}, 64, v{WD[0]}")
    e(f"v_lshlrev_b32 v{vH}, 4, v{vLANE}")
    e("v_lshlrev_b32 v93, 4, v89")
    bar("BW")
    stamp(6)
    nh = [0]

    def hmore(lim, cnt):
        while cnt and nh[0] < min(56, lim):
            v = nh[0]
            if v and v & 7 == 0:
                e(f"v_add_u32 v{vH}, 8192, v{vH}")
            vm.add(("h", v), f"buffer_load_dwordx4 {vr(HR + 4 * (v % D), 4)}, v{vH}, {srd(SRD_WS)}, s{48 + (v & 7)} offen sc1")
            nh[0] += 1
            cnt -= 1

    base = [0]

    def wreads(v):
        a = wslot(v) * 4096
        if (a & ~0xFFFF) != base[0]:
            d = (a & ~0xFFFF) - base[0]
            base[0] = a & ~0xFFFF
            es([f"v_add_u32 v{WD[c]}, {d & 0xffffffff:#x}, v{WD[c]}" for c in range(2)])
        for c in range(2):
            for k in range(2):
                lq.add(("w", v, c, k), f"ds_read_b64_tr_b16 {vr(W2[v % 3][c] + 2 * k, 2)}, v{WD[c]} offset:{(a & 0xFFFF) + (2048 if OPT['m16'] else 1024) * k}")

    for v in range(OPT["D0"]):
        hmore(56, 1)
        if v == 1:
            wreads(0)
            wreads(1)
    vm.add("r", f"buffer_load_dword v{vR}, v93, {srd(SRD_WS)}, s{sRO} offen offset:4 sc1")

    fill = [[f"s_cmp_ge_u32 s{sCB}, 4", "s_cselect_b64 s[70:71], -1, 0"],
            f"s_lshl_b32 s68, s{sKH}, 9", f"s_add_u32 s68, s68, {ZL}", f"v_lshl_add_u32 v{vZA}, v89, 4, s68",
            f"v_lshl_add_u32 v{vZA}, v90, 10, v{vZA}",
            f"v_lshl_add_u32 v91, v89, 1, s{sP}", f"v_sub_u32 v92, s{sC0}, v91", "v_cndmask_b32 v91, v91, v92, s[70:71]",
            f"v_and_b32 v{vES}, 1, v91", f"v_mul_u32_u24 v{vES}, 0x8000, v{vES}", f"v_lshl_or_b32 v{vES}, v{vES}, 16, v{vES}",
            "v_cvt_f32_u32 v91, v91", f"v_mul_f32 v{vEA}, {f2u(1.0 / 64):#x}, v91",
            "v_lshlrev_b32 v92, 1, v90", "v_cvt_f32_u32 v92, v92", f"v_mul_f32 v{vEB}, v{vEA}, v92"]
    for sg in range(8):
        for b in range(2):
            fill.append(f"v_fmamk_f32 v{ET + b}, v{vEA}, {f2u(float(4 * sg + b)):#x}, v{vEB}")
        for b in range(2):
            fill.append(f"v_fract_f32 v{ET + b}, v{ET + b}")
        for b in range(2):
            fill.append(f"v_cos_f32 v{ET + 2 + b}, v{ET + b}")
            fill.append(f"v_sin_f32 v{ET + 4 + b}, v{ET + b}")
        fill.append([f"v_cvt_pk_bf16_f32 v{EF + 4 * sg}, v{ET + 2}, v{ET + 4}",
                     f"v_cvt_pk_bf16_f32 v{EF + 4 * sg + 1}, v{ET + 3}, v{ET + 5}"])
        for b in range(2):
            fill.append(f"v_xor_b32 v{EF + 4 * sg + 2 + b}, v{vES}, v{EF + 4 * sg + b}")
    P2BAR = {55 - NRES: "BP1", NRES - 2: "BP2", OPT["vz0"]: "BZ0"}
    assert NRES - 2 < OPT["vz0"] < 55
    zs = list(range(OPT["zs0"], 16)) if dft else []
    shared = not OPT["zdef"]
    zpub = not (dft or shared)

    def zpublish():
        cm("spectral workgroups: this wave's Z stores have completed; the last wave publishes")
        cm("(that store is not counted in the waits below: they only get stricter)")
        if shared:
            e(f"s_cmp_eq_u32 s{sDFT}, 0")
            e("s_cbranch_scc1 NOZF")
        e(f"v_mov_b32 v94, {TAGL}")
        e("v_mov_b32 v95, 1")
        e("s_mov_b64 exec, 1")
        e("ds_add_rtn_u32 v95, v94, v95 offset:8")
        e(f"v_mov_b32 v126, s{sTAG}")
        e("v_mov_b32 v127, 0")
        e("s_waitcnt lgkmcnt(0)")
        e("v_readfirstlane_b32 s64, v95")
        e("s_cmp_lg_u32 s64, 3")
        e("s_cbranch_scc1 NOZF1")
        e(f"buffer_store_dword v126, v127, {srd(SRD_WS)}, s{sFLG} offen sc1")
        lab("NOZF1")
        e("s_mov_b64 exec, -1")
        lab("NOZF")

    for v in range(56):
        e(f"s_waitcnt vmcnt({vm.younger(('h', v))}) lgkmcnt({lq.younger(('w', v, 1, 1))})")
        h = vr(HR + 4 * (v % D), 4)
        st = v % 3
        e(f"v_mfma_f32_32x32x16_bf16 {vr(OWN, 16)}, {vr(W2[st][0], 4)}, {h}, {'0' if v == 0 else vr(OWN, 16)}")
        if v in P2BAR:
            bar(P2BAR[v])
        if v + 2 < 56:
            wreads(v + 2)
        e(f"v_mfma_f32_32x32x16_bf16 {vr(OTH, 16)}, {vr(W2[st][1], 4)}, {h}, {'0' if v == 0 else vr(OTH, 16)}")
        if PROF and v % 4 == 0:
            e("s_memtime s[78:79]")
        if PROF and v % 4 == 2:
            e(f"v_writelane_b32 v{vLOOPST}, s78, {16 + v // 4}")
        if not zpub and not zs and v >= 1 and (("zs", 15) not in vm.l or vm.l.index(("h", v)) > vm.l.index(("zs", 15))):
            assert v < OPT["vz0"]
            zpublish()
            zpub = True
        if zs and v % OPT["zdef"] == 0:
            r = zs.pop(0)
            e(f"s_add_u32 s65, s{sOUT}, {(8 * (r >> 2) + (r & 3)) * 65536}")
            vm.add(("zs", r), f"buffer_store_dwordx4 {vr(4 * r, 4)}, v125, {srd(SRD_WS)}, s65 offen sc1")
        hmore(v + 1 + D, 2)
        if (nh[0] == 56 or (OPT["xlate"] == 2 and v == OPT.get("xv", 8))) and "x0" not in vm.l:
            xloads()
        if len(fill) > 88 or not zs:
            n = 4 if v < 32 else 6
            es(fill[:n])
            del fill[:n]
    assert not fill and zpub
    stamp(7)

    def ymf(sg):
        e(f"v_mfma_f32_32x32x16_bf16 {vr(Y, 16)}, {vr(ZF + 4 * sg, 4)}, {vr(EF + 4 * sg, 4)}, {'0' if sg == 0 else vr(Y, 16)}")

    cm("cross-wave reduction over the two K halves")
    XU, PT, TT = 176, 192, 208
    e(f"s_lshl_b32 s68, s{sWAVE}, 12")
    e(f"s_add_u32 s68, s68, {RED}")
    e(f"v_lshl_add_u32 v91, v{vLANE}, 4, s68")
    e("v_xor_b32 v92, 8192, v91")
    e(f"v_mul_f32 v{vR + 1}, {NLOG2E:#x}, v{vR}")
    e("v_mov_b32 v93, 0xffff0000")
    e("s_waitcnt vmcnt(0)")
    for k in range(3):
        e(f"v_lshlrev_b32 v{XU + 2 * k}, 16, v{XR + k}")
        e(f"v_and_b32 v{XU + 2 * k + 1}, v93, v{XR + k}")
    for a in range(4):
        e(f"ds_write_b128 v91, {vr(OTH + 4 * a, 4)} offset:{1024 * a}")
    for k in range(3, 8):
        e(f"v_lshlrev_b32 v{XU + 2 * k}, 16, v{XR + k}")
        e(f"v_and_b32 v{XU + 2 * k + 1}, v93, v{XR + k}")
    e("s_waitcnt lgkmcnt(0)")
    bar("BR")
    for a in range(4):
        e(f"ds_read_b128 {vr(PT + 4 * a, 4)}, v92 offset:{1024 * a}")
    for sg in range(8):
        e(f"ds_read_b128 {vr(ZF + 4 * sg, 4)}, v{vZA} offset:{2048 * sg}")
    e("s_waitcnt lgkmcnt(8)")
    rr = vr(vR, 2)
    raw(".p2align 3")
    for k in range(8):
        e(f"v_pk_add_f32 {vr(OWN + 2 * k, 2)}, {vr(OWN + 2 * k, 2)}, {vr(PT + 2 * k, 2)}")
    for k in range(8):
        e(f"v_pk_mul_f32 {vr(TT + 2 * k, 2)}, {vr(OWN + 2 * k, 2)}, {rr} op_sel:[0,1] op_sel_hi:[1,1]")
    for k in range(8):
        e(f"v_pk_mul_f32 {vr(OWN + 2 * k, 2)}, {vr(OWN + 2 * k, 2)}, {rr} op_sel_hi:[1,0]")
    e("s_waitcnt lgkmcnt(0)")
    for k in range(16):
        if k % 3 == 0:
            ymf(k // 3)
        e(f"v_exp_f32 v{TT + k}, v{TT + k}")
    for k in range(16):
        if k in (2, 8):
            ymf(6 + (k >> 3))
        e(f"v_add_f32 v{TT + k}, 1.0, v{TT + k}")
    for k in range(16):
        e(f"v_rcp_f32 v{TT + k}, v{TT + k}")
    raw(".p2align 3")
    for k in range(8):
        e(f"v_pk_mul_f32 {vr(OWN + 2 * k, 2)}, {vr(OWN + 2 * k, 2)}, {vr(TT + 2 * k, 2)}")
    for k in range(8):
        e(f"v_pk_fma_f32 {vr(OWN + 2 * k, 2)}, {vr(OWN + 2 * k, 2)}, {vr(Y + 2 * k, 2)}, {vr(XU + 2 * k, 2)}")
    for k in range(8):
        e(f"v_cvt_pk_bf16_f32 v{TT + k}, v{OWN + 2 * k}, v{OWN + 2 * k + 1}")
    of = {0: "", 1: " nt", 2: " sc1", 3: " sc0"}[OPT.get("ost", 0)]
    if OPT.get("oswap"):
        cm("lanes l and l+32 hold the two halves of a 64-byte row piece: trade registers so that each store writes whole pieces")
        e("s_nop 1")
        for k in range(4):
            e(f"v_permlane32_swap_b32 v{TT + 4 + k}, v{TT + k}") if False else None
        for k in range(4):
            e(f"v_permlane32_swap_b32 v{TT + k}, v{TT + 4 + k}")
    e(f"buffer_store_dwordx4 {vr(TT, 4)}, v{vXO}, {srd(SRD_OUT)}, s{sXO} offen{of}")
    e(f"buffer_store_dwordx4 {vr(TT + 4, 4)}, v{vXO}, {srd(SRD_OUT)}, s{sXO} offen offset:16{of}")
    stamp_flush(8, 64, True)
    if OPT.get("rabs"):
        lab("DLY" + tg)
        e("s_memrealtime s[82:83]")
        e("s_waitcnt lgkmcnt(0)")
        e("s_sub_u32 s82, s82, s98")
        e(f"s_cmp_lt_u32 s82, {OPT['rabs']}")
        e("s_cbranch_scc1 DLY" + tg)
    e("s_endpgm")


def cwave():
    section("C0")
    lab("CWAVE")
    cm("================ C waves: matrix work ================")
    e(f"s_setprio {OPT.get('cp', 2)}")
    ids1()
    e(f"v_mov_b32 v{vLANE}, v0")
    for k in range(4):
        e(f"v_mov_b32 v{8 + k}, 0")
    e("v_and_b32 v2, 31, v0")
    e("v_lshrrev_b32 v3, 5, v0")
    for k in range(8):
        e(f"v_mfma_f32_32x32x16_bf16 {vr(128 + 16 * k, 16)}, v[8:11], v[8:11], 0")
    e("v_bfe_u32 v4, v0, 1, 3")
    e("v_lshlrev_b32 v5, 7, v2")
    e(f"v_add_u32 v5, {SLOT + 32768}, v5")
    for u in range(4):
        e(f"v_add_u32 v6, {2 * u}, v3")
        e("v_xor_b32 v6, v6, v4")
        e(f"v_lshl_add_u32 v{XA[u]}, v6, 4, v5")
    e("v_bfe_u32 v4, v0, 2, 2")
    e(f"v_lshlrev_b32 v{WA}, 12, v3")
    e(f"v_lshl_add_u32 v{WA}, v4, 8, v{WA}")
    e(f"v_xor_b32 v4, s{sWAVE}, v4")
    e(f"v_lshl_add_u32 v{WA}, v4, 6, v{WA}")
    e("v_bfe_u32 v4, v0, 4, 1")
    if OPT["m16"]:
        e("v_xor_b32 v4, v4, v3")
    e(f"v_lshl_add_u32 v{WA}, v4, 5, v{WA}")
    e("v_and_b32 v4, 3, v0")
    e(f"v_lshl_add_u32 v{WA}, v4, 3, v{WA}")
    e(f"v_add_u32 v{WA}, {SLOT}, v{WA}")
    e(f"s_lshl_b32 s64, s{sWAVE}, 7")
    e(f"s_add_u32 s64, s64, {CSL}")
    e(f"v_lshl_add_u32 v{vA_CS}, v3, 4, s64")
    e(f"v_lshlrev_b32 v{vA_MR}, 3, v2")
    e(f"v_add_u32 v{vA_MR}, {MRP}, v{vA_MR}")
    if not OPT["m16"]:
        e(f"v_mov_b32 v{vA_TAG}, {TAGL}")
    e(f"v_lshl_add_u32 v{vD_CS}, v2, 2, s64")
    e(f"v_lshlrev_b32 v{vD_R}, 4, v3")
    e(f"v_add_u32 v{vD_R}, {RL}, v{vD_R}")
    e(f"v_mov_b32 v{vD_TAG}, {TAGL}")
    e("s_waitcnt lgkmcnt(0)")
    ids2()
    e(f"s_and_b32 s{sP}, s{sWAVE}, 1")
    e(f"s_lshr_b32 s{sKH}, s{sWAVE}, 1")
    e(f"s_lshl_b32 s68, s{sP}, 5")
    e(f"s_add_u32 s68, s68, s{sT1}")
    e(f"s_lshl_b32 s{sXO}, s68, 10")
    e(f"s_lshl_b32 s68, s{sCB}, 7")
    e(f"s_add_u32 s{sXO}, s{sXO}, s68")
    e(f"s_lshl_b32 s68, s{sKH}, 6")
    e(f"s_add_u32 s{sXO}, s{sXO}, s68")
    e(f"s_cmp_eq_u32 s{sT1}, 0")
    e(f"s_cselect_b32 s{sC0}, 64, 63")
    e(f"s_lshr_b32 s68, s{sT1}, 1")
    e("s_lshl_b32 s68, s68, 11")
    e(f"s_and_b32 s70, s{sT1}, 1")
    e(f"s_lshl_b32 s71, s{sP}, 1")
    e("s_add_u32 s70, s70, s71")
    e("s_lshl_b32 s70, s70, 9")
    e("s_add_u32 s68, s68, s70")
    e(f"s_add_u32 s{sRO}, s68, {ST_OFF}")
    e(f"s_lshl_b32 s68, s{sT1}, 2")
    e("s_add_u32 s68, s68, s71")
    e(f"s_add_u32 s68, s68, s{sKH}")
    e(f"s_mul_i32 s68, s68, {56 * 1024}")
    rot_offsets(10, "s68")
    if OPT["spoll"]:
        e(f"s_lshl_b32 s64, s{sI}, 7")
        e(f"s_lshl_b32 s65, s{sJ}, 2")
        e("s_add_u32 s64, s64, s65")
        e(f"s_add_u32 s{sFLG}, s64, {FLH}")
    else:
        e(f"s_lshl_b32 s64, s{sI}, 4")
        e(f"s_add_u32 s64, s64, s{sJ}")
        e("s_lshl_b32 s64, s64, 7")
        e(f"s_add_u32 s{sFLG}, s64, {FLH}")
    e(f"s_cmp_eq_u32 s{sDFT}, 1")
    e("s_cbranch_scc1 CDFT")
    e(f"s_lshl_b32 s64, s{sJ}, 2")
    e(f"s_add_u32 s64, s64, s{sWAVE}")
    e("s_lshl_b32 s64, s64, 10")
    e(f"s_mul_i32 s65, s{sI}, {2 * 4 * 56 * 1024}")
    e(f"s_add_u32 s{sOUT}, s64, s65")
    if OPT["m16"]:
        e("v_and_b32 v2, 15, v0")
        e("v_lshrrev_b32 v3, 4, v0")
        e("v_lshrrev_b32 v4, 1, v2")
        e("v_xor_b32 v4, v4, v3")
        e("v_lshlrev_b32 v5, 7, v2")
        e(f"v_lshl_add_u32 v{XA16[0]}, v4, 4, v5")
        e(f"v_add_u32 v{XA16[0]}, {SLOT + 32768}, v{XA16[0]}")
        e(f"v_xor_b32 v{XA16[1]}, 64, v{XA16[0]}")
        e("v_bfe_u32 v4, v0, 2, 2")
        e("v_lshlrev_b32 v5, 12, v3")
        e("v_lshl_add_u32 v5, v4, 8, v5")
        e(f"v_xor_b32 v4, s{sWAVE}, v4")
        e("v_lshl_add_u32 v5, v4, 6, v5")
        e("v_and_b32 v4, 1, v3")
        e("v_lshl_add_u32 v5, v4, 5, v5")
        e("v_and_b32 v4, 3, v0")
        e("v_lshl_add_u32 v5, v4, 3, v5")
        e(f"v_add_u32 v{WA16[0]}, {SLOT}, v5")
        e(f"v_xor_b32 v{WA16[1]}, 32, v{WA16[0]}")
        e(f"s_lshl_b32 s64, s{sWAVE}, 7")
        e(f"s_add_u32 s64, s64, {CSL}")
        e(f"v_lshl_add_u32 v{vB_CS}, v3, 4, s64")
        e(f"v_lshlrev_b32 v{vB_MR}, 3, v2")
        e(f"v_add_u32 v{vB_MR}, {MRP}, v{vB_MR}")
        e(f"v_mov_b32 v{vA_TAG}, {TAGL}")
    e("s_branch CGLU")
    section("CG")
    lab("CGLU")
    stamp(1)
    bar("B0")
    if OPT["m16"]:
        mainloop16()
        stamp(2)
        glu_epilogue16()
    else:
        mainloop(False)
        stamp(2)
        glu_epilogue()
    phase2(False)
    section("CD")
    lab("CDFT")
    e(f"s_lshl_b32 s64, s{sI}, 12")
    e(f"s_and_b32 s65, s{sJ}, 1")
    e("s_lshl_b32 s66, s65, 11")
    e("s_add_u32 s64, s64, s66")
    e(f"s_lshl_b32 s66, s{sWAVE}, 9")
    e("s_add_u32 s64, s64, s66")
    e(f"s_add_u32 s{sOUT}, s64, {Z_OFF}")
    if OPT["spoll"]:
        e(f"s_lshl_b32 s64, s{sI}, 1")
        e("s_add_u32 s64, s64, s65")
        e("s_lshl_b32 s64, s64, 2")
        e(f"s_add_u32 s{sFLG}, s64, {FLZ}")
    dft_prologue()
    stamp(1)
    bar("B0")
    for k in range(16):
        e(f"ds_read_b128 {vr(4 * k, 4)}, v119 offset:{1024 * k}")
    mainloop(True)
    stamp(2)
    dft_epilogue()


hdr = open("cdna_kernels/" + NAME + ".s.ref").read().split("\n")
head = [l for l in hdr if l.startswith(";") and "@launch" not in l and "Override launch" not in l and "grid=ceil" not in l]
out = head + ["; @launch grid=(256,1,1) block=(512,1,1) lds=163840",
              '.amdgcn_target "amdgcn-amd-amdhsa--gfx950"', ".text", f".globl {K}"]
if OPT["al"]:
    out.append(".p2align 12")
out += [".p2align 8", f".type {K},@function", f"{K}:"]
entry()
l2wave()
l3wave()
l01wave()
cwave()
for name, align in (("A", 0), ("A2", 0), ("C0", 0), ("L2", 0), ("L3", 0), ("CG", 12 if OPT["al"] else 0), ("CD", 12 if OPT["al"] else 0)):
    if align:
        out.append(f".p2align {align}")
    out += SEC[name]
out += ["END:", "    s_endpgm"]
out += ['.section .rodata,"a"', ".p2align 6", f".amdhsa_kernel {K}", "  .amdhsa_next_free_vgpr 256", "  .amdhsa_next_free_sgpr 102",
        "  .amdhsa_accum_offset 256", "  .amdhsa_group_segment_fixed_size 0", "  .amdhsa_kernarg_size 96",
        "  .amdhsa_user_sgpr_count 2", "  .amdhsa_user_sgpr_kernarg_segment_ptr 1", "  .amdhsa_system_sgpr_workgroup_id_x 1",
        ".end_amdhsa_kernel", ""]
open(sys.argv[1], "w").write("\n".join(out))
```

```python
import struct
import sys

NAME = "recurrent_scan__spectral_fnet__glu_gated_glu__prompt"
OPT = dict(m16=1, nocs=1, prof=0, map48=0, D=12, D0=6, pre=3, preb=2, th=4, trk=22, u1=2, u2=8, pa=47, bs=0, sord=0, slp=6, spin=200000,
           nx=4, sg0=99, sgn=3, dw=0, dw0=1, vz0=44, zdef=0, zs0=0, spoll=0, xlate=2, l0poll=1, lprio=3, xa0=1, na=3, xb0=8, nb=7, xe=16, xt=4, chk=14, ct=1, al=1)
for a in sys.argv[2:]:
    k, v = a.split("=")
    OPT[k] = int(v)
LITE = OPT["prof"] == 3
PROF = 0 if LITE else OPT["prof"]
K = NAME + "_kernel"
D = OPT["D"]

H_OFF, Z_OFF, ST_OFF, CS_OFF = 0, 0x800000, 0xA00000, 0xA10000
FLH, FLZ, PROF_OFF, WS_SIZE = 0xA50000, 0xA58000, 0xA60000, 0xB00000
SLOT = 49152
MISC = 147456
CSL, MRP, RL, NMRL, TAGL, CNTL = MISC, MISC + 1024, MISC + 2048, MISC + 2560, MISC + 3072, MISC + 3076
RED = 20 * 4096
ZL = 24 * 4096
NRES = 39
NST = 56 - NRES
NLOG2E = 0xBFB8AA3B
OOB = 0x40000000


def wslot(v):
    return v if v < 36 else v + 1 if v < NRES else v - NRES


def f2u(x):
    return struct.unpack("<I", struct.pack("<f", x))[0]


SEC = {}
CUR = [None, False]


def section(n):
    CUR[0] = SEC.setdefault(n, [])


def e(s):
    CUR[0].append("    " + s)


def es(lst):
    for x in lst:
        for y in (x if isinstance(x, list) else [x]):
            e(y)


def lab(s):
    CUR[0].append(s + ":")


def raw(s):
    CUR[0].append(s)


def cm(s):
    CUR[0].append("    ; " + s)


def vr(a, n):
    return f"v[{a}:{a + n - 1}]"


def srd(n):
    return f"s[{n}:{n + 3}]"


class Q:
    def __init__(self):
        self.l = []

    def add(self, tag, txt=None):
        self.l.append(tag)
        if txt:
            e(txt)

    def younger(self, tag):
        return len(self.l) - 1 - self.l.index(tag)


SRD_X, SRD_W0, SRD_W1, SRD_WD, SRD_WS, SRD_OUT, SRD_DBG, SRD_WM = 4, 8, 12, 16, 20, 24, 28, 32
sWAVE, sI, sJ, sT1, sCB, sRS, sCOL, sDFT, sTAG, sIDX = 36, 37, 38, 39, 40, 41, 42, 43, 44, 45
sSTAMP = 80
vLOOPST, vLST, vLANE = 121, 118, 117
uid = [0]
QUIET = [True]


ARR = OPT.get("arr")


def stamp(i):
    if PROF and not (ARR is not None and i and CUR[0] in (SEC.get("L2"), SEC.get("L3"))):
        e(f"{'s_memrealtime' if PROF == 2 else 's_memtime'} s[{sSTAMP + 2 * i}:{sSTAMP + 2 * i + 1}]")


def stamp_flush(n, vt, cw):
    if not (PROF or (LITE and cw)):
        return
    e("s_waitcnt lgkmcnt(0)")
    e("s_lshl_b32 s78, s2, 3")
    e(f"s_add_u32 s78, s78, s{sWAVE}")
    e("s_lshl_b32 s78, s78, 8")
    e(f"s_add_u32 s78, s78, {PROF_OFF}")
    e(f"v_mov_b32 v{vt + 8}, 0")
    if PROF:
        for i in range(8):
            e(f"v_mov_b32 v{vt + i}, s{sSTAMP + 2 * i}" if i < n else f"v_mov_b32 v{vt + i}, 0")
        e(f"buffer_store_dwordx4 {vr(vt, 4)}, v{vt + 8}, {srd(SRD_WS)}, s78 offen")
        e(f"buffer_store_dwordx4 {vr(vt + 4, 4)}, v{vt + 8}, {srd(SRD_WS)}, s78 offen offset:16")
        if cw:
            e(f"v_lshlrev_b32 v{vt + 9}, 2, v{vLANE}")
            e(f"v_min_u32 v{vt + 9}, 124, v{vt + 9}")
            e(f"buffer_store_dword v{vLOOPST}, v{vt + 9}, {srd(SRD_WS)}, s78 offen offset:64")
    e("s_memrealtime s[76:77]")
    e("s_waitcnt lgkmcnt(0)")
    e(f"v_mov_b32 v{vt + 10}, s98")
    e(f"v_mov_b32 v{vt + 11}, s76")
    e(f"buffer_store_dwordx2 {vr(vt + 10, 2)}, v{vt + 8}, {srd(SRD_WS)}, s78 offen offset:32")


def bar(name=""):
    if PROF and ARR is not None and CUR[0] in (SEC.get("L2"), SEC.get("L3")) and name[1:].isdigit() and ARR <= int(name[1:]) < ARR + 6:
        i = int(name[1:]) - ARR + 1
        e(f"s_memtime s[{sSTAMP + 2 * i}:{sSTAMP + 2 * i + 1}]")
    e("s_barrier" + (f"  ; {name}" if name else ""))


def poll_issue(vdst, vaddr, ssoff, srdn):
    e(f"buffer_load_dword v{vdst}, v{vaddr}, {srd(srdn)}, {ssoff} offen sc1")


def poll_wait(vdst, vaddr, ssoff, srdn, cond_tag=True, first_wait=0):
    uid[0] += 1
    k = uid[0]
    e(f"s_mov_b32 s75, {OPT['spin']}")
    e(f"s_waitcnt vmcnt({first_wait})")
    lab(f"POLL{k}")
    e(f"v_cmp_ne_u32 vcc, s{sTAG}, v{vdst}" if cond_tag else f"v_cmp_eq_u32 vcc, 0, v{vdst}")
    e("s_nop 1")
    e("s_cmp_eq_u64 vcc, 0")
    e(f"s_cbranch_scc1 POLLD{k}")
    if OPT["slp"]:
        e(f"s_sleep {OPT['slp']}")
    poll_issue(vdst, vaddr, ssoff, srdn)
    e("s_sub_u32 s75, s75, 1")
    e("s_cmp_lg_u32 s75, 0")
    e("s_waitcnt vmcnt(0)")
    e(f"s_cbranch_scc1 POLL{k}")
    lab(f"POLLD{k}")


def spoll(ssoff, npairs, nloads=1):
    uid[0] += 1
    k = uid[0]
    e(f"s_mov_b32 s75, {OPT['spin']}")
    e(f"s_mov_b32 s46, s{sTAG}")
    e(f"s_mov_b32 s47, s{sTAG}")
    lab(f"SP{k}")
    for l in range(nloads):
        e(f"s_buffer_load_dwordx16 s[48:63], {srd(SRD_WS)}, {ssoff} offset:{64 * l} glc")
        e("s_waitcnt lgkmcnt(0)")
        for p in range(npairs):
            e(f"s_xor_b64 s[{48 + 2 * p}:{49 + 2 * p}], s[{48 + 2 * p}:{49 + 2 * p}], s[46:47]")
        for p in range(npairs):
            if l == 0 and p == 0:
                e("s_mov_b64 s[76:77], s[48:49]")
            else:
                e(f"s_or_b64 s[76:77], s[76:77], s[{48 + 2 * p}:{49 + 2 * p}]")
    e(f"s_cbranch_scc0 SPD{k}")
    if OPT["slp"]:
        e(f"s_sleep {OPT['slp']}")
    e("s_sub_u32 s75, s75, 1")
    e("s_cmp_lg_u32 s75, 0")
    e(f"s_cbranch_scc1 SP{k}")
    lab(f"SPD{k}")


def wait_c_done():
    uid[0] += 1
    k = uid[0]
    e(f"v_mov_b32 v7, {TAGL}")
    e(f"s_mov_b32 s75, {OPT['spin']}")
    lab(f"CW{k}")
    e("ds_read_b64 v[14:15], v7")
    e("s_waitcnt lgkmcnt(0)")
    e("v_readfirstlane_b32 s76, v15")
    e(f"v_readfirstlane_b32 s{sTAG}, v14")
    e("s_sub_u32 s75, s75, 1")
    e("s_cmp_eq_u32 s75, 0")
    e(f"s_cbranch_scc1 CWD{k}")
    e("s_sleep 1")
    e("s_cmp_lt_u32 s76, 4")
    e(f"s_cbranch_scc1 CW{k}")
    lab(f"CWD{k}")


def ids1():
    if OPT["map48"]:
        e("s_and_b32 s64, s2, 3")
        e("s_lshl_b32 s64, s64, 2")
        e(f"s_and_b32 s65, s{sIDX}, 3")
        e(f"s_add_u32 s{sI}, s64, s65")
        e("s_bfe_u32 s64, s2, 0x10002")
        e(f"s_lshr_b32 s67, s{sIDX}, 2")
        e("s_mul_i32 s65, s64, 7")
        e("s_add_u32 s65, s65, s67")
        e("s_add_u32 s66, s64, 14")
        e("s_cmp_eq_u32 s67, 7")
        e(f"s_cselect_b32 s{sJ}, s66, s65")
    else:
        e("s_and_b32 s64, s2, 1")
        e("s_lshl_b32 s64, s64, 3")
        e(f"s_and_b32 s65, s{sIDX}, 7")
        e(f"s_add_u32 s{sI}, s64, s65")
        e("s_bfe_u32 s64, s2, 0x20001")
        e(f"s_lshr_b32 s67, s{sIDX}, 3")
        e("s_mul_i32 s65, s64, 3")
        e("s_add_u32 s65, s65, s67")
        e("s_add_u32 s66, s64, 14")
        e("s_cmp_eq_u32 s67, 3")
        e("s_cselect_b32 s65, s66, s65")
        e("s_lshl_b32 s66, s64, 2")
        e("s_add_u32 s66, s66, s67")
        e("s_sub_u32 s66, s66, 2")
        e("s_cmp_lt_u32 s64, 2")
        e(f"s_cselect_b32 s{sJ}, s65, s66")
    e(f"s_lshl_b32 s{sCOL}, s{sJ}, 8")
    e(f"s_sub_u32 s64, s{sCOL}, {14 * 256}")
    e(f"s_movk_i32 s{sRS}, 3584")
    e(f"s_cmp_ge_u32 s{sJ}, 14")
    e(f"s_cselect_b32 s{sDFT}, 1, 0")
    e(f"s_cselect_b32 s{sRS}, 1024, s{sRS}")
    e(f"s_cselect_b32 s{sCOL}, s64, s{sCOL}")
    e(f"s_lshl_b32 s34, s{sRS}, 9")
    e("s_mov_b32 s35, 0x20000")
    e("s_mov_b32 s6, 0x200000")
    e("s_mov_b32 s7, 0x20000")


def wm_select(scc_instr):
    e(f"s_cmp_eq_u32 s{sDFT}, 1")
    e("s_cselect_b64 s[8:9], s[48:49], s[52:53]")
    e("s_cselect_b64 s[12:13], s[50:51], s[54:55]")
    e(scc_instr)
    e("s_cselect_b64 s[32:33], s[12:13], s[8:9]")


def ids2():
    e("s_bfe_u32 s46, s2, 0x20001")
    e("s_lshl_b32 s46, s46, 3")
    e(f"s_and_b32 s47, s{sIDX}, 7")
    e(f"s_add_u32 s{sT1}, s46, s47")
    e("s_and_b32 s46, s2, 1")
    e("s_lshl_b32 s46, s46, 2")
    e(f"s_lshr_b32 s47, s{sIDX}, 3")
    e(f"s_add_u32 s{sCB}, s46, s47")
    e("s_mov_b64 s[16:17], s[56:57]")
    e(f"s_mov_b32 s18, {1792 * 1024}")
    e("s_mov_b32 s19, 0x20000")
    e("s_mov_b64 s[20:21], s[62:63]")
    e(f"s_mov_b32 s22, {WS_SIZE}")
    e("s_mov_b32 s23, 0x20000")
    e("s_mov_b64 s[24:25], s[58:59]")
    e("s_mov_b32 s26, 0x200000")
    e("s_mov_b32 s27, 0x20000")
    e("s_mov_b64 s[28:29], s[60:61]")
    e("s_mov_b32 s30, 256")
    e("s_mov_b32 s31, 0x20000")


def entry():
    section("A")
    e("s_cmp_ge_u32 s2, 256")
    e("s_cbranch_scc1 END")
    e("s_load_dwordx2 s[4:5], s[0:1], 0")
    e("s_load_dwordx4 s[48:51], s[0:1], 24")
    e("s_load_dwordx8 s[52:59], s[0:1], 48")
    e("s_load_dwordx4 s[60:63], s[0:1], 80")
    if PROF or LITE or OPT.get("rabs"):
        e("s_memrealtime s[98:99]")
    stamp(0)
    e("v_lshrrev_b32 v1, 6, v0")
    e("v_and_b32 v0, 63, v0")
    e(f"s_lshr_b32 s{sIDX}, s2, 3")
    e(f"v_readfirstlane_b32 s{sWAVE}, v1")
    e("s_getpc_b64 s[64:65]")
    lab("PCREF")
    e(f"s_cmp_ge_u32 s{sWAVE}, 4")
    e("s_cbranch_scc1 LSTART")
    if OPT["ct"]:
        cm("pull the kernel's own code into this die's L2: three lines per matrix wave")
        e(f"s_lshl_b32 s66, s{sIDX}, 2")
        e(f"s_add_u32 s66, s66, s{sWAVE}")
        e("s_mul_i32 s66, s66, 384")
        e(f"s_min_u32 s66, s66, END-PCREF-384")
        e("s_and_b32 s64, s64, 0xffffff80")
        e("s_load_dwordx2 s[68:69], s[64:65], s66 offset:60")
        e("s_load_dwordx2 s[70:71], s[64:65], s66 offset:188")
        e("s_load_dwordx2 s[72:73], s[64:65], s66 offset:316")
    if OPT["bs"]:
        bar("BS")
    e("s_branch CWAVE")
    lab("LSTART")
    ids1()
    e(f"s_cmp_eq_u32 s{sWAVE}, 6")
    e("s_cbranch_scc1 L2WAVE")
    e(f"s_cmp_eq_u32 s{sWAVE}, 7")
    e("s_cbranch_scc1 L3WAVE")


def wd_voffset(vd, vt):
    e(f"v_lshrrev_b32 v{vt}, 3, v0")
    e(f"v_lshlrev_b32 v{vd}, 10, v{vt}")
    e(f"v_bfe_u32 v{vt}, v0, 4, 1")
    e(f"v_lshlrev_b32 v{vt}, 2, v{vt}")
    e(f"v_and_b32 v{vt + 1}, 7, v0")
    e(f"v_xor_b32 v{vt}, v{vt}, v{vt + 1}")
    e(f"v_lshl_add_u32 v{vd}, v{vt}, 4, v{vd}")


XS = 8192


def xw_base():
    e(f"s_lshr_b32 s60, s{sIDX}, 2")
    e("s_lshl_b32 s60, s60, 10")
    e(f"s_and_b32 s63, s{sIDX}, 3")
    e("s_lshl_b32 s63, s63, 7")
    e("s_add_u32 s60, s60, s63")
    e("s_and_b32 s63, s2, 1")
    e("s_lshl_b32 s63, s63, 9")
    e("s_add_u32 s60, s60, s63")
    e("s_bfe_u32 s63, s2, 0x20001")
    e(f"s_mul_i32 s62, s63, {56 * XS}")


def xload(n):
    for k in range(n if not OPT.get("nox") else 0):
        e(f"s_buffer_load_dwordx2 s[58:59], {srd(SRD_WD)}, s60 offset:{XS * k + 60}")


def xa_init():
    xw_base()
    e("s_add_u32 s60, s60, s62")
    e(f"s_sub_u32 s63, s{sWAVE}, 4")
    e(f"s_mul_i32 s63, s63, {28 * XS}")
    e("s_add_u32 s60, s60, s63")


def xa():
    xload(OPT["na"])
    e(f"s_add_u32 s60, s60, {OPT['na'] * XS}")


def xb_init(which):
    xw_base()
    e(f"s_add_u32 s60, s60, {which * OPT['nb'] * XS}")
    e("s_add_u32 s62, s62, s60")


XBN = [0, 0]


def xw(n, which):
    nb = OPT["nb"]
    if n < OPT["xb0"] or XBN[which] * 2 * nb >= 168:
        return
    XBN[which] += 1
    e("s_cmp_ge_u32 s60, s62")
    e(f"s_cselect_b32 s63, {56 * XS}, 0")
    e("s_cselect_b32 s62, -1, s62")
    e("s_add_u32 s60, s60, s63")
    xload(nb)
    e(f"s_add_u32 s60, s60, {2 * nb * XS}")


def rot_offsets(shift, add):
    for k in range(8):
        e(f"s_add_u32 s{48 + k}, s{sCB}, {k}")
        e(f"s_and_b32 s{48 + k}, s{48 + k}, 7")
        e(f"s_lshl_b32 s{48 + k}, s{48 + k}, {shift}")
        e(f"s_add_u32 s{48 + k}, s{48 + k}, {add}")


def l01wave():
    vX0, vX1, vW, vWD, vZ, vW1 = 2, 3, 4, 5, 9, 12
    sLW, sXa, sXb, sWo, sS0, sS1, sR4, sT, sCnt, sWd = 64, 65, 66, 67, 68, 69, 70, 71, 72, 73
    section("A2")
    lab("L01WAVE")
    cm("================ L0/L1: DMA waves ================")
    if OPT.get("dp"):
        e(f"s_setprio {OPT['dp']}")
    e(f"s_sub_u32 s{sLW}, s{sWAVE}, 4")
    e("v_lshrrev_b32 v6, 3, v0")
    e(f"v_lshlrev_b32 v{vX0}, 16, v6")
    e("v_lshrrev_b32 v6, 1, v6")
    e("v_and_b32 v7, 7, v0")
    e("v_xor_b32 v6, v6, v7")
    e(f"v_lshl_add_u32 v{vX0}, v6, 4, v{vX0}")
    e(f"v_xor_b32 v{vX1}, 64, v{vX0}")
    e("v_lshrrev_b32 v6, 4, v0")
    e(f"v_mul_lo_u32 v{vW}, v6, s{sRS}")
    e("v_bfe_u32 v7, v0, 2, 2")
    e("v_xor_b32 v7, v7, v6")
    e("v_lshlrev_b32 v7, 2, v7")
    e("v_and_b32 v8, 3, v0")
    e("v_or_b32 v7, v7, v8")
    e(f"v_lshl_add_u32 v{vW}, v7, 4, v{vW}")
    e("v_xor_b32 v7, 2, v7")
    e(f"v_mul_lo_u32 v{vW1}, v6, s{sRS}")
    e(f"v_lshl_add_u32 v{vW1}, v7, 4, v{vW1}")
    e(f"s_lshl_b32 s{sXa}, s{sI}, 1")
    e(f"s_add_u32 s{sXa}, s{sXa}, s{sLW}")
    e(f"s_lshl_b32 s{sXa}, s{sXa}, 10")
    e(f"s_add_u32 s{sXb}, s{sXa}, {32 * 1024}")
    e(f"s_mov_b32 s{sWo}, s{sCOL}")
    e(f"s_lshl_b32 s{sR4}, s{sRS}, 2")
    e(f"s_lshl_b32 s74, s{sLW}, 10")
    e(f"s_lshl_b32 s77, s{sLW}, 12")

    def wpieces(base_sgpr, imm):
        e(f"s_add_u32 s{sT}, s{base_sgpr}, s74")
        e(f"s_add_u32 m0, s{sT}, {imm}")
        e("s_nop 0")
        for k in range(8):
            if not (OPT.get("nodma", 0) & 1 and CUR[1]):
                e(f"buffer_load_dwordx4 v{vW1 if (k & 2) and OPT['m16'] else vW}, {srd(SRD_WM)}, s{sWo} offen lds")
            if k < 7:
                e("s_add_u32 m0, m0, 2048")
            e(f"s_add_u32 s{sWo}, s{sWo}, s{sR4}")

    def xpieces(base_sgpr, half):
        sx = sXb if half else sXa
        e(f"s_add_u32 s{sT}, s{base_sgpr}, s77")
        e(f"s_add_u32 m0, s{sT}, {32768 + half * 8192}")
        e(f"s_mov_b32 s{sT}, s{sx}")
        for k in range(4):
            if not (OPT.get("nodma", 0) & 2 and CUR[1]):
                e(f"buffer_load_dwordx4 v{vX1 if k & 1 else vX0}, {srd(SRD_X)}, s{sT} offen lds")
            if k < 3:
                e("s_add_u32 m0, m0, 1024")
                e(f"s_add_u32 s{sT}, s{sT}, 0x80000")
        e(f"s_add_u32 s{sx}, s{sx}, 128")

    e(f"s_mov_b32 s{sS0}, {SLOT}")
    e(f"s_mov_b32 s{sS1}, {2 * SLOT}")
    e("s_waitcnt lgkmcnt(0)")
    cm("G0 = x0 + W0 ; G1 = W1 + x1a")
    xpieces(sS0, 0)
    wm_select(f"s_cmp_eq_u32 s{sLW}, 1")
    wpieces(sS0, 0)
    xpieces(sS0, 1)
    if OPT["bs"]:
        bar("BS")
    wpieces(sS0, 16384)
    xpieces(sS1, 0)
    ids2()
    xa_init()
    wd_voffset(vWD, 6)
    e(f"s_lshl_b32 s{sT}, s{sCB}, 7")
    rot_offsets(15, f"s{sT}")
    e("v_min_u32 v10, 13, v0")
    e("v_lshlrev_b32 v10, 7, v10")
    e(f"s_lshr_b32 s61, s{sT1}, 1")
    e("s_lshl_b32 s61, s61, 11")
    e(f"s_add_u32 s61, s61, {FLH}")
    e(f"s_cmp_eq_u32 s{sLW}, 0")
    e(f"s_cselect_b32 s61, s61, {OOB:#x}")
    e("v_lshlrev_b32 v13, 4, v0")
    e(f"s_lshl_b32 s56, s{sJ}, 13")
    e("s_add_u32 s56, s56, s74")
    e(f"s_add_u32 s56, s56, {CS_OFF}")
    e("s_add_u32 s57, s56, 4096")
    e(f"s_lshl_b32 s62, s{sI}, 11")
    e("s_add_u32 s62, s62, s74")
    e(f"s_add_u32 s62, s62, {ST_OFF}")
    e(f"s_lshl_b32 s63, s{sLW}, 9")
    e(f"s_add_u32 s63, s63, {CSL}")
    e("v_lshl_add_u32 v45, v0, 3, s63")
    e(f"s_lshl_b32 s63, s{sLW}, 8")
    e(f"s_add_u32 s63, s63, {RL}")
    e("v_lshl_add_u32 v46, v0, 2, s63")
    e(f"s_mov_b32 s{sS0}, {2 * SLOT}")
    e(f"s_mov_b32 s{sS1}, 0")
    e(f"s_mov_b32 s{sCnt}, 6")
    e("s_waitcnt vmcnt(12)")
    stamp(1)
    bar("B0")
    lab("L01LOOP")
    CUR[1] = True
    wpieces(sS0, 0)
    xpieces(sS0, 1)
    A0 = OPT["xa0"]
    NA = -(-28 // OPT["na"])
    ev = [n for n in range(0, 12, 2) if A0 <= n < A0 + NA]
    od = [n for n in range(1, 12, 2) if A0 <= n < A0 + NA]
    e(f"s_sub_u32 s63, {6 - ev[0] // 2}, s{sCnt}")
    e(f"s_cmp_ge_u32 s63, {len(ev)}")
    e("s_cbranch_scc1 L01X0")
    xa()
    lab("L01X0")
    e("s_waitcnt vmcnt(12)")
    bar("B(2s+1)")
    wpieces(sS0, 16384)
    xpieces(sS1, 0)
    e(f"s_sub_u32 s63, {6 - od[0] // 2}, s{sCnt}")
    e(f"s_cmp_ge_u32 s63, {len(od)}")
    e("s_cbranch_scc1 L01X1")
    xa()
    lab("L01X1")
    e(f"s_mov_b32 s{sS0}, s{sS1}")
    e(f"s_add_u32 s{sS1}, s{sS1}, {SLOT}")
    e(f"s_cmp_eq_u32 s{sS1}, {3 * SLOT}")
    e(f"s_cselect_b32 s{sS1}, 0, s{sS1}")
    e(f"s_sub_u32 s{sCnt}, s{sCnt}, 1")
    e(f"s_cmp_lg_u32 s{sCnt}, 0")
    e("s_waitcnt vmcnt(12)")
    bar("B(2s+2)")
    e("s_cbranch_scc1 L01LOOP")
    wpieces(sS0, 0)
    xpieces(sS0, 1)
    e(f"v_mov_b32 v7, {TAGL}")
    e("ds_read_b32 v8, v7")
    e("s_waitcnt vmcnt(12)")
    bar("B13")
    wpieces(sS0, 16384)

    def gets():
        cm("statistics of the other workgroups: column sums (128 columns x 4 partial sums) and 64 rows per wave")
        for k in range(4):
            e(f"buffer_load_dwordx4 {vr(16 + 4 * k, 4)}, v13, {srd(SRD_WS)}, {'s57' if k >= 2 else 's56'} offen offset:{2048 * (k & 1)} sc1")
        e(f"buffer_load_dwordx4 v[32:35], v13, {srd(SRD_WS)}, s62 offen sc1")

    gets()
    e(f"s_lshl_b32 s{sWd}, s{sLW}, 14")
    e(f"s_lshl_b32 m0, s{sLW}, 11")

    def units(a, b, th=0):
        for v in range(a, b):
            if v and v & 7 == 0:
                e(f"s_add_u32 s{sWd}, s{sWd}, 262144")
            e(f"s_add_u32 s{sT}, s{sWd}, s{48 + (v & 7)}")
            if v < NRES:
                e(f"buffer_load_dwordx4 v{vWD}, {srd(SRD_WD)}, s{sT} offen lds")
                e("s_add_u32 m0, m0, 1024")
            else:
                e(f"buffer_load_dwordx4 {vr(ST0 + 8 * (v - NRES), 4)}, v{vWD}, {srd(SRD_WD)}, s{sT} offen")
            e(f"s_add_u32 s{sT}, s{sT}, 8192")
            if v < NRES:
                e(f"buffer_load_dwordx4 v{vWD}, {srd(SRD_WD)}, s{sT} offen lds")
            else:
                e(f"buffer_load_dwordx4 {vr(ST0 + 8 * (v - NRES) + 4, 4)}, v{vWD}, {srd(SRD_WD)}, s{sT} offen")
            if v + 1 < NRES:
                e(f"s_add_u32 m0, m0, {(wslot(v + 1) - wslot(v)) * 4096 - 1024}")
            if th:
                e(f"s_waitcnt vmcnt({th})")

    ST0 = 64
    U1, U2 = OPT["u1"], OPT["u2"]
    units(0, U1)
    e("s_waitcnt lgkmcnt(0)")
    e(f"v_readfirstlane_b32 s{sTAG}, v8")
    e(f"s_waitcnt vmcnt({8 + 5 + 2 * U1})")
    bar("B14")
    units(U1, U2)
    e(f"s_waitcnt vmcnt({5 + 2 * U2})")
    bar("B15")
    e(f"s_mov_b32 s75, {OPT['spin']}")
    e(f"s_waitcnt vmcnt({2 * U2})")
    lab("GCHK")
    for k in range(8):
        e(f"v_xor_b32 v{36 + k}, s{sTAG}, v{17 + 2 * k}")
    e(f"v_xor_b32 v44, s{sTAG}, v35")
    for k in range(4):
        e(f"v_or3_b32 v44, v44, v{36 + 2 * k}, v{37 + 2 * k}")
    e("v_cmp_ne_u32 vcc, 0, v44")
    e("v_add_f32 v36, v16, v20")
    e("v_add_f32 v37, v18, v22")
    e("s_cmp_eq_u64 vcc, 0")
    e("s_cbranch_scc1 GOK")
    e("s_sleep 2")
    gets()
    e("s_sub_u32 s75, s75, 1")
    e("s_cmp_lg_u32 s75, 0")
    e("s_waitcnt vmcnt(0)")
    e("s_cbranch_scc1 GCHK")
    lab("GOK")
    e("v_add_f32 v38, v24, v28")
    e("v_add_f32 v39, v26, v30")
    e("v_add_f32 v36, v36, v38")
    e("v_add_f32 v37, v37, v39")
    e("ds_write_b64 v45, v[36:37]")
    e(f"ds_write_b64 v45, v[32:33] offset:{MRP - CSL}")
    e("ds_write_b32 v46, v33")
    if not OPT["nocs"]:
        e("v_mul_f32 v38, v32, v33")
        e("v_xor_b32 v38, 0x80000000, v38")
        e("ds_write_b32 v46, v38 offset:512")
    e("s_waitcnt lgkmcnt(0)")
    stamp(2)
    bar("B16")
    TR = OPT["trk"]
    units(U2, TR, OPT["th"])
    e(f"s_cmp_eq_u32 s{sDFT}, 1")
    e("s_cbranch_scc1 L01GO")
    wait_c_done()
    lab("L01GO")
    stamp(3)
    PA = OPT["pa"]
    units(TR, PA)
    e(f"s_cmp_eq_u32 s{sDFT}, 0")
    e("s_cbranch_scc1 L01GO2")
    wait_c_done()
    lab("L01GO2")
    cm("L0 waits for the 14 producers of row block t1>>1 (queued behind the w_down loads)")
    poll_issue(11, 10, "s61", SRD_WS)
    units(PA, 56)
    e("v_and_b32 v6, 3, v0")
    e("v_bfe_u32 v7, v0, 3, 2")
    e("v_lshl_add_u32 v6, v7, 2, v6")
    e("v_bfe_u32 v7, v0, 2, 1")
    e("v_lshl_add_u32 v6, v7, 4, v6")
    e("v_and_b32 v7, 32, v0")
    e(f"s_lshl_b32 s66, s{sCB}, 6")
    e("v_add3_u32 v6, v6, v7, s66")
    e("v_sub_u32 v7, 512, v6")
    e("v_and_b32 v7, 255, v7")
    e(f"s_sub_u32 s67, 32, s{sT1}")
    e("s_and_b32 s67, s67, 31")
    e(f"s_cmp_ge_u32 s{sCB}, 4")
    e("s_cselect_b64 s[68:69], -1, 0")
    e(f"s_cselect_b32 s67, s67, s{sT1}")
    e("v_cmp_eq_u32 vcc, 0, v6")
    e("v_cndmask_b32 v7, v6, v7, s[68:69]")
    e(f"v_lshlrev_b32 v{vZ}, 4, v7")
    e(f"v_mov_b32 v7, {OOB:#x}")
    e("s_lshl_b32 s67, s67, 16")
    e(f"v_cndmask_b32 v{vZ}, v{vZ}, v7, vcc")
    e(f"s_lshl_b32 s66, s{sLW}, 15")
    e("s_add_u32 s67, s67, s66")
    e(f"s_add_u32 s67, s67, {Z_OFF}")
    e(f"s_lshl_b32 s66, s{sLW}, 13")
    e(f"s_add_u32 m0, s66, {ZL}")
    e("v_bfe_u32 v12, v0, 1, 4")
    e("v_lshlrev_b32 v12, 4, v12")
    e("v_and_b32 v13, 1, v0")
    e("v_add3_u32 v12, v12, v13, 14")
    e("v_lshlrev_b32 v12, 7, v12")
    e(f"s_mov_b32 s70, {FLH}")
    e(f"s_lshl_b32 s66, s{sLW}, 11")
    e("v_lshl_add_u32 v6, v0, 4, s66")
    e(f"s_cmp_eq_u32 s{sLW}, 1")
    e(f"s_cselect_b32 s70, s70, {OOB:#x}")
    e("s_cbranch_scc1 L1NOPOLL")
    poll_wait(11, 10, "s61", SRD_WS, first_wait=2 * (56 - PA))
    lab("L1NOPOLL")
    e(f"s_waitcnt vmcnt({2 * min(NST, 56 - PA)})")
    stamp(4)
    bar("BW")
    e("s_waitcnt vmcnt(0)")
    bar("BP1")
    poll_issue(11, 12, "s70", SRD_WS)
    for k in range(2 * NST):
        if k == 32:
            e("v_add_u32 v6, 0x10000, v6")
        e(f"ds_write_b128 v6, {vr(ST0 + 4 * k, 4)} offset:{((k >> 1) * 4096 + (k & 1) * 1024) & 0xFFFF}")
    e("s_waitcnt lgkmcnt(0)")
    bar("BP2")
    e(f"s_cmp_eq_u32 s{sLW}, 0")
    e("s_cbranch_scc1 L0NOPOLL")
    poll_wait(11, 12, "s70", SRD_WS)
    lab("L0NOPOLL")
    stamp(5)
    bar("BZ0")
    for g in range(8):
        e(f"buffer_load_dwordx4 v{vZ}, {srd(SRD_WS)}, s67 offen sc1 lds")
        e("s_add_u32 m0, m0, 1024")
        e("s_add_u32 s67, s67, 4096")
    e("s_waitcnt vmcnt(0)")
    stamp(6)
    bar("BR")
    stamp_flush(7, 14, False)
    e("s_endpgm")


DWN = [0, 0]


def dw_init(which):
    if not OPT["dw"]:
        return
    e("v_and_b32 v116, 31, v0")
    e("v_lshlrev_b32 v116, 6, v116")
    e("v_lshrrev_b32 v117, 5, v0")
    e(f"s_cmp_eq_u32 s{sDFT}, 1")
    e(f"s_cselect_b32 s73, 16, 30")
    e("v_lshlrev_b32 v117, s73, v117")
    e("v_add_u32 v116, v116, v117")
    e(f"s_lshl_b32 s61, s{sJ}, 12")
    e(f"s_mul_i32 s57, s{sI}, {2 * 4 * 56 * 1024}")
    e("s_add_u32 s61, s61, s57")
    e(f"s_add_u32 s61, s61, {H_OFF + which * 4 * 57344}")
    e(f"s_lshl_b32 s57, s{sI}, 12")
    e(f"s_and_b32 s73, s{sJ}, 1")
    e("s_lshl_b32 s73, s73, 11")
    e("s_add_u32 s57, s57, s73")
    e(f"s_add_u32 s57, s57, {Z_OFF + which * 16 * 65536}")
    e(f"s_cmp_eq_u32 s{sDFT}, 1")
    e("s_cselect_b32 s61, s57, s61")
    e(f"s_mov_b32 s73, {57344 - 2048}")
    e("s_cselect_b32 s73, 0x20000, s73")
    e("s_movk_i32 s74, 2048")
    e("s_cselect_b32 s74, 0x20000, s74")


def dw(n, which, vm):
    if not OPT["dw"] or n < OPT["dw0"]:
        return
    for _ in range(OPT["dw"]):
        if DWN[which] < 8:
            vm.add(("d", DWN[which]), f"buffer_store_dword v116, v116, {srd(SRD_WS)}, s61 offen sc1")
            e(f"s_add_u32 s61, s61, {'s73' if DWN[which] & 1 else 's74'}")
            DWN[which] += 1


def l23_tail(which, vm):
    xb_init(which)
    xw(8, which)
    for n in range(9, OPT["xe"] + 1):
        if n == OPT["xe"]:
            assert not OPT["dw"] or DWN[which] == 8
            e("s_waitcnt vmcnt(0)")
        bar(f"B{n}")
        xw(n, which)
        dw(n, which, vm)
    for n in range(OPT["xt"]):
        xw(20, which)


def l2wave():
    vC = 8
    vm = Q()
    section("A")
    e("s_branch L01WAVE")
    lab("L2WAVE")
    cm("================ L2: column sums (64 columns x rows 64s + 16kq + 0..15) ================")
    e("v_lshrrev_b32 v18, 3, v0")
    e("v_and_b32 v19, 7, v0")
    e(f"v_mul_lo_u32 v{vC}, v18, s{sRS}")
    e(f"v_lshl_add_u32 v{vC}, v19, 4, v{vC}")
    e(f"s_lshr_b32 s64, s{sI}, 2")
    e("s_lshl_b32 s64, s64, 4")
    e(f"s_mul_i32 s69, s64, s{sRS}")
    e(f"s_and_b32 s64, s{sI}, 1")
    e("s_lshl_b32 s64, s64, 7")
    e("s_add_u32 s69, s69, s64")
    e(f"s_add_u32 s69, s69, s{sCOL}")
    e(f"s_lshl_b32 s70, s{sRS}, 3")
    e(f"s_mul_i32 s72, s{sRS}, 56")
    if OPT["sord"]:
        e("s_add_u32 s69, s69, s70")
        e("s_add_u32 s69, s69, s72")
    e("s_waitcnt lgkmcnt(0)")
    wm_select(f"s_bitcmp1_b32 s{sI}, 1")
    LD, AC = 32, 16

    def csload(y):
        vm.add(("c", y), f"buffer_load_dwordx4 {vr(LD + 4 * y, 4)}, v{vC}, {srd(SRD_WM)}, s69 offen")
        e(f"s_add_u32 s69, s69, {'s72' if y & 1 else 's70'}")
        if OPT["sord"] and y == 13:
            e("s_sub_u32 s69, s69, s34")

    def csproc(y):
        for d in range(4):
            r = LD + 4 * y + d
            if y == 0:
                e(f"v_lshlrev_b32 v{AC + 2 * d}, 16, v{r}")
                e(f"v_and_b32 v{AC + 2 * d + 1}, v9, v{r}")
            else:
                e(f"v_lshlrev_b32 v10, 16, v{r}")
                e(f"v_and_b32 v11, v9, v{r}")
                e(f"v_add_f32 v{AC + 2 * d}, v{AC + 2 * d}, v10")
                e(f"v_add_f32 v{AC + 2 * d + 1}, v{AC + 2 * d + 1}, v11")

    for y in range(2 * OPT["pre"]):
        csload(y)
    if OPT["bs"]:
        bar("BS")
        for y in range(2 * OPT["pre"], 2 * OPT["bs"]):
            csload(y)
    e("s_branch L2REST")
    section("L2")
    lab("L2REST")
    if OPT.get("lp0"):
        e(f"s_setprio {OPT['lp0']}")
    ids2()
    e("v_mov_b32 v9, 0xffff0000")
    dw_init(0)
    stamp(1)
    issued, done = 2 * max(OPT["pre"], OPT["bs"]), 0
    for n in range(8):
        bar(f"B{n}")
        while issued < 16 and n >= OPT["preb"]:
            csload(issued)
            issued += 1
        dw(n, 0, vm)
        if n >= 2:
            k = min(done + 3, 16)
            e(f"s_waitcnt vmcnt({vm.younger(('c', k - 1))})")
            for y in range(done, k):
                csproc(y)
            done = k
    assert done == 16 and issued == 16
    bar("B8")
    e(f"v_mov_b32 v12, {TAGL}")
    e("ds_read_b32 v25, v12")
    for k in range(4):
        e(f"v_permlane32_swap_b32 v{AC + k}, v{AC + k + 4}")
    e("s_nop 1")
    for k in range(4):
        e(f"v_add_f32 v{AC + k}, v{AC + k}, v{AC + k + 4}")
    e("s_nop 1")
    for k in range(2):
        e(f"v_permlane16_swap_b32 v{AC + k}, v{AC + k + 2}")
    e("s_nop 1")
    for k in range(2):
        e(f"v_add_f32 v{AC + k}, v{AC + k}, v{AC + k + 2}")
    e("v_and_b32 v10, 7, v0")
    e("v_lshlrev_b32 v10, 3, v10")
    e(f"v_add_f32_dpp v24, v{AC}, v{AC} row_ror:8 row_mask:0xf bank_mask:0x3")
    e(f"v_add_f32_dpp v24, v{AC + 1}, v{AC + 1} row_ror:8 row_mask:0xf bank_mask:0xc")
    e("v_bfe_u32 v11, v0, 5, 1")
    e("v_lshl_add_u32 v10, v11, 2, v10")
    e("v_bfe_u32 v11, v0, 4, 1")
    e("v_lshl_add_u32 v10, v11, 1, v10")
    e("v_bfe_u32 v11, v0, 3, 1")
    e("v_add_u32 v10, v11, v10")
    e("v_lshlrev_b32 v10, 3, v10")
    e(f"s_lshl_b32 s64, s{sJ}, 13")
    e(f"s_add_u32 s64, s64, {CS_OFF}")
    e(f"s_lshl_b32 s65, s{sI}, 9")
    e("s_add_u32 s65, s64, s65")
    e("s_waitcnt lgkmcnt(0)")
    vm.add("pub", f"buffer_store_dwordx2 v[24:25], v10, {srd(SRD_WS)}, s65 offen sc1")
    stamp(2)
    l23_tail(0, vm)
    stamp_flush(3, 26, False)
    e("s_endpgm")


def l3wave():
    vm = Q()
    section("A")
    lab("L3WAVE")
    cm("================ L3: launch tag, row statistics (rows 8j..8j+7 of the row block), hand-off waits ================")
    e(f"s_bfe_u32 s64, s{sJ}, 0x10002")
    e(f"s_bfe_u32 s65, s{sJ}, 0x10003")
    e("s_lshl_b32 s65, s65, 5")
    e(f"s_lshl_b32 s66, s{sI}, 1")
    e("s_add_u32 s64, s64, s65")
    e("s_add_u32 s64, s64, s66")
    e(f"s_and_b32 s65, s{sJ}, 3")
    e("s_lshl_b32 s65, s65, 9")
    e("s_add_u32 s64, s64, s65")
    e("s_lshl_b32 s64, s64, 10")
    e("v_lshrrev_b32 v4, 3, v0")
    e("v_and_b32 v14, 7, v0")
    e("v_lshlrev_b32 v6, 16, v4")
    e("v_lshl_add_u32 v6, v14, 4, v6")
    e("s_memrealtime s[66:67]")
    e("s_waitcnt lgkmcnt(0)")
    LD, UP = 16, 48

    def rowload(y):
        vm.add(("r", y), f"buffer_load_dwordx4 {vr(LD + 4 * y, 4)}, v6, {srd(SRD_X)}, s64 offen offset:{128 * ((y + OPT['sord']) & 7)}")

    for y in range(OPT["pre"]):
        rowload(y)
    if OPT["bs"]:
        bar("BS")
        for y in range(OPT["pre"], OPT["bs"]):
            rowload(y)
    e("s_branch L3REST")
    section("L3")
    lab("L3REST")
    if OPT.get("lp0"):
        e(f"s_setprio {OPT['lp0']}")
    ids2()
    e("v_mov_b32 v2, 0")
    e("s_or_b32 s66, s66, 1")
    e("v_mov_b32 v3, s66")
    e("s_cmp_eq_u32 s2, 0")
    e(f"s_cselect_b32 s66, 0, {OOB:#x}")
    vm.add("tag", f"buffer_store_dword v3, v2, {srd(SRD_DBG)}, s66 offen sc1")
    e("v_mov_b32 v9, 0xffff0000")
    dw_init(1)

    def unp(d):
        e(f"v_lshlrev_b32 v{UP + 2 * d}, 16, v{LD + d}")
        e(f"v_and_b32 v{UP + 2 * d + 1}, v9, v{LD + d}")
        if d == 0:
            e(f"v_mov_b32 v10, v{UP}")
            e(f"v_mov_b32 v11, v{UP + 1}")
        else:
            e(f"v_add_f32 v10, v10, v{UP + 2 * d}")
            e(f"v_add_f32 v11, v11, v{UP + 2 * d + 1}")

    def red8(r):
        e("s_nop 1")
        e(f"v_add_f32_dpp v{r}, v{r}, v{r} quad_perm:[1,0,3,2] row_mask:0xf bank_mask:0xf")
        e("s_nop 1")
        e(f"v_add_f32_dpp v{r}, v{r}, v{r} quad_perm:[2,3,0,1] row_mask:0xf bank_mask:0xf")
        e("s_nop 1")
        e(f"v_add_f32_dpp v{r}, v{r}, v{r} row_half_mirror row_mask:0xf bank_mask:0xf")

    def var(k):
        e(f"v_sub_f32 v{UP + k}, v{UP + k}, v10")
        e(f"v_fmac_f32 v{12 + (k & 1)}, v{UP + k}, v{UP + k}")

    issued, done = max(OPT["pre"], OPT["bs"]), 0
    for n in range(6):
        bar(f"B{n}")
        while issued < 8 and n >= OPT["preb"]:
            rowload(issued)
            issued += 1
        dw(n, 1, vm)
        if n == 5:
            vm.add("np")
            poll_issue(3, 2, "0", SRD_DBG)
        if n >= 2:
            k = min(done + 2, 8)
            e(f"s_waitcnt vmcnt({vm.younger(('r', k - 1))})")
            for d in range(4 * done, 4 * k):
                unp(d)
            done = k
    assert done == 8 and issued == 8
    e("v_add_f32 v10, v10, v11")
    red8(10)
    e(f"v_mul_f32 v10, {f2u(1.0 / 512):#x}, v10")
    e("v_mov_b32 v12, 0")
    e("v_mov_b32 v13, 0")
    bar("B6")
    dw(6, 1, vm)
    for k in range(24):
        var(k)
    bar("B7")
    poll_wait(3, 2, "0", SRD_DBG, cond_tag=False, first_wait=vm.younger("np"))
    e(f"v_mov_b32 v15, {TAGL}")
    e("ds_write_b32 v15, v3")
    e("ds_write_b32 v15, v2 offset:4")
    e("ds_write_b32 v15, v2 offset:8")
    e(f"v_readfirstlane_b32 s{sTAG}, v3")
    for k in range(24, 44):
        var(k)
    e("s_waitcnt lgkmcnt(0)")
    dw(7, 1, vm)
    bar("B8")
    for k in range(44, 64):
        var(k)
    e("v_add_f32 v12, v12, v13")
    red8(12)
    e(f"v_mul_f32 v12, {f2u(1.0 / 512):#x}, v12")
    cm("roundings as in the reference: m=bf(mean); sd=bf(sqrt(bf(bf(var)+eps))); r=1/sd")
    e("v_cvt_pk_bf16_f32 v15, v10, v12")
    e("v_lshlrev_b32 v16, 16, v15")
    e("v_and_b32 v12, v9, v15")
    e(f"v_add_f32 v12, {f2u(1e-5):#x}, v12")
    e("v_cvt_pk_bf16_f32 v12, v12, v12")
    e("v_and_b32 v12, v9, v12")
    e("v_sqrt_f32 v12, v12")
    e("v_cmp_eq_u32 vcc, 0, v14")
    e("v_cvt_pk_bf16_f32 v12, v12, v12")
    e("v_and_b32 v12, v9, v12")
    e("v_rcp_f32 v17, v12")
    e("v_lshlrev_b32 v14, 4, v4")
    e(f"v_mov_b32 v15, {OOB:#x}")
    e(f"s_lshl_b32 s64, s{sI}, 11")
    e(f"s_add_u32 s64, s64, {ST_OFF}")
    e("v_cndmask_b32 v14, v15, v14, vcc")
    e("v_mov_b32 v18, v3")
    e("v_mov_b32 v19, v3")
    e(f"s_lshl_b32 s65, s{sJ}, 7")
    e("s_add_u32 s65, s64, s65")
    vm.add("pub", f"buffer_store_dwordx4 v[16:19], v14, {srd(SRD_WS)}, s65 offen sc1")
    stamp(1)
    l23_tail(1, vm)
    stamp_flush(2, 26, False)
    e("s_endpgm")


XF = [[64 + 4 * q for q in range(4)], [80 + 4 * q for q in range(4)]]
WF = [[96, 100], [104, 108]]
XA = [112, 113, 114, 115]
WA = 116
vPM = 118
CG, CU, MR = 0, 16, 32
vA_CS, vA_MR, vA_TAG = 45, 46, 116 if OPT['m16'] else 47
R0, N0 = 64, 80
vD_CS, vD_R, vD_TAG = 122, 123, 124
sXO, sRO, sFLG, sOUT, sC0, sP, sKH = 56, 60, 61, 62, 63, 73, 74


def ACC(mat, q):
    return 128 + 32 * q + 16 * mat


def TW(q, cs, z):
    return 16 * q + 8 * cs + 4 * z


def frag_reads(u, st):
    r = []
    for mat in range(2):
        for a in range(2):
            r.append(f"ds_read_b64_tr_b16 {vr(WF[st][mat] + 2 * a, 2)}, v{WA} offset:{u * 8192 + a * 2048 + mat * 1024}")
    for q in range(4):
        r.append(f"ds_read_b128 {vr(XF[st][q], 4)}, v{XA[u]} offset:{q * 4096}")
    return r


def glu_stat_reads():
    r = [f"ds_read_b64 {vr(MR + 2 * q, 2)}, v{vA_MR} offset:{256 * q}" for q in range(4)]
    r += [f"ds_read_b128 {vr(CG + 4 * a, 4)}, v{vA_CS} offset:{32 * a}" for a in range(4)]
    r += [f"ds_read_b128 {vr(CU + 4 * a, 4)}, v{vA_CS} offset:{512 + 32 * a}" for a in range(4)]
    r += [f"ds_read_b32 v43, v{vA_TAG}"]
    return r


def dft_stat_reads():
    return [f"ds_read_b32 v118, v{vD_CS}", f"ds_read_b32 v119, v{vD_CS} offset:512", f"ds_read_b32 v{vD_TAG}, v{vD_TAG}"] + \
           [f"ds_read_b128 {vr(R0 + 4 * a, 4)}, v{vD_R} offset:{32 * a}" for a in range(4)]


def mainloop(dft):
    sCnt, sDelta, sCur = 64, 65, 66
    tag = "D" if dft else "G"
    es(frag_reads(0, 0))
    e(f"s_mov_b32 s{sCnt}, 8")
    e(f"s_mov_b32 s{sCur}, {SLOT}")
    e(f"s_mov_b32 s67, {(-2 * SLOT) & 0xffffffff:#x}")

    def step(u, last):
        st = u & 1
        mf = []
        for mat in ((1, 0) if dft else (0, 1)):
            for q in range(4):
                a, b = (XF[st][q], WF[st][mat]) if dft else (WF[st][mat], XF[st][q])
                mf.append(f"v_mfma_f32_32x32x16_bf16 {vr(ACC(mat, q), 16)}, {vr(a, 4)}, {vr(b, 4)}, {vr(ACC(mat, q), 16)}")
        rd = frag_reads((u + 1) & 3, st ^ 1)
        gaps = [[] for _ in range(8)]
        if u == 3 and not last:
            gaps[0] += [f"v_add_u32 v{WA}, s{sDelta}, v{WA}", f"v_add_u32 v{XA[0]}, s{sDelta}, v{XA[0]}"]
            gaps[5] += [f"v_add_u32 v{XA[1]}, s{sDelta}, v{XA[1]}"]
            gaps[6] += [f"v_add_u32 v{XA[2]}, s{sDelta}, v{XA[2]}", f"v_add_u32 v{XA[3]}, s{sDelta}, v{XA[3]}"]
        if PROF and u in (0, 2):
            gaps[0] += ["s_memtime s[70:71]"]
        if PROF and u in (1, 3):
            gaps[5] += [f"s_lshl_b32 s72, s{sCnt}, 1", f"s_sub_u32 m0, {16 if u == 1 else 15}, s72", f"v_writelane_b32 v{vLOOPST}, s70, m0"]
        if u == 2:
            gaps[5] += [f"s_cmp_eq_u32 s{sCur}, {2 * SLOT}", f"s_cselect_b32 s{sDelta}, s67, {SLOT}"]
            gaps[6] += [f"s_add_u32 s{sCur}, s{sCur}, s{sDelta}", f"s_sub_u32 s{sCnt}, s{sCnt}, 1"]
            gaps[7] += [f"s_cmp_eq_u32 s{sCnt}, 0"]
        if u & 1:
            gaps[0] += ["s_barrier"]
        if dft:
            gaps[0] = [f"v_cndmask_b32 v{WF[st][0] + k}, v{WF[st][0] + k}, v{vPM}, s[68:69]" for k in range(2)] + gaps[0]
            gaps[1] += [f"v_cndmask_b32 v{WF[st][0] + k}, v{WF[st][0] + k}, v{vPM}, s[68:69]" for k in range(2, 4)]
        if last:
            extra = dft_stat_reads() if dft else glu_stat_reads()
            for k, x in enumerate(extra):
                gaps[2 + min(k // 3, 4)].append(x)
        else:
            for k in range(4):
                gaps[k + (1 if (u & 1) else 0)] += rd[2 * k:2 * k + 2]
        e("s_waitcnt lgkmcnt(0)")
        for k in range(8):
            e(mf[k])
            es(gaps[k])

    raw(".p2align 3")
    lab(f"MAIN{tag}")
    for u in range(3):
        step(u, False)
    e(f"s_cbranch_scc1 LAST{tag}")
    step(3, False)
    e(f"s_branch MAIN{tag}")
    lab(f"LAST{tag}")
    step(3, True)


X16 = [4 * k for k in range(8)]
W16 = [[64 + 4 * n for n in range(4)], [80 + 4 * n for n in range(4)]]
XA16, WA16 = [112, 113], [114, 115]
MR16, CG16, CU16, TG16 = 32, 48, 56, 96
vB_CS, vB_MR = 119, 120


def A16(sg, n):
    return 128 + 16 * sg + 4 * n


def mainloop16():
    sCnt, sDelta, sCur = 64, 65, 66
    lq = Q()
    gen = [0]

    def rdx(sg, h):
        lq.add(("x", sg), f"ds_read_b128 {vr(X16[sg], 4)}, v{XA16[h]} offset:{sg * 2048}")

    def rdw(n, a, h):
        lq.add(("w", n, a), f"ds_read_b64_tr_b16 {vr(W16[h][n] + 2 * a, 2)}, v{WA16[n & 1]} offset:{h * 16384 + a * 2048 + (n >> 1) * 1024}")

    def wait(tag):
        idx = max(i for i, t in enumerate(lq.l) if t == tag)
        n = len(lq.l) - 1 - idx
        if n < gen[0]:
            e(f"s_waitcnt lgkmcnt({n})")
            gen[0] = n

    def second_half_reads(h):
        return [lambda: rdw(0, 0, h), lambda: rdw(0, 1, h), lambda: rdx(0, h), lambda: rdw(1, 0, h), lambda: rdw(1, 1, h),
                lambda: rdw(2, 0, h), lambda: rdw(2, 1, h), lambda: rdw(3, 0, h), lambda: rdw(3, 1, h),
                lambda: rdx(1, h), lambda: rdx(2, h), lambda: rdx(3, h)]

    def issue(f):
        f()
        gen[0] += 1

    for f in second_half_reads(0):
        issue(f)
    e(f"s_mov_b32 s{sCnt}, 8")
    e(f"s_mov_b32 s{sCur}, {SLOT}")
    e(f"s_mov_b32 s67, {(-2 * SLOT) & 0xffffffff:#x}")

    def step(h, last):
        gen[0] = 15
        gaps = [[] for _ in range(32)]
        for k, sg in enumerate((4, 5, 6, 7)):
            gaps[1 + 2 * k].append(lambda sg=sg: rdx(sg, h))
        txt = [[] for _ in range(32)]
        if h == 0:
            txt[9] += [f"s_cmp_eq_u32 s{sCur}, {2 * SLOT}", f"s_cselect_b32 s{sDelta}, s67, {SLOT}"]
            txt[10] += [f"s_add_u32 s{sCur}, s{sCur}, s{sDelta}", f"s_sub_u32 s{sCnt}, s{sCnt}, 1"]
            txt[31] += [f"s_cmp_eq_u32 s{sCnt}, 0"]
        elif not last:
            txt[9] += [f"v_add_u32 v{XA16[0]}, s{sDelta}, v{XA16[0]}", f"v_add_u32 v{XA16[1]}, s{sDelta}, v{XA16[1]}"]
            txt[10] += [f"v_add_u32 v{WA16[0]}, s{sDelta}, v{WA16[0]}", f"v_add_u32 v{WA16[1]}, s{sDelta}, v{WA16[1]}"]
        if PROF:
            txt[11] += ["s_memtime s[70:71]"]
            txt[29] += [f"s_lshl_b32 s72, s{sCnt}, 1", f"s_sub_u32 m0, {14 + h}, s72"]
            txt[30] += [f"v_writelane_b32 v{vLOOPST}, s70, m0"]
        if last:
            st = [f"ds_read_b64 {vr(MR16 + 2 * sg, 2)}, v{vB_MR} offset:{128 * sg}" for sg in range(8)]
            st += [f"ds_read_b128 {vr(CG16 + 4 * n, 4)}, v{vB_CS} offset:{64 * n}" for n in range(2)]
            st += [f"ds_read_b128 {vr(CU16 + 4 * n, 4)}, v{vB_CS} offset:{512 + 64 * n}" for n in range(2)]
            st += [f"ds_read_b32 v{TG16}, v{vA_TAG}"]
            for k, x in enumerate(st):
                txt[17 + k].append(x)
        else:
            for k, f in enumerate(second_half_reads(h ^ 1)):
                gaps[17 + k].append(f)
        for m in range(32):
            sg, n = m >> 2, m & 3
            if sg == 0:
                wait(("w", n, 1))
            if n == 0:
                wait(("x", 7 if sg == 4 else sg))
            e(f"v_mfma_f32_16x16x32_bf16 {vr(A16(sg, n), 4)}, {vr(W16[h][n], 4)}, {vr(X16[sg], 4)}, {vr(A16(sg, n), 4)}")
            if m == 16:
                bar()
            for f in gaps[m]:
                issue(f)
            es(txt[m])

    raw(".p2align 3")
    lab("MAING")
    step(0, False)
    e("s_cbranch_scc1 LASTG")
    keep = list(lq.l)
    step(1, False)
    e("s_branch MAING")
    lab("LASTG")
    lq.l = keep
    step(1, True)


def glu_epilogue16():
    e(f"v_and_b32 v97, 15, v{vLANE}")
    e(f"v_bfe_u32 v98, v{vLANE}, 4, 1")
    e("v_lshlrev_b32 v97, 4, v97")
    e("v_lshl_add_u32 v97, v98, 9, v97")
    e(f"v_lshrrev_b32 v98, 5, v{vLANE}")
    e(f"v_mul_u32_u24 v98, {56 * 1024}, v98")
    e("v_add_u32 v97, v97, v98")
    e("s_mov_b32 s66, 1.0")
    e("s_mov_b32 s67, 1.0")
    e("s_waitcnt lgkmcnt(0)")
    e(f"v_readfirstlane_b32 s{sTAG}, v{TG16}")
    for sg in range(8):
        e(f"v_mul_f32 v{MR16 + 2 * sg + 1}, {NLOG2E:#x}, v{MR16 + 2 * sg + 1}")
    raw(".p2align 3")
    for sg in range(8):
        q = sg >> 1
        b, p = q & 1, q >> 1
        mr = vr(MR16 + 2 * sg, 2)
        G, U = A16(sg, 0), A16(sg, 2)
        for k in range(4):
            e(f"v_pk_fma_f32 {vr(G + 2 * k, 2)}, {vr(CG16 + 2 * k, 2)}, {mr}, {vr(G + 2 * k, 2)} op_sel_hi:[1,0,1] neg_lo:[0,1,0] neg_hi:[0,1,0]")
        for k in range(4):
            e(f"v_pk_mul_f32 {vr(G + 2 * k, 2)}, {vr(G + 2 * k, 2)}, {mr} op_sel:[0,1] op_sel_hi:[1,1]")
        for k in range(8):
            e(f"v_exp_f32 v{G + k}, v{G + k}")
        for k in range(4):
            e(f"v_pk_add_f32 {vr(G + 2 * k, 2)}, {vr(G + 2 * k, 2)}, s[66:67]")
        for k in range(8):
            e(f"v_rcp_f32 v{G + k}, v{G + k}")
        for k in range(4):
            e(f"v_pk_fma_f32 {vr(U + 2 * k, 2)}, {vr(CU16 + 2 * k, 2)}, {mr}, {vr(U + 2 * k, 2)} op_sel_hi:[1,0,1] neg_lo:[0,1,0] neg_hi:[0,1,0]")
        for k in range(4):
            e(f"v_pk_mul_f32 {vr(U + 2 * k, 2)}, {vr(U + 2 * k, 2)}, {vr(G + 2 * k, 2)}")
        o = 4 * sg
        for k in range(4):
            e(f"v_cvt_pk_bf16_f32 v{o + k}, v{U + 2 * k}, v{U + 2 * k + 1}")
        e(f"s_add_u32 s65, s{sOUT}, {(b * 2 + p) * 2 * 56 * 1024 + (sg & 1) * 256 + H_OFF}")
        if OPT.get("hw") and sg >= OPT["hw"]:
            e(f"s_waitcnt vmcnt({OPT['hw'] - 1})")
            e("s_nop 0")
        e(f"buffer_store_dwordx4 {vr(o, 4)}, v97, {srd(SRD_WS)}, s65 offen sc1")
    e(f"v_mov_b32 v43, v{TG16}")
    publish()


def glu_epilogue():
    e(f"v_lshlrev_b32 v44, 4, v{vLANE}")
    e("s_mov_b32 s66, 1.0")
    e("s_mov_b32 s67, 1.0")
    e("s_waitcnt lgkmcnt(0)")
    e(f"v_readfirstlane_b32 s{sTAG}, v43")
    for q in range(4):
        e(f"v_mul_f32 v{MR + 2 * q + 1}, {NLOG2E:#x}, v{MR + 2 * q + 1}")
    raw(".p2align 3")
    out = 0
    for q in range(4):
        b, p = q & 1, q >> 1
        mr = vr(MR + 2 * q, 2)
        for z in range(2):
            G = ACC(0, q) + 8 * z
            U = ACC(1, q) + 8 * z
            for k in range(4):
                e(f"v_pk_fma_f32 {vr(G + 2 * k, 2)}, {vr(CG + 8 * z + 2 * k, 2)}, {mr}, {vr(G + 2 * k, 2)} op_sel_hi:[1,0,1] neg_lo:[0,1,0] neg_hi:[0,1,0]")
            for k in range(4):
                e(f"v_pk_mul_f32 {vr(G + 2 * k, 2)}, {vr(G + 2 * k, 2)}, {mr} op_sel:[0,1] op_sel_hi:[1,1]")
            for k in range(8):
                e(f"v_exp_f32 v{G + k}, v{G + k}")
            for k in range(4):
                e(f"v_pk_add_f32 {vr(G + 2 * k, 2)}, {vr(G + 2 * k, 2)}, s[66:67]")
            for k in range(8):
                e(f"v_rcp_f32 v{G + k}, v{G + k}")
            for k in range(4):
                e(f"v_pk_fma_f32 {vr(U + 2 * k, 2)}, {vr(CU + 8 * z + 2 * k, 2)}, {mr}, {vr(U + 2 * k, 2)} op_sel_hi:[1,0,1] neg_lo:[0,1,0] neg_hi:[0,1,0]")
            for k in range(4):
                e(f"v_pk_mul_f32 {vr(U + 2 * k, 2)}, {vr(U + 2 * k, 2)}, {vr(G + 2 * k, 2)}")
            o = 64 + 4 * out
            out += 1
            for k in range(4):
                e(f"v_cvt_pk_bf16_f32 v{o + k}, v{U + 2 * k}, v{U + 2 * k + 1}")
            e(f"s_add_u32 s65, s{sOUT}, {((b * 2 + p) * 2 + z) * 56 * 1024 + H_OFF}")
            e(f"buffer_store_dwordx4 {vr(o, 4)}, v44, {srd(SRD_WS)}, s65 offen sc1")
    publish()


def publish():
    stamp(3)
    cm("publish: the last of the four waves whose stores have completed writes the workgroup's flag")
    e("v_mov_b32 v41, 1")
    e("v_mov_b32 v42, 0")
    e("s_mov_b64 exec, 1")
    e("s_waitcnt vmcnt(0)")
    e(f"ds_add_rtn_u32 v41, v{vA_TAG}, v41 offset:4")
    e("s_waitcnt lgkmcnt(0)")
    e("v_readfirstlane_b32 s64, v41")
    e("s_cmp_lg_u32 s64, 3")
    e("s_cbranch_scc1 HNOFLAG")
    e(f"buffer_store_dword v43, v42, {srd(SRD_WS)}, s{sFLG} offen sc1")
    lab("HNOFLAG")
    e("s_mov_b64 exec, -1")
    stamp(4)


def dft_prologue():
    e(f"v_and_b32 v2, 31, v{vLANE}")
    e("v_cvt_f32_u32 v3, v2")
    e(f"v_mul_f32 v3, {f2u(1.0 / 2048):#x}, v3")
    e(f"s_and_b32 s64, s{sWAVE}, 1")
    e(f"s_lshr_b32 s65, s{sWAVE}, 1")
    e("s_lshl_b32 s65, s65, 5")
    e("s_add_u32 s64, s64, s65")
    e(f"s_lshl_b32 s65, s{sI}, 1")
    e("s_add_u32 s64, s64, s65")
    e(f"v_lshrrev_b32 v4, 5, v{vLANE}")
    e("v_lshl_add_u32 v4, v4, 8, s64")
    e("v_cvt_f32_u32 v4, v4")
    e("v_mul_f32 v4, v3, v4")
    e("v_and_b32 v5, 1, v2")
    e("v_mul_u32_u24 v5, 0x8000, v5")
    e("v_lshl_or_b32 v5, v5, 16, v5")
    for jj in range(8):
        e(f"v_fmamk_f32 v{8 + jj}, v3, {f2u(64.0 * (8 * (jj >> 2) + (jj & 3))):#x}, v4")
    for jj in range(8):
        e(f"v_fract_f32 v{8 + jj}, v{8 + jj}")
    for jj in range(8):
        e(f"v_cos_f32 v{16 + jj}, v{8 + jj}")
        e(f"v_sin_f32 v{24 + jj}, v{8 + jj}")
    e("s_nop 0")
    for k in range(4):
        e(f"v_cvt_pk_bf16_f32 v{32 + k}, v{16 + 2 * k}, v{17 + 2 * k}")
        e(f"v_cvt_pk_bf16_f32 v{40 + k}, v{24 + 2 * k}, v{25 + 2 * k}")
    for k in range(4):
        e(f"v_xor_b32 v{36 + k}, v5, v{32 + k}")
        e(f"v_xor_b32 v{44 + k}, v5, v{40 + k}")
    e(f"s_lshl_b32 s64, s{sWAVE}, 12")
    e(f"s_add_u32 s64, s64, {MISC}")
    e(f"v_lshl_add_u32 v6, v{vLANE}, 4, s64")
    for k in range(4):
        e(f"ds_write_b128 v6, {vr(32 + 4 * k, 4)} offset:{1024 * k}")
    cm("column 0 carries the Nyquist bin: lanes 0 and 32 of wave 0 in column block 14 use (+1,-1,+1,...)")
    e(f"s_cmp_eq_u32 s{sJ}, 14")
    e("s_cselect_b32 s68, 1, 0")
    e(f"s_cmp_eq_u32 s{sWAVE}, 0")
    e("s_cselect_b32 s68, s68, 0")
    e("s_mov_b32 s69, s68")
    e(f"v_mov_b32 v{vPM}, 0xbf803f80")
    e(f"v_lshlrev_b32 v119, 4, v{vLANE}")
    e(f"v_add_u32 v119, {MISC}, v119")
    e("s_waitcnt lgkmcnt(0)")


def dft_epilogue():
    for a in range(4):
        e(f"ds_read_b128 {vr(N0 + 4 * a, 4)}, v{vD_R} offset:{512 + 32 * a}")
    e(f"v_mov_b32 v115, v{vD_R}")
    e("s_waitcnt lgkmcnt(0)")
    e(f"v_readfirstlane_b32 s{sTAG}, v{vD_TAG}")
    e("v_cndmask_b32 v118, v118, 0, s[68:69]")

    def TS(q):
        return (120 if q & 1 else 96), (104 if q == 0 else TW(q - 1, 0, 0))

    def valu(q):
        r_ = []
        for mat, T, cs in ((0, TS(q)[0], 118), (1, TS(q)[1], 119)):
            A = ACC(mat, q)
            if q == 0:
                for r in range(0, 16, 2):
                    r_.append(f"v_pk_mul_f32 {vr(A + r, 2)}, {vr(A + r, 2)}, {vr(R0 + r, 2)}")
            else:
                for r in range(16):
                    r_.append(f"v_mul_f32 v{A + r}, v{A + r}, v{R0 + r}")
            if mat and q < 3:
                r_[-1] = [r_[-1]] + [f"ds_read_b128 {vr(R0 + 4 * a, 4)}, v115 offset:{128 * (q + 1) + 32 * a}" for a in range(4)]
            if OPT.get("nocs"):
                pass
            elif q == 0:
                sel = "op_sel:[0,1,0] op_sel_hi:[1,1,1]" if mat else "op_sel_hi:[1,0,1]"
                for r in range(0, 16, 2):
                    r_.append(f"v_pk_fma_f32 {vr(A + r, 2)}, {vr(N0 + r, 2)}, v[118:119], {vr(A + r, 2)} {sel}")
            else:
                for r in range(16):
                    r_.append(f"v_fmac_f32 v{A + r}, v{N0 + r}, v{cs}")
            if mat and q < 3 and not OPT.get("nocs"):
                r_[-1] = [r_[-1]] + [f"ds_read_b128 {vr(N0 + 4 * a, 4)}, v115 offset:{512 + 128 * (q + 1) + 32 * a}" for a in range(4)]
            for k in range(8):
                r_.append(f"v_cvt_pk_bf16_f32 v{T + k}, v{A + 2 * k}, v{A + 2 * k + 1}")
        return r_

    def mfmas(q):
        ta, tb = TS(q)
        zr, zi = ACC(0, q), ACC(1, q)
        seq = [(zr, 1, 0, tb), (zi, 0, 0, tb), (zr, 1, 1, tb + 4), (zi, 0, 1, tb + 4),
               (zr, 0, 0, ta), (zr, 0, 1, ta + 4), (zi, 1, 0, ta), (zi, 1, 1, ta + 4)]
        return [f"v_mfma_f32_32x32x16_bf16 {vr(d, 16)}, {vr(TW(q, cs, z), 4)}, {vr(b, 4)}, {'0' if k < 2 else vr(d, 16)}"
                for k, (d, cs, z, b) in enumerate(seq)]

    for q in range(5):
        v_ = valu(q) if q < 4 else []
        m_ = mfmas(q - 1) if q else []
        if 0 < q < 4:
            e("s_waitcnt lgkmcnt(0)")
        if q:
            e("s_nop 1")
        per = len(v_) // 8
        for k in range(8):
            if m_:
                e(m_[k])
                if k in (3, 4):
                    for x in range(4):
                        rg = TW(q - 1, 1, k - 3) + x
                        e(f"v_xor_b32 v{rg}, 0x80008000, v{rg}")
            if OPT.get("nocs") and q:
                cut = [0, 6, 12, 18, 24, 30, 35, 40, 48]
                es(v_[cut[k]:cut[k + 1]])
            else:
                es(v_[k * per:(k + 1) * per])
    e(f"v_and_b32 v112, 31, v{vLANE}")
    e(f"v_lshrrev_b32 v114, 5, v{vLANE}")
    e("v_lshlrev_b32 v112, 4, v112")
    e("v_lshl_add_u32 v125, v114, 18, v112")
    e("s_nop 7")
    for r in range(16):
        for q in range(4):
            e(f"v_cvt_pk_bf16_f32 v{4 * r + q}, v{ACC(0, q) + r}, v{ACC(1, q) + r}")
        if r < OPT["zs0"] or not OPT["zdef"]:
            e(f"s_add_u32 s65, s{sOUT}, {(8 * (r >> 2) + (r & 3)) * 65536}")
            if OPT.get("zw") and r >= OPT["zw"]:
                e(f"s_waitcnt vmcnt({OPT['zw'] - 1})")
            e(f"buffer_store_dwordx4 {vr(4 * r, 4)}, v125, {srd(SRD_WS)}, s65 offen sc1")
    stamp(3)
    e(f"v_mov_b32 v64, {CNTL}")
    e("v_mov_b32 v65, 1")
    e("s_mov_b64 exec, 1")
    e("ds_add_u32 v64, v65")
    e("s_mov_b64 exec, -1")
    stamp(4)
    if OPT["zdef"]:
        phase2(True)
    else:
        e("s_branch PHASE2G")


def phase2(dft):
    OWN, OTH, Y, EF, HR, ET = 128, 144, 160, 32, 176, 248
    XR, vR = 80, 88
    W2 = [[96, 100], [104, 108], [240, 244]]
    WD = [112, 113]
    vH, vXO, vZA = 114, 115, 116
    vEA, vEB, vES = 122, 123, 124
    ZF = 0
    assert D <= 16
    vm, lq = Q(), Q()
    tg = "D" if dft else "G"
    lab("PHASE2" + tg)
    stamp(5)
    e(f"v_and_b32 v89, 31, v{vLANE}")
    e(f"v_lshrrev_b32 v90, 5, v{vLANE}")
    e(f"v_lshlrev_b32 v{vXO}, 16, v89")
    e(f"v_lshl_add_u32 v{vXO}, v90, 5, v{vXO}")
    def xloads():
        vm.add("x0", f"buffer_load_dwordx4 {vr(XR, 4)}, v{vXO}, {srd(SRD_X)}, s{sXO} offen")
        vm.add("x1", f"buffer_load_dwordx4 {vr(XR + 4, 4)}, v{vXO}, {srd(SRD_X)}, s{sXO} offen offset:16")

    if not OPT["xlate"]:
        xloads()
    e(f"v_bfe_u32 v{ET}, v{vLANE}, 2, 2")
    e(f"v_lshl_add_u32 v92, v90, 2, v{ET}")
    e(f"s_lshl_b32 s68, s{sKH}, {10 if OPT['m16'] else 11}")
    e("v_lshl_add_u32 v92, v92, 7, s68")
    e(f"v_and_b32 v93, 1, v{vLANE}")
    e("v_lshlrev_b32 v93, 2, v93")
    e(f"v_bfe_u32 v{ET + 1}, v{vLANE}, 4, 1")
    e(f"v_lshl_add_u32 v93, v{ET + 1}, 1, v93")
    e(f"v_bfe_u32 v{ET + 1}, v{vLANE}, 1, 1")
    e(f"v_add_u32 v93, v93, v{ET + 1}")
    e("v_lshl_add_u32 v92, v93, 3, v92")
    e(f"v_lshrrev_b32 v{ET}, 1, v{ET}")
    e(f"v_xor_b32 v{ET}, s{sKH}, v{ET}")
    e(f"v_lshl_add_u32 v{WD[0]}, v{ET}, 6, v92")
    e(f"v_xor_b32 v{WD[1]}, 64, v{WD[0]}")
    e(f"v_lshlrev_b32 v{vH}, 4, v{vLANE}")
    e("v_lshlrev_b32 v93, 4, v89")
    bar("BW")
    stamp(6)
    nh = [0]

    def hmore(lim, cnt):
        while cnt and nh[0] < min(56, lim):
            v = nh[0]
            if v and v & 7 == 0:
                e(f"v_add_u32 v{vH}, 8192, v{vH}")
            vm.add(("h", v), f"buffer_load_dwordx4 {vr(HR + 4 * (v % D), 4)}, v{vH}, {srd(SRD_WS)}, s{48 + (v & 7)} offen sc1")
            nh[0] += 1
            cnt -= 1

    base = [0]

    def wreads(v):
        a = wslot(v) * 4096
        if (a & ~0xFFFF) != base[0]:
            d = (a & ~0xFFFF) - base[0]
            base[0] = a & ~0xFFFF
            es([f"v_add_u32 v{WD[c]}, {d & 0xffffffff:#x}, v{WD[c]}" for c in range(2)])
        for c in range(2):
            for k in range(2):
                lq.add(("w", v, c, k), f"ds_read_b64_tr_b16 {vr(W2[v % 3][c] + 2 * k, 2)}, v{WD[c]} offset:{(a & 0xFFFF) + (2048 if OPT['m16'] else 1024) * k}")

    for v in range(OPT["D0"]):
        hmore(56, 1)
        if v == 1:
            wreads(0)
            wreads(1)
    vm.add("r", f"buffer_load_dword v{vR}, v93, {srd(SRD_WS)}, s{sRO} offen offset:4 sc1")

    fill = [[f"s_cmp_ge_u32 s{sCB}, 4", "s_cselect_b64 s[70:71], -1, 0"],
            f"s_lshl_b32 s68, s{sKH}, 9", f"s_add_u32 s68, s68, {ZL}", f"v_lshl_add_u32 v{vZA}, v89, 4, s68",
            f"v_lshl_add_u32 v{vZA}, v90, 10, v{vZA}",
            f"v_lshl_add_u32 v91, v89, 1, s{sP}", f"v_sub_u32 v92, s{sC0}, v91", "v_cndmask_b32 v91, v91, v92, s[70:71]",
            f"v_and_b32 v{vES}, 1, v91", f"v_mul_u32_u24 v{vES}, 0x8000, v{vES}", f"v_lshl_or_b32 v{vES}, v{vES}, 16, v{vES}",
            "v_cvt_f32_u32 v91, v91", f"v_mul_f32 v{vEA}, {f2u(1.0 / 64):#x}, v91",
            "v_lshlrev_b32 v92, 1, v90", "v_cvt_f32_u32 v92, v92", f"v_mul_f32 v{vEB}, v{vEA}, v92"]
    for sg in range(8):
        for b in range(2):
            fill.append(f"v_fmamk_f32 v{ET + b}, v{vEA}, {f2u(float(4 * sg + b)):#x}, v{vEB}")
        for b in range(2):
            fill.append(f"v_fract_f32 v{ET + b}, v{ET + b}")
        for b in range(2):
            fill.append(f"v_cos_f32 v{ET + 2 + b}, v{ET + b}")
            fill.append(f"v_sin_f32 v{ET + 4 + b}, v{ET + b}")
        fill.append([f"v_cvt_pk_bf16_f32 v{EF + 4 * sg}, v{ET + 2}, v{ET + 4}",
                     f"v_cvt_pk_bf16_f32 v{EF + 4 * sg + 1}, v{ET + 3}, v{ET + 5}"])
        for b in range(2):
            fill.append(f"v_xor_b32 v{EF + 4 * sg + 2 + b}, v{vES}, v{EF + 4 * sg + b}")
    P2BAR = {55 - NRES: "BP1", NRES - 2: "BP2", OPT["vz0"]: "BZ0"}
    assert NRES - 2 < OPT["vz0"] < 55
    zs = list(range(OPT["zs0"], 16)) if dft else []
    shared = not OPT["zdef"]
    zpub = not (dft or shared)

    def zpublish():
        cm("spectral workgroups: this wave's Z stores have completed; the last wave publishes")
        cm("(that store is not counted in the waits below: they only get stricter)")
        if shared:
            e(f"s_cmp_eq_u32 s{sDFT}, 0")
            e("s_cbranch_scc1 NOZF")
        e(f"v_mov_b32 v94, {TAGL}")
        e("v_mov_b32 v95, 1")
        e("s_mov_b64 exec, 1")
        e("ds_add_rtn_u32 v95, v94, v95 offset:8")
        e(f"v_mov_b32 v126, s{sTAG}")
        e("v_mov_b32 v127, 0")
        e("s_waitcnt lgkmcnt(0)")
        e("v_readfirstlane_b32 s64, v95")
        e("s_cmp_lg_u32 s64, 3")
        e("s_cbranch_scc1 NOZF1")
        e(f"buffer_store_dword v126, v127, {srd(SRD_WS)}, s{sFLG} offen sc1")
        lab("NOZF1")
        e("s_mov_b64 exec, -1")
        lab("NOZF")

    for v in range(56):
        e(f"s_waitcnt vmcnt({vm.younger(('h', v))}) lgkmcnt({lq.younger(('w', v, 1, 1))})")
        h = vr(HR + 4 * (v % D), 4)
        st = v % 3
        e(f"v_mfma_f32_32x32x16_bf16 {vr(OWN, 16)}, {vr(W2[st][0], 4)}, {h}, {'0' if v == 0 else vr(OWN, 16)}")
        if v in P2BAR:
            bar(P2BAR[v])
        if v + 2 < 56:
            wreads(v + 2)
        e(f"v_mfma_f32_32x32x16_bf16 {vr(OTH, 16)}, {vr(W2[st][1], 4)}, {h}, {'0' if v == 0 else vr(OTH, 16)}")
        if PROF and v % 4 == 0:
            e("s_memtime s[78:79]")
        if PROF and v % 4 == 2:
            e(f"v_writelane_b32 v{vLOOPST}, s78, {16 + v // 4}")
        if not zpub and not zs and v >= 1 and (("zs", 15) not in vm.l or vm.l.index(("h", v)) > vm.l.index(("zs", 15))):
            assert v < OPT["vz0"]
            zpublish()
            zpub = True
        if zs and v % OPT["zdef"] == 0:
            r = zs.pop(0)
            e(f"s_add_u32 s65, s{sOUT}, {(8 * (r >> 2) + (r & 3)) * 65536}")
            vm.add(("zs", r), f"buffer_store_dwordx4 {vr(4 * r, 4)}, v125, {srd(SRD_WS)}, s65 offen sc1")
        hmore(v + 1 + D, 2)
        if (nh[0] == 56 or (OPT["xlate"] == 2 and v == OPT.get("xv", 8))) and "x0" not in vm.l:
            xloads()
        if len(fill) > 88 or not zs:
            n = 4 if v < 32 else 6
            es(fill[:n])
            del fill[:n]
    assert not fill and zpub
    stamp(7)

    def ymf(sg):
        e(f"v_mfma_f32_32x32x16_bf16 {vr(Y, 16)}, {vr(ZF + 4 * sg, 4)}, {vr(EF + 4 * sg, 4)}, {'0' if sg == 0 else vr(Y, 16)}")

    cm("cross-wave reduction over the two K halves")
    XU, PT, TT = 176, 192, 208
    e(f"s_lshl_b32 s68, s{sWAVE}, 12")
    e(f"s_add_u32 s68, s68, {RED}")
    e(f"v_lshl_add_u32 v91, v{vLANE}, 4, s68")
    e("v_xor_b32 v92, 8192, v91")
    e(f"v_mul_f32 v{vR + 1}, {NLOG2E:#x}, v{vR}")
    e("v_mov_b32 v93, 0xffff0000")
    e("s_waitcnt vmcnt(0)")
    for k in range(3):
        e(f"v_lshlrev_b32 v{XU + 2 * k}, 16, v{XR + k}")
        e(f"v_and_b32 v{XU + 2 * k + 1}, v93, v{XR + k}")
    for a in range(4):
        e(f"ds_write_b128 v91, {vr(OTH + 4 * a, 4)} offset:{1024 * a}")
    for k in range(3, 8):
        e(f"v_lshlrev_b32 v{XU + 2 * k}, 16, v{XR + k}")
        e(f"v_and_b32 v{XU + 2 * k + 1}, v93, v{XR + k}")
    e("s_waitcnt lgkmcnt(0)")
    bar("BR")
    for a in range(4):
        e(f"ds_read_b128 {vr(PT + 4 * a, 4)}, v92 offset:{1024 * a}")
    for sg in range(8):
        e(f"ds_read_b128 {vr(ZF + 4 * sg, 4)}, v{vZA} offset:{2048 * sg}")
    e("s_waitcnt lgkmcnt(8)")
    rr = vr(vR, 2)
    raw(".p2align 3")
    for k in range(8):
        e(f"v_pk_add_f32 {vr(OWN + 2 * k, 2)}, {vr(OWN + 2 * k, 2)}, {vr(PT + 2 * k, 2)}")
    for k in range(8):
        e(f"v_pk_mul_f32 {vr(TT + 2 * k, 2)}, {vr(OWN + 2 * k, 2)}, {rr} op_sel:[0,1] op_sel_hi:[1,1]")
    for k in range(8):
        e(f"v_pk_mul_f32 {vr(OWN + 2 * k, 2)}, {vr(OWN + 2 * k, 2)}, {rr} op_sel_hi:[1,0]")
    e("s_waitcnt lgkmcnt(0)")
    for k in range(16):
        if k % 3 == 0:
            ymf(k // 3)
        e(f"v_exp_f32 v{TT + k}, v{TT + k}")
    for k in range(16):
        if k in (2, 8):
            ymf(6 + (k >> 3))
        e(f"v_add_f32 v{TT + k}, 1.0, v{TT + k}")
    for k in range(16):
        e(f"v_rcp_f32 v{TT + k}, v{TT + k}")
    raw(".p2align 3")
    for k in range(8):
        e(f"v_pk_mul_f32 {vr(OWN + 2 * k, 2)}, {vr(OWN + 2 * k, 2)}, {vr(TT + 2 * k, 2)}")
    for k in range(8):
        e(f"v_pk_fma_f32 {vr(OWN + 2 * k, 2)}, {vr(OWN + 2 * k, 2)}, {vr(Y + 2 * k, 2)}, {vr(XU + 2 * k, 2)}")
    for k in range(8):
        e(f"v_cvt_pk_bf16_f32 v{TT + k}, v{OWN + 2 * k}, v{OWN + 2 * k + 1}")
    of = {0: "", 1: " nt", 2: " sc1", 3: " sc0"}[OPT.get("ost", 0)]
    if OPT.get("oswap"):
        cm("lanes l and l+32 hold the two halves of a 64-byte row piece: trade registers so that each store writes whole pieces")
        e("s_nop 1")
        for k in range(4):
            e(f"v_permlane32_swap_b32 v{TT + 4 + k}, v{TT + k}") if False else None
        for k in range(4):
            e(f"v_permlane32_swap_b32 v{TT + k}, v{TT + 4 + k}")
    e(f"buffer_store_dwordx4 {vr(TT, 4)}, v{vXO}, {srd(SRD_OUT)}, s{sXO} offen{of}")
    e(f"buffer_store_dwordx4 {vr(TT + 4, 4)}, v{vXO}, {srd(SRD_OUT)}, s{sXO} offen offset:16{of}")
    stamp_flush(8, 64, True)
    if OPT.get("rabs"):
        lab("DLY" + tg)
        e("s_memrealtime s[82:83]")
        e("s_waitcnt lgkmcnt(0)")
        e("s_sub_u32 s82, s82, s98")
        e(f"s_cmp_lt_u32 s82, {OPT['rabs']}")
        e("s_cbranch_scc1 DLY" + tg)
    e("s_endpgm")


def cwave():
    section("C0")
    lab("CWAVE")
    cm("================ C waves: matrix work ================")
    e(f"s_setprio {OPT.get('cp', 2)}")
    ids1()
    e(f"v_mov_b32 v{vLANE}, v0")
    for k in range(4):
        e(f"v_mov_b32 v{8 + k}, 0")
    e("v_and_b32 v2, 31, v0")
    e("v_lshrrev_b32 v3, 5, v0")
    for k in range(8):
        e(f"v_mfma_f32_32x32x16_bf16 {vr(128 + 16 * k, 16)}, v[8:11], v[8:11], 0")
    e("v_bfe_u32 v4, v0, 1, 3")
    e("v_lshlrev_b32 v5, 7, v2")
    e(f"v_add_u32 v5, {SLOT + 32768}, v5")
    for u in range(4):
        e(f"v_add_u32 v6, {2 * u}, v3")
        e("v_xor_b32 v6, v6, v4")
        e(f"v_lshl_add_u32 v{XA[u]}, v6, 4, v5")
    e("v_bfe_u32 v4, v0, 2, 2")
    e(f"v_lshlrev_b32 v{WA}, 12, v3")
    e(f"v_lshl_add_u32 v{WA}, v4, 8, v{WA}")
    e(f"v_xor_b32 v4, s{sWAVE}, v4")
    e(f"v_lshl_add_u32 v{WA}, v4, 6, v{WA}")
    e("v_bfe_u32 v4, v0, 4, 1")
    if OPT["m16"]:
        e("v_xor_b32 v4, v4, v3")
    e(f"v_lshl_add_u32 v{WA}, v4, 5, v{WA}")
    e("v_and_b32 v4, 3, v0")
    e(f"v_lshl_add_u32 v{WA}, v4, 3, v{WA}")
    e(f"v_add_u32 v{WA}, {SLOT}, v{WA}")
    e(f"s_lshl_b32 s64, s{sWAVE}, 7")
    e(f"s_add_u32 s64, s64, {CSL}")
    e(f"v_lshl_add_u32 v{vA_CS}, v3, 4, s64")
    e(f"v_lshlrev_b32 v{vA_MR}, 3, v2")
    e(f"v_add_u32 v{vA_MR}, {MRP}, v{vA_MR}")
    if not OPT["m16"]:
        e(f"v_mov_b32 v{vA_TAG}, {TAGL}")
    e(f"v_lshl_add_u32 v{vD_CS}, v2, 2, s64")
    e(f"v_lshlrev_b32 v{vD_R}, 4, v3")
    e(f"v_add_u32 v{vD_R}, {RL}, v{vD_R}")
    e(f"v_mov_b32 v{vD_TAG}, {TAGL}")
    e("s_waitcnt lgkmcnt(0)")
    ids2()
    e(f"s_and_b32 s{sP}, s{sWAVE}, 1")
    e(f"s_lshr_b32 s{sKH}, s{sWAVE}, 1")
    e(f"s_lshl_b32 s68, s{sP}, 5")
    e(f"s_add_u32 s68, s68, s{sT1}")
    e(f"s_lshl_b32 s{sXO}, s68, 10")
    e(f"s_lshl_b32 s68, s{sCB}, 7")
    e(f"s_add_u32 s{sXO}, s{sXO}, s68")
    e(f"s_lshl_b32 s68, s{sKH}, 6")
    e(f"s_add_u32 s{sXO}, s{sXO}, s68")
    e(f"s_cmp_eq_u32 s{sT1}, 0")
    e(f"s_cselect_b32 s{sC0}, 64, 63")
    e(f"s_lshr_b32 s68, s{sT1}, 1")
    e("s_lshl_b32 s68, s68, 11")
    e(f"s_and_b32 s70, s{sT1}, 1")
    e(f"s_lshl_b32 s71, s{sP}, 1")
    e("s_add_u32 s70, s70, s71")
    e("s_lshl_b32 s70, s70, 9")
    e("s_add_u32 s68, s68, s70")
    e(f"s_add_u32 s{sRO}, s68, {ST_OFF}")
    e(f"s_lshl_b32 s68, s{sT1}, 2")
    e("s_add_u32 s68, s68, s71")
    e(f"s_add_u32 s68, s68, s{sKH}")
    e(f"s_mul_i32 s68, s68, {56 * 1024}")
    rot_offsets(10, "s68")
    if OPT["spoll"]:
        e(f"s_lshl_b32 s64, s{sI}, 7")
        e(f"s_lshl_b32 s65, s{sJ}, 2")
        e("s_add_u32 s64, s64, s65")
        e(f"s_add_u32 s{sFLG}, s64, {FLH}")
    else:
        e(f"s_lshl_b32 s64, s{sI}, 4")
        e(f"s_add_u32 s64, s64, s{sJ}")
        e("s_lshl_b32 s64, s64, 7")
        e(f"s_add_u32 s{sFLG}, s64, {FLH}")
    e(f"s_cmp_eq_u32 s{sDFT}, 1")
    e("s_cbranch_scc1 CDFT")
    e(f"s_lshl_b32 s64, s{sJ}, 2")
    e(f"s_add_u32 s64, s64, s{sWAVE}")
    e("s_lshl_b32 s64, s64, 10")
    e(f"s_mul_i32 s65, s{sI}, {2 * 4 * 56 * 1024}")
    e(f"s_add_u32 s{sOUT}, s64, s65")
    if OPT["m16"]:
        e("v_and_b32 v2, 15, v0")
        e("v_lshrrev_b32 v3, 4, v0")
        e("v_lshrrev_b32 v4, 1, v2")
        e("v_xor_b32 v4, v4, v3")
        e("v_lshlrev_b32 v5, 7, v2")
        e(f"v_lshl_add_u32 v{XA16[0]}, v4, 4, v5")
        e(f"v_add_u32 v{XA16[0]}, {SLOT + 32768}, v{XA16[0]}")
        e(f"v_xor_b32 v{XA16[1]}, 64, v{XA16[0]}")
        e("v_bfe_u32 v4, v0, 2, 2")
        e("v_lshlrev_b32 v5, 12, v3")
        e("v_lshl_add_u32 v5, v4, 8, v5")
        e(f"v_xor_b32 v4, s{sWAVE}, v4")
        e("v_lshl_add_u32 v5, v4, 6, v5")
        e("v_and_b32 v4, 1, v3")
        e("v_lshl_add_u32 v5, v4, 5, v5")
        e("v_and_b32 v4, 3, v0")
        e("v_lshl_add_u32 v5, v4, 3, v5")
        e(f"v_add_u32 v{WA16[0]}, {SLOT}, v5")
        e(f"v_xor_b32 v{WA16[1]}, 32, v{WA16[0]}")
        e(f"s_lshl_b32 s64, s{sWAVE}, 7")
        e(f"s_add_u32 s64, s64, {CSL}")
        e(f"v_lshl_add_u32 v{vB_CS}, v3, 4, s64")
        e(f"v_lshlrev_b32 v{vB_MR}, 3, v2")
        e(f"v_add_u32 v{vB_MR}, {MRP}, v{vB_MR}")
        e(f"v_mov_b32 v{vA_TAG}, {TAGL}")
    e("s_branch CGLU")
    section("CG")
    lab("CGLU")
    stamp(1)
    bar("B0")
    if OPT["m16"]:
        mainloop16()
        stamp(2)
        glu_epilogue16()
    else:
        mainloop(False)
        stamp(2)
        glu_epilogue()
    phase2(False)
    section("CD")
    lab("CDFT")
    e(f"s_lshl_b32 s64, s{sI}, 12")
    e(f"s_and_b32 s65, s{sJ}, 1")
    e("s_lshl_b32 s66, s65, 11")
    e("s_add_u32 s64, s64, s66")
    e(f"s_lshl_b32 s66, s{sWAVE}, 9")
    e("s_add_u32 s64, s64, s66")
    e(f"s_add_u32 s{sOUT}, s64, {Z_OFF}")
    if OPT["spoll"]:
        e(f"s_lshl_b32 s64, s{sI}, 1")
        e("s_add_u32 s64, s64, s65")
        e("s_lshl_b32 s64, s64, 2")
        e(f"s_add_u32 s{sFLG}, s64, {FLZ}")
    dft_prologue()
    stamp(1)
    bar("B0")
    for k in range(16):
        e(f"ds_read_b128 {vr(4 * k, 4)}, v119 offset:{1024 * k}")
    mainloop(True)
    stamp(2)
    dft_epilogue()


hdr = open("cdna_kernels/" + NAME + ".s.ref").read().split("\n")
head = [l for l in hdr if l.startswith(";") and "@launch" not in l and "Override launch" not in l and "grid=ceil" not in l]
out = head + ["; @launch grid=(256,1,1) block=(512,1,1) lds=163840",
              '.amdgcn_target "amdgcn-amd-amdhsa--gfx950"', ".text", f".globl {K}"]
if OPT["al"]:
    out.append(".p2align 12")
out += [".p2align 8", f".type {K},@function", f"{K}:"]
entry()
l2wave()
l3wave()
l01wave()
cwave()
for name, align in (("A", 0), ("A2", 0), ("C0", 0), ("L2", 0), ("L3", 0), ("CG", 12 if OPT["al"] else 0), ("CD", 12 if OPT["al"] else 0)):
    if align:
        out.append(f".p2align {align}")
    out += SEC[name]
out += ["END:", "    s_endpgm"]
out += ['.section .rodata,"a"', ".p2align 6", f".amdhsa_kernel {K}", "  .amdhsa_next_free_vgpr 256", "  .amdhsa_next_free_sgpr 102",
        "  .amdhsa_accum_offset 256", "  .amdhsa_group_segment_fixed_size 0", "  .amdhsa_kernarg_size 96",
        "  .amdhsa_user_sgpr_count 2", "  .amdhsa_user_sgpr_kernarg_segment_ptr 1", "  .amdhsa_system_sgpr_workgroup_id_x 1",
        ".end_amdhsa_kernel", ""]
open(sys.argv[1], "w").write("\n".join(out))
```

```python
import struct
import sys

NAME = "recurrent_scan__spectral_fnet__glu_gated_glu__prompt"
OPT = dict(m16=1, nocs=1, prof=0, map48=0, D=12, D0=6, pre=3, preb=2, th=4, trk=22, u1=2, u2=8, pa=47, bs=0, sord=0, slp=6, spin=200000,
           nx=4, sg0=99, sgn=3, dw=0, dw0=1, vz0=44, zdef=0, zs0=0, spoll=0, xlate=2, l0poll=1, lprio=3, xa0=1, na=3, xb0=8, nb=7, xe=16, xt=4, chk=14, ct=1, al=1)
for a in sys.argv[2:]:
    k, v = a.split("=")
    OPT[k] = int(v)
LITE = OPT["prof"] == 3
PROF = 0 if LITE else OPT["prof"]
K = NAME + "_kernel"
D = OPT["D"]

H_OFF, Z_OFF, ST_OFF, CS_OFF = 0, 0x800000, 0xA00000, 0xA10000
FLH, FLZ, PROF_OFF, WS_SIZE = 0xA50000, 0xA58000, 0xA60000, 0xB00000
SLOT = 49152
MISC = 147456
CSL, MRP, RL, NMRL, TAGL, CNTL = MISC, MISC + 1024, MISC + 2048, MISC + 2560, MISC + 3072, MISC + 3076
RED = 20 * 4096
ZL = 24 * 4096
NRES = 39
NST = 56 - NRES
NLOG2E = 0xBFB8AA3B
OOB = 0x40000000


def wslot(v):
    return v if v < 36 else v + 1 if v < NRES else v - NRES


def f2u(x):
    return struct.unpack("<I", struct.pack("<f", x))[0]


SEC = {}
CUR = [None, False]


def section(n):
    CUR[0] = SEC.setdefault(n, [])


def e(s):
    CUR[0].append("    " + s)


def es(lst):
    for x in lst:
        for y in (x if isinstance(x, list) else [x]):
            e(y)


def lab(s):
    CUR[0].append(s + ":")


def raw(s):
    CUR[0].append(s)


def cm(s):
    CUR[0].append("    ; " + s)


def vr(a, n):
    return f"v[{a}:{a + n - 1}]"


def srd(n):
    return f"s[{n}:{n + 3}]"


class Q:
    def __init__(self):
        self.l = []

    def add(self, tag, txt=None):
        self.l.append(tag)
        if txt:
            e(txt)

    def younger(self, tag):
        return len(self.l) - 1 - self.l.index(tag)


SRD_X, SRD_W0, SRD_W1, SRD_WD, SRD_WS, SRD_OUT, SRD_DBG, SRD_WM = 4, 8, 12, 16, 20, 24, 28, 32
sWAVE, sI, sJ, sT1, sCB, sRS, sCOL, sDFT, sTAG, sIDX = 36, 37, 38, 39, 40, 41, 42, 43, 44, 45
sSTAMP = 80
vLOOPST, vLST, vLANE = 121, 118, 117
uid = [0]
QUIET = [True]


ARR = OPT.get("arr")


def stamp(i):
    if PROF and not (ARR is not None and i and CUR[0] in (SEC.get("L2"), SEC.get("L3"))):
        e(f"{'s_memrealtime' if PROF == 2 else 's_memtime'} s[{sSTAMP + 2 * i}:{sSTAMP + 2 * i + 1}]")


def stamp_flush(n, vt, cw):
    if not (PROF or (LITE and cw)):
        return
    e("s_waitcnt lgkmcnt(0)")
    e("s_lshl_b32 s78, s2, 3")
    e(f"s_add_u32 s78, s78, s{sWAVE}")
    e("s_lshl_b32 s78, s78, 8")
    e(f"s_add_u32 s78, s78, {PROF_OFF}")
    e(f"v_mov_b32 v{vt + 8}, 0")
    if PROF:
        for i in range(8):
            e(f"v_mov_b32 v{vt + i}, s{sSTAMP + 2 * i}" if i < n else f"v_mov_b32 v{vt + i}, 0")
        e(f"buffer_store_dwordx4 {vr(vt, 4)}, v{vt + 8}, {srd(SRD_WS)}, s78 offen")
        e(f"buffer_store_dwordx4 {vr(vt + 4, 4)}, v{vt + 8}, {srd(SRD_WS)}, s78 offen offset:16")
        if cw:
            e(f"v_lshlrev_b32 v{vt + 9}, 2, v{vLANE}")
            e(f"v_min_u32 v{vt + 9}, 124, v{vt + 9}")
            e(f"buffer_store_dword v{vLOOPST}, v{vt + 9}, {srd(SRD_WS)}, s78 offen offset:64")
    e("s_memrealtime s[76:77]")
    e("s_waitcnt lgkmcnt(0)")
    e(f"v_mov_b32 v{vt + 10}, s98")
    e(f"v_mov_b32 v{vt + 11}, s76")
    e(f"buffer_store_dwordx2 {vr(vt + 10, 2)}, v{vt + 8}, {srd(SRD_WS)}, s78 offen offset:32")


def bar(name=""):
    if PROF and ARR is not None and CUR[0] in (SEC.get("L2"), SEC.get("L3")) and name[1:].isdigit() and ARR <= int(name[1:]) < ARR + 6:
        i = int(name[1:]) - ARR + 1
        e(f"s_memtime s[{sSTAMP + 2 * i}:{sSTAMP + 2 * i + 1}]")
    e("s_barrier" + (f"  ; {name}" if name else ""))


def poll_issue(vdst, vaddr, ssoff, srdn):
    e(f"buffer_load_dword v{vdst}, v{vaddr}, {srd(srdn)}, {ssoff} offen sc1")


def poll_wait(vdst, vaddr, ssoff, srdn, cond_tag=True, first_wait=0):
    uid[0] += 1
    k = uid[0]
    e(f"s_mov_b32 s75, {OPT['spin']}")
    e(f"s_waitcnt vmcnt({first_wait})")
    lab(f"POLL{k}")
    e(f"v_cmp_ne_u32 vcc, s{sTAG}, v{vdst}" if cond_tag else f"v_cmp_eq_u32 vcc, 0, v{vdst}")
    e("s_nop 1")
    e("s_cmp_eq_u64 vcc, 0")
    e(f"s_cbranch_scc1 POLLD{k}")
    if OPT["slp"]:
        e(f"s_sleep {OPT['slp']}")
    poll_issue(vdst, vaddr, ssoff, srdn)
    e("s_sub_u32 s75, s75, 1")
    e("s_cmp_lg_u32 s75, 0")
    e("s_waitcnt vmcnt(0)")
    e(f"s_cbranch_scc1 POLL{k}")
    lab(f"POLLD{k}")


def spoll(ssoff, npairs, nloads=1):
    uid[0] += 1
    k = uid[0]
    e(f"s_mov_b32 s75, {OPT['spin']}")
    e(f"s_mov_b32 s46, s{sTAG}")
    e(f"s_mov_b32 s47, s{sTAG}")
    lab(f"SP{k}")
    for l in range(nloads):
        e(f"s_buffer_load_dwordx16 s[48:63], {srd(SRD_WS)}, {ssoff} offset:{64 * l} glc")
        e("s_waitcnt lgkmcnt(0)")
        for p in range(npairs):
            e(f"s_xor_b64 s[{48 + 2 * p}:{49 + 2 * p}], s[{48 + 2 * p}:{49 + 2 * p}], s[46:47]")
        for p in range(npairs):
            if l == 0 and p == 0:
                e("s_mov_b64 s[76:77], s[48:49]")
            else:
                e(f"s_or_b64 s[76:77], s[76:77], s[{48 + 2 * p}:{49 + 2 * p}]")
    e(f"s_cbranch_scc0 SPD{k}")
    if OPT["slp"]:
        e(f"s_sleep {OPT['slp']}")
    e("s_sub_u32 s75, s75, 1")
    e("s_cmp_lg_u32 s75, 0")
    e(f"s_cbranch_scc1 SP{k}")
    lab(f"SPD{k}")


def wait_c_done():
    uid[0] += 1
    k = uid[0]
    e(f"v_mov_b32 v7, {TAGL}")
    e(f"s_mov_b32 s75, {OPT['spin']}")
    lab(f"CW{k}")
    e("ds_read_b64 v[14:15], v7")
    e("s_waitcnt lgkmcnt(0)")
    e("v_readfirstlane_b32 s76, v15")
    e(f"v_readfirstlane_b32 s{sTAG}, v14")
    e("s_sub_u32 s75, s75, 1")
    e("s_cmp_eq_u32 s75, 0")
    e(f"s_cbranch_scc1 CWD{k}")
    e("s_sleep 1")
    e("s_cmp_lt_u32 s76, 4")
    e(f"s_cbranch_scc1 CW{k}")
    lab(f"CWD{k}")


def ids1():
    if OPT["map48"]:
        e("s_and_b32 s64, s2, 3")
        e("s_lshl_b32 s64, s64, 2")
        e(f"s_and_b32 s65, s{sIDX}, 3")
        e(f"s_add_u32 s{sI}, s64, s65")
        e("s_bfe_u32 s64, s2, 0x10002")
        e(f"s_lshr_b32 s67, s{sIDX}, 2")
        e("s_mul_i32 s65, s64, 7")
        e("s_add_u32 s65, s65, s67")
        e("s_add_u32 s66, s64, 14")
        e("s_cmp_eq_u32 s67, 7")
        e(f"s_cselect_b32 s{sJ}, s66, s65")
    else:
        e("s_and_b32 s64, s2, 1")
        e("s_lshl_b32 s64, s64, 3")
        e(f"s_and_b32 s65, s{sIDX}, 7")
        e(f"s_add_u32 s{sI}, s64, s65")
        e("s_bfe_u32 s64, s2, 0x20001")
        e(f"s_lshr_b32 s67, s{sIDX}, 3")
        e("s_mul_i32 s65, s64, 3")
        e("s_add_u32 s65, s65, s67")
        e("s_add_u32 s66, s64, 14")
        e("s_cmp_eq_u32 s67, 3")
        e("s_cselect_b32 s65, s66, s65")
        e("s_lshl_b32 s66, s64, 2")
        e("s_add_u32 s66, s66, s67")
        e("s_sub_u32 s66, s66, 2")
        e("s_cmp_lt_u32 s64, 2")
        e(f"s_cselect_b32 s{sJ}, s65, s66")
    e(f"s_lshl_b32 s{sCOL}, s{sJ}, 8")
    e(f"s_sub_u32 s64, s{sCOL}, {14 * 256}")
    e(f"s_movk_i32 s{sRS}, 3584")
    e(f"s_cmp_ge_u32 s{sJ}, 14")
    e(f"s_cselect_b32 s{sDFT}, 1, 0")
    e(f"s_cselect_b32 s{sRS}, 1024, s{sRS}")
    e(f"s_cselect_b32 s{sCOL}, s64, s{sCOL}")
    e(f"s_lshl_b32 s34, s{sRS}, 9")
    e("s_mov_b32 s35, 0x20000")
    e("s_mov_b32 s6, 0x200000")
    e("s_mov_b32 s7, 0x20000")


def wm_select(scc_instr):
    e(f"s_cmp_eq_u32 s{sDFT}, 1")
    e("s_cselect_b64 s[8:9], s[48:49], s[52:53]")
    e("s_cselect_b64 s[12:13], s[50:51], s[54:55]")
    e(scc_instr)
    e("s_cselect_b64 s[32:33], s[12:13], s[8:9]")


def ids2():
    e("s_bfe_u32 s46, s2, 0x20001")
    e("s_lshl_b32 s46, s46, 3")
    e(f"s_and_b32 s47, s{sIDX}, 7")
    e(f"s_add_u32 s{sT1}, s46, s47")
    e("s_and_b32 s46, s2, 1")
    e("s_lshl_b32 s46, s46, 2")
    e(f"s_lshr_b32 s47, s{sIDX}, 3")
    e(f"s_add_u32 s{sCB}, s46, s47")
    e("s_mov_b64 s[16:17], s[56:57]")
    e(f"s_mov_b32 s18, {1792 * 1024}")
    e("s_mov_b32 s19, 0x20000")
    e("s_mov_b64 s[20:21], s[62:63]")
    e(f"s_mov_b32 s22, {WS_SIZE}")
    e("s_mov_b32 s23, 0x20000")
    e("s_mov_b64 s[24:25], s[58:59]")
    e("s_mov_b32 s26, 0x200000")
    e("s_mov_b32 s27, 0x20000")
    e("s_mov_b64 s[28:29], s[60:61]")
    e("s_mov_b32 s30, 256")
    e("s_mov_b32 s31, 0x20000")


def entry():
    section("A")
    e("s_cmp_ge_u32 s2, 256")
    e("s_cbranch_scc1 END")
    e("s_load_dwordx2 s[4:5], s[0:1], 0")
    e("s_load_dwordx4 s[48:51], s[0:1], 24")
    e("s_load_dwordx8 s[52:59], s[0:1], 48")
    e("s_load_dwordx4 s[60:63], s[0:1], 80")
    if PROF or LITE or OPT.get("rabs"):
        e("s_memrealtime s[98:99]")
    stamp(0)
    e("v_lshrrev_b32 v1, 6, v0")
    e("v_and_b32 v0, 63, v0")
    e(f"s_lshr_b32 s{sIDX}, s2, 3")
    e(f"v_readfirstlane_b32 s{sWAVE}, v1")
    e("s_getpc_b64 s[64:65]")
    lab("PCREF")
    e(f"s_cmp_ge_u32 s{sWAVE}, 4")
    e("s_cbranch_scc1 LSTART")
    if OPT["ct"]:
        cm("pull the kernel's own code into this die's L2: three lines per matrix wave")
        e(f"s_lshl_b32 s66, s{sIDX}, 2")
        e(f"s_add_u32 s66, s66, s{sWAVE}")
        e("s_mul_i32 s66, s66, 384")
        e(f"s_min_u32 s66, s66, END-PCREF-384")
        e("s_and_b32 s64, s64, 0xffffff80")
        e("s_load_dwordx2 s[68:69], s[64:65], s66 offset:60")
        e("s_load_dwordx2 s[70:71], s[64:65], s66 offset:188")
        e("s_load_dwordx2 s[72:73], s[64:65], s66 offset:316")
    if OPT["bs"]:
        bar("BS")
    e("s_branch CWAVE")
    lab("LSTART")
    ids1()
    e(f"s_cmp_eq_u32 s{sWAVE}, 6")
    e("s_cbranch_scc1 L2WAVE")
    e(f"s_cmp_eq_u32 s{sWAVE}, 7")
    e("s_cbranch_scc1 L3WAVE")


def wd_voffset(vd, vt):
    e(f"v_lshrrev_b32 v{vt}, 3, v0")
    e(f"v_lshlrev_b32 v{vd}, 10, v{vt}")
    e(f"v_bfe_u32 v{vt}, v0, 4, 1")
    e(f"v_lshlrev_b32 v{vt}, 2, v{vt}")
    e(f"v_and_b32 v{vt + 1}, 7, v0")
    e(f"v_xor_b32 v{vt}, v{vt}, v{vt + 1}")
    e(f"v_lshl_add_u32 v{vd}, v{vt}, 4, v{vd}")


XS = 8192


def xw_base():
    e(f"s_lshr_b32 s60, s{sIDX}, 2")
    e("s_lshl_b32 s60, s60, 10")
    e(f"s_and_b32 s63, s{sIDX}, 3")
    e("s_lshl_b32 s63, s63, 7")
    e("s_add_u32 s60, s60, s63")
    e("s_and_b32 s63, s2, 1")
    e("s_lshl_b32 s63, s63, 9")
    e("s_add_u32 s60, s60, s63")
    e("s_bfe_u32 s63, s2, 0x20001")
    e(f"s_mul_i32 s62, s63, {56 * XS}")


def xload(n):
    for k in range(n if not OPT.get("nox") else 0):
        e(f"s_buffer_load_dwordx2 s[58:59], {srd(SRD_WD)}, s60 offset:{XS * k + 60}")


def xa_init():
    xw_base()
    e("s_add_u32 s60, s60, s62")
    e(f"s_sub_u32 s63, s{sWAVE}, 4")
    e(f"s_mul_i32 s63, s63, {28 * XS}")
    e("s_add_u32 s60, s60, s63")


def xa():
    xload(OPT["na"])
    e(f"s_add_u32 s60, s60, {OPT['na'] * XS}")


def xb_init(which):
    xw_base()
    e(f"s_add_u32 s60, s60, {which * OPT['nb'] * XS}")
    e("s_add_u32 s62, s62, s60")


XBN = [0, 0]


def xw(n, which):
    nb = OPT["nb"]
    if n < OPT["xb0"] or XBN[which] * 2 * nb >= 168:
        return
    XBN[which] += 1
    e("s_cmp_ge_u32 s60, s62")
    e(f"s_cselect_b32 s63, {56 * XS}, 0")
    e("s_cselect_b32 s62, -1, s62")
    e("s_add_u32 s60, s60, s63")
    xload(nb)
    e(f"s_add_u32 s60, s60, {2 * nb * XS}")


def rot_offsets(shift, add):
    for k in range(8):
        e(f"s_add_u32 s{48 + k}, s{sCB}, {k}")
        e(f"s_and_b32 s{48 + k}, s{48 + k}, 7")
        e(f"s_lshl_b32 s{48 + k}, s{48 + k}, {shift}")
        e(f"s_add_u32 s{48 + k}, s{48 + k}, {add}")


def l01wave():
    vX0, vX1, vW, vWD, vZ, vW1 = 2, 3, 4, 5, 9, 12
    sLW, sXa, sXb, sWo, sS0, sS1, sR4, sT, sCnt, sWd = 64, 65, 66, 67, 68, 69, 70, 71, 72, 73
    section("A2")
    lab("L01WAVE")
    cm("================ L0/L1: DMA waves ================")
    if OPT.get("dp"):
        e(f"s_setprio {OPT['dp']}")
    e(f"s_sub_u32 s{sLW}, s{sWAVE}, 4")
    e("v_lshrrev_b32 v6, 3, v0")
    e(f"v_lshlrev_b32 v{vX0}, 16, v6")
    e("v_lshrrev_b32 v6, 1, v6")
    e("v_and_b32 v7, 7, v0")
    e("v_xor_b32 v6, v6, v7")
    e(f"v_lshl_add_u32 v{vX0}, v6, 4, v{vX0}")
    e(f"v_xor_b32 v{vX1}, 64, v{vX0}")
    e("v_lshrrev_b32 v6, 4, v0")
    e(f"v_mul_lo_u32 v{vW}, v6, s{sRS}")
    e("v_bfe_u32 v7, v0, 2, 2")
    e("v_xor_b32 v7, v7, v6")
    e("v_lshlrev_b32 v7, 2, v7")
    e("v_and_b32 v8, 3, v0")
    e("v_or_b32 v7, v7, v8")
    e(f"v_lshl_add_u32 v{vW}, v7, 4, v{vW}")
    e("v_xor_b32 v7, 2, v7")
    e(f"v_mul_lo_u32 v{vW1}, v6, s{sRS}")
    e(f"v_lshl_add_u32 v{vW1}, v7, 4, v{vW1}")
    e(f"s_lshl_b32 s{sXa}, s{sI}, 1")
    e(f"s_add_u32 s{sXa}, s{sXa}, s{sLW}")
    e(f"s_lshl_b32 s{sXa}, s{sXa}, 10")
    e(f"s_add_u32 s{sXb}, s{sXa}, {32 * 1024}")
    e(f"s_mov_b32 s{sWo}, s{sCOL}")
    e(f"s_lshl_b32 s{sR4}, s{sRS}, 2")
    e(f"s_lshl_b32 s74, s{sLW}, 10")
    e(f"s_lshl_b32 s77, s{sLW}, 12")

    def wpieces(base_sgpr, imm):
        e(f"s_add_u32 s{sT}, s{base_sgpr}, s74")
        e(f"s_add_u32 m0, s{sT}, {imm}")
        e("s_nop 0")
        for k in range(8):
            if not (OPT.get("nodma", 0) & 1 and CUR[1]):
                e(f"buffer_load_dwordx4 v{vW1 if (k & 2) and OPT['m16'] else vW}, {srd(SRD_WM)}, s{sWo} offen lds")
            if k < 7:
                e("s_add_u32 m0, m0, 2048")
            e(f"s_add_u32 s{sWo}, s{sWo}, s{sR4}")

    def xpieces(base_sgpr, half):
        sx = sXb if half else sXa
        e(f"s_add_u32 s{sT}, s{base_sgpr}, s77")
        e(f"s_add_u32 m0, s{sT}, {32768 + half * 8192}")
        e(f"s_mov_b32 s{sT}, s{sx}")
        for k in range(4):
            if not (OPT.get("nodma", 0) & 2 and CUR[1]):
                e(f"buffer_load_dwordx4 v{vX1 if k & 1 else vX0}, {srd(SRD_X)}, s{sT} offen lds")
            if k < 3:
                e("s_add_u32 m0, m0, 1024")
                e(f"s_add_u32 s{sT}, s{sT}, 0x80000")
        e(f"s_add_u32 s{sx}, s{sx}, 128")

    e(f"s_mov_b32 s{sS0}, {SLOT}")
    e(f"s_mov_b32 s{sS1}, {2 * SLOT}")
    e("s_waitcnt lgkmcnt(0)")
    cm("G0 = x0 + W0 ; G1 = W1 + x1a")
    xpieces(sS0, 0)
    wm_select(f"s_cmp_eq_u32 s{sLW}, 1")
    wpieces(sS0, 0)
    xpieces(sS0, 1)
    if OPT["bs"]:
        bar("BS")
    wpieces(sS0, 16384)
    xpieces(sS1, 0)
    ids2()
    xa_init()
    wd_voffset(vWD, 6)
    e(f"s_lshl_b32 s{sT}, s{sCB}, 7")
    rot_offsets(15, f"s{sT}")
    e("v_min_u32 v10, 13, v0")
    e("v_lshlrev_b32 v10, 7, v10")
    e(f"s_lshr_b32 s61, s{sT1}, 1")
    e("s_lshl_b32 s61, s61, 11")
    e(f"s_add_u32 s61, s61, {FLH}")
    e(f"s_cmp_eq_u32 s{sLW}, 0")
    e(f"s_cselect_b32 s61, s61, {OOB:#x}")
    e("v_lshlrev_b32 v13, 4, v0")
    e(f"s_lshl_b32 s56, s{sJ}, 13")
    e("s_add_u32 s56, s56, s74")
    e(f"s_add_u32 s56, s56, {CS_OFF}")
    e("s_add_u32 s57, s56, 4096")
    e(f"s_lshl_b32 s62, s{sI}, 11")
    e("s_add_u32 s62, s62, s74")
    e(f"s_add_u32 s62, s62, {ST_OFF}")
    e(f"s_lshl_b32 s63, s{sLW}, 9")
    e(f"s_add_u32 s63, s63, {CSL}")
    e("v_lshl_add_u32 v45, v0, 3, s63")
    e(f"s_lshl_b32 s63, s{sLW}, 8")
    e(f"s_add_u32 s63, s63, {RL}")
    e("v_lshl_add_u32 v46, v0, 2, s63")
    e(f"s_mov_b32 s{sS0}, {2 * SLOT}")
    e(f"s_mov_b32 s{sS1}, 0")
    e(f"s_mov_b32 s{sCnt}, 6")
    e("s_waitcnt vmcnt(12)")
    stamp(1)
    bar("B0")
    lab("L01LOOP")
    CUR[1] = True
    wpieces(sS0, 0)
    xpieces(sS0, 1)
    A0 = OPT["xa0"]
    NA = -(-28 // OPT["na"])
    ev = [n for n in range(0, 12, 2) if A0 <= n < A0 + NA]
    od = [n for n in range(1, 12, 2) if A0 <= n < A0 + NA]
    e(f"s_sub_u32 s63, {6 - ev[0] // 2}, s{sCnt}")
    e(f"s_cmp_ge_u32 s63, {len(ev)}")
    e("s_cbranch_scc1 L01X0")
    xa()
    lab("L01X0")
    e("s_waitcnt vmcnt(12)")
    bar("B(2s+1)")
    wpieces(sS0, 16384)
    xpieces(sS1, 0)
    e(f"s_sub_u32 s63, {6 - od[0] // 2}, s{sCnt}")
    e(f"s_cmp_ge_u32 s63, {len(od)}")
    e("s_cbranch_scc1 L01X1")
    xa()
    lab("L01X1")
    e(f"s_mov_b32 s{sS0}, s{sS1}")
    e(f"s_add_u32 s{sS1}, s{sS1}, {SLOT}")
    e(f"s_cmp_eq_u32 s{sS1}, {3 * SLOT}")
    e(f"s_cselect_b32 s{sS1}, 0, s{sS1}")
    e(f"s_sub_u32 s{sCnt}, s{sCnt}, 1")
    e(f"s_cmp_lg_u32 s{sCnt}, 0")
    e("s_waitcnt vmcnt(12)")
    bar("B(2s+2)")
    e("s_cbranch_scc1 L01LOOP")
    wpieces(sS0, 0)
    xpieces(sS0, 1)
    e(f"v_mov_b32 v7, {TAGL}")
    e("ds_read_b32 v8, v7")
    e("s_waitcnt vmcnt(12)")
    bar("B13")
    wpieces(sS0, 16384)

    def gets():
        cm("statistics of the other workgroups: column sums (128 columns x 4 partial sums) and 64 rows per wave")
        for k in range(4):
            e(f"buffer_load_dwordx4 {vr(16 + 4 * k, 4)}, v13, {srd(SRD_WS)}, {'s57' if k >= 2 else 's56'} offen offset:{2048 * (k & 1)} sc1")
        e(f"buffer_load_dwordx4 v[32:35], v13, {srd(SRD_WS)}, s62 offen sc1")

    gets()
    e(f"s_lshl_b32 s{sWd}, s{sLW}, 14")
    e(f"s_lshl_b32 m0, s{sLW}, 11")

    def units(a, b, th=0):
        for v in range(a, b):
            if v and v & 7 == 0:
                e(f"s_add_u32 s{sWd}, s{sWd}, 262144")
            e(f"s_add_u32 s{sT}, s{sWd}, s{48 + (v & 7)}")
            if v < NRES:
                e(f"buffer_load_dwordx4 v{vWD}, {srd(SRD_WD)}, s{sT} offen lds")
                e("s_add_u32 m0, m0, 1024")
            else:
                e(f"buffer_load_dwordx4 {vr(ST0 + 8 * (v - NRES), 4)}, v{vWD}, {srd(SRD_WD)}, s{sT} offen")
            e(f"s_add_u32 s{sT}, s{sT}, 8192")
            if v < NRES:
                e(f"buffer_load_dwordx4 v{vWD}, {srd(SRD_WD)}, s{sT} offen lds")
            else:
                e(f"buffer_load_dwordx4 {vr(ST0 + 8 * (v - NRES) + 4, 4)}, v{vWD}, {srd(SRD_WD)}, s{sT} offen")
            if v + 1 < NRES:
                e(f"s_add_u32 m0, m0, {(wslot(v + 1) - wslot(v)) * 4096 - 1024}")
            if th:
                e(f"s_waitcnt vmcnt({th})")

    ST0 = 64
    U1, U2 = OPT["u1"], OPT["u2"]
    units(0, U1)
    e("s_waitcnt lgkmcnt(0)")
    e(f"v_readfirstlane_b32 s{sTAG}, v8")
    e(f"s_waitcnt vmcnt({8 + 5 + 2 * U1})")
    bar("B14")
    units(U1, U2)
    e(f"s_waitcnt vmcnt({5 + 2 * U2})")
    bar("B15")
    e(f"s_mov_b32 s75, {OPT['spin']}")
    e(f"s_waitcnt vmcnt({2 * U2})")
    lab("GCHK")
    for k in range(8):
        e(f"v_xor_b32 v{36 + k}, s{sTAG}, v{17 + 2 * k}")
    e(f"v_xor_b32 v44, s{sTAG}, v35")
    for k in range(4):
        e(f"v_or3_b32 v44, v44, v{36 + 2 * k}, v{37 + 2 * k}")
    e("v_cmp_ne_u32 vcc, 0, v44")
    e("v_add_f32 v36, v16, v20")
    e("v_add_f32 v37, v18, v22")
    e("s_cmp_eq_u64 vcc, 0")
    e("s_cbranch_scc1 GOK")
    e("s_sleep 2")
    gets()
    e("s_sub_u32 s75, s75, 1")
    e("s_cmp_lg_u32 s75, 0")
    e("s_waitcnt vmcnt(0)")
    e("s_cbranch_scc1 GCHK")
    lab("GOK")
    e("v_add_f32 v38, v24, v28")
    e("v_add_f32 v39, v26, v30")
    e("v_add_f32 v36, v36, v38")
    e("v_add_f32 v37, v37, v39")
    e("ds_write_b64 v45, v[36:37]")
    e(f"ds_write_b64 v45, v[32:33] offset:{MRP - CSL}")
    e("ds_write_b32 v46, v33")
    if not OPT["nocs"]:
        e("v_mul_f32 v38, v32, v33")
        e("v_xor_b32 v38, 0x80000000, v38")
        e("ds_write_b32 v46, v38 offset:512")
    e("s_waitcnt lgkmcnt(0)")
    stamp(2)
    bar("B16")
    TR = OPT["trk"]
    units(U2, TR, OPT["th"])
    e(f"s_cmp_eq_u32 s{sDFT}, 1")
    e("s_cbranch_scc1 L01GO")
    wait_c_done()
    lab("L01GO")
    stamp(3)
    PA = OPT["pa"]
    units(TR, PA)
    e(f"s_cmp_eq_u32 s{sDFT}, 0")
    e("s_cbranch_scc1 L01GO2")
    wait_c_done()
    lab("L01GO2")
    cm("L0 waits for the 14 producers of row block t1>>1 (queued behind the w_down loads)")
    poll_issue(11, 10, "s61", SRD_WS)
    units(PA, 56)
    e("v_and_b32 v6, 3, v0")
    e("v_bfe_u32 v7, v0, 3, 2")
    e("v_lshl_add_u32 v6, v7, 2, v6")
    e("v_bfe_u32 v7, v0, 2, 1")
    e("v_lshl_add_u32 v6, v7, 4, v6")
    e("v_and_b32 v7, 32, v0")
    e(f"s_lshl_b32 s66, s{sCB}, 6")
    e("v_add3_u32 v6, v6, v7, s66")
    e("v_sub_u32 v7, 512, v6")
    e("v_and_b32 v7, 255, v7")
    e(f"s_sub_u32 s67, 32, s{sT1}")
    e("s_and_b32 s67, s67, 31")
    e(f"s_cmp_ge_u32 s{sCB}, 4")
    e("s_cselect_b64 s[68:69], -1, 0")
    e(f"s_cselect_b32 s67, s67, s{sT1}")
    e("v_cmp_eq_u32 vcc, 0, v6")
    e("v_cndmask_b32 v7, v6, v7, s[68:69]")
    e(f"v_lshlrev_b32 v{vZ}, 4, v7")
    e(f"v_mov_b32 v7, {OOB:#x}")
    e("s_lshl_b32 s67, s67, 16")
    e(f"v_cndmask_b32 v{vZ}, v{vZ}, v7, vcc")
    e(f"s_lshl_b32 s66, s{sLW}, 15")
    e("s_add_u32 s67, s67, s66")
    e(f"s_add_u32 s67, s67, {Z_OFF}")
    e(f"s_lshl_b32 s66, s{sLW}, 13")
    e(f"s_add_u32 m0, s66, {ZL}")
    e("v_bfe_u32 v12, v0, 1, 4")
    e("v_lshlrev_b32 v12, 4, v12")
    e("v_and_b32 v13, 1, v0")
    e("v_add3_u32 v12, v12, v13, 14")
    e("v_lshlrev_b32 v12, 7, v12")
    e(f"s_mov_b32 s70, {FLH}")
    e(f"s_lshl_b32 s66, s{sLW}, 11")
    e("v_lshl_add_u32 v6, v0, 4, s66")
    e(f"s_cmp_eq_u32 s{sLW}, 1")
    e(f"s_cselect_b32 s70, s70, {OOB:#x}")
    e("s_cbranch_scc1 L1NOPOLL")
    poll_wait(11, 10, "s61", SRD_WS, first_wait=2 * (56 - PA))
    lab("L1NOPOLL")
    e(f"s_waitcnt vmcnt({2 * min(NST, 56 - PA)})")
    stamp(4)
    bar("BW")
    e("s_waitcnt vmcnt(0)")
    bar("BP1")
    poll_issue(11, 12, "s70", SRD_WS)
    for k in range(2 * NST):
        if k == 32:
            e("v_add_u32 v6, 0x10000, v6")
        e(f"ds_write_b128 v6, {vr(ST0 + 4 * k, 4)} offset:{((k >> 1) * 4096 + (k & 1) * 1024) & 0xFFFF}")
    e("s_waitcnt lgkmcnt(0)")
    bar("BP2")
    e(f"s_cmp_eq_u32 s{sLW}, 0")
    e("s_cbranch_scc1 L0NOPOLL")
    poll_wait(11, 12, "s70", SRD_WS)
    lab("L0NOPOLL")
    stamp(5)
    bar("BZ0")
    for g in range(8):
        e(f"buffer_load_dwordx4 v{vZ}, {srd(SRD_WS)}, s67 offen sc1 lds")
        e("s_add_u32 m0, m0, 1024")
        e("s_add_u32 s67, s67, 4096")
    e("s_waitcnt vmcnt(0)")
    stamp(6)
    bar("BR")
    stamp_flush(7, 14, False)
    e("s_endpgm")


DWN = [0, 0]


def dw_init(which):
    if not OPT["dw"]:
        return
    e("v_and_b32 v116, 31, v0")
    e("v_lshlrev_b32 v116, 6, v116")
    e("v_lshrrev_b32 v117, 5, v0")
    e(f"s_cmp_eq_u32 s{sDFT}, 1")
    e(f"s_cselect_b32 s73, 16, 30")
    e("v_lshlrev_b32 v117, s73, v117")
    e("v_add_u32 v116, v116, v117")
    e(f"s_lshl_b32 s61, s{sJ}, 12")
    e(f"s_mul_i32 s57, s{sI}, {2 * 4 * 56 * 1024}")
    e("s_add_u32 s61, s61, s57")
    e(f"s_add_u32 s61, s61, {H_OFF + which * 4 * 57344}")
    e(f"s_lshl_b32 s57, s{sI}, 12")
    e(f"s_and_b32 s73, s{sJ}, 1")
    e("s_lshl_b32 s73, s73, 11")
    e("s_add_u32 s57, s57, s73")
    e(f"s_add_u32 s57, s57, {Z_OFF + which * 16 * 65536}")
    e(f"s_cmp_eq_u32 s{sDFT}, 1")
    e("s_cselect_b32 s61, s57, s61")
    e(f"s_mov_b32 s73, {57344 - 2048}")
    e("s_cselect_b32 s73, 0x20000, s73")
    e("s_movk_i32 s74, 2048")
    e("s_cselect_b32 s74, 0x20000, s74")


def dw(n, which, vm):
    if not OPT["dw"] or n < OPT["dw0"]:
        return
    for _ in range(OPT["dw"]):
        if DWN[which] < 8:
            vm.add(("d", DWN[which]), f"buffer_store_dword v116, v116, {srd(SRD_WS)}, s61 offen sc1")
            e(f"s_add_u32 s61, s61, {'s73' if DWN[which] & 1 else 's74'}")
            DWN[which] += 1


def l23_tail(which, vm):
    xb_init(which)
    xw(8, which)
    for n in range(9, OPT["xe"] + 1):
        if n == OPT["xe"]:
            assert not OPT["dw"] or DWN[which] == 8
            e("s_waitcnt vmcnt(0)")
        bar(f"B{n}")
        xw(n, which)
        dw(n, which, vm)
    for n in range(OPT["xt"]):
        xw(20, which)


def l2wave():
    vC = 8
    vm = Q()
    section("A")
    e("s_branch L01WAVE")
    lab("L2WAVE")
    cm("================ L2: column sums (64 columns x rows 64s + 16kq + 0..15) ================")
    e("v_lshrrev_b32 v18, 3, v0")
    e("v_and_b32 v19, 7, v0")
    e(f"v_mul_lo_u32 v{vC}, v18, s{sRS}")
    e(f"v_lshl_add_u32 v{vC}, v19, 4, v{vC}")
    e(f"s_lshr_b32 s64, s{sI}, 2")
    e("s_lshl_b32 s64, s64, 4")
    e(f"s_mul_i32 s69, s64, s{sRS}")
    e(f"s_and_b32 s64, s{sI}, 1")
    e("s_lshl_b32 s64, s64, 7")
    e("s_add_u32 s69, s69, s64")
    e(f"s_add_u32 s69, s69, s{sCOL}")
    e(f"s_lshl_b32 s70, s{sRS}, 3")
    e(f"s_mul_i32 s72, s{sRS}, 56")
    if OPT["sord"]:
        e("s_add_u32 s69, s69, s70")
        e("s_add_u32 s69, s69, s72")
    e("s_waitcnt lgkmcnt(0)")
    wm_select(f"s_bitcmp1_b32 s{sI}, 1")
    LD, AC = 32, 16

    def csload(y):
        vm.add(("c", y), f"buffer_load_dwordx4 {vr(LD + 4 * y, 4)}, v{vC}, {srd(SRD_WM)}, s69 offen")
        e(f"s_add_u32 s69, s69, {'s72' if y & 1 else 's70'}")
        if OPT["sord"] and y == 13:
            e("s_sub_u32 s69, s69, s34")

    def csproc(y):
        for d in range(4):
            r = LD + 4 * y + d
            if y == 0:
                e(f"v_lshlrev_b32 v{AC + 2 * d}, 16, v{r}")
                e(f"v_and_b32 v{AC + 2 * d + 1}, v9, v{r}")
            else:
                e(f"v_lshlrev_b32 v10, 16, v{r}")
                e(f"v_and_b32 v11, v9, v{r}")
                e(f"v_add_f32 v{AC + 2 * d}, v{AC + 2 * d}, v10")
                e(f"v_add_f32 v{AC + 2 * d + 1}, v{AC + 2 * d + 1}, v11")

    for y in range(2 * OPT["pre"]):
        csload(y)
    if OPT["bs"]:
        bar("BS")
        for y in range(2 * OPT["pre"], 2 * OPT["bs"]):
            csload(y)
    e("s_branch L2REST")
    section("L2")
    lab("L2REST")
    if OPT.get("lp0"):
        e(f"s_setprio {OPT['lp0']}")
    ids2()
    e("v_mov_b32 v9, 0xffff0000")
    dw_init(0)
    stamp(1)
    issued, done = 2 * max(OPT["pre"], OPT["bs"]), 0
    for n in range(8):
        bar(f"B{n}")
        while issued < 16 and n >= OPT["preb"]:
            csload(issued)
            issued += 1
        dw(n, 0, vm)
        if n >= 2:
            k = min(done + 3, 16)
            e(f"s_waitcnt vmcnt({vm.younger(('c', k - 1))})")
            for y in range(done, k):
                csproc(y)
            done = k
    assert done == 16 and issued == 16
    bar("B8")
    e(f"v_mov_b32 v12, {TAGL}")
    e("ds_read_b32 v25, v12")
    for k in range(4):
        e(f"v_permlane32_swap_b32 v{AC + k}, v{AC + k + 4}")
    e("s_nop 1")
    for k in range(4):
        e(f"v_add_f32 v{AC + k}, v{AC + k}, v{AC + k + 4}")
    e("s_nop 1")
    for k in range(2):
        e(f"v_permlane16_swap_b32 v{AC + k}, v{AC + k + 2}")
    e("s_nop 1")
    for k in range(2):
        e(f"v_add_f32 v{AC + k}, v{AC + k}, v{AC + k + 2}")
    e("v_and_b32 v10, 7, v0")
    e("v_lshlrev_b32 v10, 3, v10")
    e(f"v_add_f32_dpp v24, v{AC}, v{AC} row_ror:8 row_mask:0xf bank_mask:0x3")
    e(f"v_add_f32_dpp v24, v{AC + 1}, v{AC + 1} row_ror:8 row_mask:0xf bank_mask:0xc")
    e("v_bfe_u32 v11, v0, 5, 1")
    e("v_lshl_add_u32 v10, v11, 2, v10")
    e("v_bfe_u32 v11, v0, 4, 1")
    e("v_lshl_add_u32 v10, v11, 1, v10")
    e("v_bfe_u32 v11, v0, 3, 1")
    e("v_add_u32 v10, v11, v10")
    e("v_lshlrev_b32 v10, 3, v10")
    e(f"s_lshl_b32 s64, s{sJ}, 13")
    e(f"s_add_u32 s64, s64, {CS_OFF}")
    e(f"s_lshl_b32 s65, s{sI}, 9")
    e("s_add_u32 s65, s64, s65")
    e("s_waitcnt lgkmcnt(0)")
    vm.add("pub", f"buffer_store_dwordx2 v[24:25], v10, {srd(SRD_WS)}, s65 offen sc1")
    stamp(2)
    l23_tail(0, vm)
    stamp_flush(3, 26, False)
    e("s_endpgm")


def l3wave():
    vm = Q()
    section("A")
    lab("L3WAVE")
    cm("================ L3: launch tag, row statistics (rows 8j..8j+7 of the row block), hand-off waits ================")
    e(f"s_bfe_u32 s64, s{sJ}, 0x10002")
    e(f"s_bfe_u32 s65, s{sJ}, 0x10003")
    e("s_lshl_b32 s65, s65, 5")
    e(f"s_lshl_b32 s66, s{sI}, 1")
    e("s_add_u32 s64, s64, s65")
    e("s_add_u32 s64, s64, s66")
    e(f"s_and_b32 s65, s{sJ}, 3")
    e("s_lshl_b32 s65, s65, 9")
    e("s_add_u32 s64, s64, s65")
    e("s_lshl_b32 s64, s64, 10")
    e("v_lshrrev_b32 v4, 3, v0")
    e("v_and_b32 v14, 7, v0")
    e("v_lshlrev_b32 v6, 16, v4")
    e("v_lshl_add_u32 v6, v14, 4, v6")
    e("s_memrealtime s[66:67]")
    e("s_waitcnt lgkmcnt(0)")
    LD, UP = 16, 48

    def rowload(y):
        vm.add(("r", y), f"buffer_load_dwordx4 {vr(LD + 4 * y, 4)}, v6, {srd(SRD_X)}, s64 offen offset:{128 * ((y + OPT['sord']) & 7)}")

    for y in range(OPT["pre"]):
        rowload(y)
    if OPT["bs"]:
        bar("BS")
        for y in range(OPT["pre"], OPT["bs"]):
            rowload(y)
    e("s_branch L3REST")
    section("L3")
    lab("L3REST")
    if OPT.get("lp0"):
        e(f"s_setprio {OPT['lp0']}")
    ids2()
    e("v_mov_b32 v2, 0")
    e("s_or_b32 s66, s66, 1")
    e("v_mov_b32 v3, s66")
    e("s_cmp_eq_u32 s2, 0")
    e(f"s_cselect_b32 s66, 0, {OOB:#x}")
    vm.add("tag", f"buffer_store_dword v3, v2, {srd(SRD_DBG)}, s66 offen sc1")
    e("v_mov_b32 v9, 0xffff0000")
    dw_init(1)

    def unp(d):
        e(f"v_lshlrev_b32 v{UP + 2 * d}, 16, v{LD + d}")
        e(f"v_and_b32 v{UP + 2 * d + 1}, v9, v{LD + d}")
        if d == 0:
            e(f"v_mov_b32 v10, v{UP}")
            e(f"v_mov_b32 v11, v{UP + 1}")
        else:
            e(f"v_add_f32 v10, v10, v{UP + 2 * d}")
            e(f"v_add_f32 v11, v11, v{UP + 2 * d + 1}")

    def red8(r):
        e("s_nop 1")
        e(f"v_add_f32_dpp v{r}, v{r}, v{r} quad_perm:[1,0,3,2] row_mask:0xf bank_mask:0xf")
        e("s_nop 1")
        e(f"v_add_f32_dpp v{r}, v{r}, v{r} quad_perm:[2,3,0,1] row_mask:0xf bank_mask:0xf")
        e("s_nop 1")
        e(f"v_add_f32_dpp v{r}, v{r}, v{r} row_half_mirror row_mask:0xf bank_mask:0xf")

    def var(k):
        e(f"v_sub_f32 v{UP + k}, v{UP + k}, v10")
        e(f"v_fmac_f32 v{12 + (k & 1)}, v{UP + k}, v{UP + k}")

    issued, done = max(OPT["pre"], OPT["bs"]), 0
    for n in range(6):
        bar(f"B{n}")
        while issued < 8 and n >= OPT["preb"]:
            rowload(issued)
            issued += 1
        dw(n, 1, vm)
        if n == 5:
            vm.add("np")
            poll_issue(3, 2, "0", SRD_DBG)
        if n >= 2:
            k = min(done + 2, 8)
            e(f"s_waitcnt vmcnt({vm.younger(('r', k - 1))})")
            for d in range(4 * done, 4 * k):
                unp(d)
            done = k
    assert done == 8 and issued == 8
    e("v_add_f32 v10, v10, v11")
    red8(10)
    e(f"v_mul_f32 v10, {f2u(1.0 / 512):#x}, v10")
    e("v_mov_b32 v12, 0")
    e("v_mov_b32 v13, 0")
    bar("B6")
    dw(6, 1, vm)
    for k in range(24):
        var(k)
    bar("B7")
    poll_wait(3, 2, "0", SRD_DBG, cond_tag=False, first_wait=vm.younger("np"))
    e(f"v_mov_b32 v15, {TAGL}")
    e("ds_write_b32 v15, v3")
    e("ds_write_b32 v15, v2 offset:4")
    e("ds_write_b32 v15, v2 offset:8")
    e(f"v_readfirstlane_b32 s{sTAG}, v3")
    for k in range(24, 44):
        var(k)
    e("s_waitcnt lgkmcnt(0)")
    dw(7, 1, vm)
    bar("B8")
    for k in range(44, 64):
        var(k)
    e("v_add_f32 v12, v12, v13")
    red8(12)
    e(f"v_mul_f32 v12, {f2u(1.0 / 512):#x}, v12")
    cm("roundings as in the reference: m=bf(mean); sd=bf(sqrt(bf(bf(var)+eps))); r=1/sd")
    e("v_cvt_pk_bf16_f32 v15, v10, v12")
    e("v_lshlrev_b32 v16, 16, v15")
    e("v_and_b32 v12, v9, v15")
    e(f"v_add_f32 v12, {f2u(1e-5):#x}, v12")
    e("v_cvt_pk_bf16_f32 v12, v12, v12")
    e("v_and_b32 v12, v9, v12")
    e("v_sqrt_f32 v12, v12")
    e("v_cmp_eq_u32 vcc, 0, v14")
    e("v_cvt_pk_bf16_f32 v12, v12, v12")
    e("v_and_b32 v12, v9, v12")
    e("v_rcp_f32 v17, v12")
    e("v_lshlrev_b32 v14, 4, v4")
    e(f"v_mov_b32 v15, {OOB:#x}")
    e(f"s_lshl_b32 s64, s{sI}, 11")
    e(f"s_add_u32 s64, s64, {ST_OFF}")
    e("v_cndmask_b32 v14, v15, v14, vcc")
    e("v_mov_b32 v18, v3")
    e("v_mov_b32 v19, v3")
    e(f"s_lshl_b32 s65, s{sJ}, 7")
    e("s_add_u32 s65, s64, s65")
    vm.add("pub", f"buffer_store_dwordx4 v[16:19], v14, {srd(SRD_WS)}, s65 offen sc1")
    stamp(1)
    l23_tail(1, vm)
    stamp_flush(2, 26, False)
    e("s_endpgm")


XF = [[64 + 4 * q for q in range(4)], [80 + 4 * q for q in range(4)]]
WF = [[96, 100], [104, 108]]
XA = [112, 113, 114, 115]
WA = 116
vPM = 118
CG, CU, MR = 0, 16, 32
vA_CS, vA_MR, vA_TAG = 45, 46, 116 if OPT['m16'] else 47
R0, N0 = 64, 80
vD_CS, vD_R, vD_TAG = 122, 123, 124
sXO, sRO, sFLG, sOUT, sC0, sP, sKH = 56, 60, 61, 62, 63, 73, 74


def ACC(mat, q):
    return 128 + 32 * q + 16 * mat


def TW(q, cs, z):
    return 16 * q + 8 * cs + 4 * z


def frag_reads(u, st):
    r = []
    for mat in range(2):
        for a in range(2):
            r.append(f"ds_read_b64_tr_b16 {vr(WF[st][mat] + 2 * a, 2)}, v{WA} offset:{u * 8192 + a * 2048 + mat * 1024}")
    for q in range(4):
        r.append(f"ds_read_b128 {vr(XF[st][q], 4)}, v{XA[u]} offset:{q * 4096}")
    return r


def glu_stat_reads():
    r = [f"ds_read_b64 {vr(MR + 2 * q, 2)}, v{vA_MR} offset:{256 * q}" for q in range(4)]
    r += [f"ds_read_b128 {vr(CG + 4 * a, 4)}, v{vA_CS} offset:{32 * a}" for a in range(4)]
    r += [f"ds_read_b128 {vr(CU + 4 * a, 4)}, v{vA_CS} offset:{512 + 32 * a}" for a in range(4)]
    r += [f"ds_read_b32 v43, v{vA_TAG}"]
    return r


def dft_stat_reads():
    return [f"ds_read_b32 v118, v{vD_CS}", f"ds_read_b32 v119, v{vD_CS} offset:512", f"ds_read_b32 v{vD_TAG}, v{vD_TAG}"] + \
           [f"ds_read_b128 {vr(R0 + 4 * a, 4)}, v{vD_R} offset:{32 * a}" for a in range(4)]


def mainloop(dft):
    sCnt, sDelta, sCur = 64, 65, 66
    tag = "D" if dft else "G"
    es(frag_reads(0, 0))
    e(f"s_mov_b32 s{sCnt}, 8")
    e(f"s_mov_b32 s{sCur}, {SLOT}")
    e(f"s_mov_b32 s67, {(-2 * SLOT) & 0xffffffff:#x}")

    def step(u, last):
        st = u & 1
        mf = []
        for mat in ((1, 0) if dft else (0, 1)):
            for q in range(4):
                a, b = (XF[st][q], WF[st][mat]) if dft else (WF[st][mat], XF[st][q])
                mf.append(f"v_mfma_f32_32x32x16_bf16 {vr(ACC(mat, q), 16)}, {vr(a, 4)}, {vr(b, 4)}, {vr(ACC(mat, q), 16)}")
        rd = frag_reads((u + 1) & 3, st ^ 1)
        gaps = [[] for _ in range(8)]
        if u == 3 and not last:
            gaps[0] += [f"v_add_u32 v{WA}, s{sDelta}, v{WA}", f"v_add_u32 v{XA[0]}, s{sDelta}, v{XA[0]}"]
            gaps[5] += [f"v_add_u32 v{XA[1]}, s{sDelta}, v{XA[1]}"]
            gaps[6] += [f"v_add_u32 v{XA[2]}, s{sDelta}, v{XA[2]}", f"v_add_u32 v{XA[3]}, s{sDelta}, v{XA[3]}"]
        if PROF and u in (0, 2):
            gaps[0] += ["s_memtime s[70:71]"]
        if PROF and u in (1, 3):
            gaps[5] += [f"s_lshl_b32 s72, s{sCnt}, 1", f"s_sub_u32 m0, {16 if u == 1 else 15}, s72", f"v_writelane_b32 v{vLOOPST}, s70, m0"]
        if u == 2:
            gaps[5] += [f"s_cmp_eq_u32 s{sCur}, {2 * SLOT}", f"s_cselect_b32 s{sDelta}, s67, {SLOT}"]
            gaps[6] += [f"s_add_u32 s{sCur}, s{sCur}, s{sDelta}", f"s_sub_u32 s{sCnt}, s{sCnt}, 1"]
            gaps[7] += [f"s_cmp_eq_u32 s{sCnt}, 0"]
        if u & 1:
            gaps[0] += ["s_barrier"]
        if dft:
            gaps[0] = [f"v_cndmask_b32 v{WF[st][0] + k}, v{WF[st][0] + k}, v{vPM}, s[68:69]" for k in range(2)] + gaps[0]
            gaps[1] += [f"v_cndmask_b32 v{WF[st][0] + k}, v{WF[st][0] + k}, v{vPM}, s[68:69]" for k in range(2, 4)]
        if last:
            extra = dft_stat_reads() if dft else glu_stat_reads()
            for k, x in enumerate(extra):
                gaps[2 + min(k // 3, 4)].append(x)
        else:
            for k in range(4):
                gaps[k + (1 if (u & 1) else 0)] += rd[2 * k:2 * k + 2]
        e("s_waitcnt lgkmcnt(0)")
        for k in range(8):
            e(mf[k])
            es(gaps[k])

    raw(".p2align 3")
    lab(f"MAIN{tag}")
    for u in range(3):
        step(u, False)
    e(f"s_cbranch_scc1 LAST{tag}")
    step(3, False)
    e(f"s_branch MAIN{tag}")
    lab(f"LAST{tag}")
    step(3, True)


X16 = [4 * k for k in range(8)]
W16 = [[64 + 4 * n for n in range(4)], [80 + 4 * n for n in range(4)]]
XA16, WA16 = [112, 113], [114, 115]
MR16, CG16, CU16, TG16 = 32, 48, 56, 96
vB_CS, vB_MR = 119, 120


def A16(sg, n):
    return 128 + 16 * sg + 4 * n


def mainloop16():
    sCnt, sDelta, sCur = 64, 65, 66
    lq = Q()
    gen = [0]

    def rdx(sg, h):
        lq.add(("x", sg), f"ds_read_b128 {vr(X16[sg], 4)}, v{XA16[h]} offset:{sg * 2048}")

    def rdw(n, a, h):
        lq.add(("w", n, a), f"ds_read_b64_tr_b16 {vr(W16[h][n] + 2 * a, 2)}, v{WA16[n & 1]} offset:{h * 16384 + a * 2048 + (n >> 1) * 1024}")

    def wait(tag):
        idx = max(i for i, t in enumerate(lq.l) if t == tag)
        n = len(lq.l) - 1 - idx
        if n < gen[0]:
            e(f"s_waitcnt lgkmcnt({n})")
            gen[0] = n

    def second_half_reads(h):
        return [lambda: rdw(0, 0, h), lambda: rdw(0, 1, h), lambda: rdx(0, h), lambda: rdw(1, 0, h), lambda: rdw(1, 1, h),
                lambda: rdw(2, 0, h), lambda: rdw(2, 1, h), lambda: rdw(3, 0, h), lambda: rdw(3, 1, h),
                lambda: rdx(1, h), lambda: rdx(2, h), lambda: rdx(3, h)]

    def issue(f):
        f()
        gen[0] += 1

    for f in second_half_reads(0):
        issue(f)
    e(f"s_mov_b32 s{sCnt}, 8")
    e(f"s_mov_b32 s{sCur}, {SLOT}")
    e(f"s_mov_b32 s67, {(-2 * SLOT) & 0xffffffff:#x}")

    def step(h, last):
        gen[0] = 15
        gaps = [[] for _ in range(32)]
        for k, sg in enumerate((4, 5, 6, 7)):
            gaps[1 + 2 * k].append(lambda sg=sg: rdx(sg, h))
        txt = [[] for _ in range(32)]
        if h == 0:
            txt[9] += [f"s_cmp_eq_u32 s{sCur}, {2 * SLOT}", f"s_cselect_b32 s{sDelta}, s67, {SLOT}"]
            txt[10] += [f"s_add_u32 s{sCur}, s{sCur}, s{sDelta}", f"s_sub_u32 s{sCnt}, s{sCnt}, 1"]
            txt[31] += [f"s_cmp_eq_u32 s{sCnt}, 0"]
        elif not last:
            txt[9] += [f"v_add_u32 v{XA16[0]}, s{sDelta}, v{XA16[0]}", f"v_add_u32 v{XA16[1]}, s{sDelta}, v{XA16[1]}"]
            txt[10] += [f"v_add_u32 v{WA16[0]}, s{sDelta}, v{WA16[0]}", f"v_add_u32 v{WA16[1]}, s{sDelta}, v{WA16[1]}"]
        if PROF:
            txt[11] += ["s_memtime s[70:71]"]
            txt[29] += [f"s_lshl_b32 s72, s{sCnt}, 1", f"s_sub_u32 m0, {14 + h}, s72"]
            txt[30] += [f"v_writelane_b32 v{vLOOPST}, s70, m0"]
        if last:
            st = [f"ds_read_b64 {vr(MR16 + 2 * sg, 2)}, v{vB_MR} offset:{128 * sg}" for sg in range(8)]
            st += [f"ds_read_b128 {vr(CG16 + 4 * n, 4)}, v{vB_CS} offset:{64 * n}" for n in range(2)]
            st += [f"ds_read_b128 {vr(CU16 + 4 * n, 4)}, v{vB_CS} offset:{512 + 64 * n}" for n in range(2)]
            st += [f"ds_read_b32 v{TG16}, v{vA_TAG}"]
            for k, x in enumerate(st):
                txt[17 + k].append(x)
        else:
            for k, f in enumerate(second_half_reads(h ^ 1)):
                gaps[17 + k].append(f)
        for m in range(32):
            sg, n = m >> 2, m & 3
            if sg == 0:
                wait(("w", n, 1))
            if n == 0:
                wait(("x", 7 if sg == 4 else sg))
            e(f"v_mfma_f32_16x16x32_bf16 {vr(A16(sg, n), 4)}, {vr(W16[h][n], 4)}, {vr(X16[sg], 4)}, {vr(A16(sg, n), 4)}")
            if m == 16:
                bar()
            for f in gaps[m]:
                issue(f)
            es(txt[m])

    raw(".p2align 3")
    lab("MAING")
    step(0, False)
    e("s_cbranch_scc1 LASTG")
    keep = list(lq.l)
    step(1, False)
    e("s_branch MAING")
    lab("LASTG")
    lq.l = keep
    step(1, True)


def glu_epilogue16():
    e(f"v_and_b32 v97, 15, v{vLANE}")
    e(f"v_bfe_u32 v98, v{vLANE}, 4, 1")
    e("v_lshlrev_b32 v97, 4, v97")
    e("v_lshl_add_u32 v97, v98, 9, v97")
    e(f"v_lshrrev_b32 v98, 5, v{vLANE}")
    e(f"v_mul_u32_u24 v98, {56 * 1024}, v98")
    e("v_add_u32 v97, v97, v98")
    e("s_mov_b32 s66, 1.0")
    e("s_mov_b32 s67, 1.0")
    e("s_waitcnt lgkmcnt(0)")
    e(f"v_readfirstlane_b32 s{sTAG}, v{TG16}")
    for sg in range(8):
        e(f"v_mul_f32 v{MR16 + 2 * sg + 1}, {NLOG2E:#x}, v{MR16 + 2 * sg + 1}")
    raw(".p2align 3")
    for sg in range(8):
        q = sg >> 1
        b, p = q & 1, q >> 1
        mr = vr(MR16 + 2 * sg, 2)
        G, U = A16(sg, 0), A16(sg, 2)
        for k in range(4):
            e(f"v_pk_fma_f32 {vr(G + 2 * k, 2)}, {vr(CG16 + 2 * k, 2)}, {mr}, {vr(G + 2 * k, 2)} op_sel_hi:[1,0,1] neg_lo:[0,1,0] neg_hi:[0,1,0]")
        for k in range(4):
            e(f"v_pk_mul_f32 {vr(G + 2 * k, 2)}, {vr(G + 2 * k, 2)}, {mr} op_sel:[0,1] op_sel_hi:[1,1]")
        for k in range(8):
            e(f"v_exp_f32 v{G + k}, v{G + k}")
        for k in range(4):
            e(f"v_pk_add_f32 {vr(G + 2 * k, 2)}, {vr(G + 2 * k, 2)}, s[66:67]")
        for k in range(8):
            e(f"v_rcp_f32 v{G + k}, v{G + k}")
        for k in range(4):
            e(f"v_pk_fma_f32 {vr(U + 2 * k, 2)}, {vr(CU16 + 2 * k, 2)}, {mr}, {vr(U + 2 * k, 2)} op_sel_hi:[1,0,1] neg_lo:[0,1,0] neg_hi:[0,1,0]")
        for k in range(4):
            e(f"v_pk_mul_f32 {vr(U + 2 * k, 2)}, {vr(U + 2 * k, 2)}, {vr(G + 2 * k, 2)}")
        o = 4 * sg
        for k in range(4):
            e(f"v_cvt_pk_bf16_f32 v{o + k}, v{U + 2 * k}, v{U + 2 * k + 1}")
        e(f"s_add_u32 s65, s{sOUT}, {(b * 2 + p) * 2 * 56 * 1024 + (sg & 1) * 256 + H_OFF}")
        if OPT.get("hw") and sg >= OPT["hw"]:
            e(f"s_waitcnt vmcnt({OPT['hw'] - 1})")
            e("s_nop 0")
        e(f"buffer_store_dwordx4 {vr(o, 4)}, v97, {srd(SRD_WS)}, s65 offen sc1")
    e(f"v_mov_b32 v43, v{TG16}")
    publish()


def glu_epilogue():
    e(f"v_lshlrev_b32 v44, 4, v{vLANE}")
    e("s_mov_b32 s66, 1.0")
    e("s_mov_b32 s67, 1.0")
    e("s_waitcnt lgkmcnt(0)")
    e(f"v_readfirstlane_b32 s{sTAG}, v43")
    for q in range(4):
        e(f"v_mul_f32 v{MR + 2 * q + 1}, {NLOG2E:#x}, v{MR + 2 * q + 1}")
    raw(".p2align 3")
    out = 0
    for q in range(4):
        b, p = q & 1, q >> 1
        mr = vr(MR + 2 * q, 2)
        for z in range(2):
            G = ACC(0, q) + 8 * z
            U = ACC(1, q) + 8 * z
            for k in range(4):
                e(f"v_pk_fma_f32 {vr(G + 2 * k, 2)}, {vr(CG + 8 * z + 2 * k, 2)}, {mr}, {vr(G + 2 * k, 2)} op_sel_hi:[1,0,1] neg_lo:[0,1,0] neg_hi:[0,1,0]")
            for k in range(4):
                e(f"v_pk_mul_f32 {vr(G + 2 * k, 2)}, {vr(G + 2 * k, 2)}, {mr} op_sel:[0,1] op_sel_hi:[1,1]")
            for k in range(8):
                e(f"v_exp_f32 v{G + k}, v{G + k}")
            for k in range(4):
                e(f"v_pk_add_f32 {vr(G + 2 * k, 2)}, {vr(G + 2 * k, 2)}, s[66:67]")
            for k in range(8):
                e(f"v_rcp_f32 v{G + k}, v{G + k}")
            for k in range(4):
                e(f"v_pk_fma_f32 {vr(U + 2 * k, 2)}, {vr(CU + 8 * z + 2 * k, 2)}, {mr}, {vr(U + 2 * k, 2)} op_sel_hi:[1,0,1] neg_lo:[0,1,0] neg_hi:[0,1,0]")
            for k in range(4):
                e(f"v_pk_mul_f32 {vr(U + 2 * k, 2)}, {vr(U + 2 * k, 2)}, {vr(G + 2 * k, 2)}")
            o = 64 + 4 * out
            out += 1
            for k in range(4):
                e(f"v_cvt_pk_bf16_f32 v{o + k}, v{U + 2 * k}, v{U + 2 * k + 1}")
            e(f"s_add_u32 s65, s{sOUT}, {((b * 2 + p) * 2 + z) * 56 * 1024 + H_OFF}")
            e(f"buffer_store_dwordx4 {vr(o, 4)}, v44, {srd(SRD_WS)}, s65 offen sc1")
    publish()


def publish():
    stamp(3)
    cm("publish: the last of the four waves whose stores have completed writes the workgroup's flag")
    e("v_mov_b32 v41, 1")
    e("v_mov_b32 v42, 0")
    e("s_mov_b64 exec, 1")
    e("s_waitcnt vmcnt(0)")
    e(f"ds_add_rtn_u32 v41, v{vA_TAG}, v41 offset:4")
    e("s_waitcnt lgkmcnt(0)")
    e("v_readfirstlane_b32 s64, v41")
    e("s_cmp_lg_u32 s64, 3")
    e("s_cbranch_scc1 HNOFLAG")
    e(f"buffer_store_dword v43, v42, {srd(SRD_WS)}, s{sFLG} offen sc1")
    lab("HNOFLAG")
    e("s_mov_b64 exec, -1")
    stamp(4)


def dft_prologue():
    e(f"v_and_b32 v2, 31, v{vLANE}")
    e("v_cvt_f32_u32 v3, v2")
    e(f"v_mul_f32 v3, {f2u(1.0 / 2048):#x}, v3")
    e(f"s_and_b32 s64, s{sWAVE}, 1")
    e(f"s_lshr_b32 s65, s{sWAVE}, 1")
    e("s_lshl_b32 s65, s65, 5")
    e("s_add_u32 s64, s64, s65")
    e(f"s_lshl_b32 s65, s{sI}, 1")
    e("s_add_u32 s64, s64, s65")
    e(f"v_lshrrev_b32 v4, 5, v{vLANE}")
    e("v_lshl_add_u32 v4, v4, 8, s64")
    e("v_cvt_f32_u32 v4, v4")
    e("v_mul_f32 v4, v3, v4")
    e("v_and_b32 v5, 1, v2")
    e("v_mul_u32_u24 v5, 0x8000, v5")
    e("v_lshl_or_b32 v5, v5, 16, v5")
    for jj in range(8):
        e(f"v_fmamk_f32 v{8 + jj}, v3, {f2u(64.0 * (8 * (jj >> 2) + (jj & 3))):#x}, v4")
    for jj in range(8):
        e(f"v_fract_f32 v{8 + jj}, v{8 + jj}")
    for jj in range(8):
        e(f"v_cos_f32 v{16 + jj}, v{8 + jj}")
        e(f"v_sin_f32 v{24 + jj}, v{8 + jj}")
    e("s_nop 0")
    for k in range(4):
        e(f"v_cvt_pk_bf16_f32 v{32 + k}, v{16 + 2 * k}, v{17 + 2 * k}")
        e(f"v_cvt_pk_bf16_f32 v{40 + k}, v{24 + 2 * k}, v{25 + 2 * k}")
    for k in range(4):
        e(f"v_xor_b32 v{36 + k}, v5, v{32 + k}")
        e(f"v_xor_b32 v{44 + k}, v5, v{40 + k}")
    e(f"s_lshl_b32 s64, s{sWAVE}, 12")
    e(f"s_add_u32 s64, s64, {MISC}")
    e(f"v_lshl_add_u32 v6, v{vLANE}, 4, s64")
    for k in range(4):
        e(f"ds_write_b128 v6, {vr(32 + 4 * k, 4)} offset:{1024 * k}")
    cm("column 0 carries the Nyquist bin: lanes 0 and 32 of wave 0 in column block 14 use (+1,-1,+1,...)")
    e(f"s_cmp_eq_u32 s{sJ}, 14")
    e("s_cselect_b32 s68, 1, 0")
    e(f"s_cmp_eq_u32 s{sWAVE}, 0")
    e("s_cselect_b32 s68, s68, 0")
    e("s_mov_b32 s69, s68")
    e(f"v_mov_b32 v{vPM}, 0xbf803f80")
    e(f"v_lshlrev_b32 v119, 4, v{vLANE}")
    e(f"v_add_u32 v119, {MISC}, v119")
    e("s_waitcnt lgkmcnt(0)")


def dft_epilogue():
    for a in range(4):
        e(f"ds_read_b128 {vr(N0 + 4 * a, 4)}, v{vD_R} offset:{512 + 32 * a}")
    e(f"v_mov_b32 v115, v{vD_R}")
    e("s_waitcnt lgkmcnt(0)")
    e(f"v_readfirstlane_b32 s{sTAG}, v{vD_TAG}")
    e("v_cndmask_b32 v118, v118, 0, s[68:69]")

    def TS(q):
        return (120 if q & 1 else 96), (104 if q == 0 else TW(q - 1, 0, 0))

    def valu(q):
        r_ = []
        for mat, T, cs in ((0, TS(q)[0], 118), (1, TS(q)[1], 119)):
            A = ACC(mat, q)
            if q == 0:
                for r in range(0, 16, 2):
                    r_.append(f"v_pk_mul_f32 {vr(A + r, 2)}, {vr(A + r, 2)}, {vr(R0 + r, 2)}")
            else:
                for r in range(16):
                    r_.append(f"v_mul_f32 v{A + r}, v{A + r}, v{R0 + r}")
            if mat and q < 3:
                r_[-1] = [r_[-1]] + [f"ds_read_b128 {vr(R0 + 4 * a, 4)}, v115 offset:{128 * (q + 1) + 32 * a}" for a in range(4)]
            if OPT.get("nocs"):
                pass
            elif q == 0:
                sel = "op_sel:[0,1,0] op_sel_hi:[1,1,1]" if mat else "op_sel_hi:[1,0,1]"
                for r in range(0, 16, 2):
                    r_.append(f"v_pk_fma_f32 {vr(A + r, 2)}, {vr(N0 + r, 2)}, v[118:119], {vr(A + r, 2)} {sel}")
            else:
                for r in range(16):
                    r_.append(f"v_fmac_f32 v{A + r}, v{N0 + r}, v{cs}")
            if mat and q < 3 and not OPT.get("nocs"):
                r_[-1] = [r_[-1]] + [f"ds_read_b128 {vr(N0 + 4 * a, 4)}, v115 offset:{512 + 128 * (q + 1) + 32 * a}" for a in range(4)]
            for k in range(8):
                r_.append(f"v_cvt_pk_bf16_f32 v{T + k}, v{A + 2 * k}, v{A + 2 * k + 1}")
        return r_

    def mfmas(q):
        ta, tb = TS(q)
        zr, zi = ACC(0, q), ACC(1, q)
        seq = [(zr, 1, 0, tb), (zi, 0, 0, tb), (zr, 1, 1, tb + 4), (zi, 0, 1, tb + 4),
               (zr, 0, 0, ta), (zr, 0, 1, ta + 4), (zi, 1, 0, ta), (zi, 1, 1, ta + 4)]
        return [f"v_mfma_f32_32x32x16_bf16 {vr(d, 16)}, {vr(TW(q, cs, z), 4)}, {vr(b, 4)}, {'0' if k < 2 else vr(d, 16)}"
                for k, (d, cs, z, b) in enumerate(seq)]

    for q in range(5):
        v_ = valu(q) if q < 4 else []
        m_ = mfmas(q - 1) if q else []
        if 0 < q < 4:
            e("s_waitcnt lgkmcnt(0)")
        if q:
            e("s_nop 1")
        per = len(v_) // 8
        for k in range(8):
            if m_:
                e(m_[k])
                if k in (3, 4):
                    for x in range(4):
                        rg = TW(q - 1, 1, k - 3) + x
                        e(f"v_xor_b32 v{rg}, 0x80008000, v{rg}")
            if OPT.get("nocs") and q:
                cut = [0, 6, 12, 18, 24, 30, 35, 40, 48]
                es(v_[cut[k]:cut[k + 1]])
            else:
                es(v_[k * per:(k + 1) * per])
    e(f"v_and_b32 v112, 31, v{vLANE}")
    e(f"v_lshrrev_b32 v114, 5, v{vLANE}")
    e("v_lshlrev_b32 v112, 4, v112")
    e("v_lshl_add_u32 v125, v114, 18, v112")
    e("s_nop 7")
    for r in range(16):
        for q in range(4):
            e(f"v_cvt_pk_bf16_f32 v{4 * r + q}, v{ACC(0, q) + r}, v{ACC(1, q) + r}")
        if r < OPT["zs0"] or not OPT["zdef"]:
            e(f"s_add_u32 s65, s{sOUT}, {(8 * (r >> 2) + (r & 3)) * 65536}")
            if OPT.get("zw") and r >= OPT["zw"]:
                e(f"s_waitcnt vmcnt({OPT['zw'] - 1})")
            e(f"buffer_store_dwordx4 {vr(4 * r, 4)}, v125, {srd(SRD_WS)}, s65 offen sc1")
    stamp(3)
    e(f"v_mov_b32 v64, {CNTL}")
    e("v_mov_b32 v65, 1")
    e("s_mov_b64 exec, 1")
    e("ds_add_u32 v64, v65")
    e("s_mov_b64 exec, -1")
    stamp(4)
    if OPT["zdef"]:
        phase2(True)
    else:
        e("s_branch PHASE2G")


def phase2(dft):
    OWN, OTH, Y, EF, HR, ET = 128, 144, 160, 32, 176, 248
    XR, vR = 80, 88
    W2 = [[96, 100], [104, 108], [240, 244]]
    WD = [112, 113]
    vH, vXO, vZA = 114, 115, 116
    vEA, vEB, vES = 122, 123, 124
    ZF = 0
    assert D <= 16
    vm, lq = Q(), Q()
    tg = "D" if dft else "G"
    lab("PHASE2" + tg)
    stamp(5)
    e(f"v_and_b32 v89, 31, v{vLANE}")
    e(f"v_lshrrev_b32 v90, 5, v{vLANE}")
    e(f"v_lshlrev_b32 v{vXO}, 16, v89")
    e(f"v_lshl_add_u32 v{vXO}, v90, 5, v{vXO}")
    def xloads():
        vm.add("x0", f"buffer_load_dwordx4 {vr(XR, 4)}, v{vXO}, {srd(SRD_X)}, s{sXO} offen")
        vm.add("x1", f"buffer_load_dwordx4 {vr(XR + 4, 4)}, v{vXO}, {srd(SRD_X)}, s{sXO} offen offset:16")

    if not OPT["xlate"]:
        xloads()
    e(f"v_bfe_u32 v{ET}, v{vLANE}, 2, 2")
    e(f"v_lshl_add_u32 v92, v90, 2, v{ET}")
    e(f"s_lshl_b32 s68, s{sKH}, {10 if OPT['m16'] else 11}")
    e("v_lshl_add_u32 v92, v92, 7, s68")
    e(f"v_and_b32 v93, 1, v{vLANE}")
    e("v_lshlrev_b32 v93, 2, v93")
    e(f"v_bfe_u32 v{ET + 1}, v{vLANE}, 4, 1")
    e(f"v_lshl_add_u32 v93, v{ET + 1}, 1, v93")
    e(f"v_bfe_u32 v{ET + 1}, v{vLANE}, 1, 1")
    e(f"v_add_u32 v93, v93, v{ET + 1}")
    e("v_lshl_add_u32 v92, v93, 3, v92")
    e(f"v_lshrrev_b32 v{ET}, 1, v{ET}")
    e(f"v_xor_b32 v{ET}, s{sKH}, v{ET}")
    e(f"v_lshl_add_u32 v{WD[0]}, v{ET}, 6, v92")
    e(f"v_xor_b32 v{WD[1]}, 64, v{WD[0]}")
    e(f"v_lshlrev_b32 v{vH}, 4, v{vLANE}")
    e("v_lshlrev_b32 v93, 4, v89")
    bar("BW")
    stamp(6)
    nh = [0]

    def hmore(lim, cnt):
        while cnt and nh[0] < min(56, lim):
            v = nh[0]
            if v and v & 7 == 0:
                e(f"v_add_u32 v{vH}, 8192, v{vH}")
            vm.add(("h", v), f"buffer_load_dwordx4 {vr(HR + 4 * (v % D), 4)}, v{vH}, {srd(SRD_WS)}, s{48 + (v & 7)} offen sc1")
            nh[0] += 1
            cnt -= 1

    base = [0]

    def wreads(v):
        a = wslot(v) * 4096
        if (a & ~0xFFFF) != base[0]:
            d = (a & ~0xFFFF) - base[0]
            base[0] = a & ~0xFFFF
            es([f"v_add_u32 v{WD[c]}, {d & 0xffffffff:#x}, v{WD[c]}" for c in range(2)])
        for c in range(2):
            for k in range(2):
                lq.add(("w", v, c, k), f"ds_read_b64_tr_b16 {vr(W2[v % 3][c] + 2 * k, 2)}, v{WD[c]} offset:{(a & 0xFFFF) + (2048 if OPT['m16'] else 1024) * k}")

    for v in range(OPT["D0"]):
        hmore(56, 1)
        if v == 1:
            wreads(0)
            wreads(1)
    vm.add("r", f"buffer_load_dword v{vR}, v93, {srd(SRD_WS)}, s{sRO} offen offset:4 sc1")

    fill = [[f"s_cmp_ge_u32 s{sCB}, 4", "s_cselect_b64 s[70:71], -1, 0"],
            f"s_lshl_b32 s68, s{sKH}, 9", f"s_add_u32 s68, s68, {ZL}", f"v_lshl_add_u32 v{vZA}, v89, 4, s68",
            f"v_lshl_add_u32 v{vZA}, v90, 10, v{vZA}",
            f"v_lshl_add_u32 v91, v89, 1, s{sP}", f"v_sub_u32 v92, s{sC0}, v91", "v_cndmask_b32 v91, v91, v92, s[70:71]",
            f"v_and_b32 v{vES}, 1, v91", f"v_mul_u32_u24 v{vES}, 0x8000, v{vES}", f"v_lshl_or_b32 v{vES}, v{vES}, 16, v{vES}",
            "v_cvt_f32_u32 v91, v91", f"v_mul_f32 v{vEA}, {f2u(1.0 / 64):#x}, v91",
            "v_lshlrev_b32 v92, 1, v90", "v_cvt_f32_u32 v92, v92", f"v_mul_f32 v{vEB}, v{vEA}, v92"]
    for sg in range(8):
        for b in range(2):
            fill.append(f"v_fmamk_f32 v{ET + b}, v{vEA}, {f2u(float(4 * sg + b)):#x}, v{vEB}")
        for b in range(2):
            fill.append(f"v_fract_f32 v{ET + b}, v{ET + b}")
        for b in range(2):
            fill.append(f"v_cos_f32 v{ET + 2 + b}, v{ET + b}")
            fill.append(f"v_sin_f32 v{ET + 4 + b}, v{ET + b}")
        fill.append([f"v_cvt_pk_bf16_f32 v{EF + 4 * sg}, v{ET + 2}, v{ET + 4}",
                     f"v_cvt_pk_bf16_f32 v{EF + 4 * sg + 1}, v{ET + 3}, v{ET + 5}"])
        for b in range(2):
            fill.append(f"v_xor_b32 v{EF + 4 * sg + 2 + b}, v{vES}, v{EF + 4 * sg + b}")
    P2BAR = {55 - NRES: "BP1", NRES - 2: "BP2", OPT["vz0"]: "BZ0"}
    assert NRES - 2 < OPT["vz0"] < 55
    zs = list(range(OPT["zs0"], 16)) if dft else []
    shared = not OPT["zdef"]
    zpub = not (dft or shared)

    def zpublish():
        cm("spectral workgroups: this wave's Z stores have completed; the last wave publishes")
        cm("(that store is not counted in the waits below: they only get stricter)")
        if shared:
            e(f"s_cmp_eq_u32 s{sDFT}, 0")
            e("s_cbranch_scc1 NOZF")
        e(f"v_mov_b32 v94, {TAGL}")
        e("v_mov_b32 v95, 1")
        e("s_mov_b64 exec, 1")
        e("ds_add_rtn_u32 v95, v94, v95 offset:8")
        e(f"v_mov_b32 v126, s{sTAG}")
        e("v_mov_b32 v127, 0")
        e("s_waitcnt lgkmcnt(0)")
        e("v_readfirstlane_b32 s64, v95")
        e("s_cmp_lg_u32 s64, 3")
        e("s_cbranch_scc1 NOZF1")
        e(f"buffer_store_dword v126, v127, {srd(SRD_WS)}, s{sFLG} offen sc1")
        lab("NOZF1")
        e("s_mov_b64 exec, -1")
        lab("NOZF")

    for v in range(56):
        e(f"s_waitcnt vmcnt({vm.younger(('h', v))}) lgkmcnt({lq.younger(('w', v, 1, 1))})")
        h = vr(HR + 4 * (v % D), 4)
        st = v % 3
        e(f"v_mfma_f32_32x32x16_bf16 {vr(OWN, 16)}, {vr(W2[st][0], 4)}, {h}, {'0' if v == 0 else vr(OWN, 16)}")
        if v in P2BAR:
            bar(P2BAR[v])
        if v + 2 < 56:
            wreads(v + 2)
        e(f"v_mfma_f32_32x32x16_bf16 {vr(OTH, 16)}, {vr(W2[st][1], 4)}, {h}, {'0' if v == 0 else vr(OTH, 16)}")
        if PROF and v % 4 == 0:
            e("s_memtime s[78:79]")
        if PROF and v % 4 == 2:
            e(f"v_writelane_b32 v{vLOOPST}, s78, {16 + v // 4}")
        if not zpub and not zs and v >= 1 and (("zs", 15) not in vm.l or vm.l.index(("h", v)) > vm.l.index(("zs", 15))):
            assert v < OPT["vz0"]
            zpublish()
            zpub = True
        if zs and v % OPT["zdef"] == 0:
            r = zs.pop(0)
            e(f"s_add_u32 s65, s{sOUT}, {(8 * (r >> 2) + (r & 3)) * 65536}")
            vm.add(("zs", r), f"buffer_store_dwordx4 {vr(4 * r, 4)}, v125, {srd(SRD_WS)}, s65 offen sc1")
        hmore(v + 1 + D, 2)
        if (nh[0] == 56 or (OPT["xlate"] == 2 and v == OPT.get("xv", 8))) and "x0" not in vm.l:
            xloads()
        if len(fill) > 88 or not zs:
            n = 4 if v < 32 else 6
            es(fill[:n])
            del fill[:n]
    assert not fill and zpub
    stamp(7)

    def ymf(sg):
        e(f"v_mfma_f32_32x32x16_bf16 {vr(Y, 16)}, {vr(ZF + 4 * sg, 4)}, {vr(EF + 4 * sg, 4)}, {'0' if sg == 0 else vr(Y, 16)}")

    cm("cross-wave reduction over the two K halves")
    XU, PT, TT = 176, 192, 208
    e(f"s_lshl_b32 s68, s{sWAVE}, 12")
    e(f"s_add_u32 s68, s68, {RED}")
    e(f"v_lshl_add_u32 v91, v{vLANE}, 4, s68")
    e("v_xor_b32 v92, 8192, v91")
    e(f"v_mul_f32 v{vR + 1}, {NLOG2E:#x}, v{vR}")
    e("v_mov_b32 v93, 0xffff0000")
    e("s_waitcnt vmcnt(0)")
    for k in range(3):
        e(f"v_lshlrev_b32 v{XU + 2 * k}, 16, v{XR + k}")
        e(f"v_and_b32 v{XU + 2 * k + 1}, v93, v{XR + k}")
    for a in range(4):
        e(f"ds_write_b128 v91, {vr(OTH + 4 * a, 4)} offset:{1024 * a}")
    for k in range(3, 8):
        e(f"v_lshlrev_b32 v{XU + 2 * k}, 16, v{XR + k}")
        e(f"v_and_b32 v{XU + 2 * k + 1}, v93, v{XR + k}")
    e("s_waitcnt lgkmcnt(0)")
    bar("BR")
    for a in range(4):
        e(f"ds_read_b128 {vr(PT + 4 * a, 4)}, v92 offset:{1024 * a}")
    for sg in range(8):
        e(f"ds_read_b128 {vr(ZF + 4 * sg, 4)}, v{vZA} offset:{2048 * sg}")
    e("s_waitcnt lgkmcnt(8)")
    rr = vr(vR, 2)
    raw(".p2align 3")
    for k in range(8):
        e(f"v_pk_add_f32 {vr(OWN + 2 * k, 2)}, {vr(OWN + 2 * k, 2)}, {vr(PT + 2 * k, 2)}")
    for k in range(8):
        e(f"v_pk_mul_f32 {vr(TT + 2 * k, 2)}, {vr(OWN + 2 * k, 2)}, {rr} op_sel:[0,1] op_sel_hi:[1,1]")
    for k in range(8):
        e(f"v_pk_mul_f32 {vr(OWN + 2 * k, 2)}, {vr(OWN + 2 * k, 2)}, {rr} op_sel_hi:[1,0]")
    e("s_waitcnt lgkmcnt(0)")
    for k in range(16):
        if k % 3 == 0:
            ymf(k // 3)
        e(f"v_exp_f32 v{TT + k}, v{TT + k}")
    for k in range(16):
        if k in (2, 8):
            ymf(6 + (k >> 3))
        e(f"v_add_f32 v{TT + k}, 1.0, v{TT + k}")
    for k in range(16):
        e(f"v_rcp_f32 v{TT + k}, v{TT + k}")
    raw(".p2align 3")
    for k in range(8):
        e(f"v_pk_mul_f32 {vr(OWN + 2 * k, 2)}, {vr(OWN + 2 * k, 2)}, {vr(TT + 2 * k, 2)}")
    for k in range(8):
        e(f"v_pk_fma_f32 {vr(OWN + 2 * k, 2)}, {vr(OWN + 2 * k, 2)}, {vr(Y + 2 * k, 2)}, {vr(XU + 2 * k, 2)}")
    for k in range(8):
        e(f"v_cvt_pk_bf16_f32 v{TT + k}, v{OWN + 2 * k}, v{OWN + 2 * k + 1}")
    of = {0: "", 1: " nt", 2: " sc1", 3: " sc0"}[OPT.get("ost", 0)]
    if OPT.get("oswap"):
        cm("lanes l and l+32 hold the two halves of a 64-byte row piece: trade registers so that each store writes whole pieces")
        e("s_nop 1")
        for k in range(4):
            e(f"v_permlane32_swap_b32 v{TT + 4 + k}, v{TT + k}") if False else None
        for k in range(4):
            e(f"v_permlane32_swap_b32 v{TT + k}, v{TT + 4 + k}")
    e(f"buffer_store_dwordx4 {vr(TT, 4)}, v{vXO}, {srd(SRD_OUT)}, s{sXO} offen{of}")
    e(f"buffer_store_dwordx4 {vr(TT + 4, 4)}, v{vXO}, {srd(SRD_OUT)}, s{sXO} offen offset:16{of}")
    stamp_flush(8, 64, True)
    if OPT.get("wbl"):
        e("s_waitcnt vmcnt(0)")
        e("buffer_wbl2 sc1")
        e("s_waitcnt vmcnt(0)")
    if OPT.get("rabs"):
        lab("DLY" + tg)
        e("s_memrealtime s[82:83]")
        e("s_waitcnt lgkmcnt(0)")
        e("s_sub_u32 s82, s82, s98")
        e(f"s_cmp_lt_u32 s82, {OPT['rabs']}")
        e("s_cbranch_scc1 DLY" + tg)
    e("s_endpgm")


def cwave():
    section("C0")
    lab("CWAVE")
    cm("================ C waves: matrix work ================")
    e(f"s_setprio {OPT.get('cp', 2)}")
    ids1()
    e(f"v_mov_b32 v{vLANE}, v0")
    for k in range(4):
        e(f"v_mov_b32 v{8 + k}, 0")
    e("v_and_b32 v2, 31, v0")
    e("v_lshrrev_b32 v3, 5, v0")
    for k in range(8):
        e(f"v_mfma_f32_32x32x16_bf16 {vr(128 + 16 * k, 16)}, v[8:11], v[8:11], 0")
    e("v_bfe_u32 v4, v0, 1, 3")
    e("v_lshlrev_b32 v5, 7, v2")
    e(f"v_add_u32 v5, {SLOT + 32768}, v5")
    for u in range(4):
        e(f"v_add_u32 v6, {2 * u}, v3")
        e("v_xor_b32 v6, v6, v4")
        e(f"v_lshl_add_u32 v{XA[u]}, v6, 4, v5")
    e("v_bfe_u32 v4, v0, 2, 2")
    e(f"v_lshlrev_b32 v{WA}, 12, v3")
    e(f"v_lshl_add_u32 v{WA}, v4, 8, v{WA}")
    e(f"v_xor_b32 v4, s{sWAVE}, v4")
    e(f"v_lshl_add_u32 v{WA}, v4, 6, v{WA}")
    e("v_bfe_u32 v4, v0, 4, 1")
    if OPT["m16"]:
        e("v_xor_b32 v4, v4, v3")
    e(f"v_lshl_add_u32 v{WA}, v4, 5, v{WA}")
    e("v_and_b32 v4, 3, v0")
    e(f"v_lshl_add_u32 v{WA}, v4, 3, v{WA}")
    e(f"v_add_u32 v{WA}, {SLOT}, v{WA}")
    e(f"s_lshl_b32 s64, s{sWAVE}, 7")
    e(f"s_add_u32 s64, s64, {CSL}")
    e(f"v_lshl_add_u32 v{vA_CS}, v3, 4, s64")
    e(f"v_lshlrev_b32 v{vA_MR}, 3, v2")
    e(f"v_add_u32 v{vA_MR}, {MRP}, v{vA_MR}")
    if not OPT["m16"]:
        e(f"v_mov_b32 v{vA_TAG}, {TAGL}")
    e(f"v_lshl_add_u32 v{vD_CS}, v2, 2, s64")
    e(f"v_lshlrev_b32 v{vD_R}, 4, v3")
    e(f"v_add_u32 v{vD_R}, {RL}, v{vD_R}")
    e(f"v_mov_b32 v{vD_TAG}, {TAGL}")
    e("s_waitcnt lgkmcnt(0)")
    ids2()
    e(f"s_and_b32 s{sP}, s{sWAVE}, 1")
    e(f"s_lshr_b32 s{sKH}, s{sWAVE}, 1")
    e(f"s_lshl_b32 s68, s{sP}, 5")
    e(f"s_add_u32 s68, s68, s{sT1}")
    e(f"s_lshl_b32 s{sXO}, s68, 10")
    e(f"s_lshl_b32 s68, s{sCB}, 7")
    e(f"s_add_u32 s{sXO}, s{sXO}, s68")
    e(f"s_lshl_b32 s68, s{sKH}, 6")
    e(f"s_add_u32 s{sXO}, s{sXO}, s68")
    e(f"s_cmp_eq_u32 s{sT1}, 0")
    e(f"s_cselect_b32 s{sC0}, 64, 63")
    e(f"s_lshr_b32 s68, s{sT1}, 1")
    e("s_lshl_b32 s68, s68, 11")
    e(f"s_and_b32 s70, s{sT1}, 1")
    e(f"s_lshl_b32 s71, s{sP}, 1")
    e("s_add_u32 s70, s70, s71")
    e("s_lshl_b32 s70, s70, 9")
    e("s_add_u32 s68, s68, s70")
    e(f"s_add_u32 s{sRO}, s68, {ST_OFF}")
    e(f"s_lshl_b32 s68, s{sT1}, 2")
    e("s_add_u32 s68, s68, s71")
    e(f"s_add_u32 s68, s68, s{sKH}")
    e(f"s_mul_i32 s68, s68, {56 * 1024}")
    rot_offsets(10, "s68")
    if OPT["spoll"]:
        e(f"s_lshl_b32 s64, s{sI}, 7")
        e(f"s_lshl_b32 s65, s{sJ}, 2")
        e("s_add_u32 s64, s64, s65")
        e(f"s_add_u32 s{sFLG}, s64, {FLH}")
    else:
        e(f"s_lshl_b32 s64, s{sI}, 4")
        e(f"s_add_u32 s64, s64, s{sJ}")
        e("s_lshl_b32 s64, s64, 7")
        e(f"s_add_u32 s{sFLG}, s64, {FLH}")
    e(f"s_cmp_eq_u32 s{sDFT}, 1")
    e("s_cbranch_scc1 CDFT")
    e(f"s_lshl_b32 s64, s{sJ}, 2")
    e(f"s_add_u32 s64, s64, s{sWAVE}")
    e("s_lshl_b32 s64, s64, 10")
    e(f"s_mul_i32 s65, s{sI}, {2 * 4 * 56 * 1024}")
    e(f"s_add_u32 s{sOUT}, s64, s65")
    if OPT["m16"]:
        e("v_and_b32 v2, 15, v0")
        e("v_lshrrev_b32 v3, 4, v0")
        e("v_lshrrev_b32 v4, 1, v2")
        e("v_xor_b32 v4, v4, v3")
        e("v_lshlrev_b32 v5, 7, v2")
        e(f"v_lshl_add_u32 v{XA16[0]}, v4, 4, v5")
        e(f"v_add_u32 v{XA16[0]}, {SLOT + 32768}, v{XA16[0]}")
        e(f"v_xor_b32 v{XA16[1]}, 64, v{XA16[0]}")
        e("v_bfe_u32 v4, v0, 2, 2")
        e("v_lshlrev_b32 v5, 12, v3")
        e("v_lshl_add_u32 v5, v4, 8, v5")
        e(f"v_xor_b32 v4, s{sWAVE}, v4")
        e("v_lshl_add_u32 v5, v4, 6, v5")
        e("v_and_b32 v4, 1, v3")
        e("v_lshl_add_u32 v5, v4, 5, v5")
        e("v_and_b32 v4, 3, v0")
        e("v_lshl_add_u32 v5, v4, 3, v5")
        e(f"v_add_u32 v{WA16[0]}, {SLOT}, v5")
        e(f"v_xor_b32 v{WA16[1]}, 32, v{WA16[0]}")
        e(f"s_lshl_b32 s64, s{sWAVE}, 7")
        e(f"s_add_u32 s64, s64, {CSL}")
        e(f"v_lshl_add_u32 v{vB_CS}, v3, 4, s64")
        e(f"v_lshlrev_b32 v{vB_MR}, 3, v2")
        e(f"v_add_u32 v{vB_MR}, {MRP}, v{vB_MR}")
        e(f"v_mov_b32 v{vA_TAG}, {TAGL}")
    e("s_branch CGLU")
    section("CG")
    lab("CGLU")
    stamp(1)
    bar("B0")
    if OPT["m16"]:
        mainloop16()
        stamp(2)
        glu_epilogue16()
    else:
        mainloop(False)
        stamp(2)
        glu_epilogue()
    phase2(False)
    section("CD")
    lab("CDFT")
    e(f"s_lshl_b32 s64, s{sI}, 12")
    e(f"s_and_b32 s65, s{sJ}, 1")
    e("s_lshl_b32 s66, s65, 11")
    e("s_add_u32 s64, s64, s66")
    e(f"s_lshl_b32 s66, s{sWAVE}, 9")
    e("s_add_u32 s64, s64, s66")
    e(f"s_add_u32 s{sOUT}, s64, {Z_OFF}")
    if OPT["spoll"]:
        e(f"s_lshl_b32 s64, s{sI}, 1")
        e("s_add_u32 s64, s64, s65")
        e("s_lshl_b32 s64, s64, 2")
        e(f"s_add_u32 s{sFLG}, s64, {FLZ}")
    dft_prologue()
    stamp(1)
    bar("B0")
    for k in range(16):
        e(f"ds_read_b128 {vr(4 * k, 4)}, v119 offset:{1024 * k}")
    mainloop(True)
    stamp(2)
    dft_epilogue()


hdr = open("cdna_kernels/" + NAME + ".s.ref").read().split("\n")
head = [l for l in hdr if l.startswith(";") and "@launch" not in l and "Override launch" not in l and "grid=ceil" not in l]
out = head + ["; @launch grid=(256,1,1) block=(512,1,1) lds=163840",
              '.amdgcn_target "amdgcn-amd-amdhsa--gfx950"', ".text", f".globl {K}"]
if OPT["al"]:
    out.append(".p2align 12")
out += [".p2align 8", f".type {K},@function", f"{K}:"]
entry()
l2wave()
l3wave()
l01wave()
cwave()
for name, align in (("A", 0), ("A2", 0), ("C0", 0), ("L2", 0), ("L3", 0), ("CG", 12 if OPT["al"] else 0), ("CD", 12 if OPT["al"] else 0)):
    if align:
        out.append(f".p2align {align}")
    out += SEC[name]
out += ["END:", "    s_endpgm"]
out += ['.section .rodata,"a"', ".p2align 6", f".amdhsa_kernel {K}", "  .amdhsa_next_free_vgpr 256", "  .amdhsa_next_free_sgpr 102",
        "  .amdhsa_accum_offset 256", "  .amdhsa_group_segment_fixed_size 0", "  .amdhsa_kernarg_size 96",
        "  .amdhsa_user_sgpr_count 2", "  .amdhsa_user_sgpr_kernarg_segment_ptr 1", "  .amdhsa_system_sgpr_workgroup_id_x 1",
        ".end_amdhsa_kernel", ""]
open(sys.argv[1], "w").write("\n".join(out))
```

```python
import struct
import sys

NAME = "recurrent_scan__spectral_fnet__glu_gated_glu__prompt"
OPT = dict(m16=1, nocs=1, prof=0, map48=0, D=12, D0=6, pre=3, preb=2, th=4, trk=22, u1=2, u2=8, pa=47, bs=0, sord=0, slp=6, spin=200000,
           nx=4, sg0=99, sgn=3, dw=0, dw0=1, vz0=44, zdef=0, zs0=0, spoll=0, xlate=2, l0poll=1, lprio=3, xa0=1, na=3, xb0=8, nb=7, xe=16, xt=4, chk=14, ct=1, al=1)
for a in sys.argv[2:]:
    k, v = a.split("=")
    OPT[k] = int(v)
LITE = OPT["prof"] == 3
PROF = 0 if LITE else OPT["prof"]
K = NAME + "_kernel"
D = OPT["D"]

H_OFF, Z_OFF, ST_OFF, CS_OFF = 0, 0x800000, 0xA00000, 0xA10000
FLH, FLZ, PROF_OFF, WS_SIZE = 0xA50000, 0xA58000, 0xA60000, 0xB00000
SLOT = 49152
MISC = 147456
CSL, MRP, RL, NMRL, TAGL, CNTL = MISC, MISC + 1024, MISC + 2048, MISC + 2560, MISC + 3072, MISC + 3076
RED = 20 * 4096
ZL = 24 * 4096
NRES = 39
NST = 56 - NRES
NLOG2E = 0xBFB8AA3B
OOB = 0x40000000


def wslot(v):
    return v if v < 36 else v + 1 if v < NRES else v - NRES


def f2u(x):
    return struct.unpack("<I", struct.pack("<f", x))[0]


SEC = {}
CUR = [None, False]


def section(n):
    CUR[0] = SEC.setdefault(n, [])


def e(s):
    CUR[0].append("    " + s)


def es(lst):
    for x in lst:
        for y in (x if isinstance(x, list) else [x]):
            e(y)


def lab(s):
    CUR[0].append(s + ":")


def raw(s):
    CUR[0].append(s)


def cm(s):
    CUR[0].append("    ; " + s)


def vr(a, n):
    return f"v[{a}:{a + n - 1}]"


def srd(n):
    return f"s[{n}:{n + 3}]"


class Q:
    def __init__(self):
        self.l = []

    def add(self, tag, txt=None):
        self.l.append(tag)
        if txt:
            e(txt)

    def younger(self, tag):
        return len(self.l) - 1 - self.l.index(tag)


SRD_X, SRD_W0, SRD_W1, SRD_WD, SRD_WS, SRD_OUT, SRD_DBG, SRD_WM = 4, 8, 12, 16, 20, 24, 28, 32
sWAVE, sI, sJ, sT1, sCB, sRS, sCOL, sDFT, sTAG, sIDX = 36, 37, 38, 39, 40, 41, 42, 43, 44, 45
sSTAMP = 80
vLOOPST, vLST, vLANE = 121, 118, 117
uid = [0]
QUIET = [True]


ARR = OPT.get("arr")


def stamp(i):
    if PROF and not (ARR is not None and i and CUR[0] in (SEC.get("L2"), SEC.get("L3"))):
        e(f"{'s_memrealtime' if PROF == 2 else 's_memtime'} s[{sSTAMP + 2 * i}:{sSTAMP + 2 * i + 1}]")


def stamp_flush(n, vt, cw):
    if not (PROF or (LITE and cw)):
        return
    e("s_waitcnt lgkmcnt(0)")
    e("s_lshl_b32 s78, s2, 3")
    e(f"s_add_u32 s78, s78, s{sWAVE}")
    e("s_lshl_b32 s78, s78, 8")
    e(f"s_add_u32 s78, s78, {PROF_OFF}")
    e(f"v_mov_b32 v{vt + 8}, 0")
    if PROF:
        for i in range(8):
            e(f"v_mov_b32 v{vt + i}, s{sSTAMP + 2 * i}" if i < n else f"v_mov_b32 v{vt + i}, 0")
        e(f"buffer_store_dwordx4 {vr(vt, 4)}, v{vt + 8}, {srd(SRD_WS)}, s78 offen")
        e(f"buffer_store_dwordx4 {vr(vt + 4, 4)}, v{vt + 8}, {srd(SRD_WS)}, s78 offen offset:16")
        if cw:
            e(f"v_lshlrev_b32 v{vt + 9}, 2, v{vLANE}")
            e(f"v_min_u32 v{vt + 9}, 124, v{vt + 9}")
            e(f"buffer_store_dword v{vLOOPST}, v{vt + 9}, {srd(SRD_WS)}, s78 offen offset:64")
    e("s_memrealtime s[76:77]")
    e("s_waitcnt lgkmcnt(0)")
    e(f"v_mov_b32 v{vt + 10}, s98")
    e(f"v_mov_b32 v{vt + 11}, s76")
    e(f"buffer_store_dwordx2 {vr(vt + 10, 2)}, v{vt + 8}, {srd(SRD_WS)}, s78 offen offset:32")


def bar(name=""):
    if PROF and ARR is not None and CUR[0] in (SEC.get("L2"), SEC.get("L3")) and name[1:].isdigit() and ARR <= int(name[1:]) < ARR + 6:
        i = int(name[1:]) - ARR + 1
        e(f"s_memtime s[{sSTAMP + 2 * i}:{sSTAMP + 2 * i + 1}]")
    e("s_barrier" + (f"  ; {name}" if name else ""))


def poll_issue(vdst, vaddr, ssoff, srdn):
    e(f"buffer_load_dword v{vdst}, v{vaddr}, {srd(srdn)}, {ssoff} offen sc1")


def poll_wait(vdst, vaddr, ssoff, srdn, cond_tag=True, first_wait=0):
    uid[0] += 1
    k = uid[0]
    e(f"s_mov_b32 s75, {OPT['spin']}")
    e(f"s_waitcnt vmcnt({first_wait})")
    lab(f"POLL{k}")
    e(f"v_cmp_ne_u32 vcc, s{sTAG}, v{vdst}" if cond_tag else f"v_cmp_eq_u32 vcc, 0, v{vdst}")
    e("s_nop 1")
    e("s_cmp_eq_u64 vcc, 0")
    e(f"s_cbranch_scc1 POLLD{k}")
    if OPT["slp"]:
        e(f"s_sleep {OPT['slp']}")
    poll_issue(vdst, vaddr, ssoff, srdn)
    e("s_sub_u32 s75, s75, 1")
    e("s_cmp_lg_u32 s75, 0")
    e("s_waitcnt vmcnt(0)")
    e(f"s_cbranch_scc1 POLL{k}")
    lab(f"POLLD{k}")


def spoll(ssoff, npairs, nloads=1):
    uid[0] += 1
    k = uid[0]
    e(f"s_mov_b32 s75, {OPT['spin']}")
    e(f"s_mov_b32 s46, s{sTAG}")
    e(f"s_mov_b32 s47, s{sTAG}")
    lab(f"SP{k}")
    for l in range(nloads):
        e(f"s_buffer_load_dwordx16 s[48:63], {srd(SRD_WS)}, {ssoff} offset:{64 * l} glc")
        e("s_waitcnt lgkmcnt(0)")
        for p in range(npairs):
            e(f"s_xor_b64 s[{48 + 2 * p}:{49 + 2 * p}], s[{48 + 2 * p}:{49 + 2 * p}], s[46:47]")
        for p in range(npairs):
            if l == 0 and p == 0:
                e("s_mov_b64 s[76:77], s[48:49]")
            else:
                e(f"s_or_b64 s[76:77], s[76:77], s[{48 + 2 * p}:{49 + 2 * p}]")
    e(f"s_cbranch_scc0 SPD{k}")
    if OPT["slp"]:
        e(f"s_sleep {OPT['slp']}")
    e("s_sub_u32 s75, s75, 1")
    e("s_cmp_lg_u32 s75, 0")
    e(f"s_cbranch_scc1 SP{k}")
    lab(f"SPD{k}")


def wait_c_done():
    uid[0] += 1
    k = uid[0]
    e(f"v_mov_b32 v7, {TAGL}")
    e(f"s_mov_b32 s75, {OPT['spin']}")
    lab(f"CW{k}")
    e("ds_read_b64 v[14:15], v7")
    e("s_waitcnt lgkmcnt(0)")
    e("v_readfirstlane_b32 s76, v15")
    e(f"v_readfirstlane_b32 s{sTAG}, v14")
    e("s_sub_u32 s75, s75, 1")
    e("s_cmp_eq_u32 s75, 0")
    e(f"s_cbranch_scc1 CWD{k}")
    e("s_sleep 1")
    e("s_cmp_lt_u32 s76, 4")
    e(f"s_cbranch_scc1 CW{k}")
    lab(f"CWD{k}")


def ids1():
    if OPT["map48"]:
        e("s_and_b32 s64, s2, 3")
        e("s_lshl_b32 s64, s64, 2")
        e(f"s_and_b32 s65, s{sIDX}, 3")
        e(f"s_add_u32 s{sI}, s64, s65")
        e("s_bfe_u32 s64, s2, 0x10002")
        e(f"s_lshr_b32 s67, s{sIDX}, 2")
        e("s_mul_i32 s65, s64, 7")
        e("s_add_u32 s65, s65, s67")
        e("s_add_u32 s66, s64, 14")
        e("s_cmp_eq_u32 s67, 7")
        e(f"s_cselect_b32 s{sJ}, s66, s65")
    else:
        e("s_and_b32 s64, s2, 1")
        e("s_lshl_b32 s64, s64, 3")
        e(f"s_and_b32 s65, s{sIDX}, 7")
        e(f"s_add_u32 s{sI}, s64, s65")
        e("s_bfe_u32 s64, s2, 0x20001")
        e(f"s_lshr_b32 s67, s{sIDX}, 3")
        e("s_mul_i32 s65, s64, 3")
        e("s_add_u32 s65, s65, s67")
        e("s_add_u32 s66, s64, 14")
        e("s_cmp_eq_u32 s67, 3")
        e("s_cselect_b32 s65, s66, s65")
        e("s_lshl_b32 s66, s64, 2")
        e("s_add_u32 s66, s66, s67")
        e("s_sub_u32 s66, s66, 2")
        e("s_cmp_lt_u32 s64, 2")
        e(f"s_cselect_b32 s{sJ}, s65, s66")
    e(f"s_lshl_b32 s{sCOL}, s{sJ}, 8")
    e(f"s_sub_u32 s64, s{sCOL}, {14 * 256}")
    e(f"s_movk_i32 s{sRS}, 3584")
    e(f"s_cmp_ge_u32 s{sJ}, 14")
    e(f"s_cselect_b32 s{sDFT}, 1, 0")
    e(f"s_cselect_b32 s{sRS}, 1024, s{sRS}")
    e(f"s_cselect_b32 s{sCOL}, s64, s{sCOL}")
    e(f"s_lshl_b32 s34, s{sRS}, 9")
    e("s_mov_b32 s35, 0x20000")
    e("s_mov_b32 s6, 0x200000")
    e("s_mov_b32 s7, 0x20000")


def wm_select(scc_instr):
    e(f"s_cmp_eq_u32 s{sDFT}, 1")
    e("s_cselect_b64 s[8:9], s[48:49], s[52:53]")
    e("s_cselect_b64 s[12:13], s[50:51], s[54:55]")
    e(scc_instr)
    e("s_cselect_b64 s[32:33], s[12:13], s[8:9]")


def ids2():
    e("s_bfe_u32 s46, s2, 0x20001")
    e("s_lshl_b32 s46, s46, 3")
    e(f"s_and_b32 s47, s{sIDX}, 7")
    e(f"s_add_u32 s{sT1}, s46, s47")
    e("s_and_b32 s46, s2, 1")
    e("s_lshl_b32 s46, s46, 2")
    e(f"s_lshr_b32 s47, s{sIDX}, 3")
    e(f"s_add_u32 s{sCB}, s46, s47")
    e("s_mov_b64 s[16:17], s[56:57]")
    e(f"s_mov_b32 s18, {1792 * 1024}")
    e("s_mov_b32 s19, 0x20000")
    e("s_mov_b64 s[20:21], s[62:63]")
    e(f"s_mov_b32 s22, {WS_SIZE}")
    e("s_mov_b32 s23, 0x20000")
    e("s_mov_b64 s[24:25], s[58:59]")
    e("s_mov_b32 s26, 0x200000")
    e("s_mov_b32 s27, 0x20000")
    e("s_mov_b64 s[28:29], s[60:61]")
    e("s_mov_b32 s30, 256")
    e("s_mov_b32 s31, 0x20000")


def entry():
    section("A")
    e("s_cmp_ge_u32 s2, 256")
    e("s_cbranch_scc1 END")
    e("s_load_dwordx2 s[4:5], s[0:1], 0")
    e("s_load_dwordx4 s[48:51], s[0:1], 24")
    e("s_load_dwordx8 s[52:59], s[0:1], 48")
    e("s_load_dwordx4 s[60:63], s[0:1], 80")
    if PROF or LITE or OPT.get("rabs"):
        e("s_memrealtime s[98:99]")
    stamp(0)
    e("v_lshrrev_b32 v1, 6, v0")
    e("v_and_b32 v0, 63, v0")
    e(f"s_lshr_b32 s{sIDX}, s2, 3")
    e(f"v_readfirstlane_b32 s{sWAVE}, v1")
    e("s_getpc_b64 s[64:65]")
    lab("PCREF")
    e(f"s_cmp_ge_u32 s{sWAVE}, 4")
    e("s_cbranch_scc1 LSTART")
    if OPT["ct"]:
        cm("pull the kernel's own code into this die's L2: three lines per matrix wave")
        e(f"s_lshl_b32 s66, s{sIDX}, 2")
        e(f"s_add_u32 s66, s66, s{sWAVE}")
        e("s_mul_i32 s66, s66, 384")
        e(f"s_min_u32 s66, s66, END-PCREF-384")
        e("s_and_b32 s64, s64, 0xffffff80")
        e("s_load_dwordx2 s[68:69], s[64:65], s66 offset:60")
        e("s_load_dwordx2 s[70:71], s[64:65], s66 offset:188")
        e("s_load_dwordx2 s[72:73], s[64:65], s66 offset:316")
    if OPT["bs"]:
        bar("BS")
    e("s_branch CWAVE")
    lab("LSTART")
    ids1()
    e(f"s_cmp_eq_u32 s{sWAVE}, 6")
    e("s_cbranch_scc1 L2WAVE")
    e(f"s_cmp_eq_u32 s{sWAVE}, 7")
    e("s_cbranch_scc1 L3WAVE")


def wd_voffset(vd, vt):
    e(f"v_lshrrev_b32 v{vt}, 3, v0")
    e(f"v_lshlrev_b32 v{vd}, 10, v{vt}")
    e(f"v_bfe_u32 v{vt}, v0, 4, 1")
    e(f"v_lshlrev_b32 v{vt}, 2, v{vt}")
    e(f"v_and_b32 v{vt + 1}, 7, v0")
    e(f"v_xor_b32 v{vt}, v{vt}, v{vt + 1}")
    e(f"v_lshl_add_u32 v{vd}, v{vt}, 4, v{vd}")


XS = 8192


def xw_base():
    e(f"s_lshr_b32 s60, s{sIDX}, 2")
    e("s_lshl_b32 s60, s60, 10")
    e(f"s_and_b32 s63, s{sIDX}, 3")
    e("s_lshl_b32 s63, s63, 7")
    e("s_add_u32 s60, s60, s63")
    e("s_and_b32 s63, s2, 1")
    e("s_lshl_b32 s63, s63, 9")
    e("s_add_u32 s60, s60, s63")
    e("s_bfe_u32 s63, s2, 0x20001")
    e(f"s_mul_i32 s62, s63, {56 * XS}")


def xload(n):
    for k in range(n if not OPT.get("nox") else 0):
        e(f"s_buffer_load_dwordx2 s[58:59], {srd(SRD_WD)}, s60 offset:{XS * k + 60}")


def xa_init():
    xw_base()
    e("s_add_u32 s60, s60, s62")
    e(f"s_sub_u32 s63, s{sWAVE}, 4")
    e(f"s_mul_i32 s63, s63, {28 * XS}")
    e("s_add_u32 s60, s60, s63")


def xa():
    xload(OPT["na"])
    e(f"s_add_u32 s60, s60, {OPT['na'] * XS}")


def xb_init(which):
    xw_base()
    e(f"s_add_u32 s60, s60, {which * OPT['nb'] * XS}")
    e("s_add_u32 s62, s62, s60")


XBN = [0, 0]


def xw(n, which):
    nb = OPT["nb"]
    if n < OPT["xb0"] or XBN[which] * 2 * nb >= 168:
        return
    XBN[which] += 1
    e("s_cmp_ge_u32 s60, s62")
    e(f"s_cselect_b32 s63, {56 * XS}, 0")
    e("s_cselect_b32 s62, -1, s62")
    e("s_add_u32 s60, s60, s63")
    xload(nb)
    e(f"s_add_u32 s60, s60, {2 * nb * XS}")


def rot_offsets(shift, add):
    for k in range(8):
        e(f"s_add_u32 s{48 + k}, s{sCB}, {k}")
        e(f"s_and_b32 s{48 + k}, s{48 + k}, 7")
        e(f"s_lshl_b32 s{48 + k}, s{48 + k}, {shift}")
        e(f"s_add_u32 s{48 + k}, s{48 + k}, {add}")


def l01wave():
    vX0, vX1, vW, vWD, vZ, vW1 = 2, 3, 4, 5, 9, 12
    sLW, sXa, sXb, sWo, sS0, sS1, sR4, sT, sCnt, sWd = 64, 65, 66, 67, 68, 69, 70, 71, 72, 73
    section("A2")
    lab("L01WAVE")
    cm("================ L0/L1: DMA waves ================")
    if OPT.get("dp"):
        e(f"s_setprio {OPT['dp']}")
    e(f"s_sub_u32 s{sLW}, s{sWAVE}, 4")
    e("v_lshrrev_b32 v6, 3, v0")
    e(f"v_lshlrev_b32 v{vX0}, 16, v6")
    e("v_lshrrev_b32 v6, 1, v6")
    e("v_and_b32 v7, 7, v0")
    e("v_xor_b32 v6, v6, v7")
    e(f"v_lshl_add_u32 v{vX0}, v6, 4, v{vX0}")
    e(f"v_xor_b32 v{vX1}, 64, v{vX0}")
    e("v_lshrrev_b32 v6, 4, v0")
    e(f"v_mul_lo_u32 v{vW}, v6, s{sRS}")
    e("v_bfe_u32 v7, v0, 2, 2")
    e("v_xor_b32 v7, v7, v6")
    e("v_lshlrev_b32 v7, 2, v7")
    e("v_and_b32 v8, 3, v0")
    e("v_or_b32 v7, v7, v8")
    e(f"v_lshl_add_u32 v{vW}, v7, 4, v{vW}")
    e("v_xor_b32 v7, 2, v7")
    e(f"v_mul_lo_u32 v{vW1}, v6, s{sRS}")
    e(f"v_lshl_add_u32 v{vW1}, v7, 4, v{vW1}")
    e(f"s_lshl_b32 s{sXa}, s{sI}, 1")
    e(f"s_add_u32 s{sXa}, s{sXa}, s{sLW}")
    e(f"s_lshl_b32 s{sXa}, s{sXa}, 10")
    e(f"s_add_u32 s{sXb}, s{sXa}, {32 * 1024}")
    e(f"s_mov_b32 s{sWo}, s{sCOL}")
    e(f"s_lshl_b32 s{sR4}, s{sRS}, 2")
    e(f"s_lshl_b32 s74, s{sLW}, 10")
    e(f"s_lshl_b32 s77, s{sLW}, 12")

    def wpieces(base_sgpr, imm):
        e(f"s_add_u32 s{sT}, s{base_sgpr}, s74")
        e(f"s_add_u32 m0, s{sT}, {imm}")
        e("s_nop 0")
        for k in range(8):
            if not (OPT.get("nodma", 0) & 1 and CUR[1]):
                e(f"buffer_load_dwordx4 v{vW1 if (k & 2) and OPT['m16'] else vW}, {srd(SRD_WM)}, s{sWo} offen lds")
            if k < 7:
                e("s_add_u32 m0, m0, 2048")
            e(f"s_add_u32 s{sWo}, s{sWo}, s{sR4}")

    def xpieces(base_sgpr, half):
        sx = sXb if half else sXa
        e(f"s_add_u32 s{sT}, s{base_sgpr}, s77")
        e(f"s_add_u32 m0, s{sT}, {32768 + half * 8192}")
        e(f"s_mov_b32 s{sT}, s{sx}")
        for k in range(4):
            if not (OPT.get("nodma", 0) & 2 and CUR[1]):
                e(f"buffer_load_dwordx4 v{vX1 if k & 1 else vX0}, {srd(SRD_X)}, s{sT} offen lds")
            if k < 3:
                e("s_add_u32 m0, m0, 1024")
                e(f"s_add_u32 s{sT}, s{sT}, 0x80000")
        e(f"s_add_u32 s{sx}, s{sx}, 128")

    e(f"s_mov_b32 s{sS0}, {SLOT}")
    e(f"s_mov_b32 s{sS1}, {2 * SLOT}")
    e("s_waitcnt lgkmcnt(0)")
    cm("G0 = x0 + W0 ; G1 = W1 + x1a")
    xpieces(sS0, 0)
    wm_select(f"s_cmp_eq_u32 s{sLW}, 1")
    wpieces(sS0, 0)
    xpieces(sS0, 1)
    if OPT["bs"]:
        bar("BS")
    wpieces(sS0, 16384)
    xpieces(sS1, 0)
    ids2()
    xa_init()
    wd_voffset(vWD, 6)
    e(f"s_lshl_b32 s{sT}, s{sCB}, 7")
    rot_offsets(15, f"s{sT}")
    e("v_min_u32 v10, 13, v0")
    e("v_lshlrev_b32 v10, 7, v10")
    e(f"s_lshr_b32 s61, s{sT1}, 1")
    e("s_lshl_b32 s61, s61, 11")
    e(f"s_add_u32 s61, s61, {FLH}")
    e(f"s_cmp_eq_u32 s{sLW}, 0")
    e(f"s_cselect_b32 s61, s61, {OOB:#x}")
    e("v_lshlrev_b32 v13, 4, v0")
    e(f"s_lshl_b32 s56, s{sJ}, 13")
    e("s_add_u32 s56, s56, s74")
    e(f"s_add_u32 s56, s56, {CS_OFF}")
    e("s_add_u32 s57, s56, 4096")
    e(f"s_lshl_b32 s62, s{sI}, 11")
    e("s_add_u32 s62, s62, s74")
    e(f"s_add_u32 s62, s62, {ST_OFF}")
    e(f"s_lshl_b32 s63, s{sLW}, 9")
    e(f"s_add_u32 s63, s63, {CSL}")
    e("v_lshl_add_u32 v45, v0, 3, s63")
    e(f"s_lshl_b32 s63, s{sLW}, 8")
    e(f"s_add_u32 s63, s63, {RL}")
    e("v_lshl_add_u32 v46, v0, 2, s63")
    e(f"s_mov_b32 s{sS0}, {2 * SLOT}")
    e(f"s_mov_b32 s{sS1}, 0")
    e(f"s_mov_b32 s{sCnt}, 6")
    e("s_waitcnt vmcnt(12)")
    stamp(1)
    bar("B0")
    lab("L01LOOP")
    CUR[1] = True
    wpieces(sS0, 0)
    xpieces(sS0, 1)
    A0 = OPT["xa0"]
    NA = -(-28 // OPT["na"])
    ev = [n for n in range(0, 12, 2) if A0 <= n < A0 + NA]
    od = [n for n in range(1, 12, 2) if A0 <= n < A0 + NA]
    e(f"s_sub_u32 s63, {6 - ev[0] // 2}, s{sCnt}")
    e(f"s_cmp_ge_u32 s63, {len(ev)}")
    e("s_cbranch_scc1 L01X0")
    xa()
    lab("L01X0")
    e("s_waitcnt vmcnt(12)")
    bar("B(2s+1)")
    wpieces(sS0, 16384)
    xpieces(sS1, 0)
    e(f"s_sub_u32 s63, {6 - od[0] // 2}, s{sCnt}")
    e(f"s_cmp_ge_u32 s63, {len(od)}")
    e("s_cbranch_scc1 L01X1")
    xa()
    lab("L01X1")
    e(f"s_mov_b32 s{sS0}, s{sS1}")
    e(f"s_add_u32 s{sS1}, s{sS1}, {SLOT}")
    e(f"s_cmp_eq_u32 s{sS1}, {3 * SLOT}")
    e(f"s_cselect_b32 s{sS1}, 0, s{sS1}")
    e(f"s_sub_u32 s{sCnt}, s{sCnt}, 1")
    e(f"s_cmp_lg_u32 s{sCnt}, 0")
    e("s_waitcnt vmcnt(12)")
    bar("B(2s+2)")
    e("s_cbranch_scc1 L01LOOP")
    wpieces(sS0, 0)
    xpieces(sS0, 1)
    e(f"v_mov_b32 v7, {TAGL}")
    e("ds_read_b32 v8, v7")
    e("s_waitcnt vmcnt(12)")
    bar("B13")
    wpieces(sS0, 16384)

    def gets():
        cm("statistics of the other workgroups: column sums (128 columns x 4 partial sums) and 64 rows per wave")
        for k in range(4):
            e(f"buffer_load_dwordx4 {vr(16 + 4 * k, 4)}, v13, {srd(SRD_WS)}, {'s57' if k >= 2 else 's56'} offen offset:{2048 * (k & 1)} sc1")
        e(f"buffer_load_dwordx4 v[32:35], v13, {srd(SRD_WS)}, s62 offen sc1")

    gets()
    e(f"s_lshl_b32 s{sWd}, s{sLW}, 14")
    e(f"s_lshl_b32 m0, s{sLW}, 11")

    def units(a, b, th=0):
        for v in range(a, b):
            if v and v & 7 == 0:
                e(f"s_add_u32 s{sWd}, s{sWd}, 262144")
            e(f"s_add_u32 s{sT}, s{sWd}, s{48 + (v & 7)}")
            if v < NRES:
                e(f"buffer_load_dwordx4 v{vWD}, {srd(SRD_WD)}, s{sT} offen lds")
                e("s_add_u32 m0, m0, 1024")
            else:
                e(f"buffer_load_dwordx4 {vr(ST0 + 8 * (v - NRES), 4)}, v{vWD}, {srd(SRD_WD)}, s{sT} offen")
            e(f"s_add_u32 s{sT}, s{sT}, 8192")
            if v < NRES:
                e(f"buffer_load_dwordx4 v{vWD}, {srd(SRD_WD)}, s{sT} offen lds")
            else:
                e(f"buffer_load_dwordx4 {vr(ST0 + 8 * (v - NRES) + 4, 4)}, v{vWD}, {srd(SRD_WD)}, s{sT} offen")
            if v + 1 < NRES:
                e(f"s_add_u32 m0, m0, {(wslot(v + 1) - wslot(v)) * 4096 - 1024}")
            if th:
                e(f"s_waitcnt vmcnt({th})")

    ST0 = 64
    U1, U2 = OPT["u1"], OPT["u2"]
    units(0, U1)
    e("s_waitcnt lgkmcnt(0)")
    e(f"v_readfirstlane_b32 s{sTAG}, v8")
    e(f"s_waitcnt vmcnt({8 + 5 + 2 * U1})")
    bar("B14")
    units(U1, U2)
    e(f"s_waitcnt vmcnt({5 + 2 * U2})")
    bar("B15")
    e(f"s_mov_b32 s75, {OPT['spin']}")
    e(f"s_waitcnt vmcnt({2 * U2})")
    lab("GCHK")
    for k in range(8):
        e(f"v_xor_b32 v{36 + k}, s{sTAG}, v{17 + 2 * k}")
    e(f"v_xor_b32 v44, s{sTAG}, v35")
    for k in range(4):
        e(f"v_or3_b32 v44, v44, v{36 + 2 * k}, v{37 + 2 * k}")
    e("v_cmp_ne_u32 vcc, 0, v44")
    e("v_add_f32 v36, v16, v20")
    e("v_add_f32 v37, v18, v22")
    e("s_cmp_eq_u64 vcc, 0")
    e("s_cbranch_scc1 GOK")
    e("s_sleep 2")
    gets()
    e("s_sub_u32 s75, s75, 1")
    e("s_cmp_lg_u32 s75, 0")
    e("s_waitcnt vmcnt(0)")
    e("s_cbranch_scc1 GCHK")
    lab("GOK")
    e("v_add_f32 v38, v24, v28")
    e("v_add_f32 v39, v26, v30")
    e("v_add_f32 v36, v36, v38")
    e("v_add_f32 v37, v37, v39")
    e("ds_write_b64 v45, v[36:37]")
    e(f"ds_write_b64 v45, v[32:33] offset:{MRP - CSL}")
    e("ds_write_b32 v46, v33")
    if not OPT["nocs"]:
        e("v_mul_f32 v38, v32, v33")
        e("v_xor_b32 v38, 0x80000000, v38")
        e("ds_write_b32 v46, v38 offset:512")
    e("s_waitcnt lgkmcnt(0)")
    stamp(2)
    bar("B16")
    TR = OPT["trk"]
    units(U2, TR, OPT["th"])
    e(f"s_cmp_eq_u32 s{sDFT}, 1")
    e("s_cbranch_scc1 L01GO")
    wait_c_done()
    lab("L01GO")
    stamp(3)
    PA = OPT["pa"]
    units(TR, PA)
    e(f"s_cmp_eq_u32 s{sDFT}, 0")
    e("s_cbranch_scc1 L01GO2")
    wait_c_done()
    lab("L01GO2")
    cm("L0 waits for the 14 producers of row block t1>>1 (queued behind the w_down loads)")
    poll_issue(11, 10, "s61", SRD_WS)
    units(PA, 56)
    e("v_and_b32 v6, 3, v0")
    e("v_bfe_u32 v7, v0, 3, 2")
    e("v_lshl_add_u32 v6, v7, 2, v6")
    e("v_bfe_u32 v7, v0, 2, 1")
    e("v_lshl_add_u32 v6, v7, 4, v6")
    e("v_and_b32 v7, 32, v0")
    e(f"s_lshl_b32 s66, s{sCB}, 6")
    e("v_add3_u32 v6, v6, v7, s66")
    e("v_sub_u32 v7, 512, v6")
    e("v_and_b32 v7, 255, v7")
    e(f"s_sub_u32 s67, 32, s{sT1}")
    e("s_and_b32 s67, s67, 31")
    e(f"s_cmp_ge_u32 s{sCB}, 4")
    e("s_cselect_b64 s[68:69], -1, 0")
    e(f"s_cselect_b32 s67, s67, s{sT1}")
    e("v_cmp_eq_u32 vcc, 0, v6")
    e("v_cndmask_b32 v7, v6, v7, s[68:69]")
    e(f"v_lshlrev_b32 v{vZ}, 4, v7")
    e(f"v_mov_b32 v7, {OOB:#x}")
    e("s_lshl_b32 s67, s67, 16")
    e(f"v_cndmask_b32 v{vZ}, v{vZ}, v7, vcc")
    e(f"s_lshl_b32 s66, s{sLW}, 15")
    e("s_add_u32 s67, s67, s66")
    e(f"s_add_u32 s67, s67, {Z_OFF}")
    e(f"s_lshl_b32 s66, s{sLW}, 13")
    e(f"s_add_u32 m0, s66, {ZL}")
    e("v_bfe_u32 v12, v0, 1, 4")
    e("v_lshlrev_b32 v12, 4, v12")
    e("v_and_b32 v13, 1, v0")
    e("v_add3_u32 v12, v12, v13, 14")
    e("v_lshlrev_b32 v12, 7, v12")
    e(f"s_mov_b32 s70, {FLH}")
    e(f"s_lshl_b32 s66, s{sLW}, 11")
    e("v_lshl_add_u32 v6, v0, 4, s66")
    e(f"s_cmp_eq_u32 s{sLW}, 1")
    e(f"s_cselect_b32 s70, s70, {OOB:#x}")
    e("s_cbranch_scc1 L1NOPOLL")
    poll_wait(11, 10, "s61", SRD_WS, first_wait=2 * (56 - PA))
    lab("L1NOPOLL")
    e(f"s_waitcnt vmcnt({2 * min(NST, 56 - PA)})")
    stamp(4)
    bar("BW")
    e("s_waitcnt vmcnt(0)")
    bar("BP1")
    poll_issue(11, 12, "s70", SRD_WS)
    for k in range(2 * NST):
        if k == 32:
            e("v_add_u32 v6, 0x10000, v6")
        e(f"ds_write_b128 v6, {vr(ST0 + 4 * k, 4)} offset:{((k >> 1) * 4096 + (k & 1) * 1024) & 0xFFFF}")
    e("s_waitcnt lgkmcnt(0)")
    bar("BP2")
    e(f"s_cmp_eq_u32 s{sLW}, 0")
    e("s_cbranch_scc1 L0NOPOLL")
    poll_wait(11, 12, "s70", SRD_WS)
    lab("L0NOPOLL")
    stamp(5)
    bar("BZ0")
    for g in range(8):
        e(f"buffer_load_dwordx4 v{vZ}, {srd(SRD_WS)}, s67 offen sc1 lds")
        e("s_add_u32 m0, m0, 1024")
        e("s_add_u32 s67, s67, 4096")
    e("s_waitcnt vmcnt(0)")
    stamp(6)
    bar("BR")
    stamp_flush(7, 14, False)
    e("s_endpgm")


DWN = [0, 0]


def dw_init(which):
    if not OPT["dw"]:
        return
    e("v_and_b32 v116, 31, v0")
    e("v_lshlrev_b32 v116, 6, v116")
    e("v_lshrrev_b32 v117, 5, v0")
    e(f"s_cmp_eq_u32 s{sDFT}, 1")
    e(f"s_cselect_b32 s73, 16, 30")
    e("v_lshlrev_b32 v117, s73, v117")
    e("v_add_u32 v116, v116, v117")
    e(f"s_lshl_b32 s61, s{sJ}, 12")
    e(f"s_mul_i32 s57, s{sI}, {2 * 4 * 56 * 1024}")
    e("s_add_u32 s61, s61, s57")
    e(f"s_add_u32 s61, s61, {H_OFF + which * 4 * 57344}")
    e(f"s_lshl_b32 s57, s{sI}, 12")
    e(f"s_and_b32 s73, s{sJ}, 1")
    e("s_lshl_b32 s73, s73, 11")
    e("s_add_u32 s57, s57, s73")
    e(f"s_add_u32 s57, s57, {Z_OFF + which * 16 * 65536}")
    e(f"s_cmp_eq_u32 s{sDFT}, 1")
    e("s_cselect_b32 s61, s57, s61")
    e(f"s_mov_b32 s73, {57344 - 2048}")
    e("s_cselect_b32 s73, 0x20000, s73")
    e("s_movk_i32 s74, 2048")
    e("s_cselect_b32 s74, 0x20000, s74")


def dw(n, which, vm):
    if not OPT["dw"] or n < OPT["dw0"]:
        return
    for _ in range(OPT["dw"]):
        if DWN[which] < 8:
            vm.add(("d", DWN[which]), f"buffer_store_dword v116, v116, {srd(SRD_WS)}, s61 offen sc1")
            e(f"s_add_u32 s61, s61, {'s73' if DWN[which] & 1 else 's74'}")
            DWN[which] += 1


def l23_tail(which, vm):
    xb_init(which)
    xw(8, which)
    for n in range(9, OPT["xe"] + 1):
        if n == OPT["xe"]:
            assert not OPT["dw"] or DWN[which] == 8
            e("s_waitcnt vmcnt(0)")
        bar(f"B{n}")
        xw(n, which)
        dw(n, which, vm)
    for n in range(OPT["xt"]):
        xw(20, which)


def l2wave():
    vC = 8
    vm = Q()
    section("A")
    e("s_branch L01WAVE")
    lab("L2WAVE")
    cm("================ L2: column sums (64 columns x rows 64s + 16kq + 0..15) ================")
    e("v_lshrrev_b32 v18, 3, v0")
    e("v_and_b32 v19, 7, v0")
    e(f"v_mul_lo_u32 v{vC}, v18, s{sRS}")
    e(f"v_lshl_add_u32 v{vC}, v19, 4, v{vC}")
    e(f"s_lshr_b32 s64, s{sI}, 2")
    e("s_lshl_b32 s64, s64, 4")
    e(f"s_mul_i32 s69, s64, s{sRS}")
    e(f"s_and_b32 s64, s{sI}, 1")
    e("s_lshl_b32 s64, s64, 7")
    e("s_add_u32 s69, s69, s64")
    e(f"s_add_u32 s69, s69, s{sCOL}")
    e(f"s_lshl_b32 s70, s{sRS}, 3")
    e(f"s_mul_i32 s72, s{sRS}, 56")
    if OPT["sord"]:
        e("s_add_u32 s69, s69, s70")
        e("s_add_u32 s69, s69, s72")
    e("s_waitcnt lgkmcnt(0)")
    wm_select(f"s_bitcmp1_b32 s{sI}, 1")
    LD, AC = 32, 16

    def csload(y):
        vm.add(("c", y), f"buffer_load_dwordx4 {vr(LD + 4 * y, 4)}, v{vC}, {srd(SRD_WM)}, s69 offen")
        e(f"s_add_u32 s69, s69, {'s72' if y & 1 else 's70'}")
        if OPT["sord"] and y == 13:
            e("s_sub_u32 s69, s69, s34")

    def csproc(y):
        for d in range(4):
            r = LD + 4 * y + d
            if y == 0:
                e(f"v_lshlrev_b32 v{AC + 2 * d}, 16, v{r}")
                e(f"v_and_b32 v{AC + 2 * d + 1}, v9, v{r}")
            else:
                e(f"v_lshlrev_b32 v10, 16, v{r}")
                e(f"v_and_b32 v11, v9, v{r}")
                e(f"v_add_f32 v{AC + 2 * d}, v{AC + 2 * d}, v10")
                e(f"v_add_f32 v{AC + 2 * d + 1}, v{AC + 2 * d + 1}, v11")

    for y in range(2 * OPT["pre"]):
        csload(y)
    if OPT["bs"]:
        bar("BS")
        for y in range(2 * OPT["pre"], 2 * OPT["bs"]):
            csload(y)
    e("s_branch L2REST")
    section("L2")
    lab("L2REST")
    if OPT.get("lp0"):
        e(f"s_setprio {OPT['lp0']}")
    ids2()
    e("v_mov_b32 v9, 0xffff0000")
    dw_init(0)
    stamp(1)
    issued, done = 2 * max(OPT["pre"], OPT["bs"]), 0
    for n in range(8):
        bar(f"B{n}")
        while issued < 16 and n >= OPT["preb"]:
            csload(issued)
            issued += 1
        dw(n, 0, vm)
        if n >= 2:
            k = min(done + 3, 16)
            e(f"s_waitcnt vmcnt({vm.younger(('c', k - 1))})")
            for y in range(done, k):
                csproc(y)
            done = k
    assert done == 16 and issued == 16
    bar("B8")
    e(f"v_mov_b32 v12, {TAGL}")
    e("ds_read_b32 v25, v12")
    for k in range(4):
        e(f"v_permlane32_swap_b32 v{AC + k}, v{AC + k + 4}")
    e("s_nop 1")
    for k in range(4):
        e(f"v_add_f32 v{AC + k}, v{AC + k}, v{AC + k + 4}")
    e("s_nop 1")
    for k in range(2):
        e(f"v_permlane16_swap_b32 v{AC + k}, v{AC + k + 2}")
    e("s_nop 1")
    for k in range(2):
        e(f"v_add_f32 v{AC + k}, v{AC + k}, v{AC + k + 2}")
    e("v_and_b32 v10, 7, v0")
    e("v_lshlrev_b32 v10, 3, v10")
    e(f"v_add_f32_dpp v24, v{AC}, v{AC} row_ror:8 row_mask:0xf bank_mask:0x3")
    e(f"v_add_f32_dpp v24, v{AC + 1}, v{AC + 1} row_ror:8 row_mask:0xf bank_mask:0xc")
    e("v_bfe_u32 v11, v0, 5, 1")
    e("v_lshl_add_u32 v10, v11, 2, v10")
    e("v_bfe_u32 v11, v0, 4, 1")
    e("v_lshl_add_u32 v10, v11, 1, v10")
    e("v_bfe_u32 v11, v0, 3, 1")
    e("v_add_u32 v10, v11, v10")
    e("v_lshlrev_b32 v10, 3, v10")
    e(f"s_lshl_b32 s64, s{sJ}, 13")
    e(f"s_add_u32 s64, s64, {CS_OFF}")
    e(f"s_lshl_b32 s65, s{sI}, 9")
    e("s_add_u32 s65, s64, s65")
    e("s_waitcnt lgkmcnt(0)")
    vm.add("pub", f"buffer_store_dwordx2 v[24:25], v10, {srd(SRD_WS)}, s65 offen sc1")
    stamp(2)
    l23_tail(0, vm)
    stamp_flush(3, 26, False)
    e("s_endpgm")


def l3wave():
    vm = Q()
    section("A")
    lab("L3WAVE")
    cm("================ L3: launch tag, row statistics (rows 8j..8j+7 of the row block), hand-off waits ================")
    e(f"s_bfe_u32 s64, s{sJ}, 0x10002")
    e(f"s_bfe_u32 s65, s{sJ}, 0x10003")
    e("s_lshl_b32 s65, s65, 5")
    e(f"s_lshl_b32 s66, s{sI}, 1")
    e("s_add_u32 s64, s64, s65")
    e("s_add_u32 s64, s64, s66")
    e(f"s_and_b32 s65, s{sJ}, 3")
    e("s_lshl_b32 s65, s65, 9")
    e("s_add_u32 s64, s64, s65")
    e("s_lshl_b32 s64, s64, 10")
    e("v_lshrrev_b32 v4, 3, v0")
    e("v_and_b32 v14, 7, v0")
    e("v_lshlrev_b32 v6, 16, v4")
    e("v_lshl_add_u32 v6, v14, 4, v6")
    e("s_memrealtime s[66:67]")
    e("s_waitcnt lgkmcnt(0)")
    LD, UP = 16, 48

    def rowload(y):
        vm.add(("r", y), f"buffer_load_dwordx4 {vr(LD + 4 * y, 4)}, v6, {srd(SRD_X)}, s64 offen offset:{128 * ((y + OPT['sord']) & 7)}")

    for y in range(OPT["pre"]):
        rowload(y)
    if OPT["bs"]:
        bar("BS")
        for y in range(OPT["pre"], OPT["bs"]):
            rowload(y)
    e("s_branch L3REST")
    section("L3")
    lab("L3REST")
    if OPT.get("lp0"):
        e(f"s_setprio {OPT['lp0']}")
    ids2()
    e("v_mov_b32 v2, 0")
    e("s_or_b32 s66, s66, 1")
    e("v_mov_b32 v3, s66")
    e("s_cmp_eq_u32 s2, 0")
    e(f"s_cselect_b32 s66, 0, {OOB:#x}")
    vm.add("tag", f"buffer_store_dword v3, v2, {srd(SRD_DBG)}, s66 offen sc1")
    if OPT.get("dbgx"):
        e("s_getreg_b32 s66, hwreg(HW_REG_XCC_ID)")
        e("s_add_u32 s66, s66, 100")
        e("v_mov_b32 v112, s66")
        e("s_lshl_b32 s66, s2, 2")
        e("s_add_u32 s66, s66, 4")
        e("s_cmp_lt_u32 s2, 12")
        e(f"s_cselect_b32 s66, s66, {OOB:#x}")
        vm.add("dbgx", f"buffer_store_dword v112, v2, {srd(SRD_DBG)}, s66 offen")
        e("v_mov_b32 v112, s4")
        e("v_mov_b32 v113, s20")
        e("v_mov_b32 v114, s16")
        vm.add("dbgy", f"buffer_store_dwordx3 v[112:114], v2, {srd(SRD_DBG)}, 0 offen offset:52")
    e("v_mov_b32 v9, 0xffff0000")
    dw_init(1)

    def unp(d):
        e(f"v_lshlrev_b32 v{UP + 2 * d}, 16, v{LD + d}")
        e(f"v_and_b32 v{UP + 2 * d + 1}, v9, v{LD + d}")
        if d == 0:
            e(f"v_mov_b32 v10, v{UP}")
            e(f"v_mov_b32 v11, v{UP + 1}")
        else:
            e(f"v_add_f32 v10, v10, v{UP + 2 * d}")
            e(f"v_add_f32 v11, v11, v{UP + 2 * d + 1}")

    def red8(r):
        e("s_nop 1")
        e(f"v_add_f32_dpp v{r}, v{r}, v{r} quad_perm:[1,0,3,2] row_mask:0xf bank_mask:0xf")
        e("s_nop 1")
        e(f"v_add_f32_dpp v{r}, v{r}, v{r} quad_perm:[2,3,0,1] row_mask:0xf bank_mask:0xf")
        e("s_nop 1")
        e(f"v_add_f32_dpp v{r}, v{r}, v{r} row_half_mirror row_mask:0xf bank_mask:0xf")

    def var(k):
        e(f"v_sub_f32 v{UP + k}, v{UP + k}, v10")
        e(f"v_fmac_f32 v{12 + (k & 1)}, v{UP + k}, v{UP + k}")

    issued, done = max(OPT["pre"], OPT["bs"]), 0
    for n in range(6):
        bar(f"B{n}")
        while issued < 8 and n >= OPT["preb"]:
            rowload(issued)
            issued += 1
        dw(n, 1, vm)
        if n == 5:
            vm.add("np")
            poll_issue(3, 2, "0", SRD_DBG)
        if n >= 2:
            k = min(done + 2, 8)
            e(f"s_waitcnt vmcnt({vm.younger(('r', k - 1))})")
            for d in range(4 * done, 4 * k):
                unp(d)
            done = k
    assert done == 8 and issued == 8
    e("v_add_f32 v10, v10, v11")
    red8(10)
    e(f"v_mul_f32 v10, {f2u(1.0 / 512):#x}, v10")
    e("v_mov_b32 v12, 0")
    e("v_mov_b32 v13, 0")
    bar("B6")
    dw(6, 1, vm)
    for k in range(24):
        var(k)
    bar("B7")
    poll_wait(3, 2, "0", SRD_DBG, cond_tag=False, first_wait=vm.younger("np"))
    e(f"v_mov_b32 v15, {TAGL}")
    e("ds_write_b32 v15, v3")
    e("ds_write_b32 v15, v2 offset:4")
    e("ds_write_b32 v15, v2 offset:8")
    e(f"v_readfirstlane_b32 s{sTAG}, v3")
    for k in range(24, 44):
        var(k)
    e("s_waitcnt lgkmcnt(0)")
    dw(7, 1, vm)
    bar("B8")
    for k in range(44, 64):
        var(k)
    e("v_add_f32 v12, v12, v13")
    red8(12)
    e(f"v_mul_f32 v12, {f2u(1.0 / 512):#x}, v12")
    cm("roundings as in the reference: m=bf(mean); sd=bf(sqrt(bf(bf(var)+eps))); r=1/sd")
    e("v_cvt_pk_bf16_f32 v15, v10, v12")
    e("v_lshlrev_b32 v16, 16, v15")
    e("v_and_b32 v12, v9, v15")
    e(f"v_add_f32 v12, {f2u(1e-5):#x}, v12")
    e("v_cvt_pk_bf16_f32 v12, v12, v12")
    e("v_and_b32 v12, v9, v12")
    e("v_sqrt_f32 v12, v12")
    e("v_cmp_eq_u32 vcc, 0, v14")
    e("v_cvt_pk_bf16_f32 v12, v12, v12")
    e("v_and_b32 v12, v9, v12")
    e("v_rcp_f32 v17, v12")
    e("v_lshlrev_b32 v14, 4, v4")
    e(f"v_mov_b32 v15, {OOB:#x}")
    e(f"s_lshl_b32 s64, s{sI}, 11")
    e(f"s_add_u32 s64, s64, {ST_OFF}")
    e("v_cndmask_b32 v14, v15, v14, vcc")
    e("v_mov_b32 v18, v3")
    e("v_mov_b32 v19, v3")
    e(f"s_lshl_b32 s65, s{sJ}, 7")
    e("s_add_u32 s65, s64, s65")
    vm.add("pub", f"buffer_store_dwordx4 v[16:19], v14, {srd(SRD_WS)}, s65 offen sc1")
    stamp(1)
    l23_tail(1, vm)
    stamp_flush(2, 26, False)
    e("s_endpgm")


XF = [[64 + 4 * q for q in range(4)], [80 + 4 * q for q in range(4)]]
WF = [[96, 100], [104, 108]]
XA = [112, 113, 114, 115]
WA = 116
vPM = 118
CG, CU, MR = 0, 16, 32
vA_CS, vA_MR, vA_TAG = 45, 46, 116 if OPT['m16'] else 47
R0, N0 = 64, 80
vD_CS, vD_R, vD_TAG = 122, 123, 124
sXO, sRO, sFLG, sOUT, sC0, sP, sKH = 56, 60, 61, 62, 63, 73, 74


def ACC(mat, q):
    return 128 + 32 * q + 16 * mat


def TW(q, cs, z):
    return 16 * q + 8 * cs + 4 * z


def frag_reads(u, st):
    r = []
    for mat in range(2):
        for a in range(2):
            r.append(f"ds_read_b64_tr_b16 {vr(WF[st][mat] + 2 * a, 2)}, v{WA} offset:{u * 8192 + a * 2048 + mat * 1024}")
    for q in range(4):
        r.append(f"ds_read_b128 {vr(XF[st][q], 4)}, v{XA[u]} offset:{q * 4096}")
    return r


def glu_stat_reads():
    r = [f"ds_read_b64 {vr(MR + 2 * q, 2)}, v{vA_MR} offset:{256 * q}" for q in range(4)]
    r += [f"ds_read_b128 {vr(CG + 4 * a, 4)}, v{vA_CS} offset:{32 * a}" for a in range(4)]
    r += [f"ds_read_b128 {vr(CU + 4 * a, 4)}, v{vA_CS} offset:{512 + 32 * a}" for a in range(4)]
    r += [f"ds_read_b32 v43, v{vA_TAG}"]
    return r


def dft_stat_reads():
    return [f"ds_read_b32 v118, v{vD_CS}", f"ds_read_b32 v119, v{vD_CS} offset:512", f"ds_read_b32 v{vD_TAG}, v{vD_TAG}"] + \
           [f"ds_read_b128 {vr(R0 + 4 * a, 4)}, v{vD_R} offset:{32 * a}" for a in range(4)]


def mainloop(dft):
    sCnt, sDelta, sCur = 64, 65, 66
    tag = "D" if dft else "G"
    es(frag_reads(0, 0))
    e(f"s_mov_b32 s{sCnt}, 8")
    e(f"s_mov_b32 s{sCur}, {SLOT}")
    e(f"s_mov_b32 s67, {(-2 * SLOT) & 0xffffffff:#x}")

    def step(u, last):
        st = u & 1
        mf = []
        for mat in ((1, 0) if dft else (0, 1)):
            for q in range(4):
                a, b = (XF[st][q], WF[st][mat]) if dft else (WF[st][mat], XF[st][q])
                mf.append(f"v_mfma_f32_32x32x16_bf16 {vr(ACC(mat, q), 16)}, {vr(a, 4)}, {vr(b, 4)}, {vr(ACC(mat, q), 16)}")
        rd = frag_reads((u + 1) & 3, st ^ 1)
        gaps = [[] for _ in range(8)]
        if u == 3 and not last:
            gaps[0] += [f"v_add_u32 v{WA}, s{sDelta}, v{WA}", f"v_add_u32 v{XA[0]}, s{sDelta}, v{XA[0]}"]
            gaps[5] += [f"v_add_u32 v{XA[1]}, s{sDelta}, v{XA[1]}"]
            gaps[6] += [f"v_add_u32 v{XA[2]}, s{sDelta}, v{XA[2]}", f"v_add_u32 v{XA[3]}, s{sDelta}, v{XA[3]}"]
        if PROF and u in (0, 2):
            gaps[0] += ["s_memtime s[70:71]"]
        if PROF and u in (1, 3):
            gaps[5] += [f"s_lshl_b32 s72, s{sCnt}, 1", f"s_sub_u32 m0, {16 if u == 1 else 15}, s72", f"v_writelane_b32 v{vLOOPST}, s70, m0"]
        if u == 2:
            gaps[5] += [f"s_cmp_eq_u32 s{sCur}, {2 * SLOT}", f"s_cselect_b32 s{sDelta}, s67, {SLOT}"]
            gaps[6] += [f"s_add_u32 s{sCur}, s{sCur}, s{sDelta}", f"s_sub_u32 s{sCnt}, s{sCnt}, 1"]
            gaps[7] += [f"s_cmp_eq_u32 s{sCnt}, 0"]
        if u & 1:
            gaps[0] += ["s_barrier"]
        if dft:
            gaps[0] = [f"v_cndmask_b32 v{WF[st][0] + k}, v{WF[st][0] + k}, v{vPM}, s[68:69]" for k in range(2)] + gaps[0]
            gaps[1] += [f"v_cndmask_b32 v{WF[st][0] + k}, v{WF[st][0] + k}, v{vPM}, s[68:69]" for k in range(2, 4)]
        if last:
            extra = dft_stat_reads() if dft else glu_stat_reads()
            for k, x in enumerate(extra):
                gaps[2 + min(k // 3, 4)].append(x)
        else:
            for k in range(4):
                gaps[k + (1 if (u & 1) else 0)] += rd[2 * k:2 * k + 2]
        e("s_waitcnt lgkmcnt(0)")
        for k in range(8):
            e(mf[k])
            es(gaps[k])

    raw(".p2align 3")
    lab(f"MAIN{tag}")
    for u in range(3):
        step(u, False)
    e(f"s_cbranch_scc1 LAST{tag}")
    step(3, False)
    e(f"s_branch MAIN{tag}")
    lab(f"LAST{tag}")
    step(3, True)


X16 = [4 * k for k in range(8)]
W16 = [[64 + 4 * n for n in range(4)], [80 + 4 * n for n in range(4)]]
XA16, WA16 = [112, 113], [114, 115]
MR16, CG16, CU16, TG16 = 32, 48, 56, 96
vB_CS, vB_MR = 119, 120


def A16(sg, n):
    return 128 + 16 * sg + 4 * n


def mainloop16():
    sCnt, sDelta, sCur = 64, 65, 66
    lq = Q()
    gen = [0]

    def rdx(sg, h):
        lq.add(("x", sg), f"ds_read_b128 {vr(X16[sg], 4)}, v{XA16[h]} offset:{sg * 2048}")

    def rdw(n, a, h):
        lq.add(("w", n, a), f"ds_read_b64_tr_b16 {vr(W16[h][n] + 2 * a, 2)}, v{WA16[n & 1]} offset:{h * 16384 + a * 2048 + (n >> 1) * 1024}")

    def wait(tag):
        idx = max(i for i, t in enumerate(lq.l) if t == tag)
        n = len(lq.l) - 1 - idx
        if n < gen[0]:
            e(f"s_waitcnt lgkmcnt({n})")
            gen[0] = n

    def second_half_reads(h):
        return [lambda: rdw(0, 0, h), lambda: rdw(0, 1, h), lambda: rdx(0, h), lambda: rdw(1, 0, h), lambda: rdw(1, 1, h),
                lambda: rdw(2, 0, h), lambda: rdw(2, 1, h), lambda: rdw(3, 0, h), lambda: rdw(3, 1, h),
                lambda: rdx(1, h), lambda: rdx(2, h), lambda: rdx(3, h)]

    def issue(f):
        f()
        gen[0] += 1

    for f in second_half_reads(0):
        issue(f)
    e(f"s_mov_b32 s{sCnt}, 8")
    e(f"s_mov_b32 s{sCur}, {SLOT}")
    e(f"s_mov_b32 s67, {(-2 * SLOT) & 0xffffffff:#x}")

    def step(h, last):
        gen[0] = 15
        gaps = [[] for _ in range(32)]
        for k, sg in enumerate((4, 5, 6, 7)):
            gaps[1 + 2 * k].append(lambda sg=sg: rdx(sg, h))
        txt = [[] for _ in range(32)]
        if h == 0:
            txt[9] += [f"s_cmp_eq_u32 s{sCur}, {2 * SLOT}", f"s_cselect_b32 s{sDelta}, s67, {SLOT}"]
            txt[10] += [f"s_add_u32 s{sCur}, s{sCur}, s{sDelta}", f"s_sub_u32 s{sCnt}, s{sCnt}, 1"]
            txt[31] += [f"s_cmp_eq_u32 s{sCnt}, 0"]
        elif not last:
            txt[9] += [f"v_add_u32 v{XA16[0]}, s{sDelta}, v{XA16[0]}", f"v_add_u32 v{XA16[1]}, s{sDelta}, v{XA16[1]}"]
            txt[10] += [f"v_add_u32 v{WA16[0]}, s{sDelta}, v{WA16[0]}", f"v_add_u32 v{WA16[1]}, s{sDelta}, v{WA16[1]}"]
        if PROF:
            txt[11] += ["s_memtime s[70:71]"]
            txt[29] += [f"s_lshl_b32 s72, s{sCnt}, 1", f"s_sub_u32 m0, {14 + h}, s72"]
            txt[30] += [f"v_writelane_b32 v{vLOOPST}, s70, m0"]
        if last:
            st = [f"ds_read_b64 {vr(MR16 + 2 * sg, 2)}, v{vB_MR} offset:{128 * sg}" for sg in range(8)]
            st += [f"ds_read_b128 {vr(CG16 + 4 * n, 4)}, v{vB_CS} offset:{64 * n}" for n in range(2)]
            st += [f"ds_read_b128 {vr(CU16 + 4 * n, 4)}, v{vB_CS} offset:{512 + 64 * n}" for n in range(2)]
            st += [f"ds_read_b32 v{TG16}, v{vA_TAG}"]
            for k, x in enumerate(st):
                txt[17 + k].append(x)
        else:
            for k, f in enumerate(second_half_reads(h ^ 1)):
                gaps[17 + k].append(f)
        for m in range(32):
            sg, n = m >> 2, m & 3
            if sg == 0:
                wait(("w", n, 1))
            if n == 0:
                wait(("x", 7 if sg == 4 else sg))
            e(f"v_mfma_f32_16x16x32_bf16 {vr(A16(sg, n), 4)}, {vr(W16[h][n], 4)}, {vr(X16[sg], 4)}, {vr(A16(sg, n), 4)}")
            if m == 16:
                bar()
            for f in gaps[m]:
                issue(f)
            es(txt[m])

    raw(".p2align 3")
    lab("MAING")
    step(0, False)
    e("s_cbranch_scc1 LASTG")
    keep = list(lq.l)
    step(1, False)
    e("s_branch MAING")
    lab("LASTG")
    lq.l = keep
    step(1, True)


def glu_epilogue16():
    e(f"v_and_b32 v97, 15, v{vLANE}")
    e(f"v_bfe_u32 v98, v{vLANE}, 4, 1")
    e("v_lshlrev_b32 v97, 4, v97")
    e("v_lshl_add_u32 v97, v98, 9, v97")
    e(f"v_lshrrev_b32 v98, 5, v{vLANE}")
    e(f"v_mul_u32_u24 v98, {56 * 1024}, v98")
    e("v_add_u32 v97, v97, v98")
    e("s_mov_b32 s66, 1.0")
    e("s_mov_b32 s67, 1.0")
    e("s_waitcnt lgkmcnt(0)")
    e(f"v_readfirstlane_b32 s{sTAG}, v{TG16}")
    for sg in range(8):
        e(f"v_mul_f32 v{MR16 + 2 * sg + 1}, {NLOG2E:#x}, v{MR16 + 2 * sg + 1}")
    raw(".p2align 3")
    for sg in range(8):
        q = sg >> 1
        b, p = q & 1, q >> 1
        mr = vr(MR16 + 2 * sg, 2)
        G, U = A16(sg, 0), A16(sg, 2)
        for k in range(4):
            e(f"v_pk_fma_f32 {vr(G + 2 * k, 2)}, {vr(CG16 + 2 * k, 2)}, {mr}, {vr(G + 2 * k, 2)} op_sel_hi:[1,0,1] neg_lo:[0,1,0] neg_hi:[0,1,0]")
        for k in range(4):
            e(f"v_pk_mul_f32 {vr(G + 2 * k, 2)}, {vr(G + 2 * k, 2)}, {mr} op_sel:[0,1] op_sel_hi:[1,1]")
        for k in range(8):
            e(f"v_exp_f32 v{G + k}, v{G + k}")
        for k in range(4):
            e(f"v_pk_add_f32 {vr(G + 2 * k, 2)}, {vr(G + 2 * k, 2)}, s[66:67]")
        for k in range(8):
            e(f"v_rcp_f32 v{G + k}, v{G + k}")
        for k in range(4):
            e(f"v_pk_fma_f32 {vr(U + 2 * k, 2)}, {vr(CU16 + 2 * k, 2)}, {mr}, {vr(U + 2 * k, 2)} op_sel_hi:[1,0,1] neg_lo:[0,1,0] neg_hi:[0,1,0]")
        for k in range(4):
            e(f"v_pk_mul_f32 {vr(U + 2 * k, 2)}, {vr(U + 2 * k, 2)}, {vr(G + 2 * k, 2)}")
        o = 4 * sg
        for k in range(4):
            e(f"v_cvt_pk_bf16_f32 v{o + k}, v{U + 2 * k}, v{U + 2 * k + 1}")
        e(f"s_add_u32 s65, s{sOUT}, {(b * 2 + p) * 2 * 56 * 1024 + (sg & 1) * 256 + H_OFF}")
        if OPT.get("hw") and sg >= OPT["hw"]:
            e(f"s_waitcnt vmcnt({OPT['hw'] - 1})")
            e("s_nop 0")
        e(f"buffer_store_dwordx4 {vr(o, 4)}, v97, {srd(SRD_WS)}, s65 offen sc1")
    e(f"v_mov_b32 v43, v{TG16}")
    publish()


def glu_epilogue():
    e(f"v_lshlrev_b32 v44, 4, v{vLANE}")
    e("s_mov_b32 s66, 1.0")
    e("s_mov_b32 s67, 1.0")
    e("s_waitcnt lgkmcnt(0)")
    e(f"v_readfirstlane_b32 s{sTAG}, v43")
    for q in range(4):
        e(f"v_mul_f32 v{MR + 2 * q + 1}, {NLOG2E:#x}, v{MR + 2 * q + 1}")
    raw(".p2align 3")
    out = 0
    for q in range(4):
        b, p = q & 1, q >> 1
        mr = vr(MR + 2 * q, 2)
        for z in range(2):
            G = ACC(0, q) + 8 * z
            U = ACC(1, q) + 8 * z
            for k in range(4):
                e(f"v_pk_fma_f32 {vr(G + 2 * k, 2)}, {vr(CG + 8 * z + 2 * k, 2)}, {mr}, {vr(G + 2 * k, 2)} op_sel_hi:[1,0,1] neg_lo:[0,1,0] neg_hi:[0,1,0]")
            for k in range(4):
                e(f"v_pk_mul_f32 {vr(G + 2 * k, 2)}, {vr(G + 2 * k, 2)}, {mr} op_sel:[0,1] op_sel_hi:[1,1]")
            for k in range(8):
                e(f"v_exp_f32 v{G + k}, v{G + k}")
            for k in range(4):
                e(f"v_pk_add_f32 {vr(G + 2 * k, 2)}, {vr(G + 2 * k, 2)}, s[66:67]")
            for k in range(8):
                e(f"v_rcp_f32 v{G + k}, v{G + k}")
            for k in range(4):
                e(f"v_pk_fma_f32 {vr(U + 2 * k, 2)}, {vr(CU + 8 * z + 2 * k, 2)}, {mr}, {vr(U + 2 * k, 2)} op_sel_hi:[1,0,1] neg_lo:[0,1,0] neg_hi:[0,1,0]")
            for k in range(4):
                e(f"v_pk_mul_f32 {vr(U + 2 * k, 2)}, {vr(U + 2 * k, 2)}, {vr(G + 2 * k, 2)}")
            o = 64 + 4 * out
            out += 1
            for k in range(4):
                e(f"v_cvt_pk_bf16_f32 v{o + k}, v{U + 2 * k}, v{U + 2 * k + 1}")
            e(f"s_add_u32 s65, s{sOUT}, {((b * 2 + p) * 2 + z) * 56 * 1024 + H_OFF}")
            e(f"buffer_store_dwordx4 {vr(o, 4)}, v44, {srd(SRD_WS)}, s65 offen sc1")
    publish()


def publish():
    stamp(3)
    cm("publish: the last of the four waves whose stores have completed writes the workgroup's flag")
    e("v_mov_b32 v41, 1")
    e("v_mov_b32 v42, 0")
    e("s_mov_b64 exec, 1")
    e("s_waitcnt vmcnt(0)")
    e(f"ds_add_rtn_u32 v41, v{vA_TAG}, v41 offset:4")
    e("s_waitcnt lgkmcnt(0)")
    e("v_readfirstlane_b32 s64, v41")
    e("s_cmp_lg_u32 s64, 3")
    e("s_cbranch_scc1 HNOFLAG")
    e(f"buffer_store_dword v43, v42, {srd(SRD_WS)}, s{sFLG} offen sc1")
    lab("HNOFLAG")
    e("s_mov_b64 exec, -1")
    stamp(4)


def dft_prologue():
    e(f"v_and_b32 v2, 31, v{vLANE}")
    e("v_cvt_f32_u32 v3, v2")
    e(f"v_mul_f32 v3, {f2u(1.0 / 2048):#x}, v3")
    e(f"s_and_b32 s64, s{sWAVE}, 1")
    e(f"s_lshr_b32 s65, s{sWAVE}, 1")
    e("s_lshl_b32 s65, s65, 5")
    e("s_add_u32 s64, s64, s65")
    e(f"s_lshl_b32 s65, s{sI}, 1")
    e("s_add_u32 s64, s64, s65")
    e(f"v_lshrrev_b32 v4, 5, v{vLANE}")
    e("v_lshl_add_u32 v4, v4, 8, s64")
    e("v_cvt_f32_u32 v4, v4")
    e("v_mul_f32 v4, v3, v4")
    e("v_and_b32 v5, 1, v2")
    e("v_mul_u32_u24 v5, 0x8000, v5")
    e("v_lshl_or_b32 v5, v5, 16, v5")
    for jj in range(8):
        e(f"v_fmamk_f32 v{8 + jj}, v3, {f2u(64.0 * (8 * (jj >> 2) + (jj & 3))):#x}, v4")
    for jj in range(8):
        e(f"v_fract_f32 v{8 + jj}, v{8 + jj}")
    for jj in range(8):
        e(f"v_cos_f32 v{16 + jj}, v{8 + jj}")
        e(f"v_sin_f32 v{24 + jj}, v{8 + jj}")
    e("s_nop 0")
    for k in range(4):
        e(f"v_cvt_pk_bf16_f32 v{32 + k}, v{16 + 2 * k}, v{17 + 2 * k}")
        e(f"v_cvt_pk_bf16_f32 v{40 + k}, v{24 + 2 * k}, v{25 + 2 * k}")
    for k in range(4):
        e(f"v_xor_b32 v{36 + k}, v5, v{32 + k}")
        e(f"v_xor_b32 v{44 + k}, v5, v{40 + k}")
    e(f"s_lshl_b32 s64, s{sWAVE}, 12")
    e(f"s_add_u32 s64, s64, {MISC}")
    e(f"v_lshl_add_u32 v6, v{vLANE}, 4, s64")
    for k in range(4):
        e(f"ds_write_b128 v6, {vr(32 + 4 * k, 4)} offset:{1024 * k}")
    cm("column 0 carries the Nyquist bin: lanes 0 and 32 of wave 0 in column block 14 use (+1,-1,+1,...)")
    e(f"s_cmp_eq_u32 s{sJ}, 14")
    e("s_cselect_b32 s68, 1, 0")
    e(f"s_cmp_eq_u32 s{sWAVE}, 0")
    e("s_cselect_b32 s68, s68, 0")
    e("s_mov_b32 s69, s68")
    e(f"v_mov_b32 v{vPM}, 0xbf803f80")
    e(f"v_lshlrev_b32 v119, 4, v{vLANE}")
    e(f"v_add_u32 v119, {MISC}, v119")
    e("s_waitcnt lgkmcnt(0)")


def dft_epilogue():
    for a in range(4):
        e(f"ds_read_b128 {vr(N0 + 4 * a, 4)}, v{vD_R} offset:{512 + 32 * a}")
    e(f"v_mov_b32 v115, v{vD_R}")
    e("s_waitcnt lgkmcnt(0)")
    e(f"v_readfirstlane_b32 s{sTAG}, v{vD_TAG}")
    e("v_cndmask_b32 v118, v118, 0, s[68:69]")

    def TS(q):
        return (120 if q & 1 else 96), (104 if q == 0 else TW(q - 1, 0, 0))

    def valu(q):
        r_ = []
        for mat, T, cs in ((0, TS(q)[0], 118), (1, TS(q)[1], 119)):
            A = ACC(mat, q)
            if q == 0:
                for r in range(0, 16, 2):
                    r_.append(f"v_pk_mul_f32 {vr(A + r, 2)}, {vr(A + r, 2)}, {vr(R0 + r, 2)}")
            else:
                for r in range(16):
                    r_.append(f"v_mul_f32 v{A + r}, v{A + r}, v{R0 + r}")
            if mat and q < 3:
                r_[-1] = [r_[-1]] + [f"ds_read_b128 {vr(R0 + 4 * a, 4)}, v115 offset:{128 * (q + 1) + 32 * a}" for a in range(4)]
            if OPT.get("nocs"):
                pass
            elif q == 0:
                sel = "op_sel:[0,1,0] op_sel_hi:[1,1,1]" if mat else "op_sel_hi:[1,0,1]"
                for r in range(0, 16, 2):
                    r_.append(f"v_pk_fma_f32 {vr(A + r, 2)}, {vr(N0 + r, 2)}, v[118:119], {vr(A + r, 2)} {sel}")
            else:
                for r in range(16):
                    r_.append(f"v_fmac_f32 v{A + r}, v{N0 + r}, v{cs}")
            if mat and q < 3 and not OPT.get("nocs"):
                r_[-1] = [r_[-1]] + [f"ds_read_b128 {vr(N0 + 4 * a, 4)}, v115 offset:{512 + 128 * (q + 1) + 32 * a}" for a in range(4)]
            for k in range(8):
                r_.append(f"v_cvt_pk_bf16_f32 v{T + k}, v{A + 2 * k}, v{A + 2 * k + 1}")
        return r_

    def mfmas(q):
        ta, tb = TS(q)
        zr, zi = ACC(0, q), ACC(1, q)
        seq = [(zr, 1, 0, tb), (zi, 0, 0, tb), (zr, 1, 1, tb + 4), (zi, 0, 1, tb + 4),
               (zr, 0, 0, ta), (zr, 0, 1, ta + 4), (zi, 1, 0, ta), (zi, 1, 1, ta + 4)]
        return [f"v_mfma_f32_32x32x16_bf16 {vr(d, 16)}, {vr(TW(q, cs, z), 4)}, {vr(b, 4)}, {'0' if k < 2 else vr(d, 16)}"
                for k, (d, cs, z, b) in enumerate(seq)]

    for q in range(5):
        v_ = valu(q) if q < 4 else []
        m_ = mfmas(q - 1) if q else []
        if 0 < q < 4:
            e("s_waitcnt lgkmcnt(0)")
        if q:
            e("s_nop 1")
        per = len(v_) // 8
        for k in range(8):
            if m_:
                e(m_[k])
                if k in (3, 4):
                    for x in range(4):
                        rg = TW(q - 1, 1, k - 3) + x
                        e(f"v_xor_b32 v{rg}, 0x80008000, v{rg}")
            if OPT.get("nocs") and q:
                cut = [0, 6, 12, 18, 24, 30, 35, 40, 48]
                es(v_[cut[k]:cut[k + 1]])
            else:
                es(v_[k * per:(k + 1) * per])
    e(f"v_and_b32 v112, 31, v{vLANE}")
    e(f"v_lshrrev_b32 v114, 5, v{vLANE}")
    e("v_lshlrev_b32 v112, 4, v112")
    e("v_lshl_add_u32 v125, v114, 18, v112")
    e("s_nop 7")
    for r in range(16):
        for q in range(4):
            e(f"v_cvt_pk_bf16_f32 v{4 * r + q}, v{ACC(0, q) + r}, v{ACC(1, q) + r}")
        if r < OPT["zs0"] or not OPT["zdef"]:
            e(f"s_add_u32 s65, s{sOUT}, {(8 * (r >> 2) + (r & 3)) * 65536}")
            if OPT.get("zw") and r >= OPT["zw"]:
                e(f"s_waitcnt vmcnt({OPT['zw'] - 1})")
            e(f"buffer_store_dwordx4 {vr(4 * r, 4)}, v125, {srd(SRD_WS)}, s65 offen sc1")
    stamp(3)
    e(f"v_mov_b32 v64, {CNTL}")
    e("v_mov_b32 v65, 1")
    e("s_mov_b64 exec, 1")
    e("ds_add_u32 v64, v65")
    e("s_mov_b64 exec, -1")
    stamp(4)
    if OPT["zdef"]:
        phase2(True)
    else:
        e("s_branch PHASE2G")


def phase2(dft):
    OWN, OTH, Y, EF, HR, ET = 128, 144, 160, 32, 176, 248
    XR, vR = 80, 88
    W2 = [[96, 100], [104, 108], [240, 244]]
    WD = [112, 113]
    vH, vXO, vZA = 114, 115, 116
    vEA, vEB, vES = 122, 123, 124
    ZF = 0
    assert D <= 16
    vm, lq = Q(), Q()
    tg = "D" if dft else "G"
    lab("PHASE2" + tg)
    stamp(5)
    e(f"v_and_b32 v89, 31, v{vLANE}")
    e(f"v_lshrrev_b32 v90, 5, v{vLANE}")
    e(f"v_lshlrev_b32 v{vXO}, 16, v89")
    e(f"v_lshl_add_u32 v{vXO}, v90, 5, v{vXO}")
    def xloads():
        vm.add("x0", f"buffer_load_dwordx4 {vr(XR, 4)}, v{vXO}, {srd(SRD_X)}, s{sXO} offen")
        vm.add("x1", f"buffer_load_dwordx4 {vr(XR + 4, 4)}, v{vXO}, {srd(SRD_X)}, s{sXO} offen offset:16")

    if not OPT["xlate"]:
        xloads()
    e(f"v_bfe_u32 v{ET}, v{vLANE}, 2, 2")
    e(f"v_lshl_add_u32 v92, v90, 2, v{ET}")
    e(f"s_lshl_b32 s68, s{sKH}, {10 if OPT['m16'] else 11}")
    e("v_lshl_add_u32 v92, v92, 7, s68")
    e(f"v_and_b32 v93, 1, v{vLANE}")
    e("v_lshlrev_b32 v93, 2, v93")
    e(f"v_bfe_u32 v{ET + 1}, v{vLANE}, 4, 1")
    e(f"v_lshl_add_u32 v93, v{ET + 1}, 1, v93")
    e(f"v_bfe_u32 v{ET + 1}, v{vLANE}, 1, 1")
    e(f"v_add_u32 v93, v93, v{ET + 1}")
    e("v_lshl_add_u32 v92, v93, 3, v92")
    e(f"v_lshrrev_b32 v{ET}, 1, v{ET}")
    e(f"v_xor_b32 v{ET}, s{sKH}, v{ET}")
    e(f"v_lshl_add_u32 v{WD[0]}, v{ET}, 6, v92")
    e(f"v_xor_b32 v{WD[1]}, 64, v{WD[0]}")
    e(f"v_lshlrev_b32 v{vH}, 4, v{vLANE}")
    e("v_lshlrev_b32 v93, 4, v89")
    bar("BW")
    stamp(6)
    nh = [0]

    def hmore(lim, cnt):
        while cnt and nh[0] < min(56, lim):
            v = nh[0]
            if v and v & 7 == 0:
                e(f"v_add_u32 v{vH}, 8192, v{vH}")
            vm.add(("h", v), f"buffer_load_dwordx4 {vr(HR + 4 * (v % D), 4)}, v{vH}, {srd(SRD_WS)}, s{48 + (v & 7)} offen sc1")
            nh[0] += 1
            cnt -= 1

    base = [0]

    def wreads(v):
        a = wslot(v) * 4096
        if (a & ~0xFFFF) != base[0]:
            d = (a & ~0xFFFF) - base[0]
            base[0] = a & ~0xFFFF
            es([f"v_add_u32 v{WD[c]}, {d & 0xffffffff:#x}, v{WD[c]}" for c in range(2)])
        for c in range(2):
            for k in range(2):
                lq.add(("w", v, c, k), f"ds_read_b64_tr_b16 {vr(W2[v % 3][c] + 2 * k, 2)}, v{WD[c]} offset:{(a & 0xFFFF) + (2048 if OPT['m16'] else 1024) * k}")

    for v in range(OPT["D0"]):
        hmore(56, 1)
        if v == 1:
            wreads(0)
            wreads(1)
    vm.add("r", f"buffer_load_dword v{vR}, v93, {srd(SRD_WS)}, s{sRO} offen offset:4 sc1")

    fill = [[f"s_cmp_ge_u32 s{sCB}, 4", "s_cselect_b64 s[70:71], -1, 0"],
            f"s_lshl_b32 s68, s{sKH}, 9", f"s_add_u32 s68, s68, {ZL}", f"v_lshl_add_u32 v{vZA}, v89, 4, s68",
            f"v_lshl_add_u32 v{vZA}, v90, 10, v{vZA}",
            f"v_lshl_add_u32 v91, v89, 1, s{sP}", f"v_sub_u32 v92, s{sC0}, v91", "v_cndmask_b32 v91, v91, v92, s[70:71]",
            f"v_and_b32 v{vES}, 1, v91", f"v_mul_u32_u24 v{vES}, 0x8000, v{vES}", f"v_lshl_or_b32 v{vES}, v{vES}, 16, v{vES}",
            "v_cvt_f32_u32 v91, v91", f"v_mul_f32 v{vEA}, {f2u(1.0 / 64):#x}, v91",
            "v_lshlrev_b32 v92, 1, v90", "v_cvt_f32_u32 v92, v92", f"v_mul_f32 v{vEB}, v{vEA}, v92"]
    for sg in range(8):
        for b in range(2):
            fill.append(f"v_fmamk_f32 v{ET + b}, v{vEA}, {f2u(float(4 * sg + b)):#x}, v{vEB}")
        for b in range(2):
            fill.append(f"v_fract_f32 v{ET + b}, v{ET + b}")
        for b in range(2):
            fill.append(f"v_cos_f32 v{ET + 2 + b}, v{ET + b}")
            fill.append(f"v_sin_f32 v{ET + 4 + b}, v{ET + b}")
        fill.append([f"v_cvt_pk_bf16_f32 v{EF + 4 * sg}, v{ET + 2}, v{ET + 4}",
                     f"v_cvt_pk_bf16_f32 v{EF + 4 * sg + 1}, v{ET + 3}, v{ET + 5}"])
        for b in range(2):
            fill.append(f"v_xor_b32 v{EF + 4 * sg + 2 + b}, v{vES}, v{EF + 4 * sg + b}")
    P2BAR = {55 - NRES: "BP1", NRES - 2: "BP2", OPT["vz0"]: "BZ0"}
    assert NRES - 2 < OPT["vz0"] < 55
    zs = list(range(OPT["zs0"], 16)) if dft else []
    shared = not OPT["zdef"]
    zpub = not (dft or shared)

    def zpublish():
        cm("spectral workgroups: this wave's Z stores have completed; the last wave publishes")
        cm("(that store is not counted in the waits below: they only get stricter)")
        if shared:
            e(f"s_cmp_eq_u32 s{sDFT}, 0")
            e("s_cbranch_scc1 NOZF")
        e(f"v_mov_b32 v94, {TAGL}")
        e("v_mov_b32 v95, 1")
        e("s_mov_b64 exec, 1")
        e("ds_add_rtn_u32 v95, v94, v95 offset:8")
        e(f"v_mov_b32 v126, s{sTAG}")
        e("v_mov_b32 v127, 0")
        e("s_waitcnt lgkmcnt(0)")
        e("v_readfirstlane_b32 s64, v95")
        e("s_cmp_lg_u32 s64, 3")
        e("s_cbranch_scc1 NOZF1")
        e(f"buffer_store_dword v126, v127, {srd(SRD_WS)}, s{sFLG} offen sc1")
        lab("NOZF1")
        e("s_mov_b64 exec, -1")
        lab("NOZF")

    for v in range(56):
        e(f"s_waitcnt vmcnt({vm.younger(('h', v))}) lgkmcnt({lq.younger(('w', v, 1, 1))})")
        h = vr(HR + 4 * (v % D), 4)
        st = v % 3
        e(f"v_mfma_f32_32x32x16_bf16 {vr(OWN, 16)}, {vr(W2[st][0], 4)}, {h}, {'0' if v == 0 else vr(OWN, 16)}")
        if v in P2BAR:
            bar(P2BAR[v])
        if v + 2 < 56:
            wreads(v + 2)
        e(f"v_mfma_f32_32x32x16_bf16 {vr(OTH, 16)}, {vr(W2[st][1], 4)}, {h}, {'0' if v == 0 else vr(OTH, 16)}")
        if PROF and v % 4 == 0:
            e("s_memtime s[78:79]")
        if PROF and v % 4 == 2:
            e(f"v_writelane_b32 v{vLOOPST}, s78, {16 + v // 4}")
        if not zpub and not zs and v >= 1 and (("zs", 15) not in vm.l or vm.l.index(("h", v)) > vm.l.index(("zs", 15))):
            assert v < OPT["vz0"]
            zpublish()
            zpub = True
        if zs and v % OPT["zdef"] == 0:
            r = zs.pop(0)
            e(f"s_add_u32 s65, s{sOUT}, {(8 * (r >> 2) + (r & 3)) * 65536}")
            vm.add(("zs", r), f"buffer_store_dwordx4 {vr(4 * r, 4)}, v125, {srd(SRD_WS)}, s65 offen sc1")
        hmore(v + 1 + D, 2)
        if (nh[0] == 56 or (OPT["xlate"] == 2 and v == OPT.get("xv", 8))) and "x0" not in vm.l:
            xloads()
        if len(fill) > 88 or not zs:
            n = 4 if v < 32 else 6
            es(fill[:n])
            del fill[:n]
    assert not fill and zpub
    stamp(7)

    def ymf(sg):
        e(f"v_mfma_f32_32x32x16_bf16 {vr(Y, 16)}, {vr(ZF + 4 * sg, 4)}, {vr(EF + 4 * sg, 4)}, {'0' if sg == 0 else vr(Y, 16)}")

    cm("cross-wave reduction over the two K halves")
    XU, PT, TT = 176, 192, 208
    e(f"s_lshl_b32 s68, s{sWAVE}, 12")
    e(f"s_add_u32 s68, s68, {RED}")
    e(f"v_lshl_add_u32 v91, v{vLANE}, 4, s68")
    e("v_xor_b32 v92, 8192, v91")
    e(f"v_mul_f32 v{vR + 1}, {NLOG2E:#x}, v{vR}")
    e("v_mov_b32 v93, 0xffff0000")
    e("s_waitcnt vmcnt(0)")
    for k in range(3):
        e(f"v_lshlrev_b32 v{XU + 2 * k}, 16, v{XR + k}")
        e(f"v_and_b32 v{XU + 2 * k + 1}, v93, v{XR + k}")
    for a in range(4):
        e(f"ds_write_b128 v91, {vr(OTH + 4 * a, 4)} offset:{1024 * a}")
    for k in range(3, 8):
        e(f"v_lshlrev_b32 v{XU + 2 * k}, 16, v{XR + k}")
        e(f"v_and_b32 v{XU + 2 * k + 1}, v93, v{XR + k}")
    e("s_waitcnt lgkmcnt(0)")
    bar("BR")
    for a in range(4):
        e(f"ds_read_b128 {vr(PT + 4 * a, 4)}, v92 offset:{1024 * a}")
    for sg in range(8):
        e(f"ds_read_b128 {vr(ZF + 4 * sg, 4)}, v{vZA} offset:{2048 * sg}")
    e("s_waitcnt lgkmcnt(8)")
    rr = vr(vR, 2)
    raw(".p2align 3")
    for k in range(8):
        e(f"v_pk_add_f32 {vr(OWN + 2 * k, 2)}, {vr(OWN + 2 * k, 2)}, {vr(PT + 2 * k, 2)}")
    for k in range(8):
        e(f"v_pk_mul_f32 {vr(TT + 2 * k, 2)}, {vr(OWN + 2 * k, 2)}, {rr} op_sel:[0,1] op_sel_hi:[1,1]")
    for k in range(8):
        e(f"v_pk_mul_f32 {vr(OWN + 2 * k, 2)}, {vr(OWN + 2 * k, 2)}, {rr} op_sel_hi:[1,0]")
    e("s_waitcnt lgkmcnt(0)")
    for k in range(16):
        if k % 3 == 0:
            ymf(k // 3)
        e(f"v_exp_f32 v{TT + k}, v{TT + k}")
    for k in range(16):
        if k in (2, 8):
            ymf(6 + (k >> 3))
        e(f"v_add_f32 v{TT + k}, 1.0, v{TT + k}")
    for k in range(16):
        e(f"v_rcp_f32 v{TT + k}, v{TT + k}")
    raw(".p2align 3")
    for k in range(8):
        e(f"v_pk_mul_f32 {vr(OWN + 2 * k, 2)}, {vr(OWN + 2 * k, 2)}, {vr(TT + 2 * k, 2)}")
    for k in range(8):
        e(f"v_pk_fma_f32 {vr(OWN + 2 * k, 2)}, {vr(OWN + 2 * k, 2)}, {vr(Y + 2 * k, 2)}, {vr(XU + 2 * k, 2)}")
    for k in range(8):
        e(f"v_cvt_pk_bf16_f32 v{TT + k}, v{OWN + 2 * k}, v{OWN + 2 * k + 1}")
    of = {0: "", 1: " nt", 2: " sc1", 3: " sc0"}[OPT.get("ost", 0)]
    if OPT.get("oswap"):
        cm("lanes l and l+32 hold the two halves of a 64-byte row piece: trade registers so that each store writes whole pieces")
        e("s_nop 1")
        for k in range(4):
            e(f"v_permlane32_swap_b32 v{TT + 4 + k}, v{TT + k}") if False else None
        for k in range(4):
            e(f"v_permlane32_swap_b32 v{TT + k}, v{TT + 4 + k}")
    e(f"buffer_store_dwordx4 {vr(TT, 4)}, v{vXO}, {srd(SRD_OUT)}, s{sXO} offen{of}")
    e(f"buffer_store_dwordx4 {vr(TT + 4, 4)}, v{vXO}, {srd(SRD_OUT)}, s{sXO} offen offset:16{of}")
    stamp_flush(8, 64, True)
    if OPT.get("wbl"):
        e("s_waitcnt vmcnt(0)")
        e("buffer_wbl2 sc1")
        e("s_waitcnt vmcnt(0)")
    if OPT.get("rabs"):
        lab("DLY" + tg)
        e("s_memrealtime s[82:83]")
        e("s_waitcnt lgkmcnt(0)")
        e("s_sub_u32 s82, s82, s98")
        e(f"s_cmp_lt_u32 s82, {OPT['rabs']}")
        e("s_cbranch_scc1 DLY" + tg)
    e("s_endpgm")


def cwave():
    section("C0")
    lab("CWAVE")
    cm("================ C waves: matrix work ================")
    e(f"s_setprio {OPT.get('cp', 2)}")
    ids1()
    e(f"v_mov_b32 v{vLANE}, v0")
    for k in range(4):
        e(f"v_mov_b32 v{8 + k}, 0")
    e("v_and_b32 v2, 31, v0")
    e("v_lshrrev_b32 v3, 5, v0")
    for k in range(8):
        e(f"v_mfma_f32_32x32x16_bf16 {vr(128 + 16 * k, 16)}, v[8:11], v[8:11], 0")
    e("v_bfe_u32 v4, v0, 1, 3")
    e("v_lshlrev_b32 v5, 7, v2")
    e(f"v_add_u32 v5, {SLOT + 32768}, v5")
    for u in range(4):
        e(f"v_add_u32 v6, {2 * u}, v3")
        e("v_xor_b32 v6, v6, v4")
        e(f"v_lshl_add_u32 v{XA[u]}, v6, 4, v5")
    e("v_bfe_u32 v4, v0, 2, 2")
    e(f"v_lshlrev_b32 v{WA}, 12, v3")
    e(f"v_lshl_add_u32 v{WA}, v4, 8, v{WA}")
    e(f"v_xor_b32 v4, s{sWAVE}, v4")
    e(f"v_lshl_add_u32 v{WA}, v4, 6, v{WA}")
    e("v_bfe_u32 v4, v0, 4, 1")
    if OPT["m16"]:
        e("v_xor_b32 v4, v4, v3")
    e(f"v_lshl_add_u32 v{WA}, v4, 5, v{WA}")
    e("v_and_b32 v4, 3, v0")
    e(f"v_lshl_add_u32 v{WA}, v4, 3, v{WA}")
    e(f"v_add_u32 v{WA}, {SLOT}, v{WA}")
    e(f"s_lshl_b32 s64, s{sWAVE}, 7")
    e(f"s_add_u32 s64, s64, {CSL}")
    e(f"v_lshl_add_u32 v{vA_CS}, v3, 4, s64")
    e(f"v_lshlrev_b32 v{vA_MR}, 3, v2")
    e(f"v_add_u32 v{vA_MR}, {MRP}, v{vA_MR}")
    if not OPT["m16"]:
        e(f"v_mov_b32 v{vA_TAG}, {TAGL}")
    e(f"v_lshl_add_u32 v{vD_CS}, v2, 2, s64")
    e(f"v_lshlrev_b32 v{vD_R}, 4, v3")
    e(f"v_add_u32 v{vD_R}, {RL}, v{vD_R}")
    e(f"v_mov_b32 v{vD_TAG}, {TAGL}")
    e("s_waitcnt lgkmcnt(0)")
    ids2()
    e(f"s_and_b32 s{sP}, s{sWAVE}, 1")
    e(f"s_lshr_b32 s{sKH}, s{sWAVE}, 1")
    e(f"s_lshl_b32 s68, s{sP}, 5")
    e(f"s_add_u32 s68, s68, s{sT1}")
    e(f"s_lshl_b32 s{sXO}, s68, 10")
    e(f"s_lshl_b32 s68, s{sCB}, 7")
    e(f"s_add_u32 s{sXO}, s{sXO}, s68")
    e(f"s_lshl_b32 s68, s{sKH}, 6")
    e(f"s_add_u32 s{sXO}, s{sXO}, s68")
    e(f"s_cmp_eq_u32 s{sT1}, 0")
    e(f"s_cselect_b32 s{sC0}, 64, 63")
    e(f"s_lshr_b32 s68, s{sT1}, 1")
    e("s_lshl_b32 s68, s68, 11")
    e(f"s_and_b32 s70, s{sT1}, 1")
    e(f"s_lshl_b32 s71, s{sP}, 1")
    e("s_add_u32 s70, s70, s71")
    e("s_lshl_b32 s70, s70, 9")
    e("s_add_u32 s68, s68, s70")
    e(f"s_add_u32 s{sRO}, s68, {ST_OFF}")
    e(f"s_lshl_b32 s68, s{sT1}, 2")
    e("s_add_u32 s68, s68, s71")
    e(f"s_add_u32 s68, s68, s{sKH}")
    e(f"s_mul_i32 s68, s68, {56 * 1024}")
    rot_offsets(10, "s68")
    if OPT["spoll"]:
        e(f"s_lshl_b32 s64, s{sI}, 7")
        e(f"s_lshl_b32 s65, s{sJ}, 2")
        e("s_add_u32 s64, s64, s65")
        e(f"s_add_u32 s{sFLG}, s64, {FLH}")
    else:
        e(f"s_lshl_b32 s64, s{sI}, 4")
        e(f"s_add_u32 s64, s64, s{sJ}")
        e("s_lshl_b32 s64, s64, 7")
        e(f"s_add_u32 s{sFLG}, s64, {FLH}")
    e(f"s_cmp_eq_u32 s{sDFT}, 1")
    e("s_cbranch_scc1 CDFT")
    e(f"s_lshl_b32 s64, s{sJ}, 2")
    e(f"s_add_u32 s64, s64, s{sWAVE}")
    e("s_lshl_b32 s64, s64, 10")
    e(f"s_mul_i32 s65, s{sI}, {2 * 4 * 56 * 1024}")
    e(f"s_add_u32 s{sOUT}, s64, s65")
    if OPT["m16"]:
        e("v_and_b32 v2, 15, v0")
        e("v_lshrrev_b32 v3, 4, v0")
        e("v_lshrrev_b32 v4, 1, v2")
        e("v_xor_b32 v4, v4, v3")
        e("v_lshlrev_b32 v5, 7, v2")
        e(f"v_lshl_add_u32 v{XA16[0]}, v4, 4, v5")
        e(f"v_add_u32 v{XA16[0]}, {SLOT + 32768}, v{XA16[0]}")
        e(f"v_xor_b32 v{XA16[1]}, 64, v{XA16[0]}")
        e("v_bfe_u32 v4, v0, 2, 2")
        e("v_lshlrev_b32 v5, 12, v3")
        e("v_lshl_add_u32 v5, v4, 8, v5")
        e(f"v_xor_b32 v4, s{sWAVE}, v4")
        e("v_lshl_add_u32 v5, v4, 6, v5")
        e("v_and_b32 v4, 1, v3")
        e("v_lshl_add_u32 v5, v4, 5, v5")
        e("v_and_b32 v4, 3, v0")
        e("v_lshl_add_u32 v5, v4, 3, v5")
        e(f"v_add_u32 v{WA16[0]}, {SLOT}, v5")
        e(f"v_xor_b32 v{WA16[1]}, 32, v{WA16[0]}")
        e(f"s_lshl_b32 s64, s{sWAVE}, 7")
        e(f"s_add_u32 s64, s64, {CSL}")
        e(f"v_lshl_add_u32 v{vB_CS}, v3, 4, s64")
        e(f"v_lshlrev_b32 v{vB_MR}, 3, v2")
        e(f"v_add_u32 v{vB_MR}, {MRP}, v{vB_MR}")
        e(f"v_mov_b32 v{vA_TAG}, {TAGL}")
    e("s_branch CGLU")
    section("CG")
    lab("CGLU")
    stamp(1)
    bar("B0")
    if OPT["m16"]:
        mainloop16()
        stamp(2)
        glu_epilogue16()
    else:
        mainloop(False)
        stamp(2)
        glu_epilogue()
    phase2(False)
    section("CD")
    lab("CDFT")
    e(f"s_lshl_b32 s64, s{sI}, 12")
    e(f"s_and_b32 s65, s{sJ}, 1")
    e("s_lshl_b32 s66, s65, 11")
    e("s_add_u32 s64, s64, s66")
    e(f"s_lshl_b32 s66, s{sWAVE}, 9")
    e("s_add_u32 s64, s64, s66")
    e(f"s_add_u32 s{sOUT}, s64, {Z_OFF}")
    if OPT["spoll"]:
        e(f"s_lshl_b32 s64, s{sI}, 1")
        e("s_add_u32 s64, s64, s65")
        e("s_lshl_b32 s64, s64, 2")
        e(f"s_add_u32 s{sFLG}, s64, {FLZ}")
    dft_prologue()
    stamp(1)
    bar("B0")
    for k in range(16):
        e(f"ds_read_b128 {vr(4 * k, 4)}, v119 offset:{1024 * k}")
    mainloop(True)
    stamp(2)
    dft_epilogue()


hdr = open("cdna_kernels/" + NAME + ".s.ref").read().split("\n")
head = [l for l in hdr if l.startswith(";") and "@launch" not in l and "Override launch" not in l and "grid=ceil" not in l]
out = head + ["; @launch grid=(256,1,1) block=(512,1,1) lds=163840",
              '.amdgcn_target "amdgcn-amd-amdhsa--gfx950"', ".text", f".globl {K}"]
if OPT["al"]:
    out.append(".p2align 12")
out += [".p2align 8", f".type {K},@function", f"{K}:"]
entry()
l2wave()
l3wave()
l01wave()
cwave()
for name, align in (("A", 0), ("A2", 0), ("C0", 0), ("L2", 0), ("L3", 0), ("CG", 12 if OPT["al"] else 0), ("CD", 12 if OPT["al"] else 0)):
    if align:
        out.append(f".p2align {align}")
    out += SEC[name]
out += ["END:", "    s_endpgm"]
out += ['.section .rodata,"a"', ".p2align 6", f".amdhsa_kernel {K}", "  .amdhsa_next_free_vgpr 256", "  .amdhsa_next_free_sgpr 102",
        "  .amdhsa_accum_offset 256", "  .amdhsa_group_segment_fixed_size 0", "  .amdhsa_kernarg_size 96",
        "  .amdhsa_user_sgpr_count 2", "  .amdhsa_user_sgpr_kernarg_segment_ptr 1", "  .amdhsa_system_sgpr_workgroup_id_x 1",
        ".end_amdhsa_kernel", ""]
open(sys.argv[1], "w").write("\n".join(out))
```

```python
import struct
import sys

NAME = "recurrent_scan__spectral_fnet__glu_gated_glu__prompt"
OPT = dict(prof=0, D=12, D0=6, pre=2, preb=1, pb2=5, prec=3, th=4, trk=22, u1=2, u2=8, pa=47, dtr=22, dth=4, dpa=47, slp=6, spin=200000,
           vz0=44, xa0=1, na=3, xb0=8, nb=7, xe=16, xt=4, numa=0, pol=-1, user=0)
for a in sys.argv[2:]:
    k, v = a.split("=")
    OPT[k] = int(v)
LITE = OPT["prof"] == 3
PROF = 0 if LITE else OPT["prof"]
K = NAME + "_kernel"
D = OPT["D"]

H_OFF, Z_OFF, ST_OFF, CS_OFF = 0, 0x800000, 0xA00000, 0xA10000
FLH, PROF_OFF, WS_SIZE = 0xA50000, 0xA60000, 0xB00000
PROBE = 0x1C0000
SLOT = 49152
MISC = 147456
CSL, MRP, RL, TAGL, CNTL, R2L = MISC, MISC + 1024, MISC + 2048, MISC + 3072, MISC + 3076, MISC + 3328
RED = 20 * 4096
ZL = 24 * 4096
NRES = 39
NST = 56 - NRES
NUMA = OPT['numa']
HB = 16384 if NUMA else 8192
HZ = 7 * HB
NLOG2E = 0xBFB8AA3B
OOB = 0x40000000


def wslot(v):
    return v if v < 36 else v + 1 if v < NRES else v - NRES


def f2u(x):
    return struct.unpack("<I", struct.pack("<f", x))[0]


SEC = {}
CUR = [None, False]


def section(n):
    CUR[0] = SEC.setdefault(n, [])


def e(s):
    CUR[0].append("    " + s)


def es(lst):
    for x in lst:
        for y in (x if isinstance(x, list) else [x]):
            e(y)


def lab(s):
    CUR[0].append(s + ":")


def raw(s):
    CUR[0].append(s)


def cm(s):
    CUR[0].append("    ; " + s)


def vr(a, n):
    return f"v[{a}:{a + n - 1}]"


def srd(n):
    return f"s[{n}:{n + 3}]"


class Q:
    def __init__(self):
        self.l = []

    def add(self, tag, txt=None):
        self.l.append(tag)
        if txt:
            e(txt)

    def younger(self, tag):
        return len(self.l) - 1 - self.l.index(tag)


SRD_X, SRD_WD, SRD_WS, SRD_OUT, SRD_DBG, SRD_WM = 4, 16, 20, 24, 28, 32
sWAVE, sI, sJ, sT1, sCB, sRS, sCOL, sDFT, sTAG, sIDX = 36, 37, 38, 39, 40, 41, 42, 43, 44, 45
sSTAMP = 80
vLOOPST, vLANE = 121, 117
uid = [0]


def stamp(i):
    if PROF:
        e(f"{'s_memrealtime' if PROF == 2 else 's_memtime'} s[{sSTAMP + 2 * i}:{sSTAMP + 2 * i + 1}]")


def stamp_flush(n, vt, cw):
    if not (PROF or (LITE and cw)):
        return
    e("s_waitcnt lgkmcnt(0)")
    e("s_lshl_b32 s78, s2, 3")
    e(f"s_add_u32 s78, s78, s{sWAVE}")
    e("s_lshl_b32 s78, s78, 8")
    e(f"s_add_u32 s78, s78, {PROF_OFF}")
    e(f"v_mov_b32 v{vt + 8}, 0")
    if PROF:
        for i in range(8):
            e(f"v_mov_b32 v{vt + i}, s{sSTAMP + 2 * i}" if i < n else f"v_mov_b32 v{vt + i}, 0")
        e(f"buffer_store_dwordx4 {vr(vt, 4)}, v{vt + 8}, {srd(SRD_WS)}, s78 offen")
        e(f"buffer_store_dwordx4 {vr(vt + 4, 4)}, v{vt + 8}, {srd(SRD_WS)}, s78 offen offset:16")
        if cw:
            e(f"v_lshlrev_b32 v{vt + 9}, 2, v{vLANE}")
            e(f"v_min_u32 v{vt + 9}, 124, v{vt + 9}")
            e(f"buffer_store_dword v{vLOOPST}, v{vt + 9}, {srd(SRD_WS)}, s78 offen offset:64")
    e("s_memrealtime s[76:77]")
    e("s_waitcnt lgkmcnt(0)")
    e(f"v_mov_b32 v{vt + 10}, s98")
    e(f"v_mov_b32 v{vt + 11}, s76")
    e(f"buffer_store_dwordx2 {vr(vt + 10, 2)}, v{vt + 8}, {srd(SRD_WS)}, s78 offen offset:32")


def bar(name=""):
    e("s_barrier" + (f"  ; {name}" if name else ""))


def poll_issue(vdst, vaddr, ssoff, srdn):
    e(f"buffer_load_dword v{vdst}, v{vaddr}, {srd(srdn)}, {ssoff} offen sc1")


def poll_wait(vdst, vaddr, ssoff, srdn, cond_tag=True, first_wait=0):
    uid[0] += 1
    k = uid[0]
    e(f"s_mov_b32 s75, {OPT['spin']}")
    e(f"s_waitcnt vmcnt({first_wait})")
    lab(f"POLL{k}")
    e(f"v_cmp_ne_u32 vcc, s{sTAG}, v{vdst}" if cond_tag else f"v_cmp_eq_u32 vcc, 0, v{vdst}")
    e("s_nop 1")
    e("s_cmp_eq_u64 vcc, 0")
    e(f"s_cbranch_scc1 POLLD{k}")
    if OPT["slp"]:
        e(f"s_sleep {OPT['slp']}")
    poll_issue(vdst, vaddr, ssoff, srdn)
    e("s_sub_u32 s75, s75, 1")
    e("s_cmp_lg_u32 s75, 0")
    e("s_waitcnt vmcnt(0)")
    e(f"s_cbranch_scc1 POLL{k}")
    lab(f"POLLD{k}")


def wait_c_done():
    uid[0] += 1
    k = uid[0]
    e(f"v_mov_b32 v7, {CNTL}")
    e(f"s_mov_b32 s75, {OPT['spin']}")
    lab(f"CW{k}")
    e("ds_read_b32 v8, v7")
    e("s_waitcnt lgkmcnt(0)")
    e("v_readfirstlane_b32 s76, v8")
    e("s_sub_u32 s75, s75, 1")
    e("s_cmp_eq_u32 s75, 0")
    e(f"s_cbranch_scc1 CWD{k}")
    e("s_sleep 1")
    e("s_cmp_lt_u32 s76, 4")
    e(f"s_cbranch_scc1 CW{k}")
    lab(f"CWD{k}")


def ids1():
    e("s_and_b32 s64, s2, 1")
    e("s_lshl_b32 s64, s64, 3")
    e(f"s_and_b32 s65, s{sIDX}, 7")
    e(f"s_add_u32 s{sI}, s64, s65")
    e("s_bfe_u32 s64, s2, 0x20001")
    e(f"s_lshr_b32 s67, s{sIDX}, 3")
    e("s_mul_i32 s65, s64, 3")
    e("s_add_u32 s65, s65, s67")
    e("s_add_u32 s66, s64, 14")
    e("s_cmp_eq_u32 s67, 3")
    e("s_cselect_b32 s65, s66, s65")
    e("s_lshl_b32 s66, s64, 2")
    e("s_add_u32 s66, s66, s67")
    e("s_sub_u32 s66, s66, 2")
    e("s_cmp_lt_u32 s64, 2")
    e(f"s_cselect_b32 s{sJ}, s65, s66")
    e(f"s_lshl_b32 s{sCOL}, s{sJ}, 8")
    e(f"s_sub_u32 s64, s{sCOL}, {14 * 256}")
    e(f"s_movk_i32 s{sRS}, 3584")
    e(f"s_cmp_ge_u32 s{sJ}, 14")
    e(f"s_cselect_b32 s{sDFT}, 1, 0")
    e(f"s_cselect_b32 s{sRS}, 1024, s{sRS}")
    e(f"s_cselect_b32 s{sCOL}, s64, s{sCOL}")
    e(f"s_lshl_b32 s34, s{sRS}, 9")
    e("s_mov_b32 s35, 0x20000")
    e("s_mov_b32 s6, 0x200000")
    e("s_mov_b32 s7, 0x20000")


def wm_select(scc_instr):
    e(f"s_cmp_eq_u32 s{sDFT}, 1")
    e("s_cselect_b64 s[8:9], s[48:49], s[52:53]")
    e("s_cselect_b64 s[12:13], s[50:51], s[54:55]")
    e(scc_instr)
    e("s_cselect_b64 s[32:33], s[12:13], s[8:9]")


def srds2():
    e("s_mov_b64 s[16:17], s[56:57]")
    e(f"s_mov_b32 s18, {1792 * 1024}")
    e("s_mov_b32 s19, 0x20000")
    e("s_mov_b64 s[20:21], s[62:63]")
    e(f"s_mov_b32 s22, {WS_SIZE}")
    e("s_mov_b32 s23, 0x20000")
    e("s_mov_b64 s[24:25], s[58:59]")
    e("s_mov_b32 s26, 0x200000")
    e("s_mov_b32 s27, 0x20000")
    e("s_mov_b64 s[28:29], s[60:61]")
    e("s_mov_b32 s30, 256")
    e("s_mov_b32 s31, 0x20000")


def ids2():
    return [f"s_add_u32 s46, s2, s{sTAG}" if OPT["user"] else "s_mov_b32 s46, s2",
            "s_bfe_u32 s47, s46, 0x20001", "s_lshl_b32 s47, s47, 3", f"s_and_b32 s{sT1}, s{sIDX}, 7", f"s_add_u32 s{sT1}, s{sT1}, s47",
            "s_and_b32 s46, s46, 1", "s_lshl_b32 s46, s46, 2", f"s_lshr_b32 s{sCB}, s{sIDX}, 3", f"s_add_u32 s{sCB}, s{sCB}, s46"]


def hbase(dst, t1):
    if not NUMA:
        return [f"s_mul_i32 s{dst}, s{t1}, {4 * HZ}"]
    return [f"s_and_b32 s46, s{t1}, 3", f"s_mul_i32 s{dst}, s46, {4 * HZ}", f"s_bfe_u32 s46, s{t1}, 0x20002",
            f"s_lshr_b32 s47, s{t1}, 4", "s_xor_b32 s47, s47, s46", "s_lshl_b32 s46, s46, 21", f"s_add_u32 s{dst}, s{dst}, s46"]


def hside(dst, par, pol):
    if not NUMA:
        return []
    return [f"s_xor_b32 s{par}, s{par}, s{pol}", f"s_and_b32 s{par}, s{par}, 1", f"s_lshl_b32 s{par}, s{par}, 13",
            f"s_add_u32 s{dst}, s{dst}, s{par}"]


def entry():
    section("A")
    e("s_cmp_ge_u32 s2, 256")
    e("s_cbranch_scc1 END")
    e("s_load_dwordx2 s[4:5], s[0:1], 0")
    e("s_load_dwordx4 s[48:51], s[0:1], 24")
    e("s_load_dwordx8 s[52:59], s[0:1], 48")
    e("s_load_dwordx4 s[60:63], s[0:1], 80")
    if PROF or LITE or OPT.get("rabs"):
        e("s_memrealtime s[98:99]")
    stamp(0)
    e("v_lshrrev_b32 v1, 6, v0")
    e("v_and_b32 v0, 63, v0")
    e(f"s_lshr_b32 s{sIDX}, s2, 3")
    e(f"v_readfirstlane_b32 s{sWAVE}, v1")
    e("s_getpc_b64 s[64:65]")
    lab("PCREF")
    e(f"s_cmp_ge_u32 s{sWAVE}, 4")
    e("s_cbranch_scc1 LSTART")
    if True:
        cm("pull the kernel's own code into this die's L2: three lines per matrix wave")
        e(f"s_lshl_b32 s66, s{sIDX}, 2")
        e(f"s_add_u32 s66, s66, s{sWAVE}")
        e("s_mul_i32 s66, s66, 384")
        e(f"s_min_u32 s66, s66, END-PCREF-384")
        e("s_and_b32 s64, s64, 0xffffff80")
        e("s_load_dwordx2 s[68:69], s[64:65], s66 offset:60")
        e("s_load_dwordx2 s[70:71], s[64:65], s66 offset:188")
        e("s_load_dwordx2 s[72:73], s[64:65], s66 offset:316")
    e("s_branch CWAVE")
    lab("LSTART")
    ids1()
    e(f"s_cmp_eq_u32 s{sWAVE}, 6")
    e("s_cbranch_scc1 L2WAVE")
    e(f"s_cmp_eq_u32 s{sWAVE}, 7")
    e("s_cbranch_scc1 L3WAVE")


def wd_voffset(vd, vt):
    e(f"v_lshrrev_b32 v{vt}, 3, v0")
    e(f"v_lshlrev_b32 v{vd}, 10, v{vt}")
    e(f"v_bfe_u32 v{vt}, v0, 4, 1")
    e(f"v_lshlrev_b32 v{vt}, 2, v{vt}")
    e(f"v_and_b32 v{vt + 1}, 7, v0")
    e(f"v_xor_b32 v{vt}, v{vt}, v{vt + 1}")
    e(f"v_lshl_add_u32 v{vd}, v{vt}, 4, v{vd}")


XS = 8192


def xw_base(par):
    e(f"s_lshr_b32 s60, s{sIDX}, 2")
    e("s_lshl_b32 s60, s60, 10")
    e(f"s_and_b32 s63, s{sIDX}, 3")
    e("s_lshl_b32 s63, s63, 7")
    e("s_add_u32 s60, s60, s63")
    e(f"s_and_b32 s63, {par}, 1")
    e("s_lshl_b32 s63, s63, 9")
    e("s_add_u32 s60, s60, s63")
    e("s_bfe_u32 s63, s2, 0x20001")
    e(f"s_mul_i32 s62, s63, {56 * XS}")


def xload(n):
    for k in range(n if not OPT.get("nox") else 0):
        e(f"s_buffer_load_dwordx2 s[58:59], {srd(SRD_WD)}, s60 offset:{XS * k + 60}")


def xa_init():
    xw_base("s2")
    e("s_add_u32 s60, s60, s62")
    e(f"s_sub_u32 s63, s{sWAVE}, 4")
    e(f"s_mul_i32 s63, s63, {28 * XS}")
    e("s_add_u32 s60, s60, s63")


def xa():
    xload(OPT["na"])
    e(f"s_add_u32 s60, s60, {OPT['na'] * XS}")


def xb_init(which):
    e(f"s_add_u32 s46, s2, s{sTAG}" if OPT["user"] else "s_mov_b32 s46, s2")
    xw_base("s46")
    e(f"s_add_u32 s60, s60, {which * OPT['nb'] * XS}")
    e("s_add_u32 s62, s62, s60")
    if OPT["user"]:
        e(f"s_bitcmp1_b32 s{sTAG}, 0")
        e("s_cselect_b32 s62, -1, s62")


XBN = [0, 0]


def xw(n, which):
    nb = OPT["nb"]
    if n < OPT["xb0"] or XBN[which] * 2 * nb >= 168:
        return
    XBN[which] += 1
    e("s_cmp_ge_u32 s60, s62")
    e(f"s_cselect_b32 s63, {56 * XS}, 0")
    e("s_cselect_b32 s62, -1, s62")
    e("s_add_u32 s60, s60, s63")
    xload(nb)
    e(f"s_add_u32 s60, s60, {2 * nb * XS}")


def l01wave():
    vX0, vX1, vW, vWD, vZ, vW1 = 2, 3, 4, 5, 9, 12
    sLW, sXa, sXb, sWo, sS0, sS1, sR4, sT, sCnt, sWd = 64, 65, 66, 67, 68, 69, 70, 71, 72, 73
    section("A2")
    lab("L01WAVE")
    cm("================ L0/L1: DMA waves ================")
    e(f"s_sub_u32 s{sLW}, s{sWAVE}, 4")
    e("v_lshrrev_b32 v6, 3, v0")
    e(f"v_lshlrev_b32 v{vX0}, 16, v6")
    e("v_lshrrev_b32 v6, 1, v6")
    e("v_and_b32 v7, 7, v0")
    e("v_xor_b32 v6, v6, v7")
    e(f"v_lshl_add_u32 v{vX0}, v6, 4, v{vX0}")
    e(f"v_xor_b32 v{vX1}, 64, v{vX0}")
    e("v_lshrrev_b32 v6, 4, v0")
    e(f"v_mul_lo_u32 v{vW}, v6, s{sRS}")
    e("v_bfe_u32 v7, v0, 2, 2")
    e("v_xor_b32 v7, v7, v6")
    e("v_lshlrev_b32 v7, 2, v7")
    e("v_and_b32 v8, 3, v0")
    e("v_or_b32 v7, v7, v8")
    e(f"v_lshl_add_u32 v{vW}, v7, 4, v{vW}")
    e("v_xor_b32 v7, 2, v7")
    e(f"v_mul_lo_u32 v{vW1}, v6, s{sRS}")
    e(f"v_lshl_add_u32 v{vW1}, v7, 4, v{vW1}")
    e(f"s_lshl_b32 s{sXa}, s{sI}, 1")
    e(f"s_add_u32 s{sXa}, s{sXa}, s{sLW}")
    e(f"s_lshl_b32 s{sXa}, s{sXa}, 10")
    e(f"s_add_u32 s{sXb}, s{sXa}, {32 * 1024}")
    e(f"s_mov_b32 s{sWo}, s{sCOL}")
    e(f"s_lshl_b32 s{sR4}, s{sRS}, 2")
    e(f"s_lshl_b32 s74, s{sLW}, 10")
    e(f"s_lshl_b32 s77, s{sLW}, 12")

    def wpieces(base_sgpr, imm):
        e(f"s_add_u32 s{sT}, s{base_sgpr}, s74")
        e(f"s_add_u32 m0, s{sT}, {imm}")
        e("s_nop 0")
        for k in range(8):
            if True:
                e(f"buffer_load_dwordx4 v{vW1 if k & 2 else vW}, {srd(SRD_WM)}, s{sWo} offen lds")
            if k < 7:
                e("s_add_u32 m0, m0, 2048")
            e(f"s_add_u32 s{sWo}, s{sWo}, s{sR4}")

    def xpieces(base_sgpr, half):
        sx = sXb if half else sXa
        e(f"s_add_u32 s{sT}, s{base_sgpr}, s77")
        e(f"s_add_u32 m0, s{sT}, {32768 + half * 8192}")
        e(f"s_mov_b32 s{sT}, s{sx}")
        for k in range(4):
            if True:
                e(f"buffer_load_dwordx4 v{vX1 if k & 1 else vX0}, {srd(SRD_X)}, s{sT} offen lds")
            if k < 3:
                e("s_add_u32 m0, m0, 1024")
                e(f"s_add_u32 s{sT}, s{sT}, 0x80000")
        e(f"s_add_u32 s{sx}, s{sx}, 128")

    e(f"s_mov_b32 s{sS0}, {SLOT}")
    e(f"s_mov_b32 s{sS1}, {2 * SLOT}")
    e("s_waitcnt lgkmcnt(0)")
    cm("G0 = x0 + W0 ; G1 = W1 + x1a")
    xpieces(sS0, 0)
    wm_select(f"s_cmp_eq_u32 s{sLW}, 1")
    wpieces(sS0, 0)
    xpieces(sS0, 1)
    wpieces(sS0, 16384)
    xpieces(sS1, 0)
    srds2()
    xa_init()
    wd_voffset(vWD, 6)
    e("v_min_u32 v10, 13, v0")
    e("v_lshlrev_b32 v10, 7, v10")
    e("v_and_b32 v47, 31, v0")
    e(f"s_lshl_b32 s63, s{sLW}, 7")
    e(f"s_add_u32 s63, s63, {R2L}")
    e("v_lshl_add_u32 v48, v47, 2, s63")
    e("v_lshlrev_b32 v47, 4, v47")
    e("v_mov_b32 v49, 0")
    e("v_lshlrev_b32 v13, 4, v0")
    e(f"s_lshl_b32 s56, s{sJ}, 13")
    e("s_add_u32 s56, s56, s74")
    e(f"s_add_u32 s56, s56, {CS_OFF}")
    e("s_add_u32 s57, s56, 4096")
    e(f"s_lshl_b32 s62, s{sI}, 11")
    e("s_add_u32 s62, s62, s74")
    e(f"s_add_u32 s62, s62, {ST_OFF}")
    e(f"s_lshl_b32 s63, s{sLW}, 9")
    e(f"s_add_u32 s63, s63, {CSL}")
    e("v_lshl_add_u32 v45, v0, 3, s63")
    e(f"s_lshl_b32 s63, s{sLW}, 8")
    e(f"s_add_u32 s63, s63, {RL}")
    e("v_lshl_add_u32 v46, v0, 2, s63")
    e(f"s_mov_b32 s{sS0}, {2 * SLOT}")
    e(f"s_mov_b32 s{sS1}, 0")
    e(f"s_mov_b32 s{sCnt}, 6")
    e("s_waitcnt vmcnt(12)")
    stamp(1)
    bar("B0")
    lab("L01LOOP")
    wpieces(sS0, 0)
    xpieces(sS0, 1)
    A0 = OPT["xa0"]
    NA = -(-28 // OPT["na"])
    ev = [n for n in range(0, 12, 2) if A0 <= n < A0 + NA]
    od = [n for n in range(1, 12, 2) if A0 <= n < A0 + NA]
    e(f"s_sub_u32 s63, {6 - ev[0] // 2}, s{sCnt}")
    e(f"s_cmp_ge_u32 s63, {len(ev)}")
    e("s_cbranch_scc1 L01X0")
    xa()
    lab("L01X0")
    e("s_waitcnt vmcnt(12)")
    bar("B(2s+1)")
    wpieces(sS0, 16384)
    xpieces(sS1, 0)
    e(f"s_sub_u32 s63, {6 - od[0] // 2}, s{sCnt}")
    e(f"s_cmp_ge_u32 s63, {len(od)}")
    e("s_cbranch_scc1 L01X1")
    xa()
    lab("L01X1")
    e(f"s_mov_b32 s{sS0}, s{sS1}")
    e(f"s_add_u32 s{sS1}, s{sS1}, {SLOT}")
    e(f"s_cmp_eq_u32 s{sS1}, {3 * SLOT}")
    e(f"s_cselect_b32 s{sS1}, 0, s{sS1}")
    e(f"s_sub_u32 s{sCnt}, s{sCnt}, 1")
    e(f"s_cmp_lg_u32 s{sCnt}, 0")
    e("s_waitcnt vmcnt(12)")
    bar("B(2s+2)")
    e("s_cbranch_scc1 L01LOOP")
    wpieces(sS0, 0)
    xpieces(sS0, 1)
    e(f"v_mov_b32 v7, {TAGL}")
    e("ds_read_b32 v8, v7")
    e("s_waitcnt lgkmcnt(0)")
    e(f"v_readfirstlane_b32 s{sTAG}, v8")
    es(ids2())
    e(f"s_lshr_b32 s61, s{sT1}, 1")
    e("s_lshl_b32 s61, s61, 11")
    e(f"s_and_b32 s48, s{sT1}, 1")
    e("s_lshl_b32 s48, s48, 9")
    e("s_add_u32 s48, s48, s61")
    e("s_add_u32 s48, s48, s74")
    e(f"s_add_u32 s48, s48, {ST_OFF}")
    e(f"s_add_u32 s61, s61, {FLH}")
    e(f"s_cmp_eq_u32 s{sLW}, 0")
    e(f"s_cselect_b32 s61, s61, {OOB:#x}")
    e("s_waitcnt vmcnt(12)")
    bar("B13")
    wpieces(sS0, 16384)

    def gets():
        cm("statistics of the other workgroups: column sums (128 columns x 4 partial sums) and 64 rows per wave")
        for k in range(4):
            e(f"buffer_load_dwordx4 {vr(16 + 4 * k, 4)}, v13, {srd(SRD_WS)}, {'s57' if k >= 2 else 's56'} offen offset:{2048 * (k & 1)} sc1")
        e(f"buffer_load_dwordx4 v[32:35], v13, {srd(SRD_WS)}, s62 offen sc1")
        e(f"buffer_load_dwordx4 v[52:55], v47, {srd(SRD_WS)}, s48 offen sc1")
        if NUMA:
            e(f"buffer_load_dword v50, v49, {srd(SRD_DBG)}, 0 offen offset:4 sc1")

    gets()
    e(f"s_lshl_b32 s{sWd}, s{sLW}, 14")
    e(f"s_lshl_b32 s{sT}, s{sCB}, 7")
    e(f"s_add_u32 s{sWd}, s{sWd}, s{sT}")
    e(f"s_lshl_b32 m0, s{sLW}, 11")

    def units(a, b, th=0):
        for v in range(a, b):
            e(f"s_add_u32 s{sT}, s{sWd}, 8192")
            if v < NRES:
                e(f"buffer_load_dwordx4 v{vWD}, {srd(SRD_WD)}, s{sWd} offen lds")
                e("s_add_u32 m0, m0, 1024")
            else:
                e(f"buffer_load_dwordx4 {vr(ST0 + 8 * (v - NRES), 4)}, v{vWD}, {srd(SRD_WD)}, s{sWd} offen")
            e(f"s_add_u32 s{sWd}, s{sWd}, 32768")
            if v < NRES:
                e(f"buffer_load_dwordx4 v{vWD}, {srd(SRD_WD)}, s{sT} offen lds")
            else:
                e(f"buffer_load_dwordx4 {vr(ST0 + 8 * (v - NRES) + 4, 4)}, v{vWD}, {srd(SRD_WD)}, s{sT} offen")
            if v + 1 < NRES:
                e(f"s_add_u32 m0, m0, {(wslot(v + 1) - wslot(v)) * 4096 - 1024}")
            if th:
                e(f"s_waitcnt vmcnt({th})")

    ST0 = 64
    U1, U2 = OPT["u1"], OPT["u2"]
    units(0, U1)
    e(f"s_waitcnt vmcnt({8 + 6 + NUMA + 2 * U1})")
    bar("B14")
    units(U1, U2)
    e(f"s_waitcnt vmcnt({6 + NUMA + 2 * U2})")
    bar("B15")
    e(f"s_mov_b32 s75, {OPT['spin']}")
    e(f"s_waitcnt vmcnt({2 * U2})")
    lab("GCHK")
    for k in range(8):
        e(f"v_xor_b32 v{36 + k}, s{sTAG}, v{17 + 2 * k}")
    e(f"v_xor_b32 v44, s{sTAG}, v35")
    e(f"v_xor_b32 v51, s{sTAG}, v55")
    if NUMA:
        e("v_and_b32 v56, 2, v50")
        e("v_xor_b32 v56, 2, v56")
        e("v_or3_b32 v44, v44, v51, v56")
    else:
        e("v_or_b32 v44, v44, v51")
    for k in range(4):
        e(f"v_or3_b32 v44, v44, v{36 + 2 * k}, v{37 + 2 * k}")
    e("v_cmp_ne_u32 vcc, 0, v44")
    e("v_add_f32 v36, v16, v20")
    e("v_add_f32 v37, v18, v22")
    e("s_cmp_eq_u64 vcc, 0")
    e("s_cbranch_scc1 GOK")
    e("s_sleep 2")
    gets()
    e("s_sub_u32 s75, s75, 1")
    e("s_cmp_lg_u32 s75, 0")
    e("s_waitcnt vmcnt(0)")
    e("s_cbranch_scc1 GCHK")
    lab("GOK")
    e("v_add_f32 v38, v24, v28")
    e("v_add_f32 v39, v26, v30")
    e("v_add_f32 v36, v36, v38")
    e("v_add_f32 v37, v37, v39")
    e("ds_write_b64 v45, v[36:37]")
    e(f"ds_write_b64 v45, v[32:33] offset:{MRP - CSL}")
    e("ds_write_b32 v46, v33")
    e("ds_write_b32 v48, v53")
    if NUMA:
        e("ds_write_b32 v7, v50 offset:12")
    e("s_waitcnt lgkmcnt(0)")
    stamp(2)
    bar("B16")
    TR = OPT["trk"]
    PA = OPT["pa"]
    e(f"s_cmp_eq_u32 s{sDFT}, 0")
    e("s_cbranch_scc1 L01GLU")
    cm("spectral workgroups store late: they need not hold back now")
    units(U2, OPT["dtr"], OPT["dth"])
    units(OPT["dtr"], OPT["dpa"])
    wait_c_done()
    stamp(3)
    units(OPT["dpa"], PA)
    poll_issue(11, 10, "s61", SRD_WS)
    units(PA, 56)
    e("s_branch L01JOIN")
    lab("L01GLU")
    units(U2, TR, OPT["th"])
    wait_c_done()
    stamp(3)
    units(TR, PA)
    cm("L0 waits for the 14 producers of row block t1>>1 (queued behind the w_down loads)")
    poll_issue(11, 10, "s61", SRD_WS)
    units(PA, 56)
    lab("L01JOIN")
    e("v_and_b32 v6, 3, v0")
    e("v_bfe_u32 v7, v0, 3, 2")
    e("v_lshl_add_u32 v6, v7, 2, v6")
    e("v_bfe_u32 v7, v0, 2, 1")
    e("v_lshl_add_u32 v6, v7, 4, v6")
    e("v_and_b32 v7, 32, v0")
    e(f"s_lshl_b32 s66, s{sCB}, 6")
    e("v_add3_u32 v6, v6, v7, s66")
    e("v_sub_u32 v7, 512, v6")
    e("v_and_b32 v7, 255, v7")
    e(f"s_sub_u32 s67, 32, s{sT1}")
    e("s_and_b32 s67, s67, 31")
    e(f"s_cmp_ge_u32 s{sCB}, 4")
    e("s_cselect_b64 s[68:69], -1, 0")
    e(f"s_cselect_b32 s67, s67, s{sT1}")
    e("v_cmp_eq_u32 vcc, 0, v6")
    e("v_cndmask_b32 v7, v6, v7, s[68:69]")
    e(f"v_lshlrev_b32 v{vZ}, 4, v7")
    e(f"v_mov_b32 v7, {OOB:#x}")
    e("s_lshl_b32 s67, s67, 16")
    e(f"v_cndmask_b32 v{vZ}, v{vZ}, v7, vcc")
    e(f"s_lshl_b32 s66, s{sLW}, 15")
    e("s_add_u32 s67, s67, s66")
    e(f"s_add_u32 s67, s67, {Z_OFF}")
    e(f"s_lshl_b32 s66, s{sLW}, 13")
    e(f"s_add_u32 m0, s66, {ZL}")
    e("v_bfe_u32 v12, v0, 1, 4")
    e("v_lshlrev_b32 v12, 4, v12")
    e("v_and_b32 v13, 1, v0")
    e("v_add3_u32 v12, v12, v13, 14")
    e("v_lshlrev_b32 v12, 7, v12")
    e(f"s_mov_b32 s70, {FLH}")
    e(f"s_lshl_b32 s66, s{sLW}, 11")
    e("v_lshl_add_u32 v6, v0, 4, s66")
    e(f"s_cmp_eq_u32 s{sLW}, 1")
    e(f"s_cselect_b32 s70, s70, {OOB:#x}")
    e("s_cbranch_scc1 L1NOPOLL")
    poll_wait(11, 10, "s61", SRD_WS, first_wait=2 * (56 - PA))
    lab("L1NOPOLL")
    e(f"s_waitcnt vmcnt({2 * min(NST, 56 - PA)})")
    stamp(4)
    bar("BW")
    e("s_waitcnt vmcnt(0)")
    bar("BP1")
    poll_issue(11, 12, "s70", SRD_WS)
    for k in range(2 * NST):
        if k == 32:
            e("v_add_u32 v6, 0x10000, v6")
        e(f"ds_write_b128 v6, {vr(ST0 + 4 * k, 4)} offset:{((k >> 1) * 4096 + (k & 1) * 1024) & 0xFFFF}")
    e("s_waitcnt lgkmcnt(0)")
    bar("BP2")
    e(f"s_cmp_eq_u32 s{sLW}, 0")
    e("s_cbranch_scc1 L0NOPOLL")
    poll_wait(11, 12, "s70", SRD_WS)
    lab("L0NOPOLL")
    stamp(5)
    bar("BZ0")
    for g in range(8):
        e(f"buffer_load_dwordx4 v{vZ}, {srd(SRD_WS)}, s67 offen sc1 lds")
        e("s_add_u32 m0, m0, 1024")
        e("s_add_u32 s67, s67, 4096")
    e("s_waitcnt vmcnt(0)")
    stamp(6)
    bar("BR")
    stamp_flush(7, 14, False)
    e("s_endpgm")


def probe(step):
    if not NUMA:
        return
    uid[0] += 1
    k = uid[0]
    e("s_cmp_lg_u32 s2, 0")
    e(f"s_cbranch_scc1 PRB{k}")
    e(f"s_mov_b32 s64, {PROBE}")
    if step == 0:
        e(f"s_buffer_load_dword s71, {srd(SRD_WS)}, s64")
        e(f"s_buffer_load_dword s71, {srd(SRD_WS)}, s64 offset:8192")
    else:
        e("s_waitcnt lgkmcnt(0)")
        e("s_memtime s[66:67]")
        e("s_waitcnt lgkmcnt(0)")
        e(f"s_buffer_load_dword s71, {srd(SRD_WS)}, s64 offset:{8192 * ((step - 1) & 1)} glc")
        e("s_waitcnt lgkmcnt(0)")
        e("s_memtime s[68:69]")
        e("s_waitcnt lgkmcnt(0)")
        e("s_sub_u32 s66, s68, s66")
        if step == 1:
            e("s_mov_b32 s70, s66")
        else:
            if OPT.get("dbgp"):
                e("v_mov_b32 v2, 0")
                e("v_mov_b32 v4, s70")
                e("v_mov_b32 v5, s66")
                e(f"buffer_store_dwordx2 v[4:5], v2, {srd(SRD_DBG)}, 0 offen offset:8")
            e("s_cmp_lt_u32 s70, s66")
            e("s_cselect_b32 s70, 2, 3")
            e(f"s_bfe_u32 s66, s{sTAG}, 0x10002")
            e("s_xor_b32 s70, s70, s66")
            if OPT["pol"] >= 0:
                e(f"s_mov_b32 s70, {2 | OPT['pol']}")
            e("v_mov_b32 v2, 0")
            e("v_mov_b32 v3, s70")
            e(f"buffer_store_dword v3, v2, {srd(SRD_DBG)}, 0 offen offset:4 sc1")
    lab(f"PRB{k}")


def l23_tail(which):
    xb_init(which)
    if which == 0 and NUMA:
        probe(1)
    else:
        xw(8, which)
    for n in range(9, OPT["xe"] + 1):
        bar(f"B{n}")
        if which == 0 and n == 9:
            probe(2)
        xw(n, which)
    for n in range(OPT["xt"]):
        xw(20, which)


def l2wave():
    vC = 8
    vm = Q()
    section("A")
    e("s_branch L01WAVE")
    lab("L2WAVE")
    cm("================ L2: column sums (64 columns x rows 64s + 16kq + 0..15) ================")
    e("v_lshrrev_b32 v18, 3, v0")
    e("v_and_b32 v19, 7, v0")
    e(f"v_mul_lo_u32 v{vC}, v18, s{sRS}")
    e(f"v_lshl_add_u32 v{vC}, v19, 4, v{vC}")
    e(f"s_lshr_b32 s64, s{sI}, 2")
    e("s_lshl_b32 s64, s64, 4")
    e(f"s_mul_i32 s69, s64, s{sRS}")
    e(f"s_and_b32 s64, s{sI}, 1")
    e("s_lshl_b32 s64, s64, 7")
    e("s_add_u32 s69, s69, s64")
    e(f"s_add_u32 s69, s69, s{sCOL}")
    e(f"s_lshl_b32 s70, s{sRS}, 3")
    e(f"s_mul_i32 s72, s{sRS}, 56")
    e("s_waitcnt lgkmcnt(0)")
    wm_select(f"s_bitcmp1_b32 s{sI}, 1")
    LD, AC = 32, 16

    def csload(y):
        vm.add(("c", y), f"buffer_load_dwordx4 {vr(LD + 4 * y, 4)}, v{vC}, {srd(SRD_WM)}, s69 offen")
        e(f"s_add_u32 s69, s69, {'s72' if y & 1 else 's70'}")

    def csproc(y):
        for d in range(4):
            r = LD + 4 * y + d
            if y == 0:
                e(f"v_lshlrev_b32 v{AC + 2 * d}, 16, v{r}")
                e(f"v_and_b32 v{AC + 2 * d + 1}, v9, v{r}")
            else:
                e(f"v_lshlrev_b32 v10, 16, v{r}")
                e(f"v_and_b32 v11, v9, v{r}")
                e(f"v_add_f32 v{AC + 2 * d}, v{AC + 2 * d}, v10")
                e(f"v_add_f32 v{AC + 2 * d + 1}, v{AC + 2 * d + 1}, v11")

    for y in range(2 * OPT["pre"]):
        csload(y)
    e("s_branch L2REST")
    section("L2")
    lab("L2REST")
    srds2()
    e("v_mov_b32 v9, 0xffff0000")
    stamp(1)
    issued, done = 2 * OPT["pre"], 0
    for n in range(8):
        bar(f"B{n}")
        while issued < 2 * (8 if n >= OPT["prec"] else OPT["pb2"] if n >= OPT["preb"] else 0):
            csload(issued)
            issued += 1
        if n >= 2:
            k = min(done + (3 if n < 7 else 9), 16, issued)
            e(f"s_waitcnt vmcnt({vm.younger(('c', k - 1))})")
            for y in range(done, k):
                csproc(y)
            done = k
        if n == 6:
            probe(0)
    assert done == 16 and issued == 16
    bar("B8")
    e(f"v_mov_b32 v12, {TAGL}")
    e("ds_read_b32 v25, v12")
    for k in range(4):
        e(f"v_permlane32_swap_b32 v{AC + k}, v{AC + k + 4}")
    e("s_nop 1")
    for k in range(4):
        e(f"v_add_f32 v{AC + k}, v{AC + k}, v{AC + k + 4}")
    e("s_nop 1")
    for k in range(2):
        e(f"v_permlane16_swap_b32 v{AC + k}, v{AC + k + 2}")
    e("s_nop 1")
    for k in range(2):
        e(f"v_add_f32 v{AC + k}, v{AC + k}, v{AC + k + 2}")
    e("v_and_b32 v10, 7, v0")
    e("v_lshlrev_b32 v10, 3, v10")
    e(f"v_add_f32_dpp v24, v{AC}, v{AC} row_ror:8 row_mask:0xf bank_mask:0x3")
    e("s_nop 1")
    e(f"v_add_f32_dpp v24, v{AC + 1}, v{AC + 1} row_ror:8 row_mask:0xf bank_mask:0xc")
    e("v_bfe_u32 v11, v0, 5, 1")
    e("v_lshl_add_u32 v10, v11, 2, v10")
    e("v_bfe_u32 v11, v0, 4, 1")
    e("v_lshl_add_u32 v10, v11, 1, v10")
    e("v_bfe_u32 v11, v0, 3, 1")
    e("v_add_u32 v10, v11, v10")
    e("v_lshlrev_b32 v10, 3, v10")
    e(f"s_lshl_b32 s64, s{sJ}, 13")
    e(f"s_add_u32 s64, s64, {CS_OFF}")
    e(f"s_lshl_b32 s65, s{sI}, 9")
    e("s_add_u32 s65, s64, s65")
    e("s_waitcnt lgkmcnt(0)")
    vm.add("pub", f"buffer_store_dwordx2 v[24:25], v10, {srd(SRD_WS)}, s65 offen sc1")
    e(f"v_readfirstlane_b32 s{sTAG}, v25")
    stamp(2)
    l23_tail(0)
    stamp_flush(3, 26, False)
    e("s_endpgm")


def l3wave():
    vm = Q()
    section("A")
    lab("L3WAVE")
    cm("================ L3: launch tag, row statistics (rows 8j..8j+7 of the row block), hand-off waits ================")
    e(f"s_bfe_u32 s64, s{sJ}, 0x10002")
    e(f"s_bfe_u32 s65, s{sJ}, 0x10003")
    e("s_lshl_b32 s65, s65, 5")
    e(f"s_lshl_b32 s66, s{sI}, 1")
    e("s_add_u32 s64, s64, s65")
    e("s_add_u32 s64, s64, s66")
    e(f"s_and_b32 s65, s{sJ}, 3")
    e("s_lshl_b32 s65, s65, 9")
    e("s_add_u32 s64, s64, s65")
    e("s_lshl_b32 s64, s64, 10")
    e("v_lshrrev_b32 v4, 3, v0")
    e("v_and_b32 v14, 7, v0")
    e("v_lshlrev_b32 v6, 16, v4")
    e("v_lshl_add_u32 v6, v14, 4, v6")
    e("s_memrealtime s[66:67]")
    e("s_waitcnt lgkmcnt(0)")
    LD, UP = 16, 48

    def rowload(y):
        vm.add(("r", y), f"buffer_load_dwordx4 {vr(LD + 4 * y, 4)}, v6, {srd(SRD_X)}, s64 offen offset:{128 * y}")

    for y in range(OPT["pre"]):
        rowload(y)
    e("s_branch L3REST")
    section("L3")
    lab("L3REST")
    srds2()
    e("v_mov_b32 v2, 0")
    e("s_getreg_b32 s67, hwreg(HW_REG_XCC_ID, 0, 3)")
    e("s_andn2_b32 s66, s66, 15")
    e("s_or_b32 s66, s66, 8")
    e("s_or_b32 s66, s66, s67")
    e("v_mov_b32 v3, s66")
    e("s_cmp_eq_u32 s2, 0")
    e(f"s_cselect_b32 s66, 0, {OOB:#x}")
    vm.add("tag", f"buffer_store_dword v3, v2, {srd(SRD_DBG)}, s66 offen sc1")
    e("v_mov_b32 v9, 0xffff0000")

    def unp(d):
        e(f"v_lshlrev_b32 v{UP + 2 * d}, 16, v{LD + d}")
        e(f"v_and_b32 v{UP + 2 * d + 1}, v9, v{LD + d}")
        if d == 0:
            e(f"v_mov_b32 v10, v{UP}")
            e(f"v_mov_b32 v11, v{UP + 1}")
        else:
            e(f"v_add_f32 v10, v10, v{UP + 2 * d}")
            e(f"v_add_f32 v11, v11, v{UP + 2 * d + 1}")

    def red8(r):
        e("s_nop 1")
        e(f"v_add_f32_dpp v{r}, v{r}, v{r} quad_perm:[1,0,3,2] row_mask:0xf bank_mask:0xf")
        e("s_nop 1")
        e(f"v_add_f32_dpp v{r}, v{r}, v{r} quad_perm:[2,3,0,1] row_mask:0xf bank_mask:0xf")
        e("s_nop 1")
        e(f"v_add_f32_dpp v{r}, v{r}, v{r} row_half_mirror row_mask:0xf bank_mask:0xf")

    def var(k):
        e(f"v_sub_f32 v{UP + k}, v{UP + k}, v10")
        e(f"v_fmac_f32 v{12 + (k & 1)}, v{UP + k}, v{UP + k}")

    issued, done = OPT["pre"], 0
    for n in range(6):
        bar(f"B{n}")
        while issued < (8 if n >= OPT["prec"] else OPT["pb2"] if n >= OPT["preb"] else 0):
            rowload(issued)
            issued += 1
        if n == 5:
            vm.add("np")
            poll_issue(3, 2, "0", SRD_DBG)
        if n >= 2:
            k = min(done + (2 if n < 5 else 8), 8, issued)
            e(f"s_waitcnt vmcnt({vm.younger(('r', k - 1))})")
            for d in range(4 * done, 4 * k):
                unp(d)
            done = k
    assert done == 8 and issued == 8
    e("v_add_f32 v10, v10, v11")
    red8(10)
    e(f"v_mul_f32 v10, {f2u(1.0 / 512):#x}, v10")
    e("v_mov_b32 v12, 0")
    e("v_mov_b32 v13, 0")
    bar("B6")
    for k in range(24):
        var(k)
    bar("B7")
    poll_wait(3, 2, "0", SRD_DBG, cond_tag=False, first_wait=vm.younger("np"))
    e(f"v_mov_b32 v15, {TAGL}")
    e("ds_write_b32 v15, v3")
    e("ds_write_b32 v15, v2 offset:4")
    e("ds_write_b32 v15, v2 offset:8")
    e(f"v_readfirstlane_b32 s{sTAG}, v3")
    for k in range(24, 44):
        var(k)
    e("s_waitcnt lgkmcnt(0)")
    bar("B8")
    for k in range(44, 64):
        var(k)
    e("v_add_f32 v12, v12, v13")
    red8(12)
    e(f"v_mul_f32 v12, {f2u(1.0 / 512):#x}, v12")
    cm("roundings as in the reference: m=bf(mean); sd=bf(sqrt(bf(bf(var)+eps))); r=1/sd")
    e("v_cvt_pk_bf16_f32 v15, v10, v12")
    e("v_lshlrev_b32 v16, 16, v15")
    e("v_and_b32 v12, v9, v15")
    e(f"v_add_f32 v12, {f2u(1e-5):#x}, v12")
    e("v_cvt_pk_bf16_f32 v12, v12, v12")
    e("v_and_b32 v12, v9, v12")
    e("v_sqrt_f32 v12, v12")
    e("v_cmp_eq_u32 vcc, 0, v14")
    e("v_cvt_pk_bf16_f32 v12, v12, v12")
    e("v_and_b32 v12, v9, v12")
    e("v_rcp_f32 v17, v12")
    e("v_lshlrev_b32 v14, 4, v4")
    e(f"v_mov_b32 v15, {OOB:#x}")
    e(f"s_lshl_b32 s64, s{sI}, 11")
    e(f"s_add_u32 s64, s64, {ST_OFF}")
    e("v_cndmask_b32 v14, v15, v14, vcc")
    e("v_mov_b32 v18, v3")
    e("v_mov_b32 v19, v3")
    e(f"s_lshl_b32 s65, s{sJ}, 7")
    e("s_add_u32 s65, s64, s65")
    vm.add("pub", f"buffer_store_dwordx4 v[16:19], v14, {srd(SRD_WS)}, s65 offen sc1")
    stamp(1)
    l23_tail(1)
    stamp_flush(2, 26, False)
    e("s_endpgm")


XF = [[64 + 4 * q for q in range(4)], [80 + 4 * q for q in range(4)]]
WF = [[96, 100], [104, 108]]
XA = [112, 113, 114, 115]
WA = 116
vPM = 118
R0 = 64
vD_R, vD_TAG = 123, 124
vA_TAG = 116
sXO, sH, sPAR, sPOL, sFLG, sOUT, sC0, sP, sKH, sPAR2 = 56, 57, 58, 59, 61, 62, 63, 73, 74, 60
XR, vXO = 80, 115


def ACC(mat, q):
    return 128 + 32 * q + 16 * mat


def TW(q, cs, z):
    return 16 * q + 8 * cs + 4 * z


def frag_reads(u, st):
    r = []
    for mat in range(2):
        for a in range(2):
            r.append(f"ds_read_b64_tr_b16 {vr(WF[st][mat] + 2 * a, 2)}, v{WA} offset:{u * 8192 + a * 2048 + mat * 1024}")
    for q in range(4):
        r.append(f"ds_read_b128 {vr(XF[st][q], 4)}, v{XA[u]} offset:{q * 4096}")
    return r


def dft_stat_reads():
    return [f"ds_read_b128 v[124:127], v{vD_TAG}"] + [f"ds_read_b128 {vr(R0 + 4 * a, 4)}, v{vD_R} offset:{32 * a}" for a in range(4)]


def late_ids():
    r = ids2()
    r += [f"s_lshl_b32 s46, s{sP}, 5", f"s_add_u32 s46, s46, s{sT1}", f"s_lshl_b32 s{sXO}, s46, 10", f"s_lshl_b32 s46, s{sCB}, 7",
          f"s_add_u32 s{sXO}, s{sXO}, s46", f"s_lshl_b32 s46, s{sKH}, 6", f"s_add_u32 s{sXO}, s{sXO}, s46",
          [f"s_cmp_eq_u32 s{sT1}, 0", f"s_cselect_b32 s{sC0}, 64, 63"]]
    r += hbase(sH, sT1) + [f"s_mov_b32 s{sPAR2}, s47", f"s_lshl_b32 s46, s{sP}, 1", f"s_add_u32 s46, s46, s{sKH}",
                           f"s_mul_i32 s46, s46, {HZ}", f"s_add_u32 s{sH}, s{sH}, s46"]
    r += [f"v_and_b32 v100, 31, v{vLANE}", f"v_lshrrev_b32 v101, 5, v{vLANE}", f"v_lshlrev_b32 v{vXO}, 16, v100",
          f"v_lshl_add_u32 v{vXO}, v101, 5, v{vXO}"]
    return r


def xloads():
    e(f"buffer_load_dwordx4 {vr(XR, 4)}, v{vXO}, {srd(SRD_X)}, s{sXO} offen")
    e(f"buffer_load_dwordx4 {vr(XR + 4, 4)}, v{vXO}, {srd(SRD_X)}, s{sXO} offen offset:16")


def mainloop(dft):
    sCnt, sDelta, sCur = 64, 65, 66
    tag = "D" if dft else "G"
    es(frag_reads(0, 0))
    e(f"s_mov_b32 s{sCnt}, 8")
    e(f"s_mov_b32 s{sCur}, {SLOT}")
    e(f"s_mov_b32 s67, {(-2 * SLOT) & 0xffffffff:#x}")

    def step(u, last):
        st = u & 1
        mf = []
        for mat in ((1, 0) if dft else (0, 1)):
            for q in range(4):
                a, b = (XF[st][q], WF[st][mat]) if dft else (WF[st][mat], XF[st][q])
                mf.append(f"v_mfma_f32_32x32x16_bf16 {vr(ACC(mat, q), 16)}, {vr(a, 4)}, {vr(b, 4)}, {vr(ACC(mat, q), 16)}")
        rd = frag_reads((u + 1) & 3, st ^ 1)
        gaps = [[] for _ in range(8)]
        if u == 3 and not last:
            gaps[0] += [f"v_add_u32 v{WA}, s{sDelta}, v{WA}", f"v_add_u32 v{XA[0]}, s{sDelta}, v{XA[0]}"]
            gaps[5] += [f"v_add_u32 v{XA[1]}, s{sDelta}, v{XA[1]}"]
            gaps[6] += [f"v_add_u32 v{XA[2]}, s{sDelta}, v{XA[2]}", f"v_add_u32 v{XA[3]}, s{sDelta}, v{XA[3]}"]
        if PROF and u in (0, 2):
            gaps[0] += ["s_memtime s[70:71]"]
        if PROF and u in (1, 3):
            gaps[5] += [f"s_lshl_b32 s72, s{sCnt}, 1", f"s_sub_u32 m0, {16 if u == 1 else 15}, s72", f"v_writelane_b32 v{vLOOPST}, s70, m0"]
        if u == 2:
            gaps[5] += [f"s_cmp_eq_u32 s{sCur}, {2 * SLOT}", f"s_cselect_b32 s{sDelta}, s67, {SLOT}"]
            gaps[6] += [f"s_add_u32 s{sCur}, s{sCur}, s{sDelta}", f"s_sub_u32 s{sCnt}, s{sCnt}, 1"]
            gaps[7] += [f"s_cmp_eq_u32 s{sCnt}, 0"]
        if u & 1:
            gaps[0] += ["s_barrier"]
        if dft:
            gaps[0] = [f"v_cndmask_b32 v{WF[st][0] + k}, v{WF[st][0] + k}, v{vPM}, s[68:69]" for k in range(2)] + gaps[0]
            gaps[1] += [f"v_cndmask_b32 v{WF[st][0] + k}, v{WF[st][0] + k}, v{vPM}, s[68:69]" for k in range(2, 4)]
        if u == 2:
            gaps[4].append(f"ds_read_b32 v119, v{vD_TAG}")
        if last:
            extra = dft_stat_reads()
            for k, x in enumerate(extra):
                gaps[2 + min(k // 3, 4)].append(x)
            gaps[0].append(f"v_readfirstlane_b32 s{sTAG}, v119")
            li = late_ids()
            for k, x in enumerate(li):
                gaps[1 + k * 7 // len(li)].append(x)
        else:
            for k in range(4):
                gaps[k + (1 if (u & 1) else 0)] += rd[2 * k:2 * k + 2]
        e("s_waitcnt lgkmcnt(0)")
        for k in range(8):
            e(mf[k])
            es(gaps[k])

    raw(".p2align 3")
    lab(f"MAIN{tag}")
    for u in range(3):
        step(u, False)
    e(f"s_cbranch_scc1 LAST{tag}")
    step(3, False)
    e(f"s_branch MAIN{tag}")
    lab(f"LAST{tag}")
    step(3, True)


X16 = [4 * k for k in range(8)]
W16 = [[64 + 4 * n for n in range(4)], [80 + 4 * n for n in range(4)]]
XA16, WA16 = [112, 113], [114, 115]
MR16, CG16, CU16, TG16 = 32, 48, 56, 96
vB_CS, vB_MR = 119, 120


def A16(sg, n):
    return 128 + 16 * sg + 4 * n


def mainloop16():
    sCnt, sDelta, sCur = 64, 65, 66
    lq = Q()
    gen = [0]

    def rdx(sg, h):
        lq.add(("x", sg), f"ds_read_b128 {vr(X16[sg], 4)}, v{XA16[h]} offset:{sg * 2048}")

    def rdw(n, a, h):
        lq.add(("w", n, a), f"ds_read_b64_tr_b16 {vr(W16[h][n] + 2 * a, 2)}, v{WA16[n & 1]} offset:{h * 16384 + a * 2048 + (n >> 1) * 1024}")

    def wait(tag):
        idx = max(i for i, t in enumerate(lq.l) if t == tag)
        n = len(lq.l) - 1 - idx
        if n < gen[0]:
            e(f"s_waitcnt lgkmcnt({n})")
            gen[0] = n

    def second_half_reads(h):
        return [lambda: rdw(0, 0, h), lambda: rdw(0, 1, h), lambda: rdx(0, h), lambda: rdw(1, 0, h), lambda: rdw(1, 1, h),
                lambda: rdw(2, 0, h), lambda: rdw(2, 1, h), lambda: rdw(3, 0, h), lambda: rdw(3, 1, h),
                lambda: rdx(1, h), lambda: rdx(2, h), lambda: rdx(3, h)]

    def issue(f):
        f()
        gen[0] += 1

    for f in second_half_reads(0):
        issue(f)
    e(f"s_mov_b32 s{sCnt}, 8")
    e(f"s_mov_b32 s{sCur}, {SLOT}")
    e(f"s_mov_b32 s67, {(-2 * SLOT) & 0xffffffff:#x}")

    def step(h, last):
        gen[0] = 15
        gaps = [[] for _ in range(32)]
        for k, sg in enumerate((4, 5, 6, 7)):
            gaps[1 + 2 * k].append(lambda sg=sg: rdx(sg, h))
        txt = [[] for _ in range(32)]
        if h == 0:
            txt[9] += [f"s_cmp_eq_u32 s{sCur}, {2 * SLOT}", f"s_cselect_b32 s{sDelta}, s67, {SLOT}"]
            txt[10] += [f"s_add_u32 s{sCur}, s{sCur}, s{sDelta}", f"s_sub_u32 s{sCnt}, s{sCnt}, 1"]
            txt[31] += [f"s_cmp_eq_u32 s{sCnt}, 0"]
        elif not last:
            txt[9] += [f"v_add_u32 v{XA16[0]}, s{sDelta}, v{XA16[0]}", f"v_add_u32 v{XA16[1]}, s{sDelta}, v{XA16[1]}"]
            txt[10] += [f"v_add_u32 v{WA16[0]}, s{sDelta}, v{WA16[0]}", f"v_add_u32 v{WA16[1]}, s{sDelta}, v{WA16[1]}"]
        if PROF and not last:
            txt[11] += ["s_memtime s[70:71]"]
            txt[29] += [f"s_lshl_b32 s72, s{sCnt}, 1", f"s_sub_u32 m0, {14 + h}, s72"]
            txt[30] += [f"v_writelane_b32 v{vLOOPST}, s70, m0"]
        if last:
            st = [f"ds_read_b64 {vr(MR16 + 2 * sg, 2)}, v{vB_MR} offset:{128 * sg}" for sg in range(8)]
            st += [f"ds_read_b128 {vr(CG16 + 4 * n, 4)}, v{vB_CS} offset:{64 * n}" for n in range(2)]
            st += [f"ds_read_b128 {vr(CU16 + 4 * n, 4)}, v{vB_CS} offset:{512 + 64 * n}" for n in range(2)]
            st += [f"ds_read_b128 {vr(TG16, 4)}, v{vA_TAG}"]
            for k, x in enumerate(st):
                txt[17 + k].append(x)
            gaps[0].append(lambda: lq.add("tag", f"ds_read_b32 v{TG16}, v{vA_TAG}"))
            li = late_ids()
            slots = [m for m in range(9, 31) if m != 16]
            per = -(-len(li) // len(slots))
            for k, x in enumerate(li):
                txt[slots[k // per]].append(x)
        else:
            for k, f in enumerate(second_half_reads(h ^ 1)):
                gaps[17 + k].append(f)
        for m in range(32):
            sg, n = m >> 2, m & 3
            if sg == 0:
                wait(("w", n, 1))
            if n == 0:
                wait(("x", 7 if sg == 4 else sg))
            e(f"v_mfma_f32_16x16x32_bf16 {vr(A16(sg, n), 4)}, {vr(W16[h][n], 4)}, {vr(X16[sg], 4)}, {vr(A16(sg, n), 4)}")
            if m == 16:
                bar()
            if last and m == 8:
                wait("tag")
                e(f"v_readfirstlane_b32 s{sTAG}, v{TG16}")
            for f in gaps[m]:
                issue(f)
            es(txt[m])

    raw(".p2align 3")
    lab("MAING")
    step(0, False)
    e("s_cbranch_scc1 LASTG")
    keep = list(lq.l)
    step(1, False)
    e("s_branch MAING")
    lab("LASTG")
    lq.l = keep
    step(1, True)


def glu_epilogue16():
    e(f"v_and_b32 v102, 15, v{vLANE}")
    e(f"v_bfe_u32 v103, v{vLANE}, 4, 1")
    e("v_lshlrev_b32 v102, 4, v102")
    e("v_lshl_add_u32 v102, v103, 9, v102")
    e(f"v_lshrrev_b32 v103, 5, v{vLANE}")
    e(f"v_mul_u32_u24 v103, {HZ}, v103")
    e("v_add_u32 v102, v102, v103")
    e("s_mov_b32 s66, 1.0")
    e("s_mov_b32 s67, 1.0")
    xloads()
    e("s_waitcnt lgkmcnt(0)")
    e(f"v_readfirstlane_b32 s{sPOL}, v{TG16 + 3}")
    for sg in range(8):
        e(f"v_mul_f32 v{MR16 + 2 * sg + 1}, {NLOG2E:#x}, v{MR16 + 2 * sg + 1}")
    es(hside(sOUT, sPAR, sPOL))
    raw(".p2align 3")
    for sg in range(8):
        q = sg >> 1
        b, p = q & 1, q >> 1
        mr = vr(MR16 + 2 * sg, 2)
        G, U = A16(sg, 0), A16(sg, 2)
        for k in range(4):
            e(f"v_pk_fma_f32 {vr(G + 2 * k, 2)}, {vr(CG16 + 2 * k, 2)}, {mr}, {vr(G + 2 * k, 2)} op_sel_hi:[1,0,1] neg_lo:[0,1,0] neg_hi:[0,1,0]")
        for k in range(4):
            e(f"v_pk_mul_f32 {vr(G + 2 * k, 2)}, {vr(G + 2 * k, 2)}, {mr} op_sel:[0,1] op_sel_hi:[1,1]")
        for k in range(8):
            e(f"v_exp_f32 v{G + k}, v{G + k}")
        for k in range(4):
            e(f"v_pk_add_f32 {vr(G + 2 * k, 2)}, {vr(G + 2 * k, 2)}, s[66:67]")
        for k in range(8):
            e(f"v_rcp_f32 v{G + k}, v{G + k}")
        for k in range(4):
            e(f"v_pk_fma_f32 {vr(U + 2 * k, 2)}, {vr(CU16 + 2 * k, 2)}, {mr}, {vr(U + 2 * k, 2)} op_sel_hi:[1,0,1] neg_lo:[0,1,0] neg_hi:[0,1,0]")
        for k in range(4):
            e(f"v_pk_mul_f32 {vr(U + 2 * k, 2)}, {vr(U + 2 * k, 2)}, {vr(G + 2 * k, 2)}")
        o = 4 * sg
        for k in range(4):
            e(f"v_cvt_pk_bf16_f32 v{o + k}, v{U + 2 * k}, v{U + 2 * k + 1}")
        e(f"s_add_u32 s65, s{sOUT}, {(b * 2 + p) * 2 * HZ + (sg & 1) * 256 + H_OFF}")
        e(f"buffer_store_dwordx4 {vr(o, 4)}, v102, {srd(SRD_WS)}, s65 offen sc1")
    e(f"v_mov_b32 v43, v{TG16}")
    publish()


def publish():
    stamp(3)
    cm("publish: the last of the four waves whose stores have completed writes the workgroup's flag")
    e("v_mov_b32 v41, 1")
    e("v_mov_b32 v42, 0")
    e("s_mov_b64 exec, 1")
    e("s_waitcnt vmcnt(0)")
    e(f"ds_add_rtn_u32 v41, v{vA_TAG}, v41 offset:4")
    e("s_waitcnt lgkmcnt(0)")
    e("v_readfirstlane_b32 s64, v41")
    e("s_cmp_lg_u32 s64, 3")
    e("s_cbranch_scc1 HNOFLAG")
    e(f"buffer_store_dword v43, v42, {srd(SRD_WS)}, s{sFLG} offen sc1")
    lab("HNOFLAG")
    e("s_mov_b64 exec, -1")
    stamp(4)


def dft_prologue():
    e(f"v_and_b32 v2, 31, v{vLANE}")
    e("v_cvt_f32_u32 v3, v2")
    e(f"v_mul_f32 v3, {f2u(1.0 / 2048):#x}, v3")
    e(f"s_and_b32 s64, s{sWAVE}, 1")
    e(f"s_lshr_b32 s65, s{sWAVE}, 1")
    e("s_lshl_b32 s65, s65, 5")
    e("s_add_u32 s64, s64, s65")
    e(f"s_lshl_b32 s65, s{sI}, 1")
    e("s_add_u32 s64, s64, s65")
    e(f"v_lshrrev_b32 v4, 5, v{vLANE}")
    e("v_lshl_add_u32 v4, v4, 8, s64")
    e("v_cvt_f32_u32 v4, v4")
    e("v_mul_f32 v4, v3, v4")
    e("v_and_b32 v5, 1, v2")
    e("v_mul_u32_u24 v5, 0x8000, v5")
    e("v_lshl_or_b32 v5, v5, 16, v5")
    for jj in range(8):
        e(f"v_fmamk_f32 v{8 + jj}, v3, {f2u(64.0 * (8 * (jj >> 2) + (jj & 3))):#x}, v4")
    for jj in range(8):
        e(f"v_fract_f32 v{8 + jj}, v{8 + jj}")
    for jj in range(8):
        e(f"v_cos_f32 v{16 + jj}, v{8 + jj}")
        e(f"v_sin_f32 v{24 + jj}, v{8 + jj}")
    e("s_nop 0")
    for k in range(4):
        e(f"v_cvt_pk_bf16_f32 v{32 + k}, v{16 + 2 * k}, v{17 + 2 * k}")
        e(f"v_cvt_pk_bf16_f32 v{40 + k}, v{24 + 2 * k}, v{25 + 2 * k}")
    for k in range(4):
        e(f"v_xor_b32 v{36 + k}, v5, v{32 + k}")
        e(f"v_xor_b32 v{44 + k}, v5, v{40 + k}")
    e(f"s_lshl_b32 s64, s{sWAVE}, 12")
    e(f"s_add_u32 s64, s64, {MISC}")
    e(f"v_lshl_add_u32 v6, v{vLANE}, 4, s64")
    for k in range(4):
        e(f"ds_write_b128 v6, {vr(32 + 4 * k, 4)} offset:{1024 * k}")
    cm("column 0 carries the Nyquist bin: lanes 0 and 32 of wave 0 in column block 14 use (+1,-1,+1,...)")
    e(f"s_cmp_eq_u32 s{sJ}, 14")
    e("s_cselect_b32 s68, 1, 0")
    e(f"s_cmp_eq_u32 s{sWAVE}, 0")
    e("s_cselect_b32 s68, s68, 0")
    e("s_mov_b32 s69, s68")
    e(f"v_mov_b32 v{vPM}, 0xbf803f80")
    e(f"v_lshlrev_b32 v119, 4, v{vLANE}")
    e(f"v_add_u32 v119, {MISC}, v119")
    e("s_waitcnt lgkmcnt(0)")


def dft_epilogue():
    e(f"v_mov_b32 v114, v{vD_R}")
    xloads()
    e("s_waitcnt lgkmcnt(0)")
    e(f"v_readfirstlane_b32 s{sPOL}, v127")

    def TS(q):
        return (120 if q & 1 else 96), (104 if q == 0 else TW(q - 1, 0, 0))

    def valu(q):
        r_ = []
        for mat in range(2):
            A, T = ACC(mat, q), TS(q)[mat]
            if q == 0:
                for r in range(0, 16, 2):
                    r_.append(f"v_pk_mul_f32 {vr(A + r, 2)}, {vr(A + r, 2)}, {vr(R0 + r, 2)}")
            else:
                for r in range(16):
                    r_.append(f"v_mul_f32 v{A + r}, v{A + r}, v{R0 + r}")
            if mat and q < 3:
                r_[-1] = [r_[-1]] + [f"ds_read_b128 {vr(R0 + 4 * a, 4)}, v114 offset:{128 * (q + 1) + 32 * a}" for a in range(4)]
            for k in range(8):
                r_.append(f"v_cvt_pk_bf16_f32 v{T + k}, v{A + 2 * k}, v{A + 2 * k + 1}")
        return r_

    def mfmas(q):
        ta, tb = TS(q)
        zr, zi = ACC(0, q), ACC(1, q)
        seq = [(zr, 1, 0, tb), (zi, 0, 0, tb), (zr, 1, 1, tb + 4), (zi, 0, 1, tb + 4),
               (zr, 0, 0, ta), (zr, 0, 1, ta + 4), (zi, 1, 0, ta), (zi, 1, 1, ta + 4)]
        return [f"v_mfma_f32_32x32x16_bf16 {vr(d, 16)}, {vr(TW(q, cs, z), 4)}, {vr(b, 4)}, {'0' if k < 2 else vr(d, 16)}"
                for k, (d, cs, z, b) in enumerate(seq)]

    for q in range(5):
        v_ = valu(q) if q < 4 else []
        m_ = mfmas(q - 1) if q else []
        if 0 < q < 4:
            e("s_waitcnt lgkmcnt(0)")
        if q:
            e("s_nop 1")
        per = len(v_) // 8
        for k in range(8):
            if m_:
                e(m_[k])
                if k in (3, 4):
                    for x in range(4):
                        rg = TW(q - 1, 1, k - 3) + x
                        e(f"v_xor_b32 v{rg}, 0x80008000, v{rg}")
            if q:
                cut = [0, 6, 12, 18, 24, 30, 35, 40, 48]
                es(v_[cut[k]:cut[k + 1]])
            else:
                es(v_[k * per:(k + 1) * per])
    e(f"v_and_b32 v112, 31, v{vLANE}")
    e(f"v_lshrrev_b32 v113, 5, v{vLANE}")
    e("v_lshlrev_b32 v112, 4, v112")
    e("v_lshl_add_u32 v125, v113, 18, v112")
    e("s_nop 7")
    for r in range(16):
        for q in range(4):
            e(f"v_cvt_pk_bf16_f32 v{4 * r + q}, v{ACC(0, q) + r}, v{ACC(1, q) + r}")
        e(f"s_add_u32 s65, s{sOUT}, {(8 * (r >> 2) + (r & 3)) * 65536}")
        e(f"buffer_store_dwordx4 {vr(4 * r, 4)}, v125, {srd(SRD_WS)}, s65 offen sc1")
    stamp(3)
    e(f"v_mov_b32 v64, {CNTL}")
    e("v_mov_b32 v65, 1")
    e("s_mov_b64 exec, 1")
    e("ds_add_u32 v64, v65")
    e("s_mov_b64 exec, -1")
    stamp(4)
    cm("publish Z: the last of the four waves whose stores have completed writes the workgroup's flag")
    e(f"v_mov_b32 v66, s{sTAG}")
    e("v_mov_b32 v67, 0")
    e("s_mov_b64 exec, 1")
    e("s_waitcnt vmcnt(0)")
    e("ds_add_rtn_u32 v65, v64, v65 offset:4")
    e("s_waitcnt lgkmcnt(0)")
    e("v_readfirstlane_b32 s64, v65")
    e("s_cmp_lg_u32 s64, 3")
    e("s_cbranch_scc1 NOZF")
    e(f"buffer_store_dword v66, v67, {srd(SRD_WS)}, s{sFLG} offen sc1")
    lab("NOZF")
    e("s_mov_b64 exec, -1")
    e("s_branch PHASE2")


def phase2():
    OWN, OTH, Y, EF, HR, ET = 128, 144, 160, 32, 176, 248
    vR = 88
    W2 = [[96, 100], [104, 108], [240, 244]]
    WD = [112, 113]
    vH, vZA = 114, 116
    vEA, vEB, vES = 122, 123, 124
    ZF = 0
    assert D <= 16
    vm, lq = Q(), Q()
    lab("PHASE2")
    stamp(5)
    e(f"v_and_b32 v89, 31, v{vLANE}")
    e(f"v_lshrrev_b32 v90, 5, v{vLANE}")
    es(hside(sH, sPAR2, sPOL))
    e(f"v_bfe_u32 v{ET}, v{vLANE}, 2, 2")
    e(f"v_lshl_add_u32 v92, v90, 2, v{ET}")
    e(f"s_lshl_b32 s68, s{sKH}, 10")
    e("v_lshl_add_u32 v92, v92, 7, s68")
    e(f"v_and_b32 v93, 1, v{vLANE}")
    e("v_lshlrev_b32 v93, 2, v93")
    e(f"v_bfe_u32 v{ET + 1}, v{vLANE}, 4, 1")
    e(f"v_lshl_add_u32 v93, v{ET + 1}, 1, v93")
    e(f"v_bfe_u32 v{ET + 1}, v{vLANE}, 1, 1")
    e(f"v_add_u32 v93, v93, v{ET + 1}")
    e("v_lshl_add_u32 v92, v93, 3, v92")
    e(f"v_lshrrev_b32 v{ET}, 1, v{ET}")
    e(f"v_xor_b32 v{ET}, s{sKH}, v{ET}")
    e(f"v_lshl_add_u32 v{WD[0]}, v{ET}, 6, v92")
    e(f"v_xor_b32 v{WD[1]}, 64, v{WD[0]}")
    e(f"v_lshlrev_b32 v{vH}, 4, v{vLANE}")
    bar("BW")
    stamp(6)
    nh = [0]

    def hmore(lim, cnt):
        while cnt and nh[0] < min(56, lim):
            v = nh[0]
            vm.add(("h", v), f"buffer_load_dwordx4 {vr(HR + 4 * (v % D), 4)}, v{vH}, {srd(SRD_WS)}, s{sH} offen offset:{1024 * (v & 3)} sc1")
            if v & 3 == 3:
                e(f"s_add_u32 s{sH}, s{sH}, {4096 if v & 4 == 0 else HB - 4096}")
            nh[0] += 1
            cnt -= 1

    base = [0]

    def wreads(v):
        a = wslot(v) * 4096
        if (a & ~0xFFFF) != base[0]:
            d = (a & ~0xFFFF) - base[0]
            base[0] = a & ~0xFFFF
            es([f"v_add_u32 v{WD[c]}, {d & 0xffffffff:#x}, v{WD[c]}" for c in range(2)])
        for c in range(2):
            for k in range(2):
                lq.add(("w", v, c, k), f"ds_read_b64_tr_b16 {vr(W2[v % 3][c] + 2 * k, 2)}, v{WD[c]} offset:{(a & 0xFFFF) + 2048 * k}")

    for v in range(OPT["D0"]):
        hmore(56, 1)
        if v == 1:
            wreads(0)
            wreads(1)

    fill = [[f"s_cmp_ge_u32 s{sCB}, 4", "s_cselect_b64 s[70:71], -1, 0"],
            f"s_lshl_b32 s68, s{sKH}, 9", f"s_add_u32 s68, s68, {ZL}", f"v_lshl_add_u32 v{vZA}, v89, 4, s68",
            f"v_lshl_add_u32 v{vZA}, v90, 10, v{vZA}",
            f"s_lshl_b32 s68, s{sP}, 7", f"s_add_u32 s68, s68, {R2L}", "v_lshl_add_u32 v93, v89, 2, s68",
            f"v_lshl_add_u32 v91, v89, 1, s{sP}", f"v_sub_u32 v92, s{sC0}, v91", "v_cndmask_b32 v91, v91, v92, s[70:71]",
            f"v_and_b32 v{vES}, 1, v91", f"v_mul_u32_u24 v{vES}, 0x8000, v{vES}", f"v_lshl_or_b32 v{vES}, v{vES}, 16, v{vES}",
            "v_cvt_f32_u32 v91, v91", f"v_mul_f32 v{vEA}, {f2u(1.0 / 64):#x}, v91",
            "v_lshlrev_b32 v92, 1, v90", "v_cvt_f32_u32 v92, v92", f"v_mul_f32 v{vEB}, v{vEA}, v92"]
    for sg in range(8):
        for b in range(2):
            fill.append(f"v_fmamk_f32 v{ET + b}, v{vEA}, {f2u(float(4 * sg + b)):#x}, v{vEB}")
        for b in range(2):
            fill.append(f"v_fract_f32 v{ET + b}, v{ET + b}")
        for b in range(2):
            fill.append(f"v_cos_f32 v{ET + 2 + b}, v{ET + b}")
            fill.append(f"v_sin_f32 v{ET + 4 + b}, v{ET + b}")
        fill.append([f"v_cvt_pk_bf16_f32 v{EF + 4 * sg}, v{ET + 2}, v{ET + 4}",
                     f"v_cvt_pk_bf16_f32 v{EF + 4 * sg + 1}, v{ET + 3}, v{ET + 5}"])
        for b in range(2):
            fill.append(f"v_xor_b32 v{EF + 4 * sg + 2 + b}, v{vES}, v{EF + 4 * sg + b}")
    P2BAR = {55 - NRES: "BP1", NRES - 2: "BP2", OPT["vz0"]: "BZ0"}
    assert NRES - 2 < OPT["vz0"] < 55

    for v in range(56):
        e(f"s_waitcnt vmcnt({vm.younger(('h', v))}) lgkmcnt({lq.younger(('w', v, 1, 1))})")
        h = vr(HR + 4 * (v % D), 4)
        st = v % 3
        e(f"v_mfma_f32_32x32x16_bf16 {vr(OWN, 16)}, {vr(W2[st][0], 4)}, {h}, {'0' if v == 0 else vr(OWN, 16)}")
        if v in P2BAR:
            bar(P2BAR[v])
        if v + 2 < 56:
            wreads(v + 2)
        e(f"v_mfma_f32_32x32x16_bf16 {vr(OTH, 16)}, {vr(W2[st][1], 4)}, {h}, {'0' if v == 0 else vr(OTH, 16)}")
        if PROF and v % 4 == 0:
            e("s_memtime s[78:79]")
        if PROF and v % 4 == 2:
            e(f"v_writelane_b32 v{vLOOPST}, s78, {16 + v // 4}")
        if v == 40:
            lq.add("r", f"ds_read_b32 v{vR}, v93")
        hmore(v + 1 + D, 2)
        es(fill[:OPT.get("nf", 3)])
        del fill[:OPT.get("nf", 3)]
    assert not fill
    stamp(7)

    def ymf(sg):
        e(f"v_mfma_f32_32x32x16_bf16 {vr(Y, 16)}, {vr(ZF + 4 * sg, 4)}, {vr(EF + 4 * sg, 4)}, {'0' if sg == 0 else vr(Y, 16)}")

    cm("cross-wave reduction over the two K halves")
    XU, PT, TT = 176, 192, 208
    e(f"s_lshl_b32 s68, s{sWAVE}, 12")
    e(f"s_add_u32 s68, s68, {RED}")
    e(f"v_lshl_add_u32 v91, v{vLANE}, 4, s68")
    e("v_xor_b32 v92, 8192, v91")
    e(f"v_mul_f32 v{vR + 1}, {NLOG2E:#x}, v{vR}")
    e("v_mov_b32 v93, 0xffff0000")
    e("s_nop 0")
    for k in range(3):
        e(f"v_lshlrev_b32 v{XU + 2 * k}, 16, v{XR + k}")
        e(f"v_and_b32 v{XU + 2 * k + 1}, v93, v{XR + k}")
    for a in range(4):
        e(f"ds_write_b128 v91, {vr(OTH + 4 * a, 4)} offset:{1024 * a}")
    for k in range(3, 8):
        e(f"v_lshlrev_b32 v{XU + 2 * k}, 16, v{XR + k}")
        e(f"v_and_b32 v{XU + 2 * k + 1}, v93, v{XR + k}")
    e("s_waitcnt lgkmcnt(0)")
    bar("BR")
    for a in range(4):
        e(f"ds_read_b128 {vr(PT + 4 * a, 4)}, v92 offset:{1024 * a}")
    for sg in range(8):
        e(f"ds_read_b128 {vr(ZF + 4 * sg, 4)}, v{vZA} offset:{2048 * sg}")
    e("s_waitcnt lgkmcnt(8)")
    rr = vr(vR, 2)
    raw(".p2align 3")
    for k in range(8):
        e(f"v_pk_add_f32 {vr(OWN + 2 * k, 2)}, {vr(OWN + 2 * k, 2)}, {vr(PT + 2 * k, 2)}")
    for k in range(8):
        e(f"v_pk_mul_f32 {vr(TT + 2 * k, 2)}, {vr(OWN + 2 * k, 2)}, {rr} op_sel:[0,1] op_sel_hi:[1,1]")
    for k in range(8):
        e(f"v_pk_mul_f32 {vr(OWN + 2 * k, 2)}, {vr(OWN + 2 * k, 2)}, {rr} op_sel_hi:[1,0]")
    e("s_waitcnt lgkmcnt(0)")
    for k in range(16):
        if k % 3 == 0:
            ymf(k // 3)
        e(f"v_exp_f32 v{TT + k}, v{TT + k}")
    for k in range(16):
        if k in (2, 8):
            ymf(6 + (k >> 3))
        e(f"v_add_f32 v{TT + k}, 1.0, v{TT + k}")
    for k in range(16):
        e(f"v_rcp_f32 v{TT + k}, v{TT + k}")
    raw(".p2align 3")
    for k in range(8):
        e(f"v_pk_mul_f32 {vr(OWN + 2 * k, 2)}, {vr(OWN + 2 * k, 2)}, {vr(TT + 2 * k, 2)}")
    for k in range(8):
        e(f"v_pk_fma_f32 {vr(OWN + 2 * k, 2)}, {vr(OWN + 2 * k, 2)}, {vr(Y + 2 * k, 2)}, {vr(XU + 2 * k, 2)}")
    for k in range(8):
        e(f"v_cvt_pk_bf16_f32 v{TT + k}, v{OWN + 2 * k}, v{OWN + 2 * k + 1}")
    e(f"buffer_store_dwordx4 {vr(TT, 4)}, v{vXO}, {srd(SRD_OUT)}, s{sXO} offen")
    e(f"buffer_store_dwordx4 {vr(TT + 4, 4)}, v{vXO}, {srd(SRD_OUT)}, s{sXO} offen offset:16")
    stamp_flush(8, 64, True)
    if OPT.get("rabs"):
        lab("DLY")
        e("s_memrealtime s[82:83]")
        e("s_waitcnt lgkmcnt(0)")
        e("s_sub_u32 s82, s82, s98")
        e(f"s_cmp_lt_u32 s82, {OPT['rabs']}")
        e("s_cbranch_scc1 DLY")
    e("s_endpgm")


def cwave():
    section("C0")
    lab("CWAVE")
    cm("================ C waves: matrix work ================")
    e("s_setprio 2")
    ids1()
    e(f"v_mov_b32 v{vLANE}, v0")
    for k in range(4):
        e(f"v_mov_b32 v{8 + k}, 0")
    e("v_and_b32 v2, 31, v0")
    e("v_lshrrev_b32 v3, 5, v0")
    for k in range(8):
        e(f"v_mfma_f32_32x32x16_bf16 {vr(128 + 16 * k, 16)}, v[8:11], v[8:11], 0")
    e("s_waitcnt lgkmcnt(0)")
    srds2()
    e(f"s_and_b32 s{sP}, s{sWAVE}, 1")
    e(f"s_lshr_b32 s{sKH}, s{sWAVE}, 1")
    e(f"s_lshl_b32 s64, s{sI}, 4")
    e(f"s_add_u32 s64, s64, s{sJ}")
    e("s_lshl_b32 s64, s64, 7")
    e(f"s_add_u32 s{sFLG}, s64, {FLH}")
    e(f"s_cmp_eq_u32 s{sDFT}, 1")
    e("s_cbranch_scc1 CDFT")
    e(f"s_lshl_b32 s64, s{sJ}, 2")
    e(f"s_add_u32 s64, s64, s{sWAVE}")
    e("s_lshr_b32 s65, s64, 3")
    e(f"s_mul_i32 s65, s65, {HB}")
    e("s_and_b32 s64, s64, 7")
    e("s_lshl_b32 s64, s64, 10")
    e("s_add_u32 s64, s64, s65")
    e(f"s_lshl_b32 s65, s{sI}, 1")
    es(hbase(sOUT, 65))
    e(f"s_mov_b32 s{sPAR}, s47")
    e(f"s_add_u32 s{sOUT}, s{sOUT}, s64")
    if True:
        e("v_and_b32 v2, 15, v0")
        e("v_lshrrev_b32 v3, 4, v0")
        e("v_lshrrev_b32 v4, 1, v2")
        e("v_xor_b32 v4, v4, v3")
        e("v_lshlrev_b32 v5, 7, v2")
        e(f"v_lshl_add_u32 v{XA16[0]}, v4, 4, v5")
        e(f"v_add_u32 v{XA16[0]}, {SLOT + 32768}, v{XA16[0]}")
        e(f"v_xor_b32 v{XA16[1]}, 64, v{XA16[0]}")
        e("v_bfe_u32 v4, v0, 2, 2")
        e("v_lshlrev_b32 v5, 12, v3")
        e("v_lshl_add_u32 v5, v4, 8, v5")
        e(f"v_xor_b32 v4, s{sWAVE}, v4")
        e("v_lshl_add_u32 v5, v4, 6, v5")
        e("v_and_b32 v4, 1, v3")
        e("v_lshl_add_u32 v5, v4, 5, v5")
        e("v_and_b32 v4, 3, v0")
        e("v_lshl_add_u32 v5, v4, 3, v5")
        e(f"v_add_u32 v{WA16[0]}, {SLOT}, v5")
        e(f"v_xor_b32 v{WA16[1]}, 32, v{WA16[0]}")
        e(f"s_lshl_b32 s64, s{sWAVE}, 7")
        e(f"s_add_u32 s64, s64, {CSL}")
        e(f"v_lshl_add_u32 v{vB_CS}, v3, 4, s64")
        e(f"v_lshlrev_b32 v{vB_MR}, 3, v2")
        e(f"v_add_u32 v{vB_MR}, {MRP}, v{vB_MR}")
        e(f"v_mov_b32 v{vA_TAG}, {TAGL}")
    e("s_branch CGLU")
    section("CG")
    lab("CGLU")
    stamp(1)
    bar("B0")
    mainloop16()
    stamp(2)
    glu_epilogue16()
    phase2()
    section("CD")
    lab("CDFT")
    e("v_bfe_u32 v4, v0, 1, 3")
    e("v_lshlrev_b32 v5, 7, v2")
    e(f"v_add_u32 v5, {SLOT + 32768}, v5")
    for u in range(4):
        e(f"v_add_u32 v6, {2 * u}, v3")
        e("v_xor_b32 v6, v6, v4")
        e(f"v_lshl_add_u32 v{XA[u]}, v6, 4, v5")
    e("v_bfe_u32 v4, v0, 2, 2")
    e(f"v_lshlrev_b32 v{WA}, 12, v3")
    e(f"v_lshl_add_u32 v{WA}, v4, 8, v{WA}")
    e(f"v_xor_b32 v4, s{sWAVE}, v4")
    e(f"v_lshl_add_u32 v{WA}, v4, 6, v{WA}")
    e("v_bfe_u32 v4, v0, 4, 1")
    e("v_xor_b32 v4, v4, v3")
    e(f"v_lshl_add_u32 v{WA}, v4, 5, v{WA}")
    e("v_and_b32 v4, 3, v0")
    e(f"v_lshl_add_u32 v{WA}, v4, 3, v{WA}")
    e(f"v_add_u32 v{WA}, {SLOT}, v{WA}")
    e(f"v_lshlrev_b32 v{vD_R}, 4, v3")
    e(f"v_add_u32 v{vD_R}, {RL}, v{vD_R}")
    e(f"v_mov_b32 v{vD_TAG}, {TAGL}")
    e(f"s_lshl_b32 s64, s{sI}, 12")
    e(f"s_and_b32 s65, s{sJ}, 1")
    e("s_lshl_b32 s66, s65, 11")
    e("s_add_u32 s64, s64, s66")
    e(f"s_lshl_b32 s66, s{sWAVE}, 9")
    e("s_add_u32 s64, s64, s66")
    e(f"s_add_u32 s{sOUT}, s64, {Z_OFF}")
    dft_prologue()
    stamp(1)
    bar("B0")
    for k in range(16):
        e(f"ds_read_b128 {vr(4 * k, 4)}, v119 offset:{1024 * k}")
    mainloop(True)
    stamp(2)
    dft_epilogue()


hdr = open("cdna_kernels/" + NAME + ".s.ref").read().split("\n")
head = [l for l in hdr if l.startswith(";") and "@launch" not in l and "Override launch" not in l and "grid=ceil" not in l]
out = head + ["; @launch grid=(256,1,1) block=(512,1,1) lds=163840",
              '.amdgcn_target "amdgcn-amd-amdhsa--gfx950"', ".text", f".globl {K}"]
out.append(".p2align 12")
out += [".p2align 8", f".type {K},@function", f"{K}:"]
entry()
l2wave()
l3wave()
l01wave()
cwave()
for name, align in (("A", 0), ("A2", 0), ("C0", 0), ("L2", 0), ("L3", 0), ("CG", 12), ("CD", 12)):
    if align:
        out.append(f".p2align {align}")
    out += SEC[name]
out += ["END:", "    s_endpgm"]
out += ['.section .rodata,"a"', ".p2align 6", f".amdhsa_kernel {K}", "  .amdhsa_next_free_vgpr 256", "  .amdhsa_next_free_sgpr 102",
        "  .amdhsa_accum_offset 256", "  .amdhsa_group_segment_fixed_size 0", "  .amdhsa_kernarg_size 96",
        "  .amdhsa_user_sgpr_count 2", "  .amdhsa_user_sgpr_kernarg_segment_ptr 1", "  .amdhsa_system_sgpr_workgroup_id_x 1",
        ".end_amdhsa_kernel", ""]
open(sys.argv[1], "w").write("\n".join(out))
```

```python
import struct
import sys

NAME = "recurrent_scan__spectral_fnet__glu_gated_glu__prompt"
OPT = dict(prof=0, D=12, D0=6, pre=2, preb=1, pb2=5, prec=3, th=4, trk=22, u1=2, u2=8, pa=47, dtr=22, dth=4, dpa=47, slp=6, spin=200000,
           vz0=44, xa0=1, na=3, xb0=8, nb=7, xe=16, xt=4, tlb=0, numa=0, pol=-1, user=0)
for a in sys.argv[2:]:
    k, v = a.split("=")
    OPT[k] = int(v)
LITE = OPT["prof"] == 3
PROF = 0 if LITE else OPT["prof"]
K = NAME + "_kernel"
D = OPT["D"]

H_OFF, Z_OFF, ST_OFF, CS_OFF = 0, 0x800000, 0xA00000, 0xA10000
FLH, PROF_OFF, WS_SIZE = 0xA50000, 0xA60000, 0xB00000
PROBE = 0x1C0000
SLOT = 49152
MISC = 147456
CSL, MRP, RL, TAGL, CNTL, R2L = MISC, MISC + 1024, MISC + 2048, MISC + 3072, MISC + 3076, MISC + 3328
RED = 20 * 4096
ZL = 24 * 4096
NRES = 39
NST = 56 - NRES
NUMA = OPT['numa']
HB = 16384 if NUMA else 8192
HZ = 7 * HB
NLOG2E = 0xBFB8AA3B
OOB = 0x40000000


def wslot(v):
    return v if v < 36 else v + 1 if v < NRES else v - NRES


def f2u(x):
    return struct.unpack("<I", struct.pack("<f", x))[0]


SEC = {}
CUR = [None, False]


def section(n):
    CUR[0] = SEC.setdefault(n, [])


def e(s):
    CUR[0].append("    " + s)


def es(lst):
    for x in lst:
        for y in (x if isinstance(x, list) else [x]):
            e(y)


def lab(s):
    CUR[0].append(s + ":")


def raw(s):
    CUR[0].append(s)


def cm(s):
    CUR[0].append("    ; " + s)


def vr(a, n):
    return f"v[{a}:{a + n - 1}]"


def srd(n):
    return f"s[{n}:{n + 3}]"


class Q:
    def __init__(self):
        self.l = []

    def add(self, tag, txt=None):
        self.l.append(tag)
        if txt:
            e(txt)

    def younger(self, tag):
        return len(self.l) - 1 - self.l.index(tag)


SRD_X, SRD_WD, SRD_WS, SRD_OUT, SRD_DBG, SRD_WM = 4, 16, 20, 24, 28, 32
sWAVE, sI, sJ, sT1, sCB, sRS, sCOL, sDFT, sTAG, sIDX = 36, 37, 38, 39, 40, 41, 42, 43, 44, 45
sSTAMP = 80
vLOOPST, vLANE = 121, 117
uid = [0]


def stamp(i):
    if PROF:
        e(f"{'s_memrealtime' if PROF == 2 else 's_memtime'} s[{sSTAMP + 2 * i}:{sSTAMP + 2 * i + 1}]")


def stamp_flush(n, vt, cw):
    if not (PROF or (LITE and cw)):
        return
    e("s_waitcnt lgkmcnt(0)")
    e("s_lshl_b32 s78, s2, 3")
    e(f"s_add_u32 s78, s78, s{sWAVE}")
    e("s_lshl_b32 s78, s78, 8")
    e(f"s_add_u32 s78, s78, {PROF_OFF}")
    e(f"v_mov_b32 v{vt + 8}, 0")
    if PROF:
        for i in range(8):
            e(f"v_mov_b32 v{vt + i}, s{sSTAMP + 2 * i}" if i < n else f"v_mov_b32 v{vt + i}, 0")
        e(f"buffer_store_dwordx4 {vr(vt, 4)}, v{vt + 8}, {srd(SRD_WS)}, s78 offen")
        e(f"buffer_store_dwordx4 {vr(vt + 4, 4)}, v{vt + 8}, {srd(SRD_WS)}, s78 offen offset:16")
        if cw:
            e(f"v_lshlrev_b32 v{vt + 9}, 2, v{vLANE}")
            e(f"v_min_u32 v{vt + 9}, 124, v{vt + 9}")
            e(f"buffer_store_dword v{vLOOPST}, v{vt + 9}, {srd(SRD_WS)}, s78 offen offset:64")
    e("s_memrealtime s[76:77]")
    e("s_waitcnt lgkmcnt(0)")
    e(f"v_mov_b32 v{vt + 10}, s98")
    e(f"v_mov_b32 v{vt + 11}, s76")
    e(f"buffer_store_dwordx2 {vr(vt + 10, 2)}, v{vt + 8}, {srd(SRD_WS)}, s78 offen offset:32")


def bar(name=""):
    e("s_barrier" + (f"  ; {name}" if name else ""))


def poll_issue(vdst, vaddr, ssoff, srdn):
    e(f"buffer_load_dword v{vdst}, v{vaddr}, {srd(srdn)}, {ssoff} offen sc1")


def poll_wait(vdst, vaddr, ssoff, srdn, cond_tag=True, first_wait=0):
    uid[0] += 1
    k = uid[0]
    e(f"s_mov_b32 s75, {OPT['spin']}")
    e(f"s_waitcnt vmcnt({first_wait})")
    lab(f"POLL{k}")
    e(f"v_cmp_ne_u32 vcc, s{sTAG}, v{vdst}" if cond_tag else f"v_cmp_eq_u32 vcc, 0, v{vdst}")
    e("s_nop 1")
    e("s_cmp_eq_u64 vcc, 0")
    e(f"s_cbranch_scc1 POLLD{k}")
    if OPT["slp"]:
        e(f"s_sleep {OPT['slp']}")
    poll_issue(vdst, vaddr, ssoff, srdn)
    e("s_sub_u32 s75, s75, 1")
    e("s_cmp_lg_u32 s75, 0")
    e("s_waitcnt vmcnt(0)")
    e(f"s_cbranch_scc1 POLL{k}")
    lab(f"POLLD{k}")


def wait_c_done():
    uid[0] += 1
    k = uid[0]
    e(f"v_mov_b32 v7, {CNTL}")
    e(f"s_mov_b32 s75, {OPT['spin']}")
    lab(f"CW{k}")
    e("ds_read_b32 v8, v7")
    e("s_waitcnt lgkmcnt(0)")
    e("v_readfirstlane_b32 s76, v8")
    e("s_sub_u32 s75, s75, 1")
    e("s_cmp_eq_u32 s75, 0")
    e(f"s_cbranch_scc1 CWD{k}")
    e("s_sleep 1")
    e("s_cmp_lt_u32 s76, 4")
    e(f"s_cbranch_scc1 CW{k}")
    lab(f"CWD{k}")


def ids1():
    e("s_and_b32 s64, s2, 1")
    e("s_lshl_b32 s64, s64, 3")
    e(f"s_and_b32 s65, s{sIDX}, 7")
    e(f"s_add_u32 s{sI}, s64, s65")
    e("s_bfe_u32 s64, s2, 0x20001")
    e(f"s_lshr_b32 s67, s{sIDX}, 3")
    e("s_mul_i32 s65, s64, 3")
    e("s_add_u32 s65, s65, s67")
    e("s_add_u32 s66, s64, 14")
    e("s_cmp_eq_u32 s67, 3")
    e("s_cselect_b32 s65, s66, s65")
    e("s_lshl_b32 s66, s64, 2")
    e("s_add_u32 s66, s66, s67")
    e("s_sub_u32 s66, s66, 2")
    e("s_cmp_lt_u32 s64, 2")
    e(f"s_cselect_b32 s{sJ}, s65, s66")
    e(f"s_lshl_b32 s{sCOL}, s{sJ}, 8")
    e(f"s_sub_u32 s64, s{sCOL}, {14 * 256}")
    e(f"s_movk_i32 s{sRS}, 3584")
    e(f"s_cmp_ge_u32 s{sJ}, 14")
    e(f"s_cselect_b32 s{sDFT}, 1, 0")
    e(f"s_cselect_b32 s{sRS}, 1024, s{sRS}")
    e(f"s_cselect_b32 s{sCOL}, s64, s{sCOL}")
    e(f"s_lshl_b32 s34, s{sRS}, 9")
    e("s_mov_b32 s35, 0x20000")
    e("s_mov_b32 s6, 0x200000")
    e("s_mov_b32 s7, 0x20000")


def wm_select(scc_instr):
    e(f"s_cmp_eq_u32 s{sDFT}, 1")
    e("s_cselect_b64 s[8:9], s[48:49], s[52:53]")
    e("s_cselect_b64 s[12:13], s[50:51], s[54:55]")
    e(scc_instr)
    e("s_cselect_b64 s[32:33], s[12:13], s[8:9]")


def srds2():
    e("s_mov_b64 s[16:17], s[56:57]")
    e(f"s_mov_b32 s18, {1792 * 1024}")
    e("s_mov_b32 s19, 0x20000")
    e("s_mov_b64 s[20:21], s[62:63]")
    e(f"s_mov_b32 s22, {WS_SIZE}")
    e("s_mov_b32 s23, 0x20000")
    e("s_mov_b64 s[24:25], s[58:59]")
    e("s_mov_b32 s26, 0x200000")
    e("s_mov_b32 s27, 0x20000")
    e("s_mov_b64 s[28:29], s[60:61]")
    e("s_mov_b32 s30, 256")
    e("s_mov_b32 s31, 0x20000")


def ids2():
    return [f"s_add_u32 s46, s2, s{sTAG}" if OPT["user"] else "s_mov_b32 s46, s2",
            "s_bfe_u32 s47, s46, 0x20001", "s_lshl_b32 s47, s47, 3", f"s_and_b32 s{sT1}, s{sIDX}, 7", f"s_add_u32 s{sT1}, s{sT1}, s47",
            "s_and_b32 s46, s46, 1", "s_lshl_b32 s46, s46, 2", f"s_lshr_b32 s{sCB}, s{sIDX}, 3", f"s_add_u32 s{sCB}, s{sCB}, s46"]


def hbase(dst, t1):
    if not NUMA:
        return [f"s_mul_i32 s{dst}, s{t1}, {4 * HZ}"]
    return [f"s_and_b32 s46, s{t1}, 3", f"s_mul_i32 s{dst}, s46, {4 * HZ}", f"s_bfe_u32 s46, s{t1}, 0x20002",
            f"s_lshr_b32 s47, s{t1}, 4", "s_xor_b32 s47, s47, s46", "s_lshl_b32 s46, s46, 21", f"s_add_u32 s{dst}, s{dst}, s46"]


def hside(dst, par, pol):
    if not NUMA:
        return []
    return [f"s_xor_b32 s{par}, s{par}, s{pol}", f"s_and_b32 s{par}, s{par}, 1", f"s_lshl_b32 s{par}, s{par}, 13",
            f"s_add_u32 s{dst}, s{dst}, s{par}"]


def entry():
    section("A")
    e("s_cmp_ge_u32 s2, 256")
    e("s_cbranch_scc1 END")
    e("s_load_dwordx2 s[4:5], s[0:1], 0")
    e("s_load_dwordx4 s[48:51], s[0:1], 24")
    e("s_load_dwordx8 s[52:59], s[0:1], 48")
    e("s_load_dwordx4 s[60:63], s[0:1], 80")
    if PROF or LITE or OPT.get("rabs"):
        e("s_memrealtime s[98:99]")
    stamp(0)
    e("v_lshrrev_b32 v1, 6, v0")
    e("v_and_b32 v0, 63, v0")
    e(f"s_lshr_b32 s{sIDX}, s2, 3")
    e(f"v_readfirstlane_b32 s{sWAVE}, v1")
    e("s_getpc_b64 s[64:65]")
    lab("PCREF")
    e(f"s_cmp_ge_u32 s{sWAVE}, 4")
    e("s_cbranch_scc1 LSTART")
    if True:
        cm("pull the kernel's own code into this die's L2: three lines per matrix wave")
        e(f"s_lshl_b32 s66, s{sIDX}, 2")
        e(f"s_add_u32 s66, s66, s{sWAVE}")
        e("s_mul_i32 s66, s66, 384")
        e(f"s_min_u32 s66, s66, END-PCREF-384")
        e("s_and_b32 s64, s64, 0xffffff80")
        e("s_load_dwordx2 s[68:69], s[64:65], s66 offset:60")
        e("s_load_dwordx2 s[70:71], s[64:65], s66 offset:188")
        e("s_load_dwordx2 s[72:73], s[64:65], s66 offset:316")
    e("s_branch CWAVE")
    lab("LSTART")
    ids1()
    e(f"s_cmp_eq_u32 s{sWAVE}, 6")
    e("s_cbranch_scc1 L2WAVE")
    e(f"s_cmp_eq_u32 s{sWAVE}, 7")
    e("s_cbranch_scc1 L3WAVE")


def wd_voffset(vd, vt):
    e(f"v_lshrrev_b32 v{vt}, 3, v0")
    e(f"v_lshlrev_b32 v{vd}, 10, v{vt}")
    e(f"v_bfe_u32 v{vt}, v0, 4, 1")
    e(f"v_lshlrev_b32 v{vt}, 2, v{vt}")
    e(f"v_and_b32 v{vt + 1}, 7, v0")
    e(f"v_xor_b32 v{vt}, v{vt}, v{vt + 1}")
    e(f"v_lshl_add_u32 v{vd}, v{vt}, 4, v{vd}")


XS = 8192


def xw_base(par):
    e(f"s_lshr_b32 s60, s{sIDX}, 2")
    e("s_lshl_b32 s60, s60, 10")
    e(f"s_and_b32 s63, s{sIDX}, 3")
    e("s_lshl_b32 s63, s63, 7")
    e("s_add_u32 s60, s60, s63")
    e(f"s_and_b32 s63, {par}, 1")
    e("s_lshl_b32 s63, s63, 9")
    e("s_add_u32 s60, s60, s63")
    e("s_bfe_u32 s63, s2, 0x20001")
    e(f"s_mul_i32 s62, s63, {56 * XS}")


def xload(n):
    for k in range(n if not OPT.get("nox") else 0):
        e(f"s_buffer_load_dwordx2 s[58:59], {srd(SRD_WD)}, s60 offset:{XS * k + 60}")


def xa_init():
    xw_base("s2")
    e("s_add_u32 s60, s60, s62")
    e(f"s_sub_u32 s63, s{sWAVE}, 4")
    e(f"s_mul_i32 s63, s63, {28 * XS}")
    e("s_add_u32 s60, s60, s63")


def xa():
    xload(OPT["na"])
    e(f"s_add_u32 s60, s60, {OPT['na'] * XS}")


def xb_init(which):
    e(f"s_add_u32 s46, s2, s{sTAG}" if OPT["user"] else "s_mov_b32 s46, s2")
    xw_base("s46")
    e(f"s_add_u32 s60, s60, {which * OPT['nb'] * XS}")
    e("s_add_u32 s62, s62, s60")
    if OPT["user"]:
        e(f"s_bitcmp1_b32 s{sTAG}, 0")
        e("s_cselect_b32 s62, -1, s62")


XBN = [0, 0]


def xw(n, which):
    nb = OPT["nb"]
    if n < OPT["xb0"] or XBN[which] * 2 * nb >= 168:
        return
    XBN[which] += 1
    e("s_cmp_ge_u32 s60, s62")
    e(f"s_cselect_b32 s63, {56 * XS}, 0")
    e("s_cselect_b32 s62, -1, s62")
    e("s_add_u32 s60, s60, s63")
    xload(nb)
    e(f"s_add_u32 s60, s60, {2 * nb * XS}")


def l01wave():
    vX0, vX1, vW, vWD, vZ, vW1 = 2, 3, 4, 5, 9, 12
    sLW, sXa, sXb, sWo, sS0, sS1, sR4, sT, sCnt, sWd = 64, 65, 66, 67, 68, 69, 70, 71, 72, 73
    section("A2")
    lab("L01WAVE")
    cm("================ L0/L1: DMA waves ================")
    e(f"s_sub_u32 s{sLW}, s{sWAVE}, 4")
    e("v_lshrrev_b32 v6, 3, v0")
    e(f"v_lshlrev_b32 v{vX0}, 16, v6")
    e("v_lshrrev_b32 v6, 1, v6")
    e("v_and_b32 v7, 7, v0")
    e("v_xor_b32 v6, v6, v7")
    e(f"v_lshl_add_u32 v{vX0}, v6, 4, v{vX0}")
    e(f"v_xor_b32 v{vX1}, 64, v{vX0}")
    e("v_lshrrev_b32 v6, 4, v0")
    e(f"v_mul_lo_u32 v{vW}, v6, s{sRS}")
    e("v_bfe_u32 v7, v0, 2, 2")
    e("v_xor_b32 v7, v7, v6")
    e("v_lshlrev_b32 v7, 2, v7")
    e("v_and_b32 v8, 3, v0")
    e("v_or_b32 v7, v7, v8")
    e(f"v_lshl_add_u32 v{vW}, v7, 4, v{vW}")
    e("v_xor_b32 v7, 2, v7")
    e(f"v_mul_lo_u32 v{vW1}, v6, s{sRS}")
    e(f"v_lshl_add_u32 v{vW1}, v7, 4, v{vW1}")
    e(f"s_lshl_b32 s{sXa}, s{sI}, 1")
    e(f"s_add_u32 s{sXa}, s{sXa}, s{sLW}")
    e(f"s_lshl_b32 s{sXa}, s{sXa}, 10")
    e(f"s_add_u32 s{sXb}, s{sXa}, {32 * 1024}")
    e(f"s_mov_b32 s{sWo}, s{sCOL}")
    e(f"s_lshl_b32 s{sR4}, s{sRS}, 2")
    e(f"s_lshl_b32 s74, s{sLW}, 10")
    e(f"s_lshl_b32 s77, s{sLW}, 12")

    def wpieces(base_sgpr, imm):
        e(f"s_add_u32 s{sT}, s{base_sgpr}, s74")
        e(f"s_add_u32 m0, s{sT}, {imm}")
        e("s_nop 0")
        for k in range(8):
            if True:
                e(f"buffer_load_dwordx4 v{vW1 if k & 2 else vW}, {srd(SRD_WM)}, s{sWo} offen lds")
            if k < 7:
                e("s_add_u32 m0, m0, 2048")
            e(f"s_add_u32 s{sWo}, s{sWo}, s{sR4}")

    def xpieces(base_sgpr, half):
        sx = sXb if half else sXa
        e(f"s_add_u32 s{sT}, s{base_sgpr}, s77")
        e(f"s_add_u32 m0, s{sT}, {32768 + half * 8192}")
        e(f"s_mov_b32 s{sT}, s{sx}")
        for k in range(4):
            if True:
                e(f"buffer_load_dwordx4 v{vX1 if k & 1 else vX0}, {srd(SRD_X)}, s{sT} offen lds")
            if k < 3:
                e("s_add_u32 m0, m0, 1024")
                e(f"s_add_u32 s{sT}, s{sT}, 0x80000")
        e(f"s_add_u32 s{sx}, s{sx}, 128")

    e(f"s_mov_b32 s{sS0}, {SLOT}")
    e(f"s_mov_b32 s{sS1}, {2 * SLOT}")
    e("s_waitcnt lgkmcnt(0)")
    cm("G0 = x0 + W0 ; G1 = W1 + x1a")
    xpieces(sS0, 0)
    wm_select(f"s_cmp_eq_u32 s{sLW}, 1")
    wpieces(sS0, 0)
    xpieces(sS0, 1)
    wpieces(sS0, 16384)
    xpieces(sS1, 0)
    srds2()
    xa_init()
    wd_voffset(vWD, 6)
    e("v_min_u32 v10, 13, v0")
    e("v_lshlrev_b32 v10, 7, v10")
    e("v_and_b32 v47, 31, v0")
    e(f"s_lshl_b32 s63, s{sLW}, 7")
    e(f"s_add_u32 s63, s63, {R2L}")
    e("v_lshl_add_u32 v48, v47, 2, s63")
    e("v_lshlrev_b32 v47, 4, v47")
    e("v_mov_b32 v49, 0")
    e("v_lshlrev_b32 v13, 4, v0")
    e(f"s_lshl_b32 s56, s{sJ}, 13")
    e("s_add_u32 s56, s56, s74")
    e(f"s_add_u32 s56, s56, {CS_OFF}")
    e("s_add_u32 s57, s56, 4096")
    e(f"s_lshl_b32 s62, s{sI}, 11")
    e("s_add_u32 s62, s62, s74")
    e(f"s_add_u32 s62, s62, {ST_OFF}")
    e(f"s_lshl_b32 s63, s{sLW}, 9")
    e(f"s_add_u32 s63, s63, {CSL}")
    e("v_lshl_add_u32 v45, v0, 3, s63")
    e(f"s_lshl_b32 s63, s{sLW}, 8")
    e(f"s_add_u32 s63, s63, {RL}")
    e("v_lshl_add_u32 v46, v0, 2, s63")
    e(f"s_mov_b32 s{sS0}, {2 * SLOT}")
    e(f"s_mov_b32 s{sS1}, 0")
    e(f"s_mov_b32 s{sCnt}, 6")
    e("s_waitcnt vmcnt(12)")
    stamp(1)
    bar("B0")
    lab("L01LOOP")
    wpieces(sS0, 0)
    xpieces(sS0, 1)
    A0 = OPT["xa0"]
    NA = -(-28 // OPT["na"])
    ev = [n for n in range(0, 12, 2) if A0 <= n < A0 + NA]
    od = [n for n in range(1, 12, 2) if A0 <= n < A0 + NA]
    e(f"s_sub_u32 s63, {6 - ev[0] // 2}, s{sCnt}")
    e(f"s_cmp_ge_u32 s63, {len(ev)}")
    e("s_cbranch_scc1 L01X0")
    xa()
    lab("L01X0")
    e("s_waitcnt vmcnt(12)")
    bar("B(2s+1)")
    wpieces(sS0, 16384)
    xpieces(sS1, 0)
    e(f"s_sub_u32 s63, {6 - od[0] // 2}, s{sCnt}")
    e(f"s_cmp_ge_u32 s63, {len(od)}")
    e("s_cbranch_scc1 L01X1")
    xa()
    lab("L01X1")
    e(f"s_mov_b32 s{sS0}, s{sS1}")
    e(f"s_add_u32 s{sS1}, s{sS1}, {SLOT}")
    e(f"s_cmp_eq_u32 s{sS1}, {3 * SLOT}")
    e(f"s_cselect_b32 s{sS1}, 0, s{sS1}")
    e(f"s_sub_u32 s{sCnt}, s{sCnt}, 1")
    e(f"s_cmp_lg_u32 s{sCnt}, 0")
    e("s_waitcnt vmcnt(12)")
    bar("B(2s+2)")
    e("s_cbranch_scc1 L01LOOP")
    wpieces(sS0, 0)
    xpieces(sS0, 1)
    e(f"v_mov_b32 v7, {TAGL}")
    e("ds_read_b32 v8, v7")
    e("s_waitcnt lgkmcnt(0)")
    e(f"v_readfirstlane_b32 s{sTAG}, v8")
    es(ids2())
    e(f"s_lshr_b32 s61, s{sT1}, 1")
    e("s_lshl_b32 s61, s61, 11")
    e(f"s_and_b32 s48, s{sT1}, 1")
    e("s_lshl_b32 s48, s48, 9")
    e("s_add_u32 s48, s48, s61")
    e("s_add_u32 s48, s48, s74")
    e(f"s_add_u32 s48, s48, {ST_OFF}")
    e(f"s_add_u32 s61, s61, {FLH}")
    e(f"s_cmp_eq_u32 s{sLW}, 0")
    e(f"s_cselect_b32 s61, s61, {OOB:#x}")
    e("s_waitcnt vmcnt(12)")
    bar("B13")
    wpieces(sS0, 16384)

    def gets():
        cm("statistics of the other workgroups: column sums (128 columns x 4 partial sums) and 64 rows per wave")
        for k in range(4):
            e(f"buffer_load_dwordx4 {vr(16 + 4 * k, 4)}, v13, {srd(SRD_WS)}, {'s57' if k >= 2 else 's56'} offen offset:{2048 * (k & 1)} sc1")
        e(f"buffer_load_dwordx4 v[32:35], v13, {srd(SRD_WS)}, s62 offen sc1")
        e(f"buffer_load_dwordx4 v[52:55], v47, {srd(SRD_WS)}, s48 offen sc1")
        if NUMA:
            e(f"buffer_load_dword v50, v49, {srd(SRD_DBG)}, 0 offen offset:4 sc1")

    gets()
    e(f"s_lshl_b32 s{sWd}, s{sLW}, 14")
    e(f"s_lshl_b32 s{sT}, s{sCB}, 7")
    e(f"s_add_u32 s{sWd}, s{sWd}, s{sT}")
    e(f"s_lshl_b32 m0, s{sLW}, 11")

    def units(a, b, th=0):
        for v in range(a, b):
            e(f"s_add_u32 s{sT}, s{sWd}, 8192")
            if v < NRES:
                e(f"buffer_load_dwordx4 v{vWD}, {srd(SRD_WD)}, s{sWd} offen lds")
                e("s_add_u32 m0, m0, 1024")
            else:
                e(f"buffer_load_dwordx4 {vr(ST0 + 8 * (v - NRES), 4)}, v{vWD}, {srd(SRD_WD)}, s{sWd} offen")
            e(f"s_add_u32 s{sWd}, s{sWd}, 32768")
            if v < NRES:
                e(f"buffer_load_dwordx4 v{vWD}, {srd(SRD_WD)}, s{sT} offen lds")
            else:
                e(f"buffer_load_dwordx4 {vr(ST0 + 8 * (v - NRES) + 4, 4)}, v{vWD}, {srd(SRD_WD)}, s{sT} offen")
            if v + 1 < NRES:
                e(f"s_add_u32 m0, m0, {(wslot(v + 1) - wslot(v)) * 4096 - 1024}")
            if th:
                e(f"s_waitcnt vmcnt({th})")

    ST0 = 64
    U1, U2 = OPT["u1"], OPT["u2"]
    units(0, U1)
    e(f"s_waitcnt vmcnt({8 + 6 + NUMA + 2 * U1})")
    bar("B14")
    units(U1, U2)
    e(f"s_waitcnt vmcnt({6 + NUMA + 2 * U2})")
    bar("B15")
    e(f"s_mov_b32 s75, {OPT['spin']}")
    e(f"s_waitcnt vmcnt({2 * U2})")
    lab("GCHK")
    for k in range(8):
        e(f"v_xor_b32 v{36 + k}, s{sTAG}, v{17 + 2 * k}")
    e(f"v_xor_b32 v44, s{sTAG}, v35")
    e(f"v_xor_b32 v51, s{sTAG}, v55")
    if NUMA:
        e("v_and_b32 v56, 2, v50")
        e("v_xor_b32 v56, 2, v56")
        e("v_or3_b32 v44, v44, v51, v56")
    else:
        e("v_or_b32 v44, v44, v51")
    for k in range(4):
        e(f"v_or3_b32 v44, v44, v{36 + 2 * k}, v{37 + 2 * k}")
    e("v_cmp_ne_u32 vcc, 0, v44")
    e("v_add_f32 v36, v16, v20")
    e("v_add_f32 v37, v18, v22")
    e("s_cmp_eq_u64 vcc, 0")
    e("s_cbranch_scc1 GOK")
    e("s_sleep 2")
    gets()
    e("s_sub_u32 s75, s75, 1")
    e("s_cmp_lg_u32 s75, 0")
    e("s_waitcnt vmcnt(0)")
    e("s_cbranch_scc1 GCHK")
    lab("GOK")
    e("v_add_f32 v38, v24, v28")
    e("v_add_f32 v39, v26, v30")
    e("v_add_f32 v36, v36, v38")
    e("v_add_f32 v37, v37, v39")
    e("ds_write_b64 v45, v[36:37]")
    e(f"ds_write_b64 v45, v[32:33] offset:{MRP - CSL}")
    e("ds_write_b32 v46, v33")
    e("ds_write_b32 v48, v53")
    if NUMA:
        e("ds_write_b32 v7, v50 offset:12")
    e("s_waitcnt lgkmcnt(0)")
    stamp(2)
    bar("B16")
    TR = OPT["trk"]
    PA = OPT["pa"]
    e(f"s_cmp_eq_u32 s{sDFT}, 0")
    e("s_cbranch_scc1 L01GLU")
    cm("spectral workgroups store late: they need not hold back now")
    units(U2, OPT["dtr"], OPT["dth"])
    units(OPT["dtr"], OPT["dpa"])
    wait_c_done()
    stamp(3)
    units(OPT["dpa"], PA)
    poll_issue(11, 10, "s61", SRD_WS)
    units(PA, 56)
    e("s_branch L01JOIN")
    lab("L01GLU")
    units(U2, TR, OPT["th"])
    wait_c_done()
    stamp(3)
    units(TR, PA)
    cm("L0 waits for the 14 producers of row block t1>>1 (queued behind the w_down loads)")
    poll_issue(11, 10, "s61", SRD_WS)
    units(PA, 56)
    lab("L01JOIN")
    e("v_and_b32 v6, 3, v0")
    e("v_bfe_u32 v7, v0, 3, 2")
    e("v_lshl_add_u32 v6, v7, 2, v6")
    e("v_bfe_u32 v7, v0, 2, 1")
    e("v_lshl_add_u32 v6, v7, 4, v6")
    e("v_and_b32 v7, 32, v0")
    e(f"s_lshl_b32 s66, s{sCB}, 6")
    e("v_add3_u32 v6, v6, v7, s66")
    e("v_sub_u32 v7, 512, v6")
    e("v_and_b32 v7, 255, v7")
    e(f"s_sub_u32 s67, 32, s{sT1}")
    e("s_and_b32 s67, s67, 31")
    e(f"s_cmp_ge_u32 s{sCB}, 4")
    e("s_cselect_b64 s[68:69], -1, 0")
    e(f"s_cselect_b32 s67, s67, s{sT1}")
    e("v_cmp_eq_u32 vcc, 0, v6")
    e("v_cndmask_b32 v7, v6, v7, s[68:69]")
    e(f"v_lshlrev_b32 v{vZ}, 4, v7")
    e(f"v_mov_b32 v7, {OOB:#x}")
    e("s_lshl_b32 s67, s67, 16")
    e(f"v_cndmask_b32 v{vZ}, v{vZ}, v7, vcc")
    e(f"s_lshl_b32 s66, s{sLW}, 15")
    e("s_add_u32 s67, s67, s66")
    e(f"s_add_u32 s67, s67, {Z_OFF}")
    e(f"s_lshl_b32 s66, s{sLW}, 13")
    e(f"s_add_u32 m0, s66, {ZL}")
    e("v_bfe_u32 v12, v0, 1, 4")
    e("v_lshlrev_b32 v12, 4, v12")
    e("v_and_b32 v13, 1, v0")
    e("v_add3_u32 v12, v12, v13, 14")
    e("v_lshlrev_b32 v12, 7, v12")
    e(f"s_mov_b32 s70, {FLH}")
    e(f"s_lshl_b32 s66, s{sLW}, 11")
    e("v_lshl_add_u32 v6, v0, 4, s66")
    e(f"s_cmp_eq_u32 s{sLW}, 1")
    e(f"s_cselect_b32 s70, s70, {OOB:#x}")
    e("s_cbranch_scc1 L1NOPOLL")
    poll_wait(11, 10, "s61", SRD_WS, first_wait=2 * (56 - PA))
    lab("L1NOPOLL")
    e(f"s_waitcnt vmcnt({2 * min(NST, 56 - PA)})")
    stamp(4)
    bar("BW")
    e("s_waitcnt vmcnt(0)")
    bar("BP1")
    poll_issue(11, 12, "s70", SRD_WS)
    for k in range(2 * NST):
        if k == 32:
            e("v_add_u32 v6, 0x10000, v6")
        e(f"ds_write_b128 v6, {vr(ST0 + 4 * k, 4)} offset:{((k >> 1) * 4096 + (k & 1) * 1024) & 0xFFFF}")
    e("s_waitcnt lgkmcnt(0)")
    bar("BP2")
    e(f"s_cmp_eq_u32 s{sLW}, 0")
    e("s_cbranch_scc1 L0NOPOLL")
    poll_wait(11, 12, "s70", SRD_WS)
    lab("L0NOPOLL")
    stamp(5)
    bar("BZ0")
    for g in range(8):
        e(f"buffer_load_dwordx4 v{vZ}, {srd(SRD_WS)}, s67 offen sc1 lds")
        e("s_add_u32 m0, m0, 1024")
        e("s_add_u32 s67, s67, 4096")
    e("s_waitcnt vmcnt(0)")
    stamp(6)
    bar("BR")
    stamp_flush(7, 14, False)
    e("s_endpgm")


def probe(step):
    if not NUMA:
        return
    uid[0] += 1
    k = uid[0]
    e("s_cmp_lg_u32 s2, 0")
    e(f"s_cbranch_scc1 PRB{k}")
    e(f"s_mov_b32 s64, {PROBE}")
    if step == 0:
        e(f"s_buffer_load_dword s71, {srd(SRD_WS)}, s64")
        e(f"s_buffer_load_dword s71, {srd(SRD_WS)}, s64 offset:8192")
    else:
        e("s_waitcnt lgkmcnt(0)")
        e("s_memtime s[66:67]")
        e("s_waitcnt lgkmcnt(0)")
        e(f"s_buffer_load_dword s71, {srd(SRD_WS)}, s64 offset:{8192 * ((step - 1) & 1)} glc")
        e("s_waitcnt lgkmcnt(0)")
        e("s_memtime s[68:69]")
        e("s_waitcnt lgkmcnt(0)")
        e("s_sub_u32 s66, s68, s66")
        if step == 1:
            e("s_mov_b32 s70, s66")
        else:
            if OPT.get("dbgp"):
                e("v_mov_b32 v2, 0")
                e("v_mov_b32 v4, s70")
                e("v_mov_b32 v5, s66")
                e(f"buffer_store_dwordx2 v[4:5], v2, {srd(SRD_DBG)}, 0 offen offset:8")
            e("s_cmp_lt_u32 s70, s66")
            e("s_cselect_b32 s70, 2, 3")
            e(f"s_bfe_u32 s66, s{sTAG}, 0x10002")
            e("s_xor_b32 s70, s70, s66")
            if OPT["pol"] >= 0:
                e(f"s_mov_b32 s70, {2 | OPT['pol']}")
            e("v_mov_b32 v2, 0")
            e("v_mov_b32 v3, s70")
            e(f"buffer_store_dword v3, v2, {srd(SRD_DBG)}, 0 offen offset:4 sc1")
    lab(f"PRB{k}")


def l23_tail(which):
    xb_init(which)
    if which == 0 and NUMA:
        probe(1)
    else:
        xw(8, which)
    for n in range(9, OPT["xe"] + 1):
        bar(f"B{n}")
        if which == 0 and n == 9:
            probe(2)
        xw(n, which)
    for n in range(OPT["xt"]):
        xw(20, which)


def l2wave():
    vC = 8
    vm = Q()
    section("A")
    e("s_branch L01WAVE")
    lab("L2WAVE")
    cm("================ L2: column sums (64 columns x rows 64s + 16kq + 0..15) ================")
    e("v_lshrrev_b32 v18, 3, v0")
    e("v_and_b32 v19, 7, v0")
    e(f"v_mul_lo_u32 v{vC}, v18, s{sRS}")
    e(f"v_lshl_add_u32 v{vC}, v19, 4, v{vC}")
    e(f"s_lshr_b32 s64, s{sI}, 2")
    e("s_lshl_b32 s64, s64, 4")
    e(f"s_mul_i32 s69, s64, s{sRS}")
    e(f"s_and_b32 s64, s{sI}, 1")
    e("s_lshl_b32 s64, s64, 7")
    e("s_add_u32 s69, s69, s64")
    e(f"s_add_u32 s69, s69, s{sCOL}")
    e(f"s_lshl_b32 s70, s{sRS}, 3")
    e(f"s_mul_i32 s72, s{sRS}, 56")
    e("s_waitcnt lgkmcnt(0)")
    wm_select(f"s_bitcmp1_b32 s{sI}, 1")
    LD, AC = 32, 16

    def csload(y):
        vm.add(("c", y), f"buffer_load_dwordx4 {vr(LD + 4 * y, 4)}, v{vC}, {srd(SRD_WM)}, s69 offen")
        e(f"s_add_u32 s69, s69, {'s72' if y & 1 else 's70'}")

    def csproc(y):
        for d in range(4):
            r = LD + 4 * y + d
            if y == 0:
                e(f"v_lshlrev_b32 v{AC + 2 * d}, 16, v{r}")
                e(f"v_and_b32 v{AC + 2 * d + 1}, v9, v{r}")
            else:
                e(f"v_lshlrev_b32 v10, 16, v{r}")
                e(f"v_and_b32 v11, v9, v{r}")
                e(f"v_add_f32 v{AC + 2 * d}, v{AC + 2 * d}, v10")
                e(f"v_add_f32 v{AC + 2 * d + 1}, v{AC + 2 * d + 1}, v11")

    for y in range(2 * OPT["pre"]):
        csload(y)
    e("s_branch L2REST")
    section("L2")
    lab("L2REST")
    srds2()
    if OPT["tlb"]:
        cm("first touch of the pages used later (address translation is ready when the real accesses come); values unused")
        for k in range(6):
            e(f"s_mov_b32 s64, {k << 21 | 0x1f0000:#x}" if k < 5 else f"s_mov_b32 s64, {FLH + 0x7000:#x}")
            e(f"s_buffer_load_dword s71, {srd(SRD_WS)}, s64")
        e(f"s_buffer_load_dword s71, {srd(SRD_OUT)}, 0")
        e(f"s_mov_b32 s64, 0x1fff00")
        e(f"s_buffer_load_dword s71, {srd(SRD_OUT)}, s64")
    if OPT["tlb"] == 2:
        e("v_lshlrev_b32 v12, 21, v0")
        e("v_add_u32 v12, 0x70000, v12")
        vm.add("t0", f"buffer_load_dword v13, v12, {srd(SRD_WS)}, 0 offen")
        vm.add("t1", f"buffer_load_dword v13, v12, {srd(SRD_OUT)}, 0 offen")
    e("v_mov_b32 v9, 0xffff0000")
    stamp(1)
    issued, done = 2 * OPT["pre"], 0
    for n in range(8):
        bar(f"B{n}")
        while issued < 2 * (8 if n >= OPT["prec"] else OPT["pb2"] if n >= OPT["preb"] else 0):
            csload(issued)
            issued += 1
        if n >= 2:
            k = min(done + (3 if n < 7 else 9), 16, issued)
            e(f"s_waitcnt vmcnt({vm.younger(('c', k - 1))})")
            for y in range(done, k):
                csproc(y)
            done = k
        if n == 6:
            probe(0)
    assert done == 16 and issued == 16
    bar("B8")
    e(f"v_mov_b32 v12, {TAGL}")
    e("ds_read_b32 v25, v12")
    for k in range(4):
        e(f"v_permlane32_swap_b32 v{AC + k}, v{AC + k + 4}")
    e("s_nop 1")
    for k in range(4):
        e(f"v_add_f32 v{AC + k}, v{AC + k}, v{AC + k + 4}")
    e("s_nop 1")
    for k in range(2):
        e(f"v_permlane16_swap_b32 v{AC + k}, v{AC + k + 2}")
    e("s_nop 1")
    for k in range(2):
        e(f"v_add_f32 v{AC + k}, v{AC + k}, v{AC + k + 2}")
    e("v_and_b32 v10, 7, v0")
    e("v_lshlrev_b32 v10, 3, v10")
    e(f"v_add_f32_dpp v24, v{AC}, v{AC} row_ror:8 row_mask:0xf bank_mask:0x3")
    e("s_nop 1")
    e(f"v_add_f32_dpp v24, v{AC + 1}, v{AC + 1} row_ror:8 row_mask:0xf bank_mask:0xc")
    e("v_bfe_u32 v11, v0, 5, 1")
    e("v_lshl_add_u32 v10, v11, 2, v10")
    e("v_bfe_u32 v11, v0, 4, 1")
    e("v_lshl_add_u32 v10, v11, 1, v10")
    e("v_bfe_u32 v11, v0, 3, 1")
    e("v_add_u32 v10, v11, v10")
    e("v_lshlrev_b32 v10, 3, v10")
    e(f"s_lshl_b32 s64, s{sJ}, 13")
    e(f"s_add_u32 s64, s64, {CS_OFF}")
    e(f"s_lshl_b32 s65, s{sI}, 9")
    e("s_add_u32 s65, s64, s65")
    e("s_waitcnt lgkmcnt(0)")
    vm.add("pub", f"buffer_store_dwordx2 v[24:25], v10, {srd(SRD_WS)}, s65 offen sc1")
    e(f"v_readfirstlane_b32 s{sTAG}, v25")
    stamp(2)
    l23_tail(0)
    stamp_flush(3, 26, False)
    e("s_endpgm")


def l3wave():
    vm = Q()
    section("A")
    lab("L3WAVE")
    cm("================ L3: launch tag, row statistics (rows 8j..8j+7 of the row block), hand-off waits ================")
    e(f"s_bfe_u32 s64, s{sJ}, 0x10002")
    e(f"s_bfe_u32 s65, s{sJ}, 0x10003")
    e("s_lshl_b32 s65, s65, 5")
    e(f"s_lshl_b32 s66, s{sI}, 1")
    e("s_add_u32 s64, s64, s65")
    e("s_add_u32 s64, s64, s66")
    e(f"s_and_b32 s65, s{sJ}, 3")
    e("s_lshl_b32 s65, s65, 9")
    e("s_add_u32 s64, s64, s65")
    e("s_lshl_b32 s64, s64, 10")
    e("v_lshrrev_b32 v4, 3, v0")
    e("v_and_b32 v14, 7, v0")
    e("v_lshlrev_b32 v6, 16, v4")
    e("v_lshl_add_u32 v6, v14, 4, v6")
    e("s_memrealtime s[66:67]")
    e("s_waitcnt lgkmcnt(0)")
    LD, UP = 16, 48

    def rowload(y):
        vm.add(("r", y), f"buffer_load_dwordx4 {vr(LD + 4 * y, 4)}, v6, {srd(SRD_X)}, s64 offen offset:{128 * y}")

    for y in range(OPT["pre"]):
        rowload(y)
    e("s_branch L3REST")
    section("L3")
    lab("L3REST")
    srds2()
    e("v_mov_b32 v2, 0")
    e("s_getreg_b32 s67, hwreg(HW_REG_XCC_ID, 0, 3)")
    e("s_andn2_b32 s66, s66, 15")
    e("s_or_b32 s66, s66, 8")
    e("s_or_b32 s66, s66, s67")
    e("v_mov_b32 v3, s66")
    e("s_cmp_eq_u32 s2, 0")
    e(f"s_cselect_b32 s66, 0, {OOB:#x}")
    vm.add("tag", f"buffer_store_dword v3, v2, {srd(SRD_DBG)}, s66 offen sc1")
    e("v_mov_b32 v9, 0xffff0000")

    def unp(d):
        e(f"v_lshlrev_b32 v{UP + 2 * d}, 16, v{LD + d}")
        e(f"v_and_b32 v{UP + 2 * d + 1}, v9, v{LD + d}")
        if d == 0:
            e(f"v_mov_b32 v10, v{UP}")
            e(f"v_mov_b32 v11, v{UP + 1}")
        else:
            e(f"v_add_f32 v10, v10, v{UP + 2 * d}")
            e(f"v_add_f32 v11, v11, v{UP + 2 * d + 1}")

    def red8(r):
        e("s_nop 1")
        e(f"v_add_f32_dpp v{r}, v{r}, v{r} quad_perm:[1,0,3,2] row_mask:0xf bank_mask:0xf")
        e("s_nop 1")
        e(f"v_add_f32_dpp v{r}, v{r}, v{r} quad_perm:[2,3,0,1] row_mask:0xf bank_mask:0xf")
        e("s_nop 1")
        e(f"v_add_f32_dpp v{r}, v{r}, v{r} row_half_mirror row_mask:0xf bank_mask:0xf")

    def var(k):
        e(f"v_sub_f32 v{UP + k}, v{UP + k}, v10")
        e(f"v_fmac_f32 v{12 + (k & 1)}, v{UP + k}, v{UP + k}")

    issued, done = OPT["pre"], 0
    for n in range(6):
        bar(f"B{n}")
        while issued < (8 if n >= OPT["prec"] else OPT["pb2"] if n >= OPT["preb"] else 0):
            rowload(issued)
            issued += 1
        if n == 5:
            vm.add("np")
            poll_issue(3, 2, "0", SRD_DBG)
        if n >= 2:
            k = min(done + (2 if n < 5 else 8), 8, issued)
            e(f"s_waitcnt vmcnt({vm.younger(('r', k - 1))})")
            for d in range(4 * done, 4 * k):
                unp(d)
            done = k
    assert done == 8 and issued == 8
    e("v_add_f32 v10, v10, v11")
    red8(10)
    e(f"v_mul_f32 v10, {f2u(1.0 / 512):#x}, v10")
    e("v_mov_b32 v12, 0")
    e("v_mov_b32 v13, 0")
    bar("B6")
    for k in range(24):
        var(k)
    bar("B7")
    poll_wait(3, 2, "0", SRD_DBG, cond_tag=False, first_wait=vm.younger("np"))
    e(f"v_mov_b32 v15, {TAGL}")
    e("ds_write_b32 v15, v3")
    e("ds_write_b32 v15, v2 offset:4")
    e("ds_write_b32 v15, v2 offset:8")
    e(f"v_readfirstlane_b32 s{sTAG}, v3")
    for k in range(24, 44):
        var(k)
    e("s_waitcnt lgkmcnt(0)")
    bar("B8")
    for k in range(44, 64):
        var(k)
    e("v_add_f32 v12, v12, v13")
    red8(12)
    e(f"v_mul_f32 v12, {f2u(1.0 / 512):#x}, v12")
    cm("roundings as in the reference: m=bf(mean); sd=bf(sqrt(bf(bf(var)+eps))); r=1/sd")
    e("v_cvt_pk_bf16_f32 v15, v10, v12")
    e("v_lshlrev_b32 v16, 16, v15")
    e("v_and_b32 v12, v9, v15")
    e(f"v_add_f32 v12, {f2u(1e-5):#x}, v12")
    e("v_cvt_pk_bf16_f32 v12, v12, v12")
    e("v_and_b32 v12, v9, v12")
    e("v_sqrt_f32 v12, v12")
    e("v_cmp_eq_u32 vcc, 0, v14")
    e("v_cvt_pk_bf16_f32 v12, v12, v12")
    e("v_and_b32 v12, v9, v12")
    e("v_rcp_f32 v17, v12")
    e("v_lshlrev_b32 v14, 4, v4")
    e(f"v_mov_b32 v15, {OOB:#x}")
    e(f"s_lshl_b32 s64, s{sI}, 11")
    e(f"s_add_u32 s64, s64, {ST_OFF}")
    e("v_cndmask_b32 v14, v15, v14, vcc")
    e("v_mov_b32 v18, v3")
    e("v_mov_b32 v19, v3")
    e(f"s_lshl_b32 s65, s{sJ}, 7")
    e("s_add_u32 s65, s64, s65")
    vm.add("pub", f"buffer_store_dwordx4 v[16:19], v14, {srd(SRD_WS)}, s65 offen sc1")
    stamp(1)
    l23_tail(1)
    stamp_flush(2, 26, False)
    e("s_endpgm")


XF = [[64 + 4 * q for q in range(4)], [80 + 4 * q for q in range(4)]]
WF = [[96, 100], [104, 108]]
XA = [112, 113, 114, 115]
WA = 116
vPM = 118
R0 = 64
vD_R, vD_TAG = 123, 124
vA_TAG = 116
sXO, sH, sPAR, sPOL, sFLG, sOUT, sC0, sP, sKH, sPAR2 = 56, 57, 58, 59, 61, 62, 63, 73, 74, 60
XR, vXO = 80, 115


def ACC(mat, q):
    return 128 + 32 * q + 16 * mat


def TW(q, cs, z):
    return 16 * q + 8 * cs + 4 * z


def frag_reads(u, st):
    r = []
    for mat in range(2):
        for a in range(2):
            r.append(f"ds_read_b64_tr_b16 {vr(WF[st][mat] + 2 * a, 2)}, v{WA} offset:{u * 8192 + a * 2048 + mat * 1024}")
    for q in range(4):
        r.append(f"ds_read_b128 {vr(XF[st][q], 4)}, v{XA[u]} offset:{q * 4096}")
    return r


def dft_stat_reads():
    return [f"ds_read_b128 v[124:127], v{vD_TAG}"] + [f"ds_read_b128 {vr(R0 + 4 * a, 4)}, v{vD_R} offset:{32 * a}" for a in range(4)]


def late_ids():
    r = ids2()
    r += [f"s_lshl_b32 s46, s{sP}, 5", f"s_add_u32 s46, s46, s{sT1}", f"s_lshl_b32 s{sXO}, s46, 10", f"s_lshl_b32 s46, s{sCB}, 7",
          f"s_add_u32 s{sXO}, s{sXO}, s46", f"s_lshl_b32 s46, s{sKH}, 6", f"s_add_u32 s{sXO}, s{sXO}, s46",
          [f"s_cmp_eq_u32 s{sT1}, 0", f"s_cselect_b32 s{sC0}, 64, 63"]]
    r += hbase(sH, sT1) + [f"s_mov_b32 s{sPAR2}, s47", f"s_lshl_b32 s46, s{sP}, 1", f"s_add_u32 s46, s46, s{sKH}",
                           f"s_mul_i32 s46, s46, {HZ}", f"s_add_u32 s{sH}, s{sH}, s46"]
    r += [f"v_and_b32 v100, 31, v{vLANE}", f"v_lshrrev_b32 v101, 5, v{vLANE}", f"v_lshlrev_b32 v{vXO}, 16, v100",
          f"v_lshl_add_u32 v{vXO}, v101, 5, v{vXO}"]
    return r


def xloads():
    e(f"buffer_load_dwordx4 {vr(XR, 4)}, v{vXO}, {srd(SRD_X)}, s{sXO} offen")
    e(f"buffer_load_dwordx4 {vr(XR + 4, 4)}, v{vXO}, {srd(SRD_X)}, s{sXO} offen offset:16")


def mainloop(dft):
    sCnt, sDelta, sCur = 64, 65, 66
    tag = "D" if dft else "G"
    es(frag_reads(0, 0))
    e(f"s_mov_b32 s{sCnt}, 8")
    e(f"s_mov_b32 s{sCur}, {SLOT}")
    e(f"s_mov_b32 s67, {(-2 * SLOT) & 0xffffffff:#x}")

    def step(u, last):
        st = u & 1
        mf = []
        for mat in ((1, 0) if dft else (0, 1)):
            for q in range(4):
                a, b = (XF[st][q], WF[st][mat]) if dft else (WF[st][mat], XF[st][q])
                mf.append(f"v_mfma_f32_32x32x16_bf16 {vr(ACC(mat, q), 16)}, {vr(a, 4)}, {vr(b, 4)}, {vr(ACC(mat, q), 16)}")
        rd = frag_reads((u + 1) & 3, st ^ 1)
        gaps = [[] for _ in range(8)]
        if u == 3 and not last:
            gaps[0] += [f"v_add_u32 v{WA}, s{sDelta}, v{WA}", f"v_add_u32 v{XA[0]}, s{sDelta}, v{XA[0]}"]
            gaps[5] += [f"v_add_u32 v{XA[1]}, s{sDelta}, v{XA[1]}"]
            gaps[6] += [f"v_add_u32 v{XA[2]}, s{sDelta}, v{XA[2]}", f"v_add_u32 v{XA[3]}, s{sDelta}, v{XA[3]}"]
        if PROF and u in (0, 2):
            gaps[0] += ["s_memtime s[70:71]"]
        if PROF and u in (1, 3):
            gaps[5] += [f"s_lshl_b32 s72, s{sCnt}, 1", f"s_sub_u32 m0, {16 if u == 1 else 15}, s72", f"v_writelane_b32 v{vLOOPST}, s70, m0"]
        if u == 2:
            gaps[5] += [f"s_cmp_eq_u32 s{sCur}, {2 * SLOT}", f"s_cselect_b32 s{sDelta}, s67, {SLOT}"]
            gaps[6] += [f"s_add_u32 s{sCur}, s{sCur}, s{sDelta}", f"s_sub_u32 s{sCnt}, s{sCnt}, 1"]
            gaps[7] += [f"s_cmp_eq_u32 s{sCnt}, 0"]
        if u & 1:
            gaps[0] += ["s_barrier"]
        if dft:
            gaps[0] = [f"v_cndmask_b32 v{WF[st][0] + k}, v{WF[st][0] + k}, v{vPM}, s[68:69]" for k in range(2)] + gaps[0]
            gaps[1] += [f"v_cndmask_b32 v{WF[st][0] + k}, v{WF[st][0] + k}, v{vPM}, s[68:69]" for k in range(2, 4)]
        if u == 2:
            gaps[4].append(f"ds_read_b32 v119, v{vD_TAG}")
        if last:
            extra = dft_stat_reads()
            for k, x in enumerate(extra):
                gaps[2 + min(k // 3, 4)].append(x)
            gaps[0].append(f"v_readfirstlane_b32 s{sTAG}, v119")
            li = late_ids()
            for k, x in enumerate(li):
                gaps[1 + k * 7 // len(li)].append(x)
        else:
            for k in range(4):
                gaps[k + (1 if (u & 1) else 0)] += rd[2 * k:2 * k + 2]
        e("s_waitcnt lgkmcnt(0)")
        for k in range(8):
            e(mf[k])
            es(gaps[k])

    raw(".p2align 3")
    lab(f"MAIN{tag}")
    for u in range(3):
        step(u, False)
    e(f"s_cbranch_scc1 LAST{tag}")
    step(3, False)
    e(f"s_branch MAIN{tag}")
    lab(f"LAST{tag}")
    step(3, True)


X16 = [4 * k for k in range(8)]
W16 = [[64 + 4 * n for n in range(4)], [80 + 4 * n for n in range(4)]]
XA16, WA16 = [112, 113], [114, 115]
MR16, CG16, CU16, TG16 = 32, 48, 56, 96
vB_CS, vB_MR = 119, 120


def A16(sg, n):
    return 128 + 16 * sg + 4 * n


def mainloop16():
    sCnt, sDelta, sCur = 64, 65, 66
    lq = Q()
    gen = [0]

    def rdx(sg, h):
        lq.add(("x", sg), f"ds_read_b128 {vr(X16[sg], 4)}, v{XA16[h]} offset:{sg * 2048}")

    def rdw(n, a, h):
        lq.add(("w", n, a), f"ds_read_b64_tr_b16 {vr(W16[h][n] + 2 * a, 2)}, v{WA16[n & 1]} offset:{h * 16384 + a * 2048 + (n >> 1) * 1024}")

    def wait(tag):
        idx = max(i for i, t in enumerate(lq.l) if t == tag)
        n = len(lq.l) - 1 - idx
        if n < gen[0]:
            e(f"s_waitcnt lgkmcnt({n})")
            gen[0] = n

    def second_half_reads(h):
        return [lambda: rdw(0, 0, h), lambda: rdw(0, 1, h), lambda: rdx(0, h), lambda: rdw(1, 0, h), lambda: rdw(1, 1, h),
                lambda: rdw(2, 0, h), lambda: rdw(2, 1, h), lambda: rdw(3, 0, h), lambda: rdw(3, 1, h),
                lambda: rdx(1, h), lambda: rdx(2, h), lambda: rdx(3, h)]

    def issue(f):
        f()
        gen[0] += 1

    for f in second_half_reads(0):
        issue(f)
    e(f"s_mov_b32 s{sCnt}, 8")
    e(f"s_mov_b32 s{sCur}, {SLOT}")
    e(f"s_mov_b32 s67, {(-2 * SLOT) & 0xffffffff:#x}")

    def step(h, last):
        gen[0] = 15
        gaps = [[] for _ in range(32)]
        for k, sg in enumerate((4, 5, 6, 7)):
            gaps[1 + 2 * k].append(lambda sg=sg: rdx(sg, h))
        txt = [[] for _ in range(32)]
        if h == 0:
            txt[9] += [f"s_cmp_eq_u32 s{sCur}, {2 * SLOT}", f"s_cselect_b32 s{sDelta}, s67, {SLOT}"]
            txt[10] += [f"s_add_u32 s{sCur}, s{sCur}, s{sDelta}", f"s_sub_u32 s{sCnt}, s{sCnt}, 1"]
            txt[31] += [f"s_cmp_eq_u32 s{sCnt}, 0"]
        elif not last:
            txt[9] += [f"v_add_u32 v{XA16[0]}, s{sDelta}, v{XA16[0]}", f"v_add_u32 v{XA16[1]}, s{sDelta}, v{XA16[1]}"]
            txt[10] += [f"v_add_u32 v{WA16[0]}, s{sDelta}, v{WA16[0]}", f"v_add_u32 v{WA16[1]}, s{sDelta}, v{WA16[1]}"]
        if PROF and not last:
            txt[11] += ["s_memtime s[70:71]"]
            txt[29] += [f"s_lshl_b32 s72, s{sCnt}, 1", f"s_sub_u32 m0, {14 + h}, s72"]
            txt[30] += [f"v_writelane_b32 v{vLOOPST}, s70, m0"]
        if last:
            st = [f"ds_read_b64 {vr(MR16 + 2 * sg, 2)}, v{vB_MR} offset:{128 * sg}" for sg in range(8)]
            st += [f"ds_read_b128 {vr(CG16 + 4 * n, 4)}, v{vB_CS} offset:{64 * n}" for n in range(2)]
            st += [f"ds_read_b128 {vr(CU16 + 4 * n, 4)}, v{vB_CS} offset:{512 + 64 * n}" for n in range(2)]
            st += [f"ds_read_b128 {vr(TG16, 4)}, v{vA_TAG}"]
            for k, x in enumerate(st):
                txt[17 + k].append(x)
            gaps[0].append(lambda: lq.add("tag", f"ds_read_b32 v{TG16}, v{vA_TAG}"))
            li = late_ids()
            slots = [m for m in range(9, 31) if m != 16]
            per = -(-len(li) // len(slots))
            for k, x in enumerate(li):
                txt[slots[k // per]].append(x)
        else:
            for k, f in enumerate(second_half_reads(h ^ 1)):
                gaps[17 + k].append(f)
        for m in range(32):
            sg, n = m >> 2, m & 3
            if sg == 0:
                wait(("w", n, 1))
            if n == 0:
                wait(("x", 7 if sg == 4 else sg))
            e(f"v_mfma_f32_16x16x32_bf16 {vr(A16(sg, n), 4)}, {vr(W16[h][n], 4)}, {vr(X16[sg], 4)}, {vr(A16(sg, n), 4)}")
            if m == 16:
                bar()
            if last and m == 8:
                wait("tag")
                e(f"v_readfirstlane_b32 s{sTAG}, v{TG16}")
            for f in gaps[m]:
                issue(f)
            es(txt[m])

    raw(".p2align 3")
    lab("MAING")
    step(0, False)
    e("s_cbranch_scc1 LASTG")
    keep = list(lq.l)
    step(1, False)
    e("s_branch MAING")
    lab("LASTG")
    lq.l = keep
    step(1, True)


def glu_epilogue16():
    e(f"v_and_b32 v102, 15, v{vLANE}")
    e(f"v_bfe_u32 v103, v{vLANE}, 4, 1")
    e("v_lshlrev_b32 v102, 4, v102")
    e("v_lshl_add_u32 v102, v103, 9, v102")
    e(f"v_lshrrev_b32 v103, 5, v{vLANE}")
    e(f"v_mul_u32_u24 v103, {HZ}, v103")
    e("v_add_u32 v102, v102, v103")
    e("s_mov_b32 s66, 1.0")
    e("s_mov_b32 s67, 1.0")
    xloads()
    e("s_waitcnt lgkmcnt(0)")
    e(f"v_readfirstlane_b32 s{sPOL}, v{TG16 + 3}")
    for sg in range(8):
        e(f"v_mul_f32 v{MR16 + 2 * sg + 1}, {NLOG2E:#x}, v{MR16 + 2 * sg + 1}")
    es(hside(sOUT, sPAR, sPOL))
    raw(".p2align 3")
    for sg in range(8):
        q = sg >> 1
        b, p = q & 1, q >> 1
        mr = vr(MR16 + 2 * sg, 2)
        G, U = A16(sg, 0), A16(sg, 2)
        for k in range(4):
            e(f"v_pk_fma_f32 {vr(G + 2 * k, 2)}, {vr(CG16 + 2 * k, 2)}, {mr}, {vr(G + 2 * k, 2)} op_sel_hi:[1,0,1] neg_lo:[0,1,0] neg_hi:[0,1,0]")
        for k in range(4):
            e(f"v_pk_mul_f32 {vr(G + 2 * k, 2)}, {vr(G + 2 * k, 2)}, {mr} op_sel:[0,1] op_sel_hi:[1,1]")
        for k in range(8):
            e(f"v_exp_f32 v{G + k}, v{G + k}")
        for k in range(4):
            e(f"v_pk_add_f32 {vr(G + 2 * k, 2)}, {vr(G + 2 * k, 2)}, s[66:67]")
        for k in range(8):
            e(f"v_rcp_f32 v{G + k}, v{G + k}")
        for k in range(4):
            e(f"v_pk_fma_f32 {vr(U + 2 * k, 2)}, {vr(CU16 + 2 * k, 2)}, {mr}, {vr(U + 2 * k, 2)} op_sel_hi:[1,0,1] neg_lo:[0,1,0] neg_hi:[0,1,0]")
        for k in range(4):
            e(f"v_pk_mul_f32 {vr(U + 2 * k, 2)}, {vr(U + 2 * k, 2)}, {vr(G + 2 * k, 2)}")
        o = 4 * sg
        for k in range(4):
            e(f"v_cvt_pk_bf16_f32 v{o + k}, v{U + 2 * k}, v{U + 2 * k + 1}")
        e(f"s_add_u32 s65, s{sOUT}, {(b * 2 + p) * 2 * HZ + (sg & 1) * 256 + H_OFF}")
        e(f"buffer_store_dwordx4 {vr(o, 4)}, v102, {srd(SRD_WS)}, s65 offen sc1")
    e(f"v_mov_b32 v43, v{TG16}")
    publish()


def publish():
    stamp(3)
    cm("publish: the last of the four waves whose stores have completed writes the workgroup's flag")
    e("v_mov_b32 v41, 1")
    e("v_mov_b32 v42, 0")
    e("s_mov_b64 exec, 1")
    e("s_waitcnt vmcnt(0)")
    e(f"ds_add_rtn_u32 v41, v{vA_TAG}, v41 offset:4")
    e("s_waitcnt lgkmcnt(0)")
    e("v_readfirstlane_b32 s64, v41")
    e("s_cmp_lg_u32 s64, 3")
    e("s_cbranch_scc1 HNOFLAG")
    e(f"buffer_store_dword v43, v42, {srd(SRD_WS)}, s{sFLG} offen sc1")
    lab("HNOFLAG")
    e("s_mov_b64 exec, -1")
    stamp(4)


def dft_prologue():
    e(f"v_and_b32 v2, 31, v{vLANE}")
    e("v_cvt_f32_u32 v3, v2")
    e(f"v_mul_f32 v3, {f2u(1.0 / 2048):#x}, v3")
    e(f"s_and_b32 s64, s{sWAVE}, 1")
    e(f"s_lshr_b32 s65, s{sWAVE}, 1")
    e("s_lshl_b32 s65, s65, 5")
    e("s_add_u32 s64, s64, s65")
    e(f"s_lshl_b32 s65, s{sI}, 1")
    e("s_add_u32 s64, s64, s65")
    e(f"v_lshrrev_b32 v4, 5, v{vLANE}")
    e("v_lshl_add_u32 v4, v4, 8, s64")
    e("v_cvt_f32_u32 v4, v4")
    e("v_mul_f32 v4, v3, v4")
    e("v_and_b32 v5, 1, v2")
    e("v_mul_u32_u24 v5, 0x8000, v5")
    e("v_lshl_or_b32 v5, v5, 16, v5")
    for jj in range(8):
        e(f"v_fmamk_f32 v{8 + jj}, v3, {f2u(64.0 * (8 * (jj >> 2) + (jj & 3))):#x}, v4")
    for jj in range(8):
        e(f"v_fract_f32 v{8 + jj}, v{8 + jj}")
    for jj in range(8):
        e(f"v_cos_f32 v{16 + jj}, v{8 + jj}")
        e(f"v_sin_f32 v{24 + jj}, v{8 + jj}")
    e("s_nop 0")
    for k in range(4):
        e(f"v_cvt_pk_bf16_f32 v{32 + k}, v{16 + 2 * k}, v{17 + 2 * k}")
        e(f"v_cvt_pk_bf16_f32 v{40 + k}, v{24 + 2 * k}, v{25 + 2 * k}")
    for k in range(4):
        e(f"v_xor_b32 v{36 + k}, v5, v{32 + k}")
        e(f"v_xor_b32 v{44 + k}, v5, v{40 + k}")
    e(f"s_lshl_b32 s64, s{sWAVE}, 12")
    e(f"s_add_u32 s64, s64, {MISC}")
    e(f"v_lshl_add_u32 v6, v{vLANE}, 4, s64")
    for k in range(4):
        e(f"ds_write_b128 v6, {vr(32 + 4 * k, 4)} offset:{1024 * k}")
    cm("column 0 carries the Nyquist bin: lanes 0 and 32 of wave 0 in column block 14 use (+1,-1,+1,...)")
    e(f"s_cmp_eq_u32 s{sJ}, 14")
    e("s_cselect_b32 s68, 1, 0")
    e(f"s_cmp_eq_u32 s{sWAVE}, 0")
    e("s_cselect_b32 s68, s68, 0")
    e("s_mov_b32 s69, s68")
    e(f"v_mov_b32 v{vPM}, 0xbf803f80")
    e(f"v_lshlrev_b32 v119, 4, v{vLANE}")
    e(f"v_add_u32 v119, {MISC}, v119")
    e("s_waitcnt lgkmcnt(0)")


def dft_epilogue():
    e(f"v_mov_b32 v114, v{vD_R}")
    xloads()
    e("s_waitcnt lgkmcnt(0)")
    e(f"v_readfirstlane_b32 s{sPOL}, v127")

    def TS(q):
        return (120 if q & 1 else 96), (104 if q == 0 else TW(q - 1, 0, 0))

    def valu(q):
        r_ = []
        for mat in range(2):
            A, T = ACC(mat, q), TS(q)[mat]
            if q == 0:
                for r in range(0, 16, 2):
                    r_.append(f"v_pk_mul_f32 {vr(A + r, 2)}, {vr(A + r, 2)}, {vr(R0 + r, 2)}")
            else:
                for r in range(16):
                    r_.append(f"v_mul_f32 v{A + r}, v{A + r}, v{R0 + r}")
            if mat and q < 3:
                r_[-1] = [r_[-1]] + [f"ds_read_b128 {vr(R0 + 4 * a, 4)}, v114 offset:{128 * (q + 1) + 32 * a}" for a in range(4)]
            for k in range(8):
                r_.append(f"v_cvt_pk_bf16_f32 v{T + k}, v{A + 2 * k}, v{A + 2 * k + 1}")
        return r_

    def mfmas(q):
        ta, tb = TS(q)
        zr, zi = ACC(0, q), ACC(1, q)
        seq = [(zr, 1, 0, tb), (zi, 0, 0, tb), (zr, 1, 1, tb + 4), (zi, 0, 1, tb + 4),
               (zr, 0, 0, ta), (zr, 0, 1, ta + 4), (zi, 1, 0, ta), (zi, 1, 1, ta + 4)]
        return [f"v_mfma_f32_32x32x16_bf16 {vr(d, 16)}, {vr(TW(q, cs, z), 4)}, {vr(b, 4)}, {'0' if k < 2 else vr(d, 16)}"
                for k, (d, cs, z, b) in enumerate(seq)]

    for q in range(5):
        v_ = valu(q) if q < 4 else []
        m_ = mfmas(q - 1) if q else []
        if 0 < q < 4:
            e("s_waitcnt lgkmcnt(0)")
        if q:
            e("s_nop 1")
        per = len(v_) // 8
        for k in range(8):
            if m_:
                e(m_[k])
                if k in (3, 4):
                    for x in range(4):
                        rg = TW(q - 1, 1, k - 3) + x
                        e(f"v_xor_b32 v{rg}, 0x80008000, v{rg}")
            if q:
                cut = [0, 6, 12, 18, 24, 30, 35, 40, 48]
                es(v_[cut[k]:cut[k + 1]])
            else:
                es(v_[k * per:(k + 1) * per])
    e(f"v_and_b32 v112, 31, v{vLANE}")
    e(f"v_lshrrev_b32 v113, 5, v{vLANE}")
    e("v_lshlrev_b32 v112, 4, v112")
    e("v_lshl_add_u32 v125, v113, 18, v112")
    e("s_nop 7")
    for r in range(16):
        for q in range(4):
            e(f"v_cvt_pk_bf16_f32 v{4 * r + q}, v{ACC(0, q) + r}, v{ACC(1, q) + r}")
        e(f"s_add_u32 s65, s{sOUT}, {(8 * (r >> 2) + (r & 3)) * 65536}")
        e(f"buffer_store_dwordx4 {vr(4 * r, 4)}, v125, {srd(SRD_WS)}, s65 offen sc1")
    stamp(3)
    e(f"v_mov_b32 v64, {CNTL}")
    e("v_mov_b32 v65, 1")
    e("s_mov_b64 exec, 1")
    e("ds_add_u32 v64, v65")
    e("s_mov_b64 exec, -1")
    stamp(4)
    cm("publish Z: the last of the four waves whose stores have completed writes the workgroup's flag")
    e(f"v_mov_b32 v66, s{sTAG}")
    e("v_mov_b32 v67, 0")
    e("s_mov_b64 exec, 1")
    e("s_waitcnt vmcnt(0)")
    e("ds_add_rtn_u32 v65, v64, v65 offset:4")
    e("s_waitcnt lgkmcnt(0)")
    e("v_readfirstlane_b32 s64, v65")
    e("s_cmp_lg_u32 s64, 3")
    e("s_cbranch_scc1 NOZF")
    e(f"buffer_store_dword v66, v67, {srd(SRD_WS)}, s{sFLG} offen sc1")
    lab("NOZF")
    e("s_mov_b64 exec, -1")
    e("s_branch PHASE2")


def phase2():
    OWN, OTH, Y, EF, HR, ET = 128, 144, 160, 32, 176, 248
    vR = 88
    W2 = [[96, 100], [104, 108], [240, 244]]
    WD = [112, 113]
    vH, vZA = 114, 116
    vEA, vEB, vES = 122, 123, 124
    ZF = 0
    assert D <= 16
    vm, lq = Q(), Q()
    lab("PHASE2")
    stamp(5)
    e(f"v_and_b32 v89, 31, v{vLANE}")
    e(f"v_lshrrev_b32 v90, 5, v{vLANE}")
    es(hside(sH, sPAR2, sPOL))
    e(f"v_bfe_u32 v{ET}, v{vLANE}, 2, 2")
    e(f"v_lshl_add_u32 v92, v90, 2, v{ET}")
    e(f"s_lshl_b32 s68, s{sKH}, 10")
    e("v_lshl_add_u32 v92, v92, 7, s68")
    e(f"v_and_b32 v93, 1, v{vLANE}")
    e("v_lshlrev_b32 v93, 2, v93")
    e(f"v_bfe_u32 v{ET + 1}, v{vLANE}, 4, 1")
    e(f"v_lshl_add_u32 v93, v{ET + 1}, 1, v93")
    e(f"v_bfe_u32 v{ET + 1}, v{vLANE}, 1, 1")
    e(f"v_add_u32 v93, v93, v{ET + 1}")
    e("v_lshl_add_u32 v92, v93, 3, v92")
    e(f"v_lshrrev_b32 v{ET}, 1, v{ET}")
    e(f"v_xor_b32 v{ET}, s{sKH}, v{ET}")
    e(f"v_lshl_add_u32 v{WD[0]}, v{ET}, 6, v92")
    e(f"v_xor_b32 v{WD[1]}, 64, v{WD[0]}")
    e(f"v_lshlrev_b32 v{vH}, 4, v{vLANE}")
    bar("BW")
    stamp(6)
    nh = [0]

    def hmore(lim, cnt):
        while cnt and nh[0] < min(56, lim):
            v = nh[0]
            vm.add(("h", v), f"buffer_load_dwordx4 {vr(HR + 4 * (v % D), 4)}, v{vH}, {srd(SRD_WS)}, s{sH} offen offset:{1024 * (v & 3)} sc1")
            if v & 3 == 3:
                e(f"s_add_u32 s{sH}, s{sH}, {4096 if v & 4 == 0 else HB - 4096}")
            nh[0] += 1
            cnt -= 1

    base = [0]

    def wreads(v):
        a = wslot(v) * 4096
        if (a & ~0xFFFF) != base[0]:
            d = (a & ~0xFFFF) - base[0]
            base[0] = a & ~0xFFFF
            es([f"v_add_u32 v{WD[c]}, {d & 0xffffffff:#x}, v{WD[c]}" for c in range(2)])
        for c in range(2):
            for k in range(2):
                lq.add(("w", v, c, k), f"ds_read_b64_tr_b16 {vr(W2[v % 3][c] + 2 * k, 2)}, v{WD[c]} offset:{(a & 0xFFFF) + 2048 * k}")

    for v in range(OPT["D0"]):
        hmore(56, 1)
        if v == 1:
            wreads(0)
            wreads(1)

    fill = [[f"s_cmp_ge_u32 s{sCB}, 4", "s_cselect_b64 s[70:71], -1, 0"],
            f"s_lshl_b32 s68, s{sKH}, 9", f"s_add_u32 s68, s68, {ZL}", f"v_lshl_add_u32 v{vZA}, v89, 4, s68",
            f"v_lshl_add_u32 v{vZA}, v90, 10, v{vZA}",
            f"s_lshl_b32 s68, s{sP}, 7", f"s_add_u32 s68, s68, {R2L}", "v_lshl_add_u32 v93, v89, 2, s68",
            f"v_lshl_add_u32 v91, v89, 1, s{sP}", f"v_sub_u32 v92, s{sC0}, v91", "v_cndmask_b32 v91, v91, v92, s[70:71]",
            f"v_and_b32 v{vES}, 1, v91", f"v_mul_u32_u24 v{vES}, 0x8000, v{vES}", f"v_lshl_or_b32 v{vES}, v{vES}, 16, v{vES}",
            "v_cvt_f32_u32 v91, v91", f"v_mul_f32 v{vEA}, {f2u(1.0 / 64):#x}, v91",
            "v_lshlrev_b32 v92, 1, v90", "v_cvt_f32_u32 v92, v92", f"v_mul_f32 v{vEB}, v{vEA}, v92"]
    for sg in range(8):
        for b in range(2):
            fill.append(f"v_fmamk_f32 v{ET + b}, v{vEA}, {f2u(float(4 * sg + b)):#x}, v{vEB}")
        for b in range(2):
            fill.append(f"v_fract_f32 v{ET + b}, v{ET + b}")
        for b in range(2):
            fill.append(f"v_cos_f32 v{ET + 2 + b}, v{ET + b}")
            fill.append(f"v_sin_f32 v{ET + 4 + b}, v{ET + b}")
        fill.append([f"v_cvt_pk_bf16_f32 v{EF + 4 * sg}, v{ET + 2}, v{ET + 4}",
                     f"v_cvt_pk_bf16_f32 v{EF + 4 * sg + 1}, v{ET + 3}, v{ET + 5}"])
        for b in range(2):
            fill.append(f"v_xor_b32 v{EF + 4 * sg + 2 + b}, v{vES}, v{EF + 4 * sg + b}")
    P2BAR = {55 - NRES: "BP1", NRES - 2: "BP2", OPT["vz0"]: "BZ0"}
    assert NRES - 2 < OPT["vz0"] < 55

    for v in range(56):
        e(f"s_waitcnt vmcnt({vm.younger(('h', v))}) lgkmcnt({lq.younger(('w', v, 1, 1))})")
        h = vr(HR + 4 * (v % D), 4)
        st = v % 3
        e(f"v_mfma_f32_32x32x16_bf16 {vr(OWN, 16)}, {vr(W2[st][0], 4)}, {h}, {'0' if v == 0 else vr(OWN, 16)}")
        if v in P2BAR:
            bar(P2BAR[v])
        if v + 2 < 56:
            wreads(v + 2)
        e(f"v_mfma_f32_32x32x16_bf16 {vr(OTH, 16)}, {vr(W2[st][1], 4)}, {h}, {'0' if v == 0 else vr(OTH, 16)}")
        if PROF and v % 4 == 0:
            e("s_memtime s[78:79]")
        if PROF and v % 4 == 2:
            e(f"v_writelane_b32 v{vLOOPST}, s78, {16 + v // 4}")
        if v == 40:
            lq.add("r", f"ds_read_b32 v{vR}, v93")
        hmore(v + 1 + D, 2)
        es(fill[:OPT.get("nf", 3)])
        del fill[:OPT.get("nf", 3)]
    assert not fill
    stamp(7)

    def ymf(sg):
        e(f"v_mfma_f32_32x32x16_bf16 {vr(Y, 16)}, {vr(ZF + 4 * sg, 4)}, {vr(EF + 4 * sg, 4)}, {'0' if sg == 0 else vr(Y, 16)}")

    cm("cross-wave reduction over the two K halves")
    XU, PT, TT = 176, 192, 208
    e(f"s_lshl_b32 s68, s{sWAVE}, 12")
    e(f"s_add_u32 s68, s68, {RED}")
    e(f"v_lshl_add_u32 v91, v{vLANE}, 4, s68")
    e("v_xor_b32 v92, 8192, v91")
    e(f"v_mul_f32 v{vR + 1}, {NLOG2E:#x}, v{vR}")
    e("v_mov_b32 v93, 0xffff0000")
    e("s_nop 0")
    for k in range(3):
        e(f"v_lshlrev_b32 v{XU + 2 * k}, 16, v{XR + k}")
        e(f"v_and_b32 v{XU + 2 * k + 1}, v93, v{XR + k}")
    for a in range(4):
        e(f"ds_write_b128 v91, {vr(OTH + 4 * a, 4)} offset:{1024 * a}")
    for k in range(3, 8):
        e(f"v_lshlrev_b32 v{XU + 2 * k}, 16, v{XR + k}")
        e(f"v_and_b32 v{XU + 2 * k + 1}, v93, v{XR + k}")
    e("s_waitcnt lgkmcnt(0)")
    bar("BR")
    for a in range(4):
        e(f"ds_read_b128 {vr(PT + 4 * a, 4)}, v92 offset:{1024 * a}")
    for sg in range(8):
        e(f"ds_read_b128 {vr(ZF + 4 * sg, 4)}, v{vZA} offset:{2048 * sg}")
    e("s_waitcnt lgkmcnt(8)")
    rr = vr(vR, 2)
    raw(".p2align 3")
    for k in range(8):
        e(f"v_pk_add_f32 {vr(OWN + 2 * k, 2)}, {vr(OWN + 2 * k, 2)}, {vr(PT + 2 * k, 2)}")
    for k in range(8):
        e(f"v_pk_mul_f32 {vr(TT + 2 * k, 2)}, {vr(OWN + 2 * k, 2)}, {rr} op_sel:[0,1] op_sel_hi:[1,1]")
    for k in range(8):
        e(f"v_pk_mul_f32 {vr(OWN + 2 * k, 2)}, {vr(OWN + 2 * k, 2)}, {rr} op_sel_hi:[1,0]")
    e("s_waitcnt lgkmcnt(0)")
    for k in range(16):
        if k % 3 == 0:
            ymf(k // 3)
        e(f"v_exp_f32 v{TT + k}, v{TT + k}")
    for k in range(16):
        if k in (2, 8):
            ymf(6 + (k >> 3))
        e(f"v_add_f32 v{TT + k}, 1.0, v{TT + k}")
    for k in range(16):
        e(f"v_rcp_f32 v{TT + k}, v{TT + k}")
    raw(".p2align 3")
    for k in range(8):
        e(f"v_pk_mul_f32 {vr(OWN + 2 * k, 2)}, {vr(OWN + 2 * k, 2)}, {vr(TT + 2 * k, 2)}")
    for k in range(8):
        e(f"v_pk_fma_f32 {vr(OWN + 2 * k, 2)}, {vr(OWN + 2 * k, 2)}, {vr(Y + 2 * k, 2)}, {vr(XU + 2 * k, 2)}")
    for k in range(8):
        e(f"v_cvt_pk_bf16_f32 v{TT + k}, v{OWN + 2 * k}, v{OWN + 2 * k + 1}")
    e(f"buffer_store_dwordx4 {vr(TT, 4)}, v{vXO}, {srd(SRD_OUT)}, s{sXO} offen")
    e(f"buffer_store_dwordx4 {vr(TT + 4, 4)}, v{vXO}, {srd(SRD_OUT)}, s{sXO} offen offset:16")
    stamp_flush(8, 64, True)
    if OPT.get("rabs"):
        lab("DLY")
        e("s_memrealtime s[82:83]")
        e("s_waitcnt lgkmcnt(0)")
        e("s_sub_u32 s82, s82, s98")
        e(f"s_cmp_lt_u32 s82, {OPT['rabs']}")
        e("s_cbranch_scc1 DLY")
    e("s_endpgm")


def cwave():
    section("C0")
    lab("CWAVE")
    cm("================ C waves: matrix work ================")
    e("s_setprio 2")
    ids1()
    e(f"v_mov_b32 v{vLANE}, v0")
    for k in range(4):
        e(f"v_mov_b32 v{8 + k}, 0")
    e("v_and_b32 v2, 31, v0")
    e("v_lshrrev_b32 v3, 5, v0")
    for k in range(8):
        e(f"v_mfma_f32_32x32x16_bf16 {vr(128 + 16 * k, 16)}, v[8:11], v[8:11], 0")
    e("s_waitcnt lgkmcnt(0)")
    srds2()
    e(f"s_and_b32 s{sP}, s{sWAVE}, 1")
    e(f"s_lshr_b32 s{sKH}, s{sWAVE}, 1")
    e(f"s_lshl_b32 s64, s{sI}, 4")
    e(f"s_add_u32 s64, s64, s{sJ}")
    e("s_lshl_b32 s64, s64, 7")
    e(f"s_add_u32 s{sFLG}, s64, {FLH}")
    e(f"s_cmp_eq_u32 s{sDFT}, 1")
    e("s_cbranch_scc1 CDFT")
    e(f"s_lshl_b32 s64, s{sJ}, 2")
    e(f"s_add_u32 s64, s64, s{sWAVE}")
    e("s_lshr_b32 s65, s64, 3")
    e(f"s_mul_i32 s65, s65, {HB}")
    e("s_and_b32 s64, s64, 7")
    e("s_lshl_b32 s64, s64, 10")
    e("s_add_u32 s64, s64, s65")
    e(f"s_lshl_b32 s65, s{sI}, 1")
    es(hbase(sOUT, 65))
    e(f"s_mov_b32 s{sPAR}, s47")
    e(f"s_add_u32 s{sOUT}, s{sOUT}, s64")
    if True:
        e("v_and_b32 v2, 15, v0")
        e("v_lshrrev_b32 v3, 4, v0")
        e("v_lshrrev_b32 v4, 1, v2")
        e("v_xor_b32 v4, v4, v3")
        e("v_lshlrev_b32 v5, 7, v2")
        e(f"v_lshl_add_u32 v{XA16[0]}, v4, 4, v5")
        e(f"v_add_u32 v{XA16[0]}, {SLOT + 32768}, v{XA16[0]}")
        e(f"v_xor_b32 v{XA16[1]}, 64, v{XA16[0]}")
        e("v_bfe_u32 v4, v0, 2, 2")
        e("v_lshlrev_b32 v5, 12, v3")
        e("v_lshl_add_u32 v5, v4, 8, v5")
        e(f"v_xor_b32 v4, s{sWAVE}, v4")
        e("v_lshl_add_u32 v5, v4, 6, v5")
        e("v_and_b32 v4, 1, v3")
        e("v_lshl_add_u32 v5, v4, 5, v5")
        e("v_and_b32 v4, 3, v0")
        e("v_lshl_add_u32 v5, v4, 3, v5")
        e(f"v_add_u32 v{WA16[0]}, {SLOT}, v5")
        e(f"v_xor_b32 v{WA16[1]}, 32, v{WA16[0]}")
        e(f"s_lshl_b32 s64, s{sWAVE}, 7")
        e(f"s_add_u32 s64, s64, {CSL}")
        e(f"v_lshl_add_u32 v{vB_CS}, v3, 4, s64")
        e(f"v_lshlrev_b32 v{vB_MR}, 3, v2")
        e(f"v_add_u32 v{vB_MR}, {MRP}, v{vB_MR}")
        e(f"v_mov_b32 v{vA_TAG}, {TAGL}")
    e("s_branch CGLU")
    section("CG")
    lab("CGLU")
    stamp(1)
    bar("B0")
    mainloop16()
    stamp(2)
    glu_epilogue16()
    phase2()
    section("CD")
    lab("CDFT")
    e("v_bfe_u32 v4, v0, 1, 3")
    e("v_lshlrev_b32 v5, 7, v2")
    e(f"v_add_u32 v5, {SLOT + 32768}, v5")
    for u in range(4):
        e(f"v_add_u32 v6, {2 * u}, v3")
        e("v_xor_b32 v6, v6, v4")
        e(f"v_lshl_add_u32 v{XA[u]}, v6, 4, v5")
    e("v_bfe_u32 v4, v0, 2, 2")
    e(f"v_lshlrev_b32 v{WA}, 12, v3")
    e(f"v_lshl_add_u32 v{WA}, v4, 8, v{WA}")
    e(f"v_xor_b32 v4, s{sWAVE}, v4")
    e(f"v_lshl_add_u32 v{WA}, v4, 6, v{WA}")
    e("v_bfe_u32 v4, v0, 4, 1")
    e("v_xor_b32 v4, v4, v3")
    e(f"v_lshl_add_u32 v{WA}, v4, 5, v{WA}")
    e("v_and_b32 v4, 3, v0")
    e(f"v_lshl_add_u32 v{WA}, v4, 3, v{WA}")
    e(f"v_add_u32 v{WA}, {SLOT}, v{WA}")
    e(f"v_lshlrev_b32 v{vD_R}, 4, v3")
    e(f"v_add_u32 v{vD_R}, {RL}, v{vD_R}")
    e(f"v_mov_b32 v{vD_TAG}, {TAGL}")
    e(f"s_lshl_b32 s64, s{sI}, 12")
    e(f"s_and_b32 s65, s{sJ}, 1")
    e("s_lshl_b32 s66, s65, 11")
    e("s_add_u32 s64, s64, s66")
    e(f"s_lshl_b32 s66, s{sWAVE}, 9")
    e("s_add_u32 s64, s64, s66")
    e(f"s_add_u32 s{sOUT}, s64, {Z_OFF}")
    dft_prologue()
    stamp(1)
    bar("B0")
    for k in range(16):
        e(f"ds_read_b128 {vr(4 * k, 4)}, v119 offset:{1024 * k}")
    mainloop(True)
    stamp(2)
    dft_epilogue()


hdr = open("cdna_kernels/" + NAME + ".s.ref").read().split("\n")
head = [l for l in hdr if l.startswith(";") and "@launch" not in l and "Override launch" not in l and "grid=ceil" not in l]
out = head + ["; @launch grid=(256,1,1) block=(512,1,1) lds=163840",
              '.amdgcn_target "amdgcn-amd-amdhsa--gfx950"', ".text", f".globl {K}"]
out.append(".p2align 12")
out += [".p2align 8", f".type {K},@function", f"{K}:"]
entry()
l2wave()
l3wave()
l01wave()
cwave()
for name, align in (("A", 0), ("A2", 0), ("C0", 0), ("L2", 0), ("L3", 0), ("CG", 12), ("CD", 12)):
    if align:
        out.append(f".p2align {align}")
    out += SEC[name]
out += ["END:", "    s_endpgm"]
out += ['.section .rodata,"a"', ".p2align 6", f".amdhsa_kernel {K}", "  .amdhsa_next_free_vgpr 256", "  .amdhsa_next_free_sgpr 102",
        "  .amdhsa_accum_offset 256", "  .amdhsa_group_segment_fixed_size 0", "  .amdhsa_kernarg_size 96",
        "  .amdhsa_user_sgpr_count 2", "  .amdhsa_user_sgpr_kernarg_segment_ptr 1", "  .amdhsa_system_sgpr_workgroup_id_x 1",
        ".end_amdhsa_kernel", ""]
open(sys.argv[1], "w").write("\n".join(out))
```

```python
import struct
import sys

NAME = "recurrent_scan__spectral_fnet__glu_gated_glu__prompt"
OPT = dict(prof=0, D=12, D0=6, pre=2, preb=1, pb2=5, prec=3, th=4, trk=22, u1=2, u2=8, pa=47, dtr=22, dth=4, dpa=47, slp=6, spin=200000,
           vz0=44, xk=0, k0=2, kn=2, xa0=1, na=3, xb0=8, nb=7, xe=16, xt=4, tlb=0, numa=0, pol=-1, user=0)
for a in sys.argv[2:]:
    k, v = a.split("=")
    OPT[k] = int(v)
LITE = OPT["prof"] == 3
PROF = 0 if LITE else OPT["prof"]
K = NAME + "_kernel"
D = OPT["D"]

H_OFF, Z_OFF, ST_OFF, CS_OFF = 0, 0x800000, 0xA00000, 0xA10000
FLH, PROF_OFF, WS_SIZE = 0xA50000, 0xA60000, 0xB00000
PROBE = 0x1C0000
SLOT = 49152
MISC = 147456
CSL, MRP, RL, TAGL, CNTL, R2L = MISC, MISC + 1024, MISC + 2048, MISC + 3072, MISC + 3076, MISC + 3328
RED = 20 * 4096
ZL = 24 * 4096
NRES = 39
NST = 56 - NRES
NUMA = OPT['numa']
HB = 16384 if NUMA else 8192
HZ = 7 * HB
NLOG2E = 0xBFB8AA3B
OOB = 0x40000000


def wslot(v):
    return v if v < 36 else v + 1 if v < NRES else v - NRES


def f2u(x):
    return struct.unpack("<I", struct.pack("<f", x))[0]


SEC = {}
CUR = [None, False]


def section(n):
    CUR[0] = SEC.setdefault(n, [])


def e(s):
    CUR[0].append("    " + s)


def es(lst):
    for x in lst:
        for y in (x if isinstance(x, list) else [x]):
            e(y)


def lab(s):
    CUR[0].append(s + ":")


def raw(s):
    CUR[0].append(s)


def cm(s):
    CUR[0].append("    ; " + s)


def vr(a, n):
    return f"v[{a}:{a + n - 1}]"


def srd(n):
    return f"s[{n}:{n + 3}]"


class Q:
    def __init__(self):
        self.l = []

    def add(self, tag, txt=None):
        self.l.append(tag)
        if txt:
            e(txt)

    def younger(self, tag):
        return len(self.l) - 1 - self.l.index(tag)


SRD_X, SRD_WD, SRD_WS, SRD_OUT, SRD_DBG, SRD_WM = 4, 16, 20, 24, 28, 32
sWAVE, sI, sJ, sT1, sCB, sRS, sCOL, sDFT, sTAG, sIDX = 36, 37, 38, 39, 40, 41, 42, 43, 44, 45
sSTAMP = 80
vLOOPST, vLANE = 121, 117
uid = [0]


def stamp(i):
    if PROF:
        e(f"{'s_memrealtime' if PROF == 2 else 's_memtime'} s[{sSTAMP + 2 * i}:{sSTAMP + 2 * i + 1}]")


def stamp_flush(n, vt, cw):
    if not (PROF or (LITE and cw)):
        return
    e("s_waitcnt lgkmcnt(0)")
    e("s_lshl_b32 s78, s2, 3")
    e(f"s_add_u32 s78, s78, s{sWAVE}")
    e("s_lshl_b32 s78, s78, 8")
    e(f"s_add_u32 s78, s78, {PROF_OFF}")
    e(f"v_mov_b32 v{vt + 8}, 0")
    if PROF:
        for i in range(8):
            e(f"v_mov_b32 v{vt + i}, s{sSTAMP + 2 * i}" if i < n else f"v_mov_b32 v{vt + i}, 0")
        e(f"buffer_store_dwordx4 {vr(vt, 4)}, v{vt + 8}, {srd(SRD_WS)}, s78 offen")
        e(f"buffer_store_dwordx4 {vr(vt + 4, 4)}, v{vt + 8}, {srd(SRD_WS)}, s78 offen offset:16")
        if cw:
            e(f"v_lshlrev_b32 v{vt + 9}, 2, v{vLANE}")
            e(f"v_min_u32 v{vt + 9}, 124, v{vt + 9}")
            e(f"buffer_store_dword v{vLOOPST}, v{vt + 9}, {srd(SRD_WS)}, s78 offen offset:64")
    e("s_memrealtime s[76:77]")
    e("s_waitcnt lgkmcnt(0)")
    e(f"v_mov_b32 v{vt + 10}, s98")
    e(f"v_mov_b32 v{vt + 11}, s76")
    e(f"buffer_store_dwordx2 {vr(vt + 10, 2)}, v{vt + 8}, {srd(SRD_WS)}, s78 offen offset:32")


def bar(name=""):
    e("s_barrier" + (f"  ; {name}" if name else ""))


def poll_issue(vdst, vaddr, ssoff, srdn):
    e(f"buffer_load_dword v{vdst}, v{vaddr}, {srd(srdn)}, {ssoff} offen sc1")


def poll_wait(vdst, vaddr, ssoff, srdn, cond_tag=True, first_wait=0):
    uid[0] += 1
    k = uid[0]
    e(f"s_mov_b32 s75, {OPT['spin']}")
    e(f"s_waitcnt vmcnt({first_wait})")
    lab(f"POLL{k}")
    e(f"v_cmp_ne_u32 vcc, s{sTAG}, v{vdst}" if cond_tag else f"v_cmp_eq_u32 vcc, 0, v{vdst}")
    e("s_nop 1")
    e("s_cmp_eq_u64 vcc, 0")
    e(f"s_cbranch_scc1 POLLD{k}")
    if OPT["slp"]:
        e(f"s_sleep {OPT['slp']}")
    poll_issue(vdst, vaddr, ssoff, srdn)
    e("s_sub_u32 s75, s75, 1")
    e("s_cmp_lg_u32 s75, 0")
    e("s_waitcnt vmcnt(0)")
    e(f"s_cbranch_scc1 POLL{k}")
    lab(f"POLLD{k}")


def wait_c_done():
    uid[0] += 1
    k = uid[0]
    e(f"v_mov_b32 v7, {CNTL}")
    e(f"s_mov_b32 s75, {OPT['spin']}")
    lab(f"CW{k}")
    e("ds_read_b32 v8, v7")
    e("s_waitcnt lgkmcnt(0)")
    e("v_readfirstlane_b32 s76, v8")
    e("s_sub_u32 s75, s75, 1")
    e("s_cmp_eq_u32 s75, 0")
    e(f"s_cbranch_scc1 CWD{k}")
    e("s_sleep 1")
    e("s_cmp_lt_u32 s76, 4")
    e(f"s_cbranch_scc1 CW{k}")
    lab(f"CWD{k}")


def ids1():
    e("s_and_b32 s64, s2, 1")
    e("s_lshl_b32 s64, s64, 3")
    e(f"s_and_b32 s65, s{sIDX}, 7")
    e(f"s_add_u32 s{sI}, s64, s65")
    e("s_bfe_u32 s64, s2, 0x20001")
    e(f"s_lshr_b32 s67, s{sIDX}, 3")
    e("s_mul_i32 s65, s64, 3")
    e("s_add_u32 s65, s65, s67")
    e("s_add_u32 s66, s64, 14")
    e("s_cmp_eq_u32 s67, 3")
    e("s_cselect_b32 s65, s66, s65")
    e("s_lshl_b32 s66, s64, 2")
    e("s_add_u32 s66, s66, s67")
    e("s_sub_u32 s66, s66, 2")
    e("s_cmp_lt_u32 s64, 2")
    e(f"s_cselect_b32 s{sJ}, s65, s66")
    e(f"s_lshl_b32 s{sCOL}, s{sJ}, 8")
    e(f"s_sub_u32 s64, s{sCOL}, {14 * 256}")
    e(f"s_movk_i32 s{sRS}, 3584")
    e(f"s_cmp_ge_u32 s{sJ}, 14")
    e(f"s_cselect_b32 s{sDFT}, 1, 0")
    e(f"s_cselect_b32 s{sRS}, 1024, s{sRS}")
    e(f"s_cselect_b32 s{sCOL}, s64, s{sCOL}")
    e(f"s_lshl_b32 s34, s{sRS}, 9")
    e("s_mov_b32 s35, 0x20000")
    e("s_mov_b32 s6, 0x200000")
    e("s_mov_b32 s7, 0x20000")


def wm_select(scc_instr):
    e(f"s_cmp_eq_u32 s{sDFT}, 1")
    e("s_cselect_b64 s[8:9], s[48:49], s[52:53]")
    e("s_cselect_b64 s[12:13], s[50:51], s[54:55]")
    e(scc_instr)
    e("s_cselect_b64 s[32:33], s[12:13], s[8:9]")


def srds2():
    e("s_mov_b64 s[16:17], s[56:57]")
    e(f"s_mov_b32 s18, {1792 * 1024}")
    e("s_mov_b32 s19, 0x20000")
    e("s_mov_b64 s[20:21], s[62:63]")
    e(f"s_mov_b32 s22, {WS_SIZE}")
    e("s_mov_b32 s23, 0x20000")
    e("s_mov_b64 s[24:25], s[58:59]")
    e("s_mov_b32 s26, 0x200000")
    e("s_mov_b32 s27, 0x20000")
    e("s_mov_b64 s[28:29], s[60:61]")
    e("s_mov_b32 s30, 256")
    e("s_mov_b32 s31, 0x20000")


def ids2():
    return [f"s_add_u32 s46, s2, s{sTAG}" if OPT["user"] else "s_mov_b32 s46, s2",
            "s_bfe_u32 s47, s46, 0x20001", "s_lshl_b32 s47, s47, 3", f"s_and_b32 s{sT1}, s{sIDX}, 7", f"s_add_u32 s{sT1}, s{sT1}, s47",
            "s_and_b32 s46, s46, 1", "s_lshl_b32 s46, s46, 2", f"s_lshr_b32 s{sCB}, s{sIDX}, 3", f"s_add_u32 s{sCB}, s{sCB}, s46"]


def hbase(dst, t1):
    if not NUMA:
        return [f"s_mul_i32 s{dst}, s{t1}, {4 * HZ}"]
    return [f"s_and_b32 s46, s{t1}, 3", f"s_mul_i32 s{dst}, s46, {4 * HZ}", f"s_bfe_u32 s46, s{t1}, 0x20002",
            f"s_lshr_b32 s47, s{t1}, 4", "s_xor_b32 s47, s47, s46", "s_lshl_b32 s46, s46, 21", f"s_add_u32 s{dst}, s{dst}, s46"]


def hside(dst, par, pol):
    if not NUMA:
        return []
    return [f"s_xor_b32 s{par}, s{par}, s{pol}", f"s_and_b32 s{par}, s{par}, 1", f"s_lshl_b32 s{par}, s{par}, 13",
            f"s_add_u32 s{dst}, s{dst}, s{par}"]


def entry():
    section("A")
    e("s_cmp_ge_u32 s2, 256")
    e("s_cbranch_scc1 END")
    e("s_load_dwordx2 s[4:5], s[0:1], 0")
    e("s_load_dwordx4 s[48:51], s[0:1], 24")
    e("s_load_dwordx8 s[52:59], s[0:1], 48")
    e("s_load_dwordx4 s[60:63], s[0:1], 80")
    if PROF or LITE or OPT.get("rabs"):
        e("s_memrealtime s[98:99]")
    stamp(0)
    e("v_lshrrev_b32 v1, 6, v0")
    e("v_and_b32 v0, 63, v0")
    e(f"s_lshr_b32 s{sIDX}, s2, 3")
    e(f"v_readfirstlane_b32 s{sWAVE}, v1")
    e("s_getpc_b64 s[64:65]")
    lab("PCREF")
    e(f"s_cmp_ge_u32 s{sWAVE}, 4")
    e("s_cbranch_scc1 LSTART")
    if True:
        cm("pull the kernel's own code into this die's L2: three lines per matrix wave")
        e(f"s_lshl_b32 s66, s{sIDX}, 2")
        e(f"s_add_u32 s66, s66, s{sWAVE}")
        e("s_mul_i32 s66, s66, 384")
        e(f"s_min_u32 s66, s66, END-PCREF-384")
        e("s_and_b32 s64, s64, 0xffffff80")
        e("s_load_dwordx2 s[68:69], s[64:65], s66 offset:60")
        e("s_load_dwordx2 s[70:71], s[64:65], s66 offset:188")
        e("s_load_dwordx2 s[72:73], s[64:65], s66 offset:316")
    e("s_branch CWAVE")
    lab("LSTART")
    ids1()
    e(f"s_cmp_eq_u32 s{sWAVE}, 6")
    e("s_cbranch_scc1 L2WAVE")
    e(f"s_cmp_eq_u32 s{sWAVE}, 7")
    e("s_cbranch_scc1 L3WAVE")


def wd_voffset(vd, vt):
    e(f"v_lshrrev_b32 v{vt}, 3, v0")
    e(f"v_lshlrev_b32 v{vd}, 10, v{vt}")
    e(f"v_bfe_u32 v{vt}, v0, 4, 1")
    e(f"v_lshlrev_b32 v{vt}, 2, v{vt}")
    e(f"v_and_b32 v{vt + 1}, 7, v0")
    e(f"v_xor_b32 v{vt}, v{vt}, v{vt + 1}")
    e(f"v_lshl_add_u32 v{vd}, v{vt}, 4, v{vd}")


XS = 8192


def xw_base(par):
    e(f"s_lshr_b32 s60, s{sIDX}, 2")
    e("s_lshl_b32 s60, s60, 10")
    e(f"s_and_b32 s63, s{sIDX}, 3")
    e("s_lshl_b32 s63, s63, 7")
    e("s_add_u32 s60, s60, s63")
    e(f"s_and_b32 s63, {par}, 1")
    e("s_lshl_b32 s63, s63, 9")
    e("s_add_u32 s60, s60, s63")
    e("s_bfe_u32 s63, s2, 0x20001")
    e(f"s_mul_i32 s62, s63, {56 * XS}")


def xload(n):
    for k in range(n if not OPT.get("nox") else 0):
        e(f"s_buffer_load_dwordx2 s[58:59], {srd(SRD_WD)}, s60 offset:{XS * k + 60}")


def xa_init():
    xw_base("s2")
    e("s_add_u32 s60, s60, s62")
    e(f"s_sub_u32 s63, s{sWAVE}, 4")
    e(f"s_mul_i32 s63, s63, {28 * XS}")
    e("s_add_u32 s60, s60, s63")


def xa():
    if OPT["xk"]:
        return
    xload(OPT["na"])
    e(f"s_add_u32 s60, s60, {OPT['na'] * XS}")


def xb_init(which):
    e(f"s_add_u32 s46, s2, s{sTAG}" if OPT["user"] else "s_mov_b32 s46, s2")
    xw_base("s46")
    e(f"s_add_u32 s60, s60, {which * OPT['nb'] * XS}")
    e("s_add_u32 s62, s62, s60")
    if OPT["xk"]:
        e("s_mov_b32 s62, -1")
    elif OPT["user"]:
        e(f"s_bitcmp1_b32 s{sTAG}, 0")
        e("s_cselect_b32 s62, -1, s62")


XBN = [0, 0]


def xw(n, which):
    nb = OPT["nb"]
    if n < OPT["xb0"] or XBN[which] * 2 * nb >= (224 if OPT['xk'] else 168):
        return
    XBN[which] += 1
    e("s_cmp_ge_u32 s60, s62")
    e(f"s_cselect_b32 s63, {56 * XS}, 0")
    e("s_cselect_b32 s62, -1, s62")
    e("s_add_u32 s60, s60, s63")
    xload(nb)
    e(f"s_add_u32 s60, s60, {2 * nb * XS}")


def l01wave():
    vX0, vX1, vW, vWD, vZ, vW1 = 2, 3, 4, 5, 9, 12
    sLW, sXa, sXb, sWo, sS0, sS1, sR4, sT, sCnt, sWd = 64, 65, 66, 67, 68, 69, 70, 71, 72, 73
    section("A2")
    lab("L01WAVE")
    cm("================ L0/L1: DMA waves ================")
    e(f"s_sub_u32 s{sLW}, s{sWAVE}, 4")
    e("v_lshrrev_b32 v6, 3, v0")
    e(f"v_lshlrev_b32 v{vX0}, 16, v6")
    e("v_lshrrev_b32 v6, 1, v6")
    e("v_and_b32 v7, 7, v0")
    e("v_xor_b32 v6, v6, v7")
    e(f"v_lshl_add_u32 v{vX0}, v6, 4, v{vX0}")
    e(f"v_xor_b32 v{vX1}, 64, v{vX0}")
    e("v_lshrrev_b32 v6, 4, v0")
    e(f"v_mul_lo_u32 v{vW}, v6, s{sRS}")
    e("v_bfe_u32 v7, v0, 2, 2")
    e("v_xor_b32 v7, v7, v6")
    e("v_lshlrev_b32 v7, 2, v7")
    e("v_and_b32 v8, 3, v0")
    e("v_or_b32 v7, v7, v8")
    e(f"v_lshl_add_u32 v{vW}, v7, 4, v{vW}")
    e("v_xor_b32 v7, 2, v7")
    e(f"v_mul_lo_u32 v{vW1}, v6, s{sRS}")
    e(f"v_lshl_add_u32 v{vW1}, v7, 4, v{vW1}")
    e(f"s_lshl_b32 s{sXa}, s{sI}, 1")
    e(f"s_add_u32 s{sXa}, s{sXa}, s{sLW}")
    e(f"s_lshl_b32 s{sXa}, s{sXa}, 10")
    e(f"s_add_u32 s{sXb}, s{sXa}, {32 * 1024}")
    e(f"s_mov_b32 s{sWo}, s{sCOL}")
    e(f"s_lshl_b32 s{sR4}, s{sRS}, 2")
    e(f"s_lshl_b32 s74, s{sLW}, 10")
    e(f"s_lshl_b32 s77, s{sLW}, 12")

    def wpieces(base_sgpr, imm):
        e(f"s_add_u32 s{sT}, s{base_sgpr}, s74")
        e(f"s_add_u32 m0, s{sT}, {imm}")
        e("s_nop 0")
        for k in range(8):
            if True:
                e(f"buffer_load_dwordx4 v{vW1 if k & 2 else vW}, {srd(SRD_WM)}, s{sWo} offen lds")
            if k < 7:
                e("s_add_u32 m0, m0, 2048")
            e(f"s_add_u32 s{sWo}, s{sWo}, s{sR4}")

    def xpieces(base_sgpr, half):
        sx = sXb if half else sXa
        e(f"s_add_u32 s{sT}, s{base_sgpr}, s77")
        e(f"s_add_u32 m0, s{sT}, {32768 + half * 8192}")
        e(f"s_mov_b32 s{sT}, s{sx}")
        for k in range(4):
            if True:
                e(f"buffer_load_dwordx4 v{vX1 if k & 1 else vX0}, {srd(SRD_X)}, s{sT} offen lds")
            if k < 3:
                e("s_add_u32 m0, m0, 1024")
                e(f"s_add_u32 s{sT}, s{sT}, 0x80000")
        e(f"s_add_u32 s{sx}, s{sx}, 128")

    e(f"s_mov_b32 s{sS0}, {SLOT}")
    e(f"s_mov_b32 s{sS1}, {2 * SLOT}")
    e("s_waitcnt lgkmcnt(0)")
    cm("G0 = x0 + W0 ; G1 = W1 + x1a")
    xpieces(sS0, 0)
    wm_select(f"s_cmp_eq_u32 s{sLW}, 1")
    wpieces(sS0, 0)
    xpieces(sS0, 1)
    wpieces(sS0, 16384)
    xpieces(sS1, 0)
    srds2()
    xa_init()
    wd_voffset(vWD, 6)
    e("v_min_u32 v10, 13, v0")
    e("v_lshlrev_b32 v10, 7, v10")
    e("v_and_b32 v47, 31, v0")
    e(f"s_lshl_b32 s63, s{sLW}, 7")
    e(f"s_add_u32 s63, s63, {R2L}")
    e("v_lshl_add_u32 v48, v47, 2, s63")
    e("v_lshlrev_b32 v47, 4, v47")
    e("v_mov_b32 v49, 0")
    e("v_lshlrev_b32 v13, 4, v0")
    e(f"s_lshl_b32 s56, s{sJ}, 13")
    e("s_add_u32 s56, s56, s74")
    e(f"s_add_u32 s56, s56, {CS_OFF}")
    e("s_add_u32 s57, s56, 4096")
    e(f"s_lshl_b32 s62, s{sI}, 11")
    e("s_add_u32 s62, s62, s74")
    e(f"s_add_u32 s62, s62, {ST_OFF}")
    e(f"s_lshl_b32 s63, s{sLW}, 9")
    e(f"s_add_u32 s63, s63, {CSL}")
    e("v_lshl_add_u32 v45, v0, 3, s63")
    e(f"s_lshl_b32 s63, s{sLW}, 8")
    e(f"s_add_u32 s63, s63, {RL}")
    e("v_lshl_add_u32 v46, v0, 2, s63")
    e(f"s_mov_b32 s{sS0}, {2 * SLOT}")
    e(f"s_mov_b32 s{sS1}, 0")
    e(f"s_mov_b32 s{sCnt}, 6")
    e("s_waitcnt vmcnt(12)")
    stamp(1)
    bar("B0")
    lab("L01LOOP")
    wpieces(sS0, 0)
    xpieces(sS0, 1)
    A0 = OPT["xa0"]
    NA = -(-28 // OPT["na"])
    ev = [n for n in range(0, 12, 2) if A0 <= n < A0 + NA]
    od = [n for n in range(1, 12, 2) if A0 <= n < A0 + NA]
    if not OPT["xk"]:
        e(f"s_sub_u32 s63, {6 - ev[0] // 2}, s{sCnt}")
        e(f"s_cmp_ge_u32 s63, {len(ev)}")
        e("s_cbranch_scc1 L01X0")
    xa()
    lab("L01X0")
    e("s_waitcnt vmcnt(12)")
    bar("B(2s+1)")
    wpieces(sS0, 16384)
    xpieces(sS1, 0)
    if not OPT["xk"]:
        e(f"s_sub_u32 s63, {6 - od[0] // 2}, s{sCnt}")
        e(f"s_cmp_ge_u32 s63, {len(od)}")
        e("s_cbranch_scc1 L01X1")
    xa()
    lab("L01X1")
    e(f"s_mov_b32 s{sS0}, s{sS1}")
    e(f"s_add_u32 s{sS1}, s{sS1}, {SLOT}")
    e(f"s_cmp_eq_u32 s{sS1}, {3 * SLOT}")
    e(f"s_cselect_b32 s{sS1}, 0, s{sS1}")
    e(f"s_sub_u32 s{sCnt}, s{sCnt}, 1")
    e(f"s_cmp_lg_u32 s{sCnt}, 0")
    e("s_waitcnt vmcnt(12)")
    bar("B(2s+2)")
    e("s_cbranch_scc1 L01LOOP")
    wpieces(sS0, 0)
    xpieces(sS0, 1)
    e(f"v_mov_b32 v7, {TAGL}")
    e("ds_read_b32 v8, v7")
    e("s_waitcnt lgkmcnt(0)")
    e(f"v_readfirstlane_b32 s{sTAG}, v8")
    es(ids2())
    e(f"s_lshr_b32 s61, s{sT1}, 1")
    e("s_lshl_b32 s61, s61, 11")
    e(f"s_and_b32 s48, s{sT1}, 1")
    e("s_lshl_b32 s48, s48, 9")
    e("s_add_u32 s48, s48, s61")
    e("s_add_u32 s48, s48, s74")
    e(f"s_add_u32 s48, s48, {ST_OFF}")
    e(f"s_add_u32 s61, s61, {FLH}")
    e(f"s_cmp_eq_u32 s{sLW}, 0")
    e(f"s_cselect_b32 s61, s61, {OOB:#x}")
    e("s_waitcnt vmcnt(12)")
    bar("B13")
    wpieces(sS0, 16384)

    def gets():
        cm("statistics of the other workgroups: column sums (128 columns x 4 partial sums) and 64 rows per wave")
        for k in range(4):
            e(f"buffer_load_dwordx4 {vr(16 + 4 * k, 4)}, v13, {srd(SRD_WS)}, {'s57' if k >= 2 else 's56'} offen offset:{2048 * (k & 1)} sc1")
        e(f"buffer_load_dwordx4 v[32:35], v13, {srd(SRD_WS)}, s62 offen sc1")
        e(f"buffer_load_dwordx4 v[52:55], v47, {srd(SRD_WS)}, s48 offen sc1")
        if NUMA:
            e(f"buffer_load_dword v50, v49, {srd(SRD_DBG)}, 0 offen offset:4 sc1")

    gets()
    e(f"s_lshl_b32 s{sWd}, s{sLW}, 14")
    e(f"s_lshl_b32 s{sT}, s{sCB}, 7")
    e(f"s_add_u32 s{sWd}, s{sWd}, s{sT}")
    e(f"s_lshl_b32 m0, s{sLW}, 11")

    def units(a, b, th=0):
        for v in range(a, b):
            e(f"s_add_u32 s{sT}, s{sWd}, 8192")
            if v < NRES:
                e(f"buffer_load_dwordx4 v{vWD}, {srd(SRD_WD)}, s{sWd} offen lds")
                e("s_add_u32 m0, m0, 1024")
            else:
                e(f"buffer_load_dwordx4 {vr(ST0 + 8 * (v - NRES), 4)}, v{vWD}, {srd(SRD_WD)}, s{sWd} offen")
            e(f"s_add_u32 s{sWd}, s{sWd}, 32768")
            if v < NRES:
                e(f"buffer_load_dwordx4 v{vWD}, {srd(SRD_WD)}, s{sT} offen lds")
            else:
                e(f"buffer_load_dwordx4 {vr(ST0 + 8 * (v - NRES) + 4, 4)}, v{vWD}, {srd(SRD_WD)}, s{sT} offen")
            if v + 1 < NRES:
                e(f"s_add_u32 m0, m0, {(wslot(v + 1) - wslot(v)) * 4096 - 1024}")
            if th:
                e(f"s_waitcnt vmcnt({th})")

    ST0 = 64
    U1, U2 = OPT["u1"], OPT["u2"]
    units(0, U1)
    e(f"s_waitcnt vmcnt({8 + 6 + NUMA + 2 * U1})")
    bar("B14")
    units(U1, U2)
    e(f"s_waitcnt vmcnt({6 + NUMA + 2 * U2})")
    bar("B15")
    e(f"s_mov_b32 s75, {OPT['spin']}")
    e(f"s_waitcnt vmcnt({2 * U2})")
    lab("GCHK")
    for k in range(8):
        e(f"v_xor_b32 v{36 + k}, s{sTAG}, v{17 + 2 * k}")
    e(f"v_xor_b32 v44, s{sTAG}, v35")
    e(f"v_xor_b32 v51, s{sTAG}, v55")
    if NUMA:
        e("v_and_b32 v56, 2, v50")
        e("v_xor_b32 v56, 2, v56")
        e("v_or3_b32 v44, v44, v51, v56")
    else:
        e("v_or_b32 v44, v44, v51")
    for k in range(4):
        e(f"v_or3_b32 v44, v44, v{36 + 2 * k}, v{37 + 2 * k}")
    e("v_cmp_ne_u32 vcc, 0, v44")
    e("v_add_f32 v36, v16, v20")
    e("v_add_f32 v37, v18, v22")
    e("s_cmp_eq_u64 vcc, 0")
    e("s_cbranch_scc1 GOK")
    e("s_sleep 2")
    gets()
    e("s_sub_u32 s75, s75, 1")
    e("s_cmp_lg_u32 s75, 0")
    e("s_waitcnt vmcnt(0)")
    e("s_cbranch_scc1 GCHK")
    lab("GOK")
    e("v_add_f32 v38, v24, v28")
    e("v_add_f32 v39, v26, v30")
    e("v_add_f32 v36, v36, v38")
    e("v_add_f32 v37, v37, v39")
    e("ds_write_b64 v45, v[36:37]")
    e(f"ds_write_b64 v45, v[32:33] offset:{MRP - CSL}")
    e("ds_write_b32 v46, v33")
    e("ds_write_b32 v48, v53")
    if NUMA:
        e("ds_write_b32 v7, v50 offset:12")
    e("s_waitcnt lgkmcnt(0)")
    stamp(2)
    bar("B16")
    TR = OPT["trk"]
    PA = OPT["pa"]
    e(f"s_cmp_eq_u32 s{sDFT}, 0")
    e("s_cbranch_scc1 L01GLU")
    cm("spectral workgroups store late: they need not hold back now")
    units(U2, OPT["dtr"], OPT["dth"])
    units(OPT["dtr"], OPT["dpa"])
    wait_c_done()
    stamp(3)
    units(OPT["dpa"], PA)
    poll_issue(11, 10, "s61", SRD_WS)
    units(PA, 56)
    e("s_branch L01JOIN")
    lab("L01GLU")
    units(U2, TR, OPT["th"])
    wait_c_done()
    stamp(3)
    units(TR, PA)
    cm("L0 waits for the 14 producers of row block t1>>1 (queued behind the w_down loads)")
    poll_issue(11, 10, "s61", SRD_WS)
    units(PA, 56)
    lab("L01JOIN")
    e("v_and_b32 v6, 3, v0")
    e("v_bfe_u32 v7, v0, 3, 2")
    e("v_lshl_add_u32 v6, v7, 2, v6")
    e("v_bfe_u32 v7, v0, 2, 1")
    e("v_lshl_add_u32 v6, v7, 4, v6")
    e("v_and_b32 v7, 32, v0")
    e(f"s_lshl_b32 s66, s{sCB}, 6")
    e("v_add3_u32 v6, v6, v7, s66")
    e("v_sub_u32 v7, 512, v6")
    e("v_and_b32 v7, 255, v7")
    e(f"s_sub_u32 s67, 32, s{sT1}")
    e("s_and_b32 s67, s67, 31")
    e(f"s_cmp_ge_u32 s{sCB}, 4")
    e("s_cselect_b64 s[68:69], -1, 0")
    e(f"s_cselect_b32 s67, s67, s{sT1}")
    e("v_cmp_eq_u32 vcc, 0, v6")
    e("v_cndmask_b32 v7, v6, v7, s[68:69]")
    e(f"v_lshlrev_b32 v{vZ}, 4, v7")
    e(f"v_mov_b32 v7, {OOB:#x}")
    e("s_lshl_b32 s67, s67, 16")
    e(f"v_cndmask_b32 v{vZ}, v{vZ}, v7, vcc")
    e(f"s_lshl_b32 s66, s{sLW}, 15")
    e("s_add_u32 s67, s67, s66")
    e(f"s_add_u32 s67, s67, {Z_OFF}")
    e(f"s_lshl_b32 s66, s{sLW}, 13")
    e(f"s_add_u32 m0, s66, {ZL}")
    e("v_bfe_u32 v12, v0, 1, 4")
    e("v_lshlrev_b32 v12, 4, v12")
    e("v_and_b32 v13, 1, v0")
    e("v_add3_u32 v12, v12, v13, 14")
    e("v_lshlrev_b32 v12, 7, v12")
    e(f"s_mov_b32 s70, {FLH}")
    e(f"s_lshl_b32 s66, s{sLW}, 11")
    e("v_lshl_add_u32 v6, v0, 4, s66")
    e(f"s_cmp_eq_u32 s{sLW}, 1")
    e(f"s_cselect_b32 s70, s70, {OOB:#x}")
    e("s_cbranch_scc1 L1NOPOLL")
    poll_wait(11, 10, "s61", SRD_WS, first_wait=2 * (56 - PA))
    lab("L1NOPOLL")
    e(f"s_waitcnt vmcnt({2 * min(NST, 56 - PA)})")
    stamp(4)
    bar("BW")
    e("s_waitcnt vmcnt(0)")
    bar("BP1")
    poll_issue(11, 12, "s70", SRD_WS)
    for k in range(2 * NST):
        if k == 32:
            e("v_add_u32 v6, 0x10000, v6")
        e(f"ds_write_b128 v6, {vr(ST0 + 4 * k, 4)} offset:{((k >> 1) * 4096 + (k & 1) * 1024) & 0xFFFF}")
    e("s_waitcnt lgkmcnt(0)")
    bar("BP2")
    e(f"s_cmp_eq_u32 s{sLW}, 0")
    e("s_cbranch_scc1 L0NOPOLL")
    poll_wait(11, 12, "s70", SRD_WS)
    lab("L0NOPOLL")
    stamp(5)
    bar("BZ0")
    for g in range(8):
        e(f"buffer_load_dwordx4 v{vZ}, {srd(SRD_WS)}, s67 offen sc1 lds")
        e("s_add_u32 m0, m0, 1024")
        e("s_add_u32 s67, s67, 4096")
    e("s_waitcnt vmcnt(0)")
    stamp(6)
    bar("BR")
    stamp_flush(7, 14, False)
    e("s_endpgm")


XKN = [0, 0]


def xk_init(which):
    if OPT["xk"]:
        e("s_lshl_b32 s61, s2, 7")
        e(f"s_add_u32 s61, s61, {which * 32768}")


def xk(n, which):
    if not OPT["xk"] or n < OPT["k0"]:
        return
    cnt = min(OPT["kn"], 28 - XKN[which])
    if cnt <= 0:
        return
    for k in range(cnt):
        e(f"s_buffer_load_dwordx2 s[58:59], {srd(SRD_WD)}, s61 offset:{65536 * k + 60}")
    e(f"s_add_u32 s61, s61, {65536 * cnt}")
    XKN[which] += cnt


def probe(step):
    if not NUMA:
        return
    uid[0] += 1
    k = uid[0]
    e("s_cmp_lg_u32 s2, 0")
    e(f"s_cbranch_scc1 PRB{k}")
    e(f"s_mov_b32 s64, {PROBE}")
    if step == 0:
        e(f"s_buffer_load_dword s71, {srd(SRD_WS)}, s64")
        e(f"s_buffer_load_dword s71, {srd(SRD_WS)}, s64 offset:8192")
    else:
        e("s_waitcnt lgkmcnt(0)")
        e("s_memtime s[66:67]")
        e("s_waitcnt lgkmcnt(0)")
        e(f"s_buffer_load_dword s71, {srd(SRD_WS)}, s64 offset:{8192 * ((step - 1) & 1)} glc")
        e("s_waitcnt lgkmcnt(0)")
        e("s_memtime s[68:69]")
        e("s_waitcnt lgkmcnt(0)")
        e("s_sub_u32 s66, s68, s66")
        if step == 1:
            e("s_mov_b32 s70, s66")
        else:
            if OPT.get("dbgp"):
                e("v_mov_b32 v2, 0")
                e("v_mov_b32 v4, s70")
                e("v_mov_b32 v5, s66")
                e(f"buffer_store_dwordx2 v[4:5], v2, {srd(SRD_DBG)}, 0 offen offset:8")
            e("s_cmp_lt_u32 s70, s66")
            e("s_cselect_b32 s70, 2, 3")
            e(f"s_bfe_u32 s66, s{sTAG}, 0x10002")
            e("s_xor_b32 s70, s70, s66")
            if OPT["pol"] >= 0:
                e(f"s_mov_b32 s70, {2 | OPT['pol']}")
            e("v_mov_b32 v2, 0")
            e("v_mov_b32 v3, s70")
            e(f"buffer_store_dword v3, v2, {srd(SRD_DBG)}, 0 offen offset:4 sc1")
    lab(f"PRB{k}")


def l23_tail(which):
    xb_init(which)
    xk(8, which)
    if which == 0 and NUMA:
        probe(1)
    else:
        xw(8, which)
    for n in range(9, OPT["xe"] + 1):
        bar(f"B{n}")
        if which == 0 and n == 9:
            probe(2)
        xk(n, which)
        xw(n, which)
    for n in range(OPT["xt"]):
        xk(20, which)
        xw(20, which)


def l2wave():
    vC = 8
    vm = Q()
    section("A")
    e("s_branch L01WAVE")
    lab("L2WAVE")
    cm("================ L2: column sums (64 columns x rows 64s + 16kq + 0..15) ================")
    e("v_lshrrev_b32 v18, 3, v0")
    e("v_and_b32 v19, 7, v0")
    e(f"v_mul_lo_u32 v{vC}, v18, s{sRS}")
    e(f"v_lshl_add_u32 v{vC}, v19, 4, v{vC}")
    e(f"s_lshr_b32 s64, s{sI}, 2")
    e("s_lshl_b32 s64, s64, 4")
    e(f"s_mul_i32 s69, s64, s{sRS}")
    e(f"s_and_b32 s64, s{sI}, 1")
    e("s_lshl_b32 s64, s64, 7")
    e("s_add_u32 s69, s69, s64")
    e(f"s_add_u32 s69, s69, s{sCOL}")
    e(f"s_lshl_b32 s70, s{sRS}, 3")
    e(f"s_mul_i32 s72, s{sRS}, 56")
    e("s_waitcnt lgkmcnt(0)")
    wm_select(f"s_bitcmp1_b32 s{sI}, 1")
    LD, AC = 32, 16

    def csload(y):
        vm.add(("c", y), f"buffer_load_dwordx4 {vr(LD + 4 * y, 4)}, v{vC}, {srd(SRD_WM)}, s69 offen")
        e(f"s_add_u32 s69, s69, {'s72' if y & 1 else 's70'}")

    def csproc(y):
        for d in range(4):
            r = LD + 4 * y + d
            if y == 0:
                e(f"v_lshlrev_b32 v{AC + 2 * d}, 16, v{r}")
                e(f"v_and_b32 v{AC + 2 * d + 1}, v9, v{r}")
            else:
                e(f"v_lshlrev_b32 v10, 16, v{r}")
                e(f"v_and_b32 v11, v9, v{r}")
                e(f"v_add_f32 v{AC + 2 * d}, v{AC + 2 * d}, v10")
                e(f"v_add_f32 v{AC + 2 * d + 1}, v{AC + 2 * d + 1}, v11")

    for y in range(2 * OPT["pre"]):
        csload(y)
    e("s_branch L2REST")
    section("L2")
    lab("L2REST")
    srds2()
    if OPT["tlb"]:
        cm("first touch of the pages used later (address translation is ready when the real accesses come); values unused")
        for k in range(6):
            e(f"s_mov_b32 s64, {k << 21 | 0x1f0000:#x}" if k < 5 else f"s_mov_b32 s64, {FLH + 0x7000:#x}")
            e(f"s_buffer_load_dword s71, {srd(SRD_WS)}, s64")
        e(f"s_buffer_load_dword s71, {srd(SRD_OUT)}, 0")
        e(f"s_mov_b32 s64, 0x1fff00")
        e(f"s_buffer_load_dword s71, {srd(SRD_OUT)}, s64")
    if OPT["tlb"] == 2:
        e("v_lshlrev_b32 v12, 21, v0")
        e("v_add_u32 v12, 0x70000, v12")
        vm.add("t0", f"buffer_load_dword v13, v12, {srd(SRD_WS)}, 0 offen")
        vm.add("t1", f"buffer_load_dword v13, v12, {srd(SRD_OUT)}, 0 offen")
    e("v_mov_b32 v9, 0xffff0000")
    xk_init(0)
    stamp(1)
    issued, done = 2 * OPT["pre"], 0
    for n in range(8):
        bar(f"B{n}")
        while issued < 2 * (8 if n >= OPT["prec"] else OPT["pb2"] if n >= OPT["preb"] else 0):
            csload(issued)
            issued += 1
        if n < 7:
            xk(n, 0)
        if n >= 2:
            k = min(done + (3 if n < 7 else 9), 16, issued)
            e(f"s_waitcnt vmcnt({vm.younger(('c', k - 1))})")
            for y in range(done, k):
                csproc(y)
            done = k
        if n == 6:
            probe(0)
    assert done == 16 and issued == 16
    bar("B8")
    e(f"v_mov_b32 v12, {TAGL}")
    e("ds_read_b32 v25, v12")
    for k in range(4):
        e(f"v_permlane32_swap_b32 v{AC + k}, v{AC + k + 4}")
    e("s_nop 1")
    for k in range(4):
        e(f"v_add_f32 v{AC + k}, v{AC + k}, v{AC + k + 4}")
    e("s_nop 1")
    for k in range(2):
        e(f"v_permlane16_swap_b32 v{AC + k}, v{AC + k + 2}")
    e("s_nop 1")
    for k in range(2):
        e(f"v_add_f32 v{AC + k}, v{AC + k}, v{AC + k + 2}")
    e("v_and_b32 v10, 7, v0")
    e("v_lshlrev_b32 v10, 3, v10")
    e(f"v_add_f32_dpp v24, v{AC}, v{AC} row_ror:8 row_mask:0xf bank_mask:0x3")
    e("s_nop 1")
    e(f"v_add_f32_dpp v24, v{AC + 1}, v{AC + 1} row_ror:8 row_mask:0xf bank_mask:0xc")
    e("v_bfe_u32 v11, v0, 5, 1")
    e("v_lshl_add_u32 v10, v11, 2, v10")
    e("v_bfe_u32 v11, v0, 4, 1")
    e("v_lshl_add_u32 v10, v11, 1, v10")
    e("v_bfe_u32 v11, v0, 3, 1")
    e("v_add_u32 v10, v11, v10")
    e("v_lshlrev_b32 v10, 3, v10")
    e(f"s_lshl_b32 s64, s{sJ}, 13")
    e(f"s_add_u32 s64, s64, {CS_OFF}")
    e(f"s_lshl_b32 s65, s{sI}, 9")
    e("s_add_u32 s65, s64, s65")
    e("s_waitcnt lgkmcnt(0)")
    vm.add("pub", f"buffer_store_dwordx2 v[24:25], v10, {srd(SRD_WS)}, s65 offen sc1")
    e(f"v_readfirstlane_b32 s{sTAG}, v25")
    stamp(2)
    l23_tail(0)
    stamp_flush(3, 26, False)
    e("s_endpgm")


def l3wave():
    vm = Q()
    section("A")
    lab("L3WAVE")
    cm("================ L3: launch tag, row statistics (rows 8j..8j+7 of the row block), hand-off waits ================")
    e(f"s_bfe_u32 s64, s{sJ}, 0x10002")
    e(f"s_bfe_u32 s65, s{sJ}, 0x10003")
    e("s_lshl_b32 s65, s65, 5")
    e(f"s_lshl_b32 s66, s{sI}, 1")
    e("s_add_u32 s64, s64, s65")
    e("s_add_u32 s64, s64, s66")
    e(f"s_and_b32 s65, s{sJ}, 3")
    e("s_lshl_b32 s65, s65, 9")
    e("s_add_u32 s64, s64, s65")
    e("s_lshl_b32 s64, s64, 10")
    e("v_lshrrev_b32 v4, 3, v0")
    e("v_and_b32 v14, 7, v0")
    e("v_lshlrev_b32 v6, 16, v4")
    e("v_lshl_add_u32 v6, v14, 4, v6")
    e("s_memrealtime s[66:67]")
    e("s_waitcnt lgkmcnt(0)")
    LD, UP = 16, 48

    def rowload(y):
        vm.add(("r", y), f"buffer_load_dwordx4 {vr(LD + 4 * y, 4)}, v6, {srd(SRD_X)}, s64 offen offset:{128 * y}")

    for y in range(OPT["pre"]):
        rowload(y)
    e("s_branch L3REST")
    section("L3")
    lab("L3REST")
    srds2()
    e("v_mov_b32 v2, 0")
    e("s_getreg_b32 s67, hwreg(HW_REG_XCC_ID, 0, 3)")
    e("s_andn2_b32 s66, s66, 15")
    e("s_or_b32 s66, s66, 8")
    e("s_or_b32 s66, s66, s67")
    e("v_mov_b32 v3, s66")
    e("s_cmp_eq_u32 s2, 0")
    e(f"s_cselect_b32 s66, 0, {OOB:#x}")
    vm.add("tag", f"buffer_store_dword v3, v2, {srd(SRD_DBG)}, s66 offen sc1")
    e("v_mov_b32 v9, 0xffff0000")
    xk_init(1)

    def unp(d):
        e(f"v_lshlrev_b32 v{UP + 2 * d}, 16, v{LD + d}")
        e(f"v_and_b32 v{UP + 2 * d + 1}, v9, v{LD + d}")
        if d == 0:
            e(f"v_mov_b32 v10, v{UP}")
            e(f"v_mov_b32 v11, v{UP + 1}")
        else:
            e(f"v_add_f32 v10, v10, v{UP + 2 * d}")
            e(f"v_add_f32 v11, v11, v{UP + 2 * d + 1}")

    def red8(r):
        e("s_nop 1")
        e(f"v_add_f32_dpp v{r}, v{r}, v{r} quad_perm:[1,0,3,2] row_mask:0xf bank_mask:0xf")
        e("s_nop 1")
        e(f"v_add_f32_dpp v{r}, v{r}, v{r} quad_perm:[2,3,0,1] row_mask:0xf bank_mask:0xf")
        e("s_nop 1")
        e(f"v_add_f32_dpp v{r}, v{r}, v{r} row_half_mirror row_mask:0xf bank_mask:0xf")

    def var(k):
        e(f"v_sub_f32 v{UP + k}, v{UP + k}, v10")
        e(f"v_fmac_f32 v{12 + (k & 1)}, v{UP + k}, v{UP + k}")

    issued, done = OPT["pre"], 0
    for n in range(6):
        bar(f"B{n}")
        while issued < (8 if n >= OPT["prec"] else OPT["pb2"] if n >= OPT["preb"] else 0):
            rowload(issued)
            issued += 1
        xk(n, 1)
        if n == 5:
            vm.add("np")
            poll_issue(3, 2, "0", SRD_DBG)
        if n >= 2:
            k = min(done + (2 if n < 5 else 8), 8, issued)
            e(f"s_waitcnt vmcnt({vm.younger(('r', k - 1))})")
            for d in range(4 * done, 4 * k):
                unp(d)
            done = k
    assert done == 8 and issued == 8
    e("v_add_f32 v10, v10, v11")
    red8(10)
    e(f"v_mul_f32 v10, {f2u(1.0 / 512):#x}, v10")
    e("v_mov_b32 v12, 0")
    e("v_mov_b32 v13, 0")
    bar("B6")
    for k in range(24):
        var(k)
    bar("B7")
    poll_wait(3, 2, "0", SRD_DBG, cond_tag=False, first_wait=vm.younger("np"))
    e(f"v_mov_b32 v15, {TAGL}")
    e("ds_write_b32 v15, v3")
    e("ds_write_b32 v15, v2 offset:4")
    e("ds_write_b32 v15, v2 offset:8")
    e(f"v_readfirstlane_b32 s{sTAG}, v3")
    for k in range(24, 44):
        var(k)
    e("s_waitcnt lgkmcnt(0)")
    xk(7, 1)
    bar("B8")
    for k in range(44, 64):
        var(k)
    e("v_add_f32 v12, v12, v13")
    red8(12)
    e(f"v_mul_f32 v12, {f2u(1.0 / 512):#x}, v12")
    cm("roundings as in the reference: m=bf(mean); sd=bf(sqrt(bf(bf(var)+eps))); r=1/sd")
    e("v_cvt_pk_bf16_f32 v15, v10, v12")
    e("v_lshlrev_b32 v16, 16, v15")
    e("v_and_b32 v12, v9, v15")
    e(f"v_add_f32 v12, {f2u(1e-5):#x}, v12")
    e("v_cvt_pk_bf16_f32 v12, v12, v12")
    e("v_and_b32 v12, v9, v12")
    e("v_sqrt_f32 v12, v12")
    e("v_cmp_eq_u32 vcc, 0, v14")
    e("v_cvt_pk_bf16_f32 v12, v12, v12")
    e("v_and_b32 v12, v9, v12")
    e("v_rcp_f32 v17, v12")
    e("v_lshlrev_b32 v14, 4, v4")
    e(f"v_mov_b32 v15, {OOB:#x}")
    e(f"s_lshl_b32 s64, s{sI}, 11")
    e(f"s_add_u32 s64, s64, {ST_OFF}")
    e("v_cndmask_b32 v14, v15, v14, vcc")
    e("v_mov_b32 v18, v3")
    e("v_mov_b32 v19, v3")
    e(f"s_lshl_b32 s65, s{sJ}, 7")
    e("s_add_u32 s65, s64, s65")
    vm.add("pub", f"buffer_store_dwordx4 v[16:19], v14, {srd(SRD_WS)}, s65 offen sc1")
    stamp(1)
    l23_tail(1)
    stamp_flush(2, 26, False)
    e("s_endpgm")


XF = [[64 + 4 * q for q in range(4)], [80 + 4 * q for q in range(4)]]
WF = [[96, 100], [104, 108]]
XA = [112, 113, 114, 115]
WA = 116
vPM = 118
R0 = 64
vD_R, vD_TAG = 123, 124
vA_TAG = 116
sXO, sH, sPAR, sPOL, sFLG, sOUT, sC0, sP, sKH, sPAR2 = 56, 57, 58, 59, 61, 62, 63, 73, 74, 60
XR, vXO = 80, 115


def ACC(mat, q):
    return 128 + 32 * q + 16 * mat


def TW(q, cs, z):
    return 16 * q + 8 * cs + 4 * z


def frag_reads(u, st):
    r = []
    for mat in range(2):
        for a in range(2):
            r.append(f"ds_read_b64_tr_b16 {vr(WF[st][mat] + 2 * a, 2)}, v{WA} offset:{u * 8192 + a * 2048 + mat * 1024}")
    for q in range(4):
        r.append(f"ds_read_b128 {vr(XF[st][q], 4)}, v{XA[u]} offset:{q * 4096}")
    return r


def dft_stat_reads():
    return [f"ds_read_b128 v[124:127], v{vD_TAG}"] + [f"ds_read_b128 {vr(R0 + 4 * a, 4)}, v{vD_R} offset:{32 * a}" for a in range(4)]


def late_ids():
    r = ids2()
    r += [f"s_lshl_b32 s46, s{sP}, 5", f"s_add_u32 s46, s46, s{sT1}", f"s_lshl_b32 s{sXO}, s46, 10", f"s_lshl_b32 s46, s{sCB}, 7",
          f"s_add_u32 s{sXO}, s{sXO}, s46", f"s_lshl_b32 s46, s{sKH}, 6", f"s_add_u32 s{sXO}, s{sXO}, s46",
          [f"s_cmp_eq_u32 s{sT1}, 0", f"s_cselect_b32 s{sC0}, 64, 63"]]
    r += hbase(sH, sT1) + [f"s_mov_b32 s{sPAR2}, s47", f"s_lshl_b32 s46, s{sP}, 1", f"s_add_u32 s46, s46, s{sKH}",
                           f"s_mul_i32 s46, s46, {HZ}", f"s_add_u32 s{sH}, s{sH}, s46"]
    r += [f"v_and_b32 v100, 31, v{vLANE}", f"v_lshrrev_b32 v101, 5, v{vLANE}", f"v_lshlrev_b32 v{vXO}, 16, v100",
          f"v_lshl_add_u32 v{vXO}, v101, 5, v{vXO}"]
    return r


def xloads():
    e(f"buffer_load_dwordx4 {vr(XR, 4)}, v{vXO}, {srd(SRD_X)}, s{sXO} offen")
    e(f"buffer_load_dwordx4 {vr(XR + 4, 4)}, v{vXO}, {srd(SRD_X)}, s{sXO} offen offset:16")


def mainloop(dft):
    sCnt, sDelta, sCur = 64, 65, 66
    tag = "D" if dft else "G"
    es(frag_reads(0, 0))
    e(f"s_mov_b32 s{sCnt}, 8")
    e(f"s_mov_b32 s{sCur}, {SLOT}")
    e(f"s_mov_b32 s67, {(-2 * SLOT) & 0xffffffff:#x}")

    def step(u, last):
        st = u & 1
        mf = []
        for mat in ((1, 0) if dft else (0, 1)):
            for q in range(4):
                a, b = (XF[st][q], WF[st][mat]) if dft else (WF[st][mat], XF[st][q])
                mf.append(f"v_mfma_f32_32x32x16_bf16 {vr(ACC(mat, q), 16)}, {vr(a, 4)}, {vr(b, 4)}, {vr(ACC(mat, q), 16)}")
        rd = frag_reads((u + 1) & 3, st ^ 1)
        gaps = [[] for _ in range(8)]
        if u == 3 and not last:
            gaps[0] += [f"v_add_u32 v{WA}, s{sDelta}, v{WA}", f"v_add_u32 v{XA[0]}, s{sDelta}, v{XA[0]}"]
            gaps[5] += [f"v_add_u32 v{XA[1]}, s{sDelta}, v{XA[1]}"]
            gaps[6] += [f"v_add_u32 v{XA[2]}, s{sDelta}, v{XA[2]}", f"v_add_u32 v{XA[3]}, s{sDelta}, v{XA[3]}"]
        if PROF and u in (0, 2):
            gaps[0] += ["s_memtime s[70:71]"]
        if PROF and u in (1, 3):
            gaps[5] += [f"s_lshl_b32 s72, s{sCnt}, 1", f"s_sub_u32 m0, {16 if u == 1 else 15}, s72", f"v_writelane_b32 v{vLOOPST}, s70, m0"]
        if u == 2:
            gaps[5] += [f"s_cmp_eq_u32 s{sCur}, {2 * SLOT}", f"s_cselect_b32 s{sDelta}, s67, {SLOT}"]
            gaps[6] += [f"s_add_u32 s{sCur}, s{sCur}, s{sDelta}", f"s_sub_u32 s{sCnt}, s{sCnt}, 1"]
            gaps[7] += [f"s_cmp_eq_u32 s{sCnt}, 0"]
        if u & 1:
            gaps[0] += ["s_barrier"]
        if dft:
            gaps[0] = [f"v_cndmask_b32 v{WF[st][0] + k}, v{WF[st][0] + k}, v{vPM}, s[68:69]" for k in range(2)] + gaps[0]
            gaps[1] += [f"v_cndmask_b32 v{WF[st][0] + k}, v{WF[st][0] + k}, v{vPM}, s[68:69]" for k in range(2, 4)]
        if u == 2:
            gaps[4].append(f"ds_read_b32 v119, v{vD_TAG}")
        if last:
            extra = dft_stat_reads()
            for k, x in enumerate(extra):
                gaps[2 + min(k // 3, 4)].append(x)
            gaps[0].append(f"v_readfirstlane_b32 s{sTAG}, v119")
            li = late_ids()
            for k, x in enumerate(li):
                gaps[1 + k * 7 // len(li)].append(x)
        else:
            for k in range(4):
                gaps[k + (1 if (u & 1) else 0)] += rd[2 * k:2 * k + 2]
        e("s_waitcnt lgkmcnt(0)")
        for k in range(8):
            e(mf[k])
            es(gaps[k])

    raw(".p2align 3")
    lab(f"MAIN{tag}")
    for u in range(3):
        step(u, False)
    e(f"s_cbranch_scc1 LAST{tag}")
    step(3, False)
    e(f"s_branch MAIN{tag}")
    lab(f"LAST{tag}")
    step(3, True)


X16 = [4 * k for k in range(8)]
W16 = [[64 + 4 * n for n in range(4)], [80 + 4 * n for n in range(4)]]
XA16, WA16 = [112, 113], [114, 115]
MR16, CG16, CU16, TG16 = 32, 48, 56, 96
vB_CS, vB_MR = 119, 120


def A16(sg, n):
    return 128 + 16 * sg + 4 * n


def mainloop16():
    sCnt, sDelta, sCur = 64, 65, 66
    lq = Q()
    gen = [0]

    def rdx(sg, h):
        lq.add(("x", sg), f"ds_read_b128 {vr(X16[sg], 4)}, v{XA16[h]} offset:{sg * 2048}")

    def rdw(n, a, h):
        lq.add(("w", n, a), f"ds_read_b64_tr_b16 {vr(W16[h][n] + 2 * a, 2)}, v{WA16[n & 1]} offset:{h * 16384 + a * 2048 + (n >> 1) * 1024}")

    def wait(tag):
        idx = max(i for i, t in enumerate(lq.l) if t == tag)
        n = len(lq.l) - 1 - idx
        if n < gen[0]:
            e(f"s_waitcnt lgkmcnt({n})")
            gen[0] = n

    def second_half_reads(h):
        return [lambda: rdw(0, 0, h), lambda: rdw(0, 1, h), lambda: rdx(0, h), lambda: rdw(1, 0, h), lambda: rdw(1, 1, h),
                lambda: rdw(2, 0, h), lambda: rdw(2, 1, h), lambda: rdw(3, 0, h), lambda: rdw(3, 1, h),
                lambda: rdx(1, h), lambda: rdx(2, h), lambda: rdx(3, h)]

    def issue(f):
        f()
        gen[0] += 1

    for f in second_half_reads(0):
        issue(f)
    e(f"s_mov_b32 s{sCnt}, 8")
    e(f"s_mov_b32 s{sCur}, {SLOT}")
    e(f"s_mov_b32 s67, {(-2 * SLOT) & 0xffffffff:#x}")

    def step(h, last):
        gen[0] = 15
        gaps = [[] for _ in range(32)]
        for k, sg in enumerate((4, 5, 6, 7)):
            gaps[1 + 2 * k].append(lambda sg=sg: rdx(sg, h))
        txt = [[] for _ in range(32)]
        if h == 0:
            txt[9] += [f"s_cmp_eq_u32 s{sCur}, {2 * SLOT}", f"s_cselect_b32 s{sDelta}, s67, {SLOT}"]
            txt[10] += [f"s_add_u32 s{sCur}, s{sCur}, s{sDelta}", f"s_sub_u32 s{sCnt}, s{sCnt}, 1"]
            txt[31] += [f"s_cmp_eq_u32 s{sCnt}, 0"]
        elif not last:
            txt[9] += [f"v_add_u32 v{XA16[0]}, s{sDelta}, v{XA16[0]}", f"v_add_u32 v{XA16[1]}, s{sDelta}, v{XA16[1]}"]
            txt[10] += [f"v_add_u32 v{WA16[0]}, s{sDelta}, v{WA16[0]}", f"v_add_u32 v{WA16[1]}, s{sDelta}, v{WA16[1]}"]
        if PROF and not last:
            txt[11] += ["s_memtime s[70:71]"]
            txt[29] += [f"s_lshl_b32 s72, s{sCnt}, 1", f"s_sub_u32 m0, {14 + h}, s72"]
            txt[30] += [f"v_writelane_b32 v{vLOOPST}, s70, m0"]
        if last:
            st = [f"ds_read_b64 {vr(MR16 + 2 * sg, 2)}, v{vB_MR} offset:{128 * sg}" for sg in range(8)]
            st += [f"ds_read_b128 {vr(CG16 + 4 * n, 4)}, v{vB_CS} offset:{64 * n}" for n in range(2)]
            st += [f"ds_read_b128 {vr(CU16 + 4 * n, 4)}, v{vB_CS} offset:{512 + 64 * n}" for n in range(2)]
            st += [f"ds_read_b128 {vr(TG16, 4)}, v{vA_TAG}"]
            for k, x in enumerate(st):
                txt[17 + k].append(x)
            gaps[0].append(lambda: lq.add("tag", f"ds_read_b32 v{TG16}, v{vA_TAG}"))
            li = late_ids()
            slots = [m for m in range(9, 31) if m != 16]
            per = -(-len(li) // len(slots))
            for k, x in enumerate(li):
                txt[slots[k // per]].append(x)
        else:
            for k, f in enumerate(second_half_reads(h ^ 1)):
                gaps[17 + k].append(f)
        for m in range(32):
            sg, n = m >> 2, m & 3
            if sg == 0:
                wait(("w", n, 1))
            if n == 0:
                wait(("x", 7 if sg == 4 else sg))
            e(f"v_mfma_f32_16x16x32_bf16 {vr(A16(sg, n), 4)}, {vr(W16[h][n], 4)}, {vr(X16[sg], 4)}, {vr(A16(sg, n), 4)}")
            if m == 16:
                bar()
            if last and m == 8:
                wait("tag")
                e(f"v_readfirstlane_b32 s{sTAG}, v{TG16}")
            for f in gaps[m]:
                issue(f)
            es(txt[m])

    raw(".p2align 3")
    lab("MAING")
    step(0, False)
    e("s_cbranch_scc1 LASTG")
    keep = list(lq.l)
    step(1, False)
    e("s_branch MAING")
    lab("LASTG")
    lq.l = keep
    step(1, True)


def glu_epilogue16():
    e(f"v_and_b32 v102, 15, v{vLANE}")
    e(f"v_bfe_u32 v103, v{vLANE}, 4, 1")
    e("v_lshlrev_b32 v102, 4, v102")
    e("v_lshl_add_u32 v102, v103, 9, v102")
    e(f"v_lshrrev_b32 v103, 5, v{vLANE}")
    e(f"v_mul_u32_u24 v103, {HZ}, v103")
    e("v_add_u32 v102, v102, v103")
    e("s_mov_b32 s66, 1.0")
    e("s_mov_b32 s67, 1.0")
    xloads()
    e("s_waitcnt lgkmcnt(0)")
    e(f"v_readfirstlane_b32 s{sPOL}, v{TG16 + 3}")
    for sg in range(8):
        e(f"v_mul_f32 v{MR16 + 2 * sg + 1}, {NLOG2E:#x}, v{MR16 + 2 * sg + 1}")
    es(hside(sOUT, sPAR, sPOL))
    raw(".p2align 3")
    for sg in range(8):
        q = sg >> 1
        b, p = q & 1, q >> 1
        mr = vr(MR16 + 2 * sg, 2)
        G, U = A16(sg, 0), A16(sg, 2)
        for k in range(4):
            e(f"v_pk_fma_f32 {vr(G + 2 * k, 2)}, {vr(CG16 + 2 * k, 2)}, {mr}, {vr(G + 2 * k, 2)} op_sel_hi:[1,0,1] neg_lo:[0,1,0] neg_hi:[0,1,0]")
        for k in range(4):
            e(f"v_pk_mul_f32 {vr(G + 2 * k, 2)}, {vr(G + 2 * k, 2)}, {mr} op_sel:[0,1] op_sel_hi:[1,1]")
        for k in range(8):
            e(f"v_exp_f32 v{G + k}, v{G + k}")
        for k in range(4):
            e(f"v_pk_add_f32 {vr(G + 2 * k, 2)}, {vr(G + 2 * k, 2)}, s[66:67]")
        for k in range(8):
            e(f"v_rcp_f32 v{G + k}, v{G + k}")
        for k in range(4):
            e(f"v_pk_fma_f32 {vr(U + 2 * k, 2)}, {vr(CU16 + 2 * k, 2)}, {mr}, {vr(U + 2 * k, 2)} op_sel_hi:[1,0,1] neg_lo:[0,1,0] neg_hi:[0,1,0]")
        for k in range(4):
            e(f"v_pk_mul_f32 {vr(U + 2 * k, 2)}, {vr(U + 2 * k, 2)}, {vr(G + 2 * k, 2)}")
        o = 4 * sg
        for k in range(4):
            e(f"v_cvt_pk_bf16_f32 v{o + k}, v{U + 2 * k}, v{U + 2 * k + 1}")
        e(f"s_add_u32 s65, s{sOUT}, {(b * 2 + p) * 2 * HZ + (sg & 1) * 256 + H_OFF}")
        e(f"buffer_store_dwordx4 {vr(o, 4)}, v102, {srd(SRD_WS)}, s65 offen sc1")
    e(f"v_mov_b32 v43, v{TG16}")
    publish()


def publish():
    stamp(3)
    cm("publish: the last of the four waves whose stores have completed writes the workgroup's flag")
    e("v_mov_b32 v41, 1")
    e("v_mov_b32 v42, 0")
    e("s_mov_b64 exec, 1")
    e("s_waitcnt vmcnt(0)")
    e(f"ds_add_rtn_u32 v41, v{vA_TAG}, v41 offset:4")
    e("s_waitcnt lgkmcnt(0)")
    e("v_readfirstlane_b32 s64, v41")
    e("s_cmp_lg_u32 s64, 3")
    e("s_cbranch_scc1 HNOFLAG")
    e(f"buffer_store_dword v43, v42, {srd(SRD_WS)}, s{sFLG} offen sc1")
    lab("HNOFLAG")
    e("s_mov_b64 exec, -1")
    stamp(4)


def dft_prologue():
    e(f"v_and_b32 v2, 31, v{vLANE}")
    e("v_cvt_f32_u32 v3, v2")
    e(f"v_mul_f32 v3, {f2u(1.0 / 2048):#x}, v3")
    e(f"s_and_b32 s64, s{sWAVE}, 1")
    e(f"s_lshr_b32 s65, s{sWAVE}, 1")
    e("s_lshl_b32 s65, s65, 5")
    e("s_add_u32 s64, s64, s65")
    e(f"s_lshl_b32 s65, s{sI}, 1")
    e("s_add_u32 s64, s64, s65")
    e(f"v_lshrrev_b32 v4, 5, v{vLANE}")
    e("v_lshl_add_u32 v4, v4, 8, s64")
    e("v_cvt_f32_u32 v4, v4")
    e("v_mul_f32 v4, v3, v4")
    e("v_and_b32 v5, 1, v2")
    e("v_mul_u32_u24 v5, 0x8000, v5")
    e("v_lshl_or_b32 v5, v5, 16, v5")
    for jj in range(8):
        e(f"v_fmamk_f32 v{8 + jj}, v3, {f2u(64.0 * (8 * (jj >> 2) + (jj & 3))):#x}, v4")
    for jj in range(8):
        e(f"v_fract_f32 v{8 + jj}, v{8 + jj}")
    for jj in range(8):
        e(f"v_cos_f32 v{16 + jj}, v{8 + jj}")
        e(f"v_sin_f32 v{24 + jj}, v{8 + jj}")
    e("s_nop 0")
    for k in range(4):
        e(f"v_cvt_pk_bf16_f32 v{32 + k}, v{16 + 2 * k}, v{17 + 2 * k}")
        e(f"v_cvt_pk_bf16_f32 v{40 + k}, v{24 + 2 * k}, v{25 + 2 * k}")
    for k in range(4):
        e(f"v_xor_b32 v{36 + k}, v5, v{32 + k}")
        e(f"v_xor_b32 v{44 + k}, v5, v{40 + k}")
    e(f"s_lshl_b32 s64, s{sWAVE}, 12")
    e(f"s_add_u32 s64, s64, {MISC}")
    e(f"v_lshl_add_u32 v6, v{vLANE}, 4, s64")
    for k in range(4):
        e(f"ds_write_b128 v6, {vr(32 + 4 * k, 4)} offset:{1024 * k}")
    cm("column 0 carries the Nyquist bin: lanes 0 and 32 of wave 0 in column block 14 use (+1,-1,+1,...)")
    e(f"s_cmp_eq_u32 s{sJ}, 14")
    e("s_cselect_b32 s68, 1, 0")
    e(f"s_cmp_eq_u32 s{sWAVE}, 0")
    e("s_cselect_b32 s68, s68, 0")
    e("s_mov_b32 s69, s68")
    e(f"v_mov_b32 v{vPM}, 0xbf803f80")
    e(f"v_lshlrev_b32 v119, 4, v{vLANE}")
    e(f"v_add_u32 v119, {MISC}, v119")
    e("s_waitcnt lgkmcnt(0)")


def dft_epilogue():
    e(f"v_mov_b32 v114, v{vD_R}")
    xloads()
    e("s_waitcnt lgkmcnt(0)")
    e(f"v_readfirstlane_b32 s{sPOL}, v127")

    def TS(q):
        return (120 if q & 1 else 96), (104 if q == 0 else TW(q - 1, 0, 0))

    def valu(q):
        r_ = []
        for mat in range(2):
            A, T = ACC(mat, q), TS(q)[mat]
            if q == 0:
                for r in range(0, 16, 2):
                    r_.append(f"v_pk_mul_f32 {vr(A + r, 2)}, {vr(A + r, 2)}, {vr(R0 + r, 2)}")
            else:
                for r in range(16):
                    r_.append(f"v_mul_f32 v{A + r}, v{A + r}, v{R0 + r}")
            if mat and q < 3:
                r_[-1] = [r_[-1]] + [f"ds_read_b128 {vr(R0 + 4 * a, 4)}, v114 offset:{128 * (q + 1) + 32 * a}" for a in range(4)]
            for k in range(8):
                r_.append(f"v_cvt_pk_bf16_f32 v{T + k}, v{A + 2 * k}, v{A + 2 * k + 1}")
        return r_

    def mfmas(q):
        ta, tb = TS(q)
        zr, zi = ACC(0, q), ACC(1, q)
        seq = [(zr, 1, 0, tb), (zi, 0, 0, tb), (zr, 1, 1, tb + 4), (zi, 0, 1, tb + 4),
               (zr, 0, 0, ta), (zr, 0, 1, ta + 4), (zi, 1, 0, ta), (zi, 1, 1, ta + 4)]
        return [f"v_mfma_f32_32x32x16_bf16 {vr(d, 16)}, {vr(TW(q, cs, z), 4)}, {vr(b, 4)}, {'0' if k < 2 else vr(d, 16)}"
                for k, (d, cs, z, b) in enumerate(seq)]

    for q in range(5):
        v_ = valu(q) if q < 4 else []
        m_ = mfmas(q - 1) if q else []
        if 0 < q < 4:
            e("s_waitcnt lgkmcnt(0)")
        if q:
            e("s_nop 1")
        per = len(v_) // 8
        for k in range(8):
            if m_:
                e(m_[k])
                if k in (3, 4):
                    for x in range(4):
                        rg = TW(q - 1, 1, k - 3) + x
                        e(f"v_xor_b32 v{rg}, 0x80008000, v{rg}")
            if q:
                cut = [0, 6, 12, 18, 24, 30, 35, 40, 48]
                es(v_[cut[k]:cut[k + 1]])
            else:
                es(v_[k * per:(k + 1) * per])
    e(f"v_and_b32 v112, 31, v{vLANE}")
    e(f"v_lshrrev_b32 v113, 5, v{vLANE}")
    e("v_lshlrev_b32 v112, 4, v112")
    e("v_lshl_add_u32 v125, v113, 18, v112")
    e("s_nop 7")
    for r in range(16):
        for q in range(4):
            e(f"v_cvt_pk_bf16_f32 v{4 * r + q}, v{ACC(0, q) + r}, v{ACC(1, q) + r}")
        e(f"s_add_u32 s65, s{sOUT}, {(8 * (r >> 2) + (r & 3)) * 65536}")
        e(f"buffer_store_dwordx4 {vr(4 * r, 4)}, v125, {srd(SRD_WS)}, s65 offen sc1")
    stamp(3)
    e(f"v_mov_b32 v64, {CNTL}")
    e("v_mov_b32 v65, 1")
    e("s_mov_b64 exec, 1")
    e("ds_add_u32 v64, v65")
    e("s_mov_b64 exec, -1")
    stamp(4)
    cm("publish Z: the last of the four waves whose stores have completed writes the workgroup's flag")
    e(f"v_mov_b32 v66, s{sTAG}")
    e("v_mov_b32 v67, 0")
    e("s_mov_b64 exec, 1")
    e("s_waitcnt vmcnt(0)")
    e("ds_add_rtn_u32 v65, v64, v65 offset:4")
    e("s_waitcnt lgkmcnt(0)")
    e("v_readfirstlane_b32 s64, v65")
    e("s_cmp_lg_u32 s64, 3")
    e("s_cbranch_scc1 NOZF")
    e(f"buffer_store_dword v66, v67, {srd(SRD_WS)}, s{sFLG} offen sc1")
    lab("NOZF")
    e("s_mov_b64 exec, -1")
    e("s_branch PHASE2")


def phase2():
    OWN, OTH, Y, EF, HR, ET = 128, 144, 160, 32, 176, 248
    vR = 88
    W2 = [[96, 100], [104, 108], [240, 244]]
    WD = [112, 113]
    vH, vZA = 114, 116
    vEA, vEB, vES = 122, 123, 124
    ZF = 0
    assert D <= 16
    vm, lq = Q(), Q()
    lab("PHASE2")
    stamp(5)
    e(f"v_and_b32 v89, 31, v{vLANE}")
    e(f"v_lshrrev_b32 v90, 5, v{vLANE}")
    es(hside(sH, sPAR2, sPOL))
    e(f"v_bfe_u32 v{ET}, v{vLANE}, 2, 2")
    e(f"v_lshl_add_u32 v92, v90, 2, v{ET}")
    e(f"s_lshl_b32 s68, s{sKH}, 10")
    e("v_lshl_add_u32 v92, v92, 7, s68")
    e(f"v_and_b32 v93, 1, v{vLANE}")
    e("v_lshlrev_b32 v93, 2, v93")
    e(f"v_bfe_u32 v{ET + 1}, v{vLANE}, 4, 1")
    e(f"v_lshl_add_u32 v93, v{ET + 1}, 1, v93")
    e(f"v_bfe_u32 v{ET + 1}, v{vLANE}, 1, 1")
    e(f"v_add_u32 v93, v93, v{ET + 1}")
    e("v_lshl_add_u32 v92, v93, 3, v92")
    e(f"v_lshrrev_b32 v{ET}, 1, v{ET}")
    e(f"v_xor_b32 v{ET}, s{sKH}, v{ET}")
    e(f"v_lshl_add_u32 v{WD[0]}, v{ET}, 6, v92")
    e(f"v_xor_b32 v{WD[1]}, 64, v{WD[0]}")
    e(f"v_lshlrev_b32 v{vH}, 4, v{vLANE}")
    bar("BW")
    stamp(6)
    nh = [0]

    def hmore(lim, cnt):
        while cnt and nh[0] < min(56, lim):
            v = nh[0]
            vm.add(("h", v), f"buffer_load_dwordx4 {vr(HR + 4 * (v % D), 4)}, v{vH}, {srd(SRD_WS)}, s{sH} offen offset:{1024 * (v & 3)} sc1")
            if v & 3 == 3:
                e(f"s_add_u32 s{sH}, s{sH}, {4096 if v & 4 == 0 else HB - 4096}")
            nh[0] += 1
            cnt -= 1

    base = [0]

    def wreads(v):
        a = wslot(v) * 4096
        if (a & ~0xFFFF) != base[0]:
            d = (a & ~0xFFFF) - base[0]
            base[0] = a & ~0xFFFF
            es([f"v_add_u32 v{WD[c]}, {d & 0xffffffff:#x}, v{WD[c]}" for c in range(2)])
        for c in range(2):
            for k in range(2):
                lq.add(("w", v, c, k), f"ds_read_b64_tr_b16 {vr(W2[v % 3][c] + 2 * k, 2)}, v{WD[c]} offset:{(a & 0xFFFF) + 2048 * k}")

    for v in range(OPT["D0"]):
        hmore(56, 1)
        if v == 1:
            wreads(0)
            wreads(1)

    fill = [[f"s_cmp_ge_u32 s{sCB}, 4", "s_cselect_b64 s[70:71], -1, 0"],
            f"s_lshl_b32 s68, s{sKH}, 9", f"s_add_u32 s68, s68, {ZL}", f"v_lshl_add_u32 v{vZA}, v89, 4, s68",
            f"v_lshl_add_u32 v{vZA}, v90, 10, v{vZA}",
            f"s_lshl_b32 s68, s{sP}, 7", f"s_add_u32 s68, s68, {R2L}", "v_lshl_add_u32 v93, v89, 2, s68",
            f"v_lshl_add_u32 v91, v89, 1, s{sP}", f"v_sub_u32 v92, s{sC0}, v91", "v_cndmask_b32 v91, v91, v92, s[70:71]",
            f"v_and_b32 v{vES}, 1, v91", f"v_mul_u32_u24 v{vES}, 0x8000, v{vES}", f"v_lshl_or_b32 v{vES}, v{vES}, 16, v{vES}",
            "v_cvt_f32_u32 v91, v91", f"v_mul_f32 v{vEA}, {f2u(1.0 / 64):#x}, v91",
            "v_lshlrev_b32 v92, 1, v90", "v_cvt_f32_u32 v92, v92", f"v_mul_f32 v{vEB}, v{vEA}, v92"]
    for sg in range(8):
        for b in range(2):
            fill.append(f"v_fmamk_f32 v{ET + b}, v{vEA}, {f2u(float(4 * sg + b)):#x}, v{vEB}")
        for b in range(2):
            fill.append(f"v_fract_f32 v{ET + b}, v{ET + b}")
        for b in range(2):
            fill.append(f"v_cos_f32 v{ET + 2 + b}, v{ET + b}")
            fill.append(f"v_sin_f32 v{ET + 4 + b}, v{ET + b}")
        fill.append([f"v_cvt_pk_bf16_f32 v{EF + 4 * sg}, v{ET + 2}, v{ET + 4}",
                     f"v_cvt_pk_bf16_f32 v{EF + 4 * sg + 1}, v{ET + 3}, v{ET + 5}"])
        for b in range(2):
            fill.append(f"v_xor_b32 v{EF + 4 * sg + 2 + b}, v{vES}, v{EF + 4 * sg + b}")
    P2BAR = {55 - NRES: "BP1", NRES - 2: "BP2", OPT["vz0"]: "BZ0"}
    assert NRES - 2 < OPT["vz0"] < 55

    for v in range(56):
        e(f"s_waitcnt vmcnt({vm.younger(('h', v))}) lgkmcnt({lq.younger(('w', v, 1, 1))})")
        h = vr(HR + 4 * (v % D), 4)
        st = v % 3
        e(f"v_mfma_f32_32x32x16_bf16 {vr(OWN, 16)}, {vr(W2[st][0], 4)}, {h}, {'0' if v == 0 else vr(OWN, 16)}")
        if v in P2BAR:
            bar(P2BAR[v])
        if v + 2 < 56:
            wreads(v + 2)
        e(f"v_mfma_f32_32x32x16_bf16 {vr(OTH, 16)}, {vr(W2[st][1], 4)}, {h}, {'0' if v == 0 else vr(OTH, 16)}")
        if PROF and v % 4 == 0:
            e("s_memtime s[78:79]")
        if PROF and v % 4 == 2:
            e(f"v_writelane_b32 v{vLOOPST}, s78, {16 + v // 4}")
        if v == 40:
            lq.add("r", f"ds_read_b32 v{vR}, v93")
        hmore(v + 1 + D, 2)
        es(fill[:OPT.get("nf", 3)])
        del fill[:OPT.get("nf", 3)]
    assert not fill
    stamp(7)

    def ymf(sg):
        e(f"v_mfma_f32_32x32x16_bf16 {vr(Y, 16)}, {vr(ZF + 4 * sg, 4)}, {vr(EF + 4 * sg, 4)}, {'0' if sg == 0 else vr(Y, 16)}")

    cm("cross-wave reduction over the two K halves")
    XU, PT, TT = 176, 192, 208
    e(f"s_lshl_b32 s68, s{sWAVE}, 12")
    e(f"s_add_u32 s68, s68, {RED}")
    e(f"v_lshl_add_u32 v91, v{vLANE}, 4, s68")
    e("v_xor_b32 v92, 8192, v91")
    e(f"v_mul_f32 v{vR + 1}, {NLOG2E:#x}, v{vR}")
    e("v_mov_b32 v93, 0xffff0000")
    e("s_nop 0")
    for k in range(3):
        e(f"v_lshlrev_b32 v{XU + 2 * k}, 16, v{XR + k}")
        e(f"v_and_b32 v{XU + 2 * k + 1}, v93, v{XR + k}")
    for a in range(4):
        e(f"ds_write_b128 v91, {vr(OTH + 4 * a, 4)} offset:{1024 * a}")
    for k in range(3, 8):
        e(f"v_lshlrev_b32 v{XU + 2 * k}, 16, v{XR + k}")
        e(f"v_and_b32 v{XU + 2 * k + 1}, v93, v{XR + k}")
    e("s_waitcnt lgkmcnt(0)")
    bar("BR")
    for a in range(4):
        e(f"ds_read_b128 {vr(PT + 4 * a, 4)}, v92 offset:{1024 * a}")
    for sg in range(8):
        e(f"ds_read_b128 {vr(ZF + 4 * sg, 4)}, v{vZA} offset:{2048 * sg}")
    e("s_waitcnt lgkmcnt(8)")
    rr = vr(vR, 2)
    raw(".p2align 3")
    for k in range(8):
        e(f"v_pk_add_f32 {vr(OWN + 2 * k, 2)}, {vr(OWN + 2 * k, 2)}, {vr(PT + 2 * k, 2)}")
    for k in range(8):
        e(f"v_pk_mul_f32 {vr(TT + 2 * k, 2)}, {vr(OWN + 2 * k, 2)}, {rr} op_sel:[0,1] op_sel_hi:[1,1]")
    for k in range(8):
        e(f"v_pk_mul_f32 {vr(OWN + 2 * k, 2)}, {vr(OWN + 2 * k, 2)}, {rr} op_sel_hi:[1,0]")
    e("s_waitcnt lgkmcnt(0)")
    for k in range(16):
        if k % 3 == 0:
            ymf(k // 3)
        e(f"v_exp_f32 v{TT + k}, v{TT + k}")
    for k in range(16):
        if k in (2, 8):
            ymf(6 + (k >> 3))
        e(f"v_add_f32 v{TT + k}, 1.0, v{TT + k}")
    for k in range(16):
        e(f"v_rcp_f32 v{TT + k}, v{TT + k}")
    raw(".p2align 3")
    for k in range(8):
        e(f"v_pk_mul_f32 {vr(OWN + 2 * k, 2)}, {vr(OWN + 2 * k, 2)}, {vr(TT + 2 * k, 2)}")
    for k in range(8):
        e(f"v_pk_fma_f32 {vr(OWN + 2 * k, 2)}, {vr(OWN + 2 * k, 2)}, {vr(Y + 2 * k, 2)}, {vr(XU + 2 * k, 2)}")
    for k in range(8):
        e(f"v_cvt_pk_bf16_f32 v{TT + k}, v{OWN + 2 * k}, v{OWN + 2 * k + 1}")
    e(f"buffer_store_dwordx4 {vr(TT, 4)}, v{vXO}, {srd(SRD_OUT)}, s{sXO} offen")
    e(f"buffer_store_dwordx4 {vr(TT + 4, 4)}, v{vXO}, {srd(SRD_OUT)}, s{sXO} offen offset:16")
    stamp_flush(8, 64, True)
    if OPT.get("rabs"):
        lab("DLY")
        e("s_memrealtime s[82:83]")
        e("s_waitcnt lgkmcnt(0)")
        e("s_sub_u32 s82, s82, s98")
        e(f"s_cmp_lt_u32 s82, {OPT['rabs']}")
        e("s_cbranch_scc1 DLY")
    e("s_endpgm")


def cwave():
    section("C0")
    lab("CWAVE")
    cm("================ C waves: matrix work ================")
    e("s_setprio 2")
    ids1()
    e(f"v_mov_b32 v{vLANE}, v0")
    for k in range(4):
        e(f"v_mov_b32 v{8 + k}, 0")
    e("v_and_b32 v2, 31, v0")
    e("v_lshrrev_b32 v3, 5, v0")
    for k in range(8):
        e(f"v_mfma_f32_32x32x16_bf16 {vr(128 + 16 * k, 16)}, v[8:11], v[8:11], 0")
    e("s_waitcnt lgkmcnt(0)")
    srds2()
    e(f"s_and_b32 s{sP}, s{sWAVE}, 1")
    e(f"s_lshr_b32 s{sKH}, s{sWAVE}, 1")
    e(f"s_lshl_b32 s64, s{sI}, 4")
    e(f"s_add_u32 s64, s64, s{sJ}")
    e("s_lshl_b32 s64, s64, 7")
    e(f"s_add_u32 s{sFLG}, s64, {FLH}")
    e(f"s_cmp_eq_u32 s{sDFT}, 1")
    e("s_cbranch_scc1 CDFT")
    e(f"s_lshl_b32 s64, s{sJ}, 2")
    e(f"s_add_u32 s64, s64, s{sWAVE}")
    e("s_lshr_b32 s65, s64, 3")
    e(f"s_mul_i32 s65, s65, {HB}")
    e("s_and_b32 s64, s64, 7")
    e("s_lshl_b32 s64, s64, 10")
    e("s_add_u32 s64, s64, s65")
    e(f"s_lshl_b32 s65, s{sI}, 1")
    es(hbase(sOUT, 65))
    e(f"s_mov_b32 s{sPAR}, s47")
    e(f"s_add_u32 s{sOUT}, s{sOUT}, s64")
    if True:
        e("v_and_b32 v2, 15, v0")
        e("v_lshrrev_b32 v3, 4, v0")
        e("v_lshrrev_b32 v4, 1, v2")
        e("v_xor_b32 v4, v4, v3")
        e("v_lshlrev_b32 v5, 7, v2")
        e(f"v_lshl_add_u32 v{XA16[0]}, v4, 4, v5")
        e(f"v_add_u32 v{XA16[0]}, {SLOT + 32768}, v{XA16[0]}")
        e(f"v_xor_b32 v{XA16[1]}, 64, v{XA16[0]}")
        e("v_bfe_u32 v4, v0, 2, 2")
        e("v_lshlrev_b32 v5, 12, v3")
        e("v_lshl_add_u32 v5, v4, 8, v5")
        e(f"v_xor_b32 v4, s{sWAVE}, v4")
        e("v_lshl_add_u32 v5, v4, 6, v5")
        e("v_and_b32 v4, 1, v3")
        e("v_lshl_add_u32 v5, v4, 5, v5")
        e("v_and_b32 v4, 3, v0")
        e("v_lshl_add_u32 v5, v4, 3, v5")
        e(f"v_add_u32 v{WA16[0]}, {SLOT}, v5")
        e(f"v_xor_b32 v{WA16[1]}, 32, v{WA16[0]}")
        e(f"s_lshl_b32 s64, s{sWAVE}, 7")
        e(f"s_add_u32 s64, s64, {CSL}")
        e(f"v_lshl_add_u32 v{vB_CS}, v3, 4, s64")
        e(f"v_lshlrev_b32 v{vB_MR}, 3, v2")
        e(f"v_add_u32 v{vB_MR}, {MRP}, v{vB_MR}")
        e(f"v_mov_b32 v{vA_TAG}, {TAGL}")
    e("s_branch CGLU")
    section("CG")
    lab("CGLU")
    stamp(1)
    bar("B0")
    mainloop16()
    stamp(2)
    glu_epilogue16()
    phase2()
    section("CD")
    lab("CDFT")
    e("v_bfe_u32 v4, v0, 1, 3")
    e("v_lshlrev_b32 v5, 7, v2")
    e(f"v_add_u32 v5, {SLOT + 32768}, v5")
    for u in range(4):
        e(f"v_add_u32 v6, {2 * u}, v3")
        e("v_xor_b32 v6, v6, v4")
        e(f"v_lshl_add_u32 v{XA[u]}, v6, 4, v5")
    e("v_bfe_u32 v4, v0, 2, 2")
    e(f"v_lshlrev_b32 v{WA}, 12, v3")
    e(f"v_lshl_add_u32 v{WA}, v4, 8, v{WA}")
    e(f"v_xor_b32 v4, s{sWAVE}, v4")
    e(f"v_lshl_add_u32 v{WA}, v4, 6, v{WA}")
    e("v_bfe_u32 v4, v0, 4, 1")
    e("v_xor_b32 v4, v4, v3")
    e(f"v_lshl_add_u32 v{WA}, v4, 5, v{WA}")
    e("v_and_b32 v4, 3, v0")
    e(f"v_lshl_add_u32 v{WA}, v4, 3, v{WA}")
    e(f"v_add_u32 v{WA}, {SLOT}, v{WA}")
    e(f"v_lshlrev_b32 v{vD_R}, 4, v3")
    e(f"v_add_u32 v{vD_R}, {RL}, v{vD_R}")
    e(f"v_mov_b32 v{vD_TAG}, {TAGL}")
    e(f"s_lshl_b32 s64, s{sI}, 12")
    e(f"s_and_b32 s65, s{sJ}, 1")
    e("s_lshl_b32 s66, s65, 11")
    e("s_add_u32 s64, s64, s66")
    e(f"s_lshl_b32 s66, s{sWAVE}, 9")
    e("s_add_u32 s64, s64, s66")
    e(f"s_add_u32 s{sOUT}, s64, {Z_OFF}")
    dft_prologue()
    stamp(1)
    bar("B0")
    for k in range(16):
        e(f"ds_read_b128 {vr(4 * k, 4)}, v119 offset:{1024 * k}")
    mainloop(True)
    stamp(2)
    dft_epilogue()


hdr = open("cdna_kernels/" + NAME + ".s.ref").read().split("\n")
head = [l for l in hdr if l.startswith(";") and "@launch" not in l and "Override launch" not in l and "grid=ceil" not in l]
out = head + ["; @launch grid=(256,1,1) block=(512,1,1) lds=163840",
              '.amdgcn_target "amdgcn-amd-amdhsa--gfx950"', ".text", f".globl {K}"]
out.append(".p2align 12")
out += [".p2align 8", f".type {K},@function", f"{K}:"]
entry()
l2wave()
l3wave()
l01wave()
cwave()
for name, align in (("A", 0), ("A2", 0), ("C0", 0), ("L2", 0), ("L3", 0), ("CG", 12), ("CD", 12)):
    if align:
        out.append(f".p2align {align}")
    out += SEC[name]
out += ["END:", "    s_endpgm"]
out += ['.section .rodata,"a"', ".p2align 6", f".amdhsa_kernel {K}", "  .amdhsa_next_free_vgpr 256", "  .amdhsa_next_free_sgpr 102",
        "  .amdhsa_accum_offset 256", "  .amdhsa_group_segment_fixed_size 0", "  .amdhsa_kernarg_size 96",
        "  .amdhsa_user_sgpr_count 2", "  .amdhsa_user_sgpr_kernarg_segment_ptr 1", "  .amdhsa_system_sgpr_workgroup_id_x 1",
        ".end_amdhsa_kernel", ""]
open(sys.argv[1], "w").write("\n".join(out))
```

```python
import struct
import sys

NAME = "recurrent_scan__spectral_fnet__glu_gated_glu__prompt"
OPT = dict(prof=0, D=12, D0=6, pre=2, preb=1, pb2=4, prec=4, th=4, trk=22, u1=2, u2=8, pa=47, dtr=22, dth=4, dpa=47, slp=6, spin=200000,
           vz0=44, xk=0, k0=2, kn=2, xa0=5, na=4, xb0=10, nb=6, xe=16, xt=4, tlb=0, numa=0, pol=-1, user=0)
for a in sys.argv[2:]:
    k, v = a.split("=")
    OPT[k] = int(v)
LITE = OPT["prof"] == 3
PROF = 0 if LITE else OPT["prof"]
K = NAME + "_kernel"
D = OPT["D"]

H_OFF, Z_OFF, ST_OFF, CS_OFF = 0, 0x800000, 0xA00000, 0xA10000
FLH, PROF_OFF, WS_SIZE = 0xA50000, 0xA60000, 0xB00000
PROBE = 0x1C0000
SLOT = 49152
MISC = 147456
CSL, MRP, RL, TAGL, CNTL, R2L = MISC, MISC + 1024, MISC + 2048, MISC + 3072, MISC + 3076, MISC + 3328
RED = 20 * 4096
ZL = 24 * 4096
NRES = 39
NST = 56 - NRES
NUMA = OPT['numa']
HB = 16384 if NUMA else 8192
HZ = 7 * HB
NLOG2E = 0xBFB8AA3B
OOB = 0x40000000


def wslot(v):
    return v if v < 36 else v + 1 if v < NRES else v - NRES


def f2u(x):
    return struct.unpack("<I", struct.pack("<f", x))[0]


SEC = {}
CUR = [None, False]


def section(n):
    CUR[0] = SEC.setdefault(n, [])


def e(s):
    CUR[0].append("    " + s)


def es(lst):
    for x in lst:
        for y in (x if isinstance(x, list) else [x]):
            e(y)


def lab(s):
    CUR[0].append(s + ":")


def raw(s):
    CUR[0].append(s)


def cm(s):
    CUR[0].append("    ; " + s)


def vr(a, n):
    return f"v[{a}:{a + n - 1}]"


def srd(n):
    return f"s[{n}:{n + 3}]"


class Q:
    def __init__(self):
        self.l = []

    def add(self, tag, txt=None):
        self.l.append(tag)
        if txt:
            e(txt)

    def younger(self, tag):
        return len(self.l) - 1 - self.l.index(tag)


SRD_X, SRD_WD, SRD_WS, SRD_OUT, SRD_DBG, SRD_WM = 4, 16, 20, 24, 28, 32
sWAVE, sI, sJ, sT1, sCB, sRS, sCOL, sDFT, sTAG, sIDX = 36, 37, 38, 39, 40, 41, 42, 43, 44, 45
sSTAMP = 80
vLOOPST, vLANE = 121, 117
uid = [0]


def stamp(i):
    if PROF:
        e(f"{'s_memrealtime' if PROF == 2 else 's_memtime'} s[{sSTAMP + 2 * i}:{sSTAMP + 2 * i + 1}]")


def stamp_flush(n, vt, cw):
    if not (PROF or (LITE and cw)):
        return
    e("s_waitcnt lgkmcnt(0)")
    e("s_lshl_b32 s78, s2, 3")
    e(f"s_add_u32 s78, s78, s{sWAVE}")
    e("s_lshl_b32 s78, s78, 8")
    e(f"s_add_u32 s78, s78, {PROF_OFF}")
    e(f"v_mov_b32 v{vt + 8}, 0")
    if PROF:
        for i in range(8):
            e(f"v_mov_b32 v{vt + i}, s{sSTAMP + 2 * i}" if i < n else f"v_mov_b32 v{vt + i}, 0")
        e(f"buffer_store_dwordx4 {vr(vt, 4)}, v{vt + 8}, {srd(SRD_WS)}, s78 offen")
        e(f"buffer_store_dwordx4 {vr(vt + 4, 4)}, v{vt + 8}, {srd(SRD_WS)}, s78 offen offset:16")
        if cw:
            e(f"v_lshlrev_b32 v{vt + 9}, 2, v{vLANE}")
            e(f"v_min_u32 v{vt + 9}, 124, v{vt + 9}")
            e(f"buffer_store_dword v{vLOOPST}, v{vt + 9}, {srd(SRD_WS)}, s78 offen offset:64")
    e("s_memrealtime s[76:77]")
    e("s_waitcnt lgkmcnt(0)")
    e(f"v_mov_b32 v{vt + 10}, s98")
    e(f"v_mov_b32 v{vt + 11}, s76")
    e(f"buffer_store_dwordx2 {vr(vt + 10, 2)}, v{vt + 8}, {srd(SRD_WS)}, s78 offen offset:32")


def bar(name=""):
    e("s_barrier" + (f"  ; {name}" if name else ""))


def poll_issue(vdst, vaddr, ssoff, srdn):
    e(f"buffer_load_dword v{vdst}, v{vaddr}, {srd(srdn)}, {ssoff} offen sc1")


def poll_wait(vdst, vaddr, ssoff, srdn, cond_tag=True, first_wait=0):
    uid[0] += 1
    k = uid[0]
    e(f"s_mov_b32 s75, {OPT['spin']}")
    e(f"s_waitcnt vmcnt({first_wait})")
    lab(f"POLL{k}")
    e(f"v_cmp_ne_u32 vcc, s{sTAG}, v{vdst}" if cond_tag else f"v_cmp_eq_u32 vcc, 0, v{vdst}")
    e("s_nop 1")
    e("s_cmp_eq_u64 vcc, 0")
    e(f"s_cbranch_scc1 POLLD{k}")
    if OPT["slp"]:
        e(f"s_sleep {OPT['slp']}")
    poll_issue(vdst, vaddr, ssoff, srdn)
    e("s_sub_u32 s75, s75, 1")
    e("s_cmp_lg_u32 s75, 0")
    e("s_waitcnt vmcnt(0)")
    e(f"s_cbranch_scc1 POLL{k}")
    lab(f"POLLD{k}")


def wait_c_done():
    uid[0] += 1
    k = uid[0]
    e(f"v_mov_b32 v7, {CNTL}")
    e(f"s_mov_b32 s75, {OPT['spin']}")
    lab(f"CW{k}")
    e("ds_read_b32 v8, v7")
    e("s_waitcnt lgkmcnt(0)")
    e("v_readfirstlane_b32 s76, v8")
    e("s_sub_u32 s75, s75, 1")
    e("s_cmp_eq_u32 s75, 0")
    e(f"s_cbranch_scc1 CWD{k}")
    e("s_sleep 1")
    e("s_cmp_lt_u32 s76, 4")
    e(f"s_cbranch_scc1 CW{k}")
    lab(f"CWD{k}")


def ids1():
    e("s_and_b32 s64, s2, 1")
    e("s_lshl_b32 s64, s64, 3")
    e(f"s_and_b32 s65, s{sIDX}, 7")
    e(f"s_add_u32 s{sI}, s64, s65")
    e("s_bfe_u32 s64, s2, 0x20001")
    e(f"s_lshr_b32 s67, s{sIDX}, 3")
    e("s_mul_i32 s65, s64, 3")
    e("s_add_u32 s65, s65, s67")
    e("s_add_u32 s66, s64, 14")
    e("s_cmp_eq_u32 s67, 3")
    e("s_cselect_b32 s65, s66, s65")
    e("s_lshl_b32 s66, s64, 2")
    e("s_add_u32 s66, s66, s67")
    e("s_sub_u32 s66, s66, 2")
    e("s_cmp_lt_u32 s64, 2")
    e(f"s_cselect_b32 s{sJ}, s65, s66")
    e(f"s_lshl_b32 s{sCOL}, s{sJ}, 8")
    e(f"s_sub_u32 s64, s{sCOL}, {14 * 256}")
    e(f"s_movk_i32 s{sRS}, 3584")
    e(f"s_cmp_ge_u32 s{sJ}, 14")
    e(f"s_cselect_b32 s{sDFT}, 1, 0")
    e(f"s_cselect_b32 s{sRS}, 1024, s{sRS}")
    e(f"s_cselect_b32 s{sCOL}, s64, s{sCOL}")
    e(f"s_lshl_b32 s34, s{sRS}, 9")
    e("s_mov_b32 s35, 0x20000")
    e("s_mov_b32 s6, 0x200000")
    e("s_mov_b32 s7, 0x20000")


def wm_select(scc_instr):
    e(f"s_cmp_eq_u32 s{sDFT}, 1")
    e("s_cselect_b64 s[8:9], s[48:49], s[52:53]")
    e("s_cselect_b64 s[12:13], s[50:51], s[54:55]")
    e(scc_instr)
    e("s_cselect_b64 s[32:33], s[12:13], s[8:9]")


def srds2():
    e("s_mov_b64 s[16:17], s[56:57]")
    e(f"s_mov_b32 s18, {1792 * 1024}")
    e("s_mov_b32 s19, 0x20000")
    e("s_mov_b64 s[20:21], s[62:63]")
    e(f"s_mov_b32 s22, {WS_SIZE}")
    e("s_mov_b32 s23, 0x20000")
    e("s_mov_b64 s[24:25], s[58:59]")
    e("s_mov_b32 s26, 0x200000")
    e("s_mov_b32 s27, 0x20000")
    e("s_mov_b64 s[28:29], s[60:61]")
    e("s_mov_b32 s30, 256")
    e("s_mov_b32 s31, 0x20000")


def ids2():
    return [f"s_add_u32 s46, s2, s{sTAG}" if OPT["user"] else "s_mov_b32 s46, s2",
            "s_bfe_u32 s47, s46, 0x20001", "s_lshl_b32 s47, s47, 3", f"s_and_b32 s{sT1}, s{sIDX}, 7", f"s_add_u32 s{sT1}, s{sT1}, s47",
            "s_and_b32 s46, s46, 1", "s_lshl_b32 s46, s46, 2", f"s_lshr_b32 s{sCB}, s{sIDX}, 3", f"s_add_u32 s{sCB}, s{sCB}, s46"]


def hbase(dst, t1):
    if not NUMA:
        return [f"s_mul_i32 s{dst}, s{t1}, {4 * HZ}"]
    return [f"s_and_b32 s46, s{t1}, 3", f"s_mul_i32 s{dst}, s46, {4 * HZ}", f"s_bfe_u32 s46, s{t1}, 0x20002",
            f"s_lshr_b32 s47, s{t1}, 4", "s_xor_b32 s47, s47, s46", "s_lshl_b32 s46, s46, 21", f"s_add_u32 s{dst}, s{dst}, s46"]


def hside(dst, par, pol):
    if not NUMA:
        return []
    return [f"s_xor_b32 s{par}, s{par}, s{pol}", f"s_and_b32 s{par}, s{par}, 1", f"s_lshl_b32 s{par}, s{par}, 13",
            f"s_add_u32 s{dst}, s{dst}, s{par}"]


def entry():
    section("A")
    e("s_cmp_ge_u32 s2, 256")
    e("s_cbranch_scc1 END")
    e("s_load_dwordx2 s[4:5], s[0:1], 0")
    e("s_load_dwordx4 s[48:51], s[0:1], 24")
    e("s_load_dwordx8 s[52:59], s[0:1], 48")
    e("s_load_dwordx4 s[60:63], s[0:1], 80")
    if PROF or LITE or OPT.get("rabs"):
        e("s_memrealtime s[98:99]")
    stamp(0)
    e("v_lshrrev_b32 v1, 6, v0")
    e("v_and_b32 v0, 63, v0")
    e(f"s_lshr_b32 s{sIDX}, s2, 3")
    e(f"v_readfirstlane_b32 s{sWAVE}, v1")
    e("s_getpc_b64 s[64:65]")
    lab("PCREF")
    e(f"s_cmp_ge_u32 s{sWAVE}, 4")
    e("s_cbranch_scc1 LSTART")
    if True:
        cm("pull the kernel's own code into this die's L2: three lines per matrix wave")
        e(f"s_lshl_b32 s66, s{sIDX}, 2")
        e(f"s_add_u32 s66, s66, s{sWAVE}")
        e("s_mul_i32 s66, s66, 384")
        e(f"s_min_u32 s66, s66, END-PCREF-384")
        e("s_and_b32 s64, s64, 0xffffff80")
        e("s_load_dwordx2 s[68:69], s[64:65], s66 offset:60")
        e("s_load_dwordx2 s[70:71], s[64:65], s66 offset:188")
        e("s_load_dwordx2 s[72:73], s[64:65], s66 offset:316")
    e("s_branch CWAVE")
    lab("LSTART")
    ids1()
    e(f"s_cmp_eq_u32 s{sWAVE}, 6")
    e("s_cbranch_scc1 L2WAVE")
    e(f"s_cmp_eq_u32 s{sWAVE}, 7")
    e("s_cbranch_scc1 L3WAVE")


def wd_voffset(vd, vt):
    e(f"v_lshrrev_b32 v{vt}, 3, v0")
    e(f"v_lshlrev_b32 v{vd}, 10, v{vt}")
    e(f"v_bfe_u32 v{vt}, v0, 4, 1")
    e(f"v_lshlrev_b32 v{vt}, 2, v{vt}")
    e(f"v_and_b32 v{vt + 1}, 7, v0")
    e(f"v_xor_b32 v{vt}, v{vt}, v{vt + 1}")
    e(f"v_lshl_add_u32 v{vd}, v{vt}, 4, v{vd}")


XS = 8192


def xw_base(par):
    e(f"s_lshr_b32 s60, s{sIDX}, 2")
    e("s_lshl_b32 s60, s60, 10")
    e(f"s_and_b32 s63, s{sIDX}, 3")
    e("s_lshl_b32 s63, s63, 7")
    e("s_add_u32 s60, s60, s63")
    e(f"s_and_b32 s63, {par}, 1")
    e("s_lshl_b32 s63, s63, 9")
    e("s_add_u32 s60, s60, s63")
    e("s_bfe_u32 s63, s2, 0x20001")
    e(f"s_mul_i32 s62, s63, {56 * XS}")


def xload(n):
    for k in range(n if not OPT.get("nox") else 0):
        e(f"s_buffer_load_dwordx2 s[58:59], {srd(SRD_WD)}, s60 offset:{XS * k + 60}")


def xa_init():
    xw_base("s2")
    e("s_add_u32 s60, s60, s62")
    e(f"s_sub_u32 s63, s{sWAVE}, 4")
    e(f"s_mul_i32 s63, s63, {28 * XS}")
    e("s_add_u32 s60, s60, s63")


def xa():
    if OPT["xk"]:
        return
    xload(OPT["na"])
    e(f"s_add_u32 s60, s60, {OPT['na'] * XS}")


def xb_init(which):
    e(f"s_add_u32 s46, s2, s{sTAG}" if OPT["user"] else "s_mov_b32 s46, s2")
    xw_base("s46")
    e(f"s_add_u32 s60, s60, {which * OPT['nb'] * XS}")
    e("s_add_u32 s62, s62, s60")
    if OPT["xk"]:
        e("s_mov_b32 s62, -1")
    elif OPT["user"]:
        e(f"s_bitcmp1_b32 s{sTAG}, 0")
        e("s_cselect_b32 s62, -1, s62")


XBN = [0, 0]


def xw(n, which):
    nb = OPT["nb"]
    if n < OPT["xb0"] or XBN[which] * 2 * nb >= (224 if OPT['xk'] else 168):
        return
    XBN[which] += 1
    e("s_cmp_ge_u32 s60, s62")
    e(f"s_cselect_b32 s63, {56 * XS}, 0")
    e("s_cselect_b32 s62, -1, s62")
    e("s_add_u32 s60, s60, s63")
    xload(nb)
    e(f"s_add_u32 s60, s60, {2 * nb * XS}")


def l01wave():
    vX0, vX1, vW, vWD, vZ, vW1 = 2, 3, 4, 5, 9, 12
    sLW, sXa, sXb, sWo, sS0, sS1, sR4, sT, sCnt, sWd = 64, 65, 66, 67, 68, 69, 70, 71, 72, 73
    section("A2")
    lab("L01WAVE")
    cm("================ L0/L1: DMA waves ================")
    e(f"s_sub_u32 s{sLW}, s{sWAVE}, 4")
    e("v_lshrrev_b32 v6, 3, v0")
    e(f"v_lshlrev_b32 v{vX0}, 16, v6")
    e("v_lshrrev_b32 v6, 1, v6")
    e("v_and_b32 v7, 7, v0")
    e("v_xor_b32 v6, v6, v7")
    e(f"v_lshl_add_u32 v{vX0}, v6, 4, v{vX0}")
    e(f"v_xor_b32 v{vX1}, 64, v{vX0}")
    e("v_lshrrev_b32 v6, 4, v0")
    e(f"v_mul_lo_u32 v{vW}, v6, s{sRS}")
    e("v_bfe_u32 v7, v0, 2, 2")
    e("v_xor_b32 v7, v7, v6")
    e("v_lshlrev_b32 v7, 2, v7")
    e("v_and_b32 v8, 3, v0")
    e("v_or_b32 v7, v7, v8")
    e(f"v_lshl_add_u32 v{vW}, v7, 4, v{vW}")
    e("v_xor_b32 v7, 2, v7")
    e(f"v_mul_lo_u32 v{vW1}, v6, s{sRS}")
    e(f"v_lshl_add_u32 v{vW1}, v7, 4, v{vW1}")
    e(f"s_lshl_b32 s{sXa}, s{sI}, 1")
    e(f"s_add_u32 s{sXa}, s{sXa}, s{sLW}")
    e(f"s_lshl_b32 s{sXa}, s{sXa}, 10")
    e(f"s_add_u32 s{sXb}, s{sXa}, {32 * 1024}")
    e(f"s_mov_b32 s{sWo}, s{sCOL}")
    e(f"s_lshl_b32 s{sR4}, s{sRS}, 2")
    e(f"s_lshl_b32 s74, s{sLW}, 10")
    e(f"s_lshl_b32 s77, s{sLW}, 12")

    def wpieces(base_sgpr, imm):
        e(f"s_add_u32 s{sT}, s{base_sgpr}, s74")
        e(f"s_add_u32 m0, s{sT}, {imm}")
        e("s_nop 0")
        for k in range(8):
            if True:
                e(f"buffer_load_dwordx4 v{vW1 if k & 2 else vW}, {srd(SRD_WM)}, s{sWo} offen lds")
            if k < 7:
                e("s_add_u32 m0, m0, 2048")
            e(f"s_add_u32 s{sWo}, s{sWo}, s{sR4}")

    def xpieces(base_sgpr, half):
        sx = sXb if half else sXa
        e(f"s_add_u32 s{sT}, s{base_sgpr}, s77")
        e(f"s_add_u32 m0, s{sT}, {32768 + half * 8192}")
        e(f"s_mov_b32 s{sT}, s{sx}")
        for k in range(4):
            if True:
                e(f"buffer_load_dwordx4 v{vX1 if k & 1 else vX0}, {srd(SRD_X)}, s{sT} offen lds")
            if k < 3:
                e("s_add_u32 m0, m0, 1024")
                e(f"s_add_u32 s{sT}, s{sT}, 0x80000")
        e(f"s_add_u32 s{sx}, s{sx}, 128")

    e(f"s_mov_b32 s{sS0}, {SLOT}")
    e(f"s_mov_b32 s{sS1}, {2 * SLOT}")
    e("s_waitcnt lgkmcnt(0)")
    cm("G0 = x0 + W0 ; G1 = W1 + x1a")
    xpieces(sS0, 0)
    wm_select(f"s_cmp_eq_u32 s{sLW}, 1")
    wpieces(sS0, 0)
    xpieces(sS0, 1)
    wpieces(sS0, 16384)
    xpieces(sS1, 0)
    def l01_ids():
        es(ids2())
        e(f"s_lshr_b32 s61, s{sT1}, 1")
        e("s_lshl_b32 s61, s61, 11")
        e(f"s_and_b32 s48, s{sT1}, 1")
        e("s_lshl_b32 s48, s48, 9")
        e("s_add_u32 s48, s48, s61")
        e("s_add_u32 s48, s48, s74")
        e(f"s_add_u32 s48, s48, {ST_OFF}")
        e(f"s_add_u32 s61, s61, {FLH}")
        e(f"s_cmp_eq_u32 s{sLW}, 0")
        e(f"s_cselect_b32 s61, s61, {OOB:#x}")

    srds2()
    xa_init()
    if not OPT["user"]:
        l01_ids()
    wd_voffset(vWD, 6)
    e("v_min_u32 v10, 13, v0")
    e("v_lshlrev_b32 v10, 7, v10")
    e("v_and_b32 v47, 31, v0")
    e(f"s_lshl_b32 s63, s{sLW}, 7")
    e(f"s_add_u32 s63, s63, {R2L}")
    e("v_lshl_add_u32 v48, v47, 2, s63")
    e("v_lshlrev_b32 v47, 4, v47")
    e("v_mov_b32 v49, 0")
    e("v_lshlrev_b32 v13, 4, v0")
    e(f"s_lshl_b32 s56, s{sJ}, 13")
    e("s_add_u32 s56, s56, s74")
    e(f"s_add_u32 s56, s56, {CS_OFF}")
    e("s_add_u32 s57, s56, 4096")
    e(f"s_lshl_b32 s62, s{sI}, 11")
    e("s_add_u32 s62, s62, s74")
    e(f"s_add_u32 s62, s62, {ST_OFF}")
    e(f"s_lshl_b32 s63, s{sLW}, 9")
    e(f"s_add_u32 s63, s63, {CSL}")
    e("v_lshl_add_u32 v45, v0, 3, s63")
    e(f"s_lshl_b32 s63, s{sLW}, 8")
    e(f"s_add_u32 s63, s63, {RL}")
    e("v_lshl_add_u32 v46, v0, 2, s63")
    e(f"s_mov_b32 s{sS0}, {2 * SLOT}")
    e(f"s_mov_b32 s{sS1}, 0")
    e(f"s_mov_b32 s{sCnt}, 6")
    e("s_waitcnt vmcnt(12)")
    stamp(1)
    bar("B0")
    lab("L01LOOP")
    wpieces(sS0, 0)
    xpieces(sS0, 1)
    A0 = OPT["xa0"]
    NA = -(-28 // OPT["na"])
    ev = [n for n in range(0, 12, 2) if A0 <= n < A0 + NA]
    od = [n for n in range(1, 12, 2) if A0 <= n < A0 + NA]
    if not OPT["xk"]:
        e(f"s_sub_u32 s63, {6 - ev[0] // 2}, s{sCnt}")
        e(f"s_cmp_ge_u32 s63, {len(ev)}")
        e("s_cbranch_scc1 L01X0")
    xa()
    lab("L01X0")
    e("s_waitcnt vmcnt(12)")
    bar("B(2s+1)")
    wpieces(sS0, 16384)
    xpieces(sS1, 0)
    if not OPT["xk"]:
        e(f"s_sub_u32 s63, {6 - od[0] // 2}, s{sCnt}")
        e(f"s_cmp_ge_u32 s63, {len(od)}")
        e("s_cbranch_scc1 L01X1")
    xa()
    lab("L01X1")
    e(f"s_mov_b32 s{sS0}, s{sS1}")
    e(f"s_add_u32 s{sS1}, s{sS1}, {SLOT}")
    e(f"s_cmp_eq_u32 s{sS1}, {3 * SLOT}")
    e(f"s_cselect_b32 s{sS1}, 0, s{sS1}")
    e(f"s_sub_u32 s{sCnt}, s{sCnt}, 1")
    e(f"s_cmp_lg_u32 s{sCnt}, 0")
    e("s_waitcnt vmcnt(12)")
    bar("B(2s+2)")
    e("s_cbranch_scc1 L01LOOP")
    wpieces(sS0, 0)
    xpieces(sS0, 1)
    e(f"v_mov_b32 v7, {TAGL}")
    e("ds_read_b32 v8, v7")
    if OPT["user"]:
        e("s_waitcnt lgkmcnt(0)")
        e(f"v_readfirstlane_b32 s{sTAG}, v8")
        l01_ids()
    e("s_waitcnt vmcnt(12)")
    bar("B13")
    wpieces(sS0, 16384)

    def gets():
        cm("statistics of the other workgroups: column sums (128 columns x 4 partial sums) and 64 rows per wave")
        for k in range(4):
            e(f"buffer_load_dwordx4 {vr(16 + 4 * k, 4)}, v13, {srd(SRD_WS)}, {'s57' if k >= 2 else 's56'} offen offset:{2048 * (k & 1)} sc1")
        e(f"buffer_load_dwordx4 v[32:35], v13, {srd(SRD_WS)}, s62 offen sc1")
        e(f"buffer_load_dwordx4 v[52:55], v47, {srd(SRD_WS)}, s48 offen sc1")
        if NUMA:
            e(f"buffer_load_dword v50, v49, {srd(SRD_DBG)}, 0 offen offset:4 sc1")

    gets()
    e(f"s_lshl_b32 s{sWd}, s{sLW}, 14")
    e(f"s_lshl_b32 s{sT}, s{sCB}, 7")
    e(f"s_add_u32 s{sWd}, s{sWd}, s{sT}")
    e(f"s_lshl_b32 m0, s{sLW}, 11")

    def units(a, b, th=0):
        for v in range(a, b):
            e(f"s_add_u32 s{sT}, s{sWd}, 8192")
            if v < NRES:
                e(f"buffer_load_dwordx4 v{vWD}, {srd(SRD_WD)}, s{sWd} offen lds")
                e("s_add_u32 m0, m0, 1024")
            else:
                e(f"buffer_load_dwordx4 {vr(ST0 + 8 * (v - NRES), 4)}, v{vWD}, {srd(SRD_WD)}, s{sWd} offen")
            e(f"s_add_u32 s{sWd}, s{sWd}, 32768")
            if v < NRES:
                e(f"buffer_load_dwordx4 v{vWD}, {srd(SRD_WD)}, s{sT} offen lds")
            else:
                e(f"buffer_load_dwordx4 {vr(ST0 + 8 * (v - NRES) + 4, 4)}, v{vWD}, {srd(SRD_WD)}, s{sT} offen")
            if v + 1 < NRES:
                e(f"s_add_u32 m0, m0, {(wslot(v + 1) - wslot(v)) * 4096 - 1024}")
            if th:
                e(f"s_waitcnt vmcnt({th})")

    ST0 = 64
    U1, U2 = OPT["u1"], OPT["u2"]
    units(0, U1)
    e(f"s_waitcnt vmcnt({8 + 6 + NUMA + 2 * U1})")
    bar("B14")
    units(U1, U2)
    e(f"s_waitcnt vmcnt({6 + NUMA + 2 * U2})")
    bar("B15")
    if not OPT["user"]:
        e("s_waitcnt lgkmcnt(0)")
        e(f"v_readfirstlane_b32 s{sTAG}, v8")
    e(f"s_mov_b32 s75, {OPT['spin']}")
    e(f"s_waitcnt vmcnt({2 * U2})")
    lab("GCHK")
    for k in range(8):
        e(f"v_xor_b32 v{36 + k}, s{sTAG}, v{17 + 2 * k}")
    e(f"v_xor_b32 v44, s{sTAG}, v35")
    e(f"v_xor_b32 v51, s{sTAG}, v55")
    if NUMA:
        e("v_and_b32 v56, 2, v50")
        e("v_xor_b32 v56, 2, v56")
        e("v_or3_b32 v44, v44, v51, v56")
    else:
        e("v_or_b32 v44, v44, v51")
    for k in range(4):
        e(f"v_or3_b32 v44, v44, v{36 + 2 * k}, v{37 + 2 * k}")
    e("v_cmp_ne_u32 vcc, 0, v44")
    e("v_add_f32 v36, v16, v20")
    e("v_add_f32 v37, v18, v22")
    e("s_cmp_eq_u64 vcc, 0")
    e("s_cbranch_scc1 GOK")
    e("s_sleep 2")
    gets()
    e("s_sub_u32 s75, s75, 1")
    e("s_cmp_lg_u32 s75, 0")
    e("s_waitcnt vmcnt(0)")
    e("s_cbranch_scc1 GCHK")
    lab("GOK")
    e("v_add_f32 v38, v24, v28")
    e("v_add_f32 v39, v26, v30")
    e("v_add_f32 v36, v36, v38")
    e("v_add_f32 v37, v37, v39")
    e("ds_write_b64 v45, v[36:37]")
    e(f"ds_write_b64 v45, v[32:33] offset:{MRP - CSL}")
    e("ds_write_b32 v46, v33")
    e("ds_write_b32 v48, v53")
    if NUMA:
        e("ds_write_b32 v7, v50 offset:12")
    e("s_waitcnt lgkmcnt(0)")
    stamp(2)
    bar("B16")
    TR = OPT["trk"]
    PA = OPT["pa"]
    e(f"s_cmp_eq_u32 s{sDFT}, 0")
    e("s_cbranch_scc1 L01GLU")
    cm("spectral workgroups store late: they need not hold back now")
    units(U2, OPT["dtr"], OPT["dth"])
    units(OPT["dtr"], OPT["dpa"])
    wait_c_done()
    stamp(3)
    units(OPT["dpa"], PA)
    poll_issue(11, 10, "s61", SRD_WS)
    units(PA, 56)
    e("s_branch L01JOIN")
    lab("L01GLU")
    units(U2, TR, OPT["th"])
    wait_c_done()
    stamp(3)
    units(TR, PA)
    cm("L0 waits for the 14 producers of row block t1>>1 (queued behind the w_down loads)")
    poll_issue(11, 10, "s61", SRD_WS)
    units(PA, 56)
    lab("L01JOIN")
    e("v_and_b32 v6, 3, v0")
    e("v_bfe_u32 v7, v0, 3, 2")
    e("v_lshl_add_u32 v6, v7, 2, v6")
    e("v_bfe_u32 v7, v0, 2, 1")
    e("v_lshl_add_u32 v6, v7, 4, v6")
    e("v_and_b32 v7, 32, v0")
    e(f"s_lshl_b32 s66, s{sCB}, 6")
    e("v_add3_u32 v6, v6, v7, s66")
    e("v_sub_u32 v7, 512, v6")
    e("v_and_b32 v7, 255, v7")
    e(f"s_sub_u32 s67, 32, s{sT1}")
    e("s_and_b32 s67, s67, 31")
    e(f"s_cmp_ge_u32 s{sCB}, 4")
    e("s_cselect_b64 s[68:69], -1, 0")
    e(f"s_cselect_b32 s67, s67, s{sT1}")
    e("v_cmp_eq_u32 vcc, 0, v6")
    e("v_cndmask_b32 v7, v6, v7, s[68:69]")
    e(f"v_lshlrev_b32 v{vZ}, 4, v7")
    e(f"v_mov_b32 v7, {OOB:#x}")
    e("s_lshl_b32 s67, s67, 16")
    e(f"v_cndmask_b32 v{vZ}, v{vZ}, v7, vcc")
    e(f"s_lshl_b32 s66, s{sLW}, 15")
    e("s_add_u32 s67, s67, s66")
    e(f"s_add_u32 s67, s67, {Z_OFF}")
    e(f"s_lshl_b32 s66, s{sLW}, 13")
    e(f"s_add_u32 m0, s66, {ZL}")
    e("v_bfe_u32 v12, v0, 1, 4")
    e("v_lshlrev_b32 v12, 4, v12")
    e("v_and_b32 v13, 1, v0")
    e("v_add3_u32 v12, v12, v13, 14")
    e("v_lshlrev_b32 v12, 7, v12")
    e(f"s_mov_b32 s70, {FLH}")
    e(f"s_lshl_b32 s66, s{sLW}, 11")
    e("v_lshl_add_u32 v6, v0, 4, s66")
    e(f"s_cmp_eq_u32 s{sLW}, 1")
    e(f"s_cselect_b32 s70, s70, {OOB:#x}")
    e("s_cbranch_scc1 L1NOPOLL")
    poll_wait(11, 10, "s61", SRD_WS, first_wait=2 * (56 - PA))
    lab("L1NOPOLL")
    e(f"s_waitcnt vmcnt({2 * min(NST, 56 - PA)})")
    stamp(4)
    bar("BW")
    e("s_waitcnt vmcnt(0)")
    bar("BP1")
    poll_issue(11, 12, "s70", SRD_WS)
    for k in range(2 * NST):
        if k == 32:
            e("v_add_u32 v6, 0x10000, v6")
        e(f"ds_write_b128 v6, {vr(ST0 + 4 * k, 4)} offset:{((k >> 1) * 4096 + (k & 1) * 1024) & 0xFFFF}")
    e("s_waitcnt lgkmcnt(0)")
    bar("BP2")
    e(f"s_cmp_eq_u32 s{sLW}, 0")
    e("s_cbranch_scc1 L0NOPOLL")
    poll_wait(11, 12, "s70", SRD_WS)
    lab("L0NOPOLL")
    stamp(5)
    bar("BZ0")
    for g in range(8):
        e(f"buffer_load_dwordx4 v{vZ}, {srd(SRD_WS)}, s67 offen sc1 lds")
        e("s_add_u32 m0, m0, 1024")
        e("s_add_u32 s67, s67, 4096")
    e("s_waitcnt vmcnt(0)")
    stamp(6)
    bar("BR")
    stamp_flush(7, 14, False)
    e("s_endpgm")


XKN = [0, 0]


def xk_init(which):
    if OPT["xk"]:
        e("s_lshl_b32 s61, s2, 7")
        e(f"s_add_u32 s61, s61, {which * 32768}")


def xk(n, which):
    if not OPT["xk"] or n < OPT["k0"]:
        return
    cnt = min(OPT["kn"], 28 - XKN[which])
    if cnt <= 0:
        return
    for k in range(cnt):
        e(f"s_buffer_load_dwordx2 s[58:59], {srd(SRD_WD)}, s61 offset:{65536 * k + 60}")
    e(f"s_add_u32 s61, s61, {65536 * cnt}")
    XKN[which] += cnt


def probe(step):
    if not NUMA:
        return
    uid[0] += 1
    k = uid[0]
    e("s_cmp_lg_u32 s2, 0")
    e(f"s_cbranch_scc1 PRB{k}")
    e(f"s_mov_b32 s64, {PROBE}")
    if step == 0:
        e(f"s_buffer_load_dword s71, {srd(SRD_WS)}, s64")
        e(f"s_buffer_load_dword s71, {srd(SRD_WS)}, s64 offset:8192")
    else:
        e("s_waitcnt lgkmcnt(0)")
        e("s_memtime s[66:67]")
        e("s_waitcnt lgkmcnt(0)")
        e(f"s_buffer_load_dword s71, {srd(SRD_WS)}, s64 offset:{8192 * ((step - 1) & 1)} glc")
        e("s_waitcnt lgkmcnt(0)")
        e("s_memtime s[68:69]")
        e("s_waitcnt lgkmcnt(0)")
        e("s_sub_u32 s66, s68, s66")
        if step == 1:
            e("s_mov_b32 s70, s66")
        else:
            if OPT.get("dbgp"):
                e("v_mov_b32 v2, 0")
                e("v_mov_b32 v4, s70")
                e("v_mov_b32 v5, s66")
                e(f"buffer_store_dwordx2 v[4:5], v2, {srd(SRD_DBG)}, 0 offen offset:8")
            e("s_cmp_lt_u32 s70, s66")
            e("s_cselect_b32 s70, 2, 3")
            e(f"s_bfe_u32 s66, s{sTAG}, 0x10002")
            e("s_xor_b32 s70, s70, s66")
            if OPT["pol"] >= 0:
                e(f"s_mov_b32 s70, {2 | OPT['pol']}")
            e("v_mov_b32 v2, 0")
            e("v_mov_b32 v3, s70")
            e(f"buffer_store_dword v3, v2, {srd(SRD_DBG)}, 0 offen offset:4 sc1")
    lab(f"PRB{k}")


def l23_tail(which):
    xb_init(which)
    xk(8, which)
    if which == 0 and NUMA:
        probe(1)
    else:
        xw(8, which)
    for n in range(9, OPT["xe"] + 1):
        bar(f"B{n}")
        if which == 0 and n == 9:
            probe(2)
        xk(n, which)
        xw(n, which)
    for n in range(OPT["xt"]):
        xk(20, which)
        xw(20, which)


def l2wave():
    vC = 8
    vm = Q()
    section("A")
    e("s_branch L01WAVE")
    lab("L2WAVE")
    cm("================ L2: column sums (64 columns x rows 64s + 16kq + 0..15) ================")
    e("v_lshrrev_b32 v18, 3, v0")
    e("v_and_b32 v19, 7, v0")
    e(f"v_mul_lo_u32 v{vC}, v18, s{sRS}")
    e(f"v_lshl_add_u32 v{vC}, v19, 4, v{vC}")
    e(f"s_lshr_b32 s64, s{sI}, 2")
    e("s_lshl_b32 s64, s64, 4")
    e(f"s_mul_i32 s69, s64, s{sRS}")
    e(f"s_and_b32 s64, s{sI}, 1")
    e("s_lshl_b32 s64, s64, 7")
    e("s_add_u32 s69, s69, s64")
    e(f"s_add_u32 s69, s69, s{sCOL}")
    e(f"s_lshl_b32 s70, s{sRS}, 3")
    e(f"s_mul_i32 s72, s{sRS}, 56")
    e("s_waitcnt lgkmcnt(0)")
    wm_select(f"s_bitcmp1_b32 s{sI}, 1")
    LD, AC = 32, 16

    def csload(y):
        vm.add(("c", y), f"buffer_load_dwordx4 {vr(LD + 4 * y, 4)}, v{vC}, {srd(SRD_WM)}, s69 offen")
        e(f"s_add_u32 s69, s69, {'s72' if y & 1 else 's70'}")

    def csproc(y):
        for d in range(4):
            r = LD + 4 * y + d
            if y == 0:
                e(f"v_lshlrev_b32 v{AC + 2 * d}, 16, v{r}")
                e(f"v_and_b32 v{AC + 2 * d + 1}, v9, v{r}")
            else:
                e(f"v_lshlrev_b32 v10, 16, v{r}")
                e(f"v_and_b32 v11, v9, v{r}")
                e(f"v_add_f32 v{AC + 2 * d}, v{AC + 2 * d}, v10")
                e(f"v_add_f32 v{AC + 2 * d + 1}, v{AC + 2 * d + 1}, v11")

    for y in range(2 * OPT["pre"]):
        csload(y)
    e("s_branch L2REST")
    section("L2")
    lab("L2REST")
    srds2()
    if OPT["tlb"]:
        cm("first touch of the pages used later (address translation is ready when the real accesses come); values unused")
        for k in range(6):
            e(f"s_mov_b32 s64, {k << 21 | 0x1f0000:#x}" if k < 5 else f"s_mov_b32 s64, {FLH + 0x7000:#x}")
            e(f"s_buffer_load_dword s71, {srd(SRD_WS)}, s64")
        e(f"s_buffer_load_dword s71, {srd(SRD_OUT)}, 0")
        e(f"s_mov_b32 s64, 0x1fff00")
        e(f"s_buffer_load_dword s71, {srd(SRD_OUT)}, s64")
    if OPT["tlb"] == 2:
        e("v_lshlrev_b32 v12, 21, v0")
        e("v_add_u32 v12, 0x70000, v12")
        vm.add("t0", f"buffer_load_dword v13, v12, {srd(SRD_WS)}, 0 offen")
        vm.add("t1", f"buffer_load_dword v13, v12, {srd(SRD_OUT)}, 0 offen")
    e("v_mov_b32 v9, 0xffff0000")
    xk_init(0)
    stamp(1)
    issued, done = 2 * OPT["pre"], 0
    for n in range(8):
        bar(f"B{n}")
        while issued < 2 * (8 if n >= OPT["prec"] else OPT["pb2"] if n >= OPT["preb"] else 0):
            csload(issued)
            issued += 1
        if n < 7:
            xk(n, 0)
        if n >= 2:
            k = min(done + (3 if n < 7 else 9), 16, issued)
            e(f"s_waitcnt vmcnt({vm.younger(('c', k - 1))})")
            for y in range(done, k):
                csproc(y)
            done = k
        if n == 6:
            probe(0)
    assert done == 16 and issued == 16
    bar("B8")
    e(f"v_mov_b32 v12, {TAGL}")
    e("ds_read_b32 v25, v12")
    for k in range(4):
        e(f"v_permlane32_swap_b32 v{AC + k}, v{AC + k + 4}")
    e("s_nop 1")
    for k in range(4):
        e(f"v_add_f32 v{AC + k}, v{AC + k}, v{AC + k + 4}")
    e("s_nop 1")
    for k in range(2):
        e(f"v_permlane16_swap_b32 v{AC + k}, v{AC + k + 2}")
    e("s_nop 1")
    for k in range(2):
        e(f"v_add_f32 v{AC + k}, v{AC + k}, v{AC + k + 2}")
    e("v_and_b32 v10, 7, v0")
    e("v_lshlrev_b32 v10, 3, v10")
    e(f"v_add_f32_dpp v24, v{AC}, v{AC} row_ror:8 row_mask:0xf bank_mask:0x3")
    e("s_nop 1")
    e(f"v_add_f32_dpp v24, v{AC + 1}, v{AC + 1} row_ror:8 row_mask:0xf bank_mask:0xc")
    e("v_bfe_u32 v11, v0, 5, 1")
    e("v_lshl_add_u32 v10, v11, 2, v10")
    e("v_bfe_u32 v11, v0, 4, 1")
    e("v_lshl_add_u32 v10, v11, 1, v10")
    e("v_bfe_u32 v11, v0, 3, 1")
    e("v_add_u32 v10, v11, v10")
    e("v_lshlrev_b32 v10, 3, v10")
    e(f"s_lshl_b32 s64, s{sJ}, 13")
    e(f"s_add_u32 s64, s64, {CS_OFF}")
    e(f"s_lshl_b32 s65, s{sI}, 9")
    e("s_add_u32 s65, s64, s65")
    e("s_waitcnt lgkmcnt(0)")
    vm.add("pub", f"buffer_store_dwordx2 v[24:25], v10, {srd(SRD_WS)}, s65 offen sc1")
    e(f"v_readfirstlane_b32 s{sTAG}, v25")
    stamp(2)
    l23_tail(0)
    stamp_flush(3, 26, False)
    e("s_endpgm")


def l3wave():
    vm = Q()
    section("A")
    lab("L3WAVE")
    cm("================ L3: launch tag, row statistics (rows 8j..8j+7 of the row block), hand-off waits ================")
    e(f"s_bfe_u32 s64, s{sJ}, 0x10002")
    e(f"s_bfe_u32 s65, s{sJ}, 0x10003")
    e("s_lshl_b32 s65, s65, 5")
    e(f"s_lshl_b32 s66, s{sI}, 1")
    e("s_add_u32 s64, s64, s65")
    e("s_add_u32 s64, s64, s66")
    e(f"s_and_b32 s65, s{sJ}, 3")
    e("s_lshl_b32 s65, s65, 9")
    e("s_add_u32 s64, s64, s65")
    e("s_lshl_b32 s64, s64, 10")
    e("v_lshrrev_b32 v4, 3, v0")
    e("v_and_b32 v14, 7, v0")
    e("v_lshlrev_b32 v6, 16, v4")
    e("v_lshl_add_u32 v6, v14, 4, v6")
    e("s_memrealtime s[66:67]")
    e("s_waitcnt lgkmcnt(0)")
    LD, UP = 16, 48

    def rowload(y):
        vm.add(("r", y), f"buffer_load_dwordx4 {vr(LD + 4 * y, 4)}, v6, {srd(SRD_X)}, s64 offen offset:{128 * y}")

    for y in range(OPT["pre"]):
        rowload(y)
    e("s_branch L3REST")
    section("L3")
    lab("L3REST")
    srds2()
    e("v_mov_b32 v2, 0")
    e("s_getreg_b32 s67, hwreg(HW_REG_XCC_ID, 0, 3)")
    e("s_andn2_b32 s66, s66, 15")
    e("s_or_b32 s66, s66, 8")
    e("s_or_b32 s66, s66, s67")
    e("v_mov_b32 v3, s66")
    e("s_cmp_eq_u32 s2, 0")
    e(f"s_cselect_b32 s66, 0, {OOB:#x}")
    vm.add("tag", f"buffer_store_dword v3, v2, {srd(SRD_DBG)}, s66 offen sc1")
    e("v_mov_b32 v9, 0xffff0000")
    xk_init(1)

    def unp(d):
        e(f"v_lshlrev_b32 v{UP + 2 * d}, 16, v{LD + d}")
        e(f"v_and_b32 v{UP + 2 * d + 1}, v9, v{LD + d}")
        if d == 0:
            e(f"v_mov_b32 v10, v{UP}")
            e(f"v_mov_b32 v11, v{UP + 1}")
        else:
            e(f"v_add_f32 v10, v10, v{UP + 2 * d}")
            e(f"v_add_f32 v11, v11, v{UP + 2 * d + 1}")

    def red8(r):
        e("s_nop 1")
        e(f"v_add_f32_dpp v{r}, v{r}, v{r} quad_perm:[1,0,3,2] row_mask:0xf bank_mask:0xf")
        e("s_nop 1")
        e(f"v_add_f32_dpp v{r}, v{r}, v{r} quad_perm:[2,3,0,1] row_mask:0xf bank_mask:0xf")
        e("s_nop 1")
        e(f"v_add_f32_dpp v{r}, v{r}, v{r} row_half_mirror row_mask:0xf bank_mask:0xf")

    def var(k):
        e(f"v_sub_f32 v{UP + k}, v{UP + k}, v10")
        e(f"v_fmac_f32 v{12 + (k & 1)}, v{UP + k}, v{UP + k}")

    issued, done = OPT["pre"], 0
    for n in range(6):
        bar(f"B{n}")
        while issued < (8 if n >= OPT["prec"] else OPT["pb2"] if n >= OPT["preb"] else 0):
            rowload(issued)
            issued += 1
        xk(n, 1)
        if n == 5:
            vm.add("np")
            poll_issue(3, 2, "0", SRD_DBG)
        if n >= 2:
            k = min(done + (2 if n < 5 else 8), 8, issued)
            e(f"s_waitcnt vmcnt({vm.younger(('r', k - 1))})")
            for d in range(4 * done, 4 * k):
                unp(d)
            done = k
    assert done == 8 and issued == 8
    e("v_add_f32 v10, v10, v11")
    red8(10)
    e(f"v_mul_f32 v10, {f2u(1.0 / 512):#x}, v10")
    e("v_mov_b32 v12, 0")
    e("v_mov_b32 v13, 0")
    bar("B6")
    for k in range(24):
        var(k)
    bar("B7")
    poll_wait(3, 2, "0", SRD_DBG, cond_tag=False, first_wait=vm.younger("np"))
    e(f"v_mov_b32 v15, {TAGL}")
    e("ds_write_b32 v15, v3")
    e("ds_write_b32 v15, v2 offset:4")
    e("ds_write_b32 v15, v2 offset:8")
    e(f"v_readfirstlane_b32 s{sTAG}, v3")
    for k in range(24, 44):
        var(k)
    e("s_waitcnt lgkmcnt(0)")
    xk(7, 1)
    bar("B8")
    for k in range(44, 64):
        var(k)
    e("v_add_f32 v12, v12, v13")
    red8(12)
    e(f"v_mul_f32 v12, {f2u(1.0 / 512):#x}, v12")
    cm("roundings as in the reference: m=bf(mean); sd=bf(sqrt(bf(bf(var)+eps))); r=1/sd")
    e("v_cvt_pk_bf16_f32 v15, v10, v12")
    e("v_lshlrev_b32 v16, 16, v15")
    e("v_and_b32 v12, v9, v15")
    e(f"v_add_f32 v12, {f2u(1e-5):#x}, v12")
    e("v_cvt_pk_bf16_f32 v12, v12, v12")
    e("v_and_b32 v12, v9, v12")
    e("v_sqrt_f32 v12, v12")
    e("v_cmp_eq_u32 vcc, 0, v14")
    e("v_cvt_pk_bf16_f32 v12, v12, v12")
    e("v_and_b32 v12, v9, v12")
    e("v_rcp_f32 v17, v12")
    e("v_lshlrev_b32 v14, 4, v4")
    e(f"v_mov_b32 v15, {OOB:#x}")
    e(f"s_lshl_b32 s64, s{sI}, 11")
    e(f"s_add_u32 s64, s64, {ST_OFF}")
    e("v_cndmask_b32 v14, v15, v14, vcc")
    e("v_mov_b32 v18, v3")
    e("v_mov_b32 v19, v3")
    e(f"s_lshl_b32 s65, s{sJ}, 7")
    e("s_add_u32 s65, s64, s65")
    vm.add("pub", f"buffer_store_dwordx4 v[16:19], v14, {srd(SRD_WS)}, s65 offen sc1")
    stamp(1)
    l23_tail(1)
    stamp_flush(2, 26, False)
    e("s_endpgm")


XF = [[64 + 4 * q for q in range(4)], [80 + 4 * q for q in range(4)]]
WF = [[96, 100], [104, 108]]
XA = [112, 113, 114, 115]
WA = 116
vPM = 118
R0 = 64
vD_R, vD_TAG = 123, 124
vA_TAG = 116
sXO, sH, sPAR, sPOL, sFLG, sOUT, sC0, sP, sKH, sPAR2 = 56, 57, 58, 59, 61, 62, 63, 73, 74, 60
XR, vXO = 80, 115


def ACC(mat, q):
    return 128 + 32 * q + 16 * mat


def TW(q, cs, z):
    return 16 * q + 8 * cs + 4 * z


def frag_reads(u, st):
    r = []
    for mat in range(2):
        for a in range(2):
            r.append(f"ds_read_b64_tr_b16 {vr(WF[st][mat] + 2 * a, 2)}, v{WA} offset:{u * 8192 + a * 2048 + mat * 1024}")
    for q in range(4):
        r.append(f"ds_read_b128 {vr(XF[st][q], 4)}, v{XA[u]} offset:{q * 4096}")
    return r


def dft_stat_reads():
    return [f"ds_read_b128 v[124:127], v{vD_TAG}"] + [f"ds_read_b128 {vr(R0 + 4 * a, 4)}, v{vD_R} offset:{32 * a}" for a in range(4)]


def late_ids(early=False):
    if not OPT["user"] and not early:
        return [f"v_and_b32 v100, 31, v{vLANE}", f"v_lshrrev_b32 v101, 5, v{vLANE}", f"v_lshlrev_b32 v{vXO}, 16, v100",
                f"v_lshl_add_u32 v{vXO}, v101, 5, v{vXO}"]
    r = ids2()
    r += [f"s_lshl_b32 s46, s{sP}, 5", f"s_add_u32 s46, s46, s{sT1}", f"s_lshl_b32 s{sXO}, s46, 10", f"s_lshl_b32 s46, s{sCB}, 7",
          f"s_add_u32 s{sXO}, s{sXO}, s46", f"s_lshl_b32 s46, s{sKH}, 6", f"s_add_u32 s{sXO}, s{sXO}, s46",
          [f"s_cmp_eq_u32 s{sT1}, 0", f"s_cselect_b32 s{sC0}, 64, 63"]]
    r += hbase(sH, sT1) + [f"s_mov_b32 s{sPAR2}, s47", f"s_lshl_b32 s46, s{sP}, 1", f"s_add_u32 s46, s46, s{sKH}",
                           f"s_mul_i32 s46, s46, {HZ}", f"s_add_u32 s{sH}, s{sH}, s46"]
    if early:
        return r
    r += [f"v_and_b32 v100, 31, v{vLANE}", f"v_lshrrev_b32 v101, 5, v{vLANE}", f"v_lshlrev_b32 v{vXO}, 16, v100",
          f"v_lshl_add_u32 v{vXO}, v101, 5, v{vXO}"]
    return r


def xloads():
    e(f"buffer_load_dwordx4 {vr(XR, 4)}, v{vXO}, {srd(SRD_X)}, s{sXO} offen")
    e(f"buffer_load_dwordx4 {vr(XR + 4, 4)}, v{vXO}, {srd(SRD_X)}, s{sXO} offen offset:16")


def mainloop(dft):
    sCnt, sDelta, sCur = 64, 65, 66
    tag = "D" if dft else "G"
    es(frag_reads(0, 0))
    e(f"s_mov_b32 s{sCnt}, 8")
    e(f"s_mov_b32 s{sCur}, {SLOT}")
    e(f"s_mov_b32 s67, {(-2 * SLOT) & 0xffffffff:#x}")

    def step(u, last):
        st = u & 1
        mf = []
        for mat in ((1, 0) if dft else (0, 1)):
            for q in range(4):
                a, b = (XF[st][q], WF[st][mat]) if dft else (WF[st][mat], XF[st][q])
                mf.append(f"v_mfma_f32_32x32x16_bf16 {vr(ACC(mat, q), 16)}, {vr(a, 4)}, {vr(b, 4)}, {vr(ACC(mat, q), 16)}")
        rd = frag_reads((u + 1) & 3, st ^ 1)
        gaps = [[] for _ in range(8)]
        if u == 3 and not last:
            gaps[0] += [f"v_add_u32 v{WA}, s{sDelta}, v{WA}", f"v_add_u32 v{XA[0]}, s{sDelta}, v{XA[0]}"]
            gaps[5] += [f"v_add_u32 v{XA[1]}, s{sDelta}, v{XA[1]}"]
            gaps[6] += [f"v_add_u32 v{XA[2]}, s{sDelta}, v{XA[2]}", f"v_add_u32 v{XA[3]}, s{sDelta}, v{XA[3]}"]
        if PROF and u in (0, 2):
            gaps[0] += ["s_memtime s[70:71]"]
        if PROF and u in (1, 3):
            gaps[5] += [f"s_lshl_b32 s72, s{sCnt}, 1", f"s_sub_u32 m0, {16 if u == 1 else 15}, s72", f"v_writelane_b32 v{vLOOPST}, s70, m0"]
        if u == 2:
            gaps[5] += [f"s_cmp_eq_u32 s{sCur}, {2 * SLOT}", f"s_cselect_b32 s{sDelta}, s67, {SLOT}"]
            gaps[6] += [f"s_add_u32 s{sCur}, s{sCur}, s{sDelta}", f"s_sub_u32 s{sCnt}, s{sCnt}, 1"]
            gaps[7] += [f"s_cmp_eq_u32 s{sCnt}, 0"]
        if u & 1:
            gaps[0] += ["s_barrier"]
        if dft:
            gaps[0] = [f"v_cndmask_b32 v{WF[st][0] + k}, v{WF[st][0] + k}, v{vPM}, s[68:69]" for k in range(2)] + gaps[0]
            gaps[1] += [f"v_cndmask_b32 v{WF[st][0] + k}, v{WF[st][0] + k}, v{vPM}, s[68:69]" for k in range(2, 4)]
        if u == 2:
            gaps[4].append(f"ds_read_b32 v119, v{vD_TAG}")
        if last:
            extra = dft_stat_reads()
            for k, x in enumerate(extra):
                gaps[2 + min(k // 3, 4)].append(x)
            gaps[0].append(f"v_readfirstlane_b32 s{sTAG}, v119")
            li = late_ids()
            for k, x in enumerate(li):
                gaps[1 + k * 7 // len(li)].append(x)
        else:
            for k in range(4):
                gaps[k + (1 if (u & 1) else 0)] += rd[2 * k:2 * k + 2]
        e("s_waitcnt lgkmcnt(0)")
        for k in range(8):
            e(mf[k])
            es(gaps[k])

    raw(".p2align 3")
    lab(f"MAIN{tag}")
    for u in range(3):
        step(u, False)
    e(f"s_cbranch_scc1 LAST{tag}")
    step(3, False)
    e(f"s_branch MAIN{tag}")
    lab(f"LAST{tag}")
    step(3, True)


X16 = [4 * k for k in range(8)]
W16 = [[64 + 4 * n for n in range(4)], [80 + 4 * n for n in range(4)]]
XA16, WA16 = [112, 113], [114, 115]
MR16, CG16, CU16, TG16 = 32, 48, 56, 96
vB_CS, vB_MR = 119, 120


def A16(sg, n):
    return 128 + 16 * sg + 4 * n


def mainloop16():
    sCnt, sDelta, sCur = 64, 65, 66
    lq = Q()
    gen = [0]

    def rdx(sg, h):
        lq.add(("x", sg), f"ds_read_b128 {vr(X16[sg], 4)}, v{XA16[h]} offset:{sg * 2048}")

    def rdw(n, a, h):
        lq.add(("w", n, a), f"ds_read_b64_tr_b16 {vr(W16[h][n] + 2 * a, 2)}, v{WA16[n & 1]} offset:{h * 16384 + a * 2048 + (n >> 1) * 1024}")

    def wait(tag):
        idx = max(i for i, t in enumerate(lq.l) if t == tag)
        n = len(lq.l) - 1 - idx
        if n < gen[0]:
            e(f"s_waitcnt lgkmcnt({n})")
            gen[0] = n

    def second_half_reads(h):
        return [lambda: rdw(0, 0, h), lambda: rdw(0, 1, h), lambda: rdx(0, h), lambda: rdw(1, 0, h), lambda: rdw(1, 1, h),
                lambda: rdw(2, 0, h), lambda: rdw(2, 1, h), lambda: rdw(3, 0, h), lambda: rdw(3, 1, h),
                lambda: rdx(1, h), lambda: rdx(2, h), lambda: rdx(3, h)]

    def issue(f):
        f()
        gen[0] += 1

    for f in second_half_reads(0):
        issue(f)
    e(f"s_mov_b32 s{sCnt}, 8")
    e(f"s_mov_b32 s{sCur}, {SLOT}")
    e(f"s_mov_b32 s67, {(-2 * SLOT) & 0xffffffff:#x}")

    def step(h, last):
        gen[0] = 15
        gaps = [[] for _ in range(32)]
        for k, sg in enumerate((4, 5, 6, 7)):
            gaps[1 + 2 * k].append(lambda sg=sg: rdx(sg, h))
        txt = [[] for _ in range(32)]
        if h == 0:
            txt[9] += [f"s_cmp_eq_u32 s{sCur}, {2 * SLOT}", f"s_cselect_b32 s{sDelta}, s67, {SLOT}"]
            txt[10] += [f"s_add_u32 s{sCur}, s{sCur}, s{sDelta}", f"s_sub_u32 s{sCnt}, s{sCnt}, 1"]
            txt[31] += [f"s_cmp_eq_u32 s{sCnt}, 0"]
        elif not last:
            txt[9] += [f"v_add_u32 v{XA16[0]}, s{sDelta}, v{XA16[0]}", f"v_add_u32 v{XA16[1]}, s{sDelta}, v{XA16[1]}"]
            txt[10] += [f"v_add_u32 v{WA16[0]}, s{sDelta}, v{WA16[0]}", f"v_add_u32 v{WA16[1]}, s{sDelta}, v{WA16[1]}"]
        if PROF and not last:
            txt[11] += ["s_memtime s[70:71]"]
            txt[29] += [f"s_lshl_b32 s72, s{sCnt}, 1", f"s_sub_u32 m0, {14 + h}, s72"]
            txt[30] += [f"v_writelane_b32 v{vLOOPST}, s70, m0"]
        if last:
            st = [f"ds_read_b64 {vr(MR16 + 2 * sg, 2)}, v{vB_MR} offset:{128 * sg}" for sg in range(8)]
            st += [f"ds_read_b128 {vr(CG16 + 4 * n, 4)}, v{vB_CS} offset:{64 * n}" for n in range(2)]
            st += [f"ds_read_b128 {vr(CU16 + 4 * n, 4)}, v{vB_CS} offset:{512 + 64 * n}" for n in range(2)]
            st += [f"ds_read_b128 {vr(TG16, 4)}, v{vA_TAG}"]
            for k, x in enumerate(st):
                txt[17 + k].append(x)
            gaps[0].append(lambda: lq.add("tag", f"ds_read_b32 v{TG16}, v{vA_TAG}"))
            li = late_ids()
            slots = [m for m in range(9, 31) if m != 16]
            per = -(-len(li) // len(slots))
            for k, x in enumerate(li):
                txt[slots[k // per]].append(x)
        else:
            for k, f in enumerate(second_half_reads(h ^ 1)):
                gaps[17 + k].append(f)
        for m in range(32):
            sg, n = m >> 2, m & 3
            if sg == 0:
                wait(("w", n, 1))
            if n == 0:
                wait(("x", 7 if sg == 4 else sg))
            e(f"v_mfma_f32_16x16x32_bf16 {vr(A16(sg, n), 4)}, {vr(W16[h][n], 4)}, {vr(X16[sg], 4)}, {vr(A16(sg, n), 4)}")
            if m == 16:
                bar()
            if last and m == 8:
                wait("tag")
                e(f"v_readfirstlane_b32 s{sTAG}, v{TG16}")
            for f in gaps[m]:
                issue(f)
            es(txt[m])

    raw(".p2align 3")
    lab("MAING")
    step(0, False)
    e("s_cbranch_scc1 LASTG")
    keep = list(lq.l)
    step(1, False)
    e("s_branch MAING")
    lab("LASTG")
    lq.l = keep
    step(1, True)


def glu_epilogue16():
    e(f"v_and_b32 v102, 15, v{vLANE}")
    e(f"v_bfe_u32 v103, v{vLANE}, 4, 1")
    e("v_lshlrev_b32 v102, 4, v102")
    e("v_lshl_add_u32 v102, v103, 9, v102")
    e(f"v_lshrrev_b32 v103, 5, v{vLANE}")
    e(f"v_mul_u32_u24 v103, {HZ}, v103")
    e("v_add_u32 v102, v102, v103")
    e("s_mov_b32 s66, 1.0")
    e("s_mov_b32 s67, 1.0")
    xloads()
    e("s_waitcnt lgkmcnt(0)")
    e(f"v_readfirstlane_b32 s{sPOL}, v{TG16 + 3}")
    for sg in range(8):
        e(f"v_mul_f32 v{MR16 + 2 * sg + 1}, {NLOG2E:#x}, v{MR16 + 2 * sg + 1}")
    es(hside(sOUT, sPAR, sPOL))
    raw(".p2align 3")
    for sg in range(8):
        q = sg >> 1
        b, p = q & 1, q >> 1
        mr = vr(MR16 + 2 * sg, 2)
        G, U = A16(sg, 0), A16(sg, 2)
        for k in range(4):
            e(f"v_pk_fma_f32 {vr(G + 2 * k, 2)}, {vr(CG16 + 2 * k, 2)}, {mr}, {vr(G + 2 * k, 2)} op_sel_hi:[1,0,1] neg_lo:[0,1,0] neg_hi:[0,1,0]")
        for k in range(4):
            e(f"v_pk_mul_f32 {vr(G + 2 * k, 2)}, {vr(G + 2 * k, 2)}, {mr} op_sel:[0,1] op_sel_hi:[1,1]")
        for k in range(8):
            e(f"v_exp_f32 v{G + k}, v{G + k}")
        for k in range(4):
            e(f"v_pk_add_f32 {vr(G + 2 * k, 2)}, {vr(G + 2 * k, 2)}, s[66:67]")
        for k in range(8):
            e(f"v_rcp_f32 v{G + k}, v{G + k}")
        for k in range(4):
            e(f"v_pk_fma_f32 {vr(U + 2 * k, 2)}, {vr(CU16 + 2 * k, 2)}, {mr}, {vr(U + 2 * k, 2)} op_sel_hi:[1,0,1] neg_lo:[0,1,0] neg_hi:[0,1,0]")
        for k in range(4):
            e(f"v_pk_mul_f32 {vr(U + 2 * k, 2)}, {vr(U + 2 * k, 2)}, {vr(G + 2 * k, 2)}")
        o = 4 * sg
        for k in range(4):
            e(f"v_cvt_pk_bf16_f32 v{o + k}, v{U + 2 * k}, v{U + 2 * k + 1}")
        e(f"s_add_u32 s65, s{sOUT}, {(b * 2 + p) * 2 * HZ + (sg & 1) * 256 + H_OFF}")
        e(f"buffer_store_dwordx4 {vr(o, 4)}, v102, {srd(SRD_WS)}, s65 offen sc1")
    e(f"v_mov_b32 v43, v{TG16}")
    publish()


def publish():
    stamp(3)
    cm("publish: the last of the four waves whose stores have completed writes the workgroup's flag")
    e("v_mov_b32 v41, 1")
    e("v_mov_b32 v42, 0")
    e("s_mov_b64 exec, 1")
    e("s_waitcnt vmcnt(0)")
    e(f"ds_add_rtn_u32 v41, v{vA_TAG}, v41 offset:4")
    e("s_waitcnt lgkmcnt(0)")
    e("v_readfirstlane_b32 s64, v41")
    e("s_cmp_lg_u32 s64, 3")
    e("s_cbranch_scc1 HNOFLAG")
    e(f"buffer_store_dword v43, v42, {srd(SRD_WS)}, s{sFLG} offen sc1")
    lab("HNOFLAG")
    e("s_mov_b64 exec, -1")
    stamp(4)


def dft_prologue():
    e(f"v_and_b32 v2, 31, v{vLANE}")
    e("v_cvt_f32_u32 v3, v2")
    e(f"v_mul_f32 v3, {f2u(1.0 / 2048):#x}, v3")
    e(f"s_and_b32 s64, s{sWAVE}, 1")
    e(f"s_lshr_b32 s65, s{sWAVE}, 1")
    e("s_lshl_b32 s65, s65, 5")
    e("s_add_u32 s64, s64, s65")
    e(f"s_lshl_b32 s65, s{sI}, 1")
    e("s_add_u32 s64, s64, s65")
    e(f"v_lshrrev_b32 v4, 5, v{vLANE}")
    e("v_lshl_add_u32 v4, v4, 8, s64")
    e("v_cvt_f32_u32 v4, v4")
    e("v_mul_f32 v4, v3, v4")
    e("v_and_b32 v5, 1, v2")
    e("v_mul_u32_u24 v5, 0x8000, v5")
    e("v_lshl_or_b32 v5, v5, 16, v5")
    for jj in range(8):
        e(f"v_fmamk_f32 v{8 + jj}, v3, {f2u(64.0 * (8 * (jj >> 2) + (jj & 3))):#x}, v4")
    for jj in range(8):
        e(f"v_fract_f32 v{8 + jj}, v{8 + jj}")
    for jj in range(8):
        e(f"v_cos_f32 v{16 + jj}, v{8 + jj}")
        e(f"v_sin_f32 v{24 + jj}, v{8 + jj}")
    e("s_nop 0")
    for k in range(4):
        e(f"v_cvt_pk_bf16_f32 v{32 + k}, v{16 + 2 * k}, v{17 + 2 * k}")
        e(f"v_cvt_pk_bf16_f32 v{40 + k}, v{24 + 2 * k}, v{25 + 2 * k}")
    for k in range(4):
        e(f"v_xor_b32 v{36 + k}, v5, v{32 + k}")
        e(f"v_xor_b32 v{44 + k}, v5, v{40 + k}")
    e(f"s_lshl_b32 s64, s{sWAVE}, 12")
    e(f"s_add_u32 s64, s64, {MISC}")
    e(f"v_lshl_add_u32 v6, v{vLANE}, 4, s64")
    for k in range(4):
        e(f"ds_write_b128 v6, {vr(32 + 4 * k, 4)} offset:{1024 * k}")
    cm("column 0 carries the Nyquist bin: lanes 0 and 32 of wave 0 in column block 14 use (+1,-1,+1,...)")
    e(f"s_cmp_eq_u32 s{sJ}, 14")
    e("s_cselect_b32 s68, 1, 0")
    e(f"s_cmp_eq_u32 s{sWAVE}, 0")
    e("s_cselect_b32 s68, s68, 0")
    e("s_mov_b32 s69, s68")
    e(f"v_mov_b32 v{vPM}, 0xbf803f80")
    e(f"v_lshlrev_b32 v119, 4, v{vLANE}")
    e(f"v_add_u32 v119, {MISC}, v119")
    e("s_waitcnt lgkmcnt(0)")


def dft_epilogue():
    e(f"v_mov_b32 v114, v{vD_R}")
    xloads()
    e("s_waitcnt lgkmcnt(0)")
    e(f"v_readfirstlane_b32 s{sPOL}, v127")
    e("s_nop 2")

    def TS(q):
        return (120 if q & 1 else 96), (104 if q == 0 else TW(q - 1, 0, 0))

    def valu(q):
        r_ = []
        for mat in range(2):
            A, T = ACC(mat, q), TS(q)[mat]
            if q == 0:
                for r in range(0, 16, 2):
                    r_.append(f"v_pk_mul_f32 {vr(A + r, 2)}, {vr(A + r, 2)}, {vr(R0 + r, 2)}")
            else:
                for r in range(16):
                    r_.append(f"v_mul_f32 v{A + r}, v{A + r}, v{R0 + r}")
            if mat and q < 3:
                r_[-1] = [r_[-1]] + [f"ds_read_b128 {vr(R0 + 4 * a, 4)}, v114 offset:{128 * (q + 1) + 32 * a}" for a in range(4)]
            for k in range(8):
                r_.append(f"v_cvt_pk_bf16_f32 v{T + k}, v{A + 2 * k}, v{A + 2 * k + 1}")
        return r_

    def mfmas(q):
        ta, tb = TS(q)
        zr, zi = ACC(0, q), ACC(1, q)
        seq = [(zr, 1, 0, tb), (zi, 0, 0, tb), (zr, 1, 1, tb + 4), (zi, 0, 1, tb + 4),
               (zr, 0, 0, ta), (zr, 0, 1, ta + 4), (zi, 1, 0, ta), (zi, 1, 1, ta + 4)]
        return [f"v_mfma_f32_32x32x16_bf16 {vr(d, 16)}, {vr(TW(q, cs, z), 4)}, {vr(b, 4)}, {'0' if k < 2 else vr(d, 16)}"
                for k, (d, cs, z, b) in enumerate(seq)]

    for q in range(5):
        v_ = valu(q) if q < 4 else []
        m_ = mfmas(q - 1) if q else []
        if 0 < q < 4:
            e("s_waitcnt lgkmcnt(0)")
        if q:
            e("s_nop 1")
        per = len(v_) // 8
        for k in range(8):
            if m_:
                e(m_[k])
                if k in (3, 4):
                    for x in range(4):
                        rg = TW(q - 1, 1, k - 3) + x
                        e(f"v_xor_b32 v{rg}, 0x80008000, v{rg}")
            if q:
                cut = [0, 6, 12, 18, 24, 30, 35, 40, 48]
                es(v_[cut[k]:cut[k + 1]])
            else:
                es(v_[k * per:(k + 1) * per])
    e(f"v_and_b32 v112, 31, v{vLANE}")
    e(f"v_lshrrev_b32 v113, 5, v{vLANE}")
    e("v_lshlrev_b32 v112, 4, v112")
    e("v_lshl_add_u32 v125, v113, 18, v112")
    e("s_nop 7")
    for r in range(16):
        for q in range(4):
            e(f"v_cvt_pk_bf16_f32 v{4 * r + q}, v{ACC(0, q) + r}, v{ACC(1, q) + r}")
        e(f"s_add_u32 s65, s{sOUT}, {(8 * (r >> 2) + (r & 3)) * 65536}")
        e(f"buffer_store_dwordx4 {vr(4 * r, 4)}, v125, {srd(SRD_WS)}, s65 offen sc1")
    stamp(3)
    e(f"v_mov_b32 v64, {CNTL}")
    e("v_mov_b32 v65, 1")
    e("s_mov_b64 exec, 1")
    e("ds_add_u32 v64, v65")
    e("s_mov_b64 exec, -1")
    stamp(4)
    e("s_branch PHASE2")


def phase2():
    OWN, OTH, Y, EF, HR, ET = 128, 144, 160, 32, 176, 248
    vR = 88
    W2 = [[96, 100], [104, 108], [240, 244]]
    WD = [112, 113]
    vH, vZA = 114, 116
    vEA, vEB, vES = 122, 123, 124
    ZF = 0
    assert D <= 16
    vm, lq = Q(), Q()
    lab("PHASE2")
    stamp(5)
    e(f"v_and_b32 v89, 31, v{vLANE}")
    e(f"v_lshrrev_b32 v90, 5, v{vLANE}")
    es(hside(sH, sPAR2, sPOL))
    e(f"v_bfe_u32 v{ET}, v{vLANE}, 2, 2")
    e(f"v_lshl_add_u32 v92, v90, 2, v{ET}")
    e(f"s_lshl_b32 s68, s{sKH}, 10")
    e("v_lshl_add_u32 v92, v92, 7, s68")
    e(f"v_and_b32 v93, 1, v{vLANE}")
    e("v_lshlrev_b32 v93, 2, v93")
    e(f"v_bfe_u32 v{ET + 1}, v{vLANE}, 4, 1")
    e(f"v_lshl_add_u32 v93, v{ET + 1}, 1, v93")
    e(f"v_bfe_u32 v{ET + 1}, v{vLANE}, 1, 1")
    e(f"v_add_u32 v93, v93, v{ET + 1}")
    e("v_lshl_add_u32 v92, v93, 3, v92")
    e(f"v_lshrrev_b32 v{ET}, 1, v{ET}")
    e(f"v_xor_b32 v{ET}, s{sKH}, v{ET}")
    e(f"v_lshl_add_u32 v{WD[0]}, v{ET}, 6, v92")
    e(f"v_xor_b32 v{WD[1]}, 64, v{WD[0]}")
    e(f"v_lshlrev_b32 v{vH}, 4, v{vLANE}")
    fill = [[f"s_cmp_ge_u32 s{sCB}, 4", "s_cselect_b64 s[70:71], -1, 0"],
            f"s_lshl_b32 s68, s{sKH}, 9", f"s_add_u32 s68, s68, {ZL}", f"v_lshl_add_u32 v{vZA}, v89, 4, s68",
            f"v_lshl_add_u32 v{vZA}, v90, 10, v{vZA}",
            f"s_lshl_b32 s68, s{sP}, 7", f"s_add_u32 s68, s68, {R2L}", "v_lshl_add_u32 v93, v89, 2, s68",
            f"v_lshl_add_u32 v91, v89, 1, s{sP}", f"v_sub_u32 v92, s{sC0}, v91", "v_cndmask_b32 v91, v91, v92, s[70:71]",
            f"v_and_b32 v{vES}, 1, v91", f"v_mul_u32_u24 v{vES}, 0x8000, v{vES}", f"v_lshl_or_b32 v{vES}, v{vES}, 16, v{vES}",
            "v_cvt_f32_u32 v91, v91", f"v_mul_f32 v{vEA}, {f2u(1.0 / 64):#x}, v91",
            "v_lshlrev_b32 v92, 1, v90", "v_cvt_f32_u32 v92, v92", f"v_mul_f32 v{vEB}, v{vEA}, v92"]
    for sg in range(8):
        for b in range(2):
            fill.append(f"v_fmamk_f32 v{ET + b}, v{vEA}, {f2u(float(4 * sg + b)):#x}, v{vEB}")
        for b in range(2):
            fill.append(f"v_fract_f32 v{ET + b}, v{ET + b}")
        for b in range(2):
            fill.append(f"v_cos_f32 v{ET + 2 + b}, v{ET + b}")
            fill.append(f"v_sin_f32 v{ET + 4 + b}, v{ET + b}")
        fill.append([f"v_cvt_pk_bf16_f32 v{EF + 4 * sg}, v{ET + 2}, v{ET + 4}",
                     f"v_cvt_pk_bf16_f32 v{EF + 4 * sg + 1}, v{ET + 3}, v{ET + 5}"])
        for b in range(2):
            fill.append(f"v_xor_b32 v{EF + 4 * sg + 2 + b}, v{vES}, v{EF + 4 * sg + b}")
    XU = 64
    es(fill[:8])
    e(f"ds_read_b32 v{vR}, v93")
    es(fill[8:])
    e(f"s_lshl_b32 s68, s{sWAVE}, 12")
    e(f"s_add_u32 s68, s68, {RED}")
    e(f"v_lshl_add_u32 v91, v{vLANE}, 4, s68")
    e("v_xor_b32 v92, 8192, v91")
    e("v_mov_b32 v93, 0xffff0000")
    e(f"s_cmp_eq_u32 s{sDFT}, 0")
    e("s_cbranch_scc1 NOZP")
    e(f"v_mov_b32 v94, {CNTL}")
    e("v_mov_b32 v95, 1")
    cm("publish Z: the last of the four waves whose stores have completed writes the workgroup's flag")
    e(f"v_mov_b32 v126, s{sTAG}")
    e("v_mov_b32 v127, 0")
    e("s_mov_b64 exec, 1")
    e("s_waitcnt vmcnt(0)")
    e("ds_add_rtn_u32 v95, v94, v95 offset:4")
    e("s_waitcnt lgkmcnt(0)")
    e("v_readfirstlane_b32 s64, v95")
    e("s_cmp_lg_u32 s64, 3")
    e("s_cbranch_scc1 NOZF")
    e(f"buffer_store_dword v126, v127, {srd(SRD_WS)}, s{sFLG} offen sc1")
    lab("NOZF")
    e("s_mov_b64 exec, -1")
    lab("NOZP")
    e("s_waitcnt lgkmcnt(0)")
    for k in range(8):
        e(f"v_lshlrev_b32 v{XU + 2 * k}, 16, v{XR + k}")
        e(f"v_and_b32 v{XU + 2 * k + 1}, v93, v{XR + k}")
    e(f"v_mul_f32 v{vR + 1}, {NLOG2E:#x}, v{vR}")
    bar("BW")
    stamp(6)
    nh = [0]

    def hmore(lim, cnt):
        while cnt and nh[0] < min(56, lim):
            v = nh[0]
            vm.add(("h", v), f"buffer_load_dwordx4 {vr(HR + 4 * (v % D), 4)}, v{vH}, {srd(SRD_WS)}, s{sH} offen offset:{1024 * (v & 3)} sc1")
            if v & 3 == 3:
                e(f"s_add_u32 s{sH}, s{sH}, {4096 if v & 4 == 0 else HB - 4096}")
            nh[0] += 1
            cnt -= 1

    base = [0]

    def wreads(v):
        a = wslot(v) * 4096
        if (a & ~0xFFFF) != base[0]:
            d = (a & ~0xFFFF) - base[0]
            base[0] = a & ~0xFFFF
            es([f"v_add_u32 v{WD[c]}, {d & 0xffffffff:#x}, v{WD[c]}" for c in range(2)])
        for c in range(2):
            for k in range(2):
                lq.add(("w", v, c, k), f"ds_read_b64_tr_b16 {vr(W2[v % 3][c] + 2 * k, 2)}, v{WD[c]} offset:{(a & 0xFFFF) + 2048 * k}")

    for v in range(OPT["D0"]):
        hmore(56, 1)
        if v == 1:
            wreads(0)
            wreads(1)

    P2BAR = {55 - NRES: "BP1", NRES - 2: "BP2", OPT["vz0"]: "BZ0"}
    assert NRES - 2 < OPT["vz0"] < 55

    for v in range(56):
        e(f"s_waitcnt vmcnt({vm.younger(('h', v))}) lgkmcnt({lq.younger(('w', v, 1, 1))})")
        h = vr(HR + 4 * (v % D), 4)
        st = v % 3
        a1, a2 = ((OWN, 0), (OTH, 1)) if v < 55 else ((OTH, 1), (OWN, 0))
        e(f"v_mfma_f32_32x32x16_bf16 {vr(a1[0], 16)}, {vr(W2[st][a1[1]], 4)}, {h}, {'0' if v == 0 else vr(a1[0], 16)}")
        if v in P2BAR:
            bar(P2BAR[v])
        if v + 2 < 56:
            wreads(v + 2)
        e(f"v_mfma_f32_32x32x16_bf16 {vr(a2[0], 16)}, {vr(W2[st][a2[1]], 4)}, {h}, {'0' if v == 0 else vr(a2[0], 16)}")
        if PROF and v % 4 == 0:
            e("s_memtime s[78:79]")
        if PROF and v % 4 == 2:
            e(f"v_writelane_b32 v{vLOOPST}, s78, {16 + v // 4}")
        hmore(v + 1 + D, 2)
    stamp(7)

    def ymf(sg):
        e(f"v_mfma_f32_32x32x16_bf16 {vr(Y, 16)}, {vr(ZF + 4 * sg, 4)}, {vr(EF + 4 * sg, 4)}, {'0' if sg == 0 else vr(Y, 16)}")

    cm("cross-wave reduction over the two K halves")
    PT, TT = 192, 208
    e("s_nop 7")
    e("s_nop 2")
    for a in range(4):
        e(f"ds_write_b128 v91, {vr(OTH + 4 * a, 4)} offset:{1024 * a}")
    e("s_waitcnt lgkmcnt(0)")
    bar("BR")
    for a in range(4):
        e(f"ds_read_b128 {vr(PT + 4 * a, 4)}, v92 offset:{1024 * a}")
    for sg in range(8):
        e(f"ds_read_b128 {vr(ZF + 4 * sg, 4)}, v{vZA} offset:{2048 * sg}")
    e("s_waitcnt lgkmcnt(8)")
    rr = vr(vR, 2)
    raw(".p2align 3")
    for k in range(8):
        e(f"v_pk_add_f32 {vr(OWN + 2 * k, 2)}, {vr(OWN + 2 * k, 2)}, {vr(PT + 2 * k, 2)}")
    for k in range(8):
        e(f"v_pk_mul_f32 {vr(TT + 2 * k, 2)}, {vr(OWN + 2 * k, 2)}, {rr} op_sel:[0,1] op_sel_hi:[1,1]")
    for k in range(8):
        e(f"v_pk_mul_f32 {vr(OWN + 2 * k, 2)}, {vr(OWN + 2 * k, 2)}, {rr} op_sel_hi:[1,0]")
    e("s_waitcnt lgkmcnt(0)")
    for k in range(16):
        if k % 3 == 0:
            ymf(k // 3)
        e(f"v_exp_f32 v{TT + k}, v{TT + k}")
    for k in range(16):
        if k in (2, 8):
            ymf(6 + (k >> 3))
        e(f"v_add_f32 v{TT + k}, 1.0, v{TT + k}")
    for k in range(16):
        e(f"v_rcp_f32 v{TT + k}, v{TT + k}")
    raw(".p2align 3")
    for k in range(8):
        e(f"v_pk_mul_f32 {vr(OWN + 2 * k, 2)}, {vr(OWN + 2 * k, 2)}, {vr(TT + 2 * k, 2)}")
    for k in range(8):
        e(f"v_pk_fma_f32 {vr(OWN + 2 * k, 2)}, {vr(OWN + 2 * k, 2)}, {vr(Y + 2 * k, 2)}, {vr(XU + 2 * k, 2)}")
    for k in range(8):
        e(f"v_cvt_pk_bf16_f32 v{TT + k}, v{OWN + 2 * k}, v{OWN + 2 * k + 1}")
    e(f"buffer_store_dwordx4 {vr(TT, 4)}, v{vXO}, {srd(SRD_OUT)}, s{sXO} offen")
    e(f"buffer_store_dwordx4 {vr(TT + 4, 4)}, v{vXO}, {srd(SRD_OUT)}, s{sXO} offen offset:16")
    stamp_flush(8, 64, True)
    if OPT.get("rabs"):
        lab("DLY")
        e("s_memrealtime s[82:83]")
        e("s_waitcnt lgkmcnt(0)")
        e("s_sub_u32 s82, s82, s98")
        e(f"s_cmp_lt_u32 s82, {OPT['rabs']}")
        e("s_cbranch_scc1 DLY")
    e("s_endpgm")


def cwave():
    section("C0")
    lab("CWAVE")
    cm("================ C waves: matrix work ================")
    e("s_setprio 2")
    ids1()
    e(f"v_mov_b32 v{vLANE}, v0")
    for k in range(4):
        e(f"v_mov_b32 v{8 + k}, 0")
    e("v_and_b32 v2, 31, v0")
    e("v_lshrrev_b32 v3, 5, v0")
    for k in range(8):
        e(f"v_mfma_f32_32x32x16_bf16 {vr(128 + 16 * k, 16)}, v[8:11], v[8:11], 0")
    e("s_waitcnt lgkmcnt(0)")
    srds2()
    e(f"s_and_b32 s{sP}, s{sWAVE}, 1")
    e(f"s_lshr_b32 s{sKH}, s{sWAVE}, 1")
    e(f"s_lshl_b32 s64, s{sI}, 4")
    e(f"s_add_u32 s64, s64, s{sJ}")
    e("s_lshl_b32 s64, s64, 7")
    e(f"s_add_u32 s{sFLG}, s64, {FLH}")
    if not OPT["user"]:
        es(late_ids(True))
    e(f"s_cmp_eq_u32 s{sDFT}, 1")
    e("s_cbranch_scc1 CDFT")
    e(f"s_lshl_b32 s64, s{sJ}, 2")
    e(f"s_add_u32 s64, s64, s{sWAVE}")
    e("s_lshr_b32 s65, s64, 3")
    e(f"s_mul_i32 s65, s65, {HB}")
    e("s_and_b32 s64, s64, 7")
    e("s_lshl_b32 s64, s64, 10")
    e("s_add_u32 s64, s64, s65")
    e(f"s_lshl_b32 s65, s{sI}, 1")
    es(hbase(sOUT, 65))
    e(f"s_mov_b32 s{sPAR}, s47")
    e(f"s_add_u32 s{sOUT}, s{sOUT}, s64")
    if True:
        e("v_and_b32 v2, 15, v0")
        e("v_lshrrev_b32 v3, 4, v0")
        e("v_lshrrev_b32 v4, 1, v2")
        e("v_xor_b32 v4, v4, v3")
        e("v_lshlrev_b32 v5, 7, v2")
        e(f"v_lshl_add_u32 v{XA16[0]}, v4, 4, v5")
        e(f"v_add_u32 v{XA16[0]}, {SLOT + 32768}, v{XA16[0]}")
        e(f"v_xor_b32 v{XA16[1]}, 64, v{XA16[0]}")
        e("v_bfe_u32 v4, v0, 2, 2")
        e("v_lshlrev_b32 v5, 12, v3")
        e("v_lshl_add_u32 v5, v4, 8, v5")
        e(f"v_xor_b32 v4, s{sWAVE}, v4")
        e("v_lshl_add_u32 v5, v4, 6, v5")
        e("v_and_b32 v4, 1, v3")
        e("v_lshl_add_u32 v5, v4, 5, v5")
        e("v_and_b32 v4, 3, v0")
        e("v_lshl_add_u32 v5, v4, 3, v5")
        e(f"v_add_u32 v{WA16[0]}, {SLOT}, v5")
        e(f"v_xor_b32 v{WA16[1]}, 32, v{WA16[0]}")
        e(f"s_lshl_b32 s64, s{sWAVE}, 7")
        e(f"s_add_u32 s64, s64, {CSL}")
        e(f"v_lshl_add_u32 v{vB_CS}, v3, 4, s64")
        e(f"v_lshlrev_b32 v{vB_MR}, 3, v2")
        e(f"v_add_u32 v{vB_MR}, {MRP}, v{vB_MR}")
        e(f"v_mov_b32 v{vA_TAG}, {TAGL}")
    e("s_branch CGLU")
    section("CG")
    lab("CGLU")
    stamp(1)
    bar("B0")
    mainloop16()
    stamp(2)
    glu_epilogue16()
    phase2()
    section("CD")
    lab("CDFT")
    e("v_bfe_u32 v4, v0, 1, 3")
    e("v_lshlrev_b32 v5, 7, v2")
    e(f"v_add_u32 v5, {SLOT + 32768}, v5")
    for u in range(4):
        e(f"v_add_u32 v6, {2 * u}, v3")
        e("v_xor_b32 v6, v6, v4")
        e(f"v_lshl_add_u32 v{XA[u]}, v6, 4, v5")
    e("v_bfe_u32 v4, v0, 2, 2")
    e(f"v_lshlrev_b32 v{WA}, 12, v3")
    e(f"v_lshl_add_u32 v{WA}, v4, 8, v{WA}")
    e(f"v_xor_b32 v4, s{sWAVE}, v4")
    e(f"v_lshl_add_u32 v{WA}, v4, 6, v{WA}")
    e("v_bfe_u32 v4, v0, 4, 1")
    e("v_xor_b32 v4, v4, v3")
    e(f"v_lshl_add_u32 v{WA}, v4, 5, v{WA}")
    e("v_and_b32 v4, 3, v0")
    e(f"v_lshl_add_u32 v{WA}, v4, 3, v{WA}")
    e(f"v_add_u32 v{WA}, {SLOT}, v{WA}")
    e(f"v_lshlrev_b32 v{vD_R}, 4, v3")
    e(f"v_add_u32 v{vD_R}, {RL}, v{vD_R}")
    e(f"v_mov_b32 v{vD_TAG}, {TAGL}")
    e(f"s_lshl_b32 s64, s{sI}, 12")
    e(f"s_and_b32 s65, s{sJ}, 1")
    e("s_lshl_b32 s66, s65, 11")
    e("s_add_u32 s64, s64, s66")
    e(f"s_lshl_b32 s66, s{sWAVE}, 9")
    e("s_add_u32 s64, s64, s66")
    e(f"s_add_u32 s{sOUT}, s64, {Z_OFF}")
    dft_prologue()
    stamp(1)
    bar("B0")
    for k in range(16):
        e(f"ds_read_b128 {vr(4 * k, 4)}, v119 offset:{1024 * k}")
    mainloop(True)
    stamp(2)
    dft_epilogue()


hdr = open("cdna_kernels/" + NAME + ".s.ref").read().split("\n")
head = [l for l in hdr if l.startswith(";") and "@launch" not in l and "Override launch" not in l and "grid=ceil" not in l]
out = head + ["; @launch grid=(256,1,1) block=(512,1,1) lds=163840",
              '.amdgcn_target "amdgcn-amd-amdhsa--gfx950"', ".text", f".globl {K}"]
out.append(".p2align 12")
out += [".p2align 8", f".type {K},@function", f"{K}:"]
entry()
l2wave()
l3wave()
l01wave()
cwave()
for name, align in (("A", 0), ("A2", 0), ("C0", 0), ("L2", 0), ("L3", 0), ("CG", 12), ("CD", 12)):
    if align:
        out.append(f".p2align {align}")
    out += SEC[name]
out += ["END:", "    s_endpgm"]
out += ['.section .rodata,"a"', ".p2align 6", f".amdhsa_kernel {K}", "  .amdhsa_next_free_vgpr 256", "  .amdhsa_next_free_sgpr 102",
        "  .amdhsa_accum_offset 256", "  .amdhsa_group_segment_fixed_size 0", "  .amdhsa_kernarg_size 96",
        "  .amdhsa_user_sgpr_count 2", "  .amdhsa_user_sgpr_kernarg_segment_ptr 1", "  .amdhsa_system_sgpr_workgroup_id_x 1",
        ".end_amdhsa_kernel", ""]
open(sys.argv[1], "w").write("\n".join(out))
```

```python
import struct
import sys

NAME = "recurrent_scan__spectral_fnet__glu_gated_glu__prompt"
OPT = dict(prof=0, D=12, D0=6, pre=2, preb=1, pb2=4, prec=4, th=4, trk=22, u1=2, u2=8, pa=47, dtr=22, dth=4, dpa=47, slp=6, spin=200000,
           vz0=44, xk=0, k0=2, kn=2, xa0=5, na=4, xb0=10, nb=6, xe=16, xt=4, tlb=0, numa=0, pol=-1, user=0)
for a in sys.argv[2:]:
    k, v = a.split("=")
    OPT[k] = int(v)
LITE = OPT["prof"] == 3
PROF = 0 if LITE else OPT["prof"]
K = NAME + "_kernel"
D = OPT["D"]

H_OFF, Z_OFF, ST_OFF, CS_OFF = 0, 0x800000, 0xA00000, 0xA10000
FLH, PROF_OFF, WS_SIZE = 0xA50000, 0xA60000, 0xB00000
PROBE = 0x1C0000
SLOT = 49152
MISC = 147456
CSL, MRP, RL, TAGL, CNTL, R2L = MISC, MISC + 1024, MISC + 2048, MISC + 3072, MISC + 3076, MISC + 3328
RED = 20 * 4096
ZL = 24 * 4096
NRES = 39
NST = 56 - NRES
NUMA = OPT['numa']
HB = 16384 if NUMA else 8192
HZ = 7 * HB
NLOG2E = 0xBFB8AA3B
OOB = 0x40000000


def wslot(v):
    return v if v < 36 else v + 1 if v < NRES else v - NRES


def f2u(x):
    return struct.unpack("<I", struct.pack("<f", x))[0]


SEC = {}
CUR = [None, False]


def section(n):
    CUR[0] = SEC.setdefault(n, [])


def e(s):
    CUR[0].append("    " + s)


def es(lst):
    for x in lst:
        for y in (x if isinstance(x, list) else [x]):
            e(y)


def lab(s):
    CUR[0].append(s + ":")


def raw(s):
    CUR[0].append(s)


def cm(s):
    CUR[0].append("    ; " + s)


def vr(a, n):
    return f"v[{a}:{a + n - 1}]"


def srd(n):
    return f"s[{n}:{n + 3}]"


class Q:
    def __init__(self):
        self.l = []

    def add(self, tag, txt=None):
        self.l.append(tag)
        if txt:
            e(txt)

    def younger(self, tag):
        return len(self.l) - 1 - self.l.index(tag)


SRD_X, SRD_WD, SRD_WS, SRD_OUT, SRD_DBG, SRD_WM = 4, 16, 20, 24, 28, 32
sWAVE, sI, sJ, sT1, sCB, sRS, sCOL, sDFT, sTAG, sIDX = 36, 37, 38, 39, 40, 41, 42, 43, 44, 45
sSTAMP = 80
vLOOPST, vLANE = 121, 117
uid = [0]


def stamp(i):
    if PROF:
        e(f"{'s_memrealtime' if PROF == 2 else 's_memtime'} s[{sSTAMP + 2 * i}:{sSTAMP + 2 * i + 1}]")


def stamp_flush(n, vt, cw):
    if not (PROF or (LITE and cw)):
        return
    e("s_waitcnt lgkmcnt(0)")
    e("s_lshl_b32 s78, s2, 3")
    e(f"s_add_u32 s78, s78, s{sWAVE}")
    e("s_lshl_b32 s78, s78, 8")
    e(f"s_add_u32 s78, s78, {PROF_OFF}")
    e(f"v_mov_b32 v{vt + 8}, 0")
    if PROF:
        for i in range(8):
            e(f"v_mov_b32 v{vt + i}, s{sSTAMP + 2 * i}" if i < n else f"v_mov_b32 v{vt + i}, 0")
        e(f"buffer_store_dwordx4 {vr(vt, 4)}, v{vt + 8}, {srd(SRD_WS)}, s78 offen")
        e(f"buffer_store_dwordx4 {vr(vt + 4, 4)}, v{vt + 8}, {srd(SRD_WS)}, s78 offen offset:16")
        if cw:
            e(f"v_lshlrev_b32 v{vt + 9}, 2, v{vLANE}")
            e(f"v_min_u32 v{vt + 9}, 124, v{vt + 9}")
            e(f"buffer_store_dword v{vLOOPST}, v{vt + 9}, {srd(SRD_WS)}, s78 offen offset:64")
    e("s_memrealtime s[76:77]")
    e("s_waitcnt lgkmcnt(0)")
    e(f"v_mov_b32 v{vt + 10}, s98")
    e(f"v_mov_b32 v{vt + 11}, s76")
    e(f"buffer_store_dwordx2 {vr(vt + 10, 2)}, v{vt + 8}, {srd(SRD_WS)}, s78 offen offset:32")


def bar(name=""):
    e("s_barrier" + (f"  ; {name}" if name else ""))


def poll_issue(vdst, vaddr, ssoff, srdn):
    e(f"buffer_load_dword v{vdst}, v{vaddr}, {srd(srdn)}, {ssoff} offen sc1")


def poll_wait(vdst, vaddr, ssoff, srdn, cond_tag=True, first_wait=0):
    uid[0] += 1
    k = uid[0]
    e(f"s_mov_b32 s75, {OPT['spin']}")
    e(f"s_waitcnt vmcnt({first_wait})")
    lab(f"POLL{k}")
    e(f"v_cmp_ne_u32 vcc, s{sTAG}, v{vdst}" if cond_tag else f"v_cmp_eq_u32 vcc, 0, v{vdst}")
    e("s_nop 1")
    e("s_cmp_eq_u64 vcc, 0")
    e(f"s_cbranch_scc1 POLLD{k}")
    if OPT["slp"]:
        e(f"s_sleep {OPT['slp']}")
    poll_issue(vdst, vaddr, ssoff, srdn)
    e("s_sub_u32 s75, s75, 1")
    e("s_cmp_lg_u32 s75, 0")
    e("s_waitcnt vmcnt(0)")
    e(f"s_cbranch_scc1 POLL{k}")
    lab(f"POLLD{k}")


def wait_c_done():
    uid[0] += 1
    k = uid[0]
    e(f"v_mov_b32 v7, {CNTL}")
    e(f"s_mov_b32 s75, {OPT['spin']}")
    lab(f"CW{k}")
    e("ds_read_b32 v8, v7")
    e("s_waitcnt lgkmcnt(0)")
    e("v_readfirstlane_b32 s76, v8")
    e("s_sub_u32 s75, s75, 1")
    e("s_cmp_eq_u32 s75, 0")
    e(f"s_cbranch_scc1 CWD{k}")
    e("s_sleep 1")
    e("s_cmp_lt_u32 s76, 4")
    e(f"s_cbranch_scc1 CW{k}")
    lab(f"CWD{k}")


def ids1():
    e("s_and_b32 s64, s2, 1")
    e("s_lshl_b32 s64, s64, 3")
    e(f"s_and_b32 s65, s{sIDX}, 7")
    e(f"s_add_u32 s{sI}, s64, s65")
    e("s_bfe_u32 s64, s2, 0x20001")
    e(f"s_lshr_b32 s67, s{sIDX}, 3")
    e("s_mul_i32 s65, s64, 3")
    e("s_add_u32 s65, s65, s67")
    e("s_add_u32 s66, s64, 14")
    e("s_cmp_eq_u32 s67, 3")
    e("s_cselect_b32 s65, s66, s65")
    e("s_lshl_b32 s66, s64, 2")
    e("s_add_u32 s66, s66, s67")
    e("s_sub_u32 s66, s66, 2")
    e("s_cmp_lt_u32 s64, 2")
    e(f"s_cselect_b32 s{sJ}, s65, s66")
    e(f"s_lshl_b32 s{sCOL}, s{sJ}, 8")
    e(f"s_sub_u32 s64, s{sCOL}, {14 * 256}")
    e(f"s_movk_i32 s{sRS}, 3584")
    e(f"s_cmp_ge_u32 s{sJ}, 14")
    e(f"s_cselect_b32 s{sDFT}, 1, 0")
    e(f"s_cselect_b32 s{sRS}, 1024, s{sRS}")
    e(f"s_cselect_b32 s{sCOL}, s64, s{sCOL}")
    e(f"s_lshl_b32 s34, s{sRS}, 9")
    e("s_mov_b32 s35, 0x20000")
    e("s_mov_b32 s6, 0x200000")
    e("s_mov_b32 s7, 0x20000")


def wm_select(scc_instr):
    e(f"s_cmp_eq_u32 s{sDFT}, 1")
    e("s_cselect_b64 s[8:9], s[48:49], s[52:53]")
    e("s_cselect_b64 s[12:13], s[50:51], s[54:55]")
    e(scc_instr)
    e("s_cselect_b64 s[32:33], s[12:13], s[8:9]")


def srds2():
    e("s_mov_b64 s[16:17], s[56:57]")
    e(f"s_mov_b32 s18, {1792 * 1024}")
    e("s_mov_b32 s19, 0x20000")
    e("s_mov_b64 s[20:21], s[62:63]")
    e(f"s_mov_b32 s22, {WS_SIZE}")
    e("s_mov_b32 s23, 0x20000")
    e("s_mov_b64 s[24:25], s[58:59]")
    e("s_mov_b32 s26, 0x200000")
    e("s_mov_b32 s27, 0x20000")
    e("s_mov_b64 s[28:29], s[60:61]")
    e("s_mov_b32 s30, 256")
    e("s_mov_b32 s31, 0x20000")


def ids2():
    return [f"s_add_u32 s46, s2, s{sTAG}" if OPT["user"] else "s_mov_b32 s46, s2",
            "s_bfe_u32 s47, s46, 0x20001", "s_lshl_b32 s47, s47, 3", f"s_and_b32 s{sT1}, s{sIDX}, 7", f"s_add_u32 s{sT1}, s{sT1}, s47",
            "s_and_b32 s46, s46, 1", "s_lshl_b32 s46, s46, 2", f"s_lshr_b32 s{sCB}, s{sIDX}, 3", f"s_add_u32 s{sCB}, s{sCB}, s46"]


def hbase(dst, t1):
    if not NUMA:
        return [f"s_mul_i32 s{dst}, s{t1}, {4 * HZ}"]
    return [f"s_and_b32 s46, s{t1}, 3", f"s_mul_i32 s{dst}, s46, {4 * HZ}", f"s_bfe_u32 s46, s{t1}, 0x20002",
            f"s_lshr_b32 s47, s{t1}, 4", "s_xor_b32 s47, s47, s46", "s_lshl_b32 s46, s46, 21", f"s_add_u32 s{dst}, s{dst}, s46"]


def hside(dst, par, pol):
    if not NUMA:
        return []
    return [f"s_xor_b32 s{par}, s{par}, s{pol}", f"s_and_b32 s{par}, s{par}, 1", f"s_lshl_b32 s{par}, s{par}, 13",
            f"s_add_u32 s{dst}, s{dst}, s{par}"]


def entry():
    section("A")
    e("s_cmp_ge_u32 s2, 256")
    e("s_cbranch_scc1 END")
    e("s_load_dwordx2 s[4:5], s[0:1], 0")
    e("s_load_dwordx4 s[48:51], s[0:1], 24")
    e("s_load_dwordx8 s[52:59], s[0:1], 48")
    e("s_load_dwordx4 s[60:63], s[0:1], 80")
    if PROF or LITE or OPT.get("rabs"):
        e("s_memrealtime s[98:99]")
    stamp(0)
    e("v_lshrrev_b32 v1, 6, v0")
    e("v_and_b32 v0, 63, v0")
    e(f"s_lshr_b32 s{sIDX}, s2, 3")
    e(f"v_readfirstlane_b32 s{sWAVE}, v1")
    e("s_getpc_b64 s[64:65]")
    lab("PCREF")
    e(f"s_cmp_ge_u32 s{sWAVE}, 4")
    e("s_cbranch_scc1 LSTART")
    if True:
        cm("pull the kernel's own code into this die's L2: three lines per matrix wave")
        e(f"s_lshl_b32 s66, s{sIDX}, 2")
        e(f"s_add_u32 s66, s66, s{sWAVE}")
        e("s_mul_i32 s66, s66, 384")
        e(f"s_min_u32 s66, s66, END-PCREF-384")
        e("s_and_b32 s64, s64, 0xffffff80")
        e("s_load_dwordx2 s[68:69], s[64:65], s66 offset:60")
        e("s_load_dwordx2 s[70:71], s[64:65], s66 offset:188")
        e("s_load_dwordx2 s[72:73], s[64:65], s66 offset:316")
    e("s_branch CWAVE")
    lab("LSTART")
    ids1()
    e(f"s_cmp_eq_u32 s{sWAVE}, 6")
    e("s_cbranch_scc1 L2WAVE")
    e(f"s_cmp_eq_u32 s{sWAVE}, 7")
    e("s_cbranch_scc1 L3WAVE")


def wd_voffset(vd, vt):
    e(f"v_lshrrev_b32 v{vt}, 3, v0")
    e(f"v_lshlrev_b32 v{vd}, 10, v{vt}")
    e(f"v_bfe_u32 v{vt}, v0, 4, 1")
    e(f"v_lshlrev_b32 v{vt}, 2, v{vt}")
    e(f"v_and_b32 v{vt + 1}, 7, v0")
    e(f"v_xor_b32 v{vt}, v{vt}, v{vt + 1}")
    e(f"v_lshl_add_u32 v{vd}, v{vt}, 4, v{vd}")


XS = 8192


def xw_base(par):
    e(f"s_lshr_b32 s60, s{sIDX}, 2")
    e("s_lshl_b32 s60, s60, 10")
    e(f"s_and_b32 s63, s{sIDX}, 3")
    e("s_lshl_b32 s63, s63, 7")
    e("s_add_u32 s60, s60, s63")
    e(f"s_and_b32 s63, {par}, 1")
    e("s_lshl_b32 s63, s63, 9")
    e("s_add_u32 s60, s60, s63")
    e("s_bfe_u32 s63, s2, 0x20001")
    e(f"s_mul_i32 s62, s63, {56 * XS}")


def xload(n):
    for k in range(n if not OPT.get("nox") else 0):
        e(f"s_buffer_load_dwordx2 s[58:59], {srd(SRD_WD)}, s60 offset:{XS * k + 60}")


def xa_init():
    xw_base("s2")
    e("s_add_u32 s60, s60, s62")
    e(f"s_sub_u32 s63, s{sWAVE}, 4")
    e(f"s_mul_i32 s63, s63, {28 * XS}")
    e("s_add_u32 s60, s60, s63")


def xa():
    if OPT["xk"]:
        return
    xload(OPT["na"])
    e(f"s_add_u32 s60, s60, {OPT['na'] * XS}")


def xb_init(which):
    e(f"s_add_u32 s46, s2, s{sTAG}" if OPT["user"] else "s_mov_b32 s46, s2")
    xw_base("s46")
    e(f"s_add_u32 s60, s60, {which * OPT['nb'] * XS}")
    e("s_add_u32 s62, s62, s60")
    if OPT["xk"]:
        e("s_mov_b32 s62, -1")
    elif OPT["user"]:
        e(f"s_bitcmp1_b32 s{sTAG}, 0")
        e("s_cselect_b32 s62, -1, s62")


XBN = [0, 0]


def xw(n, which):
    nb = OPT["nb"]
    if n < OPT["xb0"] or XBN[which] * 2 * nb >= (224 if OPT['xk'] else 168):
        return
    XBN[which] += 1
    e("s_cmp_ge_u32 s60, s62")
    e(f"s_cselect_b32 s63, {56 * XS}, 0")
    e("s_cselect_b32 s62, -1, s62")
    e("s_add_u32 s60, s60, s63")
    xload(nb)
    e(f"s_add_u32 s60, s60, {2 * nb * XS}")


def l01wave():
    vX0, vX1, vW, vWD, vZ, vW1 = 2, 3, 4, 5, 9, 12
    sLW, sXa, sXb, sWo, sS0, sS1, sR4, sT, sCnt, sWd = 64, 65, 66, 67, 68, 69, 70, 71, 72, 73
    section("A2")
    lab("L01WAVE")
    cm("================ L0/L1: DMA waves ================")
    e(f"s_sub_u32 s{sLW}, s{sWAVE}, 4")
    e("v_lshrrev_b32 v6, 3, v0")
    e(f"v_lshlrev_b32 v{vX0}, 16, v6")
    e("v_lshrrev_b32 v6, 1, v6")
    e("v_and_b32 v7, 7, v0")
    e("v_xor_b32 v6, v6, v7")
    e(f"v_lshl_add_u32 v{vX0}, v6, 4, v{vX0}")
    e(f"v_xor_b32 v{vX1}, 64, v{vX0}")
    e("v_lshrrev_b32 v6, 4, v0")
    e(f"v_mul_lo_u32 v{vW}, v6, s{sRS}")
    e("v_bfe_u32 v7, v0, 2, 2")
    e("v_xor_b32 v7, v7, v6")
    e("v_lshlrev_b32 v7, 2, v7")
    e("v_and_b32 v8, 3, v0")
    e("v_or_b32 v7, v7, v8")
    e(f"v_lshl_add_u32 v{vW}, v7, 4, v{vW}")
    e("v_xor_b32 v7, 2, v7")
    e(f"v_mul_lo_u32 v{vW1}, v6, s{sRS}")
    e(f"v_lshl_add_u32 v{vW1}, v7, 4, v{vW1}")
    e(f"s_lshl_b32 s{sXa}, s{sI}, 1")
    e(f"s_add_u32 s{sXa}, s{sXa}, s{sLW}")
    e(f"s_lshl_b32 s{sXa}, s{sXa}, 10")
    e(f"s_add_u32 s{sXb}, s{sXa}, {32 * 1024}")
    e(f"s_mov_b32 s{sWo}, s{sCOL}")
    e(f"s_lshl_b32 s{sR4}, s{sRS}, 2")
    e(f"s_lshl_b32 s74, s{sLW}, 10")
    e(f"s_lshl_b32 s77, s{sLW}, 12")

    def wpieces(base_sgpr, imm):
        e(f"s_add_u32 s{sT}, s{base_sgpr}, s74")
        e(f"s_add_u32 m0, s{sT}, {imm}")
        e("s_nop 0")
        for k in range(8):
            if True:
                e(f"buffer_load_dwordx4 v{vW1 if k & 2 else vW}, {srd(SRD_WM)}, s{sWo} offen lds")
            if k < 7:
                e("s_add_u32 m0, m0, 2048")
            e(f"s_add_u32 s{sWo}, s{sWo}, s{sR4}")

    def xpieces(base_sgpr, half):
        sx = sXb if half else sXa
        e(f"s_add_u32 s{sT}, s{base_sgpr}, s77")
        e(f"s_add_u32 m0, s{sT}, {32768 + half * 8192}")
        e(f"s_mov_b32 s{sT}, s{sx}")
        for k in range(4):
            if True:
                e(f"buffer_load_dwordx4 v{vX1 if k & 1 else vX0}, {srd(SRD_X)}, s{sT} offen lds")
            if k < 3:
                e("s_add_u32 m0, m0, 1024")
                e(f"s_add_u32 s{sT}, s{sT}, 0x80000")
        e(f"s_add_u32 s{sx}, s{sx}, 128")

    e(f"s_mov_b32 s{sS0}, {SLOT}")
    e(f"s_mov_b32 s{sS1}, {2 * SLOT}")
    e("s_waitcnt lgkmcnt(0)")
    cm("G0 = x0 + W0 ; G1 = W1 + x1a")
    xpieces(sS0, 0)
    wm_select(f"s_cmp_eq_u32 s{sLW}, 1")
    wpieces(sS0, 0)
    xpieces(sS0, 1)
    wpieces(sS0, 16384)
    xpieces(sS1, 0)
    def l01_ids():
        es(ids2())
        e(f"s_lshr_b32 s61, s{sT1}, 1")
        e("s_lshl_b32 s61, s61, 11")
        e(f"s_and_b32 s48, s{sT1}, 1")
        e("s_lshl_b32 s48, s48, 9")
        e("s_add_u32 s48, s48, s61")
        e("s_add_u32 s48, s48, s74")
        e(f"s_add_u32 s48, s48, {ST_OFF}")
        e(f"s_add_u32 s61, s61, {FLH}")
        e(f"s_cmp_eq_u32 s{sLW}, 0")
        e(f"s_cselect_b32 s61, s61, {OOB:#x}")

    srds2()
    xa_init()
    if not OPT["user"]:
        l01_ids()
    wd_voffset(vWD, 6)
    e("v_min_u32 v10, 13, v0")
    e("v_lshlrev_b32 v10, 7, v10")
    e("v_and_b32 v47, 31, v0")
    e(f"s_lshl_b32 s63, s{sLW}, 7")
    e(f"s_add_u32 s63, s63, {R2L}")
    e("v_lshl_add_u32 v48, v47, 2, s63")
    e("v_lshlrev_b32 v47, 4, v47")
    e("v_mov_b32 v49, 0")
    e("v_lshlrev_b32 v13, 4, v0")
    e(f"s_lshl_b32 s56, s{sJ}, 13")
    e("s_add_u32 s56, s56, s74")
    e(f"s_add_u32 s56, s56, {CS_OFF}")
    e("s_add_u32 s57, s56, 4096")
    e(f"s_lshl_b32 s62, s{sI}, 11")
    e("s_add_u32 s62, s62, s74")
    e(f"s_add_u32 s62, s62, {ST_OFF}")
    e(f"s_lshl_b32 s63, s{sLW}, 9")
    e(f"s_add_u32 s63, s63, {CSL}")
    e("v_lshl_add_u32 v45, v0, 3, s63")
    e(f"s_lshl_b32 s63, s{sLW}, 8")
    e(f"s_add_u32 s63, s63, {RL}")
    e("v_lshl_add_u32 v46, v0, 2, s63")
    e(f"s_mov_b32 s{sS0}, {2 * SLOT}")
    e(f"s_mov_b32 s{sS1}, 0")
    e(f"s_mov_b32 s{sCnt}, 6")
    e("s_waitcnt vmcnt(12)")
    stamp(1)
    bar("B0")
    lab("L01LOOP")
    wpieces(sS0, 0)
    xpieces(sS0, 1)
    A0 = OPT["xa0"]
    NA = -(-28 // OPT["na"])
    ev = [n for n in range(0, 12, 2) if A0 <= n < A0 + NA]
    od = [n for n in range(1, 12, 2) if A0 <= n < A0 + NA]
    if not OPT["xk"]:
        e(f"s_sub_u32 s63, {6 - ev[0] // 2}, s{sCnt}")
        e(f"s_cmp_ge_u32 s63, {len(ev)}")
        e("s_cbranch_scc1 L01X0")
    xa()
    lab("L01X0")
    e("s_waitcnt vmcnt(12)")
    bar("B(2s+1)")
    wpieces(sS0, 16384)
    xpieces(sS1, 0)
    if not OPT["xk"]:
        e(f"s_sub_u32 s63, {6 - od[0] // 2}, s{sCnt}")
        e(f"s_cmp_ge_u32 s63, {len(od)}")
        e("s_cbranch_scc1 L01X1")
    xa()
    lab("L01X1")
    e(f"s_mov_b32 s{sS0}, s{sS1}")
    e(f"s_add_u32 s{sS1}, s{sS1}, {SLOT}")
    e(f"s_cmp_eq_u32 s{sS1}, {3 * SLOT}")
    e(f"s_cselect_b32 s{sS1}, 0, s{sS1}")
    e(f"s_sub_u32 s{sCnt}, s{sCnt}, 1")
    e(f"s_cmp_lg_u32 s{sCnt}, 0")
    e("s_waitcnt vmcnt(12)")
    bar("B(2s+2)")
    e("s_cbranch_scc1 L01LOOP")
    wpieces(sS0, 0)
    xpieces(sS0, 1)
    e(f"v_mov_b32 v7, {TAGL}")
    e("ds_read_b32 v8, v7")
    if OPT["user"]:
        e("s_waitcnt lgkmcnt(0)")
        e(f"v_readfirstlane_b32 s{sTAG}, v8")
        l01_ids()
    e("s_waitcnt vmcnt(12)")
    bar("B13")
    wpieces(sS0, 16384)

    def gets():
        cm("statistics of the other workgroups: column sums (128 columns x 4 partial sums) and 64 rows per wave")
        for k in range(4):
            e(f"buffer_load_dwordx4 {vr(16 + 4 * k, 4)}, v13, {srd(SRD_WS)}, {'s57' if k >= 2 else 's56'} offen offset:{2048 * (k & 1)} sc1")
        e(f"buffer_load_dwordx4 v[32:35], v13, {srd(SRD_WS)}, s62 offen sc1")
        e(f"buffer_load_dwordx4 v[52:55], v47, {srd(SRD_WS)}, s48 offen sc1")
        if NUMA:
            e(f"buffer_load_dword v50, v49, {srd(SRD_DBG)}, 0 offen offset:4 sc1")

    gets()
    e(f"s_lshl_b32 s{sWd}, s{sLW}, 14")
    e(f"s_lshl_b32 s{sT}, s{sCB}, 7")
    e(f"s_add_u32 s{sWd}, s{sWd}, s{sT}")
    e(f"s_lshl_b32 m0, s{sLW}, 11")

    def units(a, b, th=0):
        for v in range(a, b):
            e(f"s_add_u32 s{sT}, s{sWd}, 8192")
            if v < NRES:
                e(f"buffer_load_dwordx4 v{vWD}, {srd(SRD_WD)}, s{sWd} offen lds")
                e("s_add_u32 m0, m0, 1024")
            else:
                e(f"buffer_load_dwordx4 {vr(ST0 + 8 * (v - NRES), 4)}, v{vWD}, {srd(SRD_WD)}, s{sWd} offen")
            e(f"s_add_u32 s{sWd}, s{sWd}, 32768")
            if v < NRES:
                e(f"buffer_load_dwordx4 v{vWD}, {srd(SRD_WD)}, s{sT} offen lds")
            else:
                e(f"buffer_load_dwordx4 {vr(ST0 + 8 * (v - NRES) + 4, 4)}, v{vWD}, {srd(SRD_WD)}, s{sT} offen")
            if v + 1 < NRES:
                e(f"s_add_u32 m0, m0, {(wslot(v + 1) - wslot(v)) * 4096 - 1024}")
            if th:
                e(f"s_waitcnt vmcnt({th})")

    ST0 = 64
    U1, U2 = OPT["u1"], OPT["u2"]
    units(0, U1)
    e(f"s_waitcnt vmcnt({8 + 6 + NUMA + 2 * U1})")
    bar("B14")
    units(U1, U2)
    e(f"s_waitcnt vmcnt({6 + NUMA + 2 * U2})")
    bar("B15")
    if not OPT["user"]:
        e("s_waitcnt lgkmcnt(0)")
        e(f"v_readfirstlane_b32 s{sTAG}, v8")
    e(f"s_mov_b32 s75, {OPT['spin']}")
    e(f"s_waitcnt vmcnt({2 * U2})")
    lab("GCHK")
    for k in range(8):
        e(f"v_xor_b32 v{36 + k}, s{sTAG}, v{17 + 2 * k}")
    e(f"v_xor_b32 v44, s{sTAG}, v35")
    e(f"v_xor_b32 v51, s{sTAG}, v55")
    if NUMA:
        e("v_and_b32 v56, 2, v50")
        e("v_xor_b32 v56, 2, v56")
        e("v_or3_b32 v44, v44, v51, v56")
    else:
        e("v_or_b32 v44, v44, v51")
    for k in range(4):
        e(f"v_or3_b32 v44, v44, v{36 + 2 * k}, v{37 + 2 * k}")
    e("v_cmp_ne_u32 vcc, 0, v44")
    e("v_add_f32 v36, v16, v20")
    e("v_add_f32 v37, v18, v22")
    e("s_cmp_eq_u64 vcc, 0")
    e("s_cbranch_scc1 GOK")
    e("s_sleep 2")
    gets()
    e("s_sub_u32 s75, s75, 1")
    e("s_cmp_lg_u32 s75, 0")
    e("s_waitcnt vmcnt(0)")
    e("s_cbranch_scc1 GCHK")
    lab("GOK")
    e("v_add_f32 v38, v24, v28")
    e("v_add_f32 v39, v26, v30")
    e("v_add_f32 v36, v36, v38")
    e("v_add_f32 v37, v37, v39")
    e("ds_write_b64 v45, v[36:37]")
    e(f"ds_write_b64 v45, v[32:33] offset:{MRP - CSL}")
    e("ds_write_b32 v46, v33")
    e("ds_write_b32 v48, v53")
    if NUMA:
        e("ds_write_b32 v7, v50 offset:12")
    e("s_waitcnt lgkmcnt(0)")
    stamp(2)
    bar("B16")
    TR = OPT["trk"]
    PA = OPT["pa"]
    e(f"s_cmp_eq_u32 s{sDFT}, 0")
    e("s_cbranch_scc1 L01GLU")
    cm("spectral workgroups store late: they need not hold back now")
    units(U2, OPT["dtr"], OPT["dth"])
    units(OPT["dtr"], OPT["dpa"])
    wait_c_done()
    stamp(3)
    units(OPT["dpa"], PA)
    poll_issue(11, 10, "s61", SRD_WS)
    units(PA, 56)
    e("s_branch L01JOIN")
    lab("L01GLU")
    units(U2, TR, OPT["th"])
    wait_c_done()
    stamp(3)
    units(TR, PA)
    cm("L0 waits for the 14 producers of row block t1>>1 (queued behind the w_down loads)")
    poll_issue(11, 10, "s61", SRD_WS)
    units(PA, 56)
    lab("L01JOIN")
    e("v_and_b32 v6, 3, v0")
    e("v_bfe_u32 v7, v0, 3, 2")
    e("v_lshl_add_u32 v6, v7, 2, v6")
    e("v_bfe_u32 v7, v0, 2, 1")
    e("v_lshl_add_u32 v6, v7, 4, v6")
    e("v_and_b32 v7, 32, v0")
    e(f"s_lshl_b32 s66, s{sCB}, 6")
    e("v_add3_u32 v6, v6, v7, s66")
    e("v_sub_u32 v7, 512, v6")
    e("v_and_b32 v7, 255, v7")
    e(f"s_sub_u32 s67, 32, s{sT1}")
    e("s_and_b32 s67, s67, 31")
    e(f"s_cmp_ge_u32 s{sCB}, 4")
    e("s_cselect_b64 s[68:69], -1, 0")
    e(f"s_cselect_b32 s67, s67, s{sT1}")
    e("v_cmp_eq_u32 vcc, 0, v6")
    e("v_cndmask_b32 v7, v6, v7, s[68:69]")
    e(f"v_lshlrev_b32 v{vZ}, 4, v7")
    e(f"v_mov_b32 v7, {OOB:#x}")
    e("s_lshl_b32 s67, s67, 16")
    e(f"v_cndmask_b32 v{vZ}, v{vZ}, v7, vcc")
    e(f"s_lshl_b32 s66, s{sLW}, 15")
    e("s_add_u32 s67, s67, s66")
    e(f"s_add_u32 s67, s67, {Z_OFF}")
    e(f"s_lshl_b32 s66, s{sLW}, 13")
    e(f"s_add_u32 m0, s66, {ZL}")
    e("v_bfe_u32 v12, v0, 1, 4")
    e("v_lshlrev_b32 v12, 4, v12")
    e("v_and_b32 v13, 1, v0")
    e("v_add3_u32 v12, v12, v13, 14")
    e("v_lshlrev_b32 v12, 7, v12")
    e(f"s_mov_b32 s70, {FLH}")
    e(f"s_lshl_b32 s66, s{sLW}, 11")
    e("v_lshl_add_u32 v6, v0, 4, s66")
    e(f"s_cmp_eq_u32 s{sLW}, 1")
    e(f"s_cselect_b32 s70, s70, {OOB:#x}")
    e("s_cbranch_scc1 L1NOPOLL")
    poll_wait(11, 10, "s61", SRD_WS, first_wait=2 * (56 - PA))
    lab("L1NOPOLL")
    e(f"s_waitcnt vmcnt({2 * min(NST, 56 - PA)})")
    stamp(4)
    bar("BW")
    e("s_waitcnt vmcnt(0)")
    bar("BP1")
    poll_issue(11, 12, "s70", SRD_WS)
    for k in range(2 * NST):
        if k == 32:
            e("v_add_u32 v6, 0x10000, v6")
        e(f"ds_write_b128 v6, {vr(ST0 + 4 * k, 4)} offset:{((k >> 1) * 4096 + (k & 1) * 1024) & 0xFFFF}")
    e("s_waitcnt lgkmcnt(0)")
    bar("BP2")
    e(f"s_cmp_eq_u32 s{sLW}, 0")
    e("s_cbranch_scc1 L0NOPOLL")
    poll_wait(11, 12, "s70", SRD_WS)
    lab("L0NOPOLL")
    stamp(5)
    bar("BZ0")
    for g in range(8):
        e(f"buffer_load_dwordx4 v{vZ}, {srd(SRD_WS)}, s67 offen sc1 lds")
        e("s_add_u32 m0, m0, 1024")
        e("s_add_u32 s67, s67, 4096")
    e("s_waitcnt vmcnt(0)")
    stamp(6)
    bar("BR")
    stamp_flush(7, 14, False)
    e("s_endpgm")


XKN = [0, 0]


def xk_init(which):
    if OPT["xk"]:
        e("s_lshl_b32 s61, s2, 7")
        e(f"s_add_u32 s61, s61, {which * 32768}")


def xk(n, which):
    if not OPT["xk"] or n < OPT["k0"]:
        return
    cnt = min(OPT["kn"], 28 - XKN[which])
    if cnt <= 0:
        return
    for k in range(cnt):
        e(f"s_buffer_load_dwordx2 s[58:59], {srd(SRD_WD)}, s61 offset:{65536 * k + 60}")
    e(f"s_add_u32 s61, s61, {65536 * cnt}")
    XKN[which] += cnt


def probe(step):
    if not NUMA:
        return
    uid[0] += 1
    k = uid[0]
    e("s_cmp_lg_u32 s2, 0")
    e(f"s_cbranch_scc1 PRB{k}")
    e(f"s_mov_b32 s64, {PROBE}")
    if step == 0:
        e(f"s_buffer_load_dword s71, {srd(SRD_WS)}, s64")
        e(f"s_buffer_load_dword s71, {srd(SRD_WS)}, s64 offset:8192")
    else:
        e("s_waitcnt lgkmcnt(0)")
        e("s_memtime s[66:67]")
        e("s_waitcnt lgkmcnt(0)")
        e(f"s_buffer_load_dword s71, {srd(SRD_WS)}, s64 offset:{8192 * ((step - 1) & 1)} glc")
        e("s_waitcnt lgkmcnt(0)")
        e("s_memtime s[68:69]")
        e("s_waitcnt lgkmcnt(0)")
        e("s_sub_u32 s66, s68, s66")
        if step == 1:
            e("s_mov_b32 s70, s66")
        else:
            if OPT.get("dbgp"):
                e("v_mov_b32 v2, 0")
                e("v_mov_b32 v4, s70")
                e("v_mov_b32 v5, s66")
                e(f"buffer_store_dwordx2 v[4:5], v2, {srd(SRD_DBG)}, 0 offen offset:8")
            e("s_cmp_lt_u32 s70, s66")
            e("s_cselect_b32 s70, 2, 3")
            e(f"s_bfe_u32 s66, s{sTAG}, 0x10002")
            e("s_xor_b32 s70, s70, s66")
            if OPT["pol"] >= 0:
                e(f"s_mov_b32 s70, {2 | OPT['pol']}")
            e("v_mov_b32 v2, 0")
            e("v_mov_b32 v3, s70")
            e(f"buffer_store_dword v3, v2, {srd(SRD_DBG)}, 0 offen offset:4 sc1")
    lab(f"PRB{k}")


def l23_tail(which):
    xb_init(which)
    xk(8, which)
    if which == 0 and NUMA:
        probe(1)
    else:
        xw(8, which)
    for n in range(9, OPT["xe"] + 1):
        bar(f"B{n}")
        if which == 0 and n == 9:
            probe(2)
        xk(n, which)
        xw(n, which)
    for n in range(OPT["xt"]):
        xk(20, which)
        xw(20, which)


def l2wave():
    vC = 8
    vm = Q()
    section("A")
    e("s_branch L01WAVE")
    lab("L2WAVE")
    cm("================ L2: column sums (64 columns x rows 64s + 16kq + 0..15) ================")
    e("v_lshrrev_b32 v18, 3, v0")
    e("v_and_b32 v19, 7, v0")
    e(f"v_mul_lo_u32 v{vC}, v18, s{sRS}")
    e(f"v_lshl_add_u32 v{vC}, v19, 4, v{vC}")
    e(f"s_lshr_b32 s64, s{sI}, 2")
    e("s_lshl_b32 s64, s64, 4")
    e(f"s_mul_i32 s69, s64, s{sRS}")
    e(f"s_and_b32 s64, s{sI}, 1")
    e("s_lshl_b32 s64, s64, 7")
    e("s_add_u32 s69, s69, s64")
    e(f"s_add_u32 s69, s69, s{sCOL}")
    e(f"s_lshl_b32 s70, s{sRS}, 3")
    e(f"s_mul_i32 s72, s{sRS}, 56")
    e("s_waitcnt lgkmcnt(0)")
    wm_select(f"s_bitcmp1_b32 s{sI}, 1")
    LD, AC = 32, 16

    def csload(y):
        vm.add(("c", y), f"buffer_load_dwordx4 {vr(LD + 4 * y, 4)}, v{vC}, {srd(SRD_WM)}, s69 offen")
        e(f"s_add_u32 s69, s69, {'s72' if y & 1 else 's70'}")

    def csproc(y):
        for d in range(4):
            r = LD + 4 * y + d
            if y == 0:
                e(f"v_lshlrev_b32 v{AC + 2 * d}, 16, v{r}")
                e(f"v_and_b32 v{AC + 2 * d + 1}, v9, v{r}")
            else:
                e(f"v_lshlrev_b32 v10, 16, v{r}")
                e(f"v_and_b32 v11, v9, v{r}")
                e(f"v_add_f32 v{AC + 2 * d}, v{AC + 2 * d}, v10")
                e(f"v_add_f32 v{AC + 2 * d + 1}, v{AC + 2 * d + 1}, v11")

    for y in range(2 * OPT["pre"]):
        csload(y)
    e("s_branch L2REST")
    section("L2")
    lab("L2REST")
    srds2()
    if OPT["tlb"]:
        cm("first touch of the pages used later (address translation is ready when the real accesses come); values unused")
        for k in range(6):
            e(f"s_mov_b32 s64, {k << 21 | 0x1f0000:#x}" if k < 5 else f"s_mov_b32 s64, {FLH + 0x7000:#x}")
            e(f"s_buffer_load_dword s71, {srd(SRD_WS)}, s64")
        e(f"s_buffer_load_dword s71, {srd(SRD_OUT)}, 0")
        e(f"s_mov_b32 s64, 0x1fff00")
        e(f"s_buffer_load_dword s71, {srd(SRD_OUT)}, s64")
    if OPT["tlb"] == 2:
        e("v_lshlrev_b32 v12, 21, v0")
        e("v_add_u32 v12, 0x70000, v12")
        vm.add("t0", f"buffer_load_dword v13, v12, {srd(SRD_WS)}, 0 offen")
        vm.add("t1", f"buffer_load_dword v13, v12, {srd(SRD_OUT)}, 0 offen")
    e("v_mov_b32 v9, 0xffff0000")
    xk_init(0)
    stamp(1)
    issued, done = 2 * OPT["pre"], 0
    for n in range(8):
        bar(f"B{n}")
        while issued < 2 * (8 if n >= OPT["prec"] else OPT["pb2"] if n >= OPT["preb"] else 0):
            csload(issued)
            issued += 1
        if n < 7:
            xk(n, 0)
        if n >= 2:
            k = min(done + (3 if n < 7 else 9), 16, issued)
            e(f"s_waitcnt vmcnt({vm.younger(('c', k - 1))})")
            for y in range(done, k):
                csproc(y)
            done = k
        if n == 6:
            probe(0)
    assert done == 16 and issued == 16
    bar("B8")
    e(f"v_mov_b32 v12, {TAGL}")
    e("ds_read_b32 v25, v12")
    for k in range(4):
        e(f"v_permlane32_swap_b32 v{AC + k}, v{AC + k + 4}")
    e("s_nop 1")
    for k in range(4):
        e(f"v_add_f32 v{AC + k}, v{AC + k}, v{AC + k + 4}")
    e("s_nop 1")
    for k in range(2):
        e(f"v_permlane16_swap_b32 v{AC + k}, v{AC + k + 2}")
    e("s_nop 1")
    for k in range(2):
        e(f"v_add_f32 v{AC + k}, v{AC + k}, v{AC + k + 2}")
    e("v_and_b32 v10, 7, v0")
    e("v_lshlrev_b32 v10, 3, v10")
    e(f"v_add_f32_dpp v24, v{AC}, v{AC} row_ror:8 row_mask:0xf bank_mask:0x3")
    e("s_nop 1")
    e(f"v_add_f32_dpp v24, v{AC + 1}, v{AC + 1} row_ror:8 row_mask:0xf bank_mask:0xc")
    e("v_bfe_u32 v11, v0, 5, 1")
    e("v_lshl_add_u32 v10, v11, 2, v10")
    e("v_bfe_u32 v11, v0, 4, 1")
    e("v_lshl_add_u32 v10, v11, 1, v10")
    e("v_bfe_u32 v11, v0, 3, 1")
    e("v_add_u32 v10, v11, v10")
    e("v_lshlrev_b32 v10, 3, v10")
    e(f"s_lshl_b32 s64, s{sJ}, 13")
    e(f"s_add_u32 s64, s64, {CS_OFF}")
    e(f"s_lshl_b32 s65, s{sI}, 9")
    e("s_add_u32 s65, s64, s65")
    e("s_waitcnt lgkmcnt(0)")
    vm.add("pub", f"buffer_store_dwordx2 v[24:25], v10, {srd(SRD_WS)}, s65 offen sc1")
    e(f"v_readfirstlane_b32 s{sTAG}, v25")
    stamp(2)
    l23_tail(0)
    stamp_flush(3, 26, False)
    e("s_endpgm")


def l3wave():
    vm = Q()
    section("A")
    lab("L3WAVE")
    cm("================ L3: launch tag, row statistics (rows 8j..8j+7 of the row block), hand-off waits ================")
    e(f"s_bfe_u32 s64, s{sJ}, 0x10002")
    e(f"s_bfe_u32 s65, s{sJ}, 0x10003")
    e("s_lshl_b32 s65, s65, 5")
    e(f"s_lshl_b32 s66, s{sI}, 1")
    e("s_add_u32 s64, s64, s65")
    e("s_add_u32 s64, s64, s66")
    e(f"s_and_b32 s65, s{sJ}, 3")
    e("s_lshl_b32 s65, s65, 9")
    e("s_add_u32 s64, s64, s65")
    e("s_lshl_b32 s64, s64, 10")
    e("v_lshrrev_b32 v4, 3, v0")
    e("v_and_b32 v14, 7, v0")
    e("v_lshlrev_b32 v6, 16, v4")
    e("v_lshl_add_u32 v6, v14, 4, v6")
    e("s_memrealtime s[66:67]")
    e("s_waitcnt lgkmcnt(0)")
    LD, UP = 16, 48

    def rowload(y):
        vm.add(("r", y), f"buffer_load_dwordx4 {vr(LD + 4 * y, 4)}, v6, {srd(SRD_X)}, s64 offen offset:{128 * y}")

    for y in range(OPT["pre"]):
        rowload(y)
    e("s_branch L3REST")
    section("L3")
    lab("L3REST")
    srds2()
    e("v_mov_b32 v2, 0")
    e("s_getreg_b32 s67, hwreg(HW_REG_XCC_ID, 0, 3)")
    e("s_andn2_b32 s66, s66, 15")
    e("s_or_b32 s66, s66, 8")
    e("s_or_b32 s66, s66, s67")
    e("v_mov_b32 v3, s66")
    e("s_cmp_eq_u32 s2, 0")
    e(f"s_cselect_b32 s66, 0, {OOB:#x}")
    vm.add("tag", f"buffer_store_dword v3, v2, {srd(SRD_DBG)}, s66 offen sc1")
    e("v_mov_b32 v9, 0xffff0000")
    xk_init(1)

    def unp(d):
        e(f"v_lshlrev_b32 v{UP + 2 * d}, 16, v{LD + d}")
        e(f"v_and_b32 v{UP + 2 * d + 1}, v9, v{LD + d}")
        if d == 0:
            e(f"v_mov_b32 v10, v{UP}")
            e(f"v_mov_b32 v11, v{UP + 1}")
        else:
            e(f"v_add_f32 v10, v10, v{UP + 2 * d}")
            e(f"v_add_f32 v11, v11, v{UP + 2 * d + 1}")

    def red8(r):
        e("s_nop 1")
        e(f"v_add_f32_dpp v{r}, v{r}, v{r} quad_perm:[1,0,3,2] row_mask:0xf bank_mask:0xf")
        e("s_nop 1")
        e(f"v_add_f32_dpp v{r}, v{r}, v{r} quad_perm:[2,3,0,1] row_mask:0xf bank_mask:0xf")
        e("s_nop 1")
        e(f"v_add_f32_dpp v{r}, v{r}, v{r} row_half_mirror row_mask:0xf bank_mask:0xf")

    def var(k):
        e(f"v_sub_f32 v{UP + k}, v{UP + k}, v10")
        e(f"v_fmac_f32 v{12 + (k & 1)}, v{UP + k}, v{UP + k}")

    issued, done = OPT["pre"], 0
    for n in range(6):
        bar(f"B{n}")
        while issued < (8 if n >= OPT["prec"] else OPT["pb2"] if n >= OPT["preb"] else 0):
            rowload(issued)
            issued += 1
        xk(n, 1)
        if n == 5:
            vm.add("np")
            poll_issue(3, 2, "0", SRD_DBG)
        if n >= 2:
            k = min(done + (2 if n < 5 else 8), 8, issued)
            e(f"s_waitcnt vmcnt({vm.younger(('r', k - 1))})")
            for d in range(4 * done, 4 * k):
                unp(d)
            done = k
    assert done == 8 and issued == 8
    e("v_add_f32 v10, v10, v11")
    red8(10)
    e(f"v_mul_f32 v10, {f2u(1.0 / 512):#x}, v10")
    e("v_mov_b32 v12, 0")
    e("v_mov_b32 v13, 0")
    bar("B6")
    for k in range(24):
        var(k)
    bar("B7")
    poll_wait(3, 2, "0", SRD_DBG, cond_tag=False, first_wait=vm.younger("np"))
    e(f"v_mov_b32 v15, {TAGL}")
    e("ds_write_b32 v15, v3")
    e("ds_write_b32 v15, v2 offset:4")
    e("ds_write_b32 v15, v2 offset:8")
    e(f"v_readfirstlane_b32 s{sTAG}, v3")
    for k in range(24, 44):
        var(k)
    e("s_waitcnt lgkmcnt(0)")
    xk(7, 1)
    bar("B8")
    for k in range(44, 64):
        var(k)
    e("v_add_f32 v12, v12, v13")
    red8(12)
    e(f"v_mul_f32 v12, {f2u(1.0 / 512):#x}, v12")
    cm("roundings as in the reference: m=bf(mean); sd=bf(sqrt(bf(bf(var)+eps))); r=1/sd")
    e("v_cvt_pk_bf16_f32 v15, v10, v12")
    e("v_lshlrev_b32 v16, 16, v15")
    e("v_and_b32 v12, v9, v15")
    e(f"v_add_f32 v12, {f2u(1e-5):#x}, v12")
    e("v_cvt_pk_bf16_f32 v12, v12, v12")
    e("v_and_b32 v12, v9, v12")
    e("v_sqrt_f32 v12, v12")
    e("v_cmp_eq_u32 vcc, 0, v14")
    e("v_cvt_pk_bf16_f32 v12, v12, v12")
    e("v_and_b32 v12, v9, v12")
    e("v_rcp_f32 v17, v12")
    e("v_lshlrev_b32 v14, 4, v4")
    e(f"v_mov_b32 v15, {OOB:#x}")
    e(f"s_lshl_b32 s64, s{sI}, 11")
    e(f"s_add_u32 s64, s64, {ST_OFF}")
    e("v_cndmask_b32 v14, v15, v14, vcc")
    e("v_mov_b32 v18, v3")
    e("v_mov_b32 v19, v3")
    e(f"s_lshl_b32 s65, s{sJ}, 7")
    e("s_add_u32 s65, s64, s65")
    vm.add("pub", f"buffer_store_dwordx4 v[16:19], v14, {srd(SRD_WS)}, s65 offen sc1")
    stamp(1)
    l23_tail(1)
    stamp_flush(2, 26, False)
    e("s_endpgm")


XF = [[64 + 4 * q for q in range(4)], [80 + 4 * q for q in range(4)]]
WF = [[96, 100], [104, 108]]
XA = [112, 113, 114, 115]
WA = 116
vPM = 118
R0 = 64
vD_R, vD_TAG = 123, 124
vA_TAG = 116
sXO, sH, sPAR, sPOL, sFLG, sOUT, sC0, sP, sKH, sPAR2 = 56, 57, 58, 59, 61, 62, 63, 73, 74, 60
XR, vXO = 80, 115


def ACC(mat, q):
    return 128 + 32 * q + 16 * mat


def TW(q, cs, z):
    return 16 * q + 8 * cs + 4 * z


def frag_reads(u, st):
    r = []
    for mat in range(2):
        for a in range(2):
            r.append(f"ds_read_b64_tr_b16 {vr(WF[st][mat] + 2 * a, 2)}, v{WA} offset:{u * 8192 + a * 2048 + mat * 1024}")
    for q in range(4):
        r.append(f"ds_read_b128 {vr(XF[st][q], 4)}, v{XA[u]} offset:{q * 4096}")
    return r


def dft_stat_reads():
    return [f"ds_read_b128 v[124:127], v{vD_TAG}"] + [f"ds_read_b128 {vr(R0 + 4 * a, 4)}, v{vD_R} offset:{32 * a}" for a in range(4)]


def late_ids(early=False):
    if not OPT["user"] and not early:
        return [f"v_and_b32 v100, 31, v{vLANE}", f"v_lshrrev_b32 v101, 5, v{vLANE}", f"v_lshlrev_b32 v{vXO}, 16, v100",
                f"v_lshl_add_u32 v{vXO}, v101, 5, v{vXO}"]
    r = ids2()
    r += [f"s_lshl_b32 s46, s{sP}, 5", f"s_add_u32 s46, s46, s{sT1}", f"s_lshl_b32 s{sXO}, s46, 10", f"s_lshl_b32 s46, s{sCB}, 7",
          f"s_add_u32 s{sXO}, s{sXO}, s46", f"s_lshl_b32 s46, s{sKH}, 6", f"s_add_u32 s{sXO}, s{sXO}, s46",
          [f"s_cmp_eq_u32 s{sT1}, 0", f"s_cselect_b32 s{sC0}, 64, 63"]]
    r += hbase(sH, sT1) + [f"s_mov_b32 s{sPAR2}, s47", f"s_lshl_b32 s46, s{sP}, 1", f"s_add_u32 s46, s46, s{sKH}",
                           f"s_mul_i32 s46, s46, {HZ}", f"s_add_u32 s{sH}, s{sH}, s46"]
    if early:
        return r
    r += [f"v_and_b32 v100, 31, v{vLANE}", f"v_lshrrev_b32 v101, 5, v{vLANE}", f"v_lshlrev_b32 v{vXO}, 16, v100",
          f"v_lshl_add_u32 v{vXO}, v101, 5, v{vXO}"]
    return r


def xloads():
    e(f"buffer_load_dwordx4 {vr(XR, 4)}, v{vXO}, {srd(SRD_X)}, s{sXO} offen")
    e(f"buffer_load_dwordx4 {vr(XR + 4, 4)}, v{vXO}, {srd(SRD_X)}, s{sXO} offen offset:16")


def mainloop(dft):
    sCnt, sDelta, sCur = 64, 65, 66
    tag = "D" if dft else "G"
    es(frag_reads(0, 0))
    e(f"s_mov_b32 s{sCnt}, 8")
    e(f"s_mov_b32 s{sCur}, {SLOT}")
    e(f"s_mov_b32 s67, {(-2 * SLOT) & 0xffffffff:#x}")

    def step(u, last):
        st = u & 1
        mf = []
        for mat in ((1, 0) if dft else (0, 1)):
            for q in range(4):
                a, b = (XF[st][q], WF[st][mat]) if dft else (WF[st][mat], XF[st][q])
                mf.append(f"v_mfma_f32_32x32x16_bf16 {vr(ACC(mat, q), 16)}, {vr(a, 4)}, {vr(b, 4)}, {vr(ACC(mat, q), 16)}")
        rd = frag_reads((u + 1) & 3, st ^ 1)
        gaps = [[] for _ in range(8)]
        if u == 3 and not last:
            gaps[0] += [f"v_add_u32 v{WA}, s{sDelta}, v{WA}", f"v_add_u32 v{XA[0]}, s{sDelta}, v{XA[0]}"]
            gaps[5] += [f"v_add_u32 v{XA[1]}, s{sDelta}, v{XA[1]}"]
            gaps[6] += [f"v_add_u32 v{XA[2]}, s{sDelta}, v{XA[2]}", f"v_add_u32 v{XA[3]}, s{sDelta}, v{XA[3]}"]
        if PROF and u in (0, 2):
            gaps[0] += ["s_memtime s[70:71]"]
        if PROF and u in (1, 3):
            gaps[5] += [f"s_lshl_b32 s72, s{sCnt}, 1", f"s_sub_u32 m0, {16 if u == 1 else 15}, s72", f"v_writelane_b32 v{vLOOPST}, s70, m0"]
        if u == 2:
            gaps[5] += [f"s_cmp_eq_u32 s{sCur}, {2 * SLOT}", f"s_cselect_b32 s{sDelta}, s67, {SLOT}"]
            gaps[6] += [f"s_add_u32 s{sCur}, s{sCur}, s{sDelta}", f"s_sub_u32 s{sCnt}, s{sCnt}, 1"]
            gaps[7] += [f"s_cmp_eq_u32 s{sCnt}, 0"]
        if u & 1:
            gaps[0] += ["s_barrier"]
        if dft:
            gaps[0] = [f"v_cndmask_b32 v{WF[st][0] + k}, v{WF[st][0] + k}, v{vPM}, s[68:69]" for k in range(2)] + gaps[0]
            gaps[1] += [f"v_cndmask_b32 v{WF[st][0] + k}, v{WF[st][0] + k}, v{vPM}, s[68:69]" for k in range(2, 4)]
        if u == 2:
            gaps[4].append(f"ds_read_b32 v119, v{vD_TAG}")
        if last:
            extra = dft_stat_reads()
            for k, x in enumerate(extra):
                gaps[2 + min(k // 3, 4)].append(x)
            gaps[0].append(f"v_readfirstlane_b32 s{sTAG}, v119")
            li = late_ids()
            for k, x in enumerate(li):
                gaps[1 + k * 7 // len(li)].append(x)
        else:
            for k in range(4):
                gaps[k + (1 if (u & 1) else 0)] += rd[2 * k:2 * k + 2]
        e("s_waitcnt lgkmcnt(0)")
        for k in range(8):
            e(mf[k])
            es(gaps[k])

    raw(".p2align 3")
    lab(f"MAIN{tag}")
    for u in range(3):
        step(u, False)
    e(f"s_cbranch_scc1 LAST{tag}")
    step(3, False)
    e(f"s_branch MAIN{tag}")
    lab(f"LAST{tag}")
    step(3, True)


X16 = [4 * k for k in range(8)]
W16 = [[64 + 4 * n for n in range(4)], [80 + 4 * n for n in range(4)]]
XA16, WA16 = [112, 113], [114, 115]
MR16, CG16, CU16, TG16 = 32, 48, 56, 96
vB_CS, vB_MR = 119, 120


def A16(sg, n):
    return 128 + 16 * sg + 4 * n


def mainloop16():
    sCnt, sDelta, sCur = 64, 65, 66
    lq = Q()
    gen = [0]

    def rdx(sg, h):
        lq.add(("x", sg), f"ds_read_b128 {vr(X16[sg], 4)}, v{XA16[h]} offset:{sg * 2048}")

    def rdw(n, a, h):
        lq.add(("w", n, a), f"ds_read_b64_tr_b16 {vr(W16[h][n] + 2 * a, 2)}, v{WA16[n & 1]} offset:{h * 16384 + a * 2048 + (n >> 1) * 1024}")

    def wait(tag):
        idx = max(i for i, t in enumerate(lq.l) if t == tag)
        n = len(lq.l) - 1 - idx
        if n < gen[0]:
            e(f"s_waitcnt lgkmcnt({n})")
            gen[0] = n

    def second_half_reads(h):
        return [lambda: rdw(0, 0, h), lambda: rdw(0, 1, h), lambda: rdx(0, h), lambda: rdw(1, 0, h), lambda: rdw(1, 1, h),
                lambda: rdw(2, 0, h), lambda: rdw(2, 1, h), lambda: rdw(3, 0, h), lambda: rdw(3, 1, h),
                lambda: rdx(1, h), lambda: rdx(2, h), lambda: rdx(3, h)]

    def issue(f):
        f()
        gen[0] += 1

    for f in second_half_reads(0):
        issue(f)
    e(f"s_mov_b32 s{sCnt}, 8")
    e(f"s_mov_b32 s{sCur}, {SLOT}")
    e(f"s_mov_b32 s67, {(-2 * SLOT) & 0xffffffff:#x}")

    def step(h, last):
        gen[0] = 15
        gaps = [[] for _ in range(32)]
        for k, sg in enumerate((4, 5, 6, 7)):
            gaps[1 + 2 * k].append(lambda sg=sg: rdx(sg, h))
        txt = [[] for _ in range(32)]
        if h == 0:
            txt[9] += [f"s_cmp_eq_u32 s{sCur}, {2 * SLOT}", f"s_cselect_b32 s{sDelta}, s67, {SLOT}"]
            txt[10] += [f"s_add_u32 s{sCur}, s{sCur}, s{sDelta}", f"s_sub_u32 s{sCnt}, s{sCnt}, 1"]
            txt[31] += [f"s_cmp_eq_u32 s{sCnt}, 0"]
        elif not last:
            txt[9] += [f"v_add_u32 v{XA16[0]}, s{sDelta}, v{XA16[0]}", f"v_add_u32 v{XA16[1]}, s{sDelta}, v{XA16[1]}"]
            txt[10] += [f"v_add_u32 v{WA16[0]}, s{sDelta}, v{WA16[0]}", f"v_add_u32 v{WA16[1]}, s{sDelta}, v{WA16[1]}"]
        if PROF and not last:
            txt[11] += ["s_memtime s[70:71]"]
            txt[29] += [f"s_lshl_b32 s72, s{sCnt}, 1", f"s_sub_u32 m0, {14 + h}, s72"]
            txt[30] += [f"v_writelane_b32 v{vLOOPST}, s70, m0"]
        if last:
            st = [f"ds_read_b64 {vr(MR16 + 2 * sg, 2)}, v{vB_MR} offset:{128 * sg}" for sg in range(8)]
            st += [f"ds_read_b128 {vr(CG16 + 4 * n, 4)}, v{vB_CS} offset:{64 * n}" for n in range(2)]
            st += [f"ds_read_b128 {vr(CU16 + 4 * n, 4)}, v{vB_CS} offset:{512 + 64 * n}" for n in range(2)]
            st += [f"ds_read_b128 {vr(TG16, 4)}, v{vA_TAG}"]
            for k, x in enumerate(st):
                txt[17 + k].append(x)
            gaps[0].append(lambda: lq.add("tag", f"ds_read_b32 v{TG16}, v{vA_TAG}"))
            li = late_ids()
            slots = [m for m in range(9, 31) if m != 16]
            per = -(-len(li) // len(slots))
            for k, x in enumerate(li):
                txt[slots[k // per]].append(x)
        else:
            for k, f in enumerate(second_half_reads(h ^ 1)):
                gaps[17 + k].append(f)
        for m in range(32):
            sg, n = m >> 2, m & 3
            if sg == 0:
                wait(("w", n, 1))
            if n == 0:
                wait(("x", 7 if sg == 4 else sg))
            e(f"v_mfma_f32_16x16x32_bf16 {vr(A16(sg, n), 4)}, {vr(W16[h][n], 4)}, {vr(X16[sg], 4)}, {vr(A16(sg, n), 4)}")
            if m == 16:
                bar()
            if last and m == 8:
                wait("tag")
                e(f"v_readfirstlane_b32 s{sTAG}, v{TG16}")
            for f in gaps[m]:
                issue(f)
            es(txt[m])

    raw(".p2align 3")
    lab("MAING")
    step(0, False)
    e("s_cbranch_scc1 LASTG")
    keep = list(lq.l)
    step(1, False)
    e("s_branch MAING")
    lab("LASTG")
    lq.l = keep
    step(1, True)


def glu_epilogue16():
    e(f"v_and_b32 v102, 15, v{vLANE}")
    e(f"v_bfe_u32 v103, v{vLANE}, 4, 1")
    e("v_lshlrev_b32 v102, 4, v102")
    e("v_lshl_add_u32 v102, v103, 9, v102")
    e(f"v_lshrrev_b32 v103, 5, v{vLANE}")
    e(f"v_mul_u32_u24 v103, {HZ}, v103")
    e("v_add_u32 v102, v102, v103")
    e("s_mov_b32 s66, 1.0")
    e("s_mov_b32 s67, 1.0")
    xloads()
    e("s_waitcnt lgkmcnt(0)")
    e(f"v_readfirstlane_b32 s{sPOL}, v{TG16 + 3}")
    for sg in range(8):
        e(f"v_mul_f32 v{MR16 + 2 * sg + 1}, {NLOG2E:#x}, v{MR16 + 2 * sg + 1}")
    es(hside(sOUT, sPAR, sPOL))
    raw(".p2align 3")
    for sg in range(8):
        q = sg >> 1
        b, p = q & 1, q >> 1
        mr = vr(MR16 + 2 * sg, 2)
        G, U = A16(sg, 0), A16(sg, 2)
        for k in range(4):
            e(f"v_pk_fma_f32 {vr(G + 2 * k, 2)}, {vr(CG16 + 2 * k, 2)}, {mr}, {vr(G + 2 * k, 2)} op_sel_hi:[1,0,1] neg_lo:[0,1,0] neg_hi:[0,1,0]")
        for k in range(4):
            e(f"v_pk_mul_f32 {vr(G + 2 * k, 2)}, {vr(G + 2 * k, 2)}, {mr} op_sel:[0,1] op_sel_hi:[1,1]")
        for k in range(8):
            e(f"v_exp_f32 v{G + k}, v{G + k}")
        for k in range(4):
            e(f"v_pk_add_f32 {vr(G + 2 * k, 2)}, {vr(G + 2 * k, 2)}, s[66:67]")
        for k in range(8):
            e(f"v_rcp_f32 v{G + k}, v{G + k}")
        for k in range(4):
            e(f"v_pk_fma_f32 {vr(U + 2 * k, 2)}, {vr(CU16 + 2 * k, 2)}, {mr}, {vr(U + 2 * k, 2)} op_sel_hi:[1,0,1] neg_lo:[0,1,0] neg_hi:[0,1,0]")
        for k in range(4):
            e(f"v_pk_mul_f32 {vr(U + 2 * k, 2)}, {vr(U + 2 * k, 2)}, {vr(G + 2 * k, 2)}")
        o = 4 * sg
        for k in range(4):
            e(f"v_cvt_pk_bf16_f32 v{o + k}, v{U + 2 * k}, v{U + 2 * k + 1}")
        e(f"s_add_u32 s65, s{sOUT}, {(b * 2 + p) * 2 * HZ + (sg & 1) * 256 + H_OFF}")
        e(f"buffer_store_dwordx4 {vr(o, 4)}, v102, {srd(SRD_WS)}, s65 offen sc1")
    e(f"v_mov_b32 v43, v{TG16}")
    publish()


def publish():
    stamp(3)
    cm("publish: the last of the four waves whose stores have completed writes the workgroup's flag")
    e("v_mov_b32 v41, 1")
    e("v_mov_b32 v42, 0")
    e("s_mov_b64 exec, 1")
    e("s_waitcnt vmcnt(0)")
    e(f"ds_add_rtn_u32 v41, v{vA_TAG}, v41 offset:4")
    e("s_waitcnt lgkmcnt(0)")
    e("v_readfirstlane_b32 s64, v41")
    e("s_cmp_lg_u32 s64, 3")
    e("s_cbranch_scc1 HNOFLAG")
    e(f"buffer_store_dword v43, v42, {srd(SRD_WS)}, s{sFLG} offen sc1")
    lab("HNOFLAG")
    e("s_mov_b64 exec, -1")
    stamp(4)


def dft_prologue():
    e(f"v_and_b32 v2, 31, v{vLANE}")
    e("v_cvt_f32_u32 v3, v2")
    e(f"v_mul_f32 v3, {f2u(1.0 / 2048):#x}, v3")
    e(f"s_and_b32 s64, s{sWAVE}, 1")
    e(f"s_lshr_b32 s65, s{sWAVE}, 1")
    e("s_lshl_b32 s65, s65, 5")
    e("s_add_u32 s64, s64, s65")
    e(f"s_lshl_b32 s65, s{sI}, 1")
    e("s_add_u32 s64, s64, s65")
    e(f"v_lshrrev_b32 v4, 5, v{vLANE}")
    e("v_lshl_add_u32 v4, v4, 8, s64")
    e("v_cvt_f32_u32 v4, v4")
    e("v_mul_f32 v4, v3, v4")
    e("v_and_b32 v5, 1, v2")
    e("v_mul_u32_u24 v5, 0x8000, v5")
    e("v_lshl_or_b32 v5, v5, 16, v5")
    for jj in range(8):
        e(f"v_fmamk_f32 v{8 + jj}, v3, {f2u(64.0 * (8 * (jj >> 2) + (jj & 3))):#x}, v4")
    for jj in range(8):
        e(f"v_fract_f32 v{8 + jj}, v{8 + jj}")
    for jj in range(8):
        e(f"v_cos_f32 v{16 + jj}, v{8 + jj}")
        e(f"v_sin_f32 v{24 + jj}, v{8 + jj}")
    e("s_nop 0")
    for k in range(4):
        e(f"v_cvt_pk_bf16_f32 v{32 + k}, v{16 + 2 * k}, v{17 + 2 * k}")
        e(f"v_cvt_pk_bf16_f32 v{40 + k}, v{24 + 2 * k}, v{25 + 2 * k}")
    for k in range(4):
        e(f"v_xor_b32 v{36 + k}, v5, v{32 + k}")
        e(f"v_xor_b32 v{44 + k}, v5, v{40 + k}")
    e(f"s_lshl_b32 s64, s{sWAVE}, 12")
    e(f"s_add_u32 s64, s64, {MISC}")
    e(f"v_lshl_add_u32 v6, v{vLANE}, 4, s64")
    for k in range(4):
        e(f"ds_write_b128 v6, {vr(32 + 4 * k, 4)} offset:{1024 * k}")
    cm("column 0 carries the Nyquist bin: lanes 0 and 32 of wave 0 in column block 14 use (+1,-1,+1,...)")
    e(f"s_cmp_eq_u32 s{sJ}, 14")
    e("s_cselect_b32 s68, 1, 0")
    e(f"s_cmp_eq_u32 s{sWAVE}, 0")
    e("s_cselect_b32 s68, s68, 0")
    e("s_mov_b32 s69, s68")
    e(f"v_mov_b32 v{vPM}, 0xbf803f80")
    e(f"v_lshlrev_b32 v119, 4, v{vLANE}")
    e(f"v_add_u32 v119, {MISC}, v119")
    e("s_waitcnt lgkmcnt(0)")


def dft_epilogue():
    e(f"v_mov_b32 v114, v{vD_R}")
    xloads()
    e("s_waitcnt lgkmcnt(0)")
    e(f"v_readfirstlane_b32 s{sPOL}, v127")
    e("s_nop 2")

    def TS(q):
        return (120 if q & 1 else 96), (104 if q == 0 else TW(q - 1, 0, 0))

    def valu(q):
        r_ = []
        for mat in range(2):
            A, T = ACC(mat, q), TS(q)[mat]
            if q == 0:
                for r in range(0, 16, 2):
                    r_.append(f"v_pk_mul_f32 {vr(A + r, 2)}, {vr(A + r, 2)}, {vr(R0 + r, 2)}")
            else:
                for r in range(16):
                    r_.append(f"v_mul_f32 v{A + r}, v{A + r}, v{R0 + r}")
            if mat and q < 3:
                r_[-1] = [r_[-1]] + [f"ds_read_b128 {vr(R0 + 4 * a, 4)}, v114 offset:{128 * (q + 1) + 32 * a}" for a in range(4)]
            for k in range(8):
                r_.append(f"v_cvt_pk_bf16_f32 v{T + k}, v{A + 2 * k}, v{A + 2 * k + 1}")
        return r_

    def mfmas(q):
        ta, tb = TS(q)
        zr, zi = ACC(0, q), ACC(1, q)
        seq = [(zr, 1, 0, tb), (zi, 0, 0, tb), (zr, 1, 1, tb + 4), (zi, 0, 1, tb + 4),
               (zr, 0, 0, ta), (zr, 0, 1, ta + 4), (zi, 1, 0, ta), (zi, 1, 1, ta + 4)]
        return [f"v_mfma_f32_32x32x16_bf16 {vr(d, 16)}, {vr(TW(q, cs, z), 4)}, {vr(b, 4)}, {'0' if k < 2 else vr(d, 16)}"
                for k, (d, cs, z, b) in enumerate(seq)]

    for q in range(5):
        v_ = valu(q) if q < 4 else []
        m_ = mfmas(q - 1) if q else []
        if 0 < q < 4:
            e("s_waitcnt lgkmcnt(0)")
        if q:
            e("s_nop 1")
        per = len(v_) // 8
        for k in range(8):
            if m_:
                e(m_[k])
                if k in (3, 4):
                    for x in range(4):
                        rg = TW(q - 1, 1, k - 3) + x
                        e(f"v_xor_b32 v{rg}, 0x80008000, v{rg}")
            if q:
                cut = [0, 6, 12, 18, 24, 30, 35, 40, 48]
                es(v_[cut[k]:cut[k + 1]])
            else:
                es(v_[k * per:(k + 1) * per])
    e(f"v_and_b32 v112, 31, v{vLANE}")
    e(f"v_lshrrev_b32 v113, 5, v{vLANE}")
    e("v_lshlrev_b32 v112, 4, v112")
    e("v_lshl_add_u32 v125, v113, 18, v112")
    e("s_nop 7")
    for r in range(16):
        for q in range(4):
            e(f"v_cvt_pk_bf16_f32 v{4 * r + q}, v{ACC(0, q) + r}, v{ACC(1, q) + r}")
        e(f"s_add_u32 s65, s{sOUT}, {(8 * (r >> 2) + (r & 3)) * 65536}")
        e(f"buffer_store_dwordx4 {vr(4 * r, 4)}, v125, {srd(SRD_WS)}, s65 offen sc1")
    stamp(3)
    e(f"v_mov_b32 v64, {CNTL}")
    e("v_mov_b32 v65, 1")
    e("s_mov_b64 exec, 1")
    e("ds_add_u32 v64, v65")
    e("s_mov_b64 exec, -1")
    stamp(4)
    cm("publish Z: the last of the four waves whose stores have completed writes the workgroup's flag")
    e(f"v_mov_b32 v66, s{sTAG}")
    e("v_mov_b32 v67, 0")
    e("s_mov_b64 exec, 1")
    e("s_waitcnt vmcnt(0)")
    e("ds_add_rtn_u32 v65, v64, v65 offset:4")
    e("s_waitcnt lgkmcnt(0)")
    e("v_readfirstlane_b32 s64, v65")
    e("s_cmp_lg_u32 s64, 3")
    e("s_cbranch_scc1 NOZF")
    e(f"buffer_store_dword v66, v67, {srd(SRD_WS)}, s{sFLG} offen sc1")
    lab("NOZF")
    e("s_mov_b64 exec, -1")
    e("s_branch PHASE2")


def phase2():
    OWN, OTH, Y, EF, HR, ET = 128, 144, 160, 32, 176, 248
    vR = 88
    W2 = [[96, 100], [104, 108], [240, 244]]
    WD = [112, 113]
    vH, vZA = 114, 116
    vEA, vEB, vES = 122, 123, 124
    ZF = 0
    assert D <= 16
    vm, lq = Q(), Q()
    lab("PHASE2")
    stamp(5)
    e(f"v_and_b32 v89, 31, v{vLANE}")
    e(f"v_lshrrev_b32 v90, 5, v{vLANE}")
    es(hside(sH, sPAR2, sPOL))
    e(f"v_bfe_u32 v{ET}, v{vLANE}, 2, 2")
    e(f"v_lshl_add_u32 v92, v90, 2, v{ET}")
    e(f"s_lshl_b32 s68, s{sKH}, 10")
    e("v_lshl_add_u32 v92, v92, 7, s68")
    e(f"v_and_b32 v93, 1, v{vLANE}")
    e("v_lshlrev_b32 v93, 2, v93")
    e(f"v_bfe_u32 v{ET + 1}, v{vLANE}, 4, 1")
    e(f"v_lshl_add_u32 v93, v{ET + 1}, 1, v93")
    e(f"v_bfe_u32 v{ET + 1}, v{vLANE}, 1, 1")
    e(f"v_add_u32 v93, v93, v{ET + 1}")
    e("v_lshl_add_u32 v92, v93, 3, v92")
    e(f"v_lshrrev_b32 v{ET}, 1, v{ET}")
    e(f"v_xor_b32 v{ET}, s{sKH}, v{ET}")
    e(f"v_lshl_add_u32 v{WD[0]}, v{ET}, 6, v92")
    e(f"v_xor_b32 v{WD[1]}, 64, v{WD[0]}")
    e(f"v_lshlrev_b32 v{vH}, 4, v{vLANE}")
    bar("BW")
    stamp(6)
    nh = [0]

    def hmore(lim, cnt):
        while cnt and nh[0] < min(56, lim):
            v = nh[0]
            vm.add(("h", v), f"buffer_load_dwordx4 {vr(HR + 4 * (v % D), 4)}, v{vH}, {srd(SRD_WS)}, s{sH} offen offset:{1024 * (v & 3)} sc1")
            if v & 3 == 3:
                e(f"s_add_u32 s{sH}, s{sH}, {4096 if v & 4 == 0 else HB - 4096}")
            nh[0] += 1
            cnt -= 1

    base = [0]

    def wreads(v):
        a = wslot(v) * 4096
        if (a & ~0xFFFF) != base[0]:
            d = (a & ~0xFFFF) - base[0]
            base[0] = a & ~0xFFFF
            es([f"v_add_u32 v{WD[c]}, {d & 0xffffffff:#x}, v{WD[c]}" for c in range(2)])
        for c in range(2):
            for k in range(2):
                lq.add(("w", v, c, k), f"ds_read_b64_tr_b16 {vr(W2[v % 3][c] + 2 * k, 2)}, v{WD[c]} offset:{(a & 0xFFFF) + 2048 * k}")

    for v in range(OPT["D0"]):
        hmore(56, 1)
        if v == 1:
            wreads(0)
            wreads(1)

    fill = [[f"s_cmp_ge_u32 s{sCB}, 4", "s_cselect_b64 s[70:71], -1, 0"],
            f"s_lshl_b32 s68, s{sKH}, 9", f"s_add_u32 s68, s68, {ZL}", f"v_lshl_add_u32 v{vZA}, v89, 4, s68",
            f"v_lshl_add_u32 v{vZA}, v90, 10, v{vZA}",
            f"s_lshl_b32 s68, s{sP}, 7", f"s_add_u32 s68, s68, {R2L}", "v_lshl_add_u32 v93, v89, 2, s68",
            f"v_lshl_add_u32 v91, v89, 1, s{sP}", f"v_sub_u32 v92, s{sC0}, v91", "v_cndmask_b32 v91, v91, v92, s[70:71]",
            f"v_and_b32 v{vES}, 1, v91", f"v_mul_u32_u24 v{vES}, 0x8000, v{vES}", f"v_lshl_or_b32 v{vES}, v{vES}, 16, v{vES}",
            "v_cvt_f32_u32 v91, v91", f"v_mul_f32 v{vEA}, {f2u(1.0 / 64):#x}, v91",
            "v_lshlrev_b32 v92, 1, v90", "v_cvt_f32_u32 v92, v92", f"v_mul_f32 v{vEB}, v{vEA}, v92"]
    for sg in range(8):
        for b in range(2):
            fill.append(f"v_fmamk_f32 v{ET + b}, v{vEA}, {f2u(float(4 * sg + b)):#x}, v{vEB}")
        for b in range(2):
            fill.append(f"v_fract_f32 v{ET + b}, v{ET + b}")
        for b in range(2):
            fill.append(f"v_cos_f32 v{ET + 2 + b}, v{ET + b}")
            fill.append(f"v_sin_f32 v{ET + 4 + b}, v{ET + b}")
        fill.append([f"v_cvt_pk_bf16_f32 v{EF + 4 * sg}, v{ET + 2}, v{ET + 4}",
                     f"v_cvt_pk_bf16_f32 v{EF + 4 * sg + 1}, v{ET + 3}, v{ET + 5}"])
        for b in range(2):
            fill.append(f"v_xor_b32 v{EF + 4 * sg + 2 + b}, v{vES}, v{EF + 4 * sg + b}")
    P2BAR = {55 - NRES: "BP1", NRES - 2: "BP2", OPT["vz0"]: "BZ0"}
    assert NRES - 2 < OPT["vz0"] < 55

    for v in range(56):
        e(f"s_waitcnt vmcnt({vm.younger(('h', v))}) lgkmcnt({lq.younger(('w', v, 1, 1))})")
        h = vr(HR + 4 * (v % D), 4)
        st = v % 3
        e(f"v_mfma_f32_32x32x16_bf16 {vr(OWN, 16)}, {vr(W2[st][0], 4)}, {h}, {'0' if v == 0 else vr(OWN, 16)}")
        if v in P2BAR:
            bar(P2BAR[v])
        if v + 2 < 56:
            wreads(v + 2)
        e(f"v_mfma_f32_32x32x16_bf16 {vr(OTH, 16)}, {vr(W2[st][1], 4)}, {h}, {'0' if v == 0 else vr(OTH, 16)}")
        if PROF and v % 4 == 0:
            e("s_memtime s[78:79]")
        if PROF and v % 4 == 2:
            e(f"v_writelane_b32 v{vLOOPST}, s78, {16 + v // 4}")
        if v == 40:
            lq.add("r", f"ds_read_b32 v{vR}, v93")
        hmore(v + 1 + D, 2)
        es(fill[:OPT.get("nf", 3)])
        del fill[:OPT.get("nf", 3)]
    assert not fill
    stamp(7)

    def ymf(sg):
        e(f"v_mfma_f32_32x32x16_bf16 {vr(Y, 16)}, {vr(ZF + 4 * sg, 4)}, {vr(EF + 4 * sg, 4)}, {'0' if sg == 0 else vr(Y, 16)}")

    cm("cross-wave reduction over the two K halves")
    XU, PT, TT = 176, 192, 208
    e(f"s_lshl_b32 s68, s{sWAVE}, 12")
    e(f"s_add_u32 s68, s68, {RED}")
    e(f"v_lshl_add_u32 v91, v{vLANE}, 4, s68")
    e("v_xor_b32 v92, 8192, v91")
    e(f"v_mul_f32 v{vR + 1}, {NLOG2E:#x}, v{vR}")
    e("v_mov_b32 v93, 0xffff0000")
    e("s_nop 0")
    for k in range(3):
        e(f"v_lshlrev_b32 v{XU + 2 * k}, 16, v{XR + k}")
        e(f"v_and_b32 v{XU + 2 * k + 1}, v93, v{XR + k}")
    for a in range(4):
        e(f"ds_write_b128 v91, {vr(OTH + 4 * a, 4)} offset:{1024 * a}")
    for k in range(3, 8):
        e(f"v_lshlrev_b32 v{XU + 2 * k}, 16, v{XR + k}")
        e(f"v_and_b32 v{XU + 2 * k + 1}, v93, v{XR + k}")
    e("s_waitcnt lgkmcnt(0)")
    bar("BR")
    for a in range(4):
        e(f"ds_read_b128 {vr(PT + 4 * a, 4)}, v92 offset:{1024 * a}")
    for sg in range(8):
        e(f"ds_read_b128 {vr(ZF + 4 * sg, 4)}, v{vZA} offset:{2048 * sg}")
    e("s_waitcnt lgkmcnt(8)")
    rr = vr(vR, 2)
    raw(".p2align 3")
    for k in range(8):
        e(f"v_pk_add_f32 {vr(OWN + 2 * k, 2)}, {vr(OWN + 2 * k, 2)}, {vr(PT + 2 * k, 2)}")
    for k in range(8):
        e(f"v_pk_mul_f32 {vr(TT + 2 * k, 2)}, {vr(OWN + 2 * k, 2)}, {rr} op_sel:[0,1] op_sel_hi:[1,1]")
    for k in range(8):
        e(f"v_pk_mul_f32 {vr(OWN + 2 * k, 2)}, {vr(OWN + 2 * k, 2)}, {rr} op_sel_hi:[1,0]")
    e("s_waitcnt lgkmcnt(0)")
    for k in range(16):
        if k % 3 == 0:
            ymf(k // 3)
        e(f"v_exp_f32 v{TT + k}, v{TT + k}")
    for k in range(16):
        if k in (2, 8):
            ymf(6 + (k >> 3))
        e(f"v_add_f32 v{TT + k}, 1.0, v{TT + k}")
    for k in range(16):
        e(f"v_rcp_f32 v{TT + k}, v{TT + k}")
    raw(".p2align 3")
    for k in range(8):
        e(f"v_pk_mul_f32 {vr(OWN + 2 * k, 2)}, {vr(OWN + 2 * k, 2)}, {vr(TT + 2 * k, 2)}")
    for k in range(8):
        e(f"v_pk_fma_f32 {vr(OWN + 2 * k, 2)}, {vr(OWN + 2 * k, 2)}, {vr(Y + 2 * k, 2)}, {vr(XU + 2 * k, 2)}")
    for k in range(8):
        e(f"v_cvt_pk_bf16_f32 v{TT + k}, v{OWN + 2 * k}, v{OWN + 2 * k + 1}")
    e(f"buffer_store_dwordx4 {vr(TT, 4)}, v{vXO}, {srd(SRD_OUT)}, s{sXO} offen")
    e(f"buffer_store_dwordx4 {vr(TT + 4, 4)}, v{vXO}, {srd(SRD_OUT)}, s{sXO} offen offset:16")
    stamp_flush(8, 64, True)
    if OPT.get("rabs"):
        lab("DLY")
        e("s_memrealtime s[82:83]")
        e("s_waitcnt lgkmcnt(0)")
        e("s_sub_u32 s82, s82, s98")
        e(f"s_cmp_lt_u32 s82, {OPT['rabs']}")
        e("s_cbranch_scc1 DLY")
    e("s_endpgm")


def cwave():
    section("C0")
    lab("CWAVE")
    cm("================ C waves: matrix work ================")
    e("s_setprio 2")
    ids1()
    e(f"v_mov_b32 v{vLANE}, v0")
    for k in range(4):
        e(f"v_mov_b32 v{8 + k}, 0")
    e("v_and_b32 v2, 31, v0")
    e("v_lshrrev_b32 v3, 5, v0")
    for k in range(8):
        e(f"v_mfma_f32_32x32x16_bf16 {vr(128 + 16 * k, 16)}, v[8:11], v[8:11], 0")
    e("s_waitcnt lgkmcnt(0)")
    srds2()
    e(f"s_and_b32 s{sP}, s{sWAVE}, 1")
    e(f"s_lshr_b32 s{sKH}, s{sWAVE}, 1")
    e(f"s_lshl_b32 s64, s{sI}, 4")
    e(f"s_add_u32 s64, s64, s{sJ}")
    e("s_lshl_b32 s64, s64, 7")
    e(f"s_add_u32 s{sFLG}, s64, {FLH}")
    if not OPT["user"]:
        es(late_ids(True))
    e(f"s_cmp_eq_u32 s{sDFT}, 1")
    e("s_cbranch_scc1 CDFT")
    e(f"s_lshl_b32 s64, s{sJ}, 2")
    e(f"s_add_u32 s64, s64, s{sWAVE}")
    e("s_lshr_b32 s65, s64, 3")
    e(f"s_mul_i32 s65, s65, {HB}")
    e("s_and_b32 s64, s64, 7")
    e("s_lshl_b32 s64, s64, 10")
    e("s_add_u32 s64, s64, s65")
    e(f"s_lshl_b32 s65, s{sI}, 1")
    es(hbase(sOUT, 65))
    e(f"s_mov_b32 s{sPAR}, s47")
    e(f"s_add_u32 s{sOUT}, s{sOUT}, s64")
    if True:
        e("v_and_b32 v2, 15, v0")
        e("v_lshrrev_b32 v3, 4, v0")
        e("v_lshrrev_b32 v4, 1, v2")
        e("v_xor_b32 v4, v4, v3")
        e("v_lshlrev_b32 v5, 7, v2")
        e(f"v_lshl_add_u32 v{XA16[0]}, v4, 4, v5")
        e(f"v_add_u32 v{XA16[0]}, {SLOT + 32768}, v{XA16[0]}")
        e(f"v_xor_b32 v{XA16[1]}, 64, v{XA16[0]}")
        e("v_bfe_u32 v4, v0, 2, 2")
        e("v_lshlrev_b32 v5, 12, v3")
        e("v_lshl_add_u32 v5, v4, 8, v5")
        e(f"v_xor_b32 v4, s{sWAVE}, v4")
        e("v_lshl_add_u32 v5, v4, 6, v5")
        e("v_and_b32 v4, 1, v3")
        e("v_lshl_add_u32 v5, v4, 5, v5")
        e("v_and_b32 v4, 3, v0")
        e("v_lshl_add_u32 v5, v4, 3, v5")
        e(f"v_add_u32 v{WA16[0]}, {SLOT}, v5")
        e(f"v_xor_b32 v{WA16[1]}, 32, v{WA16[0]}")
        e(f"s_lshl_b32 s64, s{sWAVE}, 7")
        e(f"s_add_u32 s64, s64, {CSL}")
        e(f"v_lshl_add_u32 v{vB_CS}, v3, 4, s64")
        e(f"v_lshlrev_b32 v{vB_MR}, 3, v2")
        e(f"v_add_u32 v{vB_MR}, {MRP}, v{vB_MR}")
        e(f"v_mov_b32 v{vA_TAG}, {TAGL}")
    e("s_branch CGLU")
    section("CG")
    lab("CGLU")
    stamp(1)
    bar("B0")
    mainloop16()
    stamp(2)
    glu_epilogue16()
    phase2()
    section("CD")
    lab("CDFT")
    e("v_bfe_u32 v4, v0, 1, 3")
    e("v_lshlrev_b32 v5, 7, v2")
    e(f"v_add_u32 v5, {SLOT + 32768}, v5")
    for u in range(4):
        e(f"v_add_u32 v6, {2 * u}, v3")
        e("v_xor_b32 v6, v6, v4")
        e(f"v_lshl_add_u32 v{XA[u]}, v6, 4, v5")
    e("v_bfe_u32 v4, v0, 2, 2")
    e(f"v_lshlrev_b32 v{WA}, 12, v3")
    e(f"v_lshl_add_u32 v{WA}, v4, 8, v{WA}")
    e(f"v_xor_b32 v4, s{sWAVE}, v4")
    e(f"v_lshl_add_u32 v{WA}, v4, 6, v{WA}")
    e("v_bfe_u32 v4, v0, 4, 1")
    e("v_xor_b32 v4, v4, v3")
    e(f"v_lshl_add_u32 v{WA}, v4, 5, v{WA}")
    e("v_and_b32 v4, 3, v0")
    e(f"v_lshl_add_u32 v{WA}, v4, 3, v{WA}")
    e(f"v_add_u32 v{WA}, {SLOT}, v{WA}")
    e(f"v_lshlrev_b32 v{vD_R}, 4, v3")
    e(f"v_add_u32 v{vD_R}, {RL}, v{vD_R}")
    e(f"v_mov_b32 v{vD_TAG}, {TAGL}")
    e(f"s_lshl_b32 s64, s{sI}, 12")
    e(f"s_and_b32 s65, s{sJ}, 1")
    e("s_lshl_b32 s66, s65, 11")
    e("s_add_u32 s64, s64, s66")
    e(f"s_lshl_b32 s66, s{sWAVE}, 9")
    e("s_add_u32 s64, s64, s66")
    e(f"s_add_u32 s{sOUT}, s64, {Z_OFF}")
    dft_prologue()
    stamp(1)
    bar("B0")
    for k in range(16):
        e(f"ds_read_b128 {vr(4 * k, 4)}, v119 offset:{1024 * k}")
    mainloop(True)
    stamp(2)
    dft_epilogue()


hdr = open("cdna_kernels/" + NAME + ".s.ref").read().split("\n")
head = [l for l in hdr if l.startswith(";") and "@launch" not in l and "Override launch" not in l and "grid=ceil" not in l]
out = head + ["; @launch grid=(256,1,1) block=(512,1,1) lds=163840",
              '.amdgcn_target "amdgcn-amd-amdhsa--gfx950"', ".text", f".globl {K}"]
out.append(".p2align 12")
out += [".p2align 8", f".type {K},@function", f"{K}:"]
entry()
l2wave()
l3wave()
l01wave()
cwave()
for name, align in (("A", 0), ("A2", 0), ("C0", 0), ("L2", 0), ("L3", 0), ("CG", 12), ("CD", 12)):
    if align:
        out.append(f".p2align {align}")
    out += SEC[name]
out += ["END:", "    s_endpgm"]
out += ['.section .rodata,"a"', ".p2align 6", f".amdhsa_kernel {K}", "  .amdhsa_next_free_vgpr 256", "  .amdhsa_next_free_sgpr 102",
        "  .amdhsa_accum_offset 256", "  .amdhsa_group_segment_fixed_size 0", "  .amdhsa_kernarg_size 96",
        "  .amdhsa_user_sgpr_count 2", "  .amdhsa_user_sgpr_kernarg_segment_ptr 1", "  .amdhsa_system_sgpr_workgroup_id_x 1",
        ".end_amdhsa_kernel", ""]
open(sys.argv[1], "w").write("\n".join(out))
```
